```python
import torch

def _softmax(x, axis=-1):
    return torch.softmax(x, dim=axis)
def _gelu(x):
    return torch.nn.functional.gelu(x, approximate="tanh")
def _silu(x):
    return torch.nn.functional.silu(x)
def _sigmoid(x):
    return torch.sigmoid(x)
def _layernorm(x, axis=-1, eps=1e-5):
    m = x.mean(dim=axis, keepdim=True)
    v = x.var(dim=axis, keepdim=True, unbiased=False)
    return (x - m) / torch.sqrt(v + eps)
def _scatter_add(tgt, idx, src, axis=0):
    return tgt.clone().index_add_(axis, idx, src)
def _segment_sum(src, seg, n):
    out = torch.zeros((n,) + src.shape[1:], dtype=src.dtype)
    return out.index_add_(0, seg, src)
def _pad(x, pw):
    flat = tuple(v for pair in reversed(pw) for v in pair)
    return torch.nn.functional.pad(x, flat)

kernel_name = 'parallel_sum__mha_block_cached__geglu_ffn__decode'

def setup_inputs():

    _w = (lambda a: (lambda t: t.to(torch.bfloat16) if t.is_floating_point() else t)(torch.as_tensor(a)))
    def _A_setup():
        B, Sq, D = 4, 1, 448
        H, Sk, Dh = 16, 4096, 256
        return {
            "x": _w((lambda *s: torch.randn(*s, dtype=torch.bfloat16) * 0.05)(B, Sq, D)),
            "k_cache": _w((lambda *s: torch.randn(*s, dtype=torch.bfloat16) * 3.2)(B, H, Sk, Dh)),
            "v_cache": _w((lambda *s: torch.randn(*s, dtype=torch.bfloat16) * 1.6)(B, H, Sk, Dh)),
            "wq": _w((lambda *s: torch.randn(*s, dtype=torch.bfloat16) * 3.2)(D, H * Dh) * (D ** -0.5)),
            "wo": _w((lambda *s: torch.randn(*s, dtype=torch.bfloat16) * 1.6)(H * Dh, D) * ((H * Dh) ** -0.5)),
        }
    _A_in = _A_setup()

    def _B_setup():
        B, S, D, F = 4, 1, 448, 1792
        return {
            "x": _w((lambda *s: torch.randn(*s, dtype=torch.bfloat16) * 0.05)(B, S, D)),
            "w_gate": _w((lambda *s: torch.randn(*s, dtype=torch.bfloat16) * 0.05)(D, F)),
            "w_up": _w((lambda *s: torch.randn(*s, dtype=torch.bfloat16) * 0.05)(D, F)),
            "w_down": _w((lambda *s: torch.randn(*s, dtype=torch.bfloat16) * 0.05)(F, D)),
        }
    _B_in = _B_setup()

    return {
        "A_x": _A_in["x"],
        "A_k_cache": _A_in["k_cache"],
        "A_v_cache": _A_in["v_cache"],
        "A_wq": _A_in["wq"],
        "A_wo": _A_in["wo"],
        "B_x": _B_in["x"],
        "B_w_gate": _B_in["w_gate"],
        "B_w_up": _B_in["w_up"],
        "B_w_down": _B_in["w_down"],
    }

def reference(A_x, A_k_cache, A_v_cache, A_wq, A_wo, B_x, B_w_gate, B_w_up, B_w_down):
    def _A_ref(x, k_cache, v_cache, wq, wo):
        B, Sq, D = x.shape
        H, Dh = 16, 256
        q = (lambda x, *d: x.permute(*d))((x @ wq).reshape(B, Sq, H, Dh), 0, 2, 1, 3)
        scores = torch.einsum("bhqd,bhkd->bhqk", q, k_cache) * (Dh ** -0.5)
        p = _softmax(scores, axis=-1)
        o = torch.einsum("bhqk,bhkd->bhqd", p, v_cache)
        return (lambda x, *d: x.permute(*d))(o, 0, 2, 1, 3).reshape(B, Sq, H * Dh) @ wo

    def _B_ref(x, w_gate, w_up, w_down):
        return (_gelu(x @ w_gate) * (x @ w_up)) @ w_down

    x = A_x
    xn = _layernorm(x, axis=-1)
    return x + _A_ref(xn, A_k_cache, A_v_cache, A_wq, A_wo) + _B_ref(xn, B_w_gate, B_w_up, B_w_down)
```

```python
import re

TRANS = ("v_exp_f32", "v_log_f32", "v_rcp_f32", "v_rsq_f32", "v_sqrt_f32", "v_sin_f32", "v_cos_f32")

def _regs(tok):
    tok = tok.strip()
    tok = tok.lstrip("-")
    m = re.fullmatch(r"abs\((.*)\)", tok)
    if m: tok = m.group(1)
    tok = tok.strip("|")
    m = re.fullmatch(r"([vsa])\[(\d+):(\d+)\]", tok)
    if m: return {f"{m.group(1)}{i}" for i in range(int(m.group(2)), int(m.group(3)) + 1)}
    m = re.fullmatch(r"([vsa])(\d+)", tok)
    if m: return {tok}
    if tok in ("vcc", "vcc_lo", "vcc_hi"): return {"vcc"}
    if tok in ("exec", "exec_lo", "exec_hi"): return {"exec"}
    if tok == "m0": return {"m0"}
    return set()

class Ins:
    def __init__(self, text):
        self.text = text
        t = text.split(";")[0].strip()
        parts = t.split(None, 1)
        self.op = parts[0]
        rest = parts[1] if len(parts) > 1 else ""
        ops, depth, cur = [], 0, ""
        for ch in rest:
            if ch in "[(": depth += 1
            if ch in "])": depth -= 1
            if ch == "," and depth == 0:
                ops.append(cur); cur = ""
            else: cur += ch
        if cur.strip(): ops.append(cur)
        mods = ""
        if ops:
            last = ops[-1].strip().split(None, 1)
            ops[-1] = last[0]
            mods = last[1] if len(last) > 1 else ""
        self.ops = [o.strip() for o in ops]
        self.mods = mods
        op = self.op
        self.mfma = op.startswith("v_mfma")
        self.valu = op.startswith("v_") and not self.mfma
        self.dpp = self.valu and ("_dpp" in op or "quad_perm" in mods or "row_" in mods)
        self.trans = any(op.startswith(x) for x in TRANS)
        self.vmem = op.startswith(("buffer_", "global_", "flat_"))
        self.ds = op.startswith("ds_")
        self.salu = op.startswith("s_") and not op.startswith(("s_load", "s_buffer_load", "s_waitcnt", "s_nop", "s_barrier", "s_branch", "s_cbranch", "s_endpgm", "s_sleep", "s_setprio", "s_atomic", "s_mem"))
        self.permlane = op.startswith("v_permlane")
        self.rdlane = op.startswith(("v_readlane", "v_readfirstlane"))
        self.ldsdma = self.vmem and (" lds" in " " + mods or "load_lds" in op)
        R = [_regs(o) for o in self.ops]
        self.wr, self.rd = set(), set()
        self.srcC = set(); self.srcAB = set()
        if self.mfma:
            self.wr = R[0]; self.srcAB = R[1] | R[2]; self.srcC = R[3]; self.rd = self.srcAB | self.srcC
        elif self.valu:
            if op.startswith("v_cmp"):
                self.wr = R[0]; self.rd = set().union(*R[1:]) if len(R) > 1 else set()
                if op.startswith("v_cmpx"): self.wr = self.wr | {"exec"}
            elif self.permlane:
                self.wr = R[0] | R[1]; self.rd = R[0] | R[1]
            elif op.startswith(("v_add_co", "v_sub_co", "v_addc_co", "v_subb_co")):
                self.wr = R[0] | R[1]; self.rd = set().union(*R[2:])
            else:
                self.wr = R[0]; self.rd = set().union(*R[1:]) if len(R) > 1 else set()
                if op.startswith(("v_fmac", "v_dot2c", "v_writelane")) or self.dpp or "sdwa" in op: self.rd = self.rd | R[0]
        elif self.vmem:
            is_store = "store" in op or ("atomic" in op and "sc0" not in mods)
            allr = set().union(*R) if R else set()
            if op.startswith(("buffer_inv", "buffer_wbl2")): pass
            elif self.ldsdma: self.rd = allr | {"m0"}
            elif is_store: self.rd = allr
            elif "atomic" in op and op.startswith("buffer"): self.wr = R[0]; self.rd = allr
            else: self.wr = R[0]; self.rd = set().union(*R[1:])
            self.wide_store = is_store and ("x3" in op or "x4" in op)
            if self.wide_store:
                self.sdata = R[0] if op.startswith("buffer") else R[1]
        elif self.ds:
            if op.startswith(("ds_read", "ds_bpermute", "ds_permute", "ds_swizzle")):
                self.wr = R[0]; self.rd = set().union(*R[1:])
            else: self.rd = set().union(*R)
        elif self.salu:
            if op.startswith("s_cmp") or op.startswith("s_bitcmp"): self.rd = set().union(*R)
            else:
                self.wr = R[0] if R else set(); self.rd = set().union(*R[1:]) if len(R) > 1 else set()
                if "saveexec" in op: self.wr = self.wr | {"exec"}
        self.states = 1
        if op == "s_nop": self.states = int(self.ops[0], 0) + 1

def passes(op):
    if "16x16x32" in op or "16x16x16" in op: return 4
    if "32x32x16" in op or "32x32x8" in op: return 8
    if "4x4x4" in op: return 2
    raise ValueError(op)

def isv(s): return {r for r in s if r[0] in "va" and r not in ("vcc",)}
def iss(s): return {r for r in s if r[0] == "s" or r == "vcc"}

def need(p, c):
    n = 0
    if p.valu:
        wv = isv(p.wr); ws = iss(p.wr)
        if c.dpp and wv & c.rd: n = max(n, 2)
        if c.mfma and wv & c.rd: n = max(n, 2)
        if c.permlane and wv & c.rd: n = max(n, 2)
        if c.rdlane and wv & c.rd: n = max(n, 1)
        if p.trans and c.valu and not c.trans and wv & c.rd: n = max(n, 1)
        if p.trans and (c.mfma) and wv & c.rd: n = max(n, 2)
        if ("sdwa" in p.op or ("op_sel" in p.mods and not p.op.startswith("v_pk_"))) and c.valu and wv & (c.rd | c.wr): n = max(n, 1)
        if ws:
            if c.valu and ws & c.rd: n = max(n, 4 if (c.rdlane or c.op.startswith("v_writelane")) else 2)
            if c.valu and "vcc" in ws and c.op.startswith(("v_cndmask", "v_addc", "v_subb")): n = max(n, 2)
            if c.valu and "vcc" in ws and c.op.startswith("v_div_fmas"): n = max(n, 4)
            if c.vmem and ws & c.rd: n = max(n, 5)
            if c.salu and ws & c.rd: n = max(n, 1)
        if "exec" in p.wr:
            if c.dpp: n = max(n, 5)
            if c.mfma or c.rdlane or c.permlane: n = max(n, 4)
        if p.op.startswith("v_dot"):
            if (c.valu or c.mfma or c.vmem or c.ds) and wv & (c.rd | c.wr):
                same_c = c.op == p.op and not (wv & (set().union(*[_regs(o) for o in c.ops[1:3]])))
                if not same_c: n = max(n, 3)
    if p.mfma:
        k = {2: 0, 4: 1, 8: 2, 16: 3}[passes(p.op)]
        if c.mfma:
            if p.wr & c.srcAB: n = max(n, [5, 8, 12, 20][k])
            if p.wr & c.srcC:
                if p.wr == c.srcC and passes(p.op) == passes(c.op): n = max(n, [2, 0, 0, 0][k])
                else: n = max(n, [4, 6, 10, 18][k])
            elif p.wr & c.wr: n = max(n, [5, 8, 12, 20][k])
        elif c.valu or c.vmem or c.ds:
            if p.wr & (c.rd | c.wr): n = max(n, [5, 8, 12, 20][k])
            if c.valu and p.srcC & c.wr: n = max(n, [1, 3, 7, 15][k])
    if p.vmem and getattr(p, "wide_store", False):
        if (c.valu or c.mfma or c.vmem or c.ds) and p.sdata & c.wr: n = max(n, 2)
    if p.salu and "m0" in p.wr and (c.ldsdma or "addtid" in c.op or c.op.startswith("s_movrel")): n = max(n, 1)
    return n

class Asm:
    def __init__(self):
        self.lines = []
        self.hist = []
        self.nops = 0
    def raw(self, s):
        self.lines.append(s)
    def _pad(self, k):
        while k > 0:
            n = min(k, 16)
            i = Ins(f"s_nop {n-1}")
            self.lines.append("    " + i.text); self.hist.append(i); self.nops += 1
            k -= n
    def drain(self):
        dist = 0; k = 0
        for p in reversed(self.hist):
            worst = 0
            if p.mfma: worst = [5, 8, 12, 20][{2: 0, 4: 1, 8: 2, 16: 3}[passes(p.op)]]
            elif p.valu: worst = 5 if (iss(p.wr) or "exec" in p.wr) else (3 if p.op.startswith("v_dot") else 2)
            elif p.vmem and getattr(p, "wide_store", False): worst = 2
            elif p.salu and "m0" in p.wr: worst = 1
            k = max(k, worst - dist)
            dist += p.states
            if dist > 24: break
        self._pad(k)
    def label(self, name, drain=True):
        if drain: self.drain()
        self.lines.append(f"{name}:")
        if drain: self.hist = []
    def __call__(self, text, drain=True):
        for t in text.split("\n"):
            t = t.strip()
            if not t or t.startswith(";"):
                if t: self.lines.append("    " + t)
                continue
            c = Ins(t)
            if c.op.startswith(("s_branch", "s_cbranch")) and drain:
                before = len(self.lines)
                self.hist.append(c); self.drain(); self.hist.remove(c)
            dist = 0; k = 0
            for p in reversed(self.hist):
                k = max(k, need(p, c) - dist)
                dist += p.states
                if dist > 24: break
            self._pad(k)
            self.lines.append("    " + t)
            self.hist.append(c)
            if len(self.hist) > 64: self.hist = self.hist[-40:]
    def text(self):
        return "\n".join(self.lines) + "\n"
```

```python
import sys, struct, math
sys.path.insert(0, "gen")
from asmlib import Asm

NAME = "parallel_sum__mha_block_cached__geglu_ffn__decode_kernel"
HEADER = open("parallel_sum__mha_block_cached__geglu_ffn__decode.s.ref").read().split("; Override launch")[0]

def f2u(x): return struct.unpack("<I", struct.pack("<f", x))[0]

QMB = 0x1000
HMB = QMB + 64 * 2048
MB1 = 0x40000
MB2 = MB1 + 0x100000
TSB = MB2 + 0x100000
WS_USED = TSB + 0x10000
XN, QL, TAGL, ML, OP, SC = 0, 3584, 4096, 4128, 4352, 8448
WL0 = SC + 16384
WL1 = WL0 + 14336
LDS_BYTES = WL1 + 14336

FULL = "row_mask:0xf bank_mask:0xf"
IDP = "quad_perm:[0,1,2,3]"

def gen(W=5, NP=5, nt="nt", wnt="nt", stamps=False, warm=True, sleep1=1, sleep2=1, sleepq=1, spin=1 << 16):
    a = Asm()
    a.raw(HEADER.rstrip("\n"))
    a.raw(f"; @launch grid=(256,1,1) block=(320,1,1) lds={LDS_BYTES}")
    a.raw('.amdgcn_target "amdgcn-amd-amdhsa--gfx950"')
    a.raw(".text"); a.raw(f".globl {NAME}"); a.raw(".p2align 8"); a.raw(f".type {NAME},@function")
    a.raw(f"{NAME}:")
    SK, SV, SW, SA, SB, SC_, SD = 28, 32, 36, 40, 44, 48, 52
    sB, sH, sJ, sIDX, sBH, sTAG, sCNT, sKO, sVO, sWv = 56, 57, 58, 59, 60, 61, 62, 63, 64, 72
    def srd(r, ptr, size):
        a(f"s_mov_b32 s{r}, s{ptr}\ns_mov_b32 s{r+1}, s{ptr+1}\ns_mov_b32 s{r+2}, {size}\ns_mov_b32 s{r+3}, 0x20000")
    def S(r): return f"s[{r}:{r+3}]"
    def V4(r): return f"v[{r}:{r+3}]"
    def V2(r): return f"v[{r}:{r+1}]"
    nstamp = [0]
    def stamp(k):
        if stamps:
            a(f"s_memrealtime s[{80+2*k}:{81+2*k}]")
    def dump_stamps(n):
        if not stamps: return
        a("s_waitcnt lgkmcnt(0)")
        a("s_mov_b64 exec, 1")
        a(f"s_mul_i32 s65, s2, 5\ns_add_u32 s65, s65, s3\ns_lshl_b32 s65, s65, 5\ns_add_u32 s65, s65, {TSB}")
        a("v_mov_b32 v1, 0")
        for k in range(n):
            a(f"v_mov_b32 v2, s{80+2*k}")
            a(f"buffer_store_dword v2, v1, {S(SW)}, s65 offen offset:{4*k}")
        a("s_waitcnt vmcnt(0)")

    a("s_cmp_ge_u32 s2, 256\ns_cbranch_scc1 L_end")
    a("s_load_dwordx16 s[4:19], s[0:1], 0\ns_load_dwordx8 s[20:27], s[0:1], 64")
    stamp(0)
    a("v_lshrrev_b32 v1, 6, v0\nv_and_b32 v0, 63, v0\nv_readfirstlane_b32 s3, v1")
    a(f"s_lshr_b32 s{sB}, s2, 6\ns_lshr_b32 s{sBH}, s2, 2\ns_and_b32 s{sH}, s{sBH}, 15\ns_and_b32 s{sJ}, s2, 3\ns_and_b32 s{sIDX}, s2, 63")
    a("v_and_b32 v4, 15, v0\nv_lshrrev_b32 v5, 4, v0")
    a("s_cmp_eq_u32 s3, 0\ns_cbranch_scc1 L_helper")

    vKO, vVO, vSC, vMAX, vL, vC, vMC, vS = 1, 2, 3, 6, 7, 28, 29, 30
    vJ, vG = 4, 5
    MASK, OACC, BB, QF, DA, TMP, R = 8, 12, 20, 32, 64, 84, 96
    def ring(tile, u): return R + 32 * tile + 4 * u
    WOF = R + 32
    a(f"s_sub_u32 s{sWv}, s3, 1")
    a(f"v_lshrrev_b32 v{TMP}, 2, v{vJ}\nv_lshlrev_b32 v{TMP}, 9, v{TMP}\nv_and_b32 v{TMP+1}, 3, v{vJ}\nv_lshlrev_b32 v{TMP+1}, 4, v{TMP+1}")
    a(f"v_lshl_add_u32 v{TMP+1}, v{vG}, 6, v{TMP+1}")
    a(f"v_add_u32 v{vKO}, v{TMP}, v{TMP+1}")
    a(f"v_lshlrev_b32 v{vVO}, 4, v{vJ}\nv_lshl_add_u32 v{vVO}, v{vG}, 9, v{vVO}")
    a(f"s_lshl_b32 s{sKO}, s2, 19\ns_lshl_b32 s65, s{sWv}, 11\ns_add_u32 s{sKO}, s{sKO}, s65\ns_mov_b32 s{sVO}, s{sKO}")
    a("s_waitcnt lgkmcnt(0)")
    srd(SK, 6, 1 << 27)
    vm = []
    def issue(kind, reg, u, tagid):
        sr, vo, so = (SK, vKO, sKO) if kind == "K" else (SV, vVO, sVO)
        off = f" offset:256" if u & 1 else ""
        a(f"buffer_load_dwordx4 {V4(reg)}, v{vo}, {S(sr)}, s{so} offen{off} {nt}")
        if u & 1: a(f"s_add_u32 s{so}, s{so}, 8192")
        vm.append(tagid)
    def wait_for(tagid):
        if tagid not in vm: return
        n = len(vm) - 1 - vm.index(tagid)
        assert n < 64
        a(f"s_waitcnt vmcnt({n})")
    nload = [0]
    def throttle_issue(kind, reg, u):
        n = nload[0]
        wait_for(("s", n - W))
        issue(kind, reg, u, ("s", n)); nload[0] += 1
    for n in range(W):
        throttle_issue("K", ring(n // 8, n % 8), n % 8)
    if warm:
        a(f"s_cmp_lg_u32 s3, 1\ns_cbranch_scc1 L_nowarm")
        a(f"s_getpc_b64 s[66:67]\nv_lshlrev_b32 v{TMP+2}, 7, v0")
        a(f"global_load_dword v{TMP+3}, v{TMP+2}, s[66:67]")
        a.label("L_nowarm")
    srd(SV, 8, 1 << 27); srd(SW, 26, WS_USED); srd(SA, 12, 4096 * 896); srd(SB, 20, 1792 * 896); srd(SC_, 22, 3584); srd(SD, 4, 3584)
    for k in range(32): a(f"v_mov_b32 v{QF+k}, 0")
    for k in range(8): a(f"v_mov_b32 v{OACC+k}, 0")
    a(f"v_mov_b32 v{vMAX}, 0xff800000\nv_mov_b32 v{vL}, 0\nv_mov_b32 v{vC}, {hex(f2u(math.log2(math.e) / 16))}")
    a(f"v_and_b32 v{TMP+4}, 1, v{vJ}\nv_lshlrev_b32 v{TMP+4}, 4, v{TMP+4}\nv_mov_b32 v{TMP+5}, 0xffff\nv_lshlrev_b32 v{TMP+4}, v{TMP+4}, v{TMP+5}")
    a(f"v_bfe_u32 v{TMP+5}, v{vJ}, 1, 2")
    for w in range(4):
        a(f"v_cmp_eq_u32 vcc, {w}, v{TMP+5}\nv_cndmask_b32 v{MASK+w}, 0, v{TMP+4}, vcc")
    a(f"s_lshl_b32 s65, s{sWv}, 12\ns_add_u32 s65, s65, {SC}\nv_lshl_add_u32 v{vSC}, v0, 2, s65")
    for n in range(W, 8 * NP):
        throttle_issue("K", ring(n // 8, n % 8), n % 8)
    stamp(1)
    a("s_barrier")
    stamp(2)
    for t in range(4):
        m = 0x000F000F << (4 * t)
        a(f"s_mov_b32 exec_lo, {hex(m)}\ns_mov_b32 exec_hi, {hex(m)}")
        for half in range(2):
            a(f"ds_read_b128 {V4(QF + 4 * (2 * t + half))}, v{TMP+1} offset:{QL + 256 * half}")
    a("s_mov_b64 exec, -1")
    a(f"v_mov_b32 v{TMP}, 0\nds_read_b32 v{TMP+2}, v{TMP} offset:{TAGL}")
    a("s_waitcnt lgkmcnt(0)")
    a(f"v_readfirstlane_b32 s{sTAG}, v{TMP+2}")

    def consK(reg, u, d):
        c = "0" if u == 0 else V4(d)
        a(f"v_mfma_f32_16x16x32_bf16 {V4(d)}, {V4(reg)}, {V4(QF + 4 * u)}, {c}")
    def extract(ds, off0):
        for k, d in enumerate(ds): a(f"v_mov_b32_dpp v{TMP+k}, v{d} quad_perm:[0,0,0,0] {FULL}")
        for c in range(1, 4):
            for k, d in enumerate(ds): a(f"v_add_f32_dpp v{TMP+k}, v{d+c}, v{TMP+k} quad_perm:[{c},{c},{c},{c}] {FULL}")
        for k, d in enumerate(ds): a(f"v_cvt_pk_bf16_f32 v{TMP+k}, v{TMP+k}, v{TMP+k}")
        for k, d in enumerate(ds): a(f"v_and_b32 v{TMP+k}, 0xffff0000, v{TMP+k}")
        for k, d in enumerate(ds):
            a(f"ds_write_b32 v{vSC}, v{TMP+k} offset:{off0 + 256 * k}")
            a(f"v_max_f32 v{vMAX}, v{vMAX}, v{TMP+k}")
        a(f"v_add_u32 v{vSC}, {256 * len(ds)}, v{vSC}")
    for u in range(8):
        consK(ring(0, u), u, DA)
        throttle_issue("K", ring(0, u), u)
        for T in range(1, NP): consK(ring(T, u), u, DA + 4 * T)
    extract([DA + 4 * T for T in range(NP)], 0)
    vWO, vWD = TMP + 8, TMP + 9
    a(f"v_lshrrev_b32 v{TMP+6}, 1, v{vG}\nv_lshlrev_b32 v{TMP+6}, 7, v{TMP+6}\nv_and_b32 v{TMP+7}, 1, v{vG}\nv_lshl_add_u32 v{TMP+6}, v{TMP+7}, 2, v{TMP+6}")
    a(f"v_mul_u32_u24 v{vWO}, 896, v{TMP+6}")
    a(f"v_mul_u32_u24 v{vWD}, {7 * 896}, v{vG}")
    a(f"v_lshlrev_b32 v{TMP+6}, 4, v{vJ}\nv_mov_b32 v{TMP+7}, 0x40000000\nv_cmp_gt_u32 vcc, 14, v{vJ}\nv_cndmask_b32 v{TMP+6}, v{TMP+7}, v{TMP+6}, vcc")
    a(f"v_add_u32 v{vWO}, v{vWO}, v{TMP+6}\nv_add_u32 v{vWD}, v{vWD}, v{TMP+6}")
    a(f"s_lshl_b32 s66, s{sH}, 8\ns_lshl_b32 s65, s{sJ}, 5\ns_add_u32 s66, s66, s65\ns_mul_i32 s66, s66, 896\ns_mul_i32 s65, s{sWv}, 224\ns_add_u32 s66, s66, s65")
    a(f"s_mul_i32 s67, s{sIDX}, {28 * 896}\ns_add_u32 s67, s67, s65")
    extras = []
    for t in range(16): extras.append(("wo", t))
    for t in range(7): extras.append(("wd", t))
    def issue_extra(e):
        kind, t = e
        if kind == "wo":
            row = 8 * (t & 3) + (t >> 2)
            a(f"s_add_u32 s65, s66, {row * 896}")
            a(f"buffer_load_dwordx4 {V4(WOF + 4 * t)}, v{vWO}, {S(SA)}, s65 offen {wnt}")
        else:
            a(f"s_add_u32 s65, s67, {t * 896}")
            a(f"buffer_load_dwordx4 {V4(WOF + 64 + 4 * t)}, v{vWD}, {S(SB)}, s65 offen {wnt}")
        vm.append(e)
    def iterK(nextkind, ex=None):
        for u in range(8):
            consK(ring(0, u), u, DA)
            throttle_issue(nextkind, ring(0, u), u)
            if ex:
                for e in ex[3 * u: 3 * u + 3]: issue_extra(e)
        extract([DA], 0)
    iterK("K", extras)
    iterK("K")
    nkk = 13 - NP
    a(f"s_mov_b32 s{sCNT}, {nkk}")
    a.label("L_kk")
    iterK("K")
    a(f"s_sub_u32 s{sCNT}, s{sCNT}, 1\ns_cmp_lg_u32 s{sCNT}, 0\ns_cbranch_scc1 L_kk")
    iterK("V")
    stamp(3)
    a(f"v_subrev_u32 v{vSC}, 4096, v{vSC}")
    a(f"ds_read_b32 v{vS}, v{vSC}")
    a(f"v_max_f32_dpp v{vMAX}, v{vMAX}, v{vMAX} row_ror:4 {FULL}")
    a(f"v_max_f32_dpp v{vMAX}, v{vMAX}, v{vMAX} row_ror:8 {FULL}")
    a(f"v_max_f32_dpp v{vMAX}, v{vMAX}, v{vMAX} row_bcast:15 row_mask:0xa bank_mask:0xf")
    a(f"v_max_f32_dpp v{vMAX}, v{vMAX}, v{vMAX} row_bcast:31 row_mask:0xc bank_mask:0xf")
    a(f"v_readlane_b32 s65, v{vMAX}, 63")
    a(f"v_mul_f32 v{vMC}, s65, v{vC}")
    vP = TMP
    def iterV(last):
        a("s_waitcnt lgkmcnt(0)")
        a(f"v_fma_f32 v{vP}, v{vS}, v{vC}, -v{vMC}")
        a(f"v_exp_f32 v{vP}, v{vP}")
        if not last:
            a(f"v_add_u32 v{vSC}, 256, v{vSC}\nds_read_b32 v{vS}, v{vSC}")
        a(f"v_add_f32 v{vL}, v{vL}, v{vP}")
        a(f"v_cvt_pk_bf16_f32 v{vP}, v{vP}, v{vP}")
        base = nload[0] - 8
        for u in range(8):
            t, half = u >> 1, u & 1
            b = BB + 4 * (t & 1)
            if half == 0:
                for w in range(4): a(f"v_and_b32_dpp v{b+w}, v{vP}, v{MASK+w} row_newbcast:{4*t} {FULL}")
            if last: wait_for(("s", base + u))
            a(f"v_mfma_f32_16x16x32_bf16 {V4(OACC + 4 * half)}, {V4(ring(0, u))}, {V4(b)}, {V4(OACC + 4 * half)}")
            if not last: throttle_issue("V", ring(0, u), u)
    a(f"s_mov_b32 s{sCNT}, 15")
    a.label("L_vv")
    iterV(False)
    a(f"s_sub_u32 s{sCNT}, s{sCNT}, 1\ns_cmp_lg_u32 s{sCNT}, 0\ns_cbranch_scc1 L_vv")
    vH, vX0, vX1, vHO, vXO = DA, DA + 2, DA + 3, DA + 4, DA + 5
    a(f"v_mul_u32_u24 v{vHO}, 7, v{vG}\nv_add_lshl_u32 v{vHO}, v{vHO}, v{vJ}, 3")
    a(f"v_mov_b32 v{TMP+7}, 0x40000000\nv_cmp_gt_u32 vcc, 7, v{vJ}\nv_cndmask_b32 v{vHO}, v{TMP+7}, v{vHO}, vcc")
    a(f"s_mul_i32 s68, s{sB}, {1792 * 8}\ns_mul_i32 s65, s{sIDX}, {28 * 8}\ns_add_u32 s68, s68, s65\ns_add_u32 s68, s68, {HMB}")
    a(f"buffer_load_dwordx2 {V2(vH)}, v{vHO}, {S(SW)}, s68 offen sc1"); vm.append("h")
    a(f"s_lshr_b32 s65, s{sIDX}, 3\ns_lshl_b32 s65, s65, 4\ns_and_b32 s69, s{sIDX}, 7\ns_add_u32 s69, s69, s65")
    a(f"s_mul_i32 s65, s{sWv}, 112\ns_add_u32 s69, s69, s65\ns_mul_i32 s65, s{sB}, 448\ns_add_u32 s69, s69, s65\ns_lshl_b32 s69, s69, 1")
    a(f"v_mov_b32 v{vXO}, 0")
    a(f"buffer_load_ushort v{vX0}, v{vXO}, {S(SD)}, s69 offen"); vm.append("x0")
    a(f"buffer_load_ushort v{vX1}, v{vXO}, {S(SD)}, s69 offen offset:16"); vm.append("x1")
    iterV(True)
    stamp(4)
    a(f"v_add_f32_dpp v{vL}, v{vL}, v{vL} row_ror:4 {FULL}")
    a(f"v_add_f32_dpp v{vL}, v{vL}, v{vL} row_ror:8 {FULL}")
    a(f"v_add_f32_dpp v{vL}, v{vL}, v{vL} row_bcast:15 row_mask:0xa bank_mask:0xf")
    a(f"v_add_f32_dpp v{vL}, v{vL}, v{vL} row_bcast:31 row_mask:0xc bank_mask:0xf")
    a(f"s_lshl_b32 s65, s{sWv}, 10\ns_add_u32 s65, s65, {OP}\nv_lshl_add_u32 v{TMP+1}, v0, 4, s65")
    a(f"s_lshl_b32 s65, s{sWv}, 3\ns_add_u32 s65, s65, {ML}\nv_mov_b32 v{TMP+2}, s65")
    a(f"v_mov_b32 v{TMP+4}, v{vMC}\nv_mov_b32 v{TMP+5}, v{vL}")
    for r in range(4): a(f"v_mov_b32_dpp v{OACC+r}, v{OACC+4+r} {IDP} row_mask:0xf bank_mask:0xc")
    a(f"ds_write_b128 v{TMP+1}, {V4(OACC)}")
    a("s_mov_b32 exec_lo, 0\ns_mov_b32 exec_hi, 0x80000000")
    a(f"ds_write_b64 v{TMP+2}, {V2(TMP+4)}")
    a("s_mov_b64 exec, -1")
    a(f"s_lshl_b32 s65, s{sWv}, 8\ns_add_u32 s65, s65, {OP}\nv_lshl_add_u32 v{TMP+1}, v0, 2, s65")
    a(f"v_mov_b32 v{TMP+2}, 0")
    vL16 = TMP + 3
    a(f"v_lshlrev_b32 v{vL16}, 4, v0")
    a(f"s_lshl_b32 s70, s{sBH}, 14\ns_add_u32 s70, s70, {MB1}\ns_lshl_b32 s65, s{sJ}, 12\ns_add_u32 s71, s70, s65")
    a(f"s_lshl_b32 s65, s{sWv}, 12\ns_add_u32 s70, s70, s65\ns_lshl_b32 s65, s{sJ}, 10\ns_add_u32 s70, s70, s65")
    a("s_waitcnt lgkmcnt(0)")
    a("s_barrier")
    G = QF
    a(f"ds_read_b128 {V4(G)}, v{TMP+2} offset:{ML}\nds_read_b128 {V4(G+4)}, v{TMP+2} offset:{ML+16}")
    for w in range(4): a(f"ds_read_b32 v{G+8+w}, v{TMP+1} offset:{1024*w}")
    a("s_waitcnt lgkmcnt(4)")
    def combine(ms, ls, vs, oM, oL, oV, tmp, mid=None):
        a(f"v_max3_f32 v{oM}, v{ms[0]}, v{ms[1]}, v{ms[2]}\nv_max_f32 v{oM}, v{oM}, v{ms[3]}")
        for k in range(4): a(f"v_sub_f32 v{tmp+k}, v{ms[k]}, v{oM}")
        for k in range(4): a(f"v_exp_f32 v{tmp+k}, v{tmp+k}")
        a(f"v_mul_f32 v{oL}, v{tmp}, v{ls[0]}")
        for k in range(1, 4): a(f"v_fmac_f32 v{oL}, v{tmp+k}, v{ls[k]}")
        if mid: a(mid)
        a(f"v_mul_f32 v{oV}, v{tmp}, v{vs[0]}")
        for k in range(1, 4): a(f"v_fmac_f32 v{oV}, v{tmp+k}, v{vs[k]}")
    GR = G + 12
    combine([G, G+2, G+4, G+6], [G+1, G+3, G+5, G+7], [G+8, G+9, G+10, G+11], GR+1, GR+2, GR, TMP+4, mid="s_waitcnt lgkmcnt(0)")
    a(f"v_mov_b32 v{GR+3}, s{sTAG}")
    a(f"buffer_store_dwordx4 {V4(GR)}, v{vL16}, {S(SW)}, s70 offen sc1")
    P1 = G + 16
    for k in range(4): a(f"buffer_load_dwordx4 {V4(P1+4*k)}, v{vL16}, {S(SW)}, s71 offen offset:{1024*k} sc1")
    a(f"s_mov_b32 s{sCNT}, {spin}")
    a(f"v_cmp_gt_u32 s[74:75], 7, v{vJ}")
    a("s_waitcnt vmcnt(5)")
    a.label("L_hchk")
    a(f"v_cmp_ne_u32 vcc, s{sTAG}, v{vH+1}\ns_and_b64 vcc, vcc, s[74:75]\ns_cbranch_scc0 L_hok")
    a(f"s_sleep 1\nbuffer_load_dwordx2 {V2(vH)}, v{vHO}, {S(SW)}, s68 offen sc1\ns_waitcnt vmcnt(0)")
    a(f"s_sub_u32 s{sCNT}, s{sCNT}, 1\ns_cmp_lg_u32 s{sCNT}, 0\ns_cbranch_scc1 L_hchk")
    a.label("L_hok")
    Y = OACC
    def diag(src, frag0, n, first):
        def prep(t):
            b = BB + 4 * (t & 1)
            for w in range(4): a(f"v_and_b32_dpp v{b+w}, v{src}, v{MASK+w} row_newbcast:{t} {FULL}")
        prep(0)
        for t in range(n):
            if t + 1 < n: prep(t + 1)
            c = "0" if (first and t == 0) else V4(Y)
            a(f"v_mfma_f32_16x16x32_bf16 {V4(Y)}, {V4(frag0 + 4 * t)}, {V4(BB + 4 * (t & 1))}, {c}")
    a(f"v_cvt_pk_bf16_f32 v{vH}, v{vH}, v{vH}")
    diag(vH, WOF + 64, 7, True)
    a(f"s_lshl_b32 s70, s{sB}, 2\ns_add_u32 s70, s70, s{sWv}\ns_lshl_b32 s70, s70, 16\ns_add_u32 s70, s70, {MB2}")
    a(f"s_lshl_b32 s65, s{sIDX}, 10\ns_add_u32 s73, s70, s65\ns_lshl_b32 s65, s{sIDX}, 4\ns_add_u32 s70, s70, s65")
    vL1K = TMP + 2
    a(f"v_lshlrev_b32 v{vL1K}, 10, v0")
    a(f"s_mov_b32 s{sCNT}, {spin}")
    a.label("L_p1")
    a("s_waitcnt vmcnt(0)")
    for k in range(4): a(f"v_cmp_ne_u32 s[{76+0}:{77}], s{sTAG}, v{P1+4*k+3}" if k == 0 else f"v_cmp_ne_u32 vcc, s{sTAG}, v{P1+4*k+3}\ns_or_b64 s[76:77], s[76:77], vcc")
    a("s_cbranch_scc0 L_p1ok")
    a(f"s_sleep {sleep1}")
    for k in range(4):
        a(f"v_cmp_ne_u32 vcc, s{sTAG}, v{P1+4*k+3}\ns_cbranch_vccz L_p1s{k}")
        a(f"buffer_load_dwordx4 {V4(P1+4*k)}, v{vL16}, {S(SW)}, s71 offen offset:{1024*k} sc1")
        a.label(f"L_p1s{k}")
    a(f"s_sub_u32 s{sCNT}, s{sCNT}, 1\ns_cmp_lg_u32 s{sCNT}, 0\ns_cbranch_scc1 L_p1")
    a.label("L_p1ok")
    stamp(5)
    combine([P1+1, P1+5, P1+9, P1+13], [P1+2, P1+6, P1+10, P1+14], [P1, P1+4, P1+8, P1+12], G+1, G+2, G, TMP+4, mid=f"v_rcp_f32 v{G+2}, v{G+2}")
    a(f"v_mul_f32 v{G}, v{G}, v{G+2}")
    a(f"v_cvt_pk_bf16_f32 v{G}, v{G}, v{G}")
    diag(G, WOF, 16, False)
    a(f"v_mov_b32 v{GR+1}, s{sTAG}\nv_mov_b32 v{GR+3}, s{sTAG}")
    a(f"v_mov_b32 v{GR}, v{Y}\nv_mov_b32 v{GR+2}, v{Y+1}")
    a(f"v_mov_b32_dpp v{GR}, v{Y+2} {IDP} row_mask:0xf bank_mask:0xc\nv_mov_b32_dpp v{GR+2}, v{Y+3} {IDP} row_mask:0xf bank_mask:0xc")
    a("s_mov_b32 exec_hi, 0x00ffffff")
    a(f"buffer_store_dwordx4 {V4(GR)}, v{vL1K}, {S(SW)}, s70 offen sc1")
    a("s_mov_b64 exec, -1")
    a(f"s_cmp_ge_u32 s{sIDX}, 56\ns_cbranch_scc1 L_sdone")
    a(f"s_mov_b32 s{sCNT}, {spin}")
    a.label("L_p2")
    a(f"buffer_load_dwordx4 {V4(P1)}, v{vL16}, {S(SW)}, s73 offen sc1")
    a("s_waitcnt vmcnt(0)")
    a(f"v_cmp_ne_u32 s[76:77], s{sTAG}, v{P1+1}\nv_cmp_ne_u32 vcc, s{sTAG}, v{P1+3}\ns_or_b64 s[76:77], s[76:77], vcc")
    a("s_cbranch_scc0 L_p2ok")
    a(f"s_sleep {sleep2}")
    a(f"s_sub_u32 s{sCNT}, s{sCNT}, 1\ns_cmp_lg_u32 s{sCNT}, 0\ns_cbranch_scc1 L_p2")
    a.label("L_p2ok")
    stamp(6)
    for mod in ("quad_perm:[1,0,3,2] " + FULL, "quad_perm:[2,3,0,1] " + FULL, "row_ror:4 " + FULL, "row_ror:8 " + FULL,
                "row_bcast:15 row_mask:0xa bank_mask:0xf", "row_bcast:31 row_mask:0xc bank_mask:0xf"):
        a(f"v_add_f32_dpp v{P1}, v{P1}, v{P1} {mod}\nv_add_f32_dpp v{P1+2}, v{P1+2}, v{P1+2} {mod}")
    a(f"v_lshlrev_b32 v{vX0}, 16, v{vX0}\nv_lshlrev_b32 v{vX1}, 16, v{vX1}")
    a(f"v_add_f32 v{P1}, v{P1}, v{vX0}\nv_add_f32 v{P1+2}, v{P1+2}, v{vX1}")
    a(f"v_cvt_pk_bf16_f32 v{P1}, v{P1}, v{P1+2}")
    a("s_mov_b32 exec_lo, 0\ns_mov_b32 exec_hi, 0x80000000")
    a(f"buffer_store_short v{P1}, v{vXO}, {S(SC_)}, s69 offen")
    a(f"buffer_store_short_d16_hi v{P1}, v{vXO}, {S(SC_)}, s69 offen offset:16")
    a(f"s_or_b32 s65, s2, s{sWv}\ns_cmp_lg_u32 s65, 0\ns_cbranch_scc1 L_sdone")
    a(f"buffer_store_dword v{P1+1}, v{vXO}, {S(SW)}, 0 offen")
    a.label("L_sdone")
    stamp(7)
    dump_stamps(8)
    a("s_endpgm")

    a.label("L_helper")
    X, F, AF, BF = 32, 64, 96, 152
    a("s_setprio 3")
    a(f"v_mul_u32_u24 v6, 896, v5\nv_lshl_add_u32 v6, v4, 6, v6\nv_mov_b32 v7, 0x40000000\nv_cmp_gt_u32 s[74:75], 14, v4")
    a(f"v_cndmask_b32 v7, v7, v6, s[74:75]")
    a(f"v_lshrrev_b32 v8, 1, v0\nv_and_b32 v9, 1, v0\nv_lshlrev_b32 v9, 4, v9\nv_lshl_add_u32 v10, v8, 13, v9")
    a(f"v_mul_u32_u24 v11, 3584, v8\nv_add_u32 v11, v11, v9")
    a(f"s_lshl_b32 s65, s{sH}, 8\ns_lshl_b32 s66, s{sJ}, 6\ns_add_u32 s65, s65, s66\ns_lshl_b32 s66, s{sB}, 4\ns_add_u32 s65, s65, s66\ns_lshl_b32 s65, s65, 1")
    a("s_waitcnt lgkmcnt(0)")
    a(f"s_load_dword s{sTAG}, s[26:27], 0")
    srd(SA, 4, 3584)
    for u in range(4): a(f"buffer_load_dwordx4 {V4(X+4*u)}, v7, {S(SA)}, 0 offen offset:{16*u}")
    srd(SB, 10, 448 * 8192)
    def dma(sr, voff, so, stride, lds0):
        for k in range(14):
            a(f"s_mov_b32 m0, {lds0 + 1024 * k}")
            a(f"buffer_load_dwordx4 v{voff}, {S(sr)}, s{so} offen {wnt} lds")
            if k < 13: a(f"s_add_u32 s{so}, s{so}, {32 * stride}")
    dma(SB, 10, 65, 8192, WL0)
    srd(SW, 26, WS_USED); srd(SC_, 16, 448 * 3584); srd(SD, 18, 448 * 3584)
    a(f"v_and_b32 v12, 3, v4\nv_mul_u32_u24 v12, 896, v12\nv_lshl_add_u32 v12, v5, 4, v12")
    a(f"v_lshlrev_b32 v13, 3, v4\nv_lshl_add_u32 v13, v5, 8, v13")
    a("s_waitcnt vmcnt(14)")
    stamp(1)
    for k in range(16): a(f"v_lshlrev_b32 v{F+2*k}, 16, v{X+k}\nv_and_b32 v{F+2*k+1}, 0xffff0000, v{X+k}")
    a(f"v_pk_add_f32 v[14:15], {V2(F)}, {V2(F+2)}\nv_pk_add_f32 v[16:17], {V2(F+4)}, {V2(F+6)}")
    for k in range(4, 16, 2):
        a(f"v_pk_add_f32 v[14:15], v[14:15], {V2(F+2*k)}\nv_pk_add_f32 v[16:17], v[16:17], {V2(F+2*k+2)}")
    a("v_pk_add_f32 v[14:15], v[14:15], v[16:17]\nv_add_f32 v14, v14, v15")
    def rowsum(r):
        for sh in (8, 4, 2, 1): a(f"v_add_f32_dpp v{r}, v{r}, v{r} row_ror:{sh} {FULL}")
    rowsum(14)
    a(f"v_mul_f32 v18, {hex(f2u(-1.0 / 448))}, v14\nv_mov_b32 v19, v18")
    a("v_mov_b32 v14, 0\nv_mov_b32 v15, 0\nv_mov_b32 v16, 0\nv_mov_b32 v17, 0")
    for k in range(0, 16, 2):
        a(f"v_pk_add_f32 v[20:21], {V2(F+2*k)}, v[18:19]\nv_pk_add_f32 v[22:23], {V2(F+2*k+2)}, v[18:19]")
        a(f"v_pk_fma_f32 v[14:15], v[20:21], v[20:21], v[14:15]\nv_pk_fma_f32 v[16:17], v[22:23], v[22:23], v[16:17]")
    a("v_pk_add_f32 v[14:15], v[14:15], v[16:17]\nv_add_f32 v14, v14, v15\nv_cndmask_b32 v14, 0, v14, s[74:75]")
    rowsum(14)
    def rbf(r): a(f"v_cvt_pk_bf16_f32 v{r}, v{r}, v{r}\nv_and_b32 v{r}, 0xffff0000, v{r}")
    a(f"v_mul_f32 v14, {hex(f2u(1.0 / 448))}, v14"); rbf(14)
    a(f"v_add_f32 v14, {hex(f2u(1e-5))}, v14"); rbf(14)
    a("v_sqrt_f32 v14, v14"); rbf(14)
    a("v_rcp_f32 v16, v14\nv_mov_b32 v15, v14"); rbf(18)
    a("v_mov_b32 v17, v16\nv_mov_b32 v19, v18")
    for k in range(16):
        a(f"v_pk_add_f32 {V2(F+2*k)}, {V2(F+2*k)}, v[18:19]")
    for k in range(16):
        a(f"v_cvt_pk_bf16_f32 v{X+k}, v{F+2*k}, v{F+2*k+1}")
    for k in range(16): a(f"v_lshlrev_b32 v{F+2*k}, 16, v{X+k}\nv_and_b32 v{F+2*k+1}, 0xffff0000, v{X+k}")
    for k in range(16):
        t = 20 + 2 * (k & 3)
        a(f"v_pk_mul_f32 {V2(t)}, {V2(F+2*k)}, v[16:17]")
        a(f"v_pk_fma_f32 {V2(F+2*k)}, {V2(t)}, v[14:15], {V2(F+2*k)} neg_lo:[1,0,0] neg_hi:[1,0,0]")
        a(f"v_pk_fma_f32 {V2(t)}, {V2(F+2*k)}, v[16:17], {V2(t)}")
        a(f"v_cvt_pk_bf16_f32 v{X+k}, v{t}, v{t+1}")
    a("s_mov_b64 exec, s[74:75]")
    for u in range(4): a(f"ds_write_b128 v6, {V4(X+4*u)} offset:{XN + 16*u}")
    a("s_mov_b64 exec, -1")
    a("s_waitcnt lgkmcnt(0)")
    a(f"s_add_u32 s{sTAG}, s{sTAG}, 1")
    for k in range(14): a(f"ds_read_b128 {V4(AF+4*k)}, v12 offset:{XN + 64*k}")
    a("s_waitcnt vmcnt(0)")
    stamp(2)
    def piece(lds0, d):
        for k in range(14):
            a(f"ds_read_b64_tr_b16 {V2(BF+4*k)}, v13 offset:{lds0 + 1024*k}\nds_read_b64_tr_b16 {V2(BF+4*k+2)}, v13 offset:{lds0 + 1024*k + 128}")
        a("s_waitcnt lgkmcnt(0)")
        for k in range(14):
            a(f"v_mfma_f32_16x16x32_bf16 {V4(d)}, {V4(AF+4*k)}, {V4(BF+4*k)}, {'0' if k == 0 else V4(d)}")
        for r in range(1, 4): a(f"v_mov_b32_dpp v{d}, v{d+r} {IDP} row_mask:{hex(1 << r)} bank_mask:0xf")
    a(f"v_lshlrev_b32 v8, 3, v4\nv_lshl_add_u32 v9, v5, 15, v8")
    a(f"s_lshl_b32 s66, s{sJ}, 6\ns_lshl_b32 s67, s{sB}, 4\ns_add_u32 s66, s66, s67\ns_lshl_b32 s66, s66, 3\ns_lshl_b32 s67, s{sH}, 11\ns_add_u32 s66, s66, s67\ns_add_u32 s66, s66, {QMB}")
    a(f"s_lshl_b32 s67, s{sBH}, 11\ns_add_u32 s67, s67, {QMB}\nv_lshlrev_b32 v10, 5, v0")
    piece(WL0, 20)
    a(f"v_mov_b32 v21, s{sTAG}")
    a(f"buffer_store_dwordx2 v[20:21], v9, {S(SW)}, s66 offen sc1")
    stamp(3)
    a(f"s_mov_b32 s{sCNT}, {spin}")
    a.label("L_pq")
    a(f"buffer_load_dwordx4 v[24:27], v10, {S(SW)}, s67 offen sc1\nbuffer_load_dwordx4 v[28:31], v10, {S(SW)}, s67 offen offset:16 sc1")
    a("s_waitcnt vmcnt(0)")
    a(f"v_cmp_ne_u32 s[76:77], s{sTAG}, v25")
    for r in (27, 29, 31): a(f"v_cmp_ne_u32 vcc, s{sTAG}, v{r}\ns_or_b64 s[76:77], s[76:77], vcc")
    a("s_cbranch_scc0 L_pqok")
    a(f"s_sleep {sleepq}")
    a(f"s_sub_u32 s{sCNT}, s{sCNT}, 1\ns_cmp_lg_u32 s{sCNT}, 0\ns_cbranch_scc1 L_pq")
    a.label("L_pqok")
    a("v_cvt_pk_bf16_f32 v24, v24, v26\nv_cvt_pk_bf16_f32 v25, v28, v30\nv_lshlrev_b32 v10, 3, v0\nv_mov_b32 v22, 0")
    a(f"ds_write_b64 v10, v[24:25] offset:{QL}\nds_write_b32 v22, v21 offset:{TAGL}")
    a("s_waitcnt lgkmcnt(0)")
    stamp(4)
    a("s_barrier")
    a("s_setprio 0")
    a(f"s_cmp_ge_u32 s{sIDX}, 28\ns_cbranch_scc1 L_hdone")
    a(f"s_lshl_b32 s65, s{sIDX}, 6\ns_lshl_b32 s66, s{sB}, 4\ns_add_u32 s68, s65, s66\ns_lshl_b32 s65, s68, 1\ns_mov_b32 s66, s65")
    dma(SC_, 11, 65, 3584, WL0)
    dma(SD, 11, 66, 3584, WL1)
    a(f"v_mul_u32_u24 v9, {1792 * 8}, v5\nv_add_u32 v9, v9, v8")
    a(f"s_lshl_b32 s68, s68, 3\ns_add_u32 s68, s68, {HMB}")
    a("s_waitcnt vmcnt(14)")
    piece(WL0, 20)
    a("s_waitcnt vmcnt(0)")
    piece(WL1, 24)
    rbf(20); rbf(24)
    k1 = -2.0 * math.sqrt(2.0 / math.pi) * math.log2(math.e)
    a(f"v_mul_f32 v22, v20, v20\nv_mul_f32 v22, {hex(f2u(0.044715))}, v22\nv_fma_f32 v22, v22, v20, v20")
    a(f"v_mul_f32 v22, {hex(f2u(k1))}, v22\nv_exp_f32 v22, v22\nv_add_f32 v22, 1.0, v22\nv_rcp_f32 v22, v22\nv_mul_f32 v20, v20, v22")
    rbf(20)
    a(f"v_mul_f32 v20, v20, v24\nv_mov_b32 v21, s{sTAG}")
    a(f"buffer_store_dwordx2 v[20:21], v9, {S(SW)}, s68 offen sc1")
    a.label("L_hdone")
    stamp(5)
    dump_stamps(6)
    a.label("L_end")
    a("s_endpgm")
    a.raw('.section .rodata,"a"'); a.raw(".p2align 6"); a.raw(f".amdhsa_kernel {NAME}")
    a.raw("  .amdhsa_next_free_vgpr 256"); a.raw("  .amdhsa_next_free_sgpr 102"); a.raw("  .amdhsa_accum_offset 256")
    a.raw("  .amdhsa_group_segment_fixed_size 0"); a.raw("  .amdhsa_kernarg_size 96"); a.raw("  .amdhsa_user_sgpr_count 2")
    a.raw("  .amdhsa_user_sgpr_kernarg_segment_ptr 1"); a.raw("  .amdhsa_system_sgpr_workgroup_id_x 1"); a.raw(".end_amdhsa_kernel")
    return a.text()

if __name__ == "__main__":
    out = sys.argv[1]
    kw = eval("dict(" + (sys.argv[2] if len(sys.argv) > 2 else "") + ")")
    open(out, "w").write(gen(**kw))
```

```python
import sys, struct, math
sys.path.insert(0, "gen")
from asmlib import Asm

NAME = "parallel_sum__mha_block_cached__geglu_ffn__decode_kernel"
HEADER = open("parallel_sum__mha_block_cached__geglu_ffn__decode.s.ref").read().split("; Override launch")[0]

def f2u(x): return struct.unpack("<I", struct.pack("<f", x))[0]

QMB = 0x1000
HMB = QMB + 64 * 2048
MB1 = 0x40000
MB2 = MB1 + 0x100000
TSB = MB2 + 0x100000
WS_USED = TSB + 0x10000
XN, QL, TAGL, ML, OP, SC = 0, 3584, 4096, 4128, 4352, 8448
WL0 = SC + 16384
WL1 = WL0 + 14336
LDS_BYTES = WL1 + 14336

FULL = "row_mask:0xf bank_mask:0xf"
IDP = "quad_perm:[0,1,2,3]"

def gen(W=5, NP=5, nt="nt", wnt="nt", stamps=False, warm=True, sleep1=1, sleep2=1, sleepq=1, spin=1 << 16, padto=0, padwg=None):
    a = Asm()
    a.raw(HEADER.rstrip("\n"))
    a.raw(f"; @launch grid=(256,1,1) block=(320,1,1) lds={LDS_BYTES}")
    a.raw('.amdgcn_target "amdgcn-amd-amdhsa--gfx950"')
    a.raw(".text"); a.raw(f".globl {NAME}"); a.raw(".p2align 8"); a.raw(f".type {NAME},@function")
    a.raw(f"{NAME}:")
    SK, SV, SW, SA, SB, SC_, SD = 28, 32, 36, 40, 44, 48, 52
    sB, sH, sJ, sIDX, sBH, sTAG, sCNT, sKO, sVO, sWv = 56, 57, 58, 59, 60, 61, 62, 63, 64, 72
    def srd(r, ptr, size):
        a(f"s_mov_b32 s{r}, s{ptr}\ns_mov_b32 s{r+1}, s{ptr+1}\ns_mov_b32 s{r+2}, {size}\ns_mov_b32 s{r+3}, 0x20000")
    def S(r): return f"s[{r}:{r+3}]"
    def V4(r): return f"v[{r}:{r+3}]"
    def V2(r): return f"v[{r}:{r+1}]"
    nstamp = [0]
    def stamp(k):
        if stamps:
            a(f"s_memrealtime s[{80+2*k}:{81+2*k}]")
    def dump_stamps(n):
        if not stamps: return
        a("s_waitcnt lgkmcnt(0)")
        a("s_mov_b64 exec, 1")
        a(f"s_mul_i32 s65, s2, 5\ns_add_u32 s65, s65, s3\ns_lshl_b32 s65, s65, 5\ns_add_u32 s65, s65, {TSB}")
        a("v_mov_b32 v1, 0")
        for k in range(n):
            a(f"v_mov_b32 v2, s{80+2*k}")
            a(f"buffer_store_dword v2, v1, {S(SW)}, s65 offen offset:{4*k}")
        a("s_waitcnt vmcnt(0)")

    a("s_cmp_ge_u32 s2, 256\ns_cbranch_scc1 L_end")
    a("s_load_dwordx16 s[4:19], s[0:1], 0\ns_load_dwordx8 s[20:27], s[0:1], 64")
    stamp(0)
    if padto: a("s_memrealtime s[96:97]")
    a("v_lshrrev_b32 v1, 6, v0\nv_and_b32 v0, 63, v0\nv_readfirstlane_b32 s3, v1")
    a(f"s_lshr_b32 s{sB}, s2, 6\ns_lshr_b32 s{sBH}, s2, 2\ns_and_b32 s{sH}, s{sBH}, 15\ns_and_b32 s{sJ}, s2, 3\ns_and_b32 s{sIDX}, s2, 63")
    a("v_and_b32 v4, 15, v0\nv_lshrrev_b32 v5, 4, v0")
    a("s_cmp_eq_u32 s3, 0\ns_cbranch_scc1 L_helper")

    vKO, vVO, vSC, vMAX, vL, vC, vMC, vS = 1, 2, 3, 6, 7, 28, 29, 30
    vJ, vG = 4, 5
    MASK, OACC, BB, QF, DA, TMP, R = 8, 12, 20, 32, 64, 84, 96
    def ring(tile, u): return R + 32 * tile + 4 * u
    WOF = R + 32
    a(f"s_sub_u32 s{sWv}, s3, 1")
    a(f"v_lshrrev_b32 v{TMP}, 2, v{vJ}\nv_lshlrev_b32 v{TMP}, 9, v{TMP}\nv_and_b32 v{TMP+1}, 3, v{vJ}\nv_lshlrev_b32 v{TMP+1}, 4, v{TMP+1}")
    a(f"v_lshl_add_u32 v{TMP+1}, v{vG}, 6, v{TMP+1}")
    a(f"v_add_u32 v{vKO}, v{TMP}, v{TMP+1}")
    a(f"v_lshlrev_b32 v{vVO}, 4, v{vJ}\nv_lshl_add_u32 v{vVO}, v{vG}, 9, v{vVO}")
    a(f"s_lshl_b32 s{sKO}, s2, 19\ns_lshl_b32 s65, s{sWv}, 11\ns_add_u32 s{sKO}, s{sKO}, s65\ns_mov_b32 s{sVO}, s{sKO}")
    a("s_waitcnt lgkmcnt(0)")
    srd(SK, 6, 1 << 27)
    vm = []
    def issue(kind, reg, u, tagid):
        sr, vo, so = (SK, vKO, sKO) if kind == "K" else (SV, vVO, sVO)
        off = f" offset:256" if u & 1 else ""
        a(f"buffer_load_dwordx4 {V4(reg)}, v{vo}, {S(sr)}, s{so} offen{off} {nt}")
        if u & 1: a(f"s_add_u32 s{so}, s{so}, 8192")
        vm.append(tagid)
    def wait_for(tagid):
        if tagid not in vm: return
        n = len(vm) - 1 - vm.index(tagid)
        assert n < 64
        a(f"s_waitcnt vmcnt({n})")
    nload = [0]
    def throttle_issue(kind, reg, u):
        n = nload[0]
        wait_for(("s", n - W))
        issue(kind, reg, u, ("s", n)); nload[0] += 1
    for n in range(W):
        throttle_issue("K", ring(n // 8, n % 8), n % 8)
    if warm:
        a(f"s_cmp_lg_u32 s3, 1\ns_cbranch_scc1 L_nowarm")
        a(f"s_getpc_b64 s[66:67]\nv_lshlrev_b32 v{TMP+2}, 7, v0")
        a(f"global_load_dword v{TMP+3}, v{TMP+2}, s[66:67]")
        a.label("L_nowarm")
    srd(SV, 8, 1 << 27); srd(SW, 26, WS_USED); srd(SA, 12, 4096 * 896); srd(SB, 20, 1792 * 896); srd(SC_, 22, 3584); srd(SD, 4, 3584)
    for k in range(32): a(f"v_mov_b32 v{QF+k}, 0")
    for k in range(8): a(f"v_mov_b32 v{OACC+k}, 0")
    a(f"v_mov_b32 v{vMAX}, 0xff800000\nv_mov_b32 v{vL}, 0\nv_mov_b32 v{vC}, {hex(f2u(math.log2(math.e) / 16))}")
    a(f"v_and_b32 v{TMP+4}, 1, v{vJ}\nv_lshlrev_b32 v{TMP+4}, 4, v{TMP+4}\nv_mov_b32 v{TMP+5}, 0xffff\nv_lshlrev_b32 v{TMP+4}, v{TMP+4}, v{TMP+5}")
    a(f"v_bfe_u32 v{TMP+5}, v{vJ}, 1, 2")
    for w in range(4):
        a(f"v_cmp_eq_u32 vcc, {w}, v{TMP+5}\nv_cndmask_b32 v{MASK+w}, 0, v{TMP+4}, vcc")
    a(f"s_lshl_b32 s65, s{sWv}, 12\ns_add_u32 s65, s65, {SC}\nv_lshl_add_u32 v{vSC}, v0, 2, s65")
    for n in range(W, 8 * NP):
        throttle_issue("K", ring(n // 8, n % 8), n % 8)
    stamp(1)
    a("s_barrier")
    stamp(2)
    for t in range(4):
        m = 0x000F000F << (4 * t)
        a(f"s_mov_b32 exec_lo, {hex(m)}\ns_mov_b32 exec_hi, {hex(m)}")
        for half in range(2):
            a(f"ds_read_b128 {V4(QF + 4 * (2 * t + half))}, v{TMP+1} offset:{QL + 256 * half}")
    a("s_mov_b64 exec, -1")
    a(f"v_mov_b32 v{TMP}, 0\nds_read_b32 v{TMP+2}, v{TMP} offset:{TAGL}")
    a("s_waitcnt lgkmcnt(0)")
    a(f"v_readfirstlane_b32 s{sTAG}, v{TMP+2}")

    def consK(reg, u, d):
        c = "0" if u == 0 else V4(d)
        a(f"v_mfma_f32_16x16x32_bf16 {V4(d)}, {V4(reg)}, {V4(QF + 4 * u)}, {c}")
    def extract(ds, off0):
        for k, d in enumerate(ds): a(f"v_mov_b32_dpp v{TMP+k}, v{d} quad_perm:[0,0,0,0] {FULL}")
        for c in range(1, 4):
            for k, d in enumerate(ds): a(f"v_add_f32_dpp v{TMP+k}, v{d+c}, v{TMP+k} quad_perm:[{c},{c},{c},{c}] {FULL}")
        for k, d in enumerate(ds): a(f"v_cvt_pk_bf16_f32 v{TMP+k}, v{TMP+k}, v{TMP+k}")
        for k, d in enumerate(ds): a(f"v_and_b32 v{TMP+k}, 0xffff0000, v{TMP+k}")
        for k, d in enumerate(ds):
            a(f"ds_write_b32 v{vSC}, v{TMP+k} offset:{off0 + 256 * k}")
            a(f"v_max_f32 v{vMAX}, v{vMAX}, v{TMP+k}")
        a(f"v_add_u32 v{vSC}, {256 * len(ds)}, v{vSC}")
    for u in range(8):
        consK(ring(0, u), u, DA)
        throttle_issue("K", ring(0, u), u)
        for T in range(1, NP): consK(ring(T, u), u, DA + 4 * T)
    extract([DA + 4 * T for T in range(NP)], 0)
    vWO, vWD = TMP + 8, TMP + 9
    a(f"v_lshrrev_b32 v{TMP+6}, 1, v{vG}\nv_lshlrev_b32 v{TMP+6}, 7, v{TMP+6}\nv_and_b32 v{TMP+7}, 1, v{vG}\nv_lshl_add_u32 v{TMP+6}, v{TMP+7}, 2, v{TMP+6}")
    a(f"v_mul_u32_u24 v{vWO}, 896, v{TMP+6}")
    a(f"v_mul_u32_u24 v{vWD}, {7 * 896}, v{vG}")
    a(f"v_lshlrev_b32 v{TMP+6}, 4, v{vJ}\nv_mov_b32 v{TMP+7}, 0x40000000\nv_cmp_gt_u32 vcc, 14, v{vJ}\nv_cndmask_b32 v{TMP+6}, v{TMP+7}, v{TMP+6}, vcc")
    a(f"v_add_u32 v{vWO}, v{vWO}, v{TMP+6}\nv_add_u32 v{vWD}, v{vWD}, v{TMP+6}")
    a(f"s_lshl_b32 s66, s{sH}, 8\ns_lshl_b32 s65, s{sJ}, 5\ns_add_u32 s66, s66, s65\ns_mul_i32 s66, s66, 896\ns_mul_i32 s65, s{sWv}, 224\ns_add_u32 s66, s66, s65")
    a(f"s_mul_i32 s67, s{sIDX}, {28 * 896}\ns_add_u32 s67, s67, s65")
    extras = []
    for t in range(16): extras.append(("wo", t))
    for t in range(7): extras.append(("wd", t))
    def issue_extra(e):
        kind, t = e
        if kind == "wo":
            row = 8 * (t & 3) + (t >> 2)
            a(f"s_add_u32 s65, s66, {row * 896}")
            a(f"buffer_load_dwordx4 {V4(WOF + 4 * t)}, v{vWO}, {S(SA)}, s65 offen {wnt}")
        else:
            a(f"s_add_u32 s65, s67, {t * 896}")
            a(f"buffer_load_dwordx4 {V4(WOF + 64 + 4 * t)}, v{vWD}, {S(SB)}, s65 offen {wnt}")
        vm.append(e)
    def iterK(nextkind, ex=None):
        for u in range(8):
            consK(ring(0, u), u, DA)
            throttle_issue(nextkind, ring(0, u), u)
            if ex:
                for e in ex[3 * u: 3 * u + 3]: issue_extra(e)
        extract([DA], 0)
    iterK("K", extras)
    iterK("K")
    nkk = 13 - NP
    a(f"s_mov_b32 s{sCNT}, {nkk}")
    a.label("L_kk")
    iterK("K")
    a(f"s_sub_u32 s{sCNT}, s{sCNT}, 1\ns_cmp_lg_u32 s{sCNT}, 0\ns_cbranch_scc1 L_kk")
    iterK("V")
    stamp(3)
    a(f"v_subrev_u32 v{vSC}, 4096, v{vSC}")
    a(f"ds_read_b32 v{vS}, v{vSC}")
    a(f"v_max_f32_dpp v{vMAX}, v{vMAX}, v{vMAX} row_ror:4 {FULL}")
    a(f"v_max_f32_dpp v{vMAX}, v{vMAX}, v{vMAX} row_ror:8 {FULL}")
    a(f"v_max_f32_dpp v{vMAX}, v{vMAX}, v{vMAX} row_bcast:15 row_mask:0xa bank_mask:0xf")
    a(f"v_max_f32_dpp v{vMAX}, v{vMAX}, v{vMAX} row_bcast:31 row_mask:0xc bank_mask:0xf")
    a(f"v_readlane_b32 s65, v{vMAX}, 63")
    a(f"v_mul_f32 v{vMC}, s65, v{vC}")
    vP = TMP
    def iterV(last):
        a("s_waitcnt lgkmcnt(0)")
        a(f"v_fma_f32 v{vP}, v{vS}, v{vC}, -v{vMC}")
        a(f"v_exp_f32 v{vP}, v{vP}")
        if not last:
            a(f"v_add_u32 v{vSC}, 256, v{vSC}\nds_read_b32 v{vS}, v{vSC}")
        a(f"v_add_f32 v{vL}, v{vL}, v{vP}")
        a(f"v_cvt_pk_bf16_f32 v{vP}, v{vP}, v{vP}")
        base = nload[0] - 8
        for u in range(8):
            t, half = u >> 1, u & 1
            b = BB + 4 * (t & 1)
            if half == 0:
                for w in range(4): a(f"v_and_b32_dpp v{b+w}, v{vP}, v{MASK+w} row_newbcast:{4*t} {FULL}")
            if last: wait_for(("s", base + u))
            a(f"v_mfma_f32_16x16x32_bf16 {V4(OACC + 4 * half)}, {V4(ring(0, u))}, {V4(b)}, {V4(OACC + 4 * half)}")
            if not last: throttle_issue("V", ring(0, u), u)
    a(f"s_mov_b32 s{sCNT}, 15")
    a.label("L_vv")
    iterV(False)
    a(f"s_sub_u32 s{sCNT}, s{sCNT}, 1\ns_cmp_lg_u32 s{sCNT}, 0\ns_cbranch_scc1 L_vv")
    vH, vX0, vX1, vHO, vXO = DA, DA + 2, DA + 3, DA + 4, DA + 5
    a(f"v_mul_u32_u24 v{vHO}, 7, v{vG}\nv_add_lshl_u32 v{vHO}, v{vHO}, v{vJ}, 3")
    a(f"v_mov_b32 v{TMP+7}, 0x40000000\nv_cmp_gt_u32 vcc, 7, v{vJ}\nv_cndmask_b32 v{vHO}, v{TMP+7}, v{vHO}, vcc")
    a(f"s_mul_i32 s68, s{sB}, {1792 * 8}\ns_mul_i32 s65, s{sIDX}, {28 * 8}\ns_add_u32 s68, s68, s65\ns_add_u32 s68, s68, {HMB}")
    a(f"buffer_load_dwordx2 {V2(vH)}, v{vHO}, {S(SW)}, s68 offen sc1"); vm.append("h")
    a(f"s_lshr_b32 s65, s{sIDX}, 3\ns_lshl_b32 s65, s65, 4\ns_and_b32 s69, s{sIDX}, 7\ns_add_u32 s69, s69, s65")
    a(f"s_mul_i32 s65, s{sWv}, 112\ns_add_u32 s69, s69, s65\ns_mul_i32 s65, s{sB}, 448\ns_add_u32 s69, s69, s65\ns_lshl_b32 s69, s69, 1")
    a(f"v_mov_b32 v{vXO}, 0")
    a(f"buffer_load_ushort v{vX0}, v{vXO}, {S(SD)}, s69 offen"); vm.append("x0")
    a(f"buffer_load_ushort v{vX1}, v{vXO}, {S(SD)}, s69 offen offset:16"); vm.append("x1")
    iterV(True)
    stamp(4)
    a(f"v_add_f32_dpp v{vL}, v{vL}, v{vL} row_ror:4 {FULL}")
    a(f"v_add_f32_dpp v{vL}, v{vL}, v{vL} row_ror:8 {FULL}")
    a(f"v_add_f32_dpp v{vL}, v{vL}, v{vL} row_bcast:15 row_mask:0xa bank_mask:0xf")
    a(f"v_add_f32_dpp v{vL}, v{vL}, v{vL} row_bcast:31 row_mask:0xc bank_mask:0xf")
    a(f"s_lshl_b32 s65, s{sWv}, 10\ns_add_u32 s65, s65, {OP}\nv_lshl_add_u32 v{TMP+1}, v0, 4, s65")
    a(f"s_lshl_b32 s65, s{sWv}, 3\ns_add_u32 s65, s65, {ML}\nv_mov_b32 v{TMP+2}, s65")
    a(f"v_mov_b32 v{TMP+4}, v{vMC}\nv_mov_b32 v{TMP+5}, v{vL}")
    for r in range(4): a(f"v_mov_b32_dpp v{OACC+r}, v{OACC+4+r} {IDP} row_mask:0xf bank_mask:0xc")
    a(f"ds_write_b128 v{TMP+1}, {V4(OACC)}")
    a("s_mov_b32 exec_lo, 0\ns_mov_b32 exec_hi, 0x80000000")
    a(f"ds_write_b64 v{TMP+2}, {V2(TMP+4)}")
    a("s_mov_b64 exec, -1")
    a(f"s_lshl_b32 s65, s{sWv}, 8\ns_add_u32 s65, s65, {OP}\nv_lshl_add_u32 v{TMP+1}, v0, 2, s65")
    a(f"v_mov_b32 v{TMP+2}, 0")
    vL16 = TMP + 3
    a(f"v_lshlrev_b32 v{vL16}, 4, v0")
    a(f"s_lshl_b32 s70, s{sBH}, 14\ns_add_u32 s70, s70, {MB1}\ns_lshl_b32 s65, s{sJ}, 12\ns_add_u32 s71, s70, s65")
    a(f"s_lshl_b32 s65, s{sWv}, 12\ns_add_u32 s70, s70, s65\ns_lshl_b32 s65, s{sJ}, 10\ns_add_u32 s70, s70, s65")
    a("s_waitcnt lgkmcnt(0)")
    a("s_barrier")
    G = QF
    a(f"ds_read_b128 {V4(G)}, v{TMP+2} offset:{ML}\nds_read_b128 {V4(G+4)}, v{TMP+2} offset:{ML+16}")
    for w in range(4): a(f"ds_read_b32 v{G+8+w}, v{TMP+1} offset:{1024*w}")
    a("s_waitcnt lgkmcnt(4)")
    def combine(ms, ls, vs, oM, oL, oV, tmp, mid=None):
        a(f"v_max3_f32 v{oM}, v{ms[0]}, v{ms[1]}, v{ms[2]}\nv_max_f32 v{oM}, v{oM}, v{ms[3]}")
        for k in range(4): a(f"v_sub_f32 v{tmp+k}, v{ms[k]}, v{oM}")
        for k in range(4): a(f"v_exp_f32 v{tmp+k}, v{tmp+k}")
        a(f"v_mul_f32 v{oL}, v{tmp}, v{ls[0]}")
        for k in range(1, 4): a(f"v_fmac_f32 v{oL}, v{tmp+k}, v{ls[k]}")
        if mid: a(mid)
        a(f"v_mul_f32 v{oV}, v{tmp}, v{vs[0]}")
        for k in range(1, 4): a(f"v_fmac_f32 v{oV}, v{tmp+k}, v{vs[k]}")
    GR = G + 12
    combine([G, G+2, G+4, G+6], [G+1, G+3, G+5, G+7], [G+8, G+9, G+10, G+11], GR+1, GR+2, GR, TMP+4, mid="s_waitcnt lgkmcnt(0)")
    a(f"v_mov_b32 v{GR+3}, s{sTAG}")
    a(f"buffer_store_dwordx4 {V4(GR)}, v{vL16}, {S(SW)}, s70 offen sc1")
    P1 = G + 16
    for k in range(4): a(f"buffer_load_dwordx4 {V4(P1+4*k)}, v{vL16}, {S(SW)}, s71 offen offset:{1024*k} sc1")
    a(f"s_mov_b32 s{sCNT}, {spin}")
    a(f"v_cmp_gt_u32 s[74:75], 7, v{vJ}")
    a("s_waitcnt vmcnt(5)")
    a.label("L_hchk")
    a(f"v_cmp_ne_u32 vcc, s{sTAG}, v{vH+1}\ns_and_b64 vcc, vcc, s[74:75]\ns_cbranch_scc0 L_hok")
    a(f"s_sleep 1\nbuffer_load_dwordx2 {V2(vH)}, v{vHO}, {S(SW)}, s68 offen sc1\ns_waitcnt vmcnt(0)")
    a(f"s_sub_u32 s{sCNT}, s{sCNT}, 1\ns_cmp_lg_u32 s{sCNT}, 0\ns_cbranch_scc1 L_hchk")
    a.label("L_hok")
    Y = OACC
    def diag(src, frag0, n, first):
        def prep(t):
            b = BB + 4 * (t & 1)
            for w in range(4): a(f"v_and_b32_dpp v{b+w}, v{src}, v{MASK+w} row_newbcast:{t} {FULL}")
        prep(0)
        for t in range(n):
            if t + 1 < n: prep(t + 1)
            c = "0" if (first and t == 0) else V4(Y)
            a(f"v_mfma_f32_16x16x32_bf16 {V4(Y)}, {V4(frag0 + 4 * t)}, {V4(BB + 4 * (t & 1))}, {c}")
    a(f"v_cvt_pk_bf16_f32 v{vH}, v{vH}, v{vH}")
    diag(vH, WOF + 64, 7, True)
    a(f"s_lshl_b32 s70, s{sB}, 2\ns_add_u32 s70, s70, s{sWv}\ns_lshl_b32 s70, s70, 16\ns_add_u32 s70, s70, {MB2}")
    a(f"s_lshl_b32 s65, s{sIDX}, 10\ns_add_u32 s73, s70, s65\ns_lshl_b32 s65, s{sIDX}, 4\ns_add_u32 s70, s70, s65")
    vL1K = TMP + 2
    a(f"v_lshlrev_b32 v{vL1K}, 10, v0")
    a(f"s_mov_b32 s{sCNT}, {spin}")
    a.label("L_p1")
    a("s_waitcnt vmcnt(0)")
    for k in range(4): a(f"v_cmp_ne_u32 s[{76+0}:{77}], s{sTAG}, v{P1+4*k+3}" if k == 0 else f"v_cmp_ne_u32 vcc, s{sTAG}, v{P1+4*k+3}\ns_or_b64 s[76:77], s[76:77], vcc")
    a("s_cbranch_scc0 L_p1ok")
    a(f"s_sleep {sleep1}")
    for k in range(4):
        a(f"v_cmp_ne_u32 vcc, s{sTAG}, v{P1+4*k+3}\ns_cbranch_vccz L_p1s{k}")
        a(f"buffer_load_dwordx4 {V4(P1+4*k)}, v{vL16}, {S(SW)}, s71 offen offset:{1024*k} sc1")
        a.label(f"L_p1s{k}")
    a(f"s_sub_u32 s{sCNT}, s{sCNT}, 1\ns_cmp_lg_u32 s{sCNT}, 0\ns_cbranch_scc1 L_p1")
    a.label("L_p1ok")
    stamp(5)
    combine([P1+1, P1+5, P1+9, P1+13], [P1+2, P1+6, P1+10, P1+14], [P1, P1+4, P1+8, P1+12], G+1, G+2, G, TMP+4, mid=f"v_rcp_f32 v{G+2}, v{G+2}")
    a(f"v_mul_f32 v{G}, v{G}, v{G+2}")
    a(f"v_cvt_pk_bf16_f32 v{G}, v{G}, v{G}")
    diag(G, WOF, 16, False)
    a(f"v_mov_b32 v{GR+1}, s{sTAG}\nv_mov_b32 v{GR+3}, s{sTAG}")
    a(f"v_mov_b32 v{GR}, v{Y}\nv_mov_b32 v{GR+2}, v{Y+1}")
    a(f"v_mov_b32_dpp v{GR}, v{Y+2} {IDP} row_mask:0xf bank_mask:0xc\nv_mov_b32_dpp v{GR+2}, v{Y+3} {IDP} row_mask:0xf bank_mask:0xc")
    a("s_mov_b32 exec_hi, 0x00ffffff")
    a(f"buffer_store_dwordx4 {V4(GR)}, v{vL1K}, {S(SW)}, s70 offen sc1")
    a("s_mov_b64 exec, -1")
    a(f"s_cmp_ge_u32 s{sIDX}, 56\ns_cbranch_scc1 L_sdone")
    a(f"s_mov_b32 s{sCNT}, {spin}")
    a.label("L_p2")
    a(f"buffer_load_dwordx4 {V4(P1)}, v{vL16}, {S(SW)}, s73 offen sc1")
    a("s_waitcnt vmcnt(0)")
    a(f"v_cmp_ne_u32 s[76:77], s{sTAG}, v{P1+1}\nv_cmp_ne_u32 vcc, s{sTAG}, v{P1+3}\ns_or_b64 s[76:77], s[76:77], vcc")
    a("s_cbranch_scc0 L_p2ok")
    a(f"s_sleep {sleep2}")
    a(f"s_sub_u32 s{sCNT}, s{sCNT}, 1\ns_cmp_lg_u32 s{sCNT}, 0\ns_cbranch_scc1 L_p2")
    a.label("L_p2ok")
    stamp(6)
    for mod in ("quad_perm:[1,0,3,2] " + FULL, "quad_perm:[2,3,0,1] " + FULL, "row_ror:4 " + FULL, "row_ror:8 " + FULL,
                "row_bcast:15 row_mask:0xa bank_mask:0xf", "row_bcast:31 row_mask:0xc bank_mask:0xf"):
        a(f"v_add_f32_dpp v{P1}, v{P1}, v{P1} {mod}\nv_add_f32_dpp v{P1+2}, v{P1+2}, v{P1+2} {mod}")
    a(f"v_lshlrev_b32 v{vX0}, 16, v{vX0}\nv_lshlrev_b32 v{vX1}, 16, v{vX1}")
    a(f"v_add_f32 v{P1}, v{P1}, v{vX0}\nv_add_f32 v{P1+2}, v{P1+2}, v{vX1}")
    a(f"v_cvt_pk_bf16_f32 v{P1}, v{P1}, v{P1+2}")
    a("s_mov_b32 exec_lo, 0\ns_mov_b32 exec_hi, 0x80000000")
    a(f"buffer_store_short v{P1}, v{vXO}, {S(SC_)}, s69 offen")
    a(f"buffer_store_short_d16_hi v{P1}, v{vXO}, {S(SC_)}, s69 offen offset:16")
    a(f"s_or_b32 s65, s2, s{sWv}\ns_cmp_lg_u32 s65, 0\ns_cbranch_scc1 L_sdone")
    a(f"buffer_store_dword v{P1+1}, v{vXO}, {S(SW)}, 0 offen")
    a.label("L_sdone")
    if padto:
        if padwg is not None: a(f"s_cmp_lg_u32 s2, {padwg}\ns_cbranch_scc1 L_end")
        a.label("L_pad")
        a(f"s_sleep 1\ns_memrealtime s[98:99]\ns_waitcnt lgkmcnt(0)\ns_sub_u32 s98, s98, s96\ns_cmp_lt_u32 s98, {padto}\ns_cbranch_scc1 L_pad")
    stamp(7)
    dump_stamps(8)
    a("s_endpgm")

    a.label("L_helper")
    X, F, AF, BF = 32, 64, 96, 152
    a("s_setprio 3")
    a(f"v_mul_u32_u24 v6, 896, v5\nv_lshl_add_u32 v6, v4, 6, v6\nv_mov_b32 v7, 0x40000000\nv_cmp_gt_u32 s[74:75], 14, v4")
    a(f"v_cndmask_b32 v7, v7, v6, s[74:75]")
    a(f"v_lshrrev_b32 v8, 1, v0\nv_and_b32 v9, 1, v0\nv_lshlrev_b32 v9, 4, v9\nv_lshl_add_u32 v10, v8, 13, v9")
    a(f"v_mul_u32_u24 v11, 3584, v8\nv_add_u32 v11, v11, v9")
    a(f"s_lshl_b32 s65, s{sH}, 8\ns_lshl_b32 s66, s{sJ}, 6\ns_add_u32 s65, s65, s66\ns_lshl_b32 s66, s{sB}, 4\ns_add_u32 s65, s65, s66\ns_lshl_b32 s65, s65, 1")
    a("s_waitcnt lgkmcnt(0)")
    a(f"s_load_dword s{sTAG}, s[26:27], 0")
    srd(SA, 4, 3584)
    for u in range(4): a(f"buffer_load_dwordx4 {V4(X+4*u)}, v7, {S(SA)}, 0 offen offset:{16*u}")
    srd(SB, 10, 448 * 8192)
    def dma(sr, voff, so, stride, lds0):
        for k in range(14):
            a(f"s_mov_b32 m0, {lds0 + 1024 * k}")
            a(f"buffer_load_dwordx4 v{voff}, {S(sr)}, s{so} offen {wnt} lds")
            if k < 13: a(f"s_add_u32 s{so}, s{so}, {32 * stride}")
    dma(SB, 10, 65, 8192, WL0)
    srd(SW, 26, WS_USED); srd(SC_, 16, 448 * 3584); srd(SD, 18, 448 * 3584)
    a(f"v_and_b32 v12, 3, v4\nv_mul_u32_u24 v12, 896, v12\nv_lshl_add_u32 v12, v5, 4, v12")
    a(f"v_lshlrev_b32 v13, 3, v4\nv_lshl_add_u32 v13, v5, 8, v13")
    a("s_waitcnt vmcnt(14)")
    stamp(1)
    for k in range(16): a(f"v_lshlrev_b32 v{F+2*k}, 16, v{X+k}\nv_and_b32 v{F+2*k+1}, 0xffff0000, v{X+k}")
    a(f"v_pk_add_f32 v[14:15], {V2(F)}, {V2(F+2)}\nv_pk_add_f32 v[16:17], {V2(F+4)}, {V2(F+6)}")
    for k in range(4, 16, 2):
        a(f"v_pk_add_f32 v[14:15], v[14:15], {V2(F+2*k)}\nv_pk_add_f32 v[16:17], v[16:17], {V2(F+2*k+2)}")
    a("v_pk_add_f32 v[14:15], v[14:15], v[16:17]\nv_add_f32 v14, v14, v15")
    def rowsum(r):
        for sh in (8, 4, 2, 1): a(f"v_add_f32_dpp v{r}, v{r}, v{r} row_ror:{sh} {FULL}")
    rowsum(14)
    a(f"v_mul_f32 v18, {hex(f2u(-1.0 / 448))}, v14\nv_mov_b32 v19, v18")
    a("v_mov_b32 v14, 0\nv_mov_b32 v15, 0\nv_mov_b32 v16, 0\nv_mov_b32 v17, 0")
    for k in range(0, 16, 2):
        a(f"v_pk_add_f32 v[20:21], {V2(F+2*k)}, v[18:19]\nv_pk_add_f32 v[22:23], {V2(F+2*k+2)}, v[18:19]")
        a(f"v_pk_fma_f32 v[14:15], v[20:21], v[20:21], v[14:15]\nv_pk_fma_f32 v[16:17], v[22:23], v[22:23], v[16:17]")
    a("v_pk_add_f32 v[14:15], v[14:15], v[16:17]\nv_add_f32 v14, v14, v15\nv_cndmask_b32 v14, 0, v14, s[74:75]")
    rowsum(14)
    def rbf(r): a(f"v_cvt_pk_bf16_f32 v{r}, v{r}, v{r}\nv_and_b32 v{r}, 0xffff0000, v{r}")
    a(f"v_mul_f32 v14, {hex(f2u(1.0 / 448))}, v14"); rbf(14)
    a(f"v_add_f32 v14, {hex(f2u(1e-5))}, v14"); rbf(14)
    a("v_sqrt_f32 v14, v14"); rbf(14)
    a("v_rcp_f32 v16, v14\nv_mov_b32 v15, v14"); rbf(18)
    a("v_mov_b32 v17, v16\nv_mov_b32 v19, v18")
    for k in range(16):
        a(f"v_pk_add_f32 {V2(F+2*k)}, {V2(F+2*k)}, v[18:19]")
    for k in range(16):
        a(f"v_cvt_pk_bf16_f32 v{X+k}, v{F+2*k}, v{F+2*k+1}")
    for k in range(16): a(f"v_lshlrev_b32 v{F+2*k}, 16, v{X+k}\nv_and_b32 v{F+2*k+1}, 0xffff0000, v{X+k}")
    for k in range(16):
        t = 20 + 2 * (k & 3)
        a(f"v_pk_mul_f32 {V2(t)}, {V2(F+2*k)}, v[16:17]")
        a(f"v_pk_fma_f32 {V2(F+2*k)}, {V2(t)}, v[14:15], {V2(F+2*k)} neg_lo:[1,0,0] neg_hi:[1,0,0]")
        a(f"v_pk_fma_f32 {V2(t)}, {V2(F+2*k)}, v[16:17], {V2(t)}")
        a(f"v_cvt_pk_bf16_f32 v{X+k}, v{t}, v{t+1}")
    a("s_mov_b64 exec, s[74:75]")
    for u in range(4): a(f"ds_write_b128 v6, {V4(X+4*u)} offset:{XN + 16*u}")
    a("s_mov_b64 exec, -1")
    a("s_waitcnt lgkmcnt(0)")
    a(f"s_add_u32 s{sTAG}, s{sTAG}, 1")
    for k in range(14): a(f"ds_read_b128 {V4(AF+4*k)}, v12 offset:{XN + 64*k}")
    a("s_waitcnt vmcnt(0)")
    stamp(2)
    def piece(lds0, d):
        for k in range(14):
            a(f"ds_read_b64_tr_b16 {V2(BF+4*k)}, v13 offset:{lds0 + 1024*k}\nds_read_b64_tr_b16 {V2(BF+4*k+2)}, v13 offset:{lds0 + 1024*k + 128}")
        a("s_waitcnt lgkmcnt(0)")
        for k in range(14):
            a(f"v_mfma_f32_16x16x32_bf16 {V4(d)}, {V4(AF+4*k)}, {V4(BF+4*k)}, {'0' if k == 0 else V4(d)}")
        for r in range(1, 4): a(f"v_mov_b32_dpp v{d}, v{d+r} {IDP} row_mask:{hex(1 << r)} bank_mask:0xf")
    a(f"v_lshlrev_b32 v8, 3, v4\nv_lshl_add_u32 v9, v5, 15, v8")
    a(f"s_lshl_b32 s66, s{sJ}, 6\ns_lshl_b32 s67, s{sB}, 4\ns_add_u32 s66, s66, s67\ns_lshl_b32 s66, s66, 3\ns_lshl_b32 s67, s{sH}, 11\ns_add_u32 s66, s66, s67\ns_add_u32 s66, s66, {QMB}")
    a(f"s_lshl_b32 s67, s{sBH}, 11\ns_add_u32 s67, s67, {QMB}\nv_lshlrev_b32 v10, 5, v0")
    piece(WL0, 20)
    a(f"v_mov_b32 v21, s{sTAG}")
    a(f"buffer_store_dwordx2 v[20:21], v9, {S(SW)}, s66 offen sc1")
    stamp(3)
    a(f"s_mov_b32 s{sCNT}, {spin}")
    a.label("L_pq")
    a(f"buffer_load_dwordx4 v[24:27], v10, {S(SW)}, s67 offen sc1\nbuffer_load_dwordx4 v[28:31], v10, {S(SW)}, s67 offen offset:16 sc1")
    a("s_waitcnt vmcnt(0)")
    a(f"v_cmp_ne_u32 s[76:77], s{sTAG}, v25")
    for r in (27, 29, 31): a(f"v_cmp_ne_u32 vcc, s{sTAG}, v{r}\ns_or_b64 s[76:77], s[76:77], vcc")
    a("s_cbranch_scc0 L_pqok")
    a(f"s_sleep {sleepq}")
    a(f"s_sub_u32 s{sCNT}, s{sCNT}, 1\ns_cmp_lg_u32 s{sCNT}, 0\ns_cbranch_scc1 L_pq")
    a.label("L_pqok")
    a("v_cvt_pk_bf16_f32 v24, v24, v26\nv_cvt_pk_bf16_f32 v25, v28, v30\nv_lshlrev_b32 v10, 3, v0\nv_mov_b32 v22, 0")
    a(f"ds_write_b64 v10, v[24:25] offset:{QL}\nds_write_b32 v22, v21 offset:{TAGL}")
    a("s_waitcnt lgkmcnt(0)")
    stamp(4)
    a("s_barrier")
    a("s_setprio 0")
    a(f"s_cmp_ge_u32 s{sIDX}, 28\ns_cbranch_scc1 L_hdone")
    a(f"s_lshl_b32 s65, s{sIDX}, 6\ns_lshl_b32 s66, s{sB}, 4\ns_add_u32 s68, s65, s66\ns_lshl_b32 s65, s68, 1\ns_mov_b32 s66, s65")
    dma(SC_, 11, 65, 3584, WL0)
    dma(SD, 11, 66, 3584, WL1)
    a(f"v_mul_u32_u24 v9, {1792 * 8}, v5\nv_add_u32 v9, v9, v8")
    a(f"s_lshl_b32 s68, s68, 3\ns_add_u32 s68, s68, {HMB}")
    a("s_waitcnt vmcnt(14)")
    piece(WL0, 20)
    a("s_waitcnt vmcnt(0)")
    piece(WL1, 24)
    rbf(20); rbf(24)
    k1 = -2.0 * math.sqrt(2.0 / math.pi) * math.log2(math.e)
    a(f"v_mul_f32 v22, v20, v20\nv_mul_f32 v22, {hex(f2u(0.044715))}, v22\nv_fma_f32 v22, v22, v20, v20")
    a(f"v_mul_f32 v22, {hex(f2u(k1))}, v22\nv_exp_f32 v22, v22\nv_add_f32 v22, 1.0, v22\nv_rcp_f32 v22, v22\nv_mul_f32 v20, v20, v22")
    rbf(20)
    a(f"v_mul_f32 v20, v20, v24\nv_mov_b32 v21, s{sTAG}")
    a(f"buffer_store_dwordx2 v[20:21], v9, {S(SW)}, s68 offen sc1")
    a.label("L_hdone")
    stamp(5)
    dump_stamps(6)
    a.label("L_end")
    a("s_endpgm")
    a.raw('.section .rodata,"a"'); a.raw(".p2align 6"); a.raw(f".amdhsa_kernel {NAME}")
    a.raw("  .amdhsa_next_free_vgpr 256"); a.raw("  .amdhsa_next_free_sgpr 102"); a.raw("  .amdhsa_accum_offset 256")
    a.raw("  .amdhsa_group_segment_fixed_size 0"); a.raw("  .amdhsa_kernarg_size 96"); a.raw("  .amdhsa_user_sgpr_count 2")
    a.raw("  .amdhsa_user_sgpr_kernarg_segment_ptr 1"); a.raw("  .amdhsa_system_sgpr_workgroup_id_x 1"); a.raw(".end_amdhsa_kernel")
    return a.text()

if __name__ == "__main__":
    out = sys.argv[1]
    kw = eval("dict(" + (sys.argv[2] if len(sys.argv) > 2 else "") + ")")
    open(out, "w").write(gen(**kw))
```

```python
import sys, struct, math
sys.path.insert(0, "gen")
from asmlib import Asm

NAME = "parallel_sum__mha_block_cached__geglu_ffn__decode_kernel"
HEADER = open("parallel_sum__mha_block_cached__geglu_ffn__decode.s.ref").read().split("; Override launch")[0]

def f2u(x): return struct.unpack("<I", struct.pack("<f", x))[0]

QMB = 0x10000
FMB = QMB + 64 * 8192
MB1 = 0x100000
MB2 = 0x200000
TSB = 0x400000
WS_USED = TSB + 0x10000
XN, QL, TAGL, ML, HIMG, OP, SC = 0, 3584, 4096, 4128, 4160, 4352, 8448
WL0 = SC + 16384
WROW = 928
WL1 = WL0 + 14336
LDS_BYTES = WL1 + 23 * WROW

FULL = "row_mask:0xf bank_mask:0xf"
IDP = "quad_perm:[0,1,2,3]"

def gen(W=5, NP=5, nt="nt", wnt="nt", stamps=False, warm=True, sleep1=1, sleep2=1, sleepq=1, spin=1 << 16,
        padto=0, padwg=None, padstamp=None, HW=4, kpat=0, noffn=0, noq=0, nowo=0):
    a = Asm()
    a.raw(HEADER.rstrip("\n"))
    a.raw(f"; @launch grid=(256,1,1) block=(320,1,1) lds={LDS_BYTES}")
    a.raw('.amdgcn_target "amdgcn-amd-amdhsa--gfx950"')
    a.raw(".text"); a.raw(f".globl {NAME}"); a.raw(".p2align 8"); a.raw(f".type {NAME},@function")
    a.raw(f"{NAME}:")
    SK, SV, SW, SA, SB, SC_, SD = 28, 32, 36, 40, 44, 48, 52
    sB, sH, sJ, sIDX, sBH, sTAG, sCNT, sKO, sVO, sWv = 56, 57, 58, 59, 60, 61, 62, 63, 64, 72
    def srd(r, ptr, size):
        a(f"s_mov_b32 s{r}, s{ptr}\ns_mov_b32 s{r+1}, s{ptr+1}\ns_mov_b32 s{r+2}, {size}\ns_mov_b32 s{r+3}, 0x20000")
    def S(r): return f"s[{r}:{r+3}]"
    def V4(r): return f"v[{r}:{r+3}]"
    def V2(r): return f"v[{r}:{r+1}]"
    def stamp(k):
        if stamps or padstamp is not None:
            a(f"s_memrealtime s[{80+2*k}:{81+2*k}]")
    def dump_stamps(n):
        if not stamps: return
        a("s_waitcnt lgkmcnt(0)")
        a("s_mov_b64 exec, 1")
        a(f"s_mul_i32 s65, s2, 5\ns_add_u32 s65, s65, s3\ns_lshl_b32 s65, s65, 5\ns_add_u32 s65, s65, {TSB}")
        a("v_mov_b32 v1, 0")
        for k in range(n):
            a(f"v_mov_b32 v2, s{80+2*k}")
            a(f"buffer_store_dword v2, v1, {S(SW)}, s65 offen offset:{4*k}")
        a("s_waitcnt vmcnt(0)")
    def pad(role):
        if not padto: return
        r, k = padstamp if padstamp is not None else ("S", 0)
        if r != role: return
        if padwg is not None: a(f"s_cmp_lg_u32 s2, {padwg}\ns_cbranch_scc1 L_end")
        a.label(f"L_pad{role}")
        a(f"s_sleep 1\ns_memrealtime s[98:99]\ns_waitcnt lgkmcnt(0)\ns_sub_u32 s98, s98, s{80+2*k}\ns_cmp_lt_u32 s98, {padto}\ns_cbranch_scc1 L_pad{role}")

    a("s_cmp_ge_u32 s2, 256\ns_cbranch_scc1 L_end")
    a("s_load_dwordx16 s[4:19], s[0:1], 0\ns_load_dwordx8 s[20:27], s[0:1], 64")
    stamp(0)
    a("v_lshrrev_b32 v1, 6, v0\nv_and_b32 v0, 63, v0\nv_readfirstlane_b32 s3, v1")
    a(f"s_lshr_b32 s{sB}, s2, 6\ns_lshr_b32 s{sBH}, s2, 2\ns_and_b32 s{sH}, s{sBH}, 15\ns_and_b32 s{sJ}, s2, 3\ns_and_b32 s{sIDX}, s2, 63")
    a("v_and_b32 v4, 15, v0\nv_lshrrev_b32 v5, 4, v0")
    a("s_cmp_eq_u32 s3, 0\ns_cbranch_scc1 L_helper")

    vKO, vVO, vSC, vMAX, vL, vC, vMC, vS = 1, 2, 3, 6, 7, 28, 29, 30
    vJ, vG = 4, 5
    MASK, OACC, BB, QF, DA, TMP, R = 8, 12, 20, 32, 64, 84, 96
    def ring(tile, u): return R + 32 * tile + 4 * u
    a(f"s_sub_u32 s{sWv}, s3, 1")
    a(f"v_lshrrev_b32 v{TMP}, 2, v{vJ}\nv_lshlrev_b32 v{TMP}, 9, v{TMP}\nv_and_b32 v{TMP+1}, 3, v{vJ}\nv_lshlrev_b32 v{TMP+1}, 4, v{TMP+1}")
    a(f"v_lshl_add_u32 v{TMP+1}, v{vG}, 6, v{TMP+1}")
    a(f"v_add_u32 v{vKO}, v{TMP}, v{TMP+1}")
    a(f"v_lshlrev_b32 v{vVO}, 4, v{vJ}\nv_lshl_add_u32 v{vVO}, v{vG}, 9, v{vVO}")
    if kpat == 1: a(f"v_mov_b32 v{vKO}, v{vVO}")
    a(f"s_lshl_b32 s{sKO}, s2, 19\ns_lshl_b32 s65, s{sWv}, 11\ns_add_u32 s{sKO}, s{sKO}, s65\ns_mov_b32 s{sVO}, s{sKO}")
    a("s_waitcnt lgkmcnt(0)")
    srd(SK, 6, 1 << 27)
    vm = []
    def issue(kind, reg, u, tagid):
        sr, vo, so = (SK, vKO, sKO) if kind == "K" else (SV, vVO, sVO)
        off = f" offset:256" if u & 1 else ""
        a(f"buffer_load_dwordx4 {V4(reg)}, v{vo}, {S(sr)}, s{so} offen{off} {nt}")
        if u & 1: a(f"s_add_u32 s{so}, s{so}, 8192")
        vm.append(tagid)
    def wait_for(tagid):
        if tagid not in vm: return
        n = len(vm) - 1 - vm.index(tagid)
        assert n < 64
        a(f"s_waitcnt vmcnt({n})")
    nload = [0]
    def throttle_issue(kind, reg, u):
        n = nload[0]
        wait_for(("s", n - W))
        issue(kind, reg, u, ("s", n)); nload[0] += 1
    if warm:
        a(f"s_cmp_lg_u32 s3, 1\ns_cbranch_scc1 L_nowarm")
        a(f"s_getpc_b64 s[66:67]\nv_lshlrev_b32 v{TMP+2}, 7, v0")
        a(f"global_load_dword v{TMP+3}, v{TMP+2}, s[66:67]")
        a.label("L_nowarm")
    for n in range(W):
        throttle_issue("K", ring(n // 8, n % 8), n % 8)
    srd(SV, 8, 1 << 27); srd(SW, 26, WS_USED); srd(SC_, 22, 3584); srd(SD, 4, 3584)
    for k in range(32): a(f"v_mov_b32 v{QF+k}, 0")
    for k in range(8): a(f"v_mov_b32 v{OACC+k}, 0")
    a(f"v_mov_b32 v{vMAX}, 0xff800000\nv_mov_b32 v{vL}, 0\nv_mov_b32 v{vC}, {hex(f2u(math.log2(math.e) / 16))}")
    a(f"v_and_b32 v{TMP+4}, 1, v{vJ}\nv_lshlrev_b32 v{TMP+4}, 4, v{TMP+4}\nv_mov_b32 v{TMP+5}, 0xffff\nv_lshlrev_b32 v{TMP+4}, v{TMP+4}, v{TMP+5}")
    a(f"v_bfe_u32 v{TMP+5}, v{vJ}, 1, 2")
    for w in range(4):
        a(f"v_cmp_eq_u32 vcc, {w}, v{TMP+5}\nv_cndmask_b32 v{MASK+w}, 0, v{TMP+4}, vcc")
    a(f"s_lshl_b32 s65, s{sWv}, 12\ns_add_u32 s65, s65, {SC}\nv_lshl_add_u32 v{vSC}, v0, 2, s65")
    for n in range(W, 8 * NP):
        throttle_issue("K", ring(n // 8, n % 8), n % 8)
    stamp(1)
    a("s_barrier")
    stamp(2)
    for t in range(4):
        m = 0x000F000F << (4 * t)
        a(f"s_mov_b32 exec_lo, {hex(m)}\ns_mov_b32 exec_hi, {hex(m)}")
        for half in range(2):
            a(f"ds_read_b128 {V4(QF + 4 * (2 * t + half))}, v{TMP+1} offset:{QL + 256 * half}")
    a("s_mov_b64 exec, -1")
    a(f"v_mov_b32 v{TMP}, 0\nds_read_b32 v{TMP+2}, v{TMP} offset:{TAGL}")
    a("s_waitcnt lgkmcnt(0)")
    a(f"v_readfirstlane_b32 s{sTAG}, v{TMP+2}")

    def consK(reg, u, d):
        c = "0" if u == 0 else V4(d)
        a(f"v_mfma_f32_16x16x32_bf16 {V4(d)}, {V4(reg)}, {V4(QF + 4 * u)}, {c}")
    def extract(ds, off0):
        for k, d in enumerate(ds): a(f"v_mov_b32_dpp v{TMP+k}, v{d} quad_perm:[0,0,0,0] {FULL}")
        for c in range(1, 4):
            for k, d in enumerate(ds): a(f"v_add_f32_dpp v{TMP+k}, v{d+c}, v{TMP+k} quad_perm:[{c},{c},{c},{c}] {FULL}")
        for k, d in enumerate(ds): a(f"v_cvt_pk_bf16_f32 v{TMP+k}, v{TMP+k}, v{TMP+k}")
        for k, d in enumerate(ds): a(f"v_and_b32 v{TMP+k}, 0xffff0000, v{TMP+k}")
        for k, d in enumerate(ds):
            a(f"ds_write_b32 v{vSC}, v{TMP+k} offset:{off0 + 256 * k}")
            a(f"v_max_f32 v{vMAX}, v{vMAX}, v{TMP+k}")
        a(f"v_add_u32 v{vSC}, {256 * len(ds)}, v{vSC}")
    for u in range(8):
        consK(ring(0, u), u, DA)
        throttle_issue("K", ring(0, u), u)
        for T in range(1, NP): consK(ring(T, u), u, DA + 4 * T)
    extract([DA + 4 * T for T in range(NP)], 0)
    def iterK(nextkind):
        for u in range(8):
            consK(ring(0, u), u, DA)
            throttle_issue(nextkind, ring(0, u), u)
        extract([DA], 0)
    a(f"s_mov_b32 s{sCNT}, {15 - NP}")
    a.label("L_kk")
    iterK("K")
    a(f"s_sub_u32 s{sCNT}, s{sCNT}, 1\ns_cmp_lg_u32 s{sCNT}, 0\ns_cbranch_scc1 L_kk")
    iterK("V")
    stamp(3)
    a(f"v_subrev_u32 v{vSC}, 4096, v{vSC}")
    a(f"ds_read_b32 v{vS}, v{vSC}")
    a(f"v_max_f32_dpp v{vMAX}, v{vMAX}, v{vMAX} row_ror:4 {FULL}")
    a(f"v_max_f32_dpp v{vMAX}, v{vMAX}, v{vMAX} row_ror:8 {FULL}")
    a(f"v_max_f32_dpp v{vMAX}, v{vMAX}, v{vMAX} row_bcast:15 row_mask:0xa bank_mask:0xf")
    a(f"v_max_f32_dpp v{vMAX}, v{vMAX}, v{vMAX} row_bcast:31 row_mask:0xc bank_mask:0xf")
    a(f"v_readlane_b32 s65, v{vMAX}, 63")
    a(f"v_mul_f32 v{vMC}, s65, v{vC}")
    vP = TMP
    def iterV(last):
        a("s_waitcnt lgkmcnt(0)")
        a(f"v_fma_f32 v{vP}, v{vS}, v{vC}, -v{vMC}")
        a(f"v_exp_f32 v{vP}, v{vP}")
        if not last:
            a(f"v_add_u32 v{vSC}, 256, v{vSC}\nds_read_b32 v{vS}, v{vSC}")
        a(f"v_add_f32 v{vL}, v{vL}, v{vP}")
        a(f"v_cvt_pk_bf16_f32 v{vP}, v{vP}, v{vP}")
        if last: tail_prep()
        base = nload[0] - 8
        for u in range(8):
            t, half = u >> 1, u & 1
            b = BB + 4 * (t & 1)
            if half == 0:
                for w in range(4): a(f"v_and_b32_dpp v{b+w}, v{vP}, v{MASK+w} row_newbcast:{4*t} {FULL}")
            if last: wait_for(("s", base + u))
            a(f"v_mfma_f32_16x16x32_bf16 {V4(OACC + 4 * half)}, {V4(ring(0, u))}, {V4(b)}, {V4(OACC + 4 * half)}")
            if not last: throttle_issue("V", ring(0, u), u)
    T0 = R + 32
    vX, vXO, vOPW, vMLW, vOPR, vZ, vST1, vLD1, vST2, vL16, vTR, vTRD, vHA = range(T0, T0 + 13)
    vML = T0 + 14
    TG = T0 + 16
    G = T0 + 20
    GR = T0 + 32
    P1 = T0 + 40
    AH = T0 + 56
    AO = T0 + 58
    BW = T0 + 60
    BD = T0 + 74
    Y = T0 + 88
    E = T0 + 116
    def tail_prep():
        a(f"v_add_f32_dpp v{vL}, v{vL}, v{vL} row_ror:4 {FULL}")
        a(f"s_lshl_b32 s65, s{sWv}, 10\ns_add_u32 s65, s65, {OP}\nv_lshl_add_u32 v{vOPW}, v0, 4, s65")
        a(f"v_add_f32_dpp v{vL}, v{vL}, v{vL} row_ror:8 {FULL}")
        a(f"s_lshl_b32 s65, s{sWv}, 3\ns_add_u32 s65, s65, {ML}\nv_mov_b32 v{vMLW}, s65")
        a(f"v_add_f32_dpp v{vL}, v{vL}, v{vL} row_bcast:15 row_mask:0xa bank_mask:0xf")
        a(f"s_lshl_b32 s65, s{sWv}, 8\ns_add_u32 s65, s65, {OP}\nv_lshl_add_u32 v{vOPR}, v0, 2, s65")
        a(f"v_add_f32_dpp v{vL}, v{vL}, v{vL} row_bcast:31 row_mask:0xc bank_mask:0xf")
        a(f"v_mov_b32 v{vZ}, 0\nv_mov_b32 v{vML}, v{vMC}\nv_mov_b32 v{vML+1}, v{vL}")
        a("s_mov_b32 exec_lo, 0\ns_mov_b32 exec_hi, 0x80000000")
        a(f"ds_write_b64 v{vMLW}, {V2(vML)}")
        a("s_mov_b64 exec, -1")
        a(f"v_lshlrev_b32 v{vST1}, 4, v{vJ}\nv_lshl_add_u32 v{vST1}, v{vG}, 12, v{vST1}")
        a(f"s_lshl_b32 s70, s{sH}, 16\ns_add_u32 s70, s70, {MB1}")
        a(f"s_lshl_b32 s65, s{sJ}, 2\ns_add_u32 s65, s65, s{sB}\ns_lshl_b32 s65, s65, 12\ns_add_u32 s71, s70, s65")
        a(f"s_lshl_b32 s65, s{sWv}, 14\ns_add_u32 s70, s70, s65\ns_lshl_b32 s65, s{sJ}, 10\ns_add_u32 s70, s70, s65\ns_lshl_b32 s65, s{sB}, 8\ns_add_u32 s70, s70, s65")
        a(f"v_lshrrev_b32 v{E}, 2, v{vJ}\nv_and_b32 v{E+1}, 3, v{vJ}\nv_lshlrev_b32 v{vLD1}, 4, v{E+1}\nv_lshl_add_u32 v{vLD1}, v{vG}, 6, v{vLD1}\nv_lshl_add_u32 v{vLD1}, v{E}, 8, v{vLD1}")
        a(f"v_lshl_add_u32 v{E+2}, v{vG}, 2, v{E}\nv_min_u32 v{E+3}, 6, v{E+2}")
        a(f"s_mul_i32 s65, s{sWv}, 224\ns_add_u32 s65, s65, {WL1}\nv_lshl_add_u32 v{E+1}, v{E+1}, 3, s65")
        a(f"v_mul_u32_u24 v{vTR}, {WROW}, v{E+2}\nv_add_u32 v{vTR}, v{vTR}, v{E+1}")
        a(f"v_mul_u32_u24 v{vTRD}, {WROW}, v{E+3}\nv_add_u32 v{vTRD}, v{vTRD}, v{E+1}")
        a(f"v_lshlrev_b32 v{vHA}, 5, v{E}\nv_lshl_add_u32 v{vHA}, v{vG}, 3, v{vHA}")
        a(f"v_lshlrev_b32 v{vST2}, 12, v0\nv_lshlrev_b32 v{vL16}, 4, v0")
        a(f"s_lshl_b32 s66, s{sWv}, 19\ns_add_u32 s66, s66, {MB2}\ns_lshl_b32 s65, s2, 4\ns_add_u32 s66, s66, s65\ns_add_u32 s67, s66, 262144")
        a(f"s_lshl_b32 s68, s2, 1\ns_add_u32 s68, s68, s{sWv}")
        a(f"s_lshl_b32 s73, s68, 12\ns_add_u32 s73, s73, {MB2}")
        a(f"s_bfe_u32 s65, s68, 0x20004\ns_mul_i32 s69, s65, 448\ns_lshr_b32 s65, s68, 7\ns_mul_i32 s65, s65, 112\ns_add_u32 s69, s69, s65")
        a(f"s_and_b32 s65, s68, 64\ns_add_u32 s69, s69, s65\ns_and_b32 s65, s68, 15\ns_add_u32 s69, s69, s65\ns_lshl_b32 s69, s69, 1")
        a(f"v_lshlrev_b32 v{vXO}, 5, v{vG}")
        a(f"buffer_load_ushort v{vX}, v{vXO}, {S(SD)}, s69 offen"); vm.append("x")
        a(f"v_mov_b32 v{TG}, s{sTAG}\nv_lshrrev_b32 v{TG+1}, 8, v{TG}\nv_lshrrev_b32 v{TG+2}, 16, v{TG}\nv_lshrrev_b32 v{TG+3}, 24, v{TG}")
        a(f"s_movk_i32 s78, 0xff")
    a(f"s_mov_b32 s{sCNT}, 15")
    a.label("L_vv")
    iterV(False)
    a(f"s_sub_u32 s{sCNT}, s{sCNT}, 1\ns_cmp_lg_u32 s{sCNT}, 0\ns_cbranch_scc1 L_vv")
    iterV(True)
    stamp(4)
    for r in range(4): a(f"v_mov_b32_dpp v{OACC+r}, v{OACC+4+r} {IDP} row_mask:0xf bank_mask:0xc")
    a(f"ds_write_b128 v{vOPW}, {V4(OACC)}")
    a("s_waitcnt lgkmcnt(0)")
    a("s_barrier")
    a(f"ds_read_b128 {V4(G)}, v{vZ} offset:{ML}\nds_read_b128 {V4(G+4)}, v{vZ} offset:{ML+16}")
    for w in range(4): a(f"ds_read_b32 v{G+8+w}, v{vOPR} offset:{1024*w}")
    a("s_waitcnt lgkmcnt(4)")
    def combine(ms, ls, vs, oM, oL, oV, tmp, mid=None):
        a(f"v_max3_f32 v{oM}, v{ms[0]}, v{ms[1]}, v{ms[2]}\nv_max_f32 v{oM}, v{oM}, v{ms[3]}")
        for k in range(4): a(f"v_sub_f32 v{tmp+k}, v{ms[k]}, v{oM}")
        for k in range(4): a(f"v_exp_f32 v{tmp+k}, v{tmp+k}")
        a(f"v_mul_f32 v{oL}, v{tmp}, v{ls[0]}")
        for k in range(1, 4): a(f"v_fmac_f32 v{oL}, v{tmp+k}, v{ls[k]}")
        if mid: a(mid)
        a(f"v_mul_f32 v{oV}, v{tmp}, v{vs[0]}")
        for k in range(1, 4): a(f"v_fmac_f32 v{oV}, v{tmp+k}, v{vs[k]}")
    a(f"v_mov_b32 v{GR+3}, s{sTAG}")
    combine([G, G+2, G+4, G+6], [G+1, G+3, G+5, G+7], [G+8, G+9, G+10, G+11], GR+1, GR+2, GR, E, mid="s_waitcnt lgkmcnt(0)")
    a(f"buffer_store_dwordx4 {V4(GR)}, v{vST1}, {S(SW)}, s70 offen sc1")
    for k in range(4): a(f"buffer_load_dwordx4 {V4(P1+4*k)}, v{vLD1}, {S(SW)}, s71 offen offset:{1024*k} sc1")
    a(f"ds_read_b64 {V2(AH)}, v{vHA} offset:{HIMG}")
    for t in range(7): a(f"ds_read_b64_tr_b16 {V2(BD+2*t)}, v{vTRD} offset:{16*WROW + 32*t}")
    for t in range(7): a(f"ds_read_b64_tr_b16 {V2(BW+2*t)}, v{vTR} offset:{32*t}")
    a("s_waitcnt lgkmcnt(7)")
    for t in range(7): a(f"v_mfma_f32_16x16x16_bf16 {V4(Y+4*t)}, {V2(AH)}, {V2(BD+2*t)}, 0")
    a(f"s_mov_b32 s{sCNT}, {spin}")
    a.label("L_p1", drain=False)
    a("s_waitcnt vmcnt(0)")
    for k in range(4): a(f"v_cmp_ne_u32 s[76:77], s{sTAG}, v{P1+3}" if k == 0 else f"v_cmp_ne_u32 vcc, s{sTAG}, v{P1+4*k+3}\ns_or_b64 s[76:77], s[76:77], vcc")
    a("s_cbranch_scc0 L_p1ok", drain=False)
    a(f"s_sleep {sleep1}")
    for k in range(4):
        a(f"v_cmp_ne_u32 vcc, s{sTAG}, v{P1+4*k+3}\ns_and_saveexec_b64 s[76:77], vcc\ns_cbranch_execz L_p1s{k}", drain=False)
        a(f"buffer_load_dwordx4 {V4(P1+4*k)}, v{vLD1}, {S(SW)}, s71 offen offset:{1024*k} sc1")
        a.label(f"L_p1s{k}", drain=False)
        a("s_mov_b64 exec, -1")
    a(f"s_sub_u32 s{sCNT}, s{sCNT}, 1\ns_cmp_lg_u32 s{sCNT}, 0\ns_cbranch_scc1 L_p1", drain=False)
    a.label("L_p1ok", drain=False)
    stamp(5)
    combine([P1+1, P1+5, P1+9, P1+13], [P1+2, P1+6, P1+10, P1+14], [P1, P1+4, P1+8, P1+12], G+1, G+2, G, E, mid=f"v_rcp_f32 v{G+2}, v{G+2}")
    a(f"v_mul_f32 v{G}, v{G}, v{G+2}")
    a(f"v_mov_b32_dpp v{G+1}, v{G} quad_perm:[1,1,3,3] {FULL}")
    a(f"v_cvt_pk_bf16_f32 v{G}, v{G}, v{G+1}")
    a(f"v_mov_b32_dpp v{AO}, v{G} quad_perm:[0,0,0,0] {FULL}\nv_mov_b32_dpp v{AO+1}, v{G} quad_perm:[2,2,2,2] {FULL}")
    a("s_waitcnt lgkmcnt(0)")
    for t in range(7): a(f"v_mfma_f32_16x16x16_bf16 {V4(Y+4*t)}, {V2(AO)}, {V2(BW+2*t)}, {V4(Y+4*t)}")
    a(f"v_mov_b32 v{GR+7}, v{TG+3}")
    for t in range(4): a(f"v_bfi_b32 v{GR+t}, s78, v{TG+t}, v{Y+4*t}")
    a(f"buffer_store_dwordx4 {V4(GR)}, v{vST2}, {S(SW)}, s66 offen sc1")
    for t in range(4, 7): a(f"v_bfi_b32 v{GR+t}, s78, v{TG+t-4}, v{Y+4*t}")
    a(f"buffer_store_dwordx4 {V4(GR+4)}, v{vST2}, {S(SW)}, s67 offen sc1")
    a(f"s_cmp_ge_u32 s{sWv}, 2\ns_cbranch_scc1 L_sdone")
    for k in range(4): a(f"buffer_load_dwordx4 {V4(P1+4*k)}, v{vL16}, {S(SW)}, s73 offen offset:{1024*k} sc1")
    a(f"s_mov_b32 s{sCNT}, {spin}")
    a.label("L_p2")
    a("s_waitcnt vmcnt(0)")
    for k in range(4): a(f"v_xor_b32 v{E+k}, v{P1+4*k}, v{TG}")
    for t in range(1, 4):
        for k in range(4): a(f"v_bitop3_b32 v{E+k}, v{P1+4*k+t}, v{TG+t}, v{E+k} bitop3:0xbe")
    a(f"v_or3_b32 v{G}, v{E}, v{E+1}, v{E+2}\nv_or_b32 v{G}, v{G}, v{E+3}\nv_and_b32 v{G}, s78, v{G}")
    a(f"v_cmp_ne_u32 vcc, 0, v{G}\ns_cbranch_vccz L_p2ok", drain=False)
    a(f"s_sleep {sleep2}")
    for k in range(4):
        a(f"v_and_b32 v{G}, s78, v{E+k}\nv_cmp_ne_u32 vcc, 0, v{G}\ns_and_saveexec_b64 s[76:77], vcc\ns_cbranch_execz L_p2s{k}", drain=False)
        a(f"buffer_load_dwordx4 {V4(P1+4*k)}, v{vL16}, {S(SW)}, s73 offen offset:{1024*k} sc1")
        a.label(f"L_p2s{k}", drain=False)
        a("s_mov_b64 exec, -1")
    a(f"s_sub_u32 s{sCNT}, s{sCNT}, 1\ns_cmp_lg_u32 s{sCNT}, 0\ns_cbranch_scc1 L_p2", drain=False)
    a.label("L_p2ok", drain=False)
    stamp(6)
    a(f"v_pk_add_f32 {V2(P1)}, {V2(P1)}, {V2(P1+4)}\nv_pk_add_f32 {V2(P1+2)}, {V2(P1+2)}, {V2(P1+6)}")
    a(f"v_pk_add_f32 {V2(P1+8)}, {V2(P1+8)}, {V2(P1+12)}\nv_pk_add_f32 {V2(P1+10)}, {V2(P1+10)}, {V2(P1+14)}")
    a(f"v_pk_add_f32 {V2(P1)}, {V2(P1)}, {V2(P1+8)}\nv_pk_add_f32 {V2(P1+2)}, {V2(P1+2)}, {V2(P1+10)}")
    a(f"v_lshlrev_b32 v{vX}, 16, v{vX}")
    a(f"v_permlane16_swap_b32 v{P1}, v{P1+1}\nv_permlane16_swap_b32 v{P1+2}, v{P1+3}")
    a(f"v_add_f32 v{P1}, v{P1}, v{P1+1}\nv_add_f32 v{P1+2}, v{P1+2}, v{P1+3}")
    a(f"v_permlane32_swap_b32 v{P1}, v{P1+2}")
    a(f"v_add_f32 v{P1}, v{P1}, v{P1+2}")
    for sh in (8, 4, 2, 1): a(f"v_add_f32_dpp v{P1}, v{P1}, v{P1} row_ror:{sh} {FULL}")
    a(f"v_add_f32 v{P1}, v{P1}, v{vX}")
    a(f"v_cvt_pk_bf16_f32 v{P1}, v{P1}, v{P1}")
    a(f"s_bitcmp1_b32 s68, 6\ns_cselect_b32 exec_hi, 1, 0x10001\ns_mov_b32 exec_lo, 0x10001")
    a(f"buffer_store_short v{P1}, v{vXO}, {S(SC_)}, s69 offen")
    a(f"s_cmp_lg_u32 s68, 0\ns_cbranch_scc1 L_sdone")
    a("s_mov_b64 exec, 1")
    a(f"buffer_store_dword v{TG}, v{vZ}, {S(SW)}, 0 offen")
    a.label("L_sdone")
    stamp(7)
    pad("S")
    dump_stamps(8)
    a("s_endpgm")

    a.label("L_helper")
    X, F, AF, BF, D = 32, 64, 96, 112, 168
    a("s_setprio 3")
    a(f"v_mul_u32_u24 v6, 896, v5\nv_lshl_add_u32 v6, v4, 6, v6\nv_mov_b32 v7, 0x40000000\nv_cmp_gt_u32 s[74:75], 14, v4")
    a(f"v_cndmask_b32 v7, v7, v6, s[74:75]")
    a(f"v_lshrrev_b32 v8, 3, v0\nv_and_b32 v9, 7, v0\nv_lshlrev_b32 v9, 4, v9\nv_lshl_add_u32 v10, v8, 13, v9")
    a(f"v_mul_u32_u24 v11, 3584, v8\nv_add_u32 v11, v11, v9")
    a(f"s_mul_i32 s65, s{sB}, {112 * 8192}\ns_lshl_b32 s66, s{sIDX}, 7\ns_add_u32 s65, s65, s66")
    a("s_waitcnt lgkmcnt(0)")
    a(f"s_load_dword s{sTAG}, s[26:27], 0")
    srd(SA, 4, 3584)
    for u in range(4): a(f"buffer_load_dwordx4 {V4(X+4*u)}, v7, {S(SA)}, 0 offen offset:{16*u}")
    srd(SB, 10, 448 * 8192)
    def dma(sr, voff, so, stride, lds0, win=None):
        for k in range(14):
            if win and k >= win: a(f"s_waitcnt vmcnt({win-1})")
            a(f"s_mov_b32 m0, {lds0 + 1024 * k}")
            a(f"buffer_load_dwordx4 v{voff}, {S(sr)}, s{so} offen {wnt} lds")
            if k < 13: a(f"s_add_u32 s{so}, s{so}, {8 * stride}")
    if not noq: dma(SB, 10, 65, 8192, WL0)
    srd(SW, 26, WS_USED)
    a(f"v_and_b32 v14, 3, v4\nv_mul_u32_u24 v12, 896, v14\ns_mul_i32 s65, s{sB}, 224\nv_add_u32 v12, s65, v12")
    a(f"v_lshl_add_u32 v28, v5, 3, v12\nv_lshl_add_u32 v12, v5, 4, v12")
    a(f"v_lshrrev_b32 v15, 2, v4\nv_lshlrev_b32 v15, 7, v15\nv_lshl_add_u32 v15, v14, 3, v15")
    a(f"v_lshl_add_u32 v13, v5, 10, v15\nv_lshl_add_u32 v29, v5, 9, v15")
    a("s_waitcnt vmcnt(14)" if not noq else "s_waitcnt vmcnt(0)")
    stamp(1)
    for k in range(16): a(f"v_lshlrev_b32 v{F+2*k}, 16, v{X+k}\nv_and_b32 v{F+2*k+1}, 0xffff0000, v{X+k}")
    a(f"v_pk_add_f32 v[14:15], {V2(F)}, {V2(F+2)}\nv_pk_add_f32 v[16:17], {V2(F+4)}, {V2(F+6)}")
    for k in range(4, 16, 2):
        a(f"v_pk_add_f32 v[14:15], v[14:15], {V2(F+2*k)}\nv_pk_add_f32 v[16:17], v[16:17], {V2(F+2*k+2)}")
    a("v_pk_add_f32 v[14:15], v[14:15], v[16:17]\nv_add_f32 v14, v14, v15")
    def rowsum(r):
        for sh in (8, 4, 2, 1): a(f"v_add_f32_dpp v{r}, v{r}, v{r} row_ror:{sh} {FULL}")
    rowsum(14)
    a(f"v_mul_f32 v18, {hex(f2u(-1.0 / 448))}, v14\nv_mov_b32 v19, v18")
    a("v_mov_b32 v14, 0\nv_mov_b32 v15, 0\nv_mov_b32 v16, 0\nv_mov_b32 v17, 0")
    for k in range(0, 16, 2):
        a(f"v_pk_add_f32 v[20:21], {V2(F+2*k)}, v[18:19]\nv_pk_add_f32 v[22:23], {V2(F+2*k+2)}, v[18:19]")
        a(f"v_pk_fma_f32 v[14:15], v[20:21], v[20:21], v[14:15]\nv_pk_fma_f32 v[16:17], v[22:23], v[22:23], v[16:17]")
    a("v_pk_add_f32 v[14:15], v[14:15], v[16:17]\nv_add_f32 v14, v14, v15\nv_cndmask_b32 v14, 0, v14, s[74:75]")
    rowsum(14)
    def rbf(r): a(f"v_cvt_pk_bf16_f32 v{r}, v{r}, v{r}\nv_and_b32 v{r}, 0xffff0000, v{r}")
    a(f"v_mul_f32 v14, {hex(f2u(1.0 / 448))}, v14"); rbf(14)
    a(f"v_add_f32 v14, {hex(f2u(1e-5))}, v14"); rbf(14)
    a("v_sqrt_f32 v14, v14"); rbf(14)
    a("v_rcp_f32 v16, v14\nv_mov_b32 v15, v14"); rbf(18)
    a("v_mov_b32 v17, v16\nv_mov_b32 v19, v18")
    for k in range(16):
        a(f"v_pk_add_f32 {V2(F+2*k)}, {V2(F+2*k)}, v[18:19]")
    for k in range(16):
        a(f"v_cvt_pk_bf16_f32 v{X+k}, v{F+2*k}, v{F+2*k+1}")
    for k in range(16): a(f"v_lshlrev_b32 v{F+2*k}, 16, v{X+k}\nv_and_b32 v{F+2*k+1}, 0xffff0000, v{X+k}")
    for k in range(16):
        t = 20 + 2 * (k & 3)
        a(f"v_pk_mul_f32 {V2(t)}, {V2(F+2*k)}, v[16:17]")
        a(f"v_pk_fma_f32 {V2(F+2*k)}, {V2(t)}, v[14:15], {V2(F+2*k)} neg_lo:[1,0,0] neg_hi:[1,0,0]")
        a(f"v_pk_fma_f32 {V2(t)}, {V2(F+2*k)}, v[16:17], {V2(t)}")
        a(f"v_cvt_pk_bf16_f32 v{X+k}, v{t}, v{t+1}")
    a("s_mov_b64 exec, s[74:75]")
    for u in range(4): a(f"ds_write_b128 v6, {V4(X+4*u)} offset:{XN + 16*u}")
    a("s_mov_b64 exec, -1")
    a("s_waitcnt lgkmcnt(0)")
    a(f"s_add_u32 s{sTAG}, s{sTAG}, 1")
    for k in range(3): a(f"ds_read_b128 {V4(AF+4*k)}, v12 offset:{XN + 64*k}")
    a(f"ds_read_b64 {V2(AF+12)}, v28 offset:{XN + 192}")
    a("s_waitcnt vmcnt(0)")
    stamp(2)
    def piece():
        for t in range(4):
            for k in range(3):
                o = WL0 + 4096 * k + 32 * t
                a(f"ds_read_b64_tr_b16 {V2(BF+14*t+4*k)}, v13 offset:{o}\nds_read_b64_tr_b16 {V2(BF+14*t+4*k+2)}, v13 offset:{o + 512}")
            a(f"ds_read_b64_tr_b16 {V2(BF+14*t+12)}, v29 offset:{WL0 + 12288 + 32 * t}")
        a("s_waitcnt lgkmcnt(0)")
        for k in range(3):
            for t in range(4):
                a(f"v_mfma_f32_16x16x32_bf16 {V4(D+4*t)}, {V4(AF+4*k)}, {V4(BF+14*t+4*k)}, {'0' if k == 0 else V4(D+4*t)}")
        for t in range(4):
            a(f"v_mfma_f32_16x16x16_bf16 {V4(D+4*t)}, {V2(AF+12)}, {V2(BF+14*t+12)}, {V4(D+4*t)}")
        for t in range(1, 4):
            for r in range(4): a(f"v_mov_b32_dpp v{D+r}, v{D+4*t+r} {IDP} row_mask:{hex(1 << t)} bank_mask:0xf")
        for r in range(4): a(f"v_mov_b32 v{20+2*r}, v{D+r}")
    a(f"v_lshlrev_b32 v8, 3, v0\nv_lshlrev_b32 v10, 4, v0")
    a(f"s_lshl_b32 s66, s{sH}, 13\ns_lshl_b32 s67, s{sB}, 11\ns_add_u32 s66, s66, s67\ns_lshl_b32 s67, s{sJ}, 9\ns_add_u32 s66, s66, s67\ns_add_u32 s66, s66, {QMB}")
    a(f"s_lshl_b32 s67, s{sBH}, 13\ns_add_u32 s67, s67, {QMB}\ns_add_u32 s68, s67, 4096")
    for r in range(4): a(f"v_mov_b32 v{21+2*r}, s{sTAG}")
    piece()
    if noq: a("s_branch L_pqok")
    for r in range(4):
        a(f"buffer_store_dwordx2 {V2(20+2*r)}, v8, {S(SW)}, s66 offen sc1")
        if r < 3: a(f"s_add_u32 s66, s66, {16 * 8192}")
    stamp(3)
    PQ = F
    def qload(k): a(f"buffer_load_dwordx4 {V4(PQ+4*k)}, v10, {S(SW)}, s{67 + (k >> 2)} offen offset:{1024 * (k & 3)} sc1")
    a(f"s_sleep {sleepq}")
    for k in range(8): qload(k)
    a(f"s_mov_b32 s{sCNT}, {spin}")
    a.label("L_pq")
    a("s_waitcnt vmcnt(0)")
    for k in range(8): a(f"v_xor_b32 v{X+k}, v{PQ+4*k+1}, v21\nv_bitop3_b32 v{X+k}, v{PQ+4*k+3}, v21, v{X+k} bitop3:0xbe")
    a(f"v_or3_b32 v30, v{X}, v{X+1}, v{X+2}\nv_or3_b32 v30, v30, v{X+3}, v{X+4}\nv_or3_b32 v30, v30, v{X+5}, v{X+6}\nv_or_b32 v30, v30, v{X+7}")
    a("v_cmp_ne_u32 vcc, 0, v30\ns_cbranch_vccz L_pqok", drain=False)
    a(f"s_sleep 1")
    for k in range(8):
        a(f"v_cmp_ne_u32 vcc, 0, v{X+k}\ns_and_saveexec_b64 s[76:77], vcc\ns_cbranch_execz L_pqs{k}", drain=False)
        qload(k)
        a.label(f"L_pqs{k}", drain=False)
        a("s_mov_b64 exec, -1")
    a(f"s_sub_u32 s{sCNT}, s{sCNT}, 1\ns_cmp_lg_u32 s{sCNT}, 0\ns_cbranch_scc1 L_pq", drain=False)
    a.label("L_pqok", drain=False)
    for half in range(2):
        for e in (0, 2):
            r0 = PQ + 4 * half + e
            a(f"v_add_f32 v{r0}, v{r0}, v{r0+8}\nv_add_f32 v{r0+16}, v{r0+16}, v{r0+24}\nv_add_f32 v{r0}, v{r0}, v{r0+16}")
    a(f"v_cvt_pk_bf16_f32 v30, v{PQ}, v{PQ+2}\nv_cvt_pk_bf16_f32 v31, v{PQ+4}, v{PQ+6}\nv_lshlrev_b32 v16, 2, v0\nv_mov_b32 v17, 0")
    a(f"ds_write_b32 v16, v30 offset:{QL}\nds_write_b32 v16, v31 offset:{QL+256}\nds_write_b32 v17, v21 offset:{TAGL}")
    a("s_mov_b32 exec_hi, 0")
    a(f"ds_write_b32 v16, v17 offset:{HIMG}")
    a("s_mov_b64 exec, -1")
    a("s_waitcnt lgkmcnt(0)")
    stamp(4)
    a("s_barrier")
    a("s_setprio 0")
    if noffn and nowo: a("s_branch L_hend")
    if noffn: a("s_branch L_noffn")
    a(f"s_cmp_ge_u32 s{sIDX}, 56\ns_cbranch_scc1 L_noffn")
    a(f"s_bitcmp1_b32 s{sIDX}, 0\ns_cselect_b32 s{SC_}, s18, s16\ns_cselect_b32 s{SC_+1}, s19, s17\ns_mov_b32 s{SC_+2}, {448 * 3584}\ns_mov_b32 s{SC_+3}, 0x20000")
    a(f"s_lshr_b32 s66, s{sIDX}, 1\ns_mul_i32 s65, s{sB}, {112 * 3584}\ns_lshl_b32 s67, s66, 7\ns_add_u32 s65, s65, s67")
    dma(SC_, 11, 65, 3584, WL0, win=HW)
    a(f"v_lshlrev_b32 v9, 8, v0\ns_lshl_b32 s66, s66, 14\ns_and_b32 s67, s{sIDX}, 1\ns_lshl_b32 s67, s67, 7\ns_add_u32 s66, s66, s67\ns_lshl_b32 s67, s{sB}, 5\ns_add_u32 s66, s66, s67\ns_add_u32 s66, s66, {FMB}")
    a("s_waitcnt vmcnt(0)")
    piece()
    a(f"buffer_store_dwordx4 v[20:23], v9, {S(SW)}, s66 offen sc1\nbuffer_store_dwordx4 v[24:27], v9, {S(SW)}, s66 offen offset:16 sc1")
    a.label("L_noffn")
    srd(SA, 12, 4096 * 896); srd(SD, 20, 1792 * 896)
    a(f"s_lshl_b32 s65, s{sH}, 8\ns_lshl_b32 s66, s{sJ}, 5\ns_add_u32 s65, s65, s66\ns_lshr_b32 s66, s{sB}, 1\ns_lshl_b32 s66, s66, 7\ns_add_u32 s65, s65, s66")
    a(f"s_and_b32 s66, s{sB}, 1\ns_lshl_b32 s66, s66, 2\ns_add_u32 s65, s65, s66\ns_mul_i32 s65, s65, 896\ns_mul_i32 s66, s2, {7 * 896}")
    a("s_mov_b32 exec_hi, 0x00ffffff")
    order = [4 * c + aa for aa in range(4) for c in range(4)]
    n = 0
    for k in order:
        if n >= HW: a(f"s_waitcnt vmcnt({HW-1})")
        a(f"s_add_u32 s67, s65, {(8 * (k & 3) + (k >> 2)) * 896}\ns_mov_b32 m0, {WL1 + WROW * k}")
        a(f"buffer_load_dwordx4 v10, {S(SA)}, s67 offen {wnt} lds"); n += 1
    for k in range(7):
        a(f"s_waitcnt vmcnt({HW-1})")
        a(f"s_add_u32 s67, s66, {k * 896}\ns_mov_b32 m0, {WL1 + WROW * (16 + k)}")
        a(f"buffer_load_dwordx4 v10, {S(SD)}, s67 offen {wnt} lds")
    if noffn: a("s_waitcnt vmcnt(0)\ns_branch L_hend")
    a(f"v_lshrrev_b32 v14, 3, v0\nv_bfe_u32 v15, v0, 2, 1\nv_and_b32 v16, 3, v0")
    a(f"v_lshlrev_b32 v9, 8, v14\nv_lshl_add_u32 v9, v16, 5, v9\nv_lshl_add_u32 v9, v15, 4, v9")
    a(f"v_lshlrev_b32 v12, 6, v15\nv_lshl_add_u32 v12, v14, 1, v12")
    a(f"s_mul_i32 s66, s2, 1792\ns_add_u32 s66, s66, {FMB}")
    a(f"s_mov_b32 s{sCNT}, {spin}")
    a.label("L_ph")
    a(f"buffer_load_dwordx4 v[32:35], v9, {S(SW)}, s66 offen sc1\nbuffer_load_dwordx4 v[36:39], v9, {S(SW)}, s66 offen offset:128 sc1")
    a("s_waitcnt vmcnt(0)")
    a("v_xor_b32 v30, v33, v21\nv_bitop3_b32 v30, v35, v21, v30 bitop3:0xbe\nv_bitop3_b32 v30, v37, v21, v30 bitop3:0xbe\nv_bitop3_b32 v30, v39, v21, v30 bitop3:0xbe")
    a("v_cmp_ne_u32 vcc, 0, v30\ns_cbranch_vccz L_phok")
    a(f"s_sleep 8")
    a(f"s_sub_u32 s{sCNT}, s{sCNT}, 1\ns_cmp_lg_u32 s{sCNT}, 0\ns_cbranch_scc1 L_ph")
    a.label("L_phok")
    for mod in ("quad_perm:[1,0,3,2]", "quad_perm:[2,3,0,1]"):
        for r in (32, 34, 36, 38): a(f"v_add_f32_dpp v{r}, v{r}, v{r} {mod} {FULL}")
    for r in (32, 34, 36, 38): rbf(r)
    k1 = -2.0 * math.sqrt(2.0 / math.pi) * math.log2(math.e)
    for g, u in ((32, 36), (34, 38)):
        a(f"v_mul_f32 v22, v{g}, v{g}\nv_mul_f32 v22, {hex(f2u(0.044715))}, v22\nv_fma_f32 v22, v22, v{g}, v{g}")
        a(f"v_mul_f32 v22, {hex(f2u(k1))}, v22\nv_exp_f32 v22, v22\nv_add_f32 v22, 1.0, v22\nv_rcp_f32 v22, v22\nv_mul_f32 v{g}, v{g}, v22")
        rbf(g)
        a(f"v_mul_f32 v{g}, v{g}, v{u}")
    a("v_cvt_pk_bf16_f32 v32, v32, v34")
    a(f"ds_write_b16 v12, v32 offset:{HIMG}\nds_write_b16_d16_hi v12, v32 offset:{HIMG + 32}")
    a("s_waitcnt lgkmcnt(0)")
    a.label("L_hend")
    a("s_mov_b64 exec, -1")
    stamp(5)
    dump_stamps(6)
    a.label("L_end")
    a("s_endpgm")
    a.raw('.section .rodata,"a"'); a.raw(".p2align 6"); a.raw(f".amdhsa_kernel {NAME}")
    a.raw("  .amdhsa_next_free_vgpr 256"); a.raw("  .amdhsa_next_free_sgpr 102"); a.raw("  .amdhsa_accum_offset 256")
    a.raw("  .amdhsa_group_segment_fixed_size 0"); a.raw("  .amdhsa_kernarg_size 96"); a.raw("  .amdhsa_user_sgpr_count 2")
    a.raw("  .amdhsa_user_sgpr_kernarg_segment_ptr 1"); a.raw("  .amdhsa_system_sgpr_workgroup_id_x 1"); a.raw(".end_amdhsa_kernel")
    return a.text()

if __name__ == "__main__":
    out = sys.argv[1]
    kw = eval("dict(" + (sys.argv[2] if len(sys.argv) > 2 else "") + ")")
    open(out, "w").write(gen(**kw))
```

```python
import sys, struct, math
sys.path.insert(0, "gen")
from asmlib import Asm

NAME = "parallel_sum__mha_block_cached__geglu_ffn__decode_kernel"
HEADER = open("parallel_sum__mha_block_cached__geglu_ffn__decode.s.ref").read().split("; Override launch")[0]

def f2u(x): return struct.unpack("<I", struct.pack("<f", x))[0]

QMB = 0x10000
FMB = QMB + 64 * 4096
HMB = FMB + 8 * 1792 * 16
MB1 = 0xA0000
MB2 = 0x120000
TSB = 0x400000
WS_USED = TSB + 0x10000
assert HMB + 1792 * 16 <= MB1
XN, QL, TAGL, ML, HIMG, AIMG, OP, SC = 0, 3584, 4096, 4128, 4224, 4864, 6144, 10240
HROW, AROW = 144, 272
WL0 = SC + 16384
WL1 = WL0 + 14336
WL2 = WL1 + 16384
LDS_BYTES = WL2 + 7168

FULL = "row_mask:0xf bank_mask:0xf"
IDP = "quad_perm:[0,1,2,3]"

def gen(W=5, NP=5, nt="nt", wnt="nt", stamps=False, warm=True, sleep1=1, sleep2=1, sleepq=30, spin=1 << 16,
        padto=0, padwg=None, padstamp=None, HW=4, noffn=0, noq=0, nowo=0, touch=1, sleepf=60, fdma=1, fst=1, fpoll=1, qst=1, pat=0):
    a = Asm()
    a.raw(HEADER.rstrip("\n"))
    a.raw(f"; @launch grid=(256,1,1) block=(320,1,1) lds={LDS_BYTES}")
    a.raw('.amdgcn_target "amdgcn-amd-amdhsa--gfx950"')
    a.raw(".text"); a.raw(f".globl {NAME}"); a.raw(".p2align 8"); a.raw(f".type {NAME},@function")
    a.raw(f"{NAME}:")
    SK, SV, SW, SA, SB, SC_, SD = 28, 32, 36, 40, 44, 48, 52
    sB, sH, sJ, sIDX, sBH, sTAG, sCNT, sKO, sVO, sWv, sKG, sCG = 56, 57, 58, 59, 60, 61, 62, 63, 64, 72, 73, 79
    def srd(r, ptr, size):
        a(f"s_mov_b32 s{r}, s{ptr}\ns_mov_b32 s{r+1}, s{ptr+1}\ns_mov_b32 s{r+2}, {size}\ns_mov_b32 s{r+3}, 0x20000")
    def S(r): return f"s[{r}:{r+3}]"
    def V4(r): return f"v[{r}:{r+3}]"
    def V2(r): return f"v[{r}:{r+1}]"
    def stamp(k):
        if stamps or padstamp is not None:
            a(f"s_memrealtime s[{80+2*k}:{81+2*k}]")
    def dump_stamps(n):
        if not stamps: return
        a("s_waitcnt lgkmcnt(0)")
        a("s_mov_b64 exec, 1")
        a(f"s_mul_i32 s65, s2, 5\ns_add_u32 s65, s65, s3\ns_mul_i32 s65, s65, 48\ns_add_u32 s65, s65, {TSB}")
        a("v_mov_b32 v1, 0")
        for k in range(n):
            a(f"v_mov_b32 v2, s{80+2*k}")
            a(f"buffer_store_dword v2, v1, {S(SW)}, s65 offen offset:{4*k}")
        a(f"v_mov_b32 v2, s{sCNT}\nbuffer_store_dword v2, v1, {S(SW)}, s65 offen offset:44")
        a("s_waitcnt vmcnt(0)")
    def pad(role):
        if not padto: return
        r, k = padstamp if padstamp is not None else ("S", 0)
        if r != role: return
        if padwg is not None: a(f"s_cmp_lg_u32 s2, {padwg}\ns_cbranch_scc1 L_end")
        a.label(f"L_pad{role}")
        a(f"s_sleep 1\ns_memrealtime s[98:99]\ns_waitcnt lgkmcnt(0)\ns_sub_u32 s98, s98, s{80+2*k}\ns_cmp_lt_u32 s98, {padto}\ns_cbranch_scc1 L_pad{role}")

    a("s_cmp_ge_u32 s2, 256\ns_cbranch_scc1 L_end")
    a("s_load_dwordx16 s[4:19], s[0:1], 0\ns_load_dwordx8 s[20:27], s[0:1], 64")
    stamp(0)
    a("v_lshrrev_b32 v1, 6, v0\nv_and_b32 v0, 63, v0\nv_readfirstlane_b32 s3, v1")
    a(f"s_lshr_b32 s{sB}, s2, 6\ns_lshr_b32 s{sBH}, s2, 2\ns_and_b32 s{sH}, s{sBH}, 15\ns_and_b32 s{sJ}, s2, 3\ns_and_b32 s{sIDX}, s2, 63")
    a(f"s_lshr_b32 s{sKG}, s2, 3\ns_add_u32 s{sCG}, s2, s{sKG}\ns_and_b32 s{sCG}, s{sCG}, 7")
    a("v_and_b32 v4, 15, v0\nv_lshrrev_b32 v5, 4, v0")
    a("s_cmp_eq_u32 s3, 0\ns_cbranch_scc1 L_helper")

    vKO, vVO, vSC, vMAX, vL, vC, vMC, vS = 1, 2, 3, 6, 7, 28, 29, 30
    vJ, vG = 4, 5
    MASK, OACC, BB, QF, DA, TMP, R = 8, 12, 20, 32, 64, 84, 96
    def ring(tile, u): return R + 32 * tile + 4 * u
    a(f"s_sub_u32 s{sWv}, s3, 1")
    ksh, wsh = {0: (9, 11), 1: (12, 10), 2: (12, 14)}[pat]
    a(f"v_lshrrev_b32 v{TMP}, 2, v{vJ}\nv_lshlrev_b32 v{TMP}, {ksh}, v{TMP}\nv_and_b32 v{TMP+1}, 3, v{vJ}\nv_lshlrev_b32 v{TMP+1}, 4, v{TMP+1}")
    a(f"v_lshl_add_u32 v{TMP+1}, v{vG}, 6, v{TMP+1}")
    a(f"v_add_u32 v{vKO}, v{TMP}, v{TMP+1}")
    a(f"v_lshlrev_b32 v{vVO}, 4, v{vJ}\nv_lshl_add_u32 v{vVO}, v{vG}, {ksh}, v{vVO}")
    a(f"s_lshl_b32 s{sKO}, s2, 19\ns_lshl_b32 s65, s{sWv}, {wsh}\ns_add_u32 s{sKO}, s{sKO}, s65\ns_mov_b32 s{sVO}, s{sKO}")
    a("s_waitcnt lgkmcnt(0)")
    srd(SK, 6, 1 << 27)
    vm = []
    def issue(kind, reg, u, tagid):
        sr, vo, so = (SK, vKO, sKO) if kind == "K" else (SV, vVO, sVO)
        o = {0: 256 * (u & 1), 1: 256 * (u & 3), 2: 256 * u}[pat]
        off = f" offset:{o}" if o else ""
        a(f"buffer_load_dwordx4 {V4(reg)}, v{vo}, {S(sr)}, s{so} offen{off} {nt}")
        if pat == 0 and u & 1: a(f"s_add_u32 s{so}, s{so}, 8192")
        if pat == 1 and (u & 3) == 3: a(f"s_add_u32 s{so}, s{so}, 16384")
        if pat == 2 and u == 7:
            a(f"s_bitcmp1_b32 s{so}, 11\ns_cselect_b32 s65, {65536 - 4096}, 0\ns_add_u32 s{so}, s{so}, s65\ns_add_u32 s{so}, s{so}, 2048")
        vm.append(tagid)
    def wait_for(tagid):
        if tagid not in vm: return
        n = len(vm) - 1 - vm.index(tagid)
        assert n < 64
        a(f"s_waitcnt vmcnt({n})")
    nload = [0]
    def throttle_issue(kind, reg, u):
        n = nload[0]
        wait_for(("s", n - W))
        issue(kind, reg, u, ("s", n)); nload[0] += 1
    for n in range(W):
        throttle_issue("K", ring(n // 8, n % 8), n % 8)
    if warm:
        a(f"s_cmp_lg_u32 s3, 1\ns_cbranch_scc1 L_nowarm")
        a(f"s_getpc_b64 s[66:67]\nv_lshlrev_b32 v{TMP+2}, 7, v0")
        a(f"global_load_dword v{TMP+3}, v{TMP+2}, s[66:67]")
        a.label("L_nowarm")
    srd(SV, 8, 1 << 27); srd(SW, 26, WS_USED); srd(SC_, 22, 3584); srd(SD, 4, 3584)
    srd(SA, 12, 4096 * 896); srd(SB, 20, 1792 * 896)
    for k in range(32): a(f"v_mov_b32 v{QF+k}, 0")
    for k in range(8): a(f"v_mov_b32 v{OACC+k}, 0")
    a(f"v_mov_b32 v{vMAX}, 0xff800000\nv_mov_b32 v{vL}, 0\nv_mov_b32 v{vC}, {hex(f2u(math.log2(math.e) / 16))}")
    a(f"v_and_b32 v{TMP+4}, 1, v{vJ}\nv_lshlrev_b32 v{TMP+4}, 4, v{TMP+4}\nv_mov_b32 v{TMP+5}, 0xffff\nv_lshlrev_b32 v{TMP+4}, v{TMP+4}, v{TMP+5}")
    a(f"v_bfe_u32 v{TMP+5}, v{vJ}, 1, 2")
    for w in range(4):
        a(f"v_cmp_eq_u32 vcc, {w}, v{TMP+5}\nv_cndmask_b32 v{MASK+w}, 0, v{TMP+4}, vcc")
    a(f"s_lshl_b32 s65, s{sWv}, 12\ns_add_u32 s65, s65, {SC}\nv_lshl_add_u32 v{vSC}, v0, 2, s65")
    for n in range(W, 8 * NP):
        throttle_issue("K", ring(n // 8, n % 8), n % 8)
    stamp(1)
    a("s_barrier")
    stamp(2)
    for t in range(4):
        m = 0x000F000F << (4 * t)
        a(f"s_mov_b32 exec_lo, {hex(m)}\ns_mov_b32 exec_hi, {hex(m)}")
        for half in range(2):
            a(f"ds_read_b128 {V4(QF + 4 * (2 * t + half))}, v{TMP+1} offset:{QL + 256 * half}")
    a("s_mov_b64 exec, -1")
    a(f"v_mov_b32 v{TMP}, 0\nds_read_b32 v{TMP+2}, v{TMP} offset:{TAGL}")
    a("s_waitcnt lgkmcnt(0)")
    a(f"v_readfirstlane_b32 s{sTAG}, v{TMP+2}")

    def consK(reg, u, d):
        c = "0" if u == 0 else V4(d)
        a(f"v_mfma_f32_16x16x32_bf16 {V4(d)}, {V4(reg)}, {V4(QF + 4 * u)}, {c}")
    def extract(ds, off0):
        for k, d in enumerate(ds): a(f"v_mov_b32_dpp v{TMP+k}, v{d} quad_perm:[0,0,0,0] {FULL}")
        for c in range(1, 4):
            for k, d in enumerate(ds): a(f"v_add_f32_dpp v{TMP+k}, v{d+c}, v{TMP+k} quad_perm:[{c},{c},{c},{c}] {FULL}")
        for k, d in enumerate(ds): a(f"v_cvt_pk_bf16_f32 v{TMP+k}, v{TMP+k}, v{TMP+k}")
        for k, d in enumerate(ds): a(f"v_and_b32 v{TMP+k}, 0xffff0000, v{TMP+k}")
        for k, d in enumerate(ds):
            a(f"ds_write_b32 v{vSC}, v{TMP+k} offset:{off0 + 256 * k}")
            a(f"v_max_f32 v{vMAX}, v{vMAX}, v{TMP+k}")
        a(f"v_add_u32 v{vSC}, {256 * len(ds)}, v{vSC}")
    for u in range(8):
        consK(ring(0, u), u, DA)
        throttle_issue("K", ring(0, u), u)
        for T in range(1, NP): consK(ring(T, u), u, DA + 4 * T)
    extract([DA + 4 * T for T in range(NP)], 0)

    T0 = R + 32
    vX, vXO, vOPW, vMLW, vOPR, vZ, vL16, vST2, vTR, vTR2, vTRD, vTRD2, vHA, vAR, vAW, vWO, vWD = range(T0, T0 + 17)
    vML = T0 + 18
    G = T0 + 20
    GR = T0 + 36
    P1 = T0 + 40
    AH = T0 + 56
    AO = T0 + 64
    BW = T0 + 80
    BD = T0 + 96
    Y = T0 + 104
    E = T0 + 108
    def tail_addr():
        a(f"s_lshl_b32 s65, s{sWv}, 10\ns_add_u32 s65, s65, {OP}\nv_lshl_add_u32 v{vOPW}, v0, 4, s65")
        a(f"s_lshl_b32 s65, s{sWv}, 3\ns_add_u32 s65, s65, {ML}\nv_mov_b32 v{vMLW}, s65")
        a(f"s_lshl_b32 s65, s{sWv}, 8\ns_add_u32 s65, s65, {OP}\nv_lshl_add_u32 v{vOPR}, v0, 3, s65")
        a(f"v_mov_b32 v{vZ}, 0\nv_lshlrev_b32 v{vL16}, 4, v0\nv_mov_b32 v{GR+3}, s{sTAG}")
        a(f"s_lshl_b32 s70, s2, 11\ns_lshl_b32 s65, s{sWv}, 9\ns_add_u32 s70, s70, s65\ns_add_u32 s70, s70, {MB1}")
        a(f"s_lshl_b32 s71, s{sWv}, 17\ns_lshr_b32 s65, s{sKG}, 1\ns_lshl_b32 s65, s65, 13\ns_add_u32 s71, s71, s65")
        a(f"s_and_b32 s65, s{sKG}, 1\ns_lshl_b32 s65, s65, 10\ns_add_u32 s71, s71, s65\ns_add_u32 s71, s71, {MB1}\ns_add_u32 s74, s71, 4096")
        a(f"v_lshrrev_b32 v{E}, 3, v0\nv_and_b32 v{E+1}, 7, v0\nv_and_b32 v{E+2}, 2, v{E}\nv_xor_b32 v{E+1}, v{E+1}, v{E+2}\nv_lshlrev_b32 v{E+1}, 4, v{E+1}")
        a(f"v_and_b32 v{E+2}, 3, v{E}\nv_lshlrev_b32 v{E+2}, 3, v{E+2}\nv_lshrrev_b32 v{E+3}, 2, v{E}\nv_add_u32 v{E+2}, v{E+2}, v{E+3}")
        a(f"v_mul_u32_u24 v{vWO}, 896, v{E+2}\nv_mul_u32_u24 v{vWD}, 896, v{E}")
        a(f"s_and_b32 s65, s{sWv}, 1\ns_lshl_b32 s65, s65, 6\nv_xor_b32 v{E+1}, s65, v{E+1}")
        a(f"v_add_u32 v{vWO}, v{vWO}, v{E+1}\nv_add_u32 v{vWD}, v{vWD}, v{E+1}")
        a(f"s_lshr_b32 s66, s{sKG}, 1\ns_lshl_b32 s66, s66, 8\ns_and_b32 s65, s{sKG}, 1\ns_lshl_b32 s65, s65, 6\ns_add_u32 s66, s66, s65")
        a(f"s_lshl_b32 s65, s{sWv}, 1\ns_add_u32 s66, s66, s65\ns_mul_i32 s66, s66, 896\ns_lshl_b32 s65, s{sCG}, 7\ns_add_u32 s66, s66, s65")
        a(f"s_mul_i32 s67, s{sKG}, 56\ns_lshl_b32 s68, s{sWv}, 3\ns_add_u32 s67, s67, s68\ns_mul_i32 s67, s67, 896\ns_add_u32 s67, s67, s65")
        a(f"s_lshl_b32 s75, s{sWv}, 10")
        a(f"v_lshrrev_b32 v{E}, 2, v{vJ}\nv_bfe_u32 v{E+1}, v{vJ}, 1, 1\ns_lshl_b32 s65, s{sWv}, 1\nv_add_u32 v{E+1}, s65, v{E+1}")
        a(f"v_and_b32 v{E+2}, 2, v{E}\nv_xor_b32 v{E+1}, v{E+1}, v{E+2}")
        a(f"v_and_b32 v{E+3}, 1, v{vJ}\nv_lshlrev_b32 v{E+3}, 3, v{E+3}\nv_lshl_add_u32 v{E+3}, v{E}, 7, v{E+3}")
        a(f"v_and_b32 v{E+2}, 1, v{vG}\nv_lshlrev_b32 v{E+2}, 2, v{E+2}\nv_xor_b32 v{E+4}, v{E+1}, v{E+2}")
        a(f"v_lshl_add_u32 v{vTR}, v{E+4}, 4, v{E+3}\nv_lshl_add_u32 v{vTR}, v{vG}, 10, v{vTR}")
        a(f"v_min_u32 v{E+5}, 2, v{vG}\nv_and_b32 v{E+2}, 1, v{E+5}\nv_lshlrev_b32 v{E+2}, 2, v{E+2}\nv_xor_b32 v{E+4}, v{E+1}, v{E+2}")
        a(f"v_lshl_add_u32 v{vTRD}, v{E+4}, 4, v{E+3}\nv_lshl_add_u32 v{vTRD}, v{E+5}, 10, v{vTRD}")
        a(f"v_mul_u32_u24 v{vHA}, {HROW}, v{E}\nv_lshl_add_u32 v{vHA}, v{vG}, 4, v{vHA}")
        a(f"v_mul_u32_u24 v{vAR}, {AROW}, v{E}\nv_lshl_add_u32 v{vAR}, v{vG}, 4, v{vAR}")
        a(f"s_mul_i32 s65, s{sWv}, {AROW}\ns_add_u32 s65, s65, {AIMG}\nv_lshl_add_u32 v{vAW}, v0, 2, s65")
        a(f"v_lshlrev_b32 v{vST2}, 3, v{vJ}\nv_lshl_add_u32 v{vST2}, v{vG}, 12, v{vST2}")
        a(f"s_lshl_b32 s68, s{sCG}, 2\ns_add_u32 s68, s68, s{sWv}\ns_lshl_b32 s68, s68, 14\ns_lshl_b32 s65, s{sKG}, 7\ns_add_u32 s68, s68, s65\ns_add_u32 s68, s68, {MB2}")
        a(f"s_and_b32 s78, s{sKG}, 0xfc\ns_add_u32 s78, s78, s{sWv}\ns_lshl_b32 s69, s78, 4\ns_lshl_b32 s78, s78, 2\ns_and_b32 s65, s{sKG}, 3\ns_add_u32 s78, s78, s65")
        a(f"s_lshl_b32 s78, s78, 12\ns_add_u32 s78, s78, {MB2}\ns_mul_i32 s65, s65, 448\ns_add_u32 s69, s69, s65\ns_lshl_b32 s69, s69, 1")
        a(f"v_and_b32 v{E}, 7, v0\nv_and_b32 v{E+1}, 1, v{vG}\nv_lshlrev_b32 v{vXO}, 2, v{E}\nv_lshl_add_u32 v{vXO}, v{E+1}, 1, v{vXO}")
    tail_addr()

    def iterK(nextkind):
        for u in range(8):
            consK(ring(0, u), u, DA)
            throttle_issue(nextkind, ring(0, u), u)
        extract([DA], 0)
    a(f"s_mov_b32 s{sCNT}, {15 - NP}")
    a.label("L_kk")
    iterK("K")
    a(f"s_sub_u32 s{sCNT}, s{sCNT}, 1\ns_cmp_lg_u32 s{sCNT}, 0\ns_cbranch_scc1 L_kk")
    iterK("V")
    stamp(3)
    a(f"v_subrev_u32 v{vSC}, 4096, v{vSC}")
    a(f"ds_read_b32 v{vS}, v{vSC}")
    a(f"v_max_f32_dpp v{vMAX}, v{vMAX}, v{vMAX} row_ror:4 {FULL}")
    a(f"v_max_f32_dpp v{vMAX}, v{vMAX}, v{vMAX} row_ror:8 {FULL}")
    a(f"v_max_f32_dpp v{vMAX}, v{vMAX}, v{vMAX} row_bcast:15 row_mask:0xa bank_mask:0xf")
    a(f"v_max_f32_dpp v{vMAX}, v{vMAX}, v{vMAX} row_bcast:31 row_mask:0xc bank_mask:0xf")
    a(f"v_readlane_b32 s65, v{vMAX}, 63")
    a(f"v_mul_f32 v{vMC}, s65, v{vC}")
    vP = TMP
    def last_extra():
        if not nowo:
            a(f"s_cmp_eq_u32 s{sCG}, 7\ns_cselect_b32 s66, 0x40000000, s66\ns_cselect_b32 s67, 0x40000000, s67")
            for c in range(4):
                a(f"s_add_u32 s65, s66, {(128 * (c & 1) + 32 * (c >> 1)) * 896}\ns_add_u32 m0, s75, {WL1 + 4096 * c}")
                a(f"buffer_load_dwordx4 v{vWO}, {S(SA)}, s65 offen {wnt} lds"); vm.append(("wo", c))
            a(f"s_add_u32 m0, s75, {WL2}")
            a(f"buffer_load_dwordx4 v{vWD}, {S(SB)}, s67 offen {wnt} lds"); vm.append(("wd", 0))
            a(f"s_cmp_eq_u32 s{sWv}, 3\ns_cselect_b32 s65, 0, {32 * 896}\ns_cselect_b32 s76, 0, 4096\ns_add_u32 s67, s67, s65\ns_add_u32 s76, s76, s75\ns_add_u32 m0, s76, {WL2}")
            a(f"buffer_load_dwordx4 v{vWD}, {S(SB)}, s67 offen {wnt} lds"); vm.append(("wd", 1))
        a(f"buffer_load_ushort v{vX}, v{vXO}, {S(SD)}, s69 offen"); vm.append("x")
        if touch:
            a(f"buffer_load_ushort v{E+7}, v{vXO}, {S(SC_)}, s69 offen"); vm.append("o")
        a(f"v_add_f32_dpp v{vL}, v{vL}, v{vL} row_ror:4 {FULL}")
        a(f"v_add_f32_dpp v{vL}, v{vL}, v{vL} row_ror:8 {FULL}")
        a(f"v_add_f32_dpp v{vL}, v{vL}, v{vL} row_bcast:15 row_mask:0xa bank_mask:0xf")
        a(f"v_add_f32_dpp v{vL}, v{vL}, v{vL} row_bcast:31 row_mask:0xc bank_mask:0xf")
        a(f"v_mov_b32 v{vML}, v{vMC}\nv_mov_b32 v{vML+1}, v{vL}")
        a("s_mov_b32 exec_lo, 0\ns_mov_b32 exec_hi, 0x80000000")
        a(f"ds_write_b64 v{vMLW}, {V2(vML)}")
        a("s_mov_b64 exec, -1")
    def iterV(last):
        a("s_waitcnt lgkmcnt(0)")
        a(f"v_fma_f32 v{vP}, v{vS}, v{vC}, -v{vMC}")
        a(f"v_exp_f32 v{vP}, v{vP}")
        if not last:
            a(f"v_add_u32 v{vSC}, 256, v{vSC}\nds_read_b32 v{vS}, v{vSC}")
        a(f"v_add_f32 v{vL}, v{vL}, v{vP}")
        a(f"v_cvt_pk_bf16_f32 v{vP}, v{vP}, v{vP}")
        if last: last_extra()
        base = nload[0] - 8
        for u in range(8):
            t, half = u >> 1, u & 1
            b = BB + 4 * (t & 1)
            if half == 0:
                for w in range(4): a(f"v_and_b32_dpp v{b+w}, v{vP}, v{MASK+w} row_newbcast:{4*t} {FULL}")
            if last: wait_for(("s", base + u))
            a(f"v_mfma_f32_16x16x32_bf16 {V4(OACC + 4 * half)}, {V4(ring(0, u))}, {V4(b)}, {V4(OACC + 4 * half)}")
            if not last: throttle_issue("V", ring(0, u), u)
    a(f"s_mov_b32 s{sCNT}, 15")
    a.label("L_vv")
    iterV(False)
    a(f"s_sub_u32 s{sCNT}, s{sCNT}, 1\ns_cmp_lg_u32 s{sCNT}, 0\ns_cbranch_scc1 L_vv")
    iterV(True)
    stamp(4)
    for r in range(4): a(f"v_mov_b32_dpp v{OACC+r}, v{OACC+4+r} {IDP} row_mask:0xf bank_mask:0xc")
    a(f"ds_write_b128 v{vOPW}, {V4(OACC)}")
    a("s_waitcnt lgkmcnt(0)")
    a("s_barrier")
    a("s_mov_b32 exec_hi, 0")
    a(f"ds_read_b128 {V4(G)}, v{vZ} offset:{ML}\nds_read_b128 {V4(G+4)}, v{vZ} offset:{ML+16}")
    for w in range(4): a(f"ds_read_b64 {V2(G+8+2*w)}, v{vOPR} offset:{1024*w}")
    a("s_waitcnt lgkmcnt(4)")
    ms, ls = [G, G+2, G+4, G+6], [G+1, G+3, G+5, G+7]
    a(f"v_max3_f32 v{E+4}, v{ms[0]}, v{ms[1]}, v{ms[2]}\nv_max_f32 v{E+4}, v{E+4}, v{ms[3]}")
    for k in range(4): a(f"v_sub_f32 v{ms[k]}, v{ms[k]}, v{E+4}")
    for k in range(4): a(f"v_exp_f32 v{ms[k]}, v{ms[k]}")
    a(f"v_mul_f32 v{E+5}, v{ms[0]}, v{ls[0]}")
    for k in range(1, 4): a(f"v_fmac_f32 v{E+5}, v{ms[k]}, v{ls[k]}")
    a(f"v_rcp_f32 v{E+6}, v{E+5}\nv_log_f32 v{E+5}, v{E+5}")
    a("s_waitcnt lgkmcnt(0)")
    a(f"v_pk_mul_f32 {V2(GR)}, {V2(G+8)}, {V2(ms[0])} op_sel_hi:[1,0]")
    for k in range(1, 4): a(f"v_pk_fma_f32 {V2(GR)}, {V2(G+8+2*k)}, {V2(ms[k])}, {V2(GR)} op_sel_hi:[1,0,1]")
    a(f"v_add_f32 v{GR+2}, v{E+4}, v{E+5}")
    a(f"v_pk_mul_f32 {V2(GR)}, {V2(GR)}, {V2(E+6)} op_sel_hi:[1,0]")
    a(f"buffer_store_dwordx4 {V4(GR)}, v{vL16}, {S(SW)}, s70 offen sc1")
    a("s_mov_b64 exec, -1")
    stamp(8)
    a(f"s_mov_b32 s{sCNT}, {spin}")
    a(f"s_cmp_eq_u32 s{sCG}, 7\ns_cbranch_scc1 L_reduce", drain=False)
    def ld1(k): a(f"buffer_load_dwordx4 {V4(P1+4*k)}, v{vL16}, {S(SW)}, s{71 if k < 2 else 74} offen{' offset:2048' if k & 1 else ''} sc1")
    for k in range(4): ld1(k)
    a(f"ds_read_b128 {V4(AH)}, v{vHA} offset:{HIMG}\nds_read_b128 {V4(AH+4)}, v{vHA} offset:{HIMG+64}")
    a.label("L_p1", drain=False)
    a("s_waitcnt vmcnt(0)")
    for k in range(4): a(f"v_cmp_ne_u32 s[76:77], s{sTAG}, v{P1+3}" if k == 0 else f"v_cmp_ne_u32 vcc, s{sTAG}, v{P1+4*k+3}\ns_or_b64 s[76:77], s[76:77], vcc")
    a("s_cbranch_scc0 L_p1ok", drain=False)
    if sleep1: a(f"s_sleep {sleep1}")
    for k in range(4):
        a(f"v_cmp_ne_u32 vcc, s{sTAG}, v{P1+4*k+3}\ns_and_saveexec_b64 s[76:77], vcc\ns_cbranch_execz L_p1s{k}", drain=False)
        ld1(k)
        a.label(f"L_p1s{k}", drain=False)
        a("s_mov_b64 exec, -1")
    a(f"s_sub_u32 s{sCNT}, s{sCNT}, 1\ns_cmp_lg_u32 s{sCNT}, 0\ns_cbranch_scc1 L_p1", drain=False)
    a.label("L_p1ok", drain=False)
    stamp(5)
    lam = [P1+2, P1+6, P1+10, P1+14]
    a(f"v_max3_f32 v{E+4}, v{lam[0]}, v{lam[1]}, v{lam[2]}\nv_max_f32 v{E+4}, v{E+4}, v{lam[3]}")
    for k in range(4): a(f"v_sub_f32 v{lam[k]}, v{lam[k]}, v{E+4}")
    for k in range(4): a(f"v_exp_f32 v{lam[k]}, v{lam[k]}")
    a(f"v_add_f32 v{E+5}, v{lam[0]}, v{lam[1]}\nv_pk_mul_f32 {V2(G)}, {V2(P1)}, {V2(lam[0])} op_sel_hi:[1,0]\nv_add_f32 v{E+6}, v{lam[2]}, v{lam[3]}")
    a(f"v_pk_fma_f32 {V2(G)}, {V2(P1+4)}, {V2(lam[1])}, {V2(G)} op_sel_hi:[1,0,1]\nv_add_f32 v{E+6}, v{E+5}, v{E+6}")
    a(f"v_pk_fma_f32 {V2(G)}, {V2(P1+8)}, {V2(lam[2])}, {V2(G)} op_sel_hi:[1,0,1]\nv_rcp_f32 v{E+6}, v{E+6}")
    a(f"v_pk_fma_f32 {V2(G)}, {V2(P1+12)}, {V2(lam[3])}, {V2(G)} op_sel_hi:[1,0,1]")
    a(f"v_pk_mul_f32 {V2(G)}, {V2(G)}, {V2(E+6)} op_sel_hi:[1,0]")
    a(f"v_cvt_pk_bf16_f32 v{G}, v{G}, v{G+1}")
    a(f"ds_write_b32 v{vAW}, v{G}")
    a("s_waitcnt lgkmcnt(0)")
    a("s_barrier")
    a(f"ds_read_b64_tr_b16 {V2(BD)}, v{vTR} offset:{WL2}\nds_read_b64_tr_b16 {V2(BD+2)}, v{vTR} offset:{WL2+512}")
    a(f"ds_read_b64_tr_b16 {V2(BD+4)}, v{vTRD} offset:{WL2+4096}\nds_read_b64_tr_b16 {V2(BD+6)}, v{vTRD} offset:{WL2+4096+512}")
    for k in range(4):
        a(f"ds_read_b128 {V4(AO+4*k)}, v{vAR} offset:{AIMG+64*k}")
        a(f"ds_read_b64_tr_b16 {V2(BW+4*k)}, v{vTR} offset:{WL1+4096*k}\nds_read_b64_tr_b16 {V2(BW+4*k+2)}, v{vTR} offset:{WL1+4096*k+512}")
    a("s_waitcnt lgkmcnt(12)")
    a(f"v_mfma_f32_16x16x32_bf16 {V4(Y)}, {V4(AH)}, {V4(BD)}, 0")
    a(f"v_mfma_f32_16x16x32_bf16 {V4(Y)}, {V4(AH+4)}, {V4(BD+4)}, {V4(Y)}")
    for k in range(4):
        a(f"s_waitcnt lgkmcnt({9-3*k})")
        a(f"v_mfma_f32_16x16x32_bf16 {V4(Y)}, {V4(AO+4*k)}, {V4(BW+4*k)}, {V4(Y)}")
    a(f"v_mov_b32 v{GR+2}, v{Y}")
    a(f"buffer_store_dwordx2 {V2(GR+2)}, v{vST2}, {S(SW)}, s68 offen sc1")
    a("s_branch L_sdone")
    a.label("L_reduce")
    a(f"s_cmp_ge_u32 s{sKG}, 28\ns_cbranch_scc1 L_sdone")
    def ld2(k): a(f"buffer_load_dwordx4 {V4(P1+4*k)}, v{vL16}, {S(SW)}, s78 offen offset:{1024*k} sc1")
    for k in range(4): ld2(k)
    a.label("L_p2")
    a("s_waitcnt vmcnt(0)")
    for k in range(4): a(f"v_xor_b32 v{E+k}, v{P1+4*k+1}, v{GR+3}")
    for k in range(4): a(f"v_bitop3_b32 v{E+k}, v{P1+4*k+3}, v{GR+3}, v{E+k} bitop3:0xbe")
    a(f"v_or3_b32 v{G}, v{E}, v{E+1}, v{E+2}\nv_or_b32 v{G}, v{G}, v{E+3}")
    a(f"v_cmp_ne_u32 vcc, 0, v{G}\ns_cbranch_vccz L_p2ok", drain=False)
    if sleep2: a(f"s_sleep {sleep2}")
    for k in range(4):
        a(f"v_cmp_ne_u32 vcc, 0, v{E+k}\ns_and_saveexec_b64 s[76:77], vcc\ns_cbranch_execz L_p2s{k}", drain=False)
        ld2(k)
        a.label(f"L_p2s{k}", drain=False)
        a("s_mov_b64 exec, -1")
    a(f"s_sub_u32 s{sCNT}, s{sCNT}, 1\ns_cmp_lg_u32 s{sCNT}, 0\ns_cbranch_scc1 L_p2", drain=False)
    a.label("L_p2ok", drain=False)
    stamp(6)
    a(f"v_add_f32 v{P1}, v{P1}, v{P1+4}\nv_add_f32 v{P1+2}, v{P1+2}, v{P1+6}\nv_add_f32 v{P1+8}, v{P1+8}, v{P1+12}\nv_add_f32 v{P1+10}, v{P1+10}, v{P1+14}")
    a(f"v_add_f32 v{P1}, v{P1}, v{P1+8}\nv_add_f32 v{P1+2}, v{P1+2}, v{P1+10}\nv_lshlrev_b32 v{vX}, 16, v{vX}")
    a(f"v_permlane16_swap_b32 v{P1}, v{P1+2}")
    a(f"v_add_f32 v{P1}, v{P1}, v{P1+2}")
    a(f"v_add_f32_dpp v{P1}, v{P1}, v{P1} row_ror:8 {FULL}")
    a(f"v_mov_b32 v{P1+2}, v{P1}")
    a(f"v_permlane32_swap_b32 v{P1}, v{P1+2}")
    a(f"v_add_f32 v{P1}, v{P1}, v{P1+2}\nv_add_f32 v{P1}, v{P1}, v{vX}")
    a(f"v_cvt_pk_bf16_f32 v{P1}, v{P1}, v{P1}")
    a(f"s_mov_b32 exec_hi, 0\ns_mov_b32 exec_lo, 0x00ff00ff")
    a(f"buffer_store_short v{P1}, v{vXO}, {S(SC_)}, s69 offen")
    a(f"s_or_b32 s65, s{sKG}, s{sWv}\ns_cmp_lg_u32 s65, 0\ns_cbranch_scc1 L_sdone")
    a("s_mov_b64 exec, 1")
    a(f"buffer_store_dword v{GR+3}, v{vZ}, {S(SW)}, 0 offen")
    a.label("L_sdone")
    stamp(7)
    pad("S")
    dump_stamps(9)
    a("s_endpgm")

    a.label("L_helper")
    X, F, AF, AF2, BF, D, TG = 32, 64, 96, 112, 128, 184, 200
    a("s_setprio 3")
    a(f"v_mul_u32_u24 v6, 896, v5\nv_lshl_add_u32 v6, v4, 6, v6\nv_mov_b32 v7, 0x40000000\nv_cmp_gt_u32 s[74:75], 14, v4")
    a(f"v_cndmask_b32 v7, v7, v6, s[74:75]")
    a(f"v_lshrrev_b32 v8, 3, v0\nv_and_b32 v9, 7, v0\nv_lshlrev_b32 v9, 4, v9\nv_lshl_add_u32 v10, v8, 13, v9")
    a(f"v_mul_u32_u24 v11, 3584, v8\nv_add_u32 v11, v11, v9")
    a(f"s_mul_i32 s65, s{sB}, {112 * 8192}\ns_lshl_b32 s66, s{sIDX}, 7\ns_add_u32 s65, s65, s66")
    a("s_waitcnt lgkmcnt(0)")
    a(f"s_load_dword s{sTAG}, s[26:27], 0")
    srd(SA, 4, 3584)
    for u in range(4): a(f"buffer_load_dwordx4 {V4(X+4*u)}, v7, {S(SA)}, 0 offen offset:{16*u}")
    srd(SB, 10, 448 * 8192)
    def dma(sr, voff, so, stride, lds0, win=None):
        for k in range(14):
            if win and k >= win: a(f"s_waitcnt vmcnt({win-1})")
            a(f"s_mov_b32 m0, {lds0 + 1024 * k}")
            a(f"buffer_load_dwordx4 v{voff}, {S(sr)}, s{so} offen {wnt} lds")
            if k < 13: a(f"s_add_u32 s{so}, s{so}, {8 * stride}")
    if not noq: dma(SB, 10, 65, 8192, WL0)
    srd(SW, 26, WS_USED)
    a(f"v_and_b32 v14, 3, v4\nv_lshrrev_b32 v15, 2, v4\ns_mul_i32 s65, s{sB}, 224")
    a(f"v_mul_u32_u24 v12, 896, v15\nv_add_u32 v12, s65, v12\nv_lshl_add_u32 v28, v5, 3, v12\nv_lshl_add_u32 v12, v5, 4, v12")
    a(f"v_mul_u32_u24 v30, 896, v14\nv_add_u32 v30, s65, v30\nv_lshl_add_u32 v31, v5, 3, v30\nv_lshl_add_u32 v30, v5, 4, v30")
    a(f"v_lshl_add_u32 v8, v5, 2, v14\nv_lshlrev_b32 v8, 4, v8\nv_lshl_add_u32 v8, v15, 16, v8")
    a(f"v_lshlrev_b32 v9, 5, v14\nv_lshl_add_u32 v9, v15, 3, v9\nv_lshl_add_u32 v9, v5, 7, v9")
    for t in range(1, 4): a(f"v_cmp_eq_u32 s[{66+2*t}:{67+2*t}], {t}, v14")
    a(f"v_lshlrev_b32 v15, 7, v15\nv_lshl_add_u32 v15, v14, 3, v15")
    a(f"v_lshl_add_u32 v13, v5, 10, v15\nv_lshl_add_u32 v29, v5, 9, v15")
    a("s_waitcnt vmcnt(14)" if not noq else "s_waitcnt vmcnt(0)")
    stamp(1)
    for k in range(16): a(f"v_lshlrev_b32 v{F+2*k}, 16, v{X+k}\nv_and_b32 v{F+2*k+1}, 0xffff0000, v{X+k}")
    a(f"v_pk_add_f32 v[14:15], {V2(F)}, {V2(F+2)}\nv_pk_add_f32 v[16:17], {V2(F+4)}, {V2(F+6)}")
    for k in range(4, 16, 2):
        a(f"v_pk_add_f32 v[14:15], v[14:15], {V2(F+2*k)}\nv_pk_add_f32 v[16:17], v[16:17], {V2(F+2*k+2)}")
    a("v_pk_add_f32 v[14:15], v[14:15], v[16:17]\nv_add_f32 v14, v14, v15")
    def rowsum(r):
        for sh in (8, 4, 2, 1): a(f"v_add_f32_dpp v{r}, v{r}, v{r} row_ror:{sh} {FULL}")
    rowsum(14)
    a(f"v_mul_f32 v18, {hex(f2u(-1.0 / 448))}, v14\nv_mov_b32 v19, v18")
    a("v_mov_b32 v14, 0\nv_mov_b32 v15, 0\nv_mov_b32 v16, 0\nv_mov_b32 v17, 0")
    for k in range(0, 16, 2):
        a(f"v_pk_add_f32 v[20:21], {V2(F+2*k)}, v[18:19]\nv_pk_add_f32 v[22:23], {V2(F+2*k+2)}, v[18:19]")
        a(f"v_pk_fma_f32 v[14:15], v[20:21], v[20:21], v[14:15]\nv_pk_fma_f32 v[16:17], v[22:23], v[22:23], v[16:17]")
    a("v_pk_add_f32 v[14:15], v[14:15], v[16:17]\nv_add_f32 v14, v14, v15\nv_cndmask_b32 v14, 0, v14, s[74:75]")
    rowsum(14)
    def rbf(r): a(f"v_cvt_pk_bf16_f32 v{r}, v{r}, v{r}\nv_and_b32 v{r}, 0xffff0000, v{r}")
    a(f"v_mul_f32 v14, {hex(f2u(1.0 / 448))}, v14"); rbf(14)
    a(f"v_add_f32 v14, {hex(f2u(1e-5))}, v14"); rbf(14)
    a("v_sqrt_f32 v14, v14"); rbf(14)
    a("v_rcp_f32 v16, v14\nv_mov_b32 v15, v14"); rbf(18)
    a("v_mov_b32 v17, v16\nv_mov_b32 v19, v18")
    for k in range(16):
        a(f"v_pk_add_f32 {V2(F+2*k)}, {V2(F+2*k)}, v[18:19]")
    for k in range(16):
        a(f"v_cvt_pk_bf16_f32 v{X+k}, v{F+2*k}, v{F+2*k+1}")
    for k in range(16): a(f"v_lshlrev_b32 v{F+2*k}, 16, v{X+k}\nv_and_b32 v{F+2*k+1}, 0xffff0000, v{X+k}")
    for k in range(16):
        t = 20 + 2 * (k & 3)
        a(f"v_pk_mul_f32 {V2(t)}, {V2(F+2*k)}, v[16:17]")
        a(f"v_pk_fma_f32 {V2(F+2*k)}, {V2(t)}, v[14:15], {V2(F+2*k)} neg_lo:[1,0,0] neg_hi:[1,0,0]")
        a(f"v_pk_fma_f32 {V2(t)}, {V2(F+2*k)}, v[16:17], {V2(t)}")
        a(f"v_cvt_pk_bf16_f32 v{X+k}, v{t}, v{t+1}")
    a("s_mov_b64 exec, s[74:75]")
    for u in range(4): a(f"ds_write_b128 v6, {V4(X+4*u)} offset:{XN + 16*u}")
    a("s_mov_b64 exec, -1")
    a("s_waitcnt lgkmcnt(0)")
    a(f"s_add_u32 s{sTAG}, s{sTAG}, 1")
    for k in range(3): a(f"ds_read_b128 {V4(AF+4*k)}, v12 offset:{XN + 64*k}")
    a(f"ds_read_b64 {V2(AF+12)}, v28 offset:{XN + 192}")
    a(f"v_mov_b32 v{TG}, s{sTAG}\nv_lshrrev_b32 v{TG+1}, 8, v{TG}\nv_lshrrev_b32 v{TG+2}, 16, v{TG}\nv_lshrrev_b32 v{TG+3}, 24, v{TG}\ns_movk_i32 s78, 0xff")
    a(f"v_lshlrev_b32 v10, 4, v0")
    a(f"s_lshl_b32 s66, s{sH}, 12\ns_lshl_b32 s67, s{sB}, 10\ns_add_u32 s66, s66, s67\ns_lshl_b32 s67, s{sJ}, 8\ns_add_u32 s66, s66, s67\ns_add_u32 s66, s66, {QMB}")
    a(f"s_lshl_b32 s67, s{sBH}, 12\ns_add_u32 s67, s67, {QMB}")
    a("s_waitcnt vmcnt(0)")
    stamp(2)
    def piece(af, transposed):
        for t in range(4):
            for k in range(3):
                o = WL0 + 4096 * k + 32 * t
                a(f"ds_read_b64_tr_b16 {V2(BF+14*t+4*k)}, v13 offset:{o}\nds_read_b64_tr_b16 {V2(BF+14*t+4*k+2)}, v13 offset:{o + 512}")
            a(f"ds_read_b64_tr_b16 {V2(BF+14*t+12)}, v29 offset:{WL0 + 12288 + 32 * t}")
        a("s_waitcnt lgkmcnt(0)")
        for k in range(3):
            for t in range(4):
                x, w = V4(af+4*k), V4(BF+14*t+4*k)
                a(f"v_mfma_f32_16x16x32_bf16 {V4(D+4*t)}, {w if transposed else x}, {x if transposed else w}, {'0' if k == 0 else V4(D+4*t)}")
        for t in range(4):
            x, w = V2(af+12), V2(BF+14*t+12)
            a(f"v_mfma_f32_16x16x16_bf16 {V4(D+4*t)}, {w if transposed else x}, {x if transposed else w}, {V4(D+4*t)}")
        for t in range(1, 4):
            for r in range(4):
                if transposed: a(f"v_cndmask_b32 v{D+r}, v{D+r}, v{D+4*t+r}, s[{66+2*t}:{67+2*t}]")
                else: a(f"v_mov_b32_dpp v{D+r}, v{D+4*t+r} {IDP} row_mask:{hex(1 << t)} bank_mask:0xf")
        for r in range(4): a(f"v_bfi_b32 v{20+r}, s78, v{TG+r}, v{D+r}")
    piece(AF, True)
    if noq or not qst: a("s_branch L_pqok")
    a(f"buffer_store_dwordx4 v[20:23], v8, {S(SW)}, s66 offen sc1")
    stamp(3)
    for k in range(3): a(f"ds_read_b128 {V4(AF2+4*k)}, v30 offset:{XN + 64*k}")
    a(f"ds_read_b64 {V2(AF2+12)}, v31 offset:{XN + 192}")
    a(f"v_mov_b32 v16, 0\nv_mov_b32 v17, 0\nv_mov_b32 v18, 0\nv_mov_b32 v19, 0")
    a(f"s_mov_b32 exec_hi, 0xff\nds_write_b128 v10, v[16:19] offset:{HIMG}\ns_mov_b64 exec, -1")
    PQ = F
    def qload(k): a(f"buffer_load_dwordx4 {V4(PQ+4*k)}, v10, {S(SW)}, s67 offen offset:{1024 * k} sc1")
    def chk4(dst, src):
        a(f"v_xor_b32 v{dst}, v{src}, v{TG}")
        for t in range(1, 4): a(f"v_bitop3_b32 v{dst}, v{src+t}, v{TG+t}, v{dst} bitop3:0xbe")
        a(f"v_and_b32 v{dst}, s78, v{dst}")
    if sleepq: a(f"s_sleep {sleepq}")
    for k in range(4): qload(k)
    a(f"s_mov_b32 s{sCNT}, {spin}")
    a.label("L_pq")
    a("s_waitcnt vmcnt(0)")
    for k in range(4): chk4(X + k, PQ + 4 * k)
    a(f"v_or3_b32 v24, v{X}, v{X+1}, v{X+2}\nv_or_b32 v24, v24, v{X+3}")
    a("v_cmp_ne_u32 vcc, 0, v24\ns_cbranch_vccz L_pqok", drain=False)
    a(f"s_sleep 2")
    for k in range(4):
        a(f"v_cmp_ne_u32 vcc, 0, v{X+k}\ns_and_saveexec_b64 s[76:77], vcc\ns_cbranch_execz L_pqs{k}", drain=False)
        qload(k)
        a.label(f"L_pqs{k}", drain=False)
        a("s_mov_b64 exec, -1")
    a(f"s_sub_u32 s{sCNT}, s{sCNT}, 1\ns_cmp_lg_u32 s{sCNT}, 0\ns_cbranch_scc1 L_pq", drain=False)
    a.label("L_pqok", drain=False)
    for e in (0, 2):
        a(f"v_pk_add_f32 {V2(PQ+e)}, {V2(PQ+e)}, {V2(PQ+4+e)}\nv_pk_add_f32 {V2(PQ+8+e)}, {V2(PQ+8+e)}, {V2(PQ+12+e)}")
    for e in (0, 2): a(f"v_pk_add_f32 {V2(PQ+e)}, {V2(PQ+e)}, {V2(PQ+8+e)}")
    a(f"v_cvt_pk_bf16_f32 v24, v{PQ}, v{PQ+1}\nv_cvt_pk_bf16_f32 v25, v{PQ+2}, v{PQ+3}\nv_mov_b32 v17, 0")
    a(f"ds_write_b64 v9, v[24:25] offset:{QL}\nds_write_b32 v17, v{TG} offset:{TAGL}")
    a("s_waitcnt lgkmcnt(0)")
    stamp(4)
    if stamps: a(f"s_mov_b32 s92, s{sCNT}")
    a("s_barrier")
    a("s_setprio 0")
    if noffn: a("s_branch L_hend")
    a(f"s_cmp_ge_u32 s{sIDX}, 56\ns_cbranch_scc1 L_noffn")
    a(f"s_bitcmp1_b32 s{sIDX}, 0\ns_cselect_b32 s{SC_}, s18, s16\ns_cselect_b32 s{SC_+1}, s19, s17\ns_mov_b32 s{SC_+2}, {448 * 3584}\ns_mov_b32 s{SC_+3}, 0x20000")
    a(f"s_lshr_b32 s66, s{sIDX}, 1\ns_mul_i32 s65, s{sB}, {112 * 3584}\ns_lshl_b32 s67, s66, 7\ns_add_u32 s65, s65, s67")
    if fdma: dma(SC_, 11, 65, 3584, WL0, win=HW)
    a(f"s_and_b32 s67, s{sIDX}, 1\ns_lshl_b32 s67, s67, 2\ns_add_u32 s67, s67, s{sB}\ns_mul_i32 s67, s67, {1792 * 16}\ns_lshl_b32 s66, s66, 10\ns_add_u32 s66, s66, s67\ns_add_u32 s66, s66, {FMB}")
    a("s_waitcnt vmcnt(0)")
    piece(AF2, False)
    if fst: a(f"buffer_store_dwordx4 v[20:23], v10, {S(SW)}, s66 offen sc1")
    a.label("L_noffn")
    if not fpoll: a("s_branch L_hend")
    a(f"v_lshrrev_b32 v14, 3, v0\nv_and_b32 v15, 7, v0\nv_min_u32 v16, 6, v15")
    a(f"v_mul_u32_u24 v9, {1792 * 16}, v14\nv_lshl_add_u32 v9, v16, 4, v9")
    a(f"s_mul_i32 s67, s2, 112\ns_add_u32 s66, s67, {FMB}\ns_add_u32 s67, s67, {HMB}")
    a(f"s_mov_b32 s{sCNT}, {spin}")
    a.label("L_pf")
    a(f"s_sleep {sleepf}")
    a(f"buffer_load_dwordx4 v[32:35], v9, {S(SW)}, s66 offen sc1")
    a("s_waitcnt vmcnt(0)")
    chk4(24, 32)
    a("v_cmp_ne_u32 vcc, 0, v24\ns_cbranch_vccz L_pfok")
    a(f"s_sub_u32 s{sCNT}, s{sCNT}, 1\ns_cmp_lg_u32 s{sCNT}, 0\ns_cbranch_scc1 L_pf")
    a.label("L_pfok")
    for r in range(4): a(f"v_add_f32_dpp v{32+r}, v{32+r}, v{32+r} row_ror:8 {FULL}")
    for r in range(4): a(f"v_mov_b32 v{36+r}, v{32+r}")
    for r in range(4): a(f"v_permlane16_swap_b32 v{32+r}, v{36+r}")
    for r in range(4): a(f"v_add_f32 v{32+r}, v{32+r}, v{36+r}")
    for r in range(4): rbf(32 + r)
    for r in range(4): a(f"v_mov_b32 v{36+r}, v{32+r}")
    for r in range(4): a(f"v_permlane32_swap_b32 v{32+r}, v{36+r}")
    k1 = -2.0 * math.sqrt(2.0 / math.pi) * math.log2(math.e)
    for r in range(4):
        g, u, t = 32 + r, 36 + r, 40 + r
        a(f"v_mul_f32 v{t}, v{g}, v{g}\nv_mul_f32 v{t}, {hex(f2u(0.044715))}, v{t}\nv_fma_f32 v{t}, v{t}, v{g}, v{g}")
        a(f"v_mul_f32 v{t}, {hex(f2u(k1))}, v{t}\nv_exp_f32 v{t}, v{t}\nv_add_f32 v{t}, 1.0, v{t}\nv_rcp_f32 v{t}, v{t}\nv_mul_f32 v{g}, v{g}, v{t}")
        rbf(g)
        a(f"v_mul_f32 v{g}, v{g}, v{u}")
    a(f"v_cvt_pk_bf16_f32 v20, v32, v33\nv_cvt_pk_bf16_f32 v22, v34, v35\nv_mov_b32 v21, v{TG}\nv_mov_b32 v23, v{TG}")
    a("s_mov_b64 exec, 0x7f")
    a(f"buffer_store_dwordx4 v[20:23], v10, {S(SW)}, s67 offen sc1")
    a("s_mov_b32 exec_lo, -1\ns_mov_b32 exec_hi, 0x00ffffff")
    a(f"s_lshr_b32 s66, s2, 3\ns_mul_i32 s66, s66, {56 * 16}\ns_add_u32 s66, s66, {HMB}\nv_lshlrev_b32 v9, 1, v0")
    a(f"s_mov_b32 s{sCNT}, {spin}")
    a.label("L_ph")
    a(f"s_sleep {sleepf}")
    a(f"buffer_load_dwordx4 v[32:35], v10, {S(SW)}, s66 offen sc1")
    a("s_waitcnt vmcnt(0)")
    a(f"v_xor_b32 v24, v33, v{TG}\nv_bitop3_b32 v24, v35, v{TG}, v24 bitop3:0xbe")
    a("v_cmp_ne_u32 vcc, 0, v24\ns_cbranch_vccz L_phok")
    a(f"s_sub_u32 s{sCNT}, s{sCNT}, 1\ns_cmp_lg_u32 s{sCNT}, 0\ns_cbranch_scc1 L_ph")
    a.label("L_phok")
    a(f"ds_write_b16 v9, v32 offset:{HIMG}\nds_write_b16_d16_hi v9, v32 offset:{HIMG + HROW}")
    a(f"ds_write_b16 v9, v34 offset:{HIMG + 2 * HROW}\nds_write_b16_d16_hi v9, v34 offset:{HIMG + 3 * HROW}")
    a("s_waitcnt lgkmcnt(0)")
    a.label("L_hend")
    a("s_mov_b64 exec, -1")
    stamp(5)
    dump_stamps(7)
    a.label("L_end")
    a("s_endpgm")
    a.raw('.section .rodata,"a"'); a.raw(".p2align 6"); a.raw(f".amdhsa_kernel {NAME}")
    a.raw("  .amdhsa_next_free_vgpr 256"); a.raw("  .amdhsa_next_free_sgpr 102"); a.raw("  .amdhsa_accum_offset 256")
    a.raw("  .amdhsa_group_segment_fixed_size 0"); a.raw("  .amdhsa_kernarg_size 96"); a.raw("  .amdhsa_user_sgpr_count 2")
    a.raw("  .amdhsa_user_sgpr_kernarg_segment_ptr 1"); a.raw("  .amdhsa_system_sgpr_workgroup_id_x 1"); a.raw(".end_amdhsa_kernel")
    return a.text()

if __name__ == "__main__":
    out = sys.argv[1]
    kw = eval("dict(" + (sys.argv[2] if len(sys.argv) > 2 else "") + ")")
    open(out, "w").write(gen(**kw))
```

```python
import sys, struct, math
sys.path.insert(0, "gen")
from asmlib import Asm

NAME = "parallel_sum__mha_block_cached__geglu_ffn__decode_kernel"
HEADER = open("parallel_sum__mha_block_cached__geglu_ffn__decode.s.ref").read().split("; Override launch")[0]

def f2u(x): return struct.unpack("<I", struct.pack("<f", x))[0]

QMB = 0x10000
FMB = QMB + 64 * 4096
HMB = FMB + 8 * 1792 * 16
MB1 = 0xA0000
MB2 = 0x120000
TSB = 0x400000
WS_USED = TSB + 0x10000
assert HMB + 1792 * 16 <= MB1
XN, QL, TAGL, ML, HIMG, AIMG, OP, SC = 0, 3584, 4096, 4128, 4224, 4864, 6144, 10240
HROW, AROW = 144, 272
WL0 = SC + 16384
WL1 = WL0 + 14336
WL2 = WL1 + 16384
LDS_BYTES = WL2 + 7168

FULL = "row_mask:0xf bank_mask:0xf"
IDP = "quad_perm:[0,1,2,3]"

def gen(W=5, NP=5, nt="nt", wnt="nt", stamps=False, warm=True, sleep1=1, sleep2=1, sleepq=30, spin=1 << 16,
        padto=0, padwg=None, padstamp=None, HW=4, noffn=0, noq=0, nowo=0, touch=1, sleepf=60, fdma=1, fst=1, fpoll=1, qst=1, pat=2, Wend=None, nend=0, W0=None, osc=''):
    a = Asm()
    a.raw(HEADER.rstrip("\n"))
    a.raw(f"; @launch grid=(256,1,1) block=(320,1,1) lds={LDS_BYTES}")
    a.raw('.amdgcn_target "amdgcn-amd-amdhsa--gfx950"')
    a.raw(".text"); a.raw(f".globl {NAME}"); a.raw(".p2align 8"); a.raw(f".type {NAME},@function")
    a.raw(f"{NAME}:")
    SK, SV, SW, SA, SB, SC_, SD = 28, 32, 36, 40, 44, 48, 52
    sB, sH, sJ, sIDX, sBH, sTAG, sCNT, sKO, sVO, sWv, sKG, sCG = 56, 57, 58, 59, 60, 61, 62, 63, 64, 72, 73, 79
    def srd(r, ptr, size):
        a(f"s_mov_b32 s{r}, s{ptr}\ns_mov_b32 s{r+1}, s{ptr+1}\ns_mov_b32 s{r+2}, {size}\ns_mov_b32 s{r+3}, 0x20000")
    def S(r): return f"s[{r}:{r+3}]"
    def V4(r): return f"v[{r}:{r+3}]"
    def V2(r): return f"v[{r}:{r+1}]"
    def stamp(k):
        if stamps or padstamp is not None:
            a(f"s_memrealtime s[{80+2*k}:{81+2*k}]")
    def dump_stamps(n):
        if not stamps: return
        a("s_waitcnt lgkmcnt(0)")
        a("s_mov_b64 exec, 1")
        a(f"s_mul_i32 s65, s2, 5\ns_add_u32 s65, s65, s3\ns_mul_i32 s65, s65, 48\ns_add_u32 s65, s65, {TSB}")
        a("v_mov_b32 v1, 0")
        for k in range(n):
            a(f"v_mov_b32 v2, s{80+2*k}")
            a(f"buffer_store_dword v2, v1, {S(SW)}, s65 offen offset:{4*k}")
        a(f"v_mov_b32 v2, s{sCNT}\nbuffer_store_dword v2, v1, {S(SW)}, s65 offen offset:44")
        a("s_waitcnt vmcnt(0)")
    def pad(role):
        if not padto: return
        r, k = padstamp if padstamp is not None else ("S", 0)
        if r != role: return
        if padwg is not None: a(f"s_cmp_lg_u32 s2, {padwg}\ns_cbranch_scc1 L_end")
        a.label(f"L_pad{role}")
        a(f"s_sleep 1\ns_memrealtime s[98:99]\ns_waitcnt lgkmcnt(0)\ns_sub_u32 s98, s98, s{80+2*k}\ns_cmp_lt_u32 s98, {padto}\ns_cbranch_scc1 L_pad{role}")

    a("s_cmp_ge_u32 s2, 256\ns_cbranch_scc1 L_end")
    a("s_load_dwordx16 s[4:19], s[0:1], 0\ns_load_dwordx8 s[20:27], s[0:1], 64")
    stamp(0)
    a("v_lshrrev_b32 v1, 6, v0\nv_and_b32 v0, 63, v0\nv_readfirstlane_b32 s3, v1")
    a(f"s_lshr_b32 s{sB}, s2, 6\ns_lshr_b32 s{sBH}, s2, 2\ns_and_b32 s{sH}, s{sBH}, 15\ns_and_b32 s{sJ}, s2, 3\ns_and_b32 s{sIDX}, s2, 63")
    a(f"s_lshr_b32 s{sKG}, s2, 3\ns_add_u32 s{sCG}, s2, s{sKG}\ns_and_b32 s{sCG}, s{sCG}, 7")
    a("v_and_b32 v4, 15, v0\nv_lshrrev_b32 v5, 4, v0")
    a("s_cmp_eq_u32 s3, 0\ns_cbranch_scc1 L_helper")

    vKO, vVO, vSC, vMAX, vL, vC, vMC, vS = 1, 2, 3, 6, 7, 28, 29, 30
    vJ, vG = 4, 5
    MASK, OACC, BB, QF, DA, TMP, R = 8, 12, 20, 32, 64, 84, 96
    def ring(tile, u): return R + 32 * tile + 4 * u
    a(f"s_sub_u32 s{sWv}, s3, 1")
    ksh, wsh = {0: (9, 11), 1: (12, 10), 2: (12, 14)}[pat]
    a(f"v_lshrrev_b32 v{TMP}, 2, v{vJ}\nv_lshlrev_b32 v{TMP}, {ksh}, v{TMP}\nv_and_b32 v{TMP+1}, 3, v{vJ}\nv_lshlrev_b32 v{TMP+1}, 4, v{TMP+1}")
    a(f"v_lshl_add_u32 v{TMP+1}, v{vG}, 6, v{TMP+1}")
    a(f"v_add_u32 v{vKO}, v{TMP}, v{TMP+1}")
    a(f"v_lshlrev_b32 v{vVO}, 4, v{vJ}\nv_lshl_add_u32 v{vVO}, v{vG}, {ksh}, v{vVO}")
    a(f"s_lshl_b32 s{sKO}, s2, 19\ns_lshl_b32 s65, s{sWv}, {wsh}\ns_add_u32 s{sKO}, s{sKO}, s65\ns_mov_b32 s{sVO}, s{sKO}")
    a("s_waitcnt lgkmcnt(0)")
    srd(SK, 6, 1 << 27)
    vm = []
    def issue(kind, reg, u, tagid):
        sr, vo, so = (SK, vKO, sKO) if kind == "K" else (SV, vVO, sVO)
        o = {0: 256 * (u & 1), 1: 256 * (u & 3), 2: 256 * u}[pat]
        off = f" offset:{o}" if o else ""
        a(f"buffer_load_dwordx4 {V4(reg)}, v{vo}, {S(sr)}, s{so} offen{off} {nt}")
        if pat == 0 and u & 1: a(f"s_add_u32 s{so}, s{so}, 8192")
        if pat == 1 and (u & 3) == 3: a(f"s_add_u32 s{so}, s{so}, 16384")
        if pat == 2 and u == 7:
            a(f"s_bitcmp1_b32 s{so}, 11\ns_cselect_b32 s65, {65536 - 4096}, 0\ns_add_u32 s{so}, s{so}, s65\ns_add_u32 s{so}, s{so}, 2048")
        vm.append(tagid)
    def wait_for(tagid):
        if tagid not in vm: return
        n = len(vm) - 1 - vm.index(tagid)
        assert n < 64
        a(f"s_waitcnt vmcnt({n})")
    nload = [0]
    curW = [W]
    def throttle_issue(kind, reg, u):
        n = nload[0]
        wait_for(("s", n - curW[0]))
        issue(kind, reg, u, ("s", n)); nload[0] += 1
    W0 = W0 or W
    curW[0] = W0
    for n in range(W0):
        throttle_issue("K", ring(n // 8, n % 8), n % 8)
    curW[0] = W
    if warm:
        a(f"s_cmp_lg_u32 s3, 1\ns_cbranch_scc1 L_nowarm")
        a(f"s_getpc_b64 s[66:67]\nv_lshlrev_b32 v{TMP+2}, 7, v0")
        a(f"global_load_dword v{TMP+3}, v{TMP+2}, s[66:67]")
        a.label("L_nowarm")
    srd(SV, 8, 1 << 27); srd(SW, 26, WS_USED); srd(SC_, 22, 3584); srd(SD, 4, 3584)
    srd(SA, 12, 4096 * 896); srd(SB, 20, 1792 * 896)
    for k in range(32): a(f"v_mov_b32 v{QF+k}, 0")
    for k in range(8): a(f"v_mov_b32 v{OACC+k}, 0")
    a(f"v_mov_b32 v{vMAX}, 0xff800000\nv_mov_b32 v{vL}, 0\nv_mov_b32 v{vC}, {hex(f2u(math.log2(math.e) / 16))}")
    a(f"v_and_b32 v{TMP+4}, 1, v{vJ}\nv_lshlrev_b32 v{TMP+4}, 4, v{TMP+4}\nv_mov_b32 v{TMP+5}, 0xffff\nv_lshlrev_b32 v{TMP+4}, v{TMP+4}, v{TMP+5}")
    a(f"v_bfe_u32 v{TMP+5}, v{vJ}, 1, 2")
    for w in range(4):
        a(f"v_cmp_eq_u32 vcc, {w}, v{TMP+5}\nv_cndmask_b32 v{MASK+w}, 0, v{TMP+4}, vcc")
    a(f"s_lshl_b32 s65, s{sWv}, 12\ns_add_u32 s65, s65, {SC}\nv_lshl_add_u32 v{vSC}, v0, 2, s65")
    for n in range(W0, 8 * NP):
        throttle_issue("K", ring(n // 8, n % 8), n % 8)
    stamp(1)
    a("s_barrier")
    stamp(2)
    for t in range(4):
        m = 0x000F000F << (4 * t)
        a(f"s_mov_b32 exec_lo, {hex(m)}\ns_mov_b32 exec_hi, {hex(m)}")
        for half in range(2):
            a(f"ds_read_b128 {V4(QF + 4 * (2 * t + half))}, v{TMP+1} offset:{QL + 256 * half}")
    a("s_mov_b64 exec, -1")
    a(f"v_mov_b32 v{TMP}, 0\nds_read_b32 v{TMP+2}, v{TMP} offset:{TAGL}")
    a("s_waitcnt lgkmcnt(0)")
    a(f"v_readfirstlane_b32 s{sTAG}, v{TMP+2}")

    def consK(reg, u, d):
        c = "0" if u == 0 else V4(d)
        a(f"v_mfma_f32_16x16x32_bf16 {V4(d)}, {V4(reg)}, {V4(QF + 4 * u)}, {c}")
    def extract(ds, off0):
        for k, d in enumerate(ds): a(f"v_mov_b32_dpp v{TMP+k}, v{d} quad_perm:[0,0,0,0] {FULL}")
        for c in range(1, 4):
            for k, d in enumerate(ds): a(f"v_add_f32_dpp v{TMP+k}, v{d+c}, v{TMP+k} quad_perm:[{c},{c},{c},{c}] {FULL}")
        for k, d in enumerate(ds): a(f"v_cvt_pk_bf16_f32 v{TMP+k}, v{TMP+k}, v{TMP+k}")
        for k, d in enumerate(ds): a(f"v_and_b32 v{TMP+k}, 0xffff0000, v{TMP+k}")
        for k, d in enumerate(ds):
            a(f"ds_write_b32 v{vSC}, v{TMP+k} offset:{off0 + 256 * k}")
            a(f"v_max_f32 v{vMAX}, v{vMAX}, v{TMP+k}")
        a(f"v_add_u32 v{vSC}, {256 * len(ds)}, v{vSC}")
    for u in range(8):
        consK(ring(0, u), u, DA)
        throttle_issue("K", ring(0, u), u)
        for T in range(1, NP): consK(ring(T, u), u, DA + 4 * T)
    extract([DA + 4 * T for T in range(NP)], 0)

    T0 = R + 32
    vX, vXO, vOPW, vMLW, vOPR, vZ, vL16, vST2, vTR, vTR2, vTRD, vTRD2, vHA, vAR, vAW, vWO, vWD = range(T0, T0 + 17)
    vML = T0 + 18
    G = T0 + 20
    GR = T0 + 36
    P1 = T0 + 40
    AH = T0 + 56
    AO = T0 + 64
    BW = T0 + 80
    BD = T0 + 96
    Y = T0 + 104
    E = T0 + 108
    def tail_addr():
        a(f"s_lshl_b32 s65, s{sWv}, 10\ns_add_u32 s65, s65, {OP}\nv_lshl_add_u32 v{vOPW}, v0, 4, s65")
        a(f"s_lshl_b32 s65, s{sWv}, 3\ns_add_u32 s65, s65, {ML}\nv_mov_b32 v{vMLW}, s65")
        a(f"s_lshl_b32 s65, s{sWv}, 8\ns_add_u32 s65, s65, {OP}\nv_lshl_add_u32 v{vOPR}, v0, 3, s65")
        a(f"v_mov_b32 v{vZ}, 0\nv_lshlrev_b32 v{vL16}, 4, v0\nv_mov_b32 v{GR+3}, s{sTAG}")
        a(f"s_lshl_b32 s70, s2, 11\ns_lshl_b32 s65, s{sWv}, 9\ns_add_u32 s70, s70, s65\ns_add_u32 s70, s70, {MB1}")
        a(f"s_lshl_b32 s71, s{sWv}, 17\ns_lshr_b32 s65, s{sKG}, 1\ns_lshl_b32 s65, s65, 13\ns_add_u32 s71, s71, s65")
        a(f"s_and_b32 s65, s{sKG}, 1\ns_lshl_b32 s65, s65, 10\ns_add_u32 s71, s71, s65\ns_add_u32 s71, s71, {MB1}\ns_add_u32 s74, s71, 4096")
        a(f"v_lshrrev_b32 v{E}, 3, v0\nv_and_b32 v{E+1}, 7, v0\nv_and_b32 v{E+2}, 2, v{E}\nv_xor_b32 v{E+1}, v{E+1}, v{E+2}\nv_lshlrev_b32 v{E+1}, 4, v{E+1}")
        a(f"v_and_b32 v{E+2}, 3, v{E}\nv_lshlrev_b32 v{E+2}, 3, v{E+2}\nv_lshrrev_b32 v{E+3}, 2, v{E}\nv_add_u32 v{E+2}, v{E+2}, v{E+3}")
        a(f"v_mul_u32_u24 v{vWO}, 896, v{E+2}\nv_mul_u32_u24 v{vWD}, 896, v{E}")
        a(f"s_and_b32 s65, s{sWv}, 1\ns_lshl_b32 s65, s65, 6\nv_xor_b32 v{E+1}, s65, v{E+1}")
        a(f"v_add_u32 v{vWO}, v{vWO}, v{E+1}\nv_add_u32 v{vWD}, v{vWD}, v{E+1}")
        a(f"s_lshr_b32 s66, s{sKG}, 1\ns_lshl_b32 s66, s66, 8\ns_and_b32 s65, s{sKG}, 1\ns_lshl_b32 s65, s65, 6\ns_add_u32 s66, s66, s65")
        a(f"s_lshl_b32 s65, s{sWv}, 1\ns_add_u32 s66, s66, s65\ns_mul_i32 s66, s66, 896\ns_lshl_b32 s65, s{sCG}, 7\ns_add_u32 s66, s66, s65")
        a(f"s_mul_i32 s67, s{sKG}, 56\ns_lshl_b32 s68, s{sWv}, 3\ns_add_u32 s67, s67, s68\ns_mul_i32 s67, s67, 896\ns_add_u32 s67, s67, s65")
        a(f"s_lshl_b32 s75, s{sWv}, 10")
        a(f"v_lshrrev_b32 v{E}, 2, v{vJ}\nv_bfe_u32 v{E+1}, v{vJ}, 1, 1\ns_lshl_b32 s65, s{sWv}, 1\nv_add_u32 v{E+1}, s65, v{E+1}")
        a(f"v_and_b32 v{E+2}, 2, v{E}\nv_xor_b32 v{E+1}, v{E+1}, v{E+2}")
        a(f"v_and_b32 v{E+3}, 1, v{vJ}\nv_lshlrev_b32 v{E+3}, 3, v{E+3}\nv_lshl_add_u32 v{E+3}, v{E}, 7, v{E+3}")
        a(f"v_and_b32 v{E+2}, 1, v{vG}\nv_lshlrev_b32 v{E+2}, 2, v{E+2}\nv_xor_b32 v{E+4}, v{E+1}, v{E+2}")
        a(f"v_lshl_add_u32 v{vTR}, v{E+4}, 4, v{E+3}\nv_lshl_add_u32 v{vTR}, v{vG}, 10, v{vTR}")
        a(f"v_min_u32 v{E+5}, 2, v{vG}\nv_and_b32 v{E+2}, 1, v{E+5}\nv_lshlrev_b32 v{E+2}, 2, v{E+2}\nv_xor_b32 v{E+4}, v{E+1}, v{E+2}")
        a(f"v_lshl_add_u32 v{vTRD}, v{E+4}, 4, v{E+3}\nv_lshl_add_u32 v{vTRD}, v{E+5}, 10, v{vTRD}")
        a(f"v_mul_u32_u24 v{vHA}, {HROW}, v{E}\nv_lshl_add_u32 v{vHA}, v{vG}, 4, v{vHA}")
        a(f"v_mul_u32_u24 v{vAR}, {AROW}, v{E}\nv_lshl_add_u32 v{vAR}, v{vG}, 4, v{vAR}")
        a(f"s_mul_i32 s65, s{sWv}, {AROW}\ns_add_u32 s65, s65, {AIMG}\nv_lshl_add_u32 v{vAW}, v0, 2, s65")
        a(f"v_lshlrev_b32 v{vST2}, 3, v{vJ}\nv_lshl_add_u32 v{vST2}, v{vG}, 12, v{vST2}")
        a(f"s_lshl_b32 s68, s{sCG}, 2\ns_add_u32 s68, s68, s{sWv}\ns_lshl_b32 s68, s68, 14\ns_lshl_b32 s65, s{sKG}, 7\ns_add_u32 s68, s68, s65\ns_add_u32 s68, s68, {MB2}")
        a(f"s_and_b32 s78, s{sKG}, 0xfc\ns_add_u32 s78, s78, s{sWv}\ns_lshl_b32 s69, s78, 4\ns_lshl_b32 s78, s78, 2\ns_and_b32 s65, s{sKG}, 3\ns_add_u32 s78, s78, s65")
        a(f"s_lshl_b32 s78, s78, 12\ns_add_u32 s78, s78, {MB2}\ns_mul_i32 s65, s65, 448\ns_add_u32 s69, s69, s65\ns_lshl_b32 s69, s69, 1")
        a(f"v_and_b32 v{E}, 7, v0\nv_and_b32 v{E+1}, 1, v{vG}\nv_lshlrev_b32 v{vXO}, 2, v{E}\nv_lshl_add_u32 v{vXO}, v{E+1}, 1, v{vXO}")
    tail_addr()

    def iterK(nextkind):
        for u in range(8):
            consK(ring(0, u), u, DA)
            throttle_issue(nextkind, ring(0, u), u)
        extract([DA], 0)
    a(f"s_mov_b32 s{sCNT}, {15 - NP}")
    a.label("L_kk")
    iterK("K")
    a(f"s_sub_u32 s{sCNT}, s{sCNT}, 1\ns_cmp_lg_u32 s{sCNT}, 0\ns_cbranch_scc1 L_kk")
    iterK("V")
    stamp(3)
    a(f"v_subrev_u32 v{vSC}, 4096, v{vSC}")
    a(f"ds_read_b32 v{vS}, v{vSC}")
    a(f"v_max_f32_dpp v{vMAX}, v{vMAX}, v{vMAX} row_ror:4 {FULL}")
    a(f"v_max_f32_dpp v{vMAX}, v{vMAX}, v{vMAX} row_ror:8 {FULL}")
    a(f"v_max_f32_dpp v{vMAX}, v{vMAX}, v{vMAX} row_bcast:15 row_mask:0xa bank_mask:0xf")
    a(f"v_max_f32_dpp v{vMAX}, v{vMAX}, v{vMAX} row_bcast:31 row_mask:0xc bank_mask:0xf")
    a(f"v_readlane_b32 s65, v{vMAX}, 63")
    a(f"v_mul_f32 v{vMC}, s65, v{vC}")
    vP = TMP
    def last_extra():
        if not nowo:
            a(f"s_cmp_eq_u32 s{sCG}, 7\ns_cselect_b32 s66, 0x40000000, s66\ns_cselect_b32 s67, 0x40000000, s67")
            for c in range(4):
                a(f"s_add_u32 s65, s66, {(128 * (c & 1) + 32 * (c >> 1)) * 896}\ns_add_u32 m0, s75, {WL1 + 4096 * c}")
                a(f"buffer_load_dwordx4 v{vWO}, {S(SA)}, s65 offen {wnt} lds"); vm.append(("wo", c))
            a(f"s_add_u32 m0, s75, {WL2}")
            a(f"buffer_load_dwordx4 v{vWD}, {S(SB)}, s67 offen {wnt} lds"); vm.append(("wd", 0))
            a(f"s_cmp_eq_u32 s{sWv}, 3\ns_cselect_b32 s65, 0, {32 * 896}\ns_cselect_b32 s76, 0, 4096\ns_add_u32 s67, s67, s65\ns_add_u32 s76, s76, s75\ns_add_u32 m0, s76, {WL2}")
            a(f"buffer_load_dwordx4 v{vWD}, {S(SB)}, s67 offen {wnt} lds"); vm.append(("wd", 1))
        a(f"buffer_load_ushort v{vX}, v{vXO}, {S(SD)}, s69 offen"); vm.append("x")
        if touch:
            a(f"buffer_load_ushort v{E+7}, v{vXO}, {S(SC_)}, s69 offen"); vm.append("o")
        a(f"v_add_f32_dpp v{vL}, v{vL}, v{vL} row_ror:4 {FULL}")
        a(f"v_add_f32_dpp v{vL}, v{vL}, v{vL} row_ror:8 {FULL}")
        a(f"v_add_f32_dpp v{vL}, v{vL}, v{vL} row_bcast:15 row_mask:0xa bank_mask:0xf")
        a(f"v_add_f32_dpp v{vL}, v{vL}, v{vL} row_bcast:31 row_mask:0xc bank_mask:0xf")
        a(f"v_mov_b32 v{vML}, v{vMC}\nv_mov_b32 v{vML+1}, v{vL}")
        a("s_mov_b32 exec_lo, 0\ns_mov_b32 exec_hi, 0x80000000")
        a(f"ds_write_b64 v{vMLW}, {V2(vML)}")
        a("s_mov_b64 exec, -1")
    def iterV(last):
        a("s_waitcnt lgkmcnt(0)")
        a(f"v_fma_f32 v{vP}, v{vS}, v{vC}, -v{vMC}")
        a(f"v_exp_f32 v{vP}, v{vP}")
        if not last:
            a(f"v_add_u32 v{vSC}, 256, v{vSC}\nds_read_b32 v{vS}, v{vSC}")
        a(f"v_add_f32 v{vL}, v{vL}, v{vP}")
        a(f"v_cvt_pk_bf16_f32 v{vP}, v{vP}, v{vP}")
        if last: last_extra()
        base = nload[0] - 8
        for u in range(8):
            t, half = u >> 1, u & 1
            b = BB + 4 * (t & 1)
            if half == 0:
                for w in range(4): a(f"v_and_b32_dpp v{b+w}, v{vP}, v{MASK+w} row_newbcast:{4*t} {FULL}")
            if last: wait_for(("s", base + u))
            a(f"v_mfma_f32_16x16x32_bf16 {V4(OACC + 4 * half)}, {V4(ring(0, u))}, {V4(b)}, {V4(OACC + 4 * half)}")
            if not last: throttle_issue("V", ring(0, u), u)
    a(f"s_mov_b32 s{sCNT}, {15 - nend}")
    a.label("L_vv")
    iterV(False)
    a(f"s_sub_u32 s{sCNT}, s{sCNT}, 1\ns_cmp_lg_u32 s{sCNT}, 0\ns_cbranch_scc1 L_vv")
    if nend:
        curW[0] = Wend
        a(f"s_mov_b32 s{sCNT}, {nend}")
        a.label("L_vv2")
        iterV(False)
        a(f"s_sub_u32 s{sCNT}, s{sCNT}, 1\ns_cmp_lg_u32 s{sCNT}, 0\ns_cbranch_scc1 L_vv2")
    iterV(True)
    stamp(4)
    for r in range(4): a(f"v_mov_b32_dpp v{OACC+r}, v{OACC+4+r} {IDP} row_mask:0xf bank_mask:0xc")
    a(f"ds_write_b128 v{vOPW}, {V4(OACC)}")
    a("s_waitcnt lgkmcnt(0)")
    a("s_barrier")
    a("s_mov_b32 exec_hi, 0")
    a(f"ds_read_b128 {V4(G)}, v{vZ} offset:{ML}\nds_read_b128 {V4(G+4)}, v{vZ} offset:{ML+16}")
    for w in range(4): a(f"ds_read_b64 {V2(G+8+2*w)}, v{vOPR} offset:{1024*w}")
    a("s_waitcnt lgkmcnt(4)")
    ms, ls = [G, G+2, G+4, G+6], [G+1, G+3, G+5, G+7]
    a(f"v_max3_f32 v{E+4}, v{ms[0]}, v{ms[1]}, v{ms[2]}\nv_max_f32 v{E+4}, v{E+4}, v{ms[3]}")
    for k in range(4): a(f"v_sub_f32 v{ms[k]}, v{ms[k]}, v{E+4}")
    for k in range(4): a(f"v_exp_f32 v{ms[k]}, v{ms[k]}")
    a(f"v_mul_f32 v{E+5}, v{ms[0]}, v{ls[0]}")
    for k in range(1, 4): a(f"v_fmac_f32 v{E+5}, v{ms[k]}, v{ls[k]}")
    a(f"v_rcp_f32 v{E+6}, v{E+5}\nv_log_f32 v{E+5}, v{E+5}")
    a("s_waitcnt lgkmcnt(0)")
    a(f"v_pk_mul_f32 {V2(GR)}, {V2(G+8)}, {V2(ms[0])} op_sel_hi:[1,0]")
    for k in range(1, 4): a(f"v_pk_fma_f32 {V2(GR)}, {V2(G+8+2*k)}, {V2(ms[k])}, {V2(GR)} op_sel_hi:[1,0,1]")
    a(f"v_add_f32 v{GR+2}, v{E+4}, v{E+5}")
    a(f"v_pk_mul_f32 {V2(GR)}, {V2(GR)}, {V2(E+6)} op_sel_hi:[1,0]")
    a(f"buffer_store_dwordx4 {V4(GR)}, v{vL16}, {S(SW)}, s70 offen sc1")
    a("s_mov_b64 exec, -1")
    stamp(8)
    a(f"s_mov_b32 s{sCNT}, {spin}")
    a(f"s_cmp_eq_u32 s{sCG}, 7\ns_cbranch_scc1 L_reduce", drain=False)
    def ld1(k): a(f"buffer_load_dwordx4 {V4(P1+4*k)}, v{vL16}, {S(SW)}, s{71 if k < 2 else 74} offen{' offset:2048' if k & 1 else ''} sc1")
    for k in range(4): ld1(k)
    a(f"ds_read_b128 {V4(AH)}, v{vHA} offset:{HIMG}\nds_read_b128 {V4(AH+4)}, v{vHA} offset:{HIMG+64}")
    a.label("L_p1", drain=False)
    a("s_waitcnt vmcnt(0)")
    for k in range(4): a(f"v_cmp_ne_u32 s[76:77], s{sTAG}, v{P1+3}" if k == 0 else f"v_cmp_ne_u32 vcc, s{sTAG}, v{P1+4*k+3}\ns_or_b64 s[76:77], s[76:77], vcc")
    a("s_cbranch_scc0 L_p1ok", drain=False)
    if sleep1: a(f"s_sleep {sleep1}")
    for k in range(4):
        a(f"v_cmp_ne_u32 vcc, s{sTAG}, v{P1+4*k+3}\ns_and_saveexec_b64 s[76:77], vcc\ns_cbranch_execz L_p1s{k}", drain=False)
        ld1(k)
        a.label(f"L_p1s{k}", drain=False)
        a("s_mov_b64 exec, -1")
    a(f"s_sub_u32 s{sCNT}, s{sCNT}, 1\ns_cmp_lg_u32 s{sCNT}, 0\ns_cbranch_scc1 L_p1", drain=False)
    a.label("L_p1ok", drain=False)
    stamp(5)
    lam = [P1+2, P1+6, P1+10, P1+14]
    a(f"v_max3_f32 v{E+4}, v{lam[0]}, v{lam[1]}, v{lam[2]}\nv_max_f32 v{E+4}, v{E+4}, v{lam[3]}")
    for k in range(4): a(f"v_sub_f32 v{lam[k]}, v{lam[k]}, v{E+4}")
    for k in range(4): a(f"v_exp_f32 v{lam[k]}, v{lam[k]}")
    a(f"v_add_f32 v{E+5}, v{lam[0]}, v{lam[1]}\nv_pk_mul_f32 {V2(G)}, {V2(P1)}, {V2(lam[0])} op_sel_hi:[1,0]\nv_add_f32 v{E+6}, v{lam[2]}, v{lam[3]}")
    a(f"v_pk_fma_f32 {V2(G)}, {V2(P1+4)}, {V2(lam[1])}, {V2(G)} op_sel_hi:[1,0,1]\nv_add_f32 v{E+6}, v{E+5}, v{E+6}")
    a(f"v_pk_fma_f32 {V2(G)}, {V2(P1+8)}, {V2(lam[2])}, {V2(G)} op_sel_hi:[1,0,1]\nv_rcp_f32 v{E+6}, v{E+6}")
    a(f"v_pk_fma_f32 {V2(G)}, {V2(P1+12)}, {V2(lam[3])}, {V2(G)} op_sel_hi:[1,0,1]")
    a(f"v_pk_mul_f32 {V2(G)}, {V2(G)}, {V2(E+6)} op_sel_hi:[1,0]")
    a(f"v_cvt_pk_bf16_f32 v{G}, v{G}, v{G+1}")
    a(f"ds_write_b32 v{vAW}, v{G}")
    a("s_waitcnt lgkmcnt(0)")
    a("s_barrier")
    a(f"ds_read_b64_tr_b16 {V2(BD)}, v{vTR} offset:{WL2}\nds_read_b64_tr_b16 {V2(BD+2)}, v{vTR} offset:{WL2+512}")
    a(f"ds_read_b64_tr_b16 {V2(BD+4)}, v{vTRD} offset:{WL2+4096}\nds_read_b64_tr_b16 {V2(BD+6)}, v{vTRD} offset:{WL2+4096+512}")
    for k in range(4):
        a(f"ds_read_b128 {V4(AO+4*k)}, v{vAR} offset:{AIMG+64*k}")
        a(f"ds_read_b64_tr_b16 {V2(BW+4*k)}, v{vTR} offset:{WL1+4096*k}\nds_read_b64_tr_b16 {V2(BW+4*k+2)}, v{vTR} offset:{WL1+4096*k+512}")
    a("s_waitcnt lgkmcnt(12)")
    a(f"v_mfma_f32_16x16x32_bf16 {V4(Y)}, {V4(AH)}, {V4(BD)}, 0")
    a(f"v_mfma_f32_16x16x32_bf16 {V4(Y)}, {V4(AH+4)}, {V4(BD+4)}, {V4(Y)}")
    for k in range(4):
        a(f"s_waitcnt lgkmcnt({9-3*k})")
        a(f"v_mfma_f32_16x16x32_bf16 {V4(Y)}, {V4(AO+4*k)}, {V4(BW+4*k)}, {V4(Y)}")
    a(f"v_mov_b32 v{GR+2}, v{Y}")
    a(f"buffer_store_dwordx2 {V2(GR+2)}, v{vST2}, {S(SW)}, s68 offen sc1")
    a("s_branch L_sdone")
    a.label("L_reduce")
    a(f"s_cmp_ge_u32 s{sKG}, 28\ns_cbranch_scc1 L_sdone")
    def ld2(k): a(f"buffer_load_dwordx4 {V4(P1+4*k)}, v{vL16}, {S(SW)}, s78 offen offset:{1024*k} sc1")
    for k in range(4): ld2(k)
    a.label("L_p2")
    a("s_waitcnt vmcnt(0)")
    for k in range(4): a(f"v_xor_b32 v{E+k}, v{P1+4*k+1}, v{GR+3}")
    for k in range(4): a(f"v_bitop3_b32 v{E+k}, v{P1+4*k+3}, v{GR+3}, v{E+k} bitop3:0xbe")
    a(f"v_or3_b32 v{G}, v{E}, v{E+1}, v{E+2}\nv_or_b32 v{G}, v{G}, v{E+3}")
    a(f"v_cmp_ne_u32 vcc, 0, v{G}\ns_cbranch_vccz L_p2ok", drain=False)
    if sleep2: a(f"s_sleep {sleep2}")
    for k in range(4):
        a(f"v_cmp_ne_u32 vcc, 0, v{E+k}\ns_and_saveexec_b64 s[76:77], vcc\ns_cbranch_execz L_p2s{k}", drain=False)
        ld2(k)
        a.label(f"L_p2s{k}", drain=False)
        a("s_mov_b64 exec, -1")
    a(f"s_sub_u32 s{sCNT}, s{sCNT}, 1\ns_cmp_lg_u32 s{sCNT}, 0\ns_cbranch_scc1 L_p2", drain=False)
    a.label("L_p2ok", drain=False)
    stamp(6)
    a(f"v_add_f32 v{P1}, v{P1}, v{P1+4}\nv_add_f32 v{P1+2}, v{P1+2}, v{P1+6}\nv_add_f32 v{P1+8}, v{P1+8}, v{P1+12}\nv_add_f32 v{P1+10}, v{P1+10}, v{P1+14}")
    a(f"v_add_f32 v{P1}, v{P1}, v{P1+8}\nv_add_f32 v{P1+2}, v{P1+2}, v{P1+10}\nv_lshlrev_b32 v{vX}, 16, v{vX}")
    a(f"v_permlane16_swap_b32 v{P1}, v{P1+2}")
    a(f"v_add_f32 v{P1}, v{P1}, v{P1+2}")
    a(f"v_add_f32_dpp v{P1}, v{P1}, v{P1} row_ror:8 {FULL}")
    a(f"v_mov_b32 v{P1+2}, v{P1}")
    a(f"v_permlane32_swap_b32 v{P1}, v{P1+2}")
    a(f"v_add_f32 v{P1}, v{P1}, v{P1+2}\nv_add_f32 v{P1}, v{P1}, v{vX}")
    a(f"v_cvt_pk_bf16_f32 v{P1}, v{P1}, v{P1}")
    a(f"s_mov_b32 exec_hi, 0\ns_mov_b32 exec_lo, 0x00ff00ff")
    a(f"buffer_store_short v{P1}, v{vXO}, {S(SC_)}, s69 offen {osc}")
    a(f"s_or_b32 s65, s{sKG}, s{sWv}\ns_cmp_lg_u32 s65, 0\ns_cbranch_scc1 L_sdone")
    a("s_mov_b64 exec, 1")
    a(f"buffer_store_dword v{GR+3}, v{vZ}, {S(SW)}, 0 offen {osc}")
    a.label("L_sdone")
    stamp(7)
    pad("S")
    dump_stamps(9)
    a("s_endpgm")

    a.label("L_helper")
    X, F, AF, AF2, BF, D, TG = 32, 64, 96, 112, 128, 184, 200
    a("s_setprio 3")
    a(f"v_mul_u32_u24 v6, 896, v5\nv_lshl_add_u32 v6, v4, 6, v6\nv_mov_b32 v7, 0x40000000\nv_cmp_gt_u32 s[74:75], 14, v4")
    a(f"v_cndmask_b32 v7, v7, v6, s[74:75]")
    a(f"v_lshrrev_b32 v8, 3, v0\nv_and_b32 v9, 7, v0\nv_lshlrev_b32 v9, 4, v9\nv_lshl_add_u32 v10, v8, 13, v9")
    a(f"v_mul_u32_u24 v11, 3584, v8\nv_add_u32 v11, v11, v9")
    a(f"s_mul_i32 s65, s{sB}, {112 * 8192}\ns_lshl_b32 s66, s{sIDX}, 7\ns_add_u32 s65, s65, s66")
    a("s_waitcnt lgkmcnt(0)")
    a(f"s_load_dword s{sTAG}, s[26:27], 0")
    srd(SA, 4, 3584)
    for u in range(4): a(f"buffer_load_dwordx4 {V4(X+4*u)}, v7, {S(SA)}, 0 offen offset:{16*u}")
    srd(SB, 10, 448 * 8192)
    def dma(sr, voff, so, stride, lds0, win=None):
        for k in range(14):
            if win and k >= win: a(f"s_waitcnt vmcnt({win-1})")
            a(f"s_mov_b32 m0, {lds0 + 1024 * k}")
            a(f"buffer_load_dwordx4 v{voff}, {S(sr)}, s{so} offen {wnt} lds")
            if k < 13: a(f"s_add_u32 s{so}, s{so}, {8 * stride}")
    if not noq: dma(SB, 10, 65, 8192, WL0)
    srd(SW, 26, WS_USED)
    a(f"v_and_b32 v14, 3, v4\nv_lshrrev_b32 v15, 2, v4\ns_mul_i32 s65, s{sB}, 224")
    a(f"v_mul_u32_u24 v12, 896, v15\nv_add_u32 v12, s65, v12\nv_lshl_add_u32 v28, v5, 3, v12\nv_lshl_add_u32 v12, v5, 4, v12")
    a(f"v_mul_u32_u24 v30, 896, v14\nv_add_u32 v30, s65, v30\nv_lshl_add_u32 v31, v5, 3, v30\nv_lshl_add_u32 v30, v5, 4, v30")
    a(f"v_lshl_add_u32 v8, v5, 2, v14\nv_lshlrev_b32 v8, 4, v8\nv_lshl_add_u32 v8, v15, 16, v8")
    a(f"v_lshlrev_b32 v9, 5, v14\nv_lshl_add_u32 v9, v15, 3, v9\nv_lshl_add_u32 v9, v5, 7, v9")
    for t in range(1, 4): a(f"v_cmp_eq_u32 s[{66+2*t}:{67+2*t}], {t}, v14")
    a(f"v_lshlrev_b32 v15, 7, v15\nv_lshl_add_u32 v15, v14, 3, v15")
    a(f"v_lshl_add_u32 v13, v5, 10, v15\nv_lshl_add_u32 v29, v5, 9, v15")
    a("s_waitcnt vmcnt(14)" if not noq else "s_waitcnt vmcnt(0)")
    stamp(1)
    for k in range(16): a(f"v_lshlrev_b32 v{F+2*k}, 16, v{X+k}\nv_and_b32 v{F+2*k+1}, 0xffff0000, v{X+k}")
    a(f"v_pk_add_f32 v[14:15], {V2(F)}, {V2(F+2)}\nv_pk_add_f32 v[16:17], {V2(F+4)}, {V2(F+6)}")
    for k in range(4, 16, 2):
        a(f"v_pk_add_f32 v[14:15], v[14:15], {V2(F+2*k)}\nv_pk_add_f32 v[16:17], v[16:17], {V2(F+2*k+2)}")
    a("v_pk_add_f32 v[14:15], v[14:15], v[16:17]\nv_add_f32 v14, v14, v15")
    def rowsum(r):
        for sh in (8, 4, 2, 1): a(f"v_add_f32_dpp v{r}, v{r}, v{r} row_ror:{sh} {FULL}")
    rowsum(14)
    a(f"v_mul_f32 v18, {hex(f2u(-1.0 / 448))}, v14\nv_mov_b32 v19, v18")
    a("v_mov_b32 v14, 0\nv_mov_b32 v15, 0\nv_mov_b32 v16, 0\nv_mov_b32 v17, 0")
    for k in range(0, 16, 2):
        a(f"v_pk_add_f32 v[20:21], {V2(F+2*k)}, v[18:19]\nv_pk_add_f32 v[22:23], {V2(F+2*k+2)}, v[18:19]")
        a(f"v_pk_fma_f32 v[14:15], v[20:21], v[20:21], v[14:15]\nv_pk_fma_f32 v[16:17], v[22:23], v[22:23], v[16:17]")
    a("v_pk_add_f32 v[14:15], v[14:15], v[16:17]\nv_add_f32 v14, v14, v15\nv_cndmask_b32 v14, 0, v14, s[74:75]")
    rowsum(14)
    def rbf(r): a(f"v_cvt_pk_bf16_f32 v{r}, v{r}, v{r}\nv_and_b32 v{r}, 0xffff0000, v{r}")
    a(f"v_mul_f32 v14, {hex(f2u(1.0 / 448))}, v14"); rbf(14)
    a(f"v_add_f32 v14, {hex(f2u(1e-5))}, v14"); rbf(14)
    a("v_sqrt_f32 v14, v14"); rbf(14)
    a("v_rcp_f32 v16, v14\nv_mov_b32 v15, v14"); rbf(18)
    a("v_mov_b32 v17, v16\nv_mov_b32 v19, v18")
    for k in range(16):
        a(f"v_pk_add_f32 {V2(F+2*k)}, {V2(F+2*k)}, v[18:19]")
    for k in range(16):
        a(f"v_cvt_pk_bf16_f32 v{X+k}, v{F+2*k}, v{F+2*k+1}")
    for k in range(16): a(f"v_lshlrev_b32 v{F+2*k}, 16, v{X+k}\nv_and_b32 v{F+2*k+1}, 0xffff0000, v{X+k}")
    for k in range(16):
        t = 20 + 2 * (k & 3)
        a(f"v_pk_mul_f32 {V2(t)}, {V2(F+2*k)}, v[16:17]")
        a(f"v_pk_fma_f32 {V2(F+2*k)}, {V2(t)}, v[14:15], {V2(F+2*k)} neg_lo:[1,0,0] neg_hi:[1,0,0]")
        a(f"v_pk_fma_f32 {V2(t)}, {V2(F+2*k)}, v[16:17], {V2(t)}")
        a(f"v_cvt_pk_bf16_f32 v{X+k}, v{t}, v{t+1}")
    a("s_mov_b64 exec, s[74:75]")
    for u in range(4): a(f"ds_write_b128 v6, {V4(X+4*u)} offset:{XN + 16*u}")
    a("s_mov_b64 exec, -1")
    a("s_waitcnt lgkmcnt(0)")
    a(f"s_add_u32 s{sTAG}, s{sTAG}, 1")
    for k in range(3): a(f"ds_read_b128 {V4(AF+4*k)}, v12 offset:{XN + 64*k}")
    a(f"ds_read_b64 {V2(AF+12)}, v28 offset:{XN + 192}")
    a(f"v_mov_b32 v{TG}, s{sTAG}\nv_lshrrev_b32 v{TG+1}, 8, v{TG}\nv_lshrrev_b32 v{TG+2}, 16, v{TG}\nv_lshrrev_b32 v{TG+3}, 24, v{TG}\ns_movk_i32 s78, 0xff")
    a(f"v_lshlrev_b32 v10, 4, v0")
    a(f"s_lshl_b32 s66, s{sH}, 12\ns_lshl_b32 s67, s{sB}, 10\ns_add_u32 s66, s66, s67\ns_lshl_b32 s67, s{sJ}, 8\ns_add_u32 s66, s66, s67\ns_add_u32 s66, s66, {QMB}")
    a(f"s_lshl_b32 s67, s{sBH}, 12\ns_add_u32 s67, s67, {QMB}")
    a("s_waitcnt vmcnt(0)")
    stamp(2)
    def piece(af, transposed):
        for t in range(4):
            for k in range(3):
                o = WL0 + 4096 * k + 32 * t
                a(f"ds_read_b64_tr_b16 {V2(BF+14*t+4*k)}, v13 offset:{o}\nds_read_b64_tr_b16 {V2(BF+14*t+4*k+2)}, v13 offset:{o + 512}")
            a(f"ds_read_b64_tr_b16 {V2(BF+14*t+12)}, v29 offset:{WL0 + 12288 + 32 * t}")
        a("s_waitcnt lgkmcnt(0)")
        for k in range(3):
            for t in range(4):
                x, w = V4(af+4*k), V4(BF+14*t+4*k)
                a(f"v_mfma_f32_16x16x32_bf16 {V4(D+4*t)}, {w if transposed else x}, {x if transposed else w}, {'0' if k == 0 else V4(D+4*t)}")
        for t in range(4):
            x, w = V2(af+12), V2(BF+14*t+12)
            a(f"v_mfma_f32_16x16x16_bf16 {V4(D+4*t)}, {w if transposed else x}, {x if transposed else w}, {V4(D+4*t)}")
        for t in range(1, 4):
            for r in range(4):
                if transposed: a(f"v_cndmask_b32 v{D+r}, v{D+r}, v{D+4*t+r}, s[{66+2*t}:{67+2*t}]")
                else: a(f"v_mov_b32_dpp v{D+r}, v{D+4*t+r} {IDP} row_mask:{hex(1 << t)} bank_mask:0xf")
        for r in range(4): a(f"v_add_u32 v{D+r}, 0x80, v{D+r}")
        for r in range(4): a(f"v_bfi_b32 v{20+r}, s78, v{TG+r}, v{D+r}")
    piece(AF, True)
    if noq or not qst: a("s_branch L_pqok")
    a(f"buffer_store_dwordx4 v[20:23], v8, {S(SW)}, s66 offen sc1")
    stamp(3)
    for k in range(3): a(f"ds_read_b128 {V4(AF2+4*k)}, v30 offset:{XN + 64*k}")
    a(f"ds_read_b64 {V2(AF2+12)}, v31 offset:{XN + 192}")
    a(f"v_mov_b32 v16, 0\nv_mov_b32 v17, 0\nv_mov_b32 v18, 0\nv_mov_b32 v19, 0")
    a(f"s_mov_b32 exec_hi, 0xff\nds_write_b128 v10, v[16:19] offset:{HIMG}\ns_mov_b64 exec, -1")
    PQ = F
    def qload(k): a(f"buffer_load_dwordx4 {V4(PQ+4*k)}, v10, {S(SW)}, s67 offen offset:{1024 * k} sc1")
    def chk4(dst, src):
        a(f"v_xor_b32 v{dst}, v{src}, v{TG}")
        for t in range(1, 4): a(f"v_bitop3_b32 v{dst}, v{src+t}, v{TG+t}, v{dst} bitop3:0xbe")
        a(f"v_and_b32 v{dst}, s78, v{dst}")
    if sleepq: a(f"s_sleep {sleepq}")
    for k in range(4): qload(k)
    a(f"s_mov_b32 s{sCNT}, {spin}")
    a.label("L_pq")
    a("s_waitcnt vmcnt(0)")
    for k in range(4): chk4(X + k, PQ + 4 * k)
    a(f"v_or3_b32 v24, v{X}, v{X+1}, v{X+2}\nv_or_b32 v24, v24, v{X+3}")
    a("v_cmp_ne_u32 vcc, 0, v24\ns_cbranch_vccz L_pqok", drain=False)
    a(f"s_sleep 2")
    for k in range(4):
        a(f"v_cmp_ne_u32 vcc, 0, v{X+k}\ns_and_saveexec_b64 s[76:77], vcc\ns_cbranch_execz L_pqs{k}", drain=False)
        qload(k)
        a.label(f"L_pqs{k}", drain=False)
        a("s_mov_b64 exec, -1")
    a(f"s_sub_u32 s{sCNT}, s{sCNT}, 1\ns_cmp_lg_u32 s{sCNT}, 0\ns_cbranch_scc1 L_pq", drain=False)
    a.label("L_pqok", drain=False)
    for k in range(16): a(f"v_and_b32 v{PQ+k}, 0xffffff00, v{PQ+k}")
    for e in (0, 2):
        a(f"v_pk_add_f32 {V2(PQ+e)}, {V2(PQ+e)}, {V2(PQ+4+e)}\nv_pk_add_f32 {V2(PQ+8+e)}, {V2(PQ+8+e)}, {V2(PQ+12+e)}")
    for e in (0, 2): a(f"v_pk_add_f32 {V2(PQ+e)}, {V2(PQ+e)}, {V2(PQ+8+e)}")
    a(f"v_cvt_pk_bf16_f32 v24, v{PQ}, v{PQ+1}\nv_cvt_pk_bf16_f32 v25, v{PQ+2}, v{PQ+3}\nv_mov_b32 v17, 0")
    a(f"ds_write_b64 v9, v[24:25] offset:{QL}\nds_write_b32 v17, v{TG} offset:{TAGL}")
    a("s_waitcnt lgkmcnt(0)")
    stamp(4)
    if stamps: a(f"s_mov_b32 s92, s{sCNT}")
    a("s_barrier")
    a("s_setprio 0")
    if noffn: a("s_branch L_hend")
    a(f"s_cmp_ge_u32 s{sIDX}, 56\ns_cbranch_scc1 L_noffn")
    a(f"s_bitcmp1_b32 s{sIDX}, 0\ns_cselect_b32 s{SC_}, s18, s16\ns_cselect_b32 s{SC_+1}, s19, s17\ns_mov_b32 s{SC_+2}, {448 * 3584}\ns_mov_b32 s{SC_+3}, 0x20000")
    a(f"s_lshr_b32 s66, s{sIDX}, 1\ns_mul_i32 s65, s{sB}, {112 * 3584}\ns_lshl_b32 s67, s66, 7\ns_add_u32 s65, s65, s67")
    if fdma: dma(SC_, 11, 65, 3584, WL0, win=HW)
    a(f"s_and_b32 s67, s{sIDX}, 1\ns_lshl_b32 s67, s67, 2\ns_add_u32 s67, s67, s{sB}\ns_mul_i32 s67, s67, {1792 * 16}\ns_lshl_b32 s66, s66, 10\ns_add_u32 s66, s66, s67\ns_add_u32 s66, s66, {FMB}")
    a("s_waitcnt vmcnt(0)")
    piece(AF2, False)
    if fst: a(f"buffer_store_dwordx4 v[20:23], v10, {S(SW)}, s66 offen sc1")
    a.label("L_noffn")
    if not fpoll: a("s_branch L_hend")
    a(f"v_lshrrev_b32 v14, 3, v0\nv_and_b32 v15, 7, v0\nv_min_u32 v16, 6, v15")
    a(f"v_mul_u32_u24 v9, {1792 * 16}, v14\nv_lshl_add_u32 v9, v16, 4, v9")
    a(f"s_mul_i32 s67, s2, 112\ns_add_u32 s66, s67, {FMB}\ns_add_u32 s67, s67, {HMB}")
    a(f"s_mov_b32 s{sCNT}, {spin}")
    a.label("L_pf")
    a(f"s_sleep {sleepf}")
    a(f"buffer_load_dwordx4 v[32:35], v9, {S(SW)}, s66 offen sc1")
    a("s_waitcnt vmcnt(0)")
    chk4(24, 32)
    a("v_cmp_ne_u32 vcc, 0, v24\ns_cbranch_vccz L_pfok")
    a(f"s_sub_u32 s{sCNT}, s{sCNT}, 1\ns_cmp_lg_u32 s{sCNT}, 0\ns_cbranch_scc1 L_pf")
    a.label("L_pfok")
    for r in range(4): a(f"v_and_b32 v{32+r}, 0xffffff00, v{32+r}")
    for r in range(4): a(f"v_add_f32_dpp v{32+r}, v{32+r}, v{32+r} row_ror:8 {FULL}")
    for r in range(4): a(f"v_mov_b32 v{36+r}, v{32+r}")
    for r in range(4): a(f"v_permlane16_swap_b32 v{32+r}, v{36+r}")
    for r in range(4): a(f"v_add_f32 v{32+r}, v{32+r}, v{36+r}")
    for r in range(4): rbf(32 + r)
    for r in range(4): a(f"v_mov_b32 v{36+r}, v{32+r}")
    for r in range(4): a(f"v_permlane32_swap_b32 v{32+r}, v{36+r}")
    k1 = -2.0 * math.sqrt(2.0 / math.pi) * math.log2(math.e)
    for r in range(4):
        g, u, t = 32 + r, 36 + r, 40 + r
        a(f"v_mul_f32 v{t}, v{g}, v{g}\nv_mul_f32 v{t}, {hex(f2u(0.044715))}, v{t}\nv_fma_f32 v{t}, v{t}, v{g}, v{g}")
        a(f"v_mul_f32 v{t}, {hex(f2u(k1))}, v{t}\nv_exp_f32 v{t}, v{t}\nv_add_f32 v{t}, 1.0, v{t}\nv_rcp_f32 v{t}, v{t}\nv_mul_f32 v{g}, v{g}, v{t}")
        rbf(g)
        a(f"v_mul_f32 v{g}, v{g}, v{u}")
    a(f"v_cvt_pk_bf16_f32 v20, v32, v33\nv_cvt_pk_bf16_f32 v22, v34, v35\nv_mov_b32 v21, v{TG}\nv_mov_b32 v23, v{TG}")
    a("s_mov_b64 exec, 0x7f")
    a(f"buffer_store_dwordx4 v[20:23], v10, {S(SW)}, s67 offen sc1")
    a("s_mov_b32 exec_lo, -1\ns_mov_b32 exec_hi, 0x00ffffff")
    a(f"s_lshr_b32 s66, s2, 3\ns_mul_i32 s66, s66, {56 * 16}\ns_add_u32 s66, s66, {HMB}\nv_lshlrev_b32 v9, 1, v0")
    a(f"s_mov_b32 s{sCNT}, {spin}")
    a.label("L_ph")
    a(f"s_sleep {sleepf}")
    a(f"buffer_load_dwordx4 v[32:35], v10, {S(SW)}, s66 offen sc1")
    a("s_waitcnt vmcnt(0)")
    a(f"v_xor_b32 v24, v33, v{TG}\nv_bitop3_b32 v24, v35, v{TG}, v24 bitop3:0xbe")
    a("v_cmp_ne_u32 vcc, 0, v24\ns_cbranch_vccz L_phok")
    a(f"s_sub_u32 s{sCNT}, s{sCNT}, 1\ns_cmp_lg_u32 s{sCNT}, 0\ns_cbranch_scc1 L_ph")
    a.label("L_phok")
    a(f"ds_write_b16 v9, v32 offset:{HIMG}\nds_write_b16_d16_hi v9, v32 offset:{HIMG + HROW}")
    a(f"ds_write_b16 v9, v34 offset:{HIMG + 2 * HROW}\nds_write_b16_d16_hi v9, v34 offset:{HIMG + 3 * HROW}")
    a("s_waitcnt lgkmcnt(0)")
    a.label("L_hend")
    a("s_mov_b64 exec, -1")
    stamp(5)
    pad("H")
    dump_stamps(7)
    a.label("L_end")
    a("s_endpgm")
    a.raw('.section .rodata,"a"'); a.raw(".p2align 6"); a.raw(f".amdhsa_kernel {NAME}")
    a.raw("  .amdhsa_next_free_vgpr 256"); a.raw("  .amdhsa_next_free_sgpr 102"); a.raw("  .amdhsa_accum_offset 256")
    a.raw("  .amdhsa_group_segment_fixed_size 0"); a.raw("  .amdhsa_kernarg_size 96"); a.raw("  .amdhsa_user_sgpr_count 2")
    a.raw("  .amdhsa_user_sgpr_kernarg_segment_ptr 1"); a.raw("  .amdhsa_system_sgpr_workgroup_id_x 1"); a.raw(".end_amdhsa_kernel")
    return a.text()

if __name__ == "__main__":
    out = sys.argv[1]
    kw = eval("dict(" + (sys.argv[2] if len(sys.argv) > 2 else "") + ")")
    open(out, "w").write(gen(**kw))
```

```python
import sys, struct, math
sys.path.insert(0, "gen")
from asmlib import Asm

NAME = "parallel_sum__mha_block_cached__geglu_ffn__decode_kernel"
HEADER = open("parallel_sum__mha_block_cached__geglu_ffn__decode.s.ref").read().split("; Override launch")[0]

def f2u(x): return struct.unpack("<I", struct.pack("<f", x))[0]

QMB = 0x10000
FMB = QMB + 64 * 4096
HMB = FMB + 8 * 1792 * 16
MB1 = 0xA0000
MB2 = 0x120000
TSB = 0x400000
WS_USED = TSB + 0x10000
assert HMB + 1792 * 16 <= MB1
XN, QL, TAGL, ML, HIMG, AIMG, OP, SC = 0, 3584, 4096, 4128, 4224, 4864, 6144, 10240
HROW, AROW = 144, 272
WL0 = SC + 16384
WL1 = WL0 + 14336
WL2 = WL1 + 16384
LDS_BYTES = WL2 + 7168

FULL = "row_mask:0xf bank_mask:0xf"
IDP = "quad_perm:[0,1,2,3]"

def gen(W=5, NP=5, nt="nt", wnt="nt", stamps=False, warm=True, sleep1=1, sleep2=1, sleepq=30, spin=1 << 16,
        padto=0, padwg=None, padstamp=None, HW=4, noffn=0, noq=0, nowo=0, touch=1, sleepf=60, fdma=1, fst=1, fpoll=1, qst=1, pat=2, Wend=None, nend=0, W0=None, osc='', scr=1):
    a = Asm()
    a.raw(HEADER.rstrip("\n"))
    a.raw(f"; @launch grid=(256,1,1) block=(320,1,1) lds={LDS_BYTES}")
    a.raw('.amdgcn_target "amdgcn-amd-amdhsa--gfx950"')
    a.raw(".text"); a.raw(f".globl {NAME}"); a.raw(".p2align 8"); a.raw(f".type {NAME},@function")
    a.raw(f"{NAME}:")
    SK, SV, SW, SA, SB, SC_, SD = 28, 32, 36, 40, 44, 48, 52
    sB, sH, sJ, sIDX, sBH, sTAG, sCNT, sKO, sVO, sWv, sKG, sCG = 56, 57, 58, 59, 60, 61, 62, 63, 64, 72, 73, 79
    def srd(r, ptr, size):
        a(f"s_mov_b32 s{r}, s{ptr}\ns_mov_b32 s{r+1}, s{ptr+1}\ns_mov_b32 s{r+2}, {size}\ns_mov_b32 s{r+3}, 0x20000")
    def S(r): return f"s[{r}:{r+3}]"
    def V4(r): return f"v[{r}:{r+3}]"
    def V2(r): return f"v[{r}:{r+1}]"
    def stamp(k):
        if stamps or padstamp is not None:
            a(f"s_memrealtime s[{80+2*k}:{81+2*k}]")
    def dump_stamps(n):
        if not stamps: return
        a("s_waitcnt lgkmcnt(0)")
        a("s_mov_b64 exec, 1")
        a(f"s_mul_i32 s65, s2, 5\ns_add_u32 s65, s65, s3\ns_mul_i32 s65, s65, 48\ns_add_u32 s65, s65, {TSB}")
        a("v_mov_b32 v1, 0")
        for k in range(n):
            a(f"v_mov_b32 v2, s{80+2*k}")
            a(f"buffer_store_dword v2, v1, {S(SW)}, s65 offen offset:{4*k}")
        a(f"v_mov_b32 v2, s{sCNT}\nbuffer_store_dword v2, v1, {S(SW)}, s65 offen offset:44")
        a("s_waitcnt vmcnt(0)")
    def pad(role):
        if not padto: return
        r, k = padstamp if padstamp is not None else ("S", 0)
        if r != role: return
        if padwg is not None: a(f"s_cmp_lg_u32 s2, {padwg}\ns_cbranch_scc1 L_end")
        a.label(f"L_pad{role}")
        a(f"s_sleep 1\ns_memrealtime s[98:99]\ns_waitcnt lgkmcnt(0)\ns_sub_u32 s98, s98, s{80+2*k}\ns_cmp_lt_u32 s98, {padto}\ns_cbranch_scc1 L_pad{role}")

    a("s_cmp_ge_u32 s2, 256\ns_cbranch_scc1 L_end")
    a("s_load_dwordx16 s[4:19], s[0:1], 0\ns_load_dwordx8 s[20:27], s[0:1], 64")
    stamp(0)
    a("v_lshrrev_b32 v1, 6, v0\nv_and_b32 v0, 63, v0\nv_readfirstlane_b32 s3, v1")
    if pat >= 3:
        a("s_bfe_u32 s65, s2, 0x20003\ns_and_b32 s66, s2, 7\ns_lshl_b32 s66, s66, 2\ns_and_b32 s2, s2, 0xe0\ns_or_b32 s2, s2, s65\ns_or_b32 s2, s2, s66")
    a(f"s_lshr_b32 s{sB}, s2, 6\ns_lshr_b32 s{sBH}, s2, 2\ns_and_b32 s{sH}, s{sBH}, 15\ns_and_b32 s{sJ}, s2, 3\ns_and_b32 s{sIDX}, s2, 63")
    a(f"s_lshr_b32 s{sKG}, s2, 3\ns_add_u32 s{sCG}, s2, s{sKG}\ns_and_b32 s{sCG}, s{sCG}, 7")
    a("v_and_b32 v4, 15, v0\nv_lshrrev_b32 v5, 4, v0")
    a("s_cmp_eq_u32 s3, 0\ns_cbranch_scc1 L_helper")

    vKO, vVO, vSC, vMAX, vL, vC, vMC, vS = 1, 2, 3, 6, 7, 28, 29, 30
    vJ, vG = 4, 5
    MASK, OACC, BB, QF, DA, TMP, R = 8, 12, 20, 32, 64, 84, 96
    def ring(tile, u): return R + 32 * tile + 4 * u
    a(f"s_sub_u32 s{sWv}, s3, 1")
    kb, wb = {0: ((9, 10), (11, 12)), 1: ((12, 13), (10, 11)), 2: ((12, 13), (14, 15)), 3: ((15, 13), (11, 14)), 4: ((15, 9), (11, 13))}[pat]
    sM = 100
    a(f"v_and_b32 v{TMP+1}, 3, v{vJ}\nv_lshlrev_b32 v{TMP+1}, 4, v{TMP+1}")
    a(f"v_lshl_add_u32 v{TMP+1}, v{vG}, 6, v{TMP+1}")
    a(f"v_bfe_u32 v{TMP}, v0, 2, 1\nv_lshl_add_u32 v{vKO}, v{TMP}, {kb[0]}, v{TMP+1}\nv_bfe_u32 v{TMP}, v0, 3, 1\nv_lshl_add_u32 v{vKO}, v{TMP}, {kb[1]}, v{vKO}")
    a(f"s_lshl_b32 s{sKO}, s2, 19\ns_and_b32 s65, s{sWv}, 1\ns_lshl_b32 s65, s65, {wb[0]}\ns_add_u32 s{sKO}, s{sKO}, s65")
    a(f"s_lshr_b32 s65, s{sWv}, 1\ns_lshl_b32 s65, s65, {wb[1]}\ns_add_u32 s{sKO}, s{sKO}, s65")
    if pat >= 3:
        if scr:
            a(f"s_mul_i32 s65, s{sBH}, 0x9E3779B1\ns_and_b32 s{sM}, s65, 0x300000\ns_lshr_b32 s{sM}, s{sM}, 3\ns_or_b32 s{sM}, s{sM}, 0x10000")
            a(f"s_lshr_b32 s65, s65, 6\ns_and_b32 s65, s65, 0x70000\ns_or_b32 s{sKO}, s{sKO}, s65")
        else:
            a(f"s_mov_b32 s{sM}, 0x10000")
    a(f"s_mov_b32 s{sVO}, s{sKO}")
    a(f"v_lshlrev_b32 v{vVO}, 4, v{vJ}\nv_bfe_u32 v{TMP}, v0, 4, 1\nv_lshl_add_u32 v{vVO}, v{TMP}, {kb[0]}, v{vVO}\nv_bfe_u32 v{TMP}, v0, 5, 1\nv_lshl_add_u32 v{vVO}, v{TMP}, {kb[1]}, v{vVO}")
    a("s_waitcnt lgkmcnt(0)")
    srd(SK, 6, 1 << 27)
    vm = []
    def issue(kind, reg, u, tagid):
        sr, vo, so = (SK, vKO, sKO) if kind == "K" else (SV, vVO, sVO)
        o = {0: 256 * (u & 1), 1: 256 * (u & 3), 2: 256 * u, 3: 256 * u, 4: 256 * (u & 1) + 512 * (u & 2)}[pat]
        off = f" offset:{o}" if o else ""
        a(f"buffer_load_dwordx4 {V4(reg)}, v{vo}, {S(sr)}, s{so} offen{off} {nt}")
        if pat == 0 and u & 1: a(f"s_add_u32 s{so}, s{so}, 8192")
        if pat == 1 and (u & 3) == 3: a(f"s_add_u32 s{so}, s{so}, 16384")
        if pat == 4 and (u & 3) == 3: a(f"s_xor_b32 s{so}, s{so}, 0x4000")
        if pat >= 3 and u == 7:
            a(f"s_xor_b32 s{so}, s{so}, 0x1000\ns_bitcmp1_b32 s{so}, 12\ns_cselect_b32 s65, 0, s{sM}\ns_add_u32 s65, s65, s{so}\ns_and_b32 s65, s65, 0x70000\ns_andn2_b32 s{so}, s{so}, 0x70000\ns_or_b32 s{so}, s{so}, s65")
        if pat == 2 and u == 7:
            a(f"s_bitcmp1_b32 s{so}, 11\ns_cselect_b32 s65, {65536 - 4096}, 0\ns_add_u32 s{so}, s{so}, s65\ns_add_u32 s{so}, s{so}, 2048")
        vm.append(tagid)
    def wait_for(tagid):
        if tagid not in vm: return
        n = len(vm) - 1 - vm.index(tagid)
        assert n < 64
        a(f"s_waitcnt vmcnt({n})")
    nload = [0]
    curW = [W]
    def throttle_issue(kind, reg, u):
        n = nload[0]
        wait_for(("s", n - curW[0]))
        issue(kind, reg, u, ("s", n)); nload[0] += 1
    W0 = W0 or W
    curW[0] = W0
    for n in range(W0):
        throttle_issue("K", ring(n // 8, n % 8), n % 8)
    curW[0] = W
    if warm:
        a(f"s_cmp_lg_u32 s3, 1\ns_cbranch_scc1 L_nowarm")
        a(f"s_getpc_b64 s[66:67]\nv_lshlrev_b32 v{TMP+2}, 7, v0")
        a(f"global_load_dword v{TMP+3}, v{TMP+2}, s[66:67]")
        a.label("L_nowarm")
    srd(SV, 8, 1 << 27); srd(SW, 26, WS_USED); srd(SC_, 22, 3584); srd(SD, 4, 3584)
    srd(SA, 12, 4096 * 896); srd(SB, 20, 1792 * 896)
    for k in range(32): a(f"v_mov_b32 v{QF+k}, 0")
    for k in range(8): a(f"v_mov_b32 v{OACC+k}, 0")
    a(f"v_mov_b32 v{vMAX}, 0xff800000\nv_mov_b32 v{vL}, 0\nv_mov_b32 v{vC}, {hex(f2u(math.log2(math.e) / 16))}")
    a(f"v_and_b32 v{TMP+4}, 1, v{vJ}\nv_lshlrev_b32 v{TMP+4}, 4, v{TMP+4}\nv_mov_b32 v{TMP+5}, 0xffff\nv_lshlrev_b32 v{TMP+4}, v{TMP+4}, v{TMP+5}")
    a(f"v_bfe_u32 v{TMP+5}, v{vJ}, 1, 2")
    for w in range(4):
        a(f"v_cmp_eq_u32 vcc, {w}, v{TMP+5}\nv_cndmask_b32 v{MASK+w}, 0, v{TMP+4}, vcc")
    a(f"s_lshl_b32 s65, s{sWv}, 12\ns_add_u32 s65, s65, {SC}\nv_lshl_add_u32 v{vSC}, v0, 2, s65")
    for n in range(W0, 8 * NP):
        throttle_issue("K", ring(n // 8, n % 8), n % 8)
    stamp(1)
    a("s_barrier")
    stamp(2)
    for t in range(4):
        m = 0x000F000F << (4 * t)
        a(f"s_mov_b32 exec_lo, {hex(m)}\ns_mov_b32 exec_hi, {hex(m)}")
        for half in range(2):
            a(f"ds_read_b128 {V4(QF + 4 * (2 * t + half))}, v{TMP+1} offset:{QL + 256 * half}")
    a("s_mov_b64 exec, -1")
    a(f"v_mov_b32 v{TMP}, 0\nds_read_b32 v{TMP+2}, v{TMP} offset:{TAGL}")
    a("s_waitcnt lgkmcnt(0)")
    a(f"v_readfirstlane_b32 s{sTAG}, v{TMP+2}")

    def consK(reg, u, d):
        c = "0" if u == 0 else V4(d)
        a(f"v_mfma_f32_16x16x32_bf16 {V4(d)}, {V4(reg)}, {V4(QF + 4 * u)}, {c}")
    def extract(ds, off0):
        for k, d in enumerate(ds): a(f"v_mov_b32_dpp v{TMP+k}, v{d} quad_perm:[0,0,0,0] {FULL}")
        for c in range(1, 4):
            for k, d in enumerate(ds): a(f"v_add_f32_dpp v{TMP+k}, v{d+c}, v{TMP+k} quad_perm:[{c},{c},{c},{c}] {FULL}")
        for k, d in enumerate(ds): a(f"v_cvt_pk_bf16_f32 v{TMP+k}, v{TMP+k}, v{TMP+k}")
        for k, d in enumerate(ds): a(f"v_and_b32 v{TMP+k}, 0xffff0000, v{TMP+k}")
        for k, d in enumerate(ds):
            a(f"ds_write_b32 v{vSC}, v{TMP+k} offset:{off0 + 256 * k}")
            a(f"v_max_f32 v{vMAX}, v{vMAX}, v{TMP+k}")
        a(f"v_add_u32 v{vSC}, {256 * len(ds)}, v{vSC}")
    for u in range(8):
        consK(ring(0, u), u, DA)
        throttle_issue("K", ring(0, u), u)
        for T in range(1, NP): consK(ring(T, u), u, DA + 4 * T)
    extract([DA + 4 * T for T in range(NP)], 0)

    T0 = R + 32
    vX, vXO, vOPW, vMLW, vOPR, vZ, vL16, vST2, vTR, vTR2, vTRD, vTRD2, vHA, vAR, vAW, vWO, vWD = range(T0, T0 + 17)
    vML = T0 + 18
    G = T0 + 20
    GR = T0 + 36
    P1 = T0 + 40
    AH = T0 + 56
    AO = T0 + 64
    BW = T0 + 80
    BD = T0 + 96
    Y = T0 + 104
    E = T0 + 108
    def tail_addr():
        a(f"s_lshl_b32 s65, s{sWv}, 10\ns_add_u32 s65, s65, {OP}\nv_lshl_add_u32 v{vOPW}, v0, 4, s65")
        a(f"s_lshl_b32 s65, s{sWv}, 3\ns_add_u32 s65, s65, {ML}\nv_mov_b32 v{vMLW}, s65")
        a(f"s_lshl_b32 s65, s{sWv}, 8\ns_add_u32 s65, s65, {OP}\nv_lshl_add_u32 v{vOPR}, v0, 3, s65")
        a(f"v_mov_b32 v{vZ}, 0\nv_lshlrev_b32 v{vL16}, 4, v0\nv_mov_b32 v{GR+3}, s{sTAG}")
        a(f"s_lshl_b32 s70, s2, 11\ns_lshl_b32 s65, s{sWv}, 9\ns_add_u32 s70, s70, s65\ns_add_u32 s70, s70, {MB1}")
        a(f"s_lshl_b32 s71, s{sWv}, 17\ns_lshr_b32 s65, s{sKG}, 1\ns_lshl_b32 s65, s65, 13\ns_add_u32 s71, s71, s65")
        a(f"s_and_b32 s65, s{sKG}, 1\ns_lshl_b32 s65, s65, 10\ns_add_u32 s71, s71, s65\ns_add_u32 s71, s71, {MB1}\ns_add_u32 s74, s71, 4096")
        a(f"v_lshrrev_b32 v{E}, 3, v0\nv_and_b32 v{E+1}, 7, v0\nv_and_b32 v{E+2}, 2, v{E}\nv_xor_b32 v{E+1}, v{E+1}, v{E+2}\nv_lshlrev_b32 v{E+1}, 4, v{E+1}")
        a(f"v_and_b32 v{E+2}, 3, v{E}\nv_lshlrev_b32 v{E+2}, 3, v{E+2}\nv_lshrrev_b32 v{E+3}, 2, v{E}\nv_add_u32 v{E+2}, v{E+2}, v{E+3}")
        a(f"v_mul_u32_u24 v{vWO}, 896, v{E+2}\nv_mul_u32_u24 v{vWD}, 896, v{E}")
        a(f"s_and_b32 s65, s{sWv}, 1\ns_lshl_b32 s65, s65, 6\nv_xor_b32 v{E+1}, s65, v{E+1}")
        a(f"v_add_u32 v{vWO}, v{vWO}, v{E+1}\nv_add_u32 v{vWD}, v{vWD}, v{E+1}")
        a(f"s_lshr_b32 s66, s{sKG}, 1\ns_lshl_b32 s66, s66, 8\ns_and_b32 s65, s{sKG}, 1\ns_lshl_b32 s65, s65, 6\ns_add_u32 s66, s66, s65")
        a(f"s_lshl_b32 s65, s{sWv}, 1\ns_add_u32 s66, s66, s65\ns_mul_i32 s66, s66, 896\ns_lshl_b32 s65, s{sCG}, 7\ns_add_u32 s66, s66, s65")
        a(f"s_mul_i32 s67, s{sKG}, 56\ns_lshl_b32 s68, s{sWv}, 3\ns_add_u32 s67, s67, s68\ns_mul_i32 s67, s67, 896\ns_add_u32 s67, s67, s65")
        a(f"s_lshl_b32 s75, s{sWv}, 10")
        a(f"v_lshrrev_b32 v{E}, 2, v{vJ}\nv_bfe_u32 v{E+1}, v{vJ}, 1, 1\ns_lshl_b32 s65, s{sWv}, 1\nv_add_u32 v{E+1}, s65, v{E+1}")
        a(f"v_and_b32 v{E+2}, 2, v{E}\nv_xor_b32 v{E+1}, v{E+1}, v{E+2}")
        a(f"v_and_b32 v{E+3}, 1, v{vJ}\nv_lshlrev_b32 v{E+3}, 3, v{E+3}\nv_lshl_add_u32 v{E+3}, v{E}, 7, v{E+3}")
        a(f"v_and_b32 v{E+2}, 1, v{vG}\nv_lshlrev_b32 v{E+2}, 2, v{E+2}\nv_xor_b32 v{E+4}, v{E+1}, v{E+2}")
        a(f"v_lshl_add_u32 v{vTR}, v{E+4}, 4, v{E+3}\nv_lshl_add_u32 v{vTR}, v{vG}, 10, v{vTR}")
        a(f"v_min_u32 v{E+5}, 2, v{vG}\nv_and_b32 v{E+2}, 1, v{E+5}\nv_lshlrev_b32 v{E+2}, 2, v{E+2}\nv_xor_b32 v{E+4}, v{E+1}, v{E+2}")
        a(f"v_lshl_add_u32 v{vTRD}, v{E+4}, 4, v{E+3}\nv_lshl_add_u32 v{vTRD}, v{E+5}, 10, v{vTRD}")
        a(f"v_mul_u32_u24 v{vHA}, {HROW}, v{E}\nv_lshl_add_u32 v{vHA}, v{vG}, 4, v{vHA}")
        a(f"v_mul_u32_u24 v{vAR}, {AROW}, v{E}\nv_lshl_add_u32 v{vAR}, v{vG}, 4, v{vAR}")
        a(f"s_mul_i32 s65, s{sWv}, {AROW}\ns_add_u32 s65, s65, {AIMG}\nv_lshl_add_u32 v{vAW}, v0, 2, s65")
        a(f"v_lshlrev_b32 v{vST2}, 3, v{vJ}\nv_lshl_add_u32 v{vST2}, v{vG}, 12, v{vST2}")
        a(f"s_lshl_b32 s68, s{sCG}, 2\ns_add_u32 s68, s68, s{sWv}\ns_lshl_b32 s68, s68, 14\ns_lshl_b32 s65, s{sKG}, 7\ns_add_u32 s68, s68, s65\ns_add_u32 s68, s68, {MB2}")
        a(f"s_and_b32 s78, s{sKG}, 0xfc\ns_add_u32 s78, s78, s{sWv}\ns_lshl_b32 s69, s78, 4\ns_lshl_b32 s78, s78, 2\ns_and_b32 s65, s{sKG}, 3\ns_add_u32 s78, s78, s65")
        a(f"s_lshl_b32 s78, s78, 12\ns_add_u32 s78, s78, {MB2}\ns_mul_i32 s65, s65, 448\ns_add_u32 s69, s69, s65\ns_lshl_b32 s69, s69, 1")
        a(f"v_and_b32 v{E}, 7, v0\nv_and_b32 v{E+1}, 1, v{vG}\nv_lshlrev_b32 v{vXO}, 2, v{E}\nv_lshl_add_u32 v{vXO}, v{E+1}, 1, v{vXO}")
    tail_addr()

    def iterK(nextkind):
        for u in range(8):
            consK(ring(0, u), u, DA)
            throttle_issue(nextkind, ring(0, u), u)
        extract([DA], 0)
    a(f"s_mov_b32 s{sCNT}, {15 - NP}")
    a.label("L_kk")
    iterK("K")
    a(f"s_sub_u32 s{sCNT}, s{sCNT}, 1\ns_cmp_lg_u32 s{sCNT}, 0\ns_cbranch_scc1 L_kk")
    iterK("V")
    stamp(3)
    a(f"v_subrev_u32 v{vSC}, 4096, v{vSC}")
    a(f"ds_read_b32 v{vS}, v{vSC}")
    a(f"v_max_f32_dpp v{vMAX}, v{vMAX}, v{vMAX} row_ror:4 {FULL}")
    a(f"v_max_f32_dpp v{vMAX}, v{vMAX}, v{vMAX} row_ror:8 {FULL}")
    a(f"v_max_f32_dpp v{vMAX}, v{vMAX}, v{vMAX} row_bcast:15 row_mask:0xa bank_mask:0xf")
    a(f"v_max_f32_dpp v{vMAX}, v{vMAX}, v{vMAX} row_bcast:31 row_mask:0xc bank_mask:0xf")
    a(f"v_readlane_b32 s65, v{vMAX}, 63")
    a(f"v_mul_f32 v{vMC}, s65, v{vC}")
    vP = TMP
    def last_extra():
        if not nowo:
            a(f"s_cmp_eq_u32 s{sCG}, 7\ns_cselect_b32 s66, 0x40000000, s66\ns_cselect_b32 s67, 0x40000000, s67")
            for c in range(4):
                a(f"s_add_u32 s65, s66, {(128 * (c & 1) + 32 * (c >> 1)) * 896}\ns_add_u32 m0, s75, {WL1 + 4096 * c}")
                a(f"buffer_load_dwordx4 v{vWO}, {S(SA)}, s65 offen {wnt} lds"); vm.append(("wo", c))
            a(f"s_add_u32 m0, s75, {WL2}")
            a(f"buffer_load_dwordx4 v{vWD}, {S(SB)}, s67 offen {wnt} lds"); vm.append(("wd", 0))
            a(f"s_cmp_eq_u32 s{sWv}, 3\ns_cselect_b32 s65, 0, {32 * 896}\ns_cselect_b32 s76, 0, 4096\ns_add_u32 s67, s67, s65\ns_add_u32 s76, s76, s75\ns_add_u32 m0, s76, {WL2}")
            a(f"buffer_load_dwordx4 v{vWD}, {S(SB)}, s67 offen {wnt} lds"); vm.append(("wd", 1))
        a(f"buffer_load_ushort v{vX}, v{vXO}, {S(SD)}, s69 offen"); vm.append("x")
        if touch:
            a(f"buffer_load_ushort v{E+7}, v{vXO}, {S(SC_)}, s69 offen"); vm.append("o")
        a(f"v_add_f32_dpp v{vL}, v{vL}, v{vL} row_ror:4 {FULL}")
        a(f"v_add_f32_dpp v{vL}, v{vL}, v{vL} row_ror:8 {FULL}")
        a(f"v_add_f32_dpp v{vL}, v{vL}, v{vL} row_bcast:15 row_mask:0xa bank_mask:0xf")
        a(f"v_add_f32_dpp v{vL}, v{vL}, v{vL} row_bcast:31 row_mask:0xc bank_mask:0xf")
        a(f"v_mov_b32 v{vML}, v{vMC}\nv_mov_b32 v{vML+1}, v{vL}")
        a("s_mov_b32 exec_lo, 0\ns_mov_b32 exec_hi, 0x80000000")
        a(f"ds_write_b64 v{vMLW}, {V2(vML)}")
        a("s_mov_b64 exec, -1")
    def iterV(last):
        a("s_waitcnt lgkmcnt(0)")
        a(f"v_fma_f32 v{vP}, v{vS}, v{vC}, -v{vMC}")
        a(f"v_exp_f32 v{vP}, v{vP}")
        if not last:
            a(f"v_add_u32 v{vSC}, 256, v{vSC}\nds_read_b32 v{vS}, v{vSC}")
        a(f"v_add_f32 v{vL}, v{vL}, v{vP}")
        a(f"v_cvt_pk_bf16_f32 v{vP}, v{vP}, v{vP}")
        if last: last_extra()
        base = nload[0] - 8
        for u in range(8):
            t, half = u >> 1, u & 1
            b = BB + 4 * (t & 1)
            if half == 0:
                for w in range(4): a(f"v_and_b32_dpp v{b+w}, v{vP}, v{MASK+w} row_newbcast:{4*t} {FULL}")
            if last: wait_for(("s", base + u))
            a(f"v_mfma_f32_16x16x32_bf16 {V4(OACC + 4 * half)}, {V4(ring(0, u))}, {V4(b)}, {V4(OACC + 4 * half)}")
            if not last: throttle_issue("V", ring(0, u), u)
    a(f"s_mov_b32 s{sCNT}, {15 - nend}")
    a.label("L_vv")
    iterV(False)
    a(f"s_sub_u32 s{sCNT}, s{sCNT}, 1\ns_cmp_lg_u32 s{sCNT}, 0\ns_cbranch_scc1 L_vv")
    if nend:
        curW[0] = Wend
        a(f"s_mov_b32 s{sCNT}, {nend}")
        a.label("L_vv2")
        iterV(False)
        a(f"s_sub_u32 s{sCNT}, s{sCNT}, 1\ns_cmp_lg_u32 s{sCNT}, 0\ns_cbranch_scc1 L_vv2")
    iterV(True)
    stamp(4)
    for r in range(4): a(f"v_mov_b32_dpp v{OACC+r}, v{OACC+4+r} {IDP} row_mask:0xf bank_mask:0xc")
    a(f"ds_write_b128 v{vOPW}, {V4(OACC)}")
    a("s_waitcnt lgkmcnt(0)")
    a("s_barrier")
    a("s_mov_b32 exec_hi, 0")
    a(f"ds_read_b128 {V4(G)}, v{vZ} offset:{ML}\nds_read_b128 {V4(G+4)}, v{vZ} offset:{ML+16}")
    for w in range(4): a(f"ds_read_b64 {V2(G+8+2*w)}, v{vOPR} offset:{1024*w}")
    a("s_waitcnt lgkmcnt(4)")
    ms, ls = [G, G+2, G+4, G+6], [G+1, G+3, G+5, G+7]
    a(f"v_max3_f32 v{E+4}, v{ms[0]}, v{ms[1]}, v{ms[2]}\nv_max_f32 v{E+4}, v{E+4}, v{ms[3]}")
    for k in range(4): a(f"v_sub_f32 v{ms[k]}, v{ms[k]}, v{E+4}")
    for k in range(4): a(f"v_exp_f32 v{ms[k]}, v{ms[k]}")
    a(f"v_mul_f32 v{E+5}, v{ms[0]}, v{ls[0]}")
    for k in range(1, 4): a(f"v_fmac_f32 v{E+5}, v{ms[k]}, v{ls[k]}")
    a(f"v_rcp_f32 v{E+6}, v{E+5}\nv_log_f32 v{E+5}, v{E+5}")
    a("s_waitcnt lgkmcnt(0)")
    a(f"v_pk_mul_f32 {V2(GR)}, {V2(G+8)}, {V2(ms[0])} op_sel_hi:[1,0]")
    for k in range(1, 4): a(f"v_pk_fma_f32 {V2(GR)}, {V2(G+8+2*k)}, {V2(ms[k])}, {V2(GR)} op_sel_hi:[1,0,1]")
    a(f"v_add_f32 v{GR+2}, v{E+4}, v{E+5}")
    a(f"v_pk_mul_f32 {V2(GR)}, {V2(GR)}, {V2(E+6)} op_sel_hi:[1,0]")
    a(f"buffer_store_dwordx4 {V4(GR)}, v{vL16}, {S(SW)}, s70 offen sc1")
    a("s_mov_b64 exec, -1")
    stamp(8)
    a(f"s_mov_b32 s{sCNT}, {spin}")
    a(f"s_cmp_eq_u32 s{sCG}, 7\ns_cbranch_scc1 L_reduce", drain=False)
    def ld1(k): a(f"buffer_load_dwordx4 {V4(P1+4*k)}, v{vL16}, {S(SW)}, s{71 if k < 2 else 74} offen{' offset:2048' if k & 1 else ''} sc1")
    for k in range(4): ld1(k)
    a(f"ds_read_b128 {V4(AH)}, v{vHA} offset:{HIMG}\nds_read_b128 {V4(AH+4)}, v{vHA} offset:{HIMG+64}")
    a.label("L_p1", drain=False)
    a("s_waitcnt vmcnt(0)")
    for k in range(4): a(f"v_cmp_ne_u32 s[76:77], s{sTAG}, v{P1+3}" if k == 0 else f"v_cmp_ne_u32 vcc, s{sTAG}, v{P1+4*k+3}\ns_or_b64 s[76:77], s[76:77], vcc")
    a("s_cbranch_scc0 L_p1ok", drain=False)
    if sleep1: a(f"s_sleep {sleep1}")
    for k in range(4):
        a(f"v_cmp_ne_u32 vcc, s{sTAG}, v{P1+4*k+3}\ns_cbranch_vccz L_p1s{k}", drain=False)
        ld1(k)
        a.label(f"L_p1s{k}", drain=False)
    a(f"s_sub_u32 s{sCNT}, s{sCNT}, 1\ns_cmp_lg_u32 s{sCNT}, 0\ns_cbranch_scc1 L_p1", drain=False)
    a.label("L_p1ok", drain=False)
    stamp(5)
    lam = [P1+2, P1+6, P1+10, P1+14]
    a(f"v_max3_f32 v{E+4}, v{lam[0]}, v{lam[1]}, v{lam[2]}\nv_max_f32 v{E+4}, v{E+4}, v{lam[3]}")
    for k in range(4): a(f"v_sub_f32 v{lam[k]}, v{lam[k]}, v{E+4}")
    for k in range(4): a(f"v_exp_f32 v{lam[k]}, v{lam[k]}")
    a(f"v_add_f32 v{E+5}, v{lam[0]}, v{lam[1]}\nv_pk_mul_f32 {V2(G)}, {V2(P1)}, {V2(lam[0])} op_sel_hi:[1,0]\nv_add_f32 v{E+6}, v{lam[2]}, v{lam[3]}")
    a(f"v_pk_fma_f32 {V2(G)}, {V2(P1+4)}, {V2(lam[1])}, {V2(G)} op_sel_hi:[1,0,1]\nv_add_f32 v{E+6}, v{E+5}, v{E+6}")
    a(f"v_pk_fma_f32 {V2(G)}, {V2(P1+8)}, {V2(lam[2])}, {V2(G)} op_sel_hi:[1,0,1]\nv_rcp_f32 v{E+6}, v{E+6}")
    a(f"v_pk_fma_f32 {V2(G)}, {V2(P1+12)}, {V2(lam[3])}, {V2(G)} op_sel_hi:[1,0,1]")
    a(f"v_pk_mul_f32 {V2(G)}, {V2(G)}, {V2(E+6)} op_sel_hi:[1,0]")
    a(f"v_cvt_pk_bf16_f32 v{G}, v{G}, v{G+1}")
    a(f"ds_write_b32 v{vAW}, v{G}")
    a("s_waitcnt lgkmcnt(0)")
    a("s_barrier")
    a(f"ds_read_b64_tr_b16 {V2(BD)}, v{vTR} offset:{WL2}\nds_read_b64_tr_b16 {V2(BD+2)}, v{vTR} offset:{WL2+512}")
    a(f"ds_read_b64_tr_b16 {V2(BD+4)}, v{vTRD} offset:{WL2+4096}\nds_read_b64_tr_b16 {V2(BD+6)}, v{vTRD} offset:{WL2+4096+512}")
    for k in range(4):
        a(f"ds_read_b128 {V4(AO+4*k)}, v{vAR} offset:{AIMG+64*k}")
        a(f"ds_read_b64_tr_b16 {V2(BW+4*k)}, v{vTR} offset:{WL1+4096*k}\nds_read_b64_tr_b16 {V2(BW+4*k+2)}, v{vTR} offset:{WL1+4096*k+512}")
    a("s_waitcnt lgkmcnt(12)")
    a(f"v_mfma_f32_16x16x32_bf16 {V4(Y)}, {V4(AH)}, {V4(BD)}, 0")
    a(f"v_mfma_f32_16x16x32_bf16 {V4(Y)}, {V4(AH+4)}, {V4(BD+4)}, {V4(Y)}")
    for k in range(4):
        a(f"s_waitcnt lgkmcnt({9-3*k})")
        a(f"v_mfma_f32_16x16x32_bf16 {V4(Y)}, {V4(AO+4*k)}, {V4(BW+4*k)}, {V4(Y)}")
    a(f"v_mov_b32 v{GR+2}, v{Y}")
    a(f"buffer_store_dwordx2 {V2(GR+2)}, v{vST2}, {S(SW)}, s68 offen sc1")
    a("s_branch L_sdone")
    a.label("L_reduce")
    a(f"s_cmp_ge_u32 s{sKG}, 28\ns_cbranch_scc1 L_sdone")
    def ld2(k): a(f"buffer_load_dwordx4 {V4(P1+4*k)}, v{vL16}, {S(SW)}, s78 offen offset:{1024*k} sc1")
    for k in range(4): ld2(k)
    a.label("L_p2")
    a("s_waitcnt vmcnt(0)")
    for k in range(4): a(f"v_xor_b32 v{E+k}, v{P1+4*k+1}, v{GR+3}")
    for k in range(4): a(f"v_bitop3_b32 v{E+k}, v{P1+4*k+3}, v{GR+3}, v{E+k} bitop3:0xbe")
    a(f"v_or3_b32 v{G}, v{E}, v{E+1}, v{E+2}\nv_or_b32 v{G}, v{G}, v{E+3}")
    a(f"v_cmp_ne_u32 vcc, 0, v{G}\ns_cbranch_vccz L_p2ok", drain=False)
    if sleep2: a(f"s_sleep {sleep2}")
    for k in range(4):
        a(f"v_cmp_ne_u32 vcc, 0, v{E+k}\ns_and_saveexec_b64 s[76:77], vcc\ns_cbranch_execz L_p2s{k}", drain=False)
        ld2(k)
        a.label(f"L_p2s{k}", drain=False)
        a("s_mov_b64 exec, -1")
    a(f"s_sub_u32 s{sCNT}, s{sCNT}, 1\ns_cmp_lg_u32 s{sCNT}, 0\ns_cbranch_scc1 L_p2", drain=False)
    a.label("L_p2ok", drain=False)
    stamp(6)
    a(f"v_add_f32 v{P1}, v{P1}, v{P1+4}\nv_add_f32 v{P1+2}, v{P1+2}, v{P1+6}\nv_add_f32 v{P1+8}, v{P1+8}, v{P1+12}\nv_add_f32 v{P1+10}, v{P1+10}, v{P1+14}")
    a(f"v_add_f32 v{P1}, v{P1}, v{P1+8}\nv_add_f32 v{P1+2}, v{P1+2}, v{P1+10}\nv_lshlrev_b32 v{vX}, 16, v{vX}")
    a(f"v_permlane16_swap_b32 v{P1}, v{P1+2}")
    a(f"v_add_f32 v{P1}, v{P1}, v{P1+2}")
    a(f"v_add_f32_dpp v{P1}, v{P1}, v{P1} row_ror:8 {FULL}")
    a(f"v_mov_b32 v{P1+2}, v{P1}")
    a(f"v_permlane32_swap_b32 v{P1}, v{P1+2}")
    a(f"v_add_f32 v{P1}, v{P1}, v{P1+2}\nv_add_f32 v{P1}, v{P1}, v{vX}")
    a(f"v_cvt_pk_bf16_f32 v{P1}, v{P1}, v{P1}")
    a(f"s_mov_b32 exec_hi, 0\ns_mov_b32 exec_lo, 0x00ff00ff")
    a(f"buffer_store_short v{P1}, v{vXO}, {S(SC_)}, s69 offen {osc}")
    a(f"s_or_b32 s65, s{sKG}, s{sWv}\ns_cmp_lg_u32 s65, 0\ns_cbranch_scc1 L_sdone")
    a("s_mov_b64 exec, 1")
    a(f"buffer_store_dword v{GR+3}, v{vZ}, {S(SW)}, 0 offen {osc}")
    a.label("L_sdone")
    stamp(7)
    pad("S")
    dump_stamps(9)
    a("s_endpgm")

    a.label("L_helper")
    X, F, AF, AF2, BF, D, TG = 32, 64, 96, 112, 128, 184, 200
    a("s_setprio 3")
    a(f"v_mul_u32_u24 v6, 896, v5\nv_lshl_add_u32 v6, v4, 6, v6\nv_mov_b32 v7, 0x40000000\nv_cmp_gt_u32 s[74:75], 14, v4")
    a(f"v_cndmask_b32 v7, v7, v6, s[74:75]")
    a(f"v_lshrrev_b32 v8, 3, v0\nv_and_b32 v9, 7, v0\nv_lshlrev_b32 v9, 4, v9\nv_lshl_add_u32 v10, v8, 13, v9")
    a(f"v_mul_u32_u24 v11, 3584, v8\nv_add_u32 v11, v11, v9")
    a(f"s_mul_i32 s65, s{sB}, {112 * 8192}\ns_lshl_b32 s66, s{sIDX}, 7\ns_add_u32 s65, s65, s66")
    a("s_waitcnt lgkmcnt(0)")
    a(f"s_load_dword s{sTAG}, s[26:27], 0")
    srd(SA, 4, 3584)
    for u in range(4): a(f"buffer_load_dwordx4 {V4(X+4*u)}, v7, {S(SA)}, 0 offen offset:{16*u}")
    srd(SB, 10, 448 * 8192)
    def dma(sr, voff, so, stride, lds0, win=None):
        for k in range(14):
            if win and k >= win: a(f"s_waitcnt vmcnt({win-1})")
            a(f"s_mov_b32 m0, {lds0 + 1024 * k}")
            a(f"buffer_load_dwordx4 v{voff}, {S(sr)}, s{so} offen {wnt} lds")
            if k < 13: a(f"s_add_u32 s{so}, s{so}, {8 * stride}")
    if not noq: dma(SB, 10, 65, 8192, WL0)
    srd(SW, 26, WS_USED)
    a(f"v_and_b32 v14, 3, v4\nv_lshrrev_b32 v15, 2, v4\ns_mul_i32 s65, s{sB}, 224")
    a(f"v_mul_u32_u24 v12, 896, v15\nv_add_u32 v12, s65, v12\nv_lshl_add_u32 v28, v5, 3, v12\nv_lshl_add_u32 v12, v5, 4, v12")
    a(f"v_mul_u32_u24 v30, 896, v14\nv_add_u32 v30, s65, v30\nv_lshl_add_u32 v31, v5, 3, v30\nv_lshl_add_u32 v30, v5, 4, v30")
    a(f"v_lshl_add_u32 v8, v5, 2, v14\nv_lshlrev_b32 v8, 4, v8\nv_lshl_add_u32 v8, v15, 16, v8")
    a(f"v_lshlrev_b32 v9, 5, v14\nv_lshl_add_u32 v9, v15, 3, v9\nv_lshl_add_u32 v9, v5, 7, v9")
    for t in range(1, 4): a(f"v_cmp_eq_u32 s[{66+2*t}:{67+2*t}], {t}, v14")
    a(f"v_lshlrev_b32 v15, 7, v15\nv_lshl_add_u32 v15, v14, 3, v15")
    a(f"v_lshl_add_u32 v13, v5, 10, v15\nv_lshl_add_u32 v29, v5, 9, v15")
    a("s_waitcnt vmcnt(14)" if not noq else "s_waitcnt vmcnt(0)")
    stamp(1)
    for k in range(16): a(f"v_lshlrev_b32 v{F+2*k}, 16, v{X+k}\nv_and_b32 v{F+2*k+1}, 0xffff0000, v{X+k}")
    a(f"v_pk_add_f32 v[14:15], {V2(F)}, {V2(F+2)}\nv_pk_add_f32 v[16:17], {V2(F+4)}, {V2(F+6)}")
    for k in range(4, 16, 2):
        a(f"v_pk_add_f32 v[14:15], v[14:15], {V2(F+2*k)}\nv_pk_add_f32 v[16:17], v[16:17], {V2(F+2*k+2)}")
    a("v_pk_add_f32 v[14:15], v[14:15], v[16:17]\nv_add_f32 v14, v14, v15")
    def rowsum(r):
        for sh in (8, 4, 2, 1): a(f"v_add_f32_dpp v{r}, v{r}, v{r} row_ror:{sh} {FULL}")
    rowsum(14)
    a(f"v_mul_f32 v18, {hex(f2u(-1.0 / 448))}, v14\nv_mov_b32 v19, v18")
    a("v_mov_b32 v14, 0\nv_mov_b32 v15, 0\nv_mov_b32 v16, 0\nv_mov_b32 v17, 0")
    for k in range(0, 16, 2):
        a(f"v_pk_add_f32 v[20:21], {V2(F+2*k)}, v[18:19]\nv_pk_add_f32 v[22:23], {V2(F+2*k+2)}, v[18:19]")
        a(f"v_pk_fma_f32 v[14:15], v[20:21], v[20:21], v[14:15]\nv_pk_fma_f32 v[16:17], v[22:23], v[22:23], v[16:17]")
    a("v_pk_add_f32 v[14:15], v[14:15], v[16:17]\nv_add_f32 v14, v14, v15\nv_cndmask_b32 v14, 0, v14, s[74:75]")
    rowsum(14)
    def rbf(r): a(f"v_cvt_pk_bf16_f32 v{r}, v{r}, v{r}\nv_and_b32 v{r}, 0xffff0000, v{r}")
    a(f"v_mul_f32 v14, {hex(f2u(1.0 / 448))}, v14"); rbf(14)
    a(f"v_add_f32 v14, {hex(f2u(1e-5))}, v14"); rbf(14)
    a("v_sqrt_f32 v14, v14"); rbf(14)
    a("v_rcp_f32 v16, v14\nv_mov_b32 v15, v14"); rbf(18)
    a("v_mov_b32 v17, v16\nv_mov_b32 v19, v18")
    for k in range(16):
        a(f"v_pk_add_f32 {V2(F+2*k)}, {V2(F+2*k)}, v[18:19]")
    for k in range(16):
        a(f"v_cvt_pk_bf16_f32 v{X+k}, v{F+2*k}, v{F+2*k+1}")
    for k in range(16): a(f"v_lshlrev_b32 v{F+2*k}, 16, v{X+k}\nv_and_b32 v{F+2*k+1}, 0xffff0000, v{X+k}")
    for k in range(16):
        t = 20 + 2 * (k & 3)
        a(f"v_pk_mul_f32 {V2(t)}, {V2(F+2*k)}, v[16:17]")
        a(f"v_pk_fma_f32 {V2(F+2*k)}, {V2(t)}, v[14:15], {V2(F+2*k)} neg_lo:[1,0,0] neg_hi:[1,0,0]")
        a(f"v_pk_fma_f32 {V2(t)}, {V2(F+2*k)}, v[16:17], {V2(t)}")
        a(f"v_cvt_pk_bf16_f32 v{X+k}, v{t}, v{t+1}")
    a("s_mov_b64 exec, s[74:75]")
    for u in range(4): a(f"ds_write_b128 v6, {V4(X+4*u)} offset:{XN + 16*u}")
    a("s_mov_b64 exec, -1")
    a("s_waitcnt lgkmcnt(0)")
    a(f"s_mul_i32 s{sTAG}, s{sTAG}, 0x9E3779B1\ns_add_u32 s{sTAG}, s{sTAG}, 0x7F4A7C15")
    for k in range(3): a(f"ds_read_b128 {V4(AF+4*k)}, v12 offset:{XN + 64*k}")
    a(f"ds_read_b64 {V2(AF+12)}, v28 offset:{XN + 192}")
    a(f"v_mov_b32 v{TG}, s{sTAG}\nv_lshrrev_b32 v{TG+1}, 8, v{TG}\nv_lshrrev_b32 v{TG+2}, 16, v{TG}\nv_lshrrev_b32 v{TG+3}, 24, v{TG}\ns_movk_i32 s78, 0xff")
    a(f"v_lshlrev_b32 v10, 4, v0")
    a(f"s_lshl_b32 s66, s{sH}, 12\ns_lshl_b32 s67, s{sB}, 10\ns_add_u32 s66, s66, s67\ns_lshl_b32 s67, s{sJ}, 8\ns_add_u32 s66, s66, s67\ns_add_u32 s66, s66, {QMB}")
    a(f"s_lshl_b32 s67, s{sBH}, 12\ns_add_u32 s67, s67, {QMB}")
    a("s_waitcnt vmcnt(0)")
    stamp(2)
    def piece(af, transposed):
        for t in range(4):
            for k in range(3):
                o = WL0 + 4096 * k + 32 * t
                a(f"ds_read_b64_tr_b16 {V2(BF+14*t+4*k)}, v13 offset:{o}\nds_read_b64_tr_b16 {V2(BF+14*t+4*k+2)}, v13 offset:{o + 512}")
            a(f"ds_read_b64_tr_b16 {V2(BF+14*t+12)}, v29 offset:{WL0 + 12288 + 32 * t}")
        a("s_waitcnt lgkmcnt(0)")
        for k in range(3):
            for t in range(4):
                x, w = V4(af+4*k), V4(BF+14*t+4*k)
                a(f"v_mfma_f32_16x16x32_bf16 {V4(D+4*t)}, {w if transposed else x}, {x if transposed else w}, {'0' if k == 0 else V4(D+4*t)}")
        for t in range(4):
            x, w = V2(af+12), V2(BF+14*t+12)
            a(f"v_mfma_f32_16x16x16_bf16 {V4(D+4*t)}, {w if transposed else x}, {x if transposed else w}, {V4(D+4*t)}")
        for t in range(1, 4):
            for r in range(4):
                if transposed: a(f"v_cndmask_b32 v{D+r}, v{D+r}, v{D+4*t+r}, s[{66+2*t}:{67+2*t}]")
                else: a(f"v_mov_b32_dpp v{D+r}, v{D+4*t+r} {IDP} row_mask:{hex(1 << t)} bank_mask:0xf")
        for r in range(4): a(f"v_add_u32 v{D+r}, 0x80, v{D+r}")
        for r in range(4): a(f"v_bfi_b32 v{20+r}, s78, v{TG+r}, v{D+r}")
    piece(AF, True)
    if noq or not qst: a("s_branch L_pqok")
    a(f"buffer_store_dwordx4 v[20:23], v8, {S(SW)}, s66 offen sc1")
    stamp(3)
    for k in range(3): a(f"ds_read_b128 {V4(AF2+4*k)}, v30 offset:{XN + 64*k}")
    a(f"ds_read_b64 {V2(AF2+12)}, v31 offset:{XN + 192}")
    a(f"v_mov_b32 v16, 0\nv_mov_b32 v17, 0\nv_mov_b32 v18, 0\nv_mov_b32 v19, 0")
    a(f"s_mov_b32 exec_hi, 0xff\nds_write_b128 v10, v[16:19] offset:{HIMG}\ns_mov_b64 exec, -1")
    PQ = F
    def qload(k): a(f"buffer_load_dwordx4 {V4(PQ+4*k)}, v10, {S(SW)}, s67 offen offset:{1024 * k} sc1")
    def chk4(dst, src):
        a(f"v_xor_b32 v{dst}, v{src}, v{TG}")
        for t in range(1, 4): a(f"v_bitop3_b32 v{dst}, v{src+t}, v{TG+t}, v{dst} bitop3:0xbe")
        a(f"v_and_b32 v{dst}, s78, v{dst}")
    if sleepq: a(f"s_sleep {sleepq}")
    for k in range(4): qload(k)
    a(f"s_mov_b32 s{sCNT}, {spin}")
    a.label("L_pq")
    a("s_waitcnt vmcnt(0)")
    for k in range(4): chk4(X + k, PQ + 4 * k)
    a(f"v_or3_b32 v24, v{X}, v{X+1}, v{X+2}\nv_or_b32 v24, v24, v{X+3}")
    a("v_cmp_ne_u32 vcc, 0, v24\ns_cbranch_vccz L_pqok", drain=False)
    a(f"s_sleep 2")
    for k in range(4):
        a(f"v_cmp_ne_u32 vcc, 0, v{X+k}\ns_cbranch_vccz L_pqs{k}", drain=False)
        qload(k)
        a.label(f"L_pqs{k}", drain=False)
    a(f"s_sub_u32 s{sCNT}, s{sCNT}, 1\ns_cmp_lg_u32 s{sCNT}, 0\ns_cbranch_scc1 L_pq", drain=False)
    a.label("L_pqok", drain=False)
    for k in range(16): a(f"v_and_b32 v{PQ+k}, 0xffffff00, v{PQ+k}")
    for e in (0, 2):
        a(f"v_pk_add_f32 {V2(PQ+e)}, {V2(PQ+e)}, {V2(PQ+4+e)}\nv_pk_add_f32 {V2(PQ+8+e)}, {V2(PQ+8+e)}, {V2(PQ+12+e)}")
    for e in (0, 2): a(f"v_pk_add_f32 {V2(PQ+e)}, {V2(PQ+e)}, {V2(PQ+8+e)}")
    a(f"v_cvt_pk_bf16_f32 v24, v{PQ}, v{PQ+1}\nv_cvt_pk_bf16_f32 v25, v{PQ+2}, v{PQ+3}\nv_mov_b32 v17, 0")
    a(f"ds_write_b64 v9, v[24:25] offset:{QL}\nds_write_b32 v17, v{TG} offset:{TAGL}")
    a("s_waitcnt lgkmcnt(0)")
    stamp(4)
    if stamps: a(f"s_mov_b32 s92, s{sCNT}")
    a("s_barrier")
    a("s_setprio 0")
    if noffn: a("s_branch L_hend")
    a(f"s_cmp_ge_u32 s{sIDX}, 56\ns_cbranch_scc1 L_noffn")
    a(f"s_bitcmp1_b32 s{sIDX}, 0\ns_cselect_b32 s{SC_}, s18, s16\ns_cselect_b32 s{SC_+1}, s19, s17\ns_mov_b32 s{SC_+2}, {448 * 3584}\ns_mov_b32 s{SC_+3}, 0x20000")
    a(f"s_lshr_b32 s66, s{sIDX}, 1\ns_mul_i32 s65, s{sB}, {112 * 3584}\ns_lshl_b32 s67, s66, 7\ns_add_u32 s65, s65, s67")
    if fdma: dma(SC_, 11, 65, 3584, WL0, win=HW)
    a(f"s_and_b32 s67, s{sIDX}, 1\ns_lshl_b32 s67, s67, 2\ns_add_u32 s67, s67, s{sB}\ns_mul_i32 s67, s67, {1792 * 16}\ns_lshl_b32 s66, s66, 10\ns_add_u32 s66, s66, s67\ns_add_u32 s66, s66, {FMB}")
    a("s_waitcnt vmcnt(0)")
    piece(AF2, False)
    if fst: a(f"buffer_store_dwordx4 v[20:23], v10, {S(SW)}, s66 offen sc1")
    a.label("L_noffn")
    if not fpoll: a("s_branch L_hend")
    a("s_cmp_ge_u32 s2, 224\ns_cbranch_scc1 L_f3")
    a(f"v_lshrrev_b32 v14, 3, v0\nv_and_b32 v15, 7, v0")
    a(f"v_mul_u32_u24 v9, {1792 * 16}, v14\nv_lshl_add_u32 v9, v15, 4, v9")
    a(f"s_lshl_b32 s67, s2, 7\ns_add_u32 s66, s67, {FMB}\ns_add_u32 s67, s67, {HMB}")
    a(f"s_mov_b32 s{sCNT}, {spin}")
    a.label("L_pf")
    a(f"s_sleep {sleepf}")
    a(f"buffer_load_dwordx4 v[32:35], v9, {S(SW)}, s66 offen sc1")
    a("s_waitcnt vmcnt(0)")
    chk4(24, 32)
    a("v_cmp_ne_u32 vcc, 0, v24\ns_cbranch_vccz L_pfok")
    a(f"s_sub_u32 s{sCNT}, s{sCNT}, 1\ns_cmp_lg_u32 s{sCNT}, 0\ns_cbranch_scc1 L_pf")
    a.label("L_pfok")
    for r in range(4): a(f"v_and_b32 v{32+r}, 0xffffff00, v{32+r}")
    for r in range(4): a(f"v_add_f32_dpp v{32+r}, v{32+r}, v{32+r} row_ror:8 {FULL}")
    for r in range(4): a(f"v_mov_b32 v{36+r}, v{32+r}")
    for r in range(4): a(f"v_permlane16_swap_b32 v{32+r}, v{36+r}")
    for r in range(4): a(f"v_add_f32 v{32+r}, v{32+r}, v{36+r}")
    for r in range(4): rbf(32 + r)
    for r in range(4): a(f"v_mov_b32 v{36+r}, v{32+r}")
    for r in range(4): a(f"v_permlane32_swap_b32 v{32+r}, v{36+r}")
    k1 = -2.0 * math.sqrt(2.0 / math.pi) * math.log2(math.e)
    for r in range(4):
        g, u, t = 32 + r, 36 + r, 40 + r
        a(f"v_mul_f32 v{t}, v{g}, v{g}\nv_mul_f32 v{t}, {hex(f2u(0.044715))}, v{t}\nv_fma_f32 v{t}, v{t}, v{g}, v{g}")
        a(f"v_mul_f32 v{t}, {hex(f2u(k1))}, v{t}\nv_exp_f32 v{t}, v{t}\nv_add_f32 v{t}, 1.0, v{t}\nv_rcp_f32 v{t}, v{t}\nv_mul_f32 v{g}, v{g}, v{t}")
        rbf(g)
        a(f"v_mul_f32 v{g}, v{g}, v{u}")
    a(f"v_cvt_pk_bf16_f32 v20, v32, v33\nv_cvt_pk_bf16_f32 v22, v34, v35\nv_mov_b32 v21, v{TG}\nv_mov_b32 v23, v{TG}")
    a("s_mov_b64 exec, 0xff")
    a(f"buffer_store_dwordx4 v[20:23], v10, {S(SW)}, s67 offen sc1")
    a.label("L_f3")
    a(f"s_cmp_eq_u32 s{sCG}, 7\ns_cbranch_scc1 L_hend")
    a("s_mov_b32 exec_lo, -1\ns_mov_b32 exec_hi, 0x00ffffff")
    a(f"s_lshr_b32 s66, s2, 3\ns_mul_i32 s66, s66, {56 * 16}\ns_add_u32 s66, s66, {HMB}\nv_lshlrev_b32 v9, 1, v0")
    a(f"s_mov_b32 s{sCNT}, {spin}")
    a.label("L_ph")
    a(f"s_sleep {sleepf}")
    a(f"buffer_load_dwordx4 v[32:35], v10, {S(SW)}, s66 offen sc1")
    a("s_waitcnt vmcnt(0)")
    a(f"v_xor_b32 v24, v33, v{TG}\nv_bitop3_b32 v24, v35, v{TG}, v24 bitop3:0xbe")
    a("v_cmp_ne_u32 vcc, 0, v24\ns_cbranch_vccz L_phok")
    a(f"s_sub_u32 s{sCNT}, s{sCNT}, 1\ns_cmp_lg_u32 s{sCNT}, 0\ns_cbranch_scc1 L_ph")
    a.label("L_phok")
    a(f"ds_write_b16 v9, v32 offset:{HIMG}\nds_write_b16_d16_hi v9, v32 offset:{HIMG + HROW}")
    a(f"ds_write_b16 v9, v34 offset:{HIMG + 2 * HROW}\nds_write_b16_d16_hi v9, v34 offset:{HIMG + 3 * HROW}")
    a("s_waitcnt lgkmcnt(0)")
    a.label("L_hend")
    a("s_mov_b64 exec, -1")
    stamp(5)
    pad("H")
    dump_stamps(7)
    a.label("L_end")
    a("s_endpgm")
    a.raw('.section .rodata,"a"'); a.raw(".p2align 6"); a.raw(f".amdhsa_kernel {NAME}")
    a.raw("  .amdhsa_next_free_vgpr 256"); a.raw("  .amdhsa_next_free_sgpr 102"); a.raw("  .amdhsa_accum_offset 256")
    a.raw("  .amdhsa_group_segment_fixed_size 0"); a.raw("  .amdhsa_kernarg_size 96"); a.raw("  .amdhsa_user_sgpr_count 2")
    a.raw("  .amdhsa_user_sgpr_kernarg_segment_ptr 1"); a.raw("  .amdhsa_system_sgpr_workgroup_id_x 1"); a.raw(".end_amdhsa_kernel")
    return a.text()

if __name__ == "__main__":
    out = sys.argv[1]
    kw = eval("dict(" + (sys.argv[2] if len(sys.argv) > 2 else "") + ")")
    open(out, "w").write(gen(**kw))
```

```python
import sys, struct, math
sys.path.insert(0, "gen")
from asmlib import Asm

NAME = "parallel_sum__mha_block_cached__geglu_ffn__decode_kernel"
HEADER = open("parallel_sum__mha_block_cached__geglu_ffn__decode.s.ref").read().split("; Override launch")[0]

def f2u(x): return struct.unpack("<I", struct.pack("<f", x))[0]

QMB = 0x10000
FMB = QMB + 64 * 4096
HMB = FMB + 8 * 1792 * 16
MB1 = 0xA0000
MB2 = 0x120000
TSB = 0x400000
WS_USED = TSB + 0x10000
assert HMB + 1792 * 16 <= MB1
XN, QL, TAGL, ML, HIMG, AIMG, OP, SC = 0, 3584, 4096, 4128, 4224, 4864, 6144, 10240
HROW, AROW = 144, 272
WL0 = SC + 16384
WL1 = WL0 + 14336
WL2 = WL1 + 16384
LDS_BYTES = WL2 + 7168

FULL = "row_mask:0xf bank_mask:0xf"
IDP = "quad_perm:[0,1,2,3]"

def gen(W=5, NP=5, nt="nt", wnt="nt", stamps=False, warm=True, sleep1=1, sleep2=1, sleepq=30, spin=1 << 16,
        padto=0, padwg=None, padstamp=None, HW=4, noffn=0, noq=0, nowo=0, touch=1, sleepf=60, fdma=1, fst=1, fpoll=1, qst=1, pat=3, Wend=None, nend=0, W0=None, osc='', scr=1, remap=3):
    a = Asm()
    a.raw(HEADER.rstrip("\n"))
    a.raw(f"; @launch grid=(256,1,1) block=(320,1,1) lds={LDS_BYTES}")
    a.raw('.amdgcn_target "amdgcn-amd-amdhsa--gfx950"')
    a.raw(".text"); a.raw(f".globl {NAME}"); a.raw(".p2align 8"); a.raw(f".type {NAME},@function")
    a.raw(f"{NAME}:")
    SK, SV, SW, SA, SB, SC_, SD = 28, 32, 36, 40, 44, 48, 52
    sB, sH, sJ, sIDX, sBH, sTAG, sCNT, sKO, sVO, sWv, sKG, sCG = 56, 57, 58, 59, 60, 61, 62, 63, 64, 72, 73, 79
    def srd(r, ptr, size):
        a(f"s_mov_b32 s{r}, s{ptr}\ns_mov_b32 s{r+1}, s{ptr+1}\ns_mov_b32 s{r+2}, {size}\ns_mov_b32 s{r+3}, 0x20000")
    def S(r): return f"s[{r}:{r+3}]"
    def V4(r): return f"v[{r}:{r+3}]"
    def V2(r): return f"v[{r}:{r+1}]"
    def stamp(k):
        if stamps or padstamp is not None:
            a(f"s_memrealtime s[{80+2*k}:{81+2*k}]")
    def dump_stamps(n):
        if not stamps: return
        a("s_waitcnt lgkmcnt(0)")
        a("s_mov_b64 exec, 1")
        a(f"s_mul_i32 s65, s2, 5\ns_add_u32 s65, s65, s3\ns_mul_i32 s65, s65, 48\ns_add_u32 s65, s65, {TSB}")
        a("v_mov_b32 v1, 0")
        for k in range(n):
            a(f"v_mov_b32 v2, s{80+2*k}")
            a(f"buffer_store_dword v2, v1, {S(SW)}, s65 offen offset:{4*k}")
        a(f"v_mov_b32 v2, s{sCNT}\nbuffer_store_dword v2, v1, {S(SW)}, s65 offen offset:44")
        a("s_waitcnt vmcnt(0)")
    def pad(role):
        if not padto: return
        r, k = padstamp if padstamp is not None else ("S", 0)
        if r != role: return
        if padwg is not None: a(f"s_cmp_lg_u32 s2, {padwg}\ns_cbranch_scc1 L_end")
        a.label(f"L_pad{role}")
        a(f"s_sleep 1\ns_memrealtime s[98:99]\ns_waitcnt lgkmcnt(0)\ns_sub_u32 s98, s98, s{80+2*k}\ns_cmp_lt_u32 s98, {padto}\ns_cbranch_scc1 L_pad{role}")

    a("s_cmp_ge_u32 s2, 256\ns_cbranch_scc1 L_end")
    a("s_load_dwordx16 s[4:19], s[0:1], 0\ns_load_dwordx8 s[20:27], s[0:1], 64")
    stamp(0)
    a("v_lshrrev_b32 v1, 6, v0\nv_and_b32 v0, 63, v0\nv_readfirstlane_b32 s3, v1")
    if pat >= 3 and remap == 3:
        a("s_bfe_u32 s65, s2, 0x20003\ns_xor_b32 s2, s2, s65")
    if pat >= 3 and remap == 2:
        a("s_bfe_u32 s65, s2, 0x20003\ns_and_b32 s66, s2, 7\ns_lshl_b32 s66, s66, 2\ns_and_b32 s2, s2, 0xe0\ns_or_b32 s2, s2, s65\ns_or_b32 s2, s2, s66")
    a(f"s_lshr_b32 s{sB}, s2, 6\ns_lshr_b32 s{sBH}, s2, 2\ns_and_b32 s{sH}, s{sBH}, 15\ns_and_b32 s{sJ}, s2, 3\ns_and_b32 s{sIDX}, s2, 63")
    a(f"s_lshr_b32 s{sKG}, s2, 3\ns_add_u32 s{sCG}, s2, s{sKG}\ns_and_b32 s{sCG}, s{sCG}, 7")
    a("v_and_b32 v4, 15, v0\nv_lshrrev_b32 v5, 4, v0")
    a("s_cmp_eq_u32 s3, 0\ns_cbranch_scc1 L_helper")

    vKO, vVO, vSC, vMAX, vL, vC, vMC, vS = 1, 2, 3, 6, 7, 28, 29, 30
    vJ, vG = 4, 5
    MASK, OACC, BB, QF, DA, TMP, R = 8, 12, 20, 32, 64, 84, 96
    def ring(tile, u): return R + 32 * tile + 4 * u
    a(f"s_sub_u32 s{sWv}, s3, 1")
    kb, wb = {0: ((9, 10), (11, 12)), 1: ((12, 13), (10, 11)), 2: ((12, 13), (14, 15)), 3: ((15, 13), (11, 14)), 4: ((15, 9), (11, 13))}[pat]
    sM = 100
    a(f"v_and_b32 v{TMP+1}, 3, v{vJ}\nv_lshlrev_b32 v{TMP+1}, 4, v{TMP+1}")
    a(f"v_lshl_add_u32 v{TMP+1}, v{vG}, 6, v{TMP+1}")
    a(f"v_bfe_u32 v{TMP}, v0, 2, 1\nv_lshl_add_u32 v{vKO}, v{TMP}, {kb[0]}, v{TMP+1}\nv_bfe_u32 v{TMP}, v0, 3, 1\nv_lshl_add_u32 v{vKO}, v{TMP}, {kb[1]}, v{vKO}")
    a(f"s_lshl_b32 s{sKO}, s2, 19\ns_and_b32 s65, s{sWv}, 1\ns_lshl_b32 s65, s65, {wb[0]}\ns_add_u32 s{sKO}, s{sKO}, s65")
    a(f"s_lshr_b32 s65, s{sWv}, 1\ns_lshl_b32 s65, s65, {wb[1]}\ns_add_u32 s{sKO}, s{sKO}, s65")
    if pat >= 3:
        if scr:
            a(f"s_mul_i32 s65, s{sBH}, 0x9E3779B1\ns_and_b32 s{sM}, s65, 0x300000\ns_lshr_b32 s{sM}, s{sM}, 3\ns_or_b32 s{sM}, s{sM}, 0x10000")
            a(f"s_lshr_b32 s65, s65, 6\ns_and_b32 s65, s65, 0x70000\ns_or_b32 s{sKO}, s{sKO}, s65")
        else:
            a(f"s_mov_b32 s{sM}, 0x10000")
    a(f"s_mov_b32 s{sVO}, s{sKO}")
    a(f"v_lshlrev_b32 v{vVO}, 4, v{vJ}\nv_bfe_u32 v{TMP}, v0, 4, 1\nv_lshl_add_u32 v{vVO}, v{TMP}, {kb[0]}, v{vVO}\nv_bfe_u32 v{TMP}, v0, 5, 1\nv_lshl_add_u32 v{vVO}, v{TMP}, {kb[1]}, v{vVO}")
    a("s_waitcnt lgkmcnt(0)")
    srd(SK, 6, 1 << 27)
    vm = []
    def issue(kind, reg, u, tagid):
        sr, vo, so = (SK, vKO, sKO) if kind == "K" else (SV, vVO, sVO)
        o = {0: 256 * (u & 1), 1: 256 * (u & 3), 2: 256 * u, 3: 256 * u, 4: 256 * (u & 1) + 512 * (u & 2)}[pat]
        off = f" offset:{o}" if o else ""
        a(f"buffer_load_dwordx4 {V4(reg)}, v{vo}, {S(sr)}, s{so} offen{off} {nt}")
        if pat == 0 and u & 1: a(f"s_add_u32 s{so}, s{so}, 8192")
        if pat == 1 and (u & 3) == 3: a(f"s_add_u32 s{so}, s{so}, 16384")
        if pat == 4 and (u & 3) == 3: a(f"s_xor_b32 s{so}, s{so}, 0x4000")
        if pat >= 3 and u == 7:
            a(f"s_xor_b32 s{so}, s{so}, 0x1000\ns_bitcmp1_b32 s{so}, 12\ns_cselect_b32 s65, 0, s{sM}\ns_add_u32 s65, s65, s{so}\ns_and_b32 s65, s65, 0x70000\ns_andn2_b32 s{so}, s{so}, 0x70000\ns_or_b32 s{so}, s{so}, s65")
        if pat == 2 and u == 7:
            a(f"s_bitcmp1_b32 s{so}, 11\ns_cselect_b32 s65, {65536 - 4096}, 0\ns_add_u32 s{so}, s{so}, s65\ns_add_u32 s{so}, s{so}, 2048")
        vm.append(tagid)
    def wait_for(tagid):
        if tagid not in vm: return
        n = len(vm) - 1 - vm.index(tagid)
        assert n < 64
        a(f"s_waitcnt vmcnt({n})")
    nload = [0]
    curW = [W]
    def throttle_issue(kind, reg, u):
        n = nload[0]
        wait_for(("s", n - curW[0]))
        issue(kind, reg, u, ("s", n)); nload[0] += 1
    W0 = W0 or W
    curW[0] = W0
    for n in range(W0):
        throttle_issue("K", ring(n // 8, n % 8), n % 8)
    curW[0] = W
    if warm:
        a(f"s_cmp_lg_u32 s3, 1\ns_cbranch_scc1 L_nowarm")
        a(f"s_getpc_b64 s[66:67]\nv_lshlrev_b32 v{TMP+2}, 7, v0")
        a(f"global_load_dword v{TMP+3}, v{TMP+2}, s[66:67]")
        a.label("L_nowarm")
    srd(SV, 8, 1 << 27); srd(SW, 26, WS_USED); srd(SC_, 22, 3584); srd(SD, 4, 3584)
    srd(SA, 12, 4096 * 896); srd(SB, 20, 1792 * 896)
    for k in range(32): a(f"v_mov_b32 v{QF+k}, 0")
    for k in range(8): a(f"v_mov_b32 v{OACC+k}, 0")
    a(f"v_mov_b32 v{vMAX}, 0xff800000\nv_mov_b32 v{vL}, 0\nv_mov_b32 v{vC}, {hex(f2u(math.log2(math.e) / 16))}")
    a(f"v_and_b32 v{TMP+4}, 1, v{vJ}\nv_lshlrev_b32 v{TMP+4}, 4, v{TMP+4}\nv_mov_b32 v{TMP+5}, 0xffff\nv_lshlrev_b32 v{TMP+4}, v{TMP+4}, v{TMP+5}")
    a(f"v_bfe_u32 v{TMP+5}, v{vJ}, 1, 2")
    for w in range(4):
        a(f"v_cmp_eq_u32 vcc, {w}, v{TMP+5}\nv_cndmask_b32 v{MASK+w}, 0, v{TMP+4}, vcc")
    a(f"s_lshl_b32 s65, s{sWv}, 12\ns_add_u32 s65, s65, {SC}\nv_lshl_add_u32 v{vSC}, v0, 2, s65")
    for n in range(W0, 8 * NP):
        throttle_issue("K", ring(n // 8, n % 8), n % 8)
    stamp(1)
    a("s_barrier")
    stamp(2)
    for t in range(4):
        m = 0x000F000F << (4 * t)
        a(f"s_mov_b32 exec_lo, {hex(m)}\ns_mov_b32 exec_hi, {hex(m)}")
        for half in range(2):
            a(f"ds_read_b128 {V4(QF + 4 * (2 * t + half))}, v{TMP+1} offset:{QL + 256 * half}")
    a("s_mov_b64 exec, -1")
    a(f"v_mov_b32 v{TMP}, 0\nds_read_b32 v{TMP+2}, v{TMP} offset:{TAGL}")
    a("s_waitcnt lgkmcnt(0)")
    a(f"v_readfirstlane_b32 s{sTAG}, v{TMP+2}")

    def consK(reg, u, d):
        c = "0" if u == 0 else V4(d)
        a(f"v_mfma_f32_16x16x32_bf16 {V4(d)}, {V4(reg)}, {V4(QF + 4 * u)}, {c}")
    def extract(ds, off0):
        for k, d in enumerate(ds): a(f"v_mov_b32_dpp v{TMP+k}, v{d} quad_perm:[0,0,0,0] {FULL}")
        for c in range(1, 4):
            for k, d in enumerate(ds): a(f"v_add_f32_dpp v{TMP+k}, v{d+c}, v{TMP+k} quad_perm:[{c},{c},{c},{c}] {FULL}")
        for k, d in enumerate(ds): a(f"v_cvt_pk_bf16_f32 v{TMP+k}, v{TMP+k}, v{TMP+k}")
        for k, d in enumerate(ds): a(f"v_and_b32 v{TMP+k}, 0xffff0000, v{TMP+k}")
        for k, d in enumerate(ds):
            a(f"ds_write_b32 v{vSC}, v{TMP+k} offset:{off0 + 256 * k}")
            a(f"v_max_f32 v{vMAX}, v{vMAX}, v{TMP+k}")
        a(f"v_add_u32 v{vSC}, {256 * len(ds)}, v{vSC}")
    for u in range(8):
        consK(ring(0, u), u, DA)
        throttle_issue("K", ring(0, u), u)
        for T in range(1, NP): consK(ring(T, u), u, DA + 4 * T)
    extract([DA + 4 * T for T in range(NP)], 0)

    T0 = R + 32
    vX, vXO, vOPW, vMLW, vOPR, vZ, vL16, vST2, vTR, vTR2, vTRD, vTRD2, vHA, vAR, vAW, vWO, vWD = range(T0, T0 + 17)
    vML = T0 + 18
    G = T0 + 20
    GR = T0 + 36
    P1 = T0 + 40
    AH = T0 + 56
    AO = T0 + 64
    BW = T0 + 80
    BD = T0 + 96
    Y = T0 + 104
    E = T0 + 108
    def tail_addr():
        a(f"s_lshl_b32 s65, s{sWv}, 10\ns_add_u32 s65, s65, {OP}\nv_lshl_add_u32 v{vOPW}, v0, 4, s65")
        a(f"s_lshl_b32 s65, s{sWv}, 3\ns_add_u32 s65, s65, {ML}\nv_mov_b32 v{vMLW}, s65")
        a(f"s_lshl_b32 s65, s{sWv}, 8\ns_add_u32 s65, s65, {OP}\nv_lshl_add_u32 v{vOPR}, v0, 3, s65")
        a(f"v_mov_b32 v{vZ}, 0\nv_lshlrev_b32 v{vL16}, 4, v0\nv_mov_b32 v{GR+3}, s{sTAG}")
        a(f"s_lshl_b32 s70, s2, 11\ns_lshl_b32 s65, s{sWv}, 9\ns_add_u32 s70, s70, s65\ns_add_u32 s70, s70, {MB1}")
        a(f"s_lshl_b32 s71, s{sWv}, 17\ns_lshr_b32 s65, s{sKG}, 1\ns_lshl_b32 s65, s65, 13\ns_add_u32 s71, s71, s65")
        a(f"s_and_b32 s65, s{sKG}, 1\ns_lshl_b32 s65, s65, 10\ns_add_u32 s71, s71, s65\ns_add_u32 s71, s71, {MB1}\ns_add_u32 s74, s71, 4096")
        a(f"v_lshrrev_b32 v{E}, 3, v0\nv_and_b32 v{E+1}, 7, v0\nv_and_b32 v{E+2}, 2, v{E}\nv_xor_b32 v{E+1}, v{E+1}, v{E+2}\nv_lshlrev_b32 v{E+1}, 4, v{E+1}")
        a(f"v_and_b32 v{E+2}, 3, v{E}\nv_lshlrev_b32 v{E+2}, 3, v{E+2}\nv_lshrrev_b32 v{E+3}, 2, v{E}\nv_add_u32 v{E+2}, v{E+2}, v{E+3}")
        a(f"v_mul_u32_u24 v{vWO}, 896, v{E+2}\nv_mul_u32_u24 v{vWD}, 896, v{E}")
        a(f"s_and_b32 s65, s{sWv}, 1\ns_lshl_b32 s65, s65, 6\nv_xor_b32 v{E+1}, s65, v{E+1}")
        a(f"v_add_u32 v{vWO}, v{vWO}, v{E+1}\nv_add_u32 v{vWD}, v{vWD}, v{E+1}")
        a(f"s_lshr_b32 s66, s{sKG}, 1\ns_lshl_b32 s66, s66, 8\ns_and_b32 s65, s{sKG}, 1\ns_lshl_b32 s65, s65, 6\ns_add_u32 s66, s66, s65")
        a(f"s_lshl_b32 s65, s{sWv}, 1\ns_add_u32 s66, s66, s65\ns_mul_i32 s66, s66, 896\ns_lshl_b32 s65, s{sCG}, 7\ns_add_u32 s66, s66, s65")
        a(f"s_mul_i32 s67, s{sKG}, 56\ns_lshl_b32 s68, s{sWv}, 3\ns_add_u32 s67, s67, s68\ns_mul_i32 s67, s67, 896\ns_add_u32 s67, s67, s65")
        a(f"s_lshl_b32 s75, s{sWv}, 10")
        a(f"v_lshrrev_b32 v{E}, 2, v{vJ}\nv_bfe_u32 v{E+1}, v{vJ}, 1, 1\ns_lshl_b32 s65, s{sWv}, 1\nv_add_u32 v{E+1}, s65, v{E+1}")
        a(f"v_and_b32 v{E+2}, 2, v{E}\nv_xor_b32 v{E+1}, v{E+1}, v{E+2}")
        a(f"v_and_b32 v{E+3}, 1, v{vJ}\nv_lshlrev_b32 v{E+3}, 3, v{E+3}\nv_lshl_add_u32 v{E+3}, v{E}, 7, v{E+3}")
        a(f"v_and_b32 v{E+2}, 1, v{vG}\nv_lshlrev_b32 v{E+2}, 2, v{E+2}\nv_xor_b32 v{E+4}, v{E+1}, v{E+2}")
        a(f"v_lshl_add_u32 v{vTR}, v{E+4}, 4, v{E+3}\nv_lshl_add_u32 v{vTR}, v{vG}, 10, v{vTR}")
        a(f"v_min_u32 v{E+5}, 2, v{vG}\nv_and_b32 v{E+2}, 1, v{E+5}\nv_lshlrev_b32 v{E+2}, 2, v{E+2}\nv_xor_b32 v{E+4}, v{E+1}, v{E+2}")
        a(f"v_lshl_add_u32 v{vTRD}, v{E+4}, 4, v{E+3}\nv_lshl_add_u32 v{vTRD}, v{E+5}, 10, v{vTRD}")
        a(f"v_mul_u32_u24 v{vHA}, {HROW}, v{E}\nv_lshl_add_u32 v{vHA}, v{vG}, 4, v{vHA}")
        a(f"v_mul_u32_u24 v{vAR}, {AROW}, v{E}\nv_lshl_add_u32 v{vAR}, v{vG}, 4, v{vAR}")
        a(f"s_mul_i32 s65, s{sWv}, {AROW}\ns_add_u32 s65, s65, {AIMG}\nv_lshl_add_u32 v{vAW}, v0, 2, s65")
        a(f"v_lshlrev_b32 v{vST2}, 3, v{vJ}\nv_lshl_add_u32 v{vST2}, v{vG}, 12, v{vST2}")
        a(f"s_lshl_b32 s68, s{sCG}, 2\ns_add_u32 s68, s68, s{sWv}\ns_lshl_b32 s68, s68, 14\ns_lshl_b32 s65, s{sKG}, 7\ns_add_u32 s68, s68, s65\ns_add_u32 s68, s68, {MB2}")
        a(f"s_and_b32 s78, s{sKG}, 0xfc\ns_add_u32 s78, s78, s{sWv}\ns_lshl_b32 s69, s78, 4\ns_lshl_b32 s78, s78, 2\ns_and_b32 s65, s{sKG}, 3\ns_add_u32 s78, s78, s65")
        a(f"s_lshl_b32 s78, s78, 12\ns_add_u32 s78, s78, {MB2}\ns_mul_i32 s65, s65, 448\ns_add_u32 s69, s69, s65\ns_lshl_b32 s69, s69, 1")
        a(f"v_and_b32 v{E}, 7, v0\nv_and_b32 v{E+1}, 1, v{vG}\nv_lshlrev_b32 v{vXO}, 2, v{E}\nv_lshl_add_u32 v{vXO}, v{E+1}, 1, v{vXO}")
    tail_addr()

    def iterK(nextkind):
        for u in range(8):
            consK(ring(0, u), u, DA)
            throttle_issue(nextkind, ring(0, u), u)
        extract([DA], 0)
    a(f"s_mov_b32 s{sCNT}, {15 - NP}")
    a.label("L_kk")
    iterK("K")
    a(f"s_sub_u32 s{sCNT}, s{sCNT}, 1\ns_cmp_lg_u32 s{sCNT}, 0\ns_cbranch_scc1 L_kk")
    iterK("V")
    stamp(3)
    a(f"v_subrev_u32 v{vSC}, 4096, v{vSC}")
    a(f"ds_read_b32 v{vS}, v{vSC}")
    a(f"v_max_f32_dpp v{vMAX}, v{vMAX}, v{vMAX} row_ror:4 {FULL}")
    a(f"v_max_f32_dpp v{vMAX}, v{vMAX}, v{vMAX} row_ror:8 {FULL}")
    a(f"v_max_f32_dpp v{vMAX}, v{vMAX}, v{vMAX} row_bcast:15 row_mask:0xa bank_mask:0xf")
    a(f"v_max_f32_dpp v{vMAX}, v{vMAX}, v{vMAX} row_bcast:31 row_mask:0xc bank_mask:0xf")
    a(f"v_readlane_b32 s65, v{vMAX}, 63")
    a(f"v_mul_f32 v{vMC}, s65, v{vC}")
    vP = TMP
    def last_extra():
        if not nowo:
            a(f"s_cmp_eq_u32 s{sCG}, 7\ns_cselect_b32 s66, 0x40000000, s66\ns_cselect_b32 s67, 0x40000000, s67")
            for c in range(4):
                a(f"s_add_u32 s65, s66, {(128 * (c & 1) + 32 * (c >> 1)) * 896}\ns_add_u32 m0, s75, {WL1 + 4096 * c}")
                a(f"buffer_load_dwordx4 v{vWO}, {S(SA)}, s65 offen {wnt} lds"); vm.append(("wo", c))
            a(f"s_add_u32 m0, s75, {WL2}")
            a(f"buffer_load_dwordx4 v{vWD}, {S(SB)}, s67 offen {wnt} lds"); vm.append(("wd", 0))
            a(f"s_cmp_eq_u32 s{sWv}, 3\ns_cselect_b32 s65, 0, {32 * 896}\ns_cselect_b32 s76, 0, 4096\ns_add_u32 s67, s67, s65\ns_add_u32 s76, s76, s75\ns_add_u32 m0, s76, {WL2}")
            a(f"buffer_load_dwordx4 v{vWD}, {S(SB)}, s67 offen {wnt} lds"); vm.append(("wd", 1))
        a(f"buffer_load_ushort v{vX}, v{vXO}, {S(SD)}, s69 offen"); vm.append("x")
        if touch:
            a(f"buffer_load_ushort v{E+7}, v{vXO}, {S(SC_)}, s69 offen"); vm.append("o")
        a(f"v_add_f32_dpp v{vL}, v{vL}, v{vL} row_ror:4 {FULL}")
        a(f"v_add_f32_dpp v{vL}, v{vL}, v{vL} row_ror:8 {FULL}")
        a(f"v_add_f32_dpp v{vL}, v{vL}, v{vL} row_bcast:15 row_mask:0xa bank_mask:0xf")
        a(f"v_add_f32_dpp v{vL}, v{vL}, v{vL} row_bcast:31 row_mask:0xc bank_mask:0xf")
        a(f"v_mov_b32 v{vML}, v{vMC}\nv_mov_b32 v{vML+1}, v{vL}")
        a("s_mov_b32 exec_lo, 0\ns_mov_b32 exec_hi, 0x80000000")
        a(f"ds_write_b64 v{vMLW}, {V2(vML)}")
        a("s_mov_b64 exec, -1")
    def iterV(last):
        a("s_waitcnt lgkmcnt(0)")
        a(f"v_fma_f32 v{vP}, v{vS}, v{vC}, -v{vMC}")
        a(f"v_exp_f32 v{vP}, v{vP}")
        if not last:
            a(f"v_add_u32 v{vSC}, 256, v{vSC}\nds_read_b32 v{vS}, v{vSC}")
        a(f"v_add_f32 v{vL}, v{vL}, v{vP}")
        a(f"v_cvt_pk_bf16_f32 v{vP}, v{vP}, v{vP}")
        if last: last_extra()
        base = nload[0] - 8
        for u in range(8):
            t, half = u >> 1, u & 1
            b = BB + 4 * (t & 1)
            if half == 0:
                for w in range(4): a(f"v_and_b32_dpp v{b+w}, v{vP}, v{MASK+w} row_newbcast:{4*t} {FULL}")
            if last: wait_for(("s", base + u))
            a(f"v_mfma_f32_16x16x32_bf16 {V4(OACC + 4 * half)}, {V4(ring(0, u))}, {V4(b)}, {V4(OACC + 4 * half)}")
            if not last: throttle_issue("V", ring(0, u), u)
    a(f"s_mov_b32 s{sCNT}, {15 - nend}")
    a.label("L_vv")
    iterV(False)
    a(f"s_sub_u32 s{sCNT}, s{sCNT}, 1\ns_cmp_lg_u32 s{sCNT}, 0\ns_cbranch_scc1 L_vv")
    if nend:
        curW[0] = Wend
        a(f"s_mov_b32 s{sCNT}, {nend}")
        a.label("L_vv2")
        iterV(False)
        a(f"s_sub_u32 s{sCNT}, s{sCNT}, 1\ns_cmp_lg_u32 s{sCNT}, 0\ns_cbranch_scc1 L_vv2")
    iterV(True)
    stamp(4)
    for r in range(4): a(f"v_mov_b32_dpp v{OACC+r}, v{OACC+4+r} {IDP} row_mask:0xf bank_mask:0xc")
    a(f"ds_write_b128 v{vOPW}, {V4(OACC)}")
    a("s_waitcnt lgkmcnt(0)")
    a("s_barrier")
    a("s_mov_b32 exec_hi, 0")
    a(f"ds_read_b128 {V4(G)}, v{vZ} offset:{ML}\nds_read_b128 {V4(G+4)}, v{vZ} offset:{ML+16}")
    for w in range(4): a(f"ds_read_b64 {V2(G+8+2*w)}, v{vOPR} offset:{1024*w}")
    a("s_waitcnt lgkmcnt(4)")
    ms, ls = [G, G+2, G+4, G+6], [G+1, G+3, G+5, G+7]
    a(f"v_max3_f32 v{E+4}, v{ms[0]}, v{ms[1]}, v{ms[2]}\nv_max_f32 v{E+4}, v{E+4}, v{ms[3]}")
    for k in range(4): a(f"v_sub_f32 v{ms[k]}, v{ms[k]}, v{E+4}")
    for k in range(4): a(f"v_exp_f32 v{ms[k]}, v{ms[k]}")
    a(f"v_mul_f32 v{E+5}, v{ms[0]}, v{ls[0]}")
    for k in range(1, 4): a(f"v_fmac_f32 v{E+5}, v{ms[k]}, v{ls[k]}")
    a(f"v_rcp_f32 v{E+6}, v{E+5}\nv_log_f32 v{E+5}, v{E+5}")
    a("s_waitcnt lgkmcnt(0)")
    a(f"v_pk_mul_f32 {V2(GR)}, {V2(G+8)}, {V2(ms[0])} op_sel_hi:[1,0]")
    for k in range(1, 4): a(f"v_pk_fma_f32 {V2(GR)}, {V2(G+8+2*k)}, {V2(ms[k])}, {V2(GR)} op_sel_hi:[1,0,1]")
    a(f"v_add_f32 v{GR+2}, v{E+4}, v{E+5}")
    a(f"v_pk_mul_f32 {V2(GR)}, {V2(GR)}, {V2(E+6)} op_sel_hi:[1,0]")
    a(f"buffer_store_dwordx4 {V4(GR)}, v{vL16}, {S(SW)}, s70 offen sc1")
    a("s_mov_b64 exec, -1")
    stamp(8)
    a(f"s_mov_b32 s{sCNT}, {spin}")
    a(f"s_cmp_eq_u32 s{sCG}, 7\ns_cbranch_scc1 L_reduce", drain=False)
    def ld1(k): a(f"buffer_load_dwordx4 {V4(P1+4*k)}, v{vL16}, {S(SW)}, s{71 if k < 2 else 74} offen{' offset:2048' if k & 1 else ''} sc1")
    for k in range(4): ld1(k)
    a(f"ds_read_b128 {V4(AH)}, v{vHA} offset:{HIMG}\nds_read_b128 {V4(AH+4)}, v{vHA} offset:{HIMG+64}")
    a.label("L_p1", drain=False)
    a("s_waitcnt vmcnt(0)")
    for k in range(4): a(f"v_cmp_ne_u32 s[76:77], s{sTAG}, v{P1+3}" if k == 0 else f"v_cmp_ne_u32 vcc, s{sTAG}, v{P1+4*k+3}\ns_or_b64 s[76:77], s[76:77], vcc")
    a("s_cbranch_scc0 L_p1ok", drain=False)
    if sleep1: a(f"s_sleep {sleep1}")
    for k in range(4):
        a(f"v_cmp_ne_u32 vcc, s{sTAG}, v{P1+4*k+3}\ns_cbranch_vccz L_p1s{k}", drain=False)
        ld1(k)
        a.label(f"L_p1s{k}", drain=False)
    a(f"s_sub_u32 s{sCNT}, s{sCNT}, 1\ns_cmp_lg_u32 s{sCNT}, 0\ns_cbranch_scc1 L_p1", drain=False)
    a.label("L_p1ok", drain=False)
    stamp(5)
    lam = [P1+2, P1+6, P1+10, P1+14]
    a(f"v_max3_f32 v{E+4}, v{lam[0]}, v{lam[1]}, v{lam[2]}\nv_max_f32 v{E+4}, v{E+4}, v{lam[3]}")
    for k in range(4): a(f"v_sub_f32 v{lam[k]}, v{lam[k]}, v{E+4}")
    for k in range(4): a(f"v_exp_f32 v{lam[k]}, v{lam[k]}")
    a(f"v_add_f32 v{E+5}, v{lam[0]}, v{lam[1]}\nv_pk_mul_f32 {V2(G)}, {V2(P1)}, {V2(lam[0])} op_sel_hi:[1,0]\nv_add_f32 v{E+6}, v{lam[2]}, v{lam[3]}")
    a(f"v_pk_fma_f32 {V2(G)}, {V2(P1+4)}, {V2(lam[1])}, {V2(G)} op_sel_hi:[1,0,1]\nv_add_f32 v{E+6}, v{E+5}, v{E+6}")
    a(f"v_pk_fma_f32 {V2(G)}, {V2(P1+8)}, {V2(lam[2])}, {V2(G)} op_sel_hi:[1,0,1]\nv_rcp_f32 v{E+6}, v{E+6}")
    a(f"v_pk_fma_f32 {V2(G)}, {V2(P1+12)}, {V2(lam[3])}, {V2(G)} op_sel_hi:[1,0,1]")
    a(f"v_pk_mul_f32 {V2(G)}, {V2(G)}, {V2(E+6)} op_sel_hi:[1,0]")
    a(f"v_cvt_pk_bf16_f32 v{G}, v{G}, v{G+1}")
    a(f"ds_write_b32 v{vAW}, v{G}")
    a("s_waitcnt lgkmcnt(0)")
    a("s_barrier")
    a(f"ds_read_b64_tr_b16 {V2(BD)}, v{vTR} offset:{WL2}\nds_read_b64_tr_b16 {V2(BD+2)}, v{vTR} offset:{WL2+512}")
    a(f"ds_read_b64_tr_b16 {V2(BD+4)}, v{vTRD} offset:{WL2+4096}\nds_read_b64_tr_b16 {V2(BD+6)}, v{vTRD} offset:{WL2+4096+512}")
    for k in range(4):
        a(f"ds_read_b128 {V4(AO+4*k)}, v{vAR} offset:{AIMG+64*k}")
        a(f"ds_read_b64_tr_b16 {V2(BW+4*k)}, v{vTR} offset:{WL1+4096*k}\nds_read_b64_tr_b16 {V2(BW+4*k+2)}, v{vTR} offset:{WL1+4096*k+512}")
    a("s_waitcnt lgkmcnt(12)")
    a(f"v_mfma_f32_16x16x32_bf16 {V4(Y)}, {V4(AH)}, {V4(BD)}, 0")
    a(f"v_mfma_f32_16x16x32_bf16 {V4(Y)}, {V4(AH+4)}, {V4(BD+4)}, {V4(Y)}")
    for k in range(4):
        a(f"s_waitcnt lgkmcnt({9-3*k})")
        a(f"v_mfma_f32_16x16x32_bf16 {V4(Y)}, {V4(AO+4*k)}, {V4(BW+4*k)}, {V4(Y)}")
    a(f"v_mov_b32 v{GR+2}, v{Y}")
    a(f"buffer_store_dwordx2 {V2(GR+2)}, v{vST2}, {S(SW)}, s68 offen sc1")
    a("s_branch L_sdone")
    a.label("L_reduce")
    a(f"s_cmp_ge_u32 s{sKG}, 28\ns_cbranch_scc1 L_sdone")
    def ld2(k): a(f"buffer_load_dwordx4 {V4(P1+4*k)}, v{vL16}, {S(SW)}, s78 offen offset:{1024*k} sc1")
    for k in range(4): ld2(k)
    a.label("L_p2")
    a("s_waitcnt vmcnt(0)")
    for k in range(4): a(f"v_xor_b32 v{E+k}, v{P1+4*k+1}, v{GR+3}")
    for k in range(4): a(f"v_bitop3_b32 v{E+k}, v{P1+4*k+3}, v{GR+3}, v{E+k} bitop3:0xbe")
    a(f"v_or3_b32 v{G}, v{E}, v{E+1}, v{E+2}\nv_or_b32 v{G}, v{G}, v{E+3}")
    a(f"v_cmp_ne_u32 vcc, 0, v{G}\ns_cbranch_vccz L_p2ok", drain=False)
    if sleep2: a(f"s_sleep {sleep2}")
    for k in range(4):
        a(f"v_cmp_ne_u32 vcc, 0, v{E+k}\ns_and_saveexec_b64 s[76:77], vcc\ns_cbranch_execz L_p2s{k}", drain=False)
        ld2(k)
        a.label(f"L_p2s{k}", drain=False)
        a("s_mov_b64 exec, -1")
    a(f"s_sub_u32 s{sCNT}, s{sCNT}, 1\ns_cmp_lg_u32 s{sCNT}, 0\ns_cbranch_scc1 L_p2", drain=False)
    a.label("L_p2ok", drain=False)
    stamp(6)
    a(f"v_add_f32 v{P1}, v{P1}, v{P1+4}\nv_add_f32 v{P1+2}, v{P1+2}, v{P1+6}\nv_add_f32 v{P1+8}, v{P1+8}, v{P1+12}\nv_add_f32 v{P1+10}, v{P1+10}, v{P1+14}")
    a(f"v_add_f32 v{P1}, v{P1}, v{P1+8}\nv_add_f32 v{P1+2}, v{P1+2}, v{P1+10}\nv_lshlrev_b32 v{vX}, 16, v{vX}")
    a(f"v_permlane16_swap_b32 v{P1}, v{P1+2}")
    a(f"v_add_f32 v{P1}, v{P1}, v{P1+2}")
    a(f"v_add_f32_dpp v{P1}, v{P1}, v{P1} row_ror:8 {FULL}")
    a(f"v_mov_b32 v{P1+2}, v{P1}")
    a(f"v_permlane32_swap_b32 v{P1}, v{P1+2}")
    a(f"v_add_f32 v{P1}, v{P1}, v{P1+2}\nv_add_f32 v{P1}, v{P1}, v{vX}")
    a(f"v_cvt_pk_bf16_f32 v{P1}, v{P1}, v{P1}")
    a(f"s_mov_b32 exec_hi, 0\ns_mov_b32 exec_lo, 0x00ff00ff")
    a(f"buffer_store_short v{P1}, v{vXO}, {S(SC_)}, s69 offen {osc}")
    a(f"s_or_b32 s65, s{sKG}, s{sWv}\ns_cmp_lg_u32 s65, 0\ns_cbranch_scc1 L_sdone")
    a("s_mov_b64 exec, 1")
    a(f"buffer_store_dword v{GR+3}, v{vZ}, {S(SW)}, 0 offen {osc}")
    a.label("L_sdone")
    stamp(7)
    pad("S")
    dump_stamps(9)
    a("s_endpgm")

    a.label("L_helper")
    X, F, AF, AF2, BF, D, TG = 32, 64, 96, 112, 128, 184, 200
    a("s_setprio 3")
    a(f"v_mul_u32_u24 v6, 896, v5\nv_lshl_add_u32 v6, v4, 6, v6\nv_mov_b32 v7, 0x40000000\nv_cmp_gt_u32 s[74:75], 14, v4")
    a(f"v_cndmask_b32 v7, v7, v6, s[74:75]")
    a(f"v_lshrrev_b32 v8, 3, v0\nv_and_b32 v9, 7, v0\nv_lshlrev_b32 v9, 4, v9\nv_lshl_add_u32 v10, v8, 13, v9")
    a(f"v_mul_u32_u24 v11, 3584, v8\nv_add_u32 v11, v11, v9")
    a(f"s_mul_i32 s65, s{sB}, {112 * 8192}\ns_lshl_b32 s66, s{sIDX}, 7\ns_add_u32 s65, s65, s66")
    a("s_waitcnt lgkmcnt(0)")
    a(f"s_load_dword s{sTAG}, s[26:27], 0")
    srd(SA, 4, 3584)
    for u in range(4): a(f"buffer_load_dwordx4 {V4(X+4*u)}, v7, {S(SA)}, 0 offen offset:{16*u}")
    srd(SB, 10, 448 * 8192)
    def dma(sr, voff, so, stride, lds0, win=None):
        for k in range(14):
            if win and k >= win: a(f"s_waitcnt vmcnt({win-1})")
            a(f"s_mov_b32 m0, {lds0 + 1024 * k}")
            a(f"buffer_load_dwordx4 v{voff}, {S(sr)}, s{so} offen {wnt} lds")
            if k < 13: a(f"s_add_u32 s{so}, s{so}, {8 * stride}")
    if not noq: dma(SB, 10, 65, 8192, WL0)
    srd(SW, 26, WS_USED)
    a(f"v_and_b32 v14, 3, v4\nv_lshrrev_b32 v15, 2, v4\ns_mul_i32 s65, s{sB}, 224")
    a(f"v_mul_u32_u24 v12, 896, v15\nv_add_u32 v12, s65, v12\nv_lshl_add_u32 v28, v5, 3, v12\nv_lshl_add_u32 v12, v5, 4, v12")
    a(f"v_mul_u32_u24 v30, 896, v14\nv_add_u32 v30, s65, v30\nv_lshl_add_u32 v31, v5, 3, v30\nv_lshl_add_u32 v30, v5, 4, v30")
    a(f"v_lshl_add_u32 v8, v5, 2, v14\nv_lshlrev_b32 v8, 4, v8\nv_lshl_add_u32 v8, v15, 16, v8")
    a(f"v_lshlrev_b32 v9, 5, v14\nv_lshl_add_u32 v9, v15, 3, v9\nv_lshl_add_u32 v9, v5, 7, v9")
    for t in range(1, 4): a(f"v_cmp_eq_u32 s[{66+2*t}:{67+2*t}], {t}, v14")
    a(f"v_lshlrev_b32 v15, 7, v15\nv_lshl_add_u32 v15, v14, 3, v15")
    a(f"v_lshl_add_u32 v13, v5, 10, v15\nv_lshl_add_u32 v29, v5, 9, v15")
    a("s_waitcnt vmcnt(14)" if not noq else "s_waitcnt vmcnt(0)")
    stamp(1)
    for k in range(16): a(f"v_lshlrev_b32 v{F+2*k}, 16, v{X+k}\nv_and_b32 v{F+2*k+1}, 0xffff0000, v{X+k}")
    a(f"v_pk_add_f32 v[14:15], {V2(F)}, {V2(F+2)}\nv_pk_add_f32 v[16:17], {V2(F+4)}, {V2(F+6)}")
    for k in range(4, 16, 2):
        a(f"v_pk_add_f32 v[14:15], v[14:15], {V2(F+2*k)}\nv_pk_add_f32 v[16:17], v[16:17], {V2(F+2*k+2)}")
    a("v_pk_add_f32 v[14:15], v[14:15], v[16:17]\nv_add_f32 v14, v14, v15")
    def rowsum(r):
        for sh in (8, 4, 2, 1): a(f"v_add_f32_dpp v{r}, v{r}, v{r} row_ror:{sh} {FULL}")
    rowsum(14)
    a(f"v_mul_f32 v18, {hex(f2u(-1.0 / 448))}, v14\nv_mov_b32 v19, v18")
    a("v_mov_b32 v14, 0\nv_mov_b32 v15, 0\nv_mov_b32 v16, 0\nv_mov_b32 v17, 0")
    for k in range(0, 16, 2):
        a(f"v_pk_add_f32 v[20:21], {V2(F+2*k)}, v[18:19]\nv_pk_add_f32 v[22:23], {V2(F+2*k+2)}, v[18:19]")
        a(f"v_pk_fma_f32 v[14:15], v[20:21], v[20:21], v[14:15]\nv_pk_fma_f32 v[16:17], v[22:23], v[22:23], v[16:17]")
    a("v_pk_add_f32 v[14:15], v[14:15], v[16:17]\nv_add_f32 v14, v14, v15\nv_cndmask_b32 v14, 0, v14, s[74:75]")
    rowsum(14)
    def rbf(r): a(f"v_cvt_pk_bf16_f32 v{r}, v{r}, v{r}\nv_and_b32 v{r}, 0xffff0000, v{r}")
    a(f"v_mul_f32 v14, {hex(f2u(1.0 / 448))}, v14"); rbf(14)
    a(f"v_add_f32 v14, {hex(f2u(1e-5))}, v14"); rbf(14)
    a("v_sqrt_f32 v14, v14"); rbf(14)
    a("v_rcp_f32 v16, v14\nv_mov_b32 v15, v14"); rbf(18)
    a("v_mov_b32 v17, v16\nv_mov_b32 v19, v18")
    for k in range(16):
        a(f"v_pk_add_f32 {V2(F+2*k)}, {V2(F+2*k)}, v[18:19]")
    for k in range(16):
        a(f"v_cvt_pk_bf16_f32 v{X+k}, v{F+2*k}, v{F+2*k+1}")
    for k in range(16): a(f"v_lshlrev_b32 v{F+2*k}, 16, v{X+k}\nv_and_b32 v{F+2*k+1}, 0xffff0000, v{X+k}")
    for k in range(16):
        t = 20 + 2 * (k & 3)
        a(f"v_pk_mul_f32 {V2(t)}, {V2(F+2*k)}, v[16:17]")
        a(f"v_pk_fma_f32 {V2(F+2*k)}, {V2(t)}, v[14:15], {V2(F+2*k)} neg_lo:[1,0,0] neg_hi:[1,0,0]")
        a(f"v_pk_fma_f32 {V2(t)}, {V2(F+2*k)}, v[16:17], {V2(t)}")
        a(f"v_cvt_pk_bf16_f32 v{X+k}, v{t}, v{t+1}")
    a("s_mov_b64 exec, s[74:75]")
    for u in range(4): a(f"ds_write_b128 v6, {V4(X+4*u)} offset:{XN + 16*u}")
    a("s_mov_b64 exec, -1")
    a("s_waitcnt lgkmcnt(0)")
    a(f"s_mul_i32 s{sTAG}, s{sTAG}, 0x9E3779B1\ns_add_u32 s{sTAG}, s{sTAG}, 0x7F4A7C15")
    for k in range(3): a(f"ds_read_b128 {V4(AF+4*k)}, v12 offset:{XN + 64*k}")
    a(f"ds_read_b64 {V2(AF+12)}, v28 offset:{XN + 192}")
    a(f"v_mov_b32 v{TG}, s{sTAG}\nv_lshrrev_b32 v{TG+1}, 8, v{TG}\nv_lshrrev_b32 v{TG+2}, 16, v{TG}\nv_lshrrev_b32 v{TG+3}, 24, v{TG}\ns_movk_i32 s78, 0xff")
    a(f"v_lshlrev_b32 v10, 4, v0")
    a(f"s_lshl_b32 s66, s{sH}, 12\ns_lshl_b32 s67, s{sB}, 10\ns_add_u32 s66, s66, s67\ns_lshl_b32 s67, s{sJ}, 8\ns_add_u32 s66, s66, s67\ns_add_u32 s66, s66, {QMB}")
    a(f"s_lshl_b32 s67, s{sBH}, 12\ns_add_u32 s67, s67, {QMB}")
    a("s_waitcnt vmcnt(0)")
    stamp(2)
    def piece(af, transposed):
        for t in range(4):
            for k in range(3):
                o = WL0 + 4096 * k + 32 * t
                a(f"ds_read_b64_tr_b16 {V2(BF+14*t+4*k)}, v13 offset:{o}\nds_read_b64_tr_b16 {V2(BF+14*t+4*k+2)}, v13 offset:{o + 512}")
            a(f"ds_read_b64_tr_b16 {V2(BF+14*t+12)}, v29 offset:{WL0 + 12288 + 32 * t}")
        a("s_waitcnt lgkmcnt(0)")
        for k in range(3):
            for t in range(4):
                x, w = V4(af+4*k), V4(BF+14*t+4*k)
                a(f"v_mfma_f32_16x16x32_bf16 {V4(D+4*t)}, {w if transposed else x}, {x if transposed else w}, {'0' if k == 0 else V4(D+4*t)}")
        for t in range(4):
            x, w = V2(af+12), V2(BF+14*t+12)
            a(f"v_mfma_f32_16x16x16_bf16 {V4(D+4*t)}, {w if transposed else x}, {x if transposed else w}, {V4(D+4*t)}")
        for t in range(1, 4):
            for r in range(4):
                if transposed: a(f"v_cndmask_b32 v{D+r}, v{D+r}, v{D+4*t+r}, s[{66+2*t}:{67+2*t}]")
                else: a(f"v_mov_b32_dpp v{D+r}, v{D+4*t+r} {IDP} row_mask:{hex(1 << t)} bank_mask:0xf")
        for r in range(4): a(f"v_add_u32 v{D+r}, 0x80, v{D+r}")
        for r in range(4): a(f"v_bfi_b32 v{20+r}, s78, v{TG+r}, v{D+r}")
    piece(AF, True)
    if noq or not qst: a("s_branch L_pqok")
    a(f"buffer_store_dwordx4 v[20:23], v8, {S(SW)}, s66 offen sc1")
    stamp(3)
    for k in range(3): a(f"ds_read_b128 {V4(AF2+4*k)}, v30 offset:{XN + 64*k}")
    a(f"ds_read_b64 {V2(AF2+12)}, v31 offset:{XN + 192}")
    a(f"v_mov_b32 v16, 0\nv_mov_b32 v17, 0\nv_mov_b32 v18, 0\nv_mov_b32 v19, 0")
    a(f"s_mov_b32 exec_hi, 0xff\nds_write_b128 v10, v[16:19] offset:{HIMG}\ns_mov_b64 exec, -1")
    PQ = F
    def qload(k): a(f"buffer_load_dwordx4 {V4(PQ+4*k)}, v10, {S(SW)}, s67 offen offset:{1024 * k} sc1")
    def chk4(dst, src):
        a(f"v_xor_b32 v{dst}, v{src}, v{TG}")
        for t in range(1, 4): a(f"v_bitop3_b32 v{dst}, v{src+t}, v{TG+t}, v{dst} bitop3:0xbe")
        a(f"v_and_b32 v{dst}, s78, v{dst}")
    if sleepq: a(f"s_sleep {sleepq}")
    for k in range(4): qload(k)
    a(f"s_mov_b32 s{sCNT}, {spin}")
    a.label("L_pq")
    a("s_waitcnt vmcnt(0)")
    for k in range(4): chk4(X + k, PQ + 4 * k)
    a(f"v_or3_b32 v24, v{X}, v{X+1}, v{X+2}\nv_or_b32 v24, v24, v{X+3}")
    a("v_cmp_ne_u32 vcc, 0, v24\ns_cbranch_vccz L_pqok", drain=False)
    a(f"s_sleep 2")
    for k in range(4):
        a(f"v_cmp_ne_u32 vcc, 0, v{X+k}\ns_cbranch_vccz L_pqs{k}", drain=False)
        qload(k)
        a.label(f"L_pqs{k}", drain=False)
    a(f"s_sub_u32 s{sCNT}, s{sCNT}, 1\ns_cmp_lg_u32 s{sCNT}, 0\ns_cbranch_scc1 L_pq", drain=False)
    a.label("L_pqok", drain=False)
    for k in range(16): a(f"v_and_b32 v{PQ+k}, 0xffffff00, v{PQ+k}")
    for e in (0, 2):
        a(f"v_pk_add_f32 {V2(PQ+e)}, {V2(PQ+e)}, {V2(PQ+4+e)}\nv_pk_add_f32 {V2(PQ+8+e)}, {V2(PQ+8+e)}, {V2(PQ+12+e)}")
    for e in (0, 2): a(f"v_pk_add_f32 {V2(PQ+e)}, {V2(PQ+e)}, {V2(PQ+8+e)}")
    a(f"v_cvt_pk_bf16_f32 v24, v{PQ}, v{PQ+1}\nv_cvt_pk_bf16_f32 v25, v{PQ+2}, v{PQ+3}\nv_mov_b32 v17, 0")
    a(f"ds_write_b64 v9, v[24:25] offset:{QL}\nds_write_b32 v17, v{TG} offset:{TAGL}")
    a("s_waitcnt lgkmcnt(0)")
    stamp(4)
    if stamps: a(f"s_mov_b32 s92, s{sCNT}")
    a("s_barrier")
    a("s_setprio 0")
    if noffn: a("s_branch L_hend")
    a(f"s_cmp_ge_u32 s{sIDX}, 56\ns_cbranch_scc1 L_noffn")
    a(f"s_bitcmp1_b32 s{sIDX}, 0\ns_cselect_b32 s{SC_}, s18, s16\ns_cselect_b32 s{SC_+1}, s19, s17\ns_mov_b32 s{SC_+2}, {448 * 3584}\ns_mov_b32 s{SC_+3}, 0x20000")
    a(f"s_lshr_b32 s66, s{sIDX}, 1\ns_mul_i32 s65, s{sB}, {112 * 3584}\ns_lshl_b32 s67, s66, 7\ns_add_u32 s65, s65, s67")
    if fdma: dma(SC_, 11, 65, 3584, WL0, win=HW)
    a(f"s_and_b32 s67, s{sIDX}, 1\ns_lshl_b32 s67, s67, 2\ns_add_u32 s67, s67, s{sB}\ns_mul_i32 s67, s67, {1792 * 16}\ns_lshl_b32 s66, s66, 10\ns_add_u32 s66, s66, s67\ns_add_u32 s66, s66, {FMB}")
    a("s_waitcnt vmcnt(0)")
    piece(AF2, False)
    if fst: a(f"buffer_store_dwordx4 v[20:23], v10, {S(SW)}, s66 offen sc1")
    a.label("L_noffn")
    if not fpoll: a("s_branch L_hend")
    a("s_cmp_ge_u32 s2, 224\ns_cbranch_scc1 L_f3")
    a(f"v_lshrrev_b32 v14, 3, v0\nv_and_b32 v15, 7, v0")
    a(f"v_mul_u32_u24 v9, {1792 * 16}, v14\nv_lshl_add_u32 v9, v15, 4, v9")
    a(f"s_lshl_b32 s67, s2, 7\ns_add_u32 s66, s67, {FMB}\ns_add_u32 s67, s67, {HMB}")
    a(f"s_mov_b32 s{sCNT}, {spin}")
    a.label("L_pf")
    a(f"s_sleep {sleepf}")
    a(f"buffer_load_dwordx4 v[32:35], v9, {S(SW)}, s66 offen sc1")
    a("s_waitcnt vmcnt(0)")
    chk4(24, 32)
    a("v_cmp_ne_u32 vcc, 0, v24\ns_cbranch_vccz L_pfok")
    a(f"s_sub_u32 s{sCNT}, s{sCNT}, 1\ns_cmp_lg_u32 s{sCNT}, 0\ns_cbranch_scc1 L_pf")
    a.label("L_pfok")
    for r in range(4): a(f"v_and_b32 v{32+r}, 0xffffff00, v{32+r}")
    for r in range(4): a(f"v_add_f32_dpp v{32+r}, v{32+r}, v{32+r} row_ror:8 {FULL}")
    for r in range(4): a(f"v_mov_b32 v{36+r}, v{32+r}")
    for r in range(4): a(f"v_permlane16_swap_b32 v{32+r}, v{36+r}")
    for r in range(4): a(f"v_add_f32 v{32+r}, v{32+r}, v{36+r}")
    for r in range(4): rbf(32 + r)
    for r in range(4): a(f"v_mov_b32 v{36+r}, v{32+r}")
    for r in range(4): a(f"v_permlane32_swap_b32 v{32+r}, v{36+r}")
    k1 = -2.0 * math.sqrt(2.0 / math.pi) * math.log2(math.e)
    for r in range(4):
        g, u, t = 32 + r, 36 + r, 40 + r
        a(f"v_mul_f32 v{t}, v{g}, v{g}\nv_mul_f32 v{t}, {hex(f2u(0.044715))}, v{t}\nv_fma_f32 v{t}, v{t}, v{g}, v{g}")
        a(f"v_mul_f32 v{t}, {hex(f2u(k1))}, v{t}\nv_exp_f32 v{t}, v{t}\nv_add_f32 v{t}, 1.0, v{t}\nv_rcp_f32 v{t}, v{t}\nv_mul_f32 v{g}, v{g}, v{t}")
        rbf(g)
        a(f"v_mul_f32 v{g}, v{g}, v{u}")
    a(f"v_cvt_pk_bf16_f32 v20, v32, v33\nv_cvt_pk_bf16_f32 v22, v34, v35\nv_mov_b32 v21, v{TG}\nv_mov_b32 v23, v{TG}")
    a("s_mov_b64 exec, 0xff")
    a(f"buffer_store_dwordx4 v[20:23], v10, {S(SW)}, s67 offen sc1")
    a.label("L_f3")
    a(f"s_cmp_eq_u32 s{sCG}, 7\ns_cbranch_scc1 L_hend")
    a("s_mov_b32 exec_lo, -1\ns_mov_b32 exec_hi, 0x00ffffff")
    a(f"s_lshr_b32 s66, s2, 3\ns_mul_i32 s66, s66, {56 * 16}\ns_add_u32 s66, s66, {HMB}\nv_lshlrev_b32 v9, 1, v0")
    a(f"s_mov_b32 s{sCNT}, {spin}")
    a.label("L_ph")
    a(f"s_sleep {sleepf}")
    a(f"buffer_load_dwordx4 v[32:35], v10, {S(SW)}, s66 offen sc1")
    a("s_waitcnt vmcnt(0)")
    a(f"v_xor_b32 v24, v33, v{TG}\nv_bitop3_b32 v24, v35, v{TG}, v24 bitop3:0xbe")
    a("v_cmp_ne_u32 vcc, 0, v24\ns_cbranch_vccz L_phok")
    a(f"s_sub_u32 s{sCNT}, s{sCNT}, 1\ns_cmp_lg_u32 s{sCNT}, 0\ns_cbranch_scc1 L_ph")
    a.label("L_phok")
    a(f"ds_write_b16 v9, v32 offset:{HIMG}\nds_write_b16_d16_hi v9, v32 offset:{HIMG + HROW}")
    a(f"ds_write_b16 v9, v34 offset:{HIMG + 2 * HROW}\nds_write_b16_d16_hi v9, v34 offset:{HIMG + 3 * HROW}")
    a("s_waitcnt lgkmcnt(0)")
    a.label("L_hend")
    a("s_mov_b64 exec, -1")
    stamp(5)
    pad("H")
    dump_stamps(7)
    a.label("L_end")
    a("s_endpgm")
    a.raw('.section .rodata,"a"'); a.raw(".p2align 6"); a.raw(f".amdhsa_kernel {NAME}")
    a.raw("  .amdhsa_next_free_vgpr 256"); a.raw("  .amdhsa_next_free_sgpr 102"); a.raw("  .amdhsa_accum_offset 256")
    a.raw("  .amdhsa_group_segment_fixed_size 0"); a.raw("  .amdhsa_kernarg_size 96"); a.raw("  .amdhsa_user_sgpr_count 2")
    a.raw("  .amdhsa_user_sgpr_kernarg_segment_ptr 1"); a.raw("  .amdhsa_system_sgpr_workgroup_id_x 1"); a.raw(".end_amdhsa_kernel")
    return a.text()

if __name__ == "__main__":
    out = sys.argv[1]
    kw = eval("dict(" + (sys.argv[2] if len(sys.argv) > 2 else "") + ")")
    open(out, "w").write(gen(**kw))
```

```python
import sys, struct, math
sys.path.insert(0, "gen")
from asmlib import Asm

NAME = "parallel_sum__mha_block_cached__geglu_ffn__decode_kernel"
HEADER = open("parallel_sum__mha_block_cached__geglu_ffn__decode.s.ref").read().split("; Override launch")[0]

def f2u(x): return struct.unpack("<I", struct.pack("<f", x))[0]

QMB = 0x10000
FMB = QMB + 64 * 4096
MB1 = 0xA0000
MB2 = 0x120000
TSB = 0x400000
WS_USED = TSB + 0x10000
assert FMB + 28 * 8192 <= MB1
XN, QL, TAGL, ML, HIMG, AIMG, OP, SC = 0, 3584, 4096, 4128, 4224, 4864, 6144, 10240
HROW, AROW = 144, 272
WL0 = SC + 16384
WL1 = WL0 + 14336
WL2 = WL1 + 16384
LDS_BYTES = WL2 + 8192

FULL = "row_mask:0xf bank_mask:0xf"
IDP = "quad_perm:[0,1,2,3]"

def gen(W=5, NP=5, nt="nt", wnt="nt", stamps=False, warm=True, sleep1=0, sleep2=0, sleepq=50, spin=1 << 16,
        padto=0, padwg=None, padstamp=None, HW=4, noffn=0, noq=0, nowo=0, touch=1, sleepf=60, fdma=1, fst=1, fpoll=1, qst=1, pat=3, Wend=None, nend=0, W0=None, osc='', scr=1, remap=2, D2=2, stag2=4, early1=0, role=3, fast=1, hoist=1, clean=0, fastq=1, fastf=1, nq=5):
    assert not (fast or fastf) or role == 3
    assert early1 != 2 or hoist
    a = Asm()
    a.raw(HEADER.rstrip("\n"))
    a.raw(f"; @launch grid=(256,1,1) block=(320,1,1) lds={LDS_BYTES}")
    a.raw('.amdgcn_target "amdgcn-amd-amdhsa--gfx950"')
    a.raw(".text"); a.raw(f".globl {NAME}"); a.raw(".p2align 8"); a.raw(f".type {NAME},@function")
    a.raw(f"{NAME}:")
    SK, SV, SW, SA, SB, SC_, SD = 28, 32, 36, 40, 44, 48, 52
    sB, sH, sJ, sIDX, sBH, sTAG, sCNT, sKO, sVO, sWv, sKG, sCG = 56, 57, 58, 59, 60, 61, 62, 63, 64, 72, 73, 79
    def srd(r, ptr, size):
        a(f"s_mov_b32 s{r}, s{ptr}\ns_mov_b32 s{r+1}, s{ptr+1}\ns_mov_b32 s{r+2}, {size}\ns_mov_b32 s{r+3}, 0x20000")
    def S(r): return f"s[{r}:{r+3}]"
    def V4(r): return f"v[{r}:{r+3}]"
    def V2(r): return f"v[{r}:{r+1}]"
    def stamp(k):
        if stamps or padstamp is not None:
            a(f"s_memrealtime s[{80+2*k}:{81+2*k}]")
    def dump_stamps(n):
        if not stamps: return
        a("s_waitcnt lgkmcnt(0)")
        a("s_mov_b64 exec, 1")
        a(f"s_mul_i32 s65, s2, 5\ns_add_u32 s65, s65, s3\ns_mul_i32 s65, s65, 48\ns_add_u32 s65, s65, {TSB}")
        a("v_mov_b32 v1, 0")
        for k in range(n):
            a(f"v_mov_b32 v2, s{80+2*k}")
            a(f"buffer_store_dword v2, v1, {S(SW)}, s65 offen offset:{4*k}")
        a(f"v_mov_b32 v2, s{sCNT}\nbuffer_store_dword v2, v1, {S(SW)}, s65 offen offset:44")
        a("s_waitcnt vmcnt(0)")
    def pad(role):
        if not padto: return
        r, k = padstamp if padstamp is not None else ("S", 0)
        if r != role: return
        if padwg is not None: a(f"s_cmp_lg_u32 s2, {padwg}\ns_cbranch_scc1 L_end")
        a.label(f"L_pad{role}")
        a(f"s_sleep 1\ns_memrealtime s[98:99]\ns_waitcnt lgkmcnt(0)\ns_sub_u32 s98, s98, s{80+2*k}\ns_cmp_lt_u32 s98, {padto}\ns_cbranch_scc1 L_pad{role}")

    a("s_cmp_ge_u32 s2, 256\ns_cbranch_scc1 L_end")
    a("s_load_dwordx16 s[4:19], s[0:1], 0\ns_load_dwordx8 s[20:27], s[0:1], 64")
    stamp(0)
    a("v_lshrrev_b32 v1, 6, v0\nv_and_b32 v0, 63, v0\nv_readfirstlane_b32 s3, v1")
    if role == 1:
        a(f"s_and_b32 s65, s2, 7\ns_lshl_b32 s65, s65, 2\ns_bfe_u32 s{sKG}, s2, 0x20003\ns_or_b32 s{sKG}, s{sKG}, s65\ns_lshr_b32 s{sCG}, s2, 5")
    if role == 2:
        a(f"s_and_b32 s65, s2, 15\ns_lshl_b32 s65, s65, 1\ns_bfe_u32 s{sKG}, s2, 0x10004\ns_or_b32 s{sKG}, s{sKG}, s65\ns_lshr_b32 s{sCG}, s2, 5")
    if pat >= 3 and remap == 3:
        a("s_bfe_u32 s65, s2, 0x20003\ns_xor_b32 s2, s2, s65")
    if pat >= 3 and remap == 2:
        a("s_bfe_u32 s65, s2, 0x20003\ns_and_b32 s66, s2, 7\ns_lshl_b32 s66, s66, 2\ns_and_b32 s2, s2, 0xe0\ns_or_b32 s2, s2, s65\ns_or_b32 s2, s2, s66")
    a(f"s_lshr_b32 s{sB}, s2, 6\ns_lshr_b32 s{sBH}, s2, 2\ns_and_b32 s{sH}, s{sBH}, 15\ns_and_b32 s{sJ}, s2, 3\ns_and_b32 s{sIDX}, s2, 63")
    if role == 3:
        a(f"s_lshl_b32 s{sKG}, s{sH}, 1\ns_and_b32 s65, s{sJ}, 1\ns_or_b32 s{sKG}, s{sKG}, s65\ns_lshl_b32 s{sCG}, s{sB}, 1\ns_lshr_b32 s65, s{sJ}, 1\ns_or_b32 s{sCG}, s{sCG}, s65")
    if role == 0: a(f"s_lshr_b32 s{sKG}, s2, 3\ns_add_u32 s{sCG}, s2, s{sKG}\ns_and_b32 s{sCG}, s{sCG}, 7")
    a("v_and_b32 v4, 15, v0\nv_lshrrev_b32 v5, 4, v0")
    a("s_cmp_eq_u32 s3, 0\ns_cbranch_scc1 L_helper")

    vKO, vVO, vSC, vMAX, vL, vC, vMC, vS = 1, 2, 3, 6, 7, 28, 29, 30
    vJ, vG = 4, 5
    MASK, OACC, BB, QF, DA, TMP, R = 8, 12, 20, 32, 64, 84, 96
    def ring(tile, u): return R + 32 * tile + 4 * u
    a(f"s_sub_u32 s{sWv}, s3, 1")
    kb, wb = {0: ((9, 10), (11, 12)), 1: ((12, 13), (10, 11)), 2: ((12, 13), (14, 15)), 3: ((15, 13), (11, 14)), 4: ((15, 9), (11, 13))}[pat]
    sM = 100
    a(f"v_and_b32 v{TMP+1}, 3, v{vJ}\nv_lshlrev_b32 v{TMP+1}, 4, v{TMP+1}")
    a(f"v_lshl_add_u32 v{TMP+1}, v{vG}, 6, v{TMP+1}")
    a(f"v_bfe_u32 v{TMP}, v0, 2, 1\nv_lshl_add_u32 v{vKO}, v{TMP}, {kb[0]}, v{TMP+1}\nv_bfe_u32 v{TMP}, v0, 3, 1\nv_lshl_add_u32 v{vKO}, v{TMP}, {kb[1]}, v{vKO}")
    a(f"s_lshl_b32 s{sKO}, s2, 19\ns_and_b32 s65, s{sWv}, 1\ns_lshl_b32 s65, s65, {wb[0]}\ns_add_u32 s{sKO}, s{sKO}, s65")
    a(f"s_lshr_b32 s65, s{sWv}, 1\ns_lshl_b32 s65, s65, {wb[1]}\ns_add_u32 s{sKO}, s{sKO}, s65")
    if pat >= 3:
        if scr:
            a(f"s_mul_i32 s65, s{sBH}, 0x9E3779B1\ns_and_b32 s{sM}, s65, 0x300000\ns_lshr_b32 s{sM}, s{sM}, 3\ns_or_b32 s{sM}, s{sM}, 0x10000")
            a(f"s_lshr_b32 s65, s65, 6\ns_and_b32 s65, s65, 0x70000\ns_or_b32 s{sKO}, s{sKO}, s65")
        else:
            a(f"s_mov_b32 s{sM}, 0x10000")
    a(f"s_mov_b32 s{sVO}, s{sKO}")
    a(f"v_lshlrev_b32 v{vVO}, 4, v{vJ}\nv_bfe_u32 v{TMP}, v0, 4, 1\nv_lshl_add_u32 v{vVO}, v{TMP}, {kb[0]}, v{vVO}\nv_bfe_u32 v{TMP}, v0, 5, 1\nv_lshl_add_u32 v{vVO}, v{TMP}, {kb[1]}, v{vVO}")
    a("s_waitcnt lgkmcnt(0)")
    srd(SK, 6, 1 << 27)
    vm = []
    def issue(kind, reg, u, tagid):
        sr, vo, so = (SK, vKO, sKO) if kind == "K" else (SV, vVO, sVO)
        o = {0: 256 * (u & 1), 1: 256 * (u & 3), 2: 256 * u, 3: 256 * u, 4: 256 * (u & 1) + 512 * (u & 2)}[pat]
        off = f" offset:{o}" if o else ""
        a(f"buffer_load_dwordx4 {V4(reg)}, v{vo}, {S(sr)}, s{so} offen{off} {nt}")
        if pat == 0 and u & 1: a(f"s_add_u32 s{so}, s{so}, 8192")
        if pat == 1 and (u & 3) == 3: a(f"s_add_u32 s{so}, s{so}, 16384")
        if pat == 4 and (u & 3) == 3: a(f"s_xor_b32 s{so}, s{so}, 0x4000")
        if pat >= 3 and u == 7:
            a(f"s_xor_b32 s{so}, s{so}, 0x1000\ns_bitcmp1_b32 s{so}, 12\ns_cselect_b32 s65, 0, s{sM}\ns_add_u32 s65, s65, s{so}\ns_and_b32 s65, s65, 0x70000\ns_andn2_b32 s{so}, s{so}, 0x70000\ns_or_b32 s{so}, s{so}, s65")
        if pat == 2 and u == 7:
            a(f"s_bitcmp1_b32 s{so}, 11\ns_cselect_b32 s65, {65536 - 4096}, 0\ns_add_u32 s{so}, s{so}, s65\ns_add_u32 s{so}, s{so}, 2048")
        vm.append(tagid)
    def wait_for(tagid):
        if tagid not in vm: return
        n = len(vm) - 1 - vm.index(tagid)
        assert n < 64
        a(f"s_waitcnt vmcnt({n})")
    nload = [0]
    curW = [W]
    def throttle_issue(kind, reg, u):
        n = nload[0]
        wait_for(("s", n - curW[0]))
        issue(kind, reg, u, ("s", n)); nload[0] += 1
    W0 = W0 or W
    curW[0] = W0
    for n in range(W0):
        throttle_issue("K", ring(n // 8, n % 8), n % 8)
    curW[0] = W
    if warm:
        a(f"s_cmp_lg_u32 s3, 1\ns_cbranch_scc1 L_nowarm")
        a(f"s_getpc_b64 s[66:67]\nv_lshlrev_b32 v{TMP+2}, 7, v0")
        a(f"global_load_dword v{TMP+3}, v{TMP+2}, s[66:67]")
        a.label("L_nowarm")
    srd(SV, 8, 1 << 27); srd(SW, 26, WS_USED); srd(SC_, 22, 3584); srd(SD, 4, 3584)
    srd(SA, 12, 4096 * 896); srd(SB, 20, 1792 * 896)
    for k in range(32): a(f"v_mov_b32 v{QF+k}, 0")
    for k in range(8): a(f"v_mov_b32 v{OACC+k}, 0")
    a(f"v_mov_b32 v{vMAX}, 0xff800000\nv_mov_b32 v{vL}, 0\nv_mov_b32 v{vC}, {hex(f2u(math.log2(math.e) / 16))}")
    a(f"v_and_b32 v{TMP+4}, 1, v{vJ}\nv_lshlrev_b32 v{TMP+4}, 4, v{TMP+4}\nv_mov_b32 v{TMP+5}, 0xffff\nv_lshlrev_b32 v{TMP+4}, v{TMP+4}, v{TMP+5}")
    a(f"v_bfe_u32 v{TMP+5}, v{vJ}, 1, 2")
    for w in range(4):
        a(f"v_cmp_eq_u32 vcc, {w}, v{TMP+5}\nv_cndmask_b32 v{MASK+w}, 0, v{TMP+4}, vcc")
    a(f"s_lshl_b32 s65, s{sWv}, 12\ns_add_u32 s65, s65, {SC}\nv_lshl_add_u32 v{vSC}, v0, 2, s65")
    for n in range(W0, 8 * NP):
        throttle_issue("K", ring(n // 8, n % 8), n % 8)
    stamp(1)
    a("s_barrier")
    stamp(2)
    for t in range(4):
        m = 0x000F000F << (4 * t)
        a(f"s_mov_b32 exec_lo, {hex(m)}\ns_mov_b32 exec_hi, {hex(m)}")
        for half in range(2):
            a(f"ds_read_b128 {V4(QF + 4 * (2 * t + half))}, v{TMP+1} offset:{QL + 256 * half}")
    a("s_mov_b64 exec, -1")
    a(f"v_mov_b32 v{TMP}, 0\nds_read_b64 {V2(TMP+2)}, v{TMP} offset:{TAGL}")
    a("s_waitcnt lgkmcnt(0)")
    a(f"v_readfirstlane_b32 s{sTAG}, v{TMP+2}\nv_readfirstlane_b32 s101, v{TMP+3}")

    def consK(reg, u, d):
        c = "0" if u == 0 else V4(d)
        a(f"v_mfma_f32_16x16x32_bf16 {V4(d)}, {V4(reg)}, {V4(QF + 4 * u)}, {c}")
    def extract(ds, off0):
        for k, d in enumerate(ds): a(f"v_mov_b32_dpp v{TMP+k}, v{d} quad_perm:[0,0,0,0] {FULL}")
        for c in range(1, 4):
            for k, d in enumerate(ds): a(f"v_add_f32_dpp v{TMP+k}, v{d+c}, v{TMP+k} quad_perm:[{c},{c},{c},{c}] {FULL}")
        for k, d in enumerate(ds): a(f"v_cvt_pk_bf16_f32 v{TMP+k}, v{TMP+k}, v{TMP+k}")
        for k, d in enumerate(ds): a(f"v_and_b32 v{TMP+k}, 0xffff0000, v{TMP+k}")
        for k, d in enumerate(ds):
            a(f"ds_write_b32 v{vSC}, v{TMP+k} offset:{off0 + 256 * k}")
            a(f"v_max_f32 v{vMAX}, v{vMAX}, v{TMP+k}")
        a(f"v_add_u32 v{vSC}, {256 * len(ds)}, v{vSC}")
    for u in range(8):
        consK(ring(0, u), u, DA)
        throttle_issue("K", ring(0, u), u)
        for T in range(1, NP): consK(ring(T, u), u, DA + 4 * T)
    extract([DA + 4 * T for T in range(NP)], 0)

    T0 = R + 32
    vX, vXO, vOPW, vMLW, vOPR, vZ, vL16, vST2, vTR, vTR2, vTRD, vTRD2, vHA, vAR, vAW, vWO, vWD = range(T0, T0 + 17)
    vML = T0 + 18
    G = T0 + 20
    GR = T0 + 36
    P1 = T0 + 40
    AH = T0 + 56
    AO = T0 + 64
    BW = T0 + 80
    BD = T0 + 96
    Y = T0 + 104
    E = T0 + 108
    def tail_addr():
        a(f"s_lshl_b32 s65, s{sWv}, 10\ns_add_u32 s65, s65, {OP}\nv_lshl_add_u32 v{vOPW}, v0, 4, s65")
        a(f"s_lshl_b32 s65, s{sWv}, 3\ns_add_u32 s65, s65, {ML}\nv_mov_b32 v{vMLW}, s65")
        a(f"s_lshl_b32 s65, s{sWv}, 8\ns_add_u32 s65, s65, {OP}\nv_lshl_add_u32 v{vOPR}, v0, 3, s65")
        a(f"v_mov_b32 v{vZ}, 0\nv_lshlrev_b32 v{vL16}, 4, v0\nv_mov_b32 v{GR+3}, s{sTAG}")
        a(f"s_lshl_b32 s70, s2, 11\ns_lshl_b32 s65, s{sWv}, 9\ns_add_u32 s70, s70, s65\ns_add_u32 s70, s70, {MB1}")
        a(f"s_lshl_b32 s71, s{sWv}, 17\ns_lshr_b32 s65, s{sKG}, 1\ns_lshl_b32 s65, s65, 13\ns_add_u32 s71, s71, s65")
        a(f"s_and_b32 s65, s{sKG}, 1\ns_lshl_b32 s65, s65, 10\ns_add_u32 s71, s71, s65\ns_add_u32 s71, s71, {MB1}\ns_add_u32 s74, s71, 4096")
        a(f"v_lshrrev_b32 v{E}, 3, v0\nv_and_b32 v{E+1}, 7, v0\nv_and_b32 v{E+2}, 2, v{E}\nv_xor_b32 v{E+1}, v{E+1}, v{E+2}\nv_lshlrev_b32 v{E+1}, 4, v{E+1}")
        a(f"v_and_b32 v{E+2}, 3, v{E}\nv_lshlrev_b32 v{E+2}, 3, v{E+2}\nv_lshrrev_b32 v{E+3}, 2, v{E}\nv_add_u32 v{E+2}, v{E+2}, v{E+3}")
        a(f"v_mul_u32_u24 v{vWO}, 896, v{E+2}\nv_mul_u32_u24 v{vWD}, 896, v{E}")
        a(f"s_and_b32 s65, s{sWv}, 1\ns_lshl_b32 s65, s65, 6\nv_xor_b32 v{E+1}, s65, v{E+1}")
        a(f"v_add_u32 v{vWO}, v{vWO}, v{E+1}\nv_add_u32 v{vWD}, v{vWD}, v{E+1}")
        a(f"s_lshr_b32 s66, s{sKG}, 1\ns_lshl_b32 s66, s66, 8\ns_and_b32 s65, s{sKG}, 1\ns_lshl_b32 s65, s65, 6\ns_add_u32 s66, s66, s65")
        a(f"s_lshl_b32 s65, s{sWv}, 1\ns_add_u32 s66, s66, s65\ns_mul_i32 s66, s66, 896\ns_lshl_b32 s65, s{sCG}, 7\ns_add_u32 s66, s66, s65")
        a(f"s_lshl_b32 s67, s{sKG}, 6\ns_lshl_b32 s68, s{sWv}, 3\ns_add_u32 s67, s67, s68\ns_mul_i32 s67, s67, 896\ns_add_u32 s67, s67, s65")
        a(f"s_lshl_b32 s75, s{sWv}, 10")
        a(f"v_lshrrev_b32 v{E}, 2, v{vJ}\nv_bfe_u32 v{E+1}, v{vJ}, 1, 1\ns_lshl_b32 s65, s{sWv}, 1\nv_add_u32 v{E+1}, s65, v{E+1}")
        a(f"v_and_b32 v{E+2}, 2, v{E}\nv_xor_b32 v{E+1}, v{E+1}, v{E+2}")
        a(f"v_and_b32 v{E+3}, 1, v{vJ}\nv_lshlrev_b32 v{E+3}, 3, v{E+3}\nv_lshl_add_u32 v{E+3}, v{E}, 7, v{E+3}")
        a(f"v_and_b32 v{E+2}, 1, v{vG}\nv_lshlrev_b32 v{E+2}, 2, v{E+2}\nv_xor_b32 v{E+4}, v{E+1}, v{E+2}")
        a(f"v_lshl_add_u32 v{vTR}, v{E+4}, 4, v{E+3}\nv_lshl_add_u32 v{vTR}, v{vG}, 10, v{vTR}")
        a(f"v_mul_u32_u24 v{vHA}, {HROW}, v{E}\nv_lshl_add_u32 v{vHA}, v{vG}, 4, v{vHA}")
        a(f"v_mul_u32_u24 v{vAR}, {AROW}, v{E}\nv_lshl_add_u32 v{vAR}, v{vG}, 4, v{vAR}")
        a(f"s_mul_i32 s65, s{sWv}, {AROW}\ns_add_u32 s65, s65, {AIMG}\nv_lshl_add_u32 v{vAW}, v0, 2, s65")
        a(f"v_lshlrev_b32 v{vST2}, 3, v{vJ}\nv_lshl_add_u32 v{vST2}, v{vG}, 12, v{vST2}")
        a(f"s_lshl_b32 s68, s{sCG}, 2\ns_add_u32 s68, s68, s{sWv}\ns_lshl_b32 s68, s68, 14\ns_lshl_b32 s65, s{sKG}, 7\ns_add_u32 s68, s68, s65\ns_add_u32 s68, s68, {MB2}")
        a(f"s_and_b32 s78, s{sKG}, 0xfc\ns_add_u32 s78, s78, s{sWv}\ns_lshl_b32 s69, s78, 4\ns_lshl_b32 s78, s78, 2\ns_and_b32 s65, s{sKG}, 3\ns_add_u32 s78, s78, s65")
        a(f"s_lshl_b32 s78, s78, 12\ns_add_u32 s78, s78, {MB2}\ns_mul_i32 s65, s65, 448\ns_add_u32 s69, s69, s65\ns_lshl_b32 s69, s69, 1")
        a(f"v_and_b32 v{E}, 7, v0\nv_and_b32 v{E+1}, 1, v{vG}\nv_lshlrev_b32 v{vXO}, 2, v{E}\nv_lshl_add_u32 v{vXO}, v{E+1}, 1, v{vXO}")
    tail_addr()

    def iterK(nextkind):
        for u in range(8):
            consK(ring(0, u), u, DA)
            throttle_issue(nextkind, ring(0, u), u)
        extract([DA], 0)
    a(f"s_mov_b32 s{sCNT}, {15 - NP}")
    a.label("L_kk")
    iterK("K")
    a(f"s_sub_u32 s{sCNT}, s{sCNT}, 1\ns_cmp_lg_u32 s{sCNT}, 0\ns_cbranch_scc1 L_kk")
    iterK("V")
    stamp(3)
    a(f"v_subrev_u32 v{vSC}, 4096, v{vSC}")
    a(f"ds_read_b32 v{vS}, v{vSC}")
    a(f"v_max_f32_dpp v{vMAX}, v{vMAX}, v{vMAX} row_ror:4 {FULL}")
    a(f"v_max_f32_dpp v{vMAX}, v{vMAX}, v{vMAX} row_ror:8 {FULL}")
    a(f"v_max_f32_dpp v{vMAX}, v{vMAX}, v{vMAX} row_bcast:15 row_mask:0xa bank_mask:0xf")
    a(f"v_max_f32_dpp v{vMAX}, v{vMAX}, v{vMAX} row_bcast:31 row_mask:0xc bank_mask:0xf")
    a(f"v_readlane_b32 s65, v{vMAX}, 63")
    a(f"v_mul_f32 v{vMC}, s65, v{vC}")
    vP = TMP
    def ld1(k): a(f"buffer_load_dwordx4 {V4(P1+4*k)}, v{vL16}, {S(SW)}, s{71 if k < 2 else 74} offen{' offset:2048' if k & 1 else ''} sc1")
    def last_extra():
        if not nowo:
            a(f"s_cmp_eq_u32 s{sCG}, 7\ns_cselect_b32 s66, 0x40000000, s66\ns_cselect_b32 s67, 0x40000000, s67")
            for c in range(4):
                a(f"s_add_u32 s65, s66, {(128 * (c & 1) + 32 * (c >> 1)) * 896}\ns_add_u32 m0, s75, {WL1 + 4096 * c}")
                a(f"buffer_load_dwordx4 v{vWO}, {S(SA)}, s65 offen {wnt} lds"); vm.append(("wo", c))
            a(f"s_add_u32 m0, s75, {WL2}")
            a(f"buffer_load_dwordx4 v{vWD}, {S(SB)}, s67 offen {wnt} lds"); vm.append(("wd", 0))
            a(f"s_add_u32 s67, s67, {32 * 896}\ns_add_u32 m0, s75, {WL2 + 4096}")
            a(f"buffer_load_dwordx4 v{vWD}, {S(SB)}, s67 offen {wnt} lds"); vm.append(("wd", 1))
        a(f"buffer_load_ushort v{vX}, v{vXO}, {S(SD)}, s69 offen"); vm.append("x")
        if touch:
            a(f"buffer_load_ushort v{E+7}, v{vXO}, {S(SC_)}, s69 offen"); vm.append("o")
        a(f"v_add_f32_dpp v{vL}, v{vL}, v{vL} row_ror:4 {FULL}")
        a(f"v_add_f32_dpp v{vL}, v{vL}, v{vL} row_ror:8 {FULL}")
        a(f"v_add_f32_dpp v{vL}, v{vL}, v{vL} row_bcast:15 row_mask:0xa bank_mask:0xf")
        a(f"v_add_f32_dpp v{vL}, v{vL}, v{vL} row_bcast:31 row_mask:0xc bank_mask:0xf")
        a(f"v_mov_b32 v{vML}, v{vMC}\nv_mov_b32 v{vML+1}, v{vL}")
        a("s_mov_b32 exec_lo, 0\ns_mov_b32 exec_hi, 0x80000000")
        a(f"ds_write_b64 v{vMLW}, {V2(vML)}")
        a("s_mov_b64 exec, -1")
        if hoist:
            a("s_waitcnt lgkmcnt(0)\ns_barrier")
            if early1 == 2:
                for k in range(4): ld1(k); vm.append(("p1", k))
            a(f"ds_read_b128 {V4(G)}, v{vZ} offset:{ML}\nds_read_b128 {V4(G+4)}, v{vZ} offset:{ML+16}\ns_waitcnt lgkmcnt(0)")
            weights()
    def weights():
        ms, ls = [G, G+2, G+4, G+6], [G+1, G+3, G+5, G+7]
        a(f"v_max3_f32 v{E+4}, v{ms[0]}, v{ms[1]}, v{ms[2]}\nv_max_f32 v{E+4}, v{E+4}, v{ms[3]}")
        for k in range(4): a(f"v_sub_f32 v{ms[k]}, v{ms[k]}, v{E+4}")
        for k in range(4): a(f"v_exp_f32 v{ms[k]}, v{ms[k]}")
        a(f"v_mul_f32 v{E+5}, v{ms[0]}, v{ls[0]}")
        for k in range(1, 4): a(f"v_fmac_f32 v{E+5}, v{ms[k]}, v{ls[k]}")
        a(f"v_rcp_f32 v{E+6}, v{E+5}\nv_log_f32 v{E+5}, v{E+5}")
        for k in range(4): a(f"v_mul_f32 v{ms[k]}, v{ms[k]}, v{E+6}")
        a(f"v_add_f32 v{GR+2}, v{E+4}, v{E+5}")
    def iterV(last):
        a("s_waitcnt lgkmcnt(0)")
        a(f"v_fma_f32 v{vP}, v{vS}, v{vC}, -v{vMC}")
        a(f"v_exp_f32 v{vP}, v{vP}")
        if not last:
            a(f"v_add_u32 v{vSC}, 256, v{vSC}\nds_read_b32 v{vS}, v{vSC}")
        a(f"v_add_f32 v{vL}, v{vL}, v{vP}")
        a(f"v_cvt_pk_bf16_f32 v{vP}, v{vP}, v{vP}")
        if last: last_extra()
        base = nload[0] - 8
        for u in range(8):
            t, half = u >> 1, u & 1
            b = BB + 4 * (t & 1)
            if half == 0:
                for w in range(4): a(f"v_and_b32_dpp v{b+w}, v{vP}, v{MASK+w} row_newbcast:{4*t} {FULL}")
            if last: wait_for(("s", base + u))
            a(f"v_mfma_f32_16x16x32_bf16 {V4(OACC + 4 * half)}, {V4(ring(0, u))}, {V4(b)}, {V4(OACC + 4 * half)}")
            if not last: throttle_issue("V", ring(0, u), u)
    a(f"s_mov_b32 s{sCNT}, {15 - nend}")
    a.label("L_vv")
    iterV(False)
    a(f"s_sub_u32 s{sCNT}, s{sCNT}, 1\ns_cmp_lg_u32 s{sCNT}, 0\ns_cbranch_scc1 L_vv")
    if nend:
        curW[0] = Wend
        a(f"s_mov_b32 s{sCNT}, {nend}")
        a.label("L_vv2")
        iterV(False)
        a(f"s_sub_u32 s{sCNT}, s{sCNT}, 1\ns_cmp_lg_u32 s{sCNT}, 0\ns_cbranch_scc1 L_vv2")
    iterV(True)
    stamp(4)
    for r in range(4): a(f"v_mov_b32_dpp v{OACC+r}, v{OACC+4+r} {IDP} row_mask:0xf bank_mask:0xc")
    a(f"ds_write_b128 v{vOPW}, {V4(OACC)}")
    a("s_waitcnt lgkmcnt(0)")
    a("s_barrier")
    a("s_mov_b32 exec_hi, 0")
    if not hoist: a(f"ds_read_b128 {V4(G)}, v{vZ} offset:{ML}\nds_read_b128 {V4(G+4)}, v{vZ} offset:{ML+16}")
    for w in range(4): a(f"ds_read_b64 {V2(G+8+2*w)}, v{vOPR} offset:{1024*w}")
    if not hoist:
        a("s_waitcnt lgkmcnt(4)")
        weights()
    ms = [G, G+2, G+4, G+6]
    a("s_cmp_lg_u32 s101, 0")
    a("s_waitcnt lgkmcnt(3)")
    a(f"v_pk_mul_f32 {V2(GR)}, {V2(G+8)}, {V2(ms[0])} op_sel_hi:[1,0]")
    for k in range(1, 4):
        a(f"s_waitcnt lgkmcnt({3-k})")
        a(f"v_pk_fma_f32 {V2(GR)}, {V2(G+8+2*k)}, {V2(ms[k])}, {V2(GR)} op_sel_hi:[1,0,1]")
    if fast:
        a("s_cbranch_scc1 L_st1far", drain=False)
        a(f"buffer_store_dwordx4 {V4(GR)}, v{vL16}, {S(SW)}, s70 offen")
        a("s_branch L_st1done", drain=False)
        a.label("L_st1far", drain=False)
    a(f"buffer_store_dwordx4 {V4(GR)}, v{vL16}, {S(SW)}, s70 offen sc1")
    if fast: a.label("L_st1done", drain=False)
    def st1_global():
        a("s_mov_b32 exec_hi, 0")
        a(f"buffer_store_dwordx4 {V4(GR)}, v{vL16}, {S(SW)}, s70 offen sc1")
        a("s_mov_b32 exec_hi, -1")
    a("s_mov_b64 exec, -1")
    stamp(8)
    a(f"s_mov_b32 s{sCNT}, {spin}")
    a(f"s_cmp_eq_u32 s{sCG}, 7\ns_cbranch_scc1 L_reduce", drain=False)
    if not early1:
        for k in range(4): ld1(k)
    a(f"ds_read_b128 {V4(AH)}, v{vHA} offset:{HIMG}\nds_read_b128 {V4(AH+4)}, v{vHA} offset:{HIMG+64}")
    if early1: a("s_waitcnt vmcnt(1)\ns_branch L_p1c", drain=False)
    a.label("L_p1", drain=False)
    a("s_waitcnt vmcnt(0)")
    a.label("L_p1c", drain=False)
    MK = [4, 6, 8, 10]
    for k in range(4): a(f"v_cmp_ne_u32 s[{MK[k]}:{MK[k]+1}], s{sTAG}, v{P1+4*k+3}")
    a(f"s_or_b64 s[76:77], s[4:5], s[6:7]\ns_or_b64 vcc, s[8:9], s[10:11]\ns_or_b64 s[76:77], s[76:77], vcc")
    a("s_cbranch_scc0 L_p1ok", drain=False)
    if sleep1: a(f"s_sleep {sleep1}")
    for k in range(4):
        a(f"s_cmp_eq_u64 s[{MK[k]}:{MK[k]+1}], 0\ns_cbranch_scc1 L_p1s{k}", drain=False)
        ld1(k)
        a.label(f"L_p1s{k}", drain=False)
    a(f"s_sub_u32 s{sCNT}, s{sCNT}, 1\ns_cbranch_scc0 L_p1", drain=False)
    a.label("L_p1ok", drain=False)
    stamp(5)
    lam = [P1+2, P1+6, P1+10, P1+14]
    a(f"v_max3_f32 v{E+4}, v{lam[0]}, v{lam[1]}, v{lam[2]}\nv_max_f32 v{E+4}, v{E+4}, v{lam[3]}")
    for k in range(4): a(f"v_sub_f32 v{lam[k]}, v{lam[k]}, v{E+4}")
    for k in range(4): a(f"v_exp_f32 v{lam[k]}, v{lam[k]}")
    a(f"v_add_f32 v{E+5}, v{lam[0]}, v{lam[1]}\nv_pk_mul_f32 {V2(G)}, {V2(P1)}, {V2(lam[0])} op_sel_hi:[1,0]\nv_add_f32 v{E+6}, v{lam[2]}, v{lam[3]}")
    a(f"v_pk_fma_f32 {V2(G)}, {V2(P1+4)}, {V2(lam[1])}, {V2(G)} op_sel_hi:[1,0,1]\nv_add_f32 v{E+6}, v{E+5}, v{E+6}")
    a(f"v_pk_fma_f32 {V2(G)}, {V2(P1+8)}, {V2(lam[2])}, {V2(G)} op_sel_hi:[1,0,1]\nv_rcp_f32 v{E+6}, v{E+6}")
    a(f"v_pk_fma_f32 {V2(G)}, {V2(P1+12)}, {V2(lam[3])}, {V2(G)} op_sel_hi:[1,0,1]")
    a(f"v_pk_mul_f32 {V2(G)}, {V2(G)}, {V2(E+6)} op_sel_hi:[1,0]")
    a(f"v_cvt_pk_bf16_f32 v{G}, v{G}, v{G+1}")
    a(f"ds_write_b32 v{vAW}, v{G}")
    a("s_waitcnt lgkmcnt(0)")
    a("s_barrier")
    a(f"ds_read_b64_tr_b16 {V2(BD)}, v{vTR} offset:{WL2}\nds_read_b64_tr_b16 {V2(BD+2)}, v{vTR} offset:{WL2+512}")
    a(f"ds_read_b64_tr_b16 {V2(BD+4)}, v{vTR} offset:{WL2+4096}\nds_read_b64_tr_b16 {V2(BD+6)}, v{vTR} offset:{WL2+4096+512}")
    for k in range(4):
        a(f"ds_read_b128 {V4(AO+4*k)}, v{vAR} offset:{AIMG+64*k}")
        a(f"ds_read_b64_tr_b16 {V2(BW+4*k)}, v{vTR} offset:{WL1+4096*k}\nds_read_b64_tr_b16 {V2(BW+4*k+2)}, v{vTR} offset:{WL1+4096*k+512}")
    a("s_waitcnt lgkmcnt(12)")
    a(f"v_mfma_f32_16x16x32_bf16 {V4(Y)}, {V4(AH)}, {V4(BD)}, 0")
    a(f"v_mfma_f32_16x16x32_bf16 {V4(Y)}, {V4(AH+4)}, {V4(BD+4)}, {V4(Y)}")
    for k in range(4):
        a(f"s_waitcnt lgkmcnt({9-3*k})")
        a(f"v_mfma_f32_16x16x32_bf16 {V4(Y)}, {V4(AO+4*k)}, {V4(BW+4*k)}, {V4(Y)}")
    a(f"v_mov_b32 v{Y+1}, v{GR+3}")
    a(f"buffer_store_dwordx2 {V2(Y)}, v{vST2}, {S(SW)}, s68 offen sc1")
    if fast and clean: st1_global()
    a("s_branch L_sdone")
    a.label("L_reduce")
    if fast and clean:
        a("s_sleep 12")
        st1_global()
    a(f"s_cmp_ge_u32 s{sKG}, 28\ns_cbranch_scc1 L_sdone")
    SETS = [R + 16 * d for d in range(2)] + [QF, QF + 16]
    def ld2(d):
        for k in range(4): a(f"buffer_load_dwordx4 {V4(SETS[d]+4*k)}, v{vL16}, {S(SW)}, s78 offen offset:{1024*k} sc1")
    a(f"s_waitcnt vmcnt(0)\nv_lshlrev_b32 v{vX}, 16, v{vX}")
    for d in range(D2 - 1):
        ld2(d)
        if stag2: a(f"s_sleep {stag2}")
    a.label("L_p2")
    for d in range(D2):
        ld2((d + D2 - 1) % D2)
        a(f"s_waitcnt vmcnt({4 * (D2 - 1)})")
        q = SETS[d]
        a(f"v_xor_b32 v{E}, v{q+1}, v{GR+3}\nv_xor_b32 v{E+1}, v{q+3}, v{GR+3}")
        for k in range(1, 4): a(f"v_bitop3_b32 v{E}, v{q+4*k+1}, v{GR+3}, v{E} bitop3:0xbe\nv_bitop3_b32 v{E+1}, v{q+4*k+3}, v{GR+3}, v{E+1} bitop3:0xbe")
        a(f"v_or_b32 v{E}, v{E}, v{E+1}\nv_add_f32 v{P1}, v{q}, v{q+4}\nv_add_f32 v{P1+2}, v{q+2}, v{q+6}\nv_cmp_ne_u32 vcc, 0, v{E}")
        a(f"v_add_f32 v{P1+8}, v{q+8}, v{q+12}\nv_add_f32 v{P1+10}, v{q+10}, v{q+14}")
        a("s_cbranch_vccz L_p2ok", drain=False)
    a(f"s_sub_u32 s{sCNT}, s{sCNT}, 1\ns_cbranch_scc0 L_p2", drain=False)
    a.label("L_p2ok", drain=False)
    stamp(6)
    a(f"v_add_f32 v{P1}, v{P1}, v{P1+8}\nv_add_f32 v{P1+2}, v{P1+2}, v{P1+10}")
    a(f"v_permlane16_swap_b32 v{P1}, v{P1+2}")
    a(f"v_add_f32 v{P1}, v{P1}, v{P1+2}")
    a(f"v_add_f32_dpp v{P1}, v{P1}, v{P1} row_ror:8 {FULL}")
    a(f"v_mov_b32 v{P1+2}, v{P1}")
    a(f"v_permlane32_swap_b32 v{P1}, v{P1+2}")
    a(f"v_add_f32 v{P1}, v{P1}, v{P1+2}\nv_add_f32 v{P1}, v{P1}, v{vX}")
    a(f"v_cvt_pk_bf16_f32 v{P1}, v{P1}, v{P1}")
    a(f"s_mov_b32 exec_hi, 0\ns_mov_b32 exec_lo, 0x00ff00ff")
    a(f"buffer_store_short v{P1}, v{vXO}, {S(SC_)}, s69 offen {osc}")
    a(f"s_or_b32 s65, s{sKG}, s{sWv}\ns_cmp_lg_u32 s65, 0\ns_cbranch_scc1 L_sdone")
    a("s_mov_b64 exec, 1")
    a(f"buffer_store_dword v{GR+3}, v{vZ}, {S(SW)}, 0 offen {osc}")
    a.label("L_sdone")
    stamp(7)
    pad("S")
    dump_stamps(9)
    a("s_endpgm")

    a.label("L_helper")
    X, F, AF, AF2, BF, D, TG = 32, 64, 96, 112, 128, 184, 200
    a("s_setprio 3")
    a(f"v_mul_u32_u24 v6, 896, v5\nv_lshl_add_u32 v6, v4, 6, v6\nv_mov_b32 v7, 0x40000000\nv_cmp_gt_u32 s[74:75], 14, v4")
    a(f"v_cndmask_b32 v7, v7, v6, s[74:75]")
    a(f"v_lshrrev_b32 v8, 3, v0\nv_and_b32 v9, 7, v0\nv_lshlrev_b32 v9, 4, v9\nv_lshl_add_u32 v10, v8, 13, v9")
    a(f"v_mul_u32_u24 v11, 3584, v8\nv_add_u32 v11, v11, v9")
    a(f"s_mul_i32 s65, s{sB}, {112 * 8192}\ns_lshl_b32 s66, s{sIDX}, 7\ns_add_u32 s65, s65, s66")
    a("s_waitcnt lgkmcnt(0)")
    a(f"s_load_dword s{sTAG}, s[26:27], 0")
    srd(SA, 4, 3584)
    for u in range(4): a(f"buffer_load_dwordx4 {V4(X+4*u)}, v7, {S(SA)}, 0 offen offset:{16*u}")
    srd(SB, 10, 448 * 8192)
    def dma(sr, voff, so, stride, lds0, win=None):
        for k in range(14):
            if win and k >= win: a(f"s_waitcnt vmcnt({win-1})")
            a(f"s_mov_b32 m0, {lds0 + 1024 * k}")
            a(f"buffer_load_dwordx4 v{voff}, {S(sr)}, s{so} offen {wnt} lds")
            if k < 13: a(f"s_add_u32 s{so}, s{so}, {8 * stride}")
    if not noq: dma(SB, 10, 65, 8192, WL0)
    srd(SW, 26, WS_USED)
    a(f"v_and_b32 v14, 3, v4\nv_lshrrev_b32 v15, 2, v4\ns_mul_i32 s65, s{sB}, 224")
    a(f"v_mul_u32_u24 v12, 896, v15\nv_add_u32 v12, s65, v12\nv_lshl_add_u32 v28, v5, 3, v12\nv_lshl_add_u32 v12, v5, 4, v12")
    a(f"s_lshr_b32 s65, s{sCG}, 1\ns_mul_i32 s65, s65, 224")
    a(f"v_mul_u32_u24 v30, 896, v14\nv_add_u32 v30, s65, v30\nv_lshl_add_u32 v31, v5, 3, v30\nv_lshl_add_u32 v30, v5, 4, v30")
    a(f"v_lshl_add_u32 v8, v5, 2, v14\nv_lshlrev_b32 v8, 4, v8\nv_lshl_add_u32 v8, v15, 16, v8")
    a(f"v_lshlrev_b32 v9, 5, v14\nv_lshl_add_u32 v9, v15, 3, v9\nv_lshl_add_u32 v9, v5, 7, v9")
    for t in range(1, 4): a(f"v_cmp_eq_u32 s[{26+2*t}:{27+2*t}], {t}, v14")
    a(f"v_lshlrev_b32 v15, 7, v15\nv_lshl_add_u32 v15, v14, 3, v15")
    a(f"v_lshl_add_u32 v13, v5, 10, v15\nv_lshl_add_u32 v29, v5, 9, v15")
    a("s_waitcnt vmcnt(14)" if not noq else "s_waitcnt vmcnt(0)")
    stamp(1)
    for k in range(16): a(f"v_lshlrev_b32 v{F+2*k}, 16, v{X+k}\nv_and_b32 v{F+2*k+1}, 0xffff0000, v{X+k}")
    a(f"v_pk_add_f32 v[14:15], {V2(F)}, {V2(F+2)}\nv_pk_add_f32 v[16:17], {V2(F+4)}, {V2(F+6)}")
    for k in range(4, 16, 2):
        a(f"v_pk_add_f32 v[14:15], v[14:15], {V2(F+2*k)}\nv_pk_add_f32 v[16:17], v[16:17], {V2(F+2*k+2)}")
    a("v_pk_add_f32 v[14:15], v[14:15], v[16:17]\nv_add_f32 v14, v14, v15")
    def rowsum(r):
        for sh in (8, 4, 2, 1): a(f"v_add_f32_dpp v{r}, v{r}, v{r} row_ror:{sh} {FULL}")
    rowsum(14)
    a(f"v_mul_f32 v18, {hex(f2u(-1.0 / 448))}, v14\nv_mov_b32 v19, v18")
    a("v_mov_b32 v14, 0\nv_mov_b32 v15, 0\nv_mov_b32 v16, 0\nv_mov_b32 v17, 0")
    for k in range(0, 16, 2):
        a(f"v_pk_add_f32 v[20:21], {V2(F+2*k)}, v[18:19]\nv_pk_add_f32 v[22:23], {V2(F+2*k+2)}, v[18:19]")
        a(f"v_pk_fma_f32 v[14:15], v[20:21], v[20:21], v[14:15]\nv_pk_fma_f32 v[16:17], v[22:23], v[22:23], v[16:17]")
    a("v_pk_add_f32 v[14:15], v[14:15], v[16:17]\nv_add_f32 v14, v14, v15\nv_cndmask_b32 v14, 0, v14, s[74:75]")
    rowsum(14)
    def rbf(r): a(f"v_cvt_pk_bf16_f32 v{r}, v{r}, v{r}\nv_and_b32 v{r}, 0xffff0000, v{r}")
    a(f"v_mul_f32 v14, {hex(f2u(1.0 / 448))}, v14"); rbf(14)
    a(f"v_add_f32 v14, {hex(f2u(1e-5))}, v14"); rbf(14)
    a("v_sqrt_f32 v14, v14"); rbf(14)
    a("v_rcp_f32 v16, v14\nv_mov_b32 v15, v14"); rbf(18)
    a("v_mov_b32 v17, v16\nv_mov_b32 v19, v18")
    for k in range(16):
        a(f"v_pk_add_f32 {V2(F+2*k)}, {V2(F+2*k)}, v[18:19]")
    for k in range(16):
        a(f"v_cvt_pk_bf16_f32 v{X+k}, v{F+2*k}, v{F+2*k+1}")
    for k in range(16): a(f"v_lshlrev_b32 v{F+2*k}, 16, v{X+k}\nv_and_b32 v{F+2*k+1}, 0xffff0000, v{X+k}")
    for k in range(16):
        t = 20 + 2 * (k & 3)
        a(f"v_pk_mul_f32 {V2(t)}, {V2(F+2*k)}, v[16:17]")
        a(f"v_pk_fma_f32 {V2(F+2*k)}, {V2(t)}, v[14:15], {V2(F+2*k)} neg_lo:[1,0,0] neg_hi:[1,0,0]")
        a(f"v_pk_fma_f32 {V2(t)}, {V2(F+2*k)}, v[16:17], {V2(t)}")
        a(f"v_cvt_pk_bf16_f32 v{X+k}, v{t}, v{t+1}")
    a("s_mov_b64 exec, s[74:75]")
    for u in range(4): a(f"ds_write_b128 v6, {V4(X+4*u)} offset:{XN + 16*u}")
    a("s_mov_b64 exec, -1")
    a("s_waitcnt lgkmcnt(0)")
    a(f"s_mul_i32 s{sTAG}, s{sTAG}, 0x9E3779B1\ns_add_u32 s{sTAG}, s{sTAG}, 0x7F4A7C15")
    for k in range(3): a(f"ds_read_b128 {V4(AF+4*k)}, v12 offset:{XN + 64*k}")
    a(f"ds_read_b64 {V2(AF+12)}, v28 offset:{XN + 192}")
    a(f"v_mov_b32 v{TG}, s{sTAG}\nv_lshrrev_b32 v{TG+1}, 8, v{TG}\nv_lshrrev_b32 v{TG+2}, 16, v{TG}\nv_lshrrev_b32 v{TG+3}, 24, v{TG}\ns_movk_i32 s78, 0xff")
    a(f"v_lshlrev_b32 v10, 4, v0")
    a(f"s_lshl_b32 s66, s{sH}, 12\ns_lshl_b32 s67, s{sB}, 10\ns_add_u32 s66, s66, s67\ns_lshl_b32 s67, s{sJ}, 8\ns_add_u32 s66, s66, s67\ns_add_u32 s66, s66, {QMB}")
    a(f"s_lshl_b32 s67, s{sBH}, 12\ns_add_u32 s67, s67, {QMB}")
    a("s_waitcnt vmcnt(0)")
    stamp(2)
    a(f"s_getreg_b32 s69, hwreg(HW_REG_XCC_ID, 0, 4)\nv_xor_b32 v{TG+4}, s69, v{TG+3}")
    def piece(af, transposed):
        for t in range(4):
            for k in range(3):
                o = WL0 + 4096 * k + 32 * t
                a(f"ds_read_b64_tr_b16 {V2(BF+14*t+4*k)}, v13 offset:{o}\nds_read_b64_tr_b16 {V2(BF+14*t+4*k+2)}, v13 offset:{o + 512}")
            a(f"ds_read_b64_tr_b16 {V2(BF+14*t+12)}, v29 offset:{WL0 + 12288 + 32 * t}")
        a("s_waitcnt lgkmcnt(0)")
        for k in range(3):
            for t in range(4):
                x, w = V4(af+4*k), V4(BF+14*t+4*k)
                a(f"v_mfma_f32_16x16x32_bf16 {V4(D+4*t)}, {w if transposed else x}, {x if transposed else w}, {'0' if k == 0 else V4(D+4*t)}")
        for t in range(4):
            x, w = V2(af+12), V2(BF+14*t+12)
            a(f"v_mfma_f32_16x16x16_bf16 {V4(D+4*t)}, {w if transposed else x}, {x if transposed else w}, {V4(D+4*t)}")
        for t in range(1, 4):
            for r in range(4):
                if transposed: a(f"v_cndmask_b32 v{D+r}, v{D+r}, v{D+4*t+r}, s[{26+2*t}:{27+2*t}]")
                else: a(f"v_mov_b32_dpp v{D+r}, v{D+4*t+r} {IDP} row_mask:{hex(1 << t)} bank_mask:0xf")
        for r in range(4): a(f"v_add_u32 v{D+r}, 0x80, v{D+r}")
        for r in range(4): a(f"v_bfi_b32 v{20+r}, s78, v{TG + r + (1 if transposed and r == 3 else 0)}, v{D+r}")
    piece(AF, True)
    if noq or not qst: a("s_branch L_pqok")
    a(f"buffer_store_dwordx4 v[20:23], v8, {S(SW)}, s66 offen{'' if fastq else ' sc1'}")
    stamp(3)
    for k in range(3): a(f"ds_read_b128 {V4(AF2+4*k)}, v30 offset:{XN + 64*k}")
    a(f"ds_read_b64 {V2(AF2+12)}, v31 offset:{XN + 192}")
    a(f"v_mov_b32 v16, 0\nv_mov_b32 v17, 0\nv_mov_b32 v18, 0\nv_mov_b32 v19, 0")
    a(f"s_mov_b32 exec_hi, 0xff\nds_write_b128 v10, v[16:19] offset:{HIMG}\ns_mov_b64 exec, -1")
    PQ = F
    def qload(k): a(f"buffer_load_dwordx4 {V4(PQ+4*k)}, v10, {S(SW)}, s67 offen offset:{1024 * k} sc1")
    def chk4(dst, src):
        a(f"v_xor_b32 v{dst}, v{src}, v{TG}")
        for t in range(1, 4): a(f"v_bitop3_b32 v{dst}, v{src+t}, v{TG+t}, v{dst} bitop3:0xbe")
        a(f"v_and_b32 v{dst}, s78, v{dst}")
    if sleepq: a(f"s_sleep {sleepq}")
    for k in range(4): qload(k)
    a(f"s_mov_b32 s{sCNT}, {spin}")
    a.label("L_pq")
    a("s_waitcnt vmcnt(0)")
    for k in range(4):
        a(f"v_xor_b32 v{X+4+k}, v{PQ+4*k+3}, v{TG+4}\nv_and_b32 v{X+k}, 0xf0, v{X+4+k}")
        for t in range(3): a(f"v_bitop3_b32 v{X+k}, v{PQ+4*k+t}, v{TG+t}, v{X+k} bitop3:0xbe")
        a(f"v_and_b32 v{X+k}, s78, v{X+k}")
    a(f"v_or3_b32 v24, v{X}, v{X+1}, v{X+2}\nv_or_b32 v24, v24, v{X+3}")
    a("v_cmp_ne_u32 vcc, 0, v24\ns_cbranch_vccz L_pqok", drain=False)
    if fastq:
        a(f"s_cmp_lg_u32 s{sCNT}, {spin - nq}\ns_cbranch_scc1 L_pqg", drain=False)
        a(f"buffer_store_dwordx4 v[20:23], v8, {S(SW)}, s66 offen sc1")
        a.label("L_pqg", drain=False)
    a(f"s_sleep 2")
    for k in range(4):
        a(f"v_cmp_ne_u32 vcc, 0, v{X+k}\ns_cbranch_vccz L_pqs{k}", drain=False)
        qload(k)
        a.label(f"L_pqs{k}", drain=False)
    a(f"s_sub_u32 s{sCNT}, s{sCNT}, 1\ns_cmp_lg_u32 s{sCNT}, 0\ns_cbranch_scc1 L_pq", drain=False)
    a.label("L_pqok", drain=False)
    for k in range(16): a(f"v_and_b32 v{PQ+k}, 0xffffff00, v{PQ+k}")
    for e in (0, 2):
        a(f"v_pk_add_f32 {V2(PQ+e)}, {V2(PQ+e)}, {V2(PQ+4+e)}\nv_pk_add_f32 {V2(PQ+8+e)}, {V2(PQ+8+e)}, {V2(PQ+12+e)}")
    for e in (0, 2): a(f"v_pk_add_f32 {V2(PQ+e)}, {V2(PQ+e)}, {V2(PQ+8+e)}")
    a(f"v_cvt_pk_bf16_f32 v24, v{PQ}, v{PQ+1}\nv_cvt_pk_bf16_f32 v25, v{PQ+2}, v{PQ+3}\nv_mov_b32 v17, 0")
    a(f"v_or3_b32 v26, v{X+4}, v{X+5}, v{X+6}\nv_or_b32 v26, v26, v{X+7}\nv_and_b32 v26, 15, v26\nv_cmp_ne_u32 vcc, 0, v26")
    a(f"s_or_b32 s69, vcc_lo, vcc_hi\nv_mov_b32 v26, v{TG}\nv_mov_b32 v27, s69")
    a(f"ds_write_b64 v9, v[24:25] offset:{QL}\nds_write_b64 v17, v[26:27] offset:{TAGL}")
    if fastq:
        a("s_cmp_eq_u32 s69, 0\ns_cbranch_scc1 L_qnear")
        a(f"buffer_store_dwordx4 v[20:23], v8, {S(SW)}, s66 offen sc1")
        a.label("L_qnear")
    a("s_waitcnt lgkmcnt(0)")
    stamp(4)
    if stamps: a(f"s_mov_b32 s92, s{sCNT}")
    a("s_barrier")
    a("s_setprio 0")
    if noffn: a("s_branch L_hend")
    a(f"s_cmp_ge_u32 s{sKG}, 28\ns_cbranch_scc1 L_hend")
    a(f"s_bitcmp1_b32 s{sCG}, 0\ns_cselect_b32 s{SC_}, s18, s16\ns_cselect_b32 s{SC_+1}, s19, s17\ns_mov_b32 s{SC_+2}, {448 * 3584}\ns_mov_b32 s{SC_+3}, 0x20000")
    a(f"s_lshr_b32 s66, s{sCG}, 1\ns_mul_i32 s65, s66, {112 * 3584}\ns_lshl_b32 s67, s{sKG}, 7\ns_add_u32 s65, s65, s67")
    if fdma: dma(SC_, 11, 65, 3584, WL0, win=HW)
    a(f"s_lshl_b32 s67, s{sKG}, 13\ns_add_u32 s67, s67, {FMB}\ns_lshl_b32 s66, s{sCG}, 10\ns_add_u32 s66, s66, s67\ns_add_u32 s68, s67, 4096")
    a("s_waitcnt vmcnt(0)")
    piece(AF2, False)
    if fst and fastf:
        a("s_cmp_lg_u32 s69, 0\ns_cbranch_scc1 L_ffar")
        a(f"buffer_store_dwordx4 v[20:23], v10, {S(SW)}, s66 offen\ns_branch L_fdone")
        a.label("L_ffar")
    if fst: a(f"buffer_store_dwordx4 v[20:23], v10, {S(SW)}, s66 offen sc1")
    if fst and fastf: a.label("L_fdone")
    if not fpoll: a("s_branch L_hend")
    a(f"s_cmp_eq_u32 s{sCG}, 7\ns_cbranch_scc1 L_hend")
    def fload(k): a(f"buffer_load_dwordx4 {V4(F+4*k)}, v10, {S(SW)}, s{67 + (k >> 2)} offen offset:{1024 * (k & 3)} sc1")
    a(f"s_sleep {sleepf}")
    for k in range(8): fload(k)
    a(f"s_mov_b32 s{sCNT}, {spin}\nv_lshlrev_b32 v9, 1, v0")
    a.label("L_pf")
    a("s_waitcnt vmcnt(0)")
    for k in range(8): chk4(X + k, F + 4 * k)
    a(f"v_or3_b32 v24, v{X}, v{X+1}, v{X+2}\nv_or3_b32 v24, v24, v{X+3}, v{X+4}\nv_or3_b32 v24, v24, v{X+5}, v{X+6}\nv_or_b32 v24, v24, v{X+7}")
    a("v_cmp_ne_u32 vcc, 0, v24\ns_cbranch_vccz L_pfok", drain=False)
    a(f"s_sleep 16")
    for k in range(8):
        a(f"v_cmp_ne_u32 vcc, 0, v{X+k}\ns_cbranch_vccz L_pfs{k}", drain=False)
        fload(k)
        a.label(f"L_pfs{k}", drain=False)
    a(f"s_sub_u32 s{sCNT}, s{sCNT}, 1\ns_cbranch_scc0 L_pf", drain=False)
    a.label("L_pfok", drain=False)
    for k in range(32): a(f"v_and_b32 v{F+k}, 0xffffff00, v{F+k}")
    for e in range(0, 8, 2):
        a(f"v_pk_add_f32 {V2(F+e)}, {V2(F+e)}, {V2(F+8+e)}\nv_pk_add_f32 {V2(F+16+e)}, {V2(F+16+e)}, {V2(F+24+e)}")
    for e in range(0, 8, 2): a(f"v_pk_add_f32 {V2(F+e)}, {V2(F+e)}, {V2(F+16+e)}")
    for r in range(8): rbf(F + r)
    k1 = -2.0 * math.sqrt(2.0 / math.pi) * math.log2(math.e)
    for r in range(4):
        g, u, t = F + r, F + 4 + r, F + 8 + r
        a(f"v_mul_f32 v{t}, v{g}, v{g}\nv_mul_f32 v{t}, {hex(f2u(0.044715))}, v{t}\nv_fma_f32 v{t}, v{t}, v{g}, v{g}")
        a(f"v_mul_f32 v{t}, {hex(f2u(k1))}, v{t}\nv_exp_f32 v{t}, v{t}\nv_add_f32 v{t}, 1.0, v{t}\nv_rcp_f32 v{t}, v{t}\nv_mul_f32 v{g}, v{g}, v{t}")
        rbf(g)
        a(f"v_mul_f32 v{g}, v{g}, v{u}")
    a(f"v_cvt_pk_bf16_f32 v32, v{F}, v{F+1}\nv_cvt_pk_bf16_f32 v34, v{F+2}, v{F+3}")
    a(f"ds_write_b16 v9, v32 offset:{HIMG}\nds_write_b16_d16_hi v9, v32 offset:{HIMG + HROW}")
    a(f"ds_write_b16 v9, v34 offset:{HIMG + 2 * HROW}\nds_write_b16_d16_hi v9, v34 offset:{HIMG + 3 * HROW}")
    a("s_waitcnt lgkmcnt(0)")
    a.label("L_hend")
    a("s_mov_b64 exec, -1")
    stamp(5)
    pad("H")
    dump_stamps(7)
    a.label("L_end")
    a("s_endpgm")
    a.raw('.section .rodata,"a"'); a.raw(".p2align 6"); a.raw(f".amdhsa_kernel {NAME}")
    a.raw("  .amdhsa_next_free_vgpr 256"); a.raw("  .amdhsa_next_free_sgpr 102"); a.raw("  .amdhsa_accum_offset 256")
    a.raw("  .amdhsa_group_segment_fixed_size 0"); a.raw("  .amdhsa_kernarg_size 96"); a.raw("  .amdhsa_user_sgpr_count 2")
    a.raw("  .amdhsa_user_sgpr_kernarg_segment_ptr 1"); a.raw("  .amdhsa_system_sgpr_workgroup_id_x 1"); a.raw(".end_amdhsa_kernel")
    return a.text()

if __name__ == "__main__":
    out = sys.argv[1]
    kw = eval("dict(" + (sys.argv[2] if len(sys.argv) > 2 else "") + ")")
    open(out, "w").write(gen(**kw))
```

```python
import sys, struct, math
sys.path.insert(0, "gen")
from asmlib import Asm

NAME = "parallel_sum__mha_block_cached__geglu_ffn__decode_kernel"
HEADER = open("parallel_sum__mha_block_cached__geglu_ffn__decode.s.ref").read().split("; Override launch")[0]

def f2u(x): return struct.unpack("<I", struct.pack("<f", x))[0]

PMB = 0x8000
GMB = 0xC000
QMB = 0x10000
FMB = QMB + 64 * 4096
MB1 = 0xA0000
MB2 = 0x120000
TSB = 0x400000
WS_USED = TSB + 0x10000
assert FMB + 28 * 8192 <= MB1
XN, QL, TAGL, ML, HIMG, AIMG, OP, SC = 0, 3584, 4096, 4128, 4224, 4864, 6144, 10240
HROW, AROW = 144, 272
WL0 = SC + 16384
WL1 = WL0 + 14336
WL2 = WL1 + 16384
LDS_BYTES = WL2 + 8192

FULL = "row_mask:0xf bank_mask:0xf"
IDP = "quad_perm:[0,1,2,3]"

def gen(W=5, NP=5, nt="nt", wnt="nt", stamps=False, warm=True, sleep1=0, sleep2=0, sleepq=40, spin=1 << 16,
        padto=0, padwg=None, padstamp=None, HW=4, noffn=0, noq=0, nowo=0, touch=1, sleepf=60, fdma=1, fst=1, fpoll=1, qst=1, pat=5, Wend=None, nend=0, W0=None, osc='', scr=1, remap=2, D2=2, stag2=4, early1=0, role=3, fast=1, hoist=1, clean=0, fastq=1, fastf=1, nq=5, tlb=0, fb=1, Wup=6, thup=-2, gfb=1, gsleep=8, goff=0, gsh=2, gavg=0, gsc=0, gexit=2):
    assert not (fast or fastf) or role == 3
    assert early1 != 2 or hoist
    a = Asm()
    a.raw(HEADER.rstrip("\n"))
    a.raw(f"; @launch grid=(256,1,1) block=(320,1,1) lds={LDS_BYTES}")
    a.raw('.amdgcn_target "amdgcn-amd-amdhsa--gfx950"')
    a.raw(".text"); a.raw(f".globl {NAME}"); a.raw(".p2align 8"); a.raw(f".type {NAME},@function")
    a.raw(f"{NAME}:")
    SK, SV, SW, SA, SB, SC_, SD = 28, 32, 36, 40, 44, 48, 52
    sB, sH, sJ, sIDX, sBH, sTAG, sCNT, sKO, sVO, sWv, sKG, sCG = 56, 57, 58, 59, 60, 61, 62, 63, 64, 72, 73, 79
    def srd(r, ptr, size):
        a(f"s_mov_b32 s{r}, s{ptr}\ns_mov_b32 s{r+1}, s{ptr+1}\ns_mov_b32 s{r+2}, {size}\ns_mov_b32 s{r+3}, 0x20000")
    def S(r): return f"s[{r}:{r+3}]"
    def V4(r): return f"v[{r}:{r+3}]"
    def V2(r): return f"v[{r}:{r+1}]"
    def stamp(k):
        if stamps or padstamp is not None:
            a(f"s_memrealtime s[{80+2*k}:{81+2*k}]")
    def dump_stamps(n):
        if not stamps: return
        a("s_waitcnt lgkmcnt(0)")
        a("s_mov_b64 exec, 1")
        a(f"s_mul_i32 s65, s2, 5\ns_add_u32 s65, s65, s3\ns_mul_i32 s65, s65, 48\ns_add_u32 s65, s65, {TSB}")
        a("v_mov_b32 v1, 0")
        for k in range(n):
            a(f"v_mov_b32 v2, s{80+2*k}")
            a(f"buffer_store_dword v2, v1, {S(SW)}, s65 offen offset:{4*k}")
        a(f"v_mov_b32 v2, s{sCNT}\nbuffer_store_dword v2, v1, {S(SW)}, s65 offen offset:44")
        a("s_waitcnt vmcnt(0)")
    def pad(role):
        if not padto: return
        r, k = padstamp if padstamp is not None else ("S", 0)
        if r != role: return
        if padwg is not None: a(f"s_cmp_lg_u32 s2, {padwg}\ns_cbranch_scc1 L_end")
        a.label(f"L_pad{role}")
        a(f"s_sleep 1\ns_memrealtime s[98:99]\ns_waitcnt lgkmcnt(0)\ns_sub_u32 s98, s98, s{80+2*k}\ns_cmp_lt_u32 s98, {padto}\ns_cbranch_scc1 L_pad{role}")

    a("s_cmp_ge_u32 s2, 256\ns_cbranch_scc1 L_end")
    a("s_load_dwordx16 s[4:19], s[0:1], 0\ns_load_dwordx8 s[20:27], s[0:1], 64")
    stamp(0)
    a("v_lshrrev_b32 v1, 6, v0\nv_and_b32 v0, 63, v0\nv_readfirstlane_b32 s3, v1")
    if role == 1:
        a(f"s_and_b32 s65, s2, 7\ns_lshl_b32 s65, s65, 2\ns_bfe_u32 s{sKG}, s2, 0x20003\ns_or_b32 s{sKG}, s{sKG}, s65\ns_lshr_b32 s{sCG}, s2, 5")
    if role == 2:
        a(f"s_and_b32 s65, s2, 15\ns_lshl_b32 s65, s65, 1\ns_bfe_u32 s{sKG}, s2, 0x10004\ns_or_b32 s{sKG}, s{sKG}, s65\ns_lshr_b32 s{sCG}, s2, 5")
    if pat >= 3 and remap == 3:
        a("s_bfe_u32 s65, s2, 0x20003\ns_xor_b32 s2, s2, s65")
    if pat >= 3 and remap == 2:
        a("s_bfe_u32 s65, s2, 0x20003\ns_and_b32 s66, s2, 7\ns_lshl_b32 s66, s66, 2\ns_and_b32 s2, s2, 0xe0\ns_or_b32 s2, s2, s65\ns_or_b32 s2, s2, s66")
    a(f"s_lshr_b32 s{sB}, s2, 6\ns_lshr_b32 s{sBH}, s2, 2\ns_and_b32 s{sH}, s{sBH}, 15\ns_and_b32 s{sJ}, s2, 3\ns_and_b32 s{sIDX}, s2, 63")
    if role == 3:
        a(f"s_lshl_b32 s{sKG}, s{sH}, 1\ns_and_b32 s65, s{sJ}, 1\ns_or_b32 s{sKG}, s{sKG}, s65\ns_lshl_b32 s{sCG}, s{sB}, 1\ns_lshr_b32 s65, s{sJ}, 1\ns_or_b32 s{sCG}, s{sCG}, s65")
    if role == 0: a(f"s_lshr_b32 s{sKG}, s2, 3\ns_add_u32 s{sCG}, s2, s{sKG}\ns_and_b32 s{sCG}, s{sCG}, 7")
    a("v_and_b32 v4, 15, v0\nv_lshrrev_b32 v5, 4, v0")
    a("s_cmp_eq_u32 s3, 0\ns_cbranch_scc1 L_helper")

    vKO, vVO, vSC, vMAX, vL, vC, vMC, vS = 1, 2, 3, 6, 7, 28, 29, 30
    vJ, vG = 4, 5
    MASK, OACC, BB, QF, DA, TMP, R = 8, 12, 20, 32, 64, 84, 96
    def ring(tile, u): return R + 32 * tile + 4 * u
    a(f"s_sub_u32 s{sWv}, s3, 1")
    kb, wb = {0: ((9, 10), (11, 12)), 1: ((12, 13), (10, 11)), 2: ((12, 13), (14, 15)), 3: ((15, 13), (11, 14)), 4: ((15, 9), (11, 13)), 5: ((15, 13), (11, 14))}[pat]
    sM = 100
    a(f"v_and_b32 v{TMP+1}, 3, v{vJ}\nv_lshlrev_b32 v{TMP+1}, 4, v{TMP+1}")
    a(f"v_lshl_add_u32 v{TMP+1}, v{vG}, 6, v{TMP+1}")
    a(f"v_bfe_u32 v{TMP}, v0, 2, 1\nv_lshl_add_u32 v{vKO}, v{TMP}, {kb[0]}, v{TMP+1}\nv_bfe_u32 v{TMP}, v0, 3, 1\nv_lshl_add_u32 v{vKO}, v{TMP}, {kb[1]}, v{vKO}")
    if pat == 5:
        a(f"s_lshl_b32 s{sKO}, s{sBH}, 21\ns_and_b32 s65, s{sJ}, 1\ns_lshl_b32 s65, s65, 12\ns_add_u32 s{sKO}, s{sKO}, s65\ns_lshr_b32 s65, s{sJ}, 1\ns_lshl_b32 s65, s65, 16\ns_add_u32 s{sKO}, s{sKO}, s65")
    else: a(f"s_lshl_b32 s{sKO}, s2, 19")
    a(f"s_and_b32 s65, s{sWv}, 1\ns_lshl_b32 s65, s65, {wb[0]}\ns_add_u32 s{sKO}, s{sKO}, s65")
    a(f"s_lshr_b32 s65, s{sWv}, 1\ns_lshl_b32 s65, s65, {wb[1]}\ns_add_u32 s{sKO}, s{sKO}, s65")
    if pat in (3, 4):
        if scr:
            a(f"s_mul_i32 s65, s{sBH}, 0x9E3779B1\ns_and_b32 s{sM}, s65, 0x300000\ns_lshr_b32 s{sM}, s{sM}, 3\ns_or_b32 s{sM}, s{sM}, 0x10000")
            a(f"s_lshr_b32 s65, s65, 6\ns_and_b32 s65, s65, 0x70000\ns_or_b32 s{sKO}, s{sKO}, s65")
        else:
            a(f"s_mov_b32 s{sM}, 0x10000")
    a(f"s_mov_b32 s{sVO}, s{sKO}")
    a(f"v_lshlrev_b32 v{vVO}, 4, v{vJ}\nv_bfe_u32 v{TMP}, v0, 4, 1\nv_lshl_add_u32 v{vVO}, v{TMP}, {kb[0]}, v{vVO}\nv_bfe_u32 v{TMP}, v0, 5, 1\nv_lshl_add_u32 v{vVO}, v{TMP}, {kb[1]}, v{vVO}")
    a("s_waitcnt lgkmcnt(0)")
    srd(SK, 6, 1 << 27)
    vm = []
    def issue(kind, reg, u, tagid):
        sr, vo, so = (SK, vKO, sKO) if kind == "K" else (SV, vVO, sVO)
        o = {0: 256 * (u & 1), 1: 256 * (u & 3), 2: 256 * u, 3: 256 * u, 4: 256 * (u & 1) + 512 * (u & 2), 5: 256 * u}[pat]
        off = f" offset:{o}" if o else ""
        a(f"buffer_load_dwordx4 {V4(reg)}, v{vo}, {S(sr)}, s{so} offen{off} {nt}")
        if pat == 0 and u & 1: a(f"s_add_u32 s{so}, s{so}, 8192")
        if pat == 1 and (u & 3) == 3: a(f"s_add_u32 s{so}, s{so}, 16384")
        if pat == 4 and (u & 3) == 3: a(f"s_xor_b32 s{so}, s{so}, 0x4000")
        if pat == 5 and u == 7: a(f"s_add_u32 s{so}, s{so}, 0x20000")
        if pat in (3, 4) and u == 7:
            a(f"s_xor_b32 s{so}, s{so}, 0x1000\ns_bitcmp1_b32 s{so}, 12\ns_cselect_b32 s65, 0, s{sM}\ns_add_u32 s65, s65, s{so}\ns_and_b32 s65, s65, 0x70000\ns_andn2_b32 s{so}, s{so}, 0x70000\ns_or_b32 s{so}, s{so}, s65")
        if pat == 2 and u == 7:
            a(f"s_bitcmp1_b32 s{so}, 11\ns_cselect_b32 s65, {65536 - 4096}, 0\ns_add_u32 s{so}, s{so}, s65\ns_add_u32 s{so}, s{so}, 2048")
        vm.append(tagid)
    def wait_for(tagid):
        if tagid not in vm: return
        n = len(vm) - 1 - vm.index(tagid)
        assert n < 64
        a(f"s_waitcnt vmcnt({n})")
    nload = [0]
    curW = [W]
    adapt = [False]; nlab = [0]
    def throttle_issue(kind, reg, u):
        n = nload[0]
        if adapt[0]:
            nlab[0] += 1
            a(f"s_cbranch_scc1 L_w{nlab[0]}", drain=False)
            wait_for(("s", n - curW[0]))
            a.hist[-1].states = 0
            a.label(f"L_w{nlab[0]}", drain=False)
            wait_for(("s", n - Wup))
        else: wait_for(("s", n - curW[0]))
        issue(kind, reg, u, ("s", n)); nload[0] += 1
    W0 = W0 or W
    curW[0] = W0
    for n in range(W0):
        throttle_issue("K", ring(n // 8, n % 8), n % 8)
    curW[0] = W
    if warm:
        a(f"s_cmp_lg_u32 s3, 1\ns_cbranch_scc1 L_nowarm")
        a(f"s_getpc_b64 s[66:67]\nv_lshlrev_b32 v{TMP+2}, 7, v0")
        a(f"global_load_dword v{TMP+3}, v{TMP+2}, s[66:67]")
        a.label("L_nowarm")
    srd(SV, 8, 1 << 27); srd(SW, 26, WS_USED); srd(SC_, 22, 3584); srd(SD, 4, 3584)
    srd(SA, 12, 4096 * 896); srd(SB, 20, 1792 * 896)
    for k in range(32): a(f"v_mov_b32 v{QF+k}, 0")
    for k in range(8): a(f"v_mov_b32 v{OACC+k}, 0")
    a(f"v_mov_b32 v{vMAX}, 0xff800000\nv_mov_b32 v{vL}, 0\nv_mov_b32 v{vC}, {hex(f2u(math.log2(math.e) / 16))}")
    a(f"v_and_b32 v{TMP+4}, 1, v{vJ}\nv_lshlrev_b32 v{TMP+4}, 4, v{TMP+4}\nv_mov_b32 v{TMP+5}, 0xffff\nv_lshlrev_b32 v{TMP+4}, v{TMP+4}, v{TMP+5}")
    a(f"v_bfe_u32 v{TMP+5}, v{vJ}, 1, 2")
    for w in range(4):
        a(f"v_cmp_eq_u32 vcc, {w}, v{TMP+5}\nv_cndmask_b32 v{MASK+w}, 0, v{TMP+4}, vcc")
    a(f"s_lshl_b32 s65, s{sWv}, 12\ns_add_u32 s65, s65, {SC}\nv_lshl_add_u32 v{vSC}, v0, 2, s65")
    for n in range(W0, 8 * NP):
        throttle_issue("K", ring(n // 8, n % 8), n % 8)
    stamp(1)
    a("s_barrier")
    stamp(2)
    for t in range(4):
        m = 0x000F000F << (4 * t)
        a(f"s_mov_b32 exec_lo, {hex(m)}\ns_mov_b32 exec_hi, {hex(m)}")
        for half in range(2):
            a(f"ds_read_b128 {V4(QF + 4 * (2 * t + half))}, v{TMP+1} offset:{QL + 256 * half}")
    a("s_mov_b64 exec, -1")
    a(f"v_mov_b32 v{TMP}, 0\nds_read_b64 {V2(TMP+2)}, v{TMP} offset:{TAGL}")
    a("s_waitcnt lgkmcnt(0)")
    a(f"v_readfirstlane_b32 s{sTAG}, v{TMP+2}\nv_readfirstlane_b32 s101, v{TMP+3}")

    def consK(reg, u, d):
        c = "0" if u == 0 else V4(d)
        a(f"v_mfma_f32_16x16x32_bf16 {V4(d)}, {V4(reg)}, {V4(QF + 4 * u)}, {c}")
    def extract(ds, off0):
        for k, d in enumerate(ds): a(f"v_mov_b32_dpp v{TMP+k}, v{d} quad_perm:[0,0,0,0] {FULL}")
        for c in range(1, 4):
            for k, d in enumerate(ds): a(f"v_add_f32_dpp v{TMP+k}, v{d+c}, v{TMP+k} quad_perm:[{c},{c},{c},{c}] {FULL}")
        for k, d in enumerate(ds): a(f"v_cvt_pk_bf16_f32 v{TMP+k}, v{TMP+k}, v{TMP+k}")
        for k, d in enumerate(ds): a(f"v_and_b32 v{TMP+k}, 0xffff0000, v{TMP+k}")
        for k, d in enumerate(ds):
            a(f"ds_write_b32 v{vSC}, v{TMP+k} offset:{off0 + 256 * k}")
            a(f"v_max_f32 v{vMAX}, v{vMAX}, v{TMP+k}")
        a(f"v_add_u32 v{vSC}, {256 * len(ds)}, v{vSC}")
    for u in range(8):
        consK(ring(0, u), u, DA)
        throttle_issue("K", ring(0, u), u)
        for T in range(1, NP): consK(ring(T, u), u, DA + 4 * T)
    extract([DA + 4 * T for T in range(NP)], 0)

    T0 = R + 32
    vX, vXO, vOPW, vMLW, vOPR, vZ, vL16, vST2, vTR, vTR2, vTRD, vTRD2, vHA, vAR, vAW, vWO, vWD = range(T0, T0 + 17)
    vML = T0 + 18
    G = T0 + 20
    GR = T0 + 36
    P1 = T0 + 40
    AH = T0 + 56
    AO = T0 + 64
    BW = T0 + 80
    BD = T0 + 96
    Y = T0 + 104
    E = T0 + 108
    def tail_addr():
        a(f"s_lshl_b32 s65, s{sWv}, 10\ns_add_u32 s65, s65, {OP}\nv_lshl_add_u32 v{vOPW}, v0, 4, s65")
        a(f"s_lshl_b32 s65, s{sWv}, 3\ns_add_u32 s65, s65, {ML}\nv_mov_b32 v{vMLW}, s65")
        a(f"s_lshl_b32 s65, s{sWv}, 8\ns_add_u32 s65, s65, {OP}\nv_lshl_add_u32 v{vOPR}, v0, 3, s65")
        a(f"v_mov_b32 v{vZ}, 0\nv_lshlrev_b32 v{vL16}, 4, v0\nv_mov_b32 v{GR+3}, s{sTAG}")
        a(f"s_lshl_b32 s70, s2, 11\ns_lshl_b32 s65, s{sWv}, 9\ns_add_u32 s70, s70, s65\ns_add_u32 s70, s70, {MB1}")
        a(f"s_lshl_b32 s71, s{sWv}, 17\ns_lshr_b32 s65, s{sKG}, 1\ns_lshl_b32 s65, s65, 13\ns_add_u32 s71, s71, s65")
        a(f"s_and_b32 s65, s{sKG}, 1\ns_lshl_b32 s65, s65, 10\ns_add_u32 s71, s71, s65\ns_add_u32 s71, s71, {MB1}\ns_add_u32 s74, s71, 4096")
        a(f"v_lshrrev_b32 v{E}, 3, v0\nv_and_b32 v{E+1}, 7, v0\nv_and_b32 v{E+2}, 2, v{E}\nv_xor_b32 v{E+1}, v{E+1}, v{E+2}\nv_lshlrev_b32 v{E+1}, 4, v{E+1}")
        a(f"v_and_b32 v{E+2}, 3, v{E}\nv_lshlrev_b32 v{E+2}, 3, v{E+2}\nv_lshrrev_b32 v{E+3}, 2, v{E}\nv_add_u32 v{E+2}, v{E+2}, v{E+3}")
        a(f"v_mul_u32_u24 v{vWO}, 896, v{E+2}\nv_mul_u32_u24 v{vWD}, 896, v{E}")
        a(f"s_and_b32 s65, s{sWv}, 1\ns_lshl_b32 s65, s65, 6\nv_xor_b32 v{E+1}, s65, v{E+1}")
        a(f"v_add_u32 v{vWO}, v{vWO}, v{E+1}\nv_add_u32 v{vWD}, v{vWD}, v{E+1}")
        a(f"s_lshr_b32 s66, s{sKG}, 1\ns_lshl_b32 s66, s66, 8\ns_and_b32 s65, s{sKG}, 1\ns_lshl_b32 s65, s65, 6\ns_add_u32 s66, s66, s65")
        a(f"s_lshl_b32 s65, s{sWv}, 1\ns_add_u32 s66, s66, s65\ns_mul_i32 s66, s66, 896\ns_lshl_b32 s65, s{sCG}, 7\ns_add_u32 s66, s66, s65")
        a(f"s_lshl_b32 s67, s{sKG}, 6\ns_lshl_b32 s68, s{sWv}, 3\ns_add_u32 s67, s67, s68\ns_mul_i32 s67, s67, 896\ns_add_u32 s67, s67, s65")
        a(f"s_lshl_b32 s75, s{sWv}, 10")
        a(f"v_lshrrev_b32 v{E}, 2, v{vJ}\nv_bfe_u32 v{E+1}, v{vJ}, 1, 1\ns_lshl_b32 s65, s{sWv}, 1\nv_add_u32 v{E+1}, s65, v{E+1}")
        a(f"v_and_b32 v{E+2}, 2, v{E}\nv_xor_b32 v{E+1}, v{E+1}, v{E+2}")
        a(f"v_and_b32 v{E+3}, 1, v{vJ}\nv_lshlrev_b32 v{E+3}, 3, v{E+3}\nv_lshl_add_u32 v{E+3}, v{E}, 7, v{E+3}")
        a(f"v_and_b32 v{E+2}, 1, v{vG}\nv_lshlrev_b32 v{E+2}, 2, v{E+2}\nv_xor_b32 v{E+4}, v{E+1}, v{E+2}")
        a(f"v_lshl_add_u32 v{vTR}, v{E+4}, 4, v{E+3}\nv_lshl_add_u32 v{vTR}, v{vG}, 10, v{vTR}")
        a(f"v_mul_u32_u24 v{vHA}, {HROW}, v{E}\nv_lshl_add_u32 v{vHA}, v{vG}, 4, v{vHA}")
        a(f"v_mul_u32_u24 v{vAR}, {AROW}, v{E}\nv_lshl_add_u32 v{vAR}, v{vG}, 4, v{vAR}")
        a(f"s_mul_i32 s65, s{sWv}, {AROW}\ns_add_u32 s65, s65, {AIMG}\nv_lshl_add_u32 v{vAW}, v0, 2, s65")
        a(f"v_lshlrev_b32 v{vST2}, 3, v{vJ}\nv_lshl_add_u32 v{vST2}, v{vG}, 12, v{vST2}")
        a(f"s_lshl_b32 s68, s{sCG}, 2\ns_add_u32 s68, s68, s{sWv}\ns_lshl_b32 s68, s68, 14\ns_lshl_b32 s65, s{sKG}, 7\ns_add_u32 s68, s68, s65\ns_add_u32 s68, s68, {MB2}")
        a(f"s_and_b32 s78, s{sKG}, 0xfc\ns_add_u32 s78, s78, s{sWv}\ns_lshl_b32 s69, s78, 4\ns_lshl_b32 s78, s78, 2\ns_and_b32 s65, s{sKG}, 3\ns_add_u32 s78, s78, s65")
        a(f"s_lshl_b32 s78, s78, 12\ns_add_u32 s78, s78, {MB2}\ns_mul_i32 s65, s65, 448\ns_add_u32 s69, s69, s65\ns_lshl_b32 s69, s69, 1")
        a(f"v_and_b32 v{E}, 7, v0\nv_and_b32 v{E+1}, 1, v{vG}\nv_lshlrev_b32 v{vXO}, 2, v{E}\nv_lshl_add_u32 v{vXO}, v{E+1}, 1, v{vXO}")
    tail_addr()
    if tlb:
        a("s_cmp_lg_u32 s3, 1\ns_cbranch_scc1 L_notlb")
        a("s_mov_b64 exec, 1")
        if tlb & 1: a(f"buffer_load_dword v{E+7}, v{vZ}, {S(SV)}, s{sVO} offen {nt}")
        if tlb & 2:
            a(f"buffer_load_dword v{E+7}, v{vZ}, {S(SA)}, s66 offen {nt}")
            a(f"buffer_load_dword v{E+7}, v{vZ}, {S(SB)}, s67 offen {nt}")
        a("s_mov_b64 exec, -1")
        a.label("L_notlb")

    vPG, vPR, vPA = E + 8, E + 9, E + 10
    sPS, sPL, sPT = 12, 13, 14
    if fb:
        a(f"s_add_u32 s65, s{sWv}, s{sJ}\ns_and_b32 s65, s65, 3\ns_lshl_b32 s{sPL}, s{sH}, 2\ns_add_u32 s{sPL}, s{sPL}, s65\ns_lshl_b32 s{sPL}, s{sPL}, 7\ns_add_u32 s{sPL}, s{sPL}, {PMB}")
        a(f"s_cmp_lg_u32 s101, 0\ns_cselect_b32 s{sPL}, 0x40000000, s{sPL}")
        a(f"s_lshl_b32 s65, s{sB}, 2\ns_add_u32 s65, s65, s{sJ}\ns_lshl_b32 s65, s65, 2\ns_add_u32 s{sPS}, s{sPL}, s65")
        a(f"v_mov_b32 v{vPG}, 0\nv_mov_b32 v{vPR}, -1\nv_lshlrev_b32 v{vPA}, 2, v0\ns_mov_b32 s{sPT}, {thup}")
    def progress():
        if not fb: return
        if gfb: a(f"v_readlane_b32 s15, v{vPR}, 16")
        for sh in (8, 4, 2, 1): a(f"v_add_u32_dpp v{vPR}, v{vPR}, v{vPR} row_ror:{sh} {FULL}")
        a(f"v_add_u32 v{vPG}, 1, v{vPG}\nv_readfirstlane_b32 s65, v{vPR}")
        if gfb: a(f"s_add_u32 s65, s65, s15")
        a("s_mov_b64 exec, 1")
        a(f"buffer_store_dword v{vPG}, v{vZ}, {S(SW)}, s{sPS} offen"); vm.append(("ps", nload[0]))
        a(f"s_mov_b64 exec, {'0x1ffff' if gfb else '0xffff'}")
        a(f"buffer_load_dword v{vPR}, v{vPA}, {S(SW)}, s{sPL} offen sc1"); vm.append(("pl", nload[0]))
        a("s_mov_b64 exec, -1")
        a(f"s_add_u32 s{sPT}, s{sPT}, 16\ns_add_u32 s65, s65, 16\ns_cmp_gt_i32 s65, s{sPT}")
        adapt[0] = True
    def iterK(nextkind):
        progress()
        for u in range(8):
            consK(ring(0, u), u, DA)
            throttle_issue(nextkind, ring(0, u), u)
        extract([DA], 0)
    a(f"s_mov_b32 s{sCNT}, {15 - NP}")
    a.label("L_kk")
    iterK("K")
    a(f"s_sub_u32 s{sCNT}, s{sCNT}, 1\ns_cmp_lg_u32 s{sCNT}, 0\ns_cbranch_scc1 L_kk")
    iterK("V")
    stamp(3)
    a(f"v_subrev_u32 v{vSC}, 4096, v{vSC}")
    a(f"ds_read_b32 v{vS}, v{vSC}")
    a(f"v_max_f32_dpp v{vMAX}, v{vMAX}, v{vMAX} row_ror:4 {FULL}")
    a(f"v_max_f32_dpp v{vMAX}, v{vMAX}, v{vMAX} row_ror:8 {FULL}")
    a(f"v_max_f32_dpp v{vMAX}, v{vMAX}, v{vMAX} row_bcast:15 row_mask:0xa bank_mask:0xf")
    a(f"v_max_f32_dpp v{vMAX}, v{vMAX}, v{vMAX} row_bcast:31 row_mask:0xc bank_mask:0xf")
    a(f"v_readlane_b32 s65, v{vMAX}, 63")
    a(f"v_mul_f32 v{vMC}, s65, v{vC}")
    vP = TMP
    def ld1(k): a(f"buffer_load_dwordx4 {V4(P1+4*k)}, v{vL16}, {S(SW)}, s{71 if k < 2 else 74} offen{' offset:2048' if k & 1 else ''} sc1")
    def last_extra():
        if not nowo:
            a(f"s_cmp_eq_u32 s{sCG}, 7\ns_cselect_b32 s66, 0x40000000, s66\ns_cselect_b32 s67, 0x40000000, s67")
            for c in range(4):
                a(f"s_add_u32 s65, s66, {(128 * (c & 1) + 32 * (c >> 1)) * 896}\ns_add_u32 m0, s75, {WL1 + 4096 * c}")
                a(f"buffer_load_dwordx4 v{vWO}, {S(SA)}, s65 offen {wnt} lds"); vm.append(("wo", c))
            a(f"s_add_u32 m0, s75, {WL2}")
            a(f"buffer_load_dwordx4 v{vWD}, {S(SB)}, s67 offen {wnt} lds"); vm.append(("wd", 0))
            a(f"s_add_u32 s67, s67, {32 * 896}\ns_add_u32 m0, s75, {WL2 + 4096}")
            a(f"buffer_load_dwordx4 v{vWD}, {S(SB)}, s67 offen {wnt} lds"); vm.append(("wd", 1))
        a(f"buffer_load_ushort v{vX}, v{vXO}, {S(SD)}, s69 offen"); vm.append("x")
        if touch:
            a(f"buffer_load_ushort v{E+7}, v{vXO}, {S(SC_)}, s69 offen"); vm.append("o")
        a(f"v_add_f32_dpp v{vL}, v{vL}, v{vL} row_ror:4 {FULL}")
        a(f"v_add_f32_dpp v{vL}, v{vL}, v{vL} row_ror:8 {FULL}")
        a(f"v_add_f32_dpp v{vL}, v{vL}, v{vL} row_bcast:15 row_mask:0xa bank_mask:0xf")
        a(f"v_add_f32_dpp v{vL}, v{vL}, v{vL} row_bcast:31 row_mask:0xc bank_mask:0xf")
        a(f"v_mov_b32 v{vML}, v{vMC}\nv_mov_b32 v{vML+1}, v{vL}")
        a("s_mov_b32 exec_lo, 0\ns_mov_b32 exec_hi, 0x80000000")
        a(f"ds_write_b64 v{vMLW}, {V2(vML)}")
        a("s_mov_b64 exec, -1")
        if hoist:
            a("s_waitcnt lgkmcnt(0)\ns_barrier")
            if early1 == 2:
                for k in range(4): ld1(k); vm.append(("p1", k))
            a(f"ds_read_b128 {V4(G)}, v{vZ} offset:{ML}\nds_read_b128 {V4(G+4)}, v{vZ} offset:{ML+16}\ns_waitcnt lgkmcnt(0)")
            weights()
    def weights():
        ms, ls = [G, G+2, G+4, G+6], [G+1, G+3, G+5, G+7]
        a(f"v_max3_f32 v{E+4}, v{ms[0]}, v{ms[1]}, v{ms[2]}\nv_max_f32 v{E+4}, v{E+4}, v{ms[3]}")
        for k in range(4): a(f"v_sub_f32 v{ms[k]}, v{ms[k]}, v{E+4}")
        for k in range(4): a(f"v_exp_f32 v{ms[k]}, v{ms[k]}")
        a(f"v_mul_f32 v{E+5}, v{ms[0]}, v{ls[0]}")
        for k in range(1, 4): a(f"v_fmac_f32 v{E+5}, v{ms[k]}, v{ls[k]}")
        a(f"v_rcp_f32 v{E+6}, v{E+5}\nv_log_f32 v{E+5}, v{E+5}")
        for k in range(4): a(f"v_mul_f32 v{ms[k]}, v{ms[k]}, v{E+6}")
        a(f"v_add_f32 v{GR+2}, v{E+4}, v{E+5}")
    def iterV(last):
        a("s_waitcnt lgkmcnt(0)")
        a(f"v_fma_f32 v{vP}, v{vS}, v{vC}, -v{vMC}")
        a(f"v_exp_f32 v{vP}, v{vP}")
        if not last:
            a(f"v_add_u32 v{vSC}, 256, v{vSC}\nds_read_b32 v{vS}, v{vSC}")
        a(f"v_add_f32 v{vL}, v{vL}, v{vP}")
        a(f"v_cvt_pk_bf16_f32 v{vP}, v{vP}, v{vP}")
        if last: last_extra()
        else: progress()
        base = nload[0] - 8
        for u in range(8):
            t, half = u >> 1, u & 1
            b = BB + 4 * (t & 1)
            if half == 0:
                for w in range(4): a(f"v_and_b32_dpp v{b+w}, v{vP}, v{MASK+w} row_newbcast:{4*t} {FULL}")
            if last: wait_for(("s", base + u))
            a(f"v_mfma_f32_16x16x32_bf16 {V4(OACC + 4 * half)}, {V4(ring(0, u))}, {V4(b)}, {V4(OACC + 4 * half)}")
            if not last: throttle_issue("V", ring(0, u), u)
    a(f"s_mov_b32 s{sCNT}, {15 - nend}")
    a.label("L_vv")
    iterV(False)
    a(f"s_sub_u32 s{sCNT}, s{sCNT}, 1\ns_cmp_lg_u32 s{sCNT}, 0\ns_cbranch_scc1 L_vv")
    if nend:
        curW[0] = Wend
        a(f"s_mov_b32 s{sCNT}, {nend}")
        a.label("L_vv2")
        iterV(False)
        a(f"s_sub_u32 s{sCNT}, s{sCNT}, 1\ns_cmp_lg_u32 s{sCNT}, 0\ns_cbranch_scc1 L_vv2")
    iterV(True)
    stamp(4)
    for r in range(4): a(f"v_mov_b32_dpp v{OACC+r}, v{OACC+4+r} {IDP} row_mask:0xf bank_mask:0xc")
    a(f"ds_write_b128 v{vOPW}, {V4(OACC)}")
    a("s_waitcnt lgkmcnt(0)")
    a("s_barrier")
    a("s_mov_b32 exec_hi, 0")
    if not hoist: a(f"ds_read_b128 {V4(G)}, v{vZ} offset:{ML}\nds_read_b128 {V4(G+4)}, v{vZ} offset:{ML+16}")
    for w in range(4): a(f"ds_read_b64 {V2(G+8+2*w)}, v{vOPR} offset:{1024*w}")
    if not hoist:
        a("s_waitcnt lgkmcnt(4)")
        weights()
    ms = [G, G+2, G+4, G+6]
    a("s_cmp_lg_u32 s101, 0")
    a("s_waitcnt lgkmcnt(3)")
    a(f"v_pk_mul_f32 {V2(GR)}, {V2(G+8)}, {V2(ms[0])} op_sel_hi:[1,0]")
    for k in range(1, 4):
        a(f"s_waitcnt lgkmcnt({3-k})")
        a(f"v_pk_fma_f32 {V2(GR)}, {V2(G+8+2*k)}, {V2(ms[k])}, {V2(GR)} op_sel_hi:[1,0,1]")
    if fast:
        a("s_cbranch_scc1 L_st1far", drain=False)
        a(f"buffer_store_dwordx4 {V4(GR)}, v{vL16}, {S(SW)}, s70 offen")
        a("s_branch L_st1done", drain=False)
        a.label("L_st1far", drain=False)
    a(f"buffer_store_dwordx4 {V4(GR)}, v{vL16}, {S(SW)}, s70 offen sc1")
    if fast: a.label("L_st1done", drain=False)
    def st1_global():
        a("s_mov_b32 exec_hi, 0")
        a(f"buffer_store_dwordx4 {V4(GR)}, v{vL16}, {S(SW)}, s70 offen sc1")
        a("s_mov_b32 exec_hi, -1")
    a("s_mov_b64 exec, -1")
    stamp(8)
    a(f"s_mov_b32 s{sCNT}, {spin}")
    a(f"s_cmp_eq_u32 s{sCG}, 7\ns_cbranch_scc1 L_reduce", drain=False)
    if not early1:
        for k in range(4): ld1(k)
    a(f"ds_read_b128 {V4(AH)}, v{vHA} offset:{HIMG}\nds_read_b128 {V4(AH+4)}, v{vHA} offset:{HIMG+64}")
    if early1: a("s_waitcnt vmcnt(1)\ns_branch L_p1c", drain=False)
    a.label("L_p1", drain=False)
    a("s_waitcnt vmcnt(0)")
    a.label("L_p1c", drain=False)
    MK = [4, 6, 8, 10]
    for k in range(4): a(f"v_cmp_ne_u32 s[{MK[k]}:{MK[k]+1}], s{sTAG}, v{P1+4*k+3}")
    a(f"s_or_b64 s[76:77], s[4:5], s[6:7]\ns_or_b64 vcc, s[8:9], s[10:11]\ns_or_b64 s[76:77], s[76:77], vcc")
    a("s_cbranch_scc0 L_p1ok", drain=False)
    if sleep1: a(f"s_sleep {sleep1}")
    for k in range(4):
        a(f"s_cmp_eq_u64 s[{MK[k]}:{MK[k]+1}], 0\ns_cbranch_scc1 L_p1s{k}", drain=False)
        ld1(k)
        a.label(f"L_p1s{k}", drain=False)
    a(f"s_sub_u32 s{sCNT}, s{sCNT}, 1\ns_cbranch_scc0 L_p1", drain=False)
    a.label("L_p1ok", drain=False)
    stamp(5)
    lam = [P1+2, P1+6, P1+10, P1+14]
    a(f"v_max3_f32 v{E+4}, v{lam[0]}, v{lam[1]}, v{lam[2]}\nv_max_f32 v{E+4}, v{E+4}, v{lam[3]}")
    for k in range(4): a(f"v_sub_f32 v{lam[k]}, v{lam[k]}, v{E+4}")
    for k in range(4): a(f"v_exp_f32 v{lam[k]}, v{lam[k]}")
    a(f"v_add_f32 v{E+5}, v{lam[0]}, v{lam[1]}\nv_pk_mul_f32 {V2(G)}, {V2(P1)}, {V2(lam[0])} op_sel_hi:[1,0]\nv_add_f32 v{E+6}, v{lam[2]}, v{lam[3]}")
    a(f"v_pk_fma_f32 {V2(G)}, {V2(P1+4)}, {V2(lam[1])}, {V2(G)} op_sel_hi:[1,0,1]\nv_add_f32 v{E+6}, v{E+5}, v{E+6}")
    a(f"v_pk_fma_f32 {V2(G)}, {V2(P1+8)}, {V2(lam[2])}, {V2(G)} op_sel_hi:[1,0,1]\nv_rcp_f32 v{E+6}, v{E+6}")
    a(f"v_pk_fma_f32 {V2(G)}, {V2(P1+12)}, {V2(lam[3])}, {V2(G)} op_sel_hi:[1,0,1]")
    a(f"v_pk_mul_f32 {V2(G)}, {V2(G)}, {V2(E+6)} op_sel_hi:[1,0]")
    a(f"v_cvt_pk_bf16_f32 v{G}, v{G}, v{G+1}")
    a(f"ds_write_b32 v{vAW}, v{G}")
    a("s_waitcnt lgkmcnt(0)")
    a("s_barrier")
    a(f"ds_read_b64_tr_b16 {V2(BD)}, v{vTR} offset:{WL2}\nds_read_b64_tr_b16 {V2(BD+2)}, v{vTR} offset:{WL2+512}")
    a(f"ds_read_b64_tr_b16 {V2(BD+4)}, v{vTR} offset:{WL2+4096}\nds_read_b64_tr_b16 {V2(BD+6)}, v{vTR} offset:{WL2+4096+512}")
    for k in range(4):
        a(f"ds_read_b128 {V4(AO+4*k)}, v{vAR} offset:{AIMG+64*k}")
        a(f"ds_read_b64_tr_b16 {V2(BW+4*k)}, v{vTR} offset:{WL1+4096*k}\nds_read_b64_tr_b16 {V2(BW+4*k+2)}, v{vTR} offset:{WL1+4096*k+512}")
    a("s_waitcnt lgkmcnt(12)")
    a(f"v_mfma_f32_16x16x32_bf16 {V4(Y)}, {V4(AH)}, {V4(BD)}, 0")
    a(f"v_mfma_f32_16x16x32_bf16 {V4(Y)}, {V4(AH+4)}, {V4(BD+4)}, {V4(Y)}")
    for k in range(4):
        a(f"s_waitcnt lgkmcnt({9-3*k})")
        a(f"v_mfma_f32_16x16x32_bf16 {V4(Y)}, {V4(AO+4*k)}, {V4(BW+4*k)}, {V4(Y)}")
    a(f"v_mov_b32 v{Y+1}, v{GR+3}")
    a(f"buffer_store_dwordx2 {V2(Y)}, v{vST2}, {S(SW)}, s68 offen sc1")
    if fast and clean: st1_global()
    a("s_branch L_sdone")
    a.label("L_reduce")
    if fast and clean:
        a("s_sleep 12")
        st1_global()
    a(f"s_cmp_ge_u32 s{sKG}, 28\ns_cbranch_scc1 L_sdone")
    SETS = [R + 16 * d for d in range(2)] + [QF, QF + 16]
    def ld2(d):
        for k in range(4): a(f"buffer_load_dwordx4 {V4(SETS[d]+4*k)}, v{vL16}, {S(SW)}, s78 offen offset:{1024*k} sc1")
    a(f"s_waitcnt vmcnt(0)\nv_lshlrev_b32 v{vX}, 16, v{vX}")
    for d in range(D2 - 1):
        ld2(d)
        if stag2: a(f"s_sleep {stag2}")
    a.label("L_p2")
    for d in range(D2):
        ld2((d + D2 - 1) % D2)
        a(f"s_waitcnt vmcnt({4 * (D2 - 1)})")
        q = SETS[d]
        a(f"v_xor_b32 v{E}, v{q+1}, v{GR+3}\nv_xor_b32 v{E+1}, v{q+3}, v{GR+3}")
        for k in range(1, 4): a(f"v_bitop3_b32 v{E}, v{q+4*k+1}, v{GR+3}, v{E} bitop3:0xbe\nv_bitop3_b32 v{E+1}, v{q+4*k+3}, v{GR+3}, v{E+1} bitop3:0xbe")
        a(f"v_or_b32 v{E}, v{E}, v{E+1}\nv_add_f32 v{P1}, v{q}, v{q+4}\nv_add_f32 v{P1+2}, v{q+2}, v{q+6}\nv_cmp_ne_u32 vcc, 0, v{E}")
        a(f"v_add_f32 v{P1+8}, v{q+8}, v{q+12}\nv_add_f32 v{P1+10}, v{q+10}, v{q+14}")
        a("s_cbranch_vccz L_p2ok", drain=False)
    a(f"s_sub_u32 s{sCNT}, s{sCNT}, 1\ns_cbranch_scc0 L_p2", drain=False)
    a.label("L_p2ok", drain=False)
    stamp(6)
    a(f"v_add_f32 v{P1}, v{P1}, v{P1+8}\nv_add_f32 v{P1+2}, v{P1+2}, v{P1+10}")
    a(f"v_permlane16_swap_b32 v{P1}, v{P1+2}")
    a(f"v_add_f32 v{P1}, v{P1}, v{P1+2}")
    a(f"v_add_f32_dpp v{P1}, v{P1}, v{P1} row_ror:8 {FULL}")
    a(f"v_mov_b32 v{P1+2}, v{P1}")
    a(f"v_permlane32_swap_b32 v{P1}, v{P1+2}")
    a(f"v_add_f32 v{P1}, v{P1}, v{P1+2}\nv_add_f32 v{P1}, v{P1}, v{vX}")
    a(f"v_cvt_pk_bf16_f32 v{P1}, v{P1}, v{P1}")
    a(f"s_mov_b32 exec_hi, 0\ns_mov_b32 exec_lo, 0x00ff00ff")
    a(f"buffer_store_short v{P1}, v{vXO}, {S(SC_)}, s69 offen {osc}")
    a(f"s_or_b32 s65, s{sKG}, s{sWv}\ns_cmp_lg_u32 s65, 0\ns_cbranch_scc1 L_sdone")
    a("s_mov_b64 exec, 1")
    a(f"buffer_store_dword v{GR+3}, v{vZ}, {S(SW)}, 0 offen {osc}")
    a.label("L_sdone")
    stamp(7)
    pad("S")
    dump_stamps(9)
    a("s_endpgm")

    a.label("L_helper")
    X, F, AF, AF2, BF, D, TG = 32, 64, 96, 112, 128, 184, 200
    a("s_setprio 3")
    a(f"v_mul_u32_u24 v6, 896, v5\nv_lshl_add_u32 v6, v4, 6, v6\nv_mov_b32 v7, 0x40000000\nv_cmp_gt_u32 s[74:75], 14, v4")
    a(f"v_cndmask_b32 v7, v7, v6, s[74:75]")
    a(f"v_lshrrev_b32 v8, 3, v0\nv_and_b32 v9, 7, v0\nv_lshlrev_b32 v9, 4, v9\nv_lshl_add_u32 v10, v8, 13, v9")
    a(f"v_mul_u32_u24 v11, 3584, v8\nv_add_u32 v11, v11, v9")
    a(f"s_mul_i32 s65, s{sB}, {112 * 8192}\ns_lshl_b32 s66, s{sIDX}, 7\ns_add_u32 s65, s65, s66")
    a("s_waitcnt lgkmcnt(0)")
    a(f"s_load_dword s{sTAG}, s[26:27], 0")
    srd(SA, 4, 3584)
    for u in range(4): a(f"buffer_load_dwordx4 {V4(X+4*u)}, v7, {S(SA)}, 0 offen offset:{16*u}")
    srd(SB, 10, 448 * 8192)
    def dma(sr, voff, so, stride, lds0, win=None):
        for k in range(14):
            if win and k >= win: a(f"s_waitcnt vmcnt({win-1})")
            a(f"s_mov_b32 m0, {lds0 + 1024 * k}")
            a(f"buffer_load_dwordx4 v{voff}, {S(sr)}, s{so} offen {wnt} lds")
            if k < 13: a(f"s_add_u32 s{so}, s{so}, {8 * stride}")
    if not noq: dma(SB, 10, 65, 8192, WL0)
    srd(SW, 26, WS_USED)
    nini = 0
    if fb:
        a(f"s_lshl_b32 s34, s{sH}, 9\ns_add_u32 s34, s34, {PMB}\ns_lshl_b32 s35, s{sB}, 2\ns_add_u32 s35, s35, s{sJ}\ns_lshl_b32 s68, s35, 2\ns_add_u32 s68, s68, s34")
        a(f"v_lshlrev_b32 v2, 7, v0\nv_mov_b32 v3, 0\ns_mov_b64 exec, 15")
        a(f"buffer_store_dword v3, v2, {S(SW)}, s68 offen"); nini += 1
        if gfb:
            a(f"s_cmp_eq_u32 s35, 0\ns_cselect_b32 s68, s34, 0x40000000")
            a(f"buffer_store_dword v3, v2, {S(SW)}, s68 offen offset:64"); nini += 1
        a("s_mov_b64 exec, -1")
    a(f"v_and_b32 v14, 3, v4\nv_lshrrev_b32 v15, 2, v4\ns_mul_i32 s65, s{sB}, 224")
    a(f"v_mul_u32_u24 v12, 896, v15\nv_add_u32 v12, s65, v12\nv_lshl_add_u32 v28, v5, 3, v12\nv_lshl_add_u32 v12, v5, 4, v12")
    a(f"s_lshr_b32 s65, s{sCG}, 1\ns_mul_i32 s65, s65, 224")
    a(f"v_mul_u32_u24 v30, 896, v14\nv_add_u32 v30, s65, v30\nv_lshl_add_u32 v31, v5, 3, v30\nv_lshl_add_u32 v30, v5, 4, v30")
    a(f"v_lshl_add_u32 v8, v5, 2, v14\nv_lshlrev_b32 v8, 4, v8\nv_lshl_add_u32 v8, v15, 16, v8")
    a(f"v_lshlrev_b32 v9, 5, v14\nv_lshl_add_u32 v9, v15, 3, v9\nv_lshl_add_u32 v9, v5, 7, v9")
    for t in range(1, 4): a(f"v_cmp_eq_u32 s[{26+2*t}:{27+2*t}], {t}, v14")
    a(f"v_lshlrev_b32 v15, 7, v15\nv_lshl_add_u32 v15, v14, 3, v15")
    a(f"v_lshl_add_u32 v13, v5, 10, v15\nv_lshl_add_u32 v29, v5, 9, v15")
    a(f"s_waitcnt vmcnt(14)" if not noq else "s_waitcnt vmcnt(0)")
    stamp(1)
    for k in range(16): a(f"v_lshlrev_b32 v{F+2*k}, 16, v{X+k}\nv_and_b32 v{F+2*k+1}, 0xffff0000, v{X+k}")
    a(f"v_pk_add_f32 v[14:15], {V2(F)}, {V2(F+2)}\nv_pk_add_f32 v[16:17], {V2(F+4)}, {V2(F+6)}")
    for k in range(4, 16, 2):
        a(f"v_pk_add_f32 v[14:15], v[14:15], {V2(F+2*k)}\nv_pk_add_f32 v[16:17], v[16:17], {V2(F+2*k+2)}")
    a("v_pk_add_f32 v[14:15], v[14:15], v[16:17]\nv_add_f32 v14, v14, v15")
    def rowsum(r):
        for sh in (8, 4, 2, 1): a(f"v_add_f32_dpp v{r}, v{r}, v{r} row_ror:{sh} {FULL}")
    rowsum(14)
    a(f"v_mul_f32 v18, {hex(f2u(-1.0 / 448))}, v14\nv_mov_b32 v19, v18")
    a("v_mov_b32 v14, 0\nv_mov_b32 v15, 0\nv_mov_b32 v16, 0\nv_mov_b32 v17, 0")
    for k in range(0, 16, 2):
        a(f"v_pk_add_f32 v[20:21], {V2(F+2*k)}, v[18:19]\nv_pk_add_f32 v[22:23], {V2(F+2*k+2)}, v[18:19]")
        a(f"v_pk_fma_f32 v[14:15], v[20:21], v[20:21], v[14:15]\nv_pk_fma_f32 v[16:17], v[22:23], v[22:23], v[16:17]")
    a("v_pk_add_f32 v[14:15], v[14:15], v[16:17]\nv_add_f32 v14, v14, v15\nv_cndmask_b32 v14, 0, v14, s[74:75]")
    rowsum(14)
    def rbf(r): a(f"v_cvt_pk_bf16_f32 v{r}, v{r}, v{r}\nv_and_b32 v{r}, 0xffff0000, v{r}")
    a(f"v_mul_f32 v14, {hex(f2u(1.0 / 448))}, v14"); rbf(14)
    a(f"v_add_f32 v14, {hex(f2u(1e-5))}, v14"); rbf(14)
    a("v_sqrt_f32 v14, v14"); rbf(14)
    a("v_rcp_f32 v16, v14\nv_mov_b32 v15, v14"); rbf(18)
    a("v_mov_b32 v17, v16\nv_mov_b32 v19, v18")
    for k in range(16):
        a(f"v_pk_add_f32 {V2(F+2*k)}, {V2(F+2*k)}, v[18:19]")
    for k in range(16):
        a(f"v_cvt_pk_bf16_f32 v{X+k}, v{F+2*k}, v{F+2*k+1}")
    for k in range(16): a(f"v_lshlrev_b32 v{F+2*k}, 16, v{X+k}\nv_and_b32 v{F+2*k+1}, 0xffff0000, v{X+k}")
    for k in range(16):
        t = 20 + 2 * (k & 3)
        a(f"v_pk_mul_f32 {V2(t)}, {V2(F+2*k)}, v[16:17]")
        a(f"v_pk_fma_f32 {V2(F+2*k)}, {V2(t)}, v[14:15], {V2(F+2*k)} neg_lo:[1,0,0] neg_hi:[1,0,0]")
        a(f"v_pk_fma_f32 {V2(t)}, {V2(F+2*k)}, v[16:17], {V2(t)}")
        a(f"v_cvt_pk_bf16_f32 v{X+k}, v{t}, v{t+1}")
    a("s_mov_b64 exec, s[74:75]")
    for u in range(4): a(f"ds_write_b128 v6, {V4(X+4*u)} offset:{XN + 16*u}")
    a("s_mov_b64 exec, -1")
    a("s_waitcnt lgkmcnt(0)")
    a(f"s_mul_i32 s{sTAG}, s{sTAG}, 0x9E3779B1\ns_add_u32 s{sTAG}, s{sTAG}, 0x7F4A7C15")
    for k in range(3): a(f"ds_read_b128 {V4(AF+4*k)}, v12 offset:{XN + 64*k}")
    a(f"ds_read_b64 {V2(AF+12)}, v28 offset:{XN + 192}")
    a(f"v_mov_b32 v{TG}, s{sTAG}\nv_lshrrev_b32 v{TG+1}, 8, v{TG}\nv_lshrrev_b32 v{TG+2}, 16, v{TG}\nv_lshrrev_b32 v{TG+3}, 24, v{TG}\ns_movk_i32 s78, 0xff")
    a(f"v_lshlrev_b32 v10, 4, v0")
    a(f"s_lshl_b32 s66, s{sH}, 12\ns_lshl_b32 s67, s{sB}, 10\ns_add_u32 s66, s66, s67\ns_lshl_b32 s67, s{sJ}, 8\ns_add_u32 s66, s66, s67\ns_add_u32 s66, s66, {QMB}")
    a(f"s_lshl_b32 s67, s{sBH}, 12\ns_add_u32 s67, s67, {QMB}")
    a("s_waitcnt vmcnt(0)")
    stamp(2)
    a(f"s_getreg_b32 s69, hwreg(HW_REG_XCC_ID, 0, 4)\nv_xor_b32 v{TG+4}, s69, v{TG+3}")
    def piece(af, transposed):
        for t in range(4):
            for k in range(3):
                o = WL0 + 4096 * k + 32 * t
                a(f"ds_read_b64_tr_b16 {V2(BF+14*t+4*k)}, v13 offset:{o}\nds_read_b64_tr_b16 {V2(BF+14*t+4*k+2)}, v13 offset:{o + 512}")
            a(f"ds_read_b64_tr_b16 {V2(BF+14*t+12)}, v29 offset:{WL0 + 12288 + 32 * t}")
        a("s_waitcnt lgkmcnt(0)")
        for k in range(3):
            for t in range(4):
                x, w = V4(af+4*k), V4(BF+14*t+4*k)
                a(f"v_mfma_f32_16x16x32_bf16 {V4(D+4*t)}, {w if transposed else x}, {x if transposed else w}, {'0' if k == 0 else V4(D+4*t)}")
        for t in range(4):
            x, w = V2(af+12), V2(BF+14*t+12)
            a(f"v_mfma_f32_16x16x16_bf16 {V4(D+4*t)}, {w if transposed else x}, {x if transposed else w}, {V4(D+4*t)}")
        for t in range(1, 4):
            for r in range(4):
                if transposed: a(f"v_cndmask_b32 v{D+r}, v{D+r}, v{D+4*t+r}, s[{26+2*t}:{27+2*t}]")
                else: a(f"v_mov_b32_dpp v{D+r}, v{D+4*t+r} {IDP} row_mask:{hex(1 << t)} bank_mask:0xf")
        for r in range(4): a(f"v_add_u32 v{D+r}, 0x80, v{D+r}")
        for r in range(4): a(f"v_bfi_b32 v{20+r}, s78, v{TG + r + (1 if transposed and r == 3 else 0)}, v{D+r}")
    piece(AF, True)
    if noq or not qst: a("s_branch L_pqok")
    a(f"buffer_store_dwordx4 v[20:23], v8, {S(SW)}, s66 offen{'' if fastq else ' sc1'}")
    stamp(3)
    for k in range(3): a(f"ds_read_b128 {V4(AF2+4*k)}, v30 offset:{XN + 64*k}")
    a(f"ds_read_b64 {V2(AF2+12)}, v31 offset:{XN + 192}")
    a(f"v_mov_b32 v16, 0\nv_mov_b32 v17, 0\nv_mov_b32 v18, 0\nv_mov_b32 v19, 0")
    a(f"s_mov_b32 exec_hi, 0xff\nds_write_b128 v10, v[16:19] offset:{HIMG}\ns_mov_b64 exec, -1")
    PQ = F
    def qload(k): a(f"buffer_load_dwordx4 {V4(PQ+4*k)}, v10, {S(SW)}, s67 offen offset:{1024 * k} sc1")
    def chk4(dst, src):
        a(f"v_xor_b32 v{dst}, v{src}, v{TG}")
        for t in range(1, 4): a(f"v_bitop3_b32 v{dst}, v{src+t}, v{TG+t}, v{dst} bitop3:0xbe")
        a(f"v_and_b32 v{dst}, s78, v{dst}")
    if sleepq: a(f"s_sleep {sleepq}")
    for k in range(4): qload(k)
    a(f"s_mov_b32 s{sCNT}, {spin}")
    a.label("L_pq")
    a("s_waitcnt vmcnt(0)")
    for k in range(4):
        a(f"v_xor_b32 v{X+4+k}, v{PQ+4*k+3}, v{TG+4}\nv_and_b32 v{X+k}, 0xf0, v{X+4+k}")
        for t in range(3): a(f"v_bitop3_b32 v{X+k}, v{PQ+4*k+t}, v{TG+t}, v{X+k} bitop3:0xbe")
        a(f"v_and_b32 v{X+k}, s78, v{X+k}")
    a(f"v_or3_b32 v24, v{X}, v{X+1}, v{X+2}\nv_or_b32 v24, v24, v{X+3}")
    a("v_cmp_ne_u32 vcc, 0, v24\ns_cbranch_vccz L_pqok", drain=False)
    if fastq:
        a(f"s_cmp_lg_u32 s{sCNT}, {spin - nq}\ns_cbranch_scc1 L_pqg", drain=False)
        a(f"buffer_store_dwordx4 v[20:23], v8, {S(SW)}, s66 offen sc1")
        a.label("L_pqg", drain=False)
    a(f"s_sleep 2")
    for k in range(4):
        a(f"v_cmp_ne_u32 vcc, 0, v{X+k}\ns_cbranch_vccz L_pqs{k}", drain=False)
        qload(k)
        a.label(f"L_pqs{k}", drain=False)
    a(f"s_sub_u32 s{sCNT}, s{sCNT}, 1\ns_cmp_lg_u32 s{sCNT}, 0\ns_cbranch_scc1 L_pq", drain=False)
    a.label("L_pqok", drain=False)
    for k in range(16): a(f"v_and_b32 v{PQ+k}, 0xffffff00, v{PQ+k}")
    for e in (0, 2):
        a(f"v_pk_add_f32 {V2(PQ+e)}, {V2(PQ+e)}, {V2(PQ+4+e)}\nv_pk_add_f32 {V2(PQ+8+e)}, {V2(PQ+8+e)}, {V2(PQ+12+e)}")
    for e in (0, 2): a(f"v_pk_add_f32 {V2(PQ+e)}, {V2(PQ+e)}, {V2(PQ+8+e)}")
    a(f"v_cvt_pk_bf16_f32 v24, v{PQ}, v{PQ+1}\nv_cvt_pk_bf16_f32 v25, v{PQ+2}, v{PQ+3}\nv_mov_b32 v17, 0")
    a(f"v_or3_b32 v26, v{X+4}, v{X+5}, v{X+6}\nv_or_b32 v26, v26, v{X+7}\nv_and_b32 v26, 15, v26\nv_cmp_ne_u32 vcc, 0, v26")
    a(f"s_or_b32 s69, vcc_lo, vcc_hi\nv_mov_b32 v26, v{TG}\nv_mov_b32 v27, s69")
    a(f"ds_write_b64 v9, v[24:25] offset:{QL}\nds_write_b64 v17, v[26:27] offset:{TAGL}")
    if fastq:
        a("s_cmp_eq_u32 s69, 0\ns_cbranch_scc1 L_qnear")
        a(f"buffer_store_dwordx4 v[20:23], v8, {S(SW)}, s66 offen sc1")
        a.label("L_qnear")
    a("s_waitcnt lgkmcnt(0)")
    stamp(4)
    if stamps: a(f"s_mov_b32 s92, s{sCNT}")
    a("s_barrier")
    a("s_setprio 0")
    if noffn: a("s_branch L_hend")
    a(f"s_cmp_ge_u32 s{sKG}, 28\ns_cbranch_scc1 L_hend")
    a(f"s_bitcmp1_b32 s{sCG}, 0\ns_cselect_b32 s{SC_}, s18, s16\ns_cselect_b32 s{SC_+1}, s19, s17\ns_mov_b32 s{SC_+2}, {448 * 3584}\ns_mov_b32 s{SC_+3}, 0x20000")
    a(f"s_lshr_b32 s66, s{sCG}, 1\ns_mul_i32 s65, s66, {112 * 3584}\ns_lshl_b32 s67, s{sKG}, 7\ns_add_u32 s65, s65, s67")
    if fdma: dma(SC_, 11, 65, 3584, WL0, win=HW)
    a(f"s_lshl_b32 s67, s{sKG}, 13\ns_add_u32 s67, s67, {FMB}\ns_lshl_b32 s66, s{sCG}, 10\ns_add_u32 s66, s66, s67\ns_add_u32 s68, s67, 4096")
    a("s_waitcnt vmcnt(0)")
    piece(AF2, False)
    if fst and fastf:
        a("s_cmp_lg_u32 s69, 0\ns_cbranch_scc1 L_ffar")
        a(f"buffer_store_dwordx4 v[20:23], v10, {S(SW)}, s66 offen\ns_branch L_fdone")
        a.label("L_ffar")
    if fst: a(f"buffer_store_dwordx4 v[20:23], v10, {S(SW)}, s66 offen sc1")
    if fst and fastf: a.label("L_fdone")
    if not fpoll: a("s_branch L_hend")
    a(f"s_cmp_eq_u32 s{sCG}, 7\ns_cbranch_scc1 L_hend")
    def fload(k): a(f"buffer_load_dwordx4 {V4(F+4*k)}, v10, {S(SW)}, s{67 + (k >> 2)} offen offset:{1024 * (k & 3)} sc1")
    a(f"s_sleep {sleepf}")
    for k in range(8): fload(k)
    a(f"s_mov_b32 s{sCNT}, {spin}\nv_lshlrev_b32 v9, 1, v0")
    a.label("L_pf")
    a("s_waitcnt vmcnt(0)")
    for k in range(8): chk4(X + k, F + 4 * k)
    a(f"v_or3_b32 v24, v{X}, v{X+1}, v{X+2}\nv_or3_b32 v24, v24, v{X+3}, v{X+4}\nv_or3_b32 v24, v24, v{X+5}, v{X+6}\nv_or_b32 v24, v24, v{X+7}")
    a("v_cmp_ne_u32 vcc, 0, v24\ns_cbranch_vccz L_pfok", drain=False)
    a(f"s_sleep 16")
    for k in range(8):
        a(f"v_cmp_ne_u32 vcc, 0, v{X+k}\ns_cbranch_vccz L_pfs{k}", drain=False)
        fload(k)
        a.label(f"L_pfs{k}", drain=False)
    a(f"s_sub_u32 s{sCNT}, s{sCNT}, 1\ns_cbranch_scc0 L_pf", drain=False)
    a.label("L_pfok", drain=False)
    for k in range(32): a(f"v_and_b32 v{F+k}, 0xffffff00, v{F+k}")
    for e in range(0, 8, 2):
        a(f"v_pk_add_f32 {V2(F+e)}, {V2(F+e)}, {V2(F+8+e)}\nv_pk_add_f32 {V2(F+16+e)}, {V2(F+16+e)}, {V2(F+24+e)}")
    for e in range(0, 8, 2): a(f"v_pk_add_f32 {V2(F+e)}, {V2(F+e)}, {V2(F+16+e)}")
    for r in range(8): rbf(F + r)
    k1 = -2.0 * math.sqrt(2.0 / math.pi) * math.log2(math.e)
    for r in range(4):
        g, u, t = F + r, F + 4 + r, F + 8 + r
        a(f"v_mul_f32 v{t}, v{g}, v{g}\nv_mul_f32 v{t}, {hex(f2u(0.044715))}, v{t}\nv_fma_f32 v{t}, v{t}, v{g}, v{g}")
        a(f"v_mul_f32 v{t}, {hex(f2u(k1))}, v{t}\nv_exp_f32 v{t}, v{t}\nv_add_f32 v{t}, 1.0, v{t}\nv_rcp_f32 v{t}, v{t}\nv_mul_f32 v{g}, v{g}, v{t}")
        rbf(g)
        a(f"v_mul_f32 v{g}, v{g}, v{u}")
    a(f"v_cvt_pk_bf16_f32 v32, v{F}, v{F+1}\nv_cvt_pk_bf16_f32 v34, v{F+2}, v{F+3}")
    a(f"ds_write_b16 v9, v32 offset:{HIMG}\nds_write_b16_d16_hi v9, v32 offset:{HIMG + HROW}")
    a(f"ds_write_b16 v9, v34 offset:{HIMG + 2 * HROW}\nds_write_b16_d16_hi v9, v34 offset:{HIMG + 3 * HROW}")
    a("s_waitcnt lgkmcnt(0)")
    a.label("L_hend")
    a("s_mov_b64 exec, -1")
    if fb and gfb:
        NIT = (15 - NP) + 1 + 15
        a("s_or_b32 s65, s35, s69\ns_cmp_lg_u32 s65, 0\ns_cbranch_scc1 L_gend")
        a(f"v_lshlrev_b32 v6, 2, v4\nv_lshl_add_u32 v6, v5, 7, v6\nv_mov_b32 v41, v{TG}\nv_mov_b32 v7, 0")
        a(f"s_lshl_b32 s66, s{sH}, {3 if gsc else 7}\ns_add_u32 s66, s66, {GMB}\ns_mov_b32 s67, {GMB}\ns_mov_b32 s{sCNT}, 200\ns_mov_b32 s70, -1")
        a.label("L_g")
        a(f"buffer_load_dword v40, v6, {S(SW)}, s34 offen sc1")
        if gsc:
            a(f"s_waitcnt lgkmcnt(0)\ns_load_dwordx16 s[4:19], s[26:27], {GMB} glc\ns_load_dwordx16 s[40:55], s[26:27], {GMB + 64} glc\ns_waitcnt vmcnt(0)")
        else:
            a("s_mov_b64 exec, 0xffff")
            a(f"buffer_load_dwordx2 v[42:43], v2, {S(SW)}, s67 offen sc1")
            a("s_mov_b64 exec, -1\ns_waitcnt vmcnt(1)")
        a(f"v_cmp_le_u32 vcc, {NIT - gexit}, v40\ns_or_b32 s65, vcc_lo, vcc_hi\ns_and_b32 s65, s65, 0x10001\ns_cbranch_scc1 L_gend")
        for sh in (8, 4, 2, 1): a(f"v_add_u32_dpp v40, v40, v40 row_ror:{sh} {FULL}")
        a("v_add_u32_dpp v40, v40, v40 row_bcast:15 row_mask:0xa bank_mask:0xf\nv_add_u32_dpp v40, v40, v40 row_bcast:31 row_mask:0xc bank_mask:0xf")
        a("v_readlane_b32 s71, v40, 63\nv_mov_b32 v40, s71")
        a("s_mov_b64 exec, 1")
        a(f"buffer_store_dwordx2 v[40:41], v7, {S(SW)}, s66 offen sc1")
        a("s_mov_b64 exec, -1\ns_waitcnt vmcnt(1)")
        a("s_cmp_eq_u32 s70, -1\ns_cbranch_scc1 L_gskip")
        if gavg: a("s_add_u32 s70, s70, s71\ns_lshr_b32 s70, s70, 1")
        if gsc:
            a("s_waitcnt lgkmcnt(0)\ns_mov_b32 s65, 0")
            for k in range(16):
                r = (4 + 2 * k) if k < 8 else (40 + 2 * (k - 8))
                a(f"s_cmp_eq_u32 s{r+1}, s{sTAG}\ns_cselect_b32 s{r}, s{r}, s70\ns_add_u32 s65, s65, s{r}")
            a(f"s_lshl_b32 s70, s70, 4\ns_sub_u32 s65, s65, s70\ns_ashr_i32 s65, s65, {4 + gsh}\ns_add_u32 s65, s65, {goff}\nv_mov_b32 v42, s65")
        else:
          a(f"v_mov_b32 v44, s70\nv_cmp_eq_u32 vcc, v43, v41\nv_cndmask_b32 v42, v44, v42, vcc\nv_sub_u32 v42, v42, v44")
          for sh in (8, 4, 2, 1): a(f"v_add_u32_dpp v42, v42, v42 row_ror:{sh} {FULL}")
          a(f"v_ashrrev_i32 v42, {4 + gsh}, v42")
          if goff: a(f"v_add_u32 v42, {goff}, v42")
        a("s_mov_b64 exec, 15")
        a(f"buffer_store_dword v42, v2, {S(SW)}, s34 offen offset:64")
        a("s_mov_b64 exec, -1")
        a.label("L_gskip")
        a("s_mov_b32 s70, s71")
        if gsleep: a(f"s_sleep {gsleep}")
        a(f"s_sub_u32 s{sCNT}, s{sCNT}, 1\ns_cbranch_scc0 L_g")
        a.label("L_gend")
        if gsc: a("s_waitcnt lgkmcnt(0)")
    stamp(5)
    pad("H")
    dump_stamps(7)
    a.label("L_end")
    a("s_endpgm")
    a.raw('.section .rodata,"a"'); a.raw(".p2align 6"); a.raw(f".amdhsa_kernel {NAME}")
    a.raw("  .amdhsa_next_free_vgpr 256"); a.raw("  .amdhsa_next_free_sgpr 102"); a.raw("  .amdhsa_accum_offset 256")
    a.raw("  .amdhsa_group_segment_fixed_size 0"); a.raw("  .amdhsa_kernarg_size 96"); a.raw("  .amdhsa_user_sgpr_count 2")
    a.raw("  .amdhsa_user_sgpr_kernarg_segment_ptr 1"); a.raw("  .amdhsa_system_sgpr_workgroup_id_x 1"); a.raw(".end_amdhsa_kernel")
    return a.text()

if __name__ == "__main__":
    out = sys.argv[1]
    kw = eval("dict(" + (sys.argv[2] if len(sys.argv) > 2 else "") + ")")
    open(out, "w").write(gen(**kw))
```

```python
import sys, struct, math
sys.path.insert(0, "gen")
from asmlib import Asm

NAME = "parallel_sum__mha_block_cached__geglu_ffn__decode_kernel"
HEADER = open("parallel_sum__mha_block_cached__geglu_ffn__decode.s.ref").read().split("; Override launch")[0]

def f2u(x): return struct.unpack("<I", struct.pack("<f", x))[0]

PMB = 0x8000
GMB = 0xC000
QMB = 0x10000
FMB = QMB + 64 * 4096
MB1 = 0xA0000
MB2 = 0x120000
TSB = 0x400000
WS_USED = TSB + 0x10000
assert FMB + 28 * 8192 <= MB1
PGL = 4112
XN, QL, TAGL, ML, HIMG, AIMG, OP, SC = 0, 3584, 4096, 4128, 4224, 4864, 6144, 10240
HROW, AROW = 144, 272
WL0 = SC + 16384
WL1 = WL0 + 14336
WL2 = WL1 + 16384
LDS_BYTES = WL2 + 8192

FULL = "row_mask:0xf bank_mask:0xf"
IDP = "quad_perm:[0,1,2,3]"

def gen(W=5, NP=5, nt="nt", wnt="nt", stamps=False, warm=True, sleep1=0, sleep2=0, sleepq=30, spin=1 << 16,
        padto=0, padwg=None, padstamp=None, HW=4, noffn=0, noq=0, nowo=0, touch=1, sleepf=60, fdma=1, fst=1, fpoll=1, qst=1, pat=5, Wend=None, nend=0, W0=None, osc='', scr=1, remap=2, D2=2, stag2=4, early1=0, role=3, fast=1, hoist=1, clean=0, fastq=1, fastf=1, nq=5, tlb=0, fb=1, Wup=6, thup=0, gfb=3, gsleep=8, goff=0, gsh=2, gavg=0, gsc=0, gexit=2, L0=6, dL=2, nR=9, nost2=0, nored=0, wos=(-1,-1,-1,-1,-1,-1), r0=8, gain=6, gpoll=1, st0=0, warm2=16, late=1, codekb=13):
    assert not (fast or fastf) or role == 3
    assert early1 != 2 or hoist
    in_helper = [False]
    a = Asm()
    a.raw(HEADER.rstrip("\n"))
    a.raw(f"; @launch grid=(256,1,1) block=(320,1,1) lds={LDS_BYTES}")
    a.raw('.amdgcn_target "amdgcn-amd-amdhsa--gfx950"')
    a.raw(".text"); a.raw(f".globl {NAME}"); a.raw(".p2align 8"); a.raw(f".type {NAME},@function")
    a.raw(f"{NAME}:")
    SK, SV, SW, SA, SB, SC_, SD = 28, 32, 36, 40, 44, 48, 52
    sB, sH, sJ, sIDX, sBH, sTAG, sCNT, sKO, sVO, sWv, sKG, sCG = 56, 57, 58, 59, 60, 61, 62, 63, 64, 72, 73, 79
    def srd(r, ptr, size):
        a(f"s_mov_b32 s{r}, s{ptr}\ns_mov_b32 s{r+1}, s{ptr+1}\ns_mov_b32 s{r+2}, {size}\ns_mov_b32 s{r+3}, 0x20000")
    def S(r): return f"s[{r}:{r+3}]"
    def V4(r): return f"v[{r}:{r+3}]"
    def V2(r): return f"v[{r}:{r+1}]"
    def stamp(k):
        if stamps or padstamp is not None:
            a(f"s_memrealtime s[{80+2*k}:{81+2*k}]")
    def dump_stamps(n):
        if not stamps: return
        a("s_waitcnt lgkmcnt(0)")
        a("s_mov_b64 exec, 1")
        a(f"s_mul_i32 s65, s2, 5\ns_add_u32 s65, s65, s3\ns_mul_i32 s65, s65, 48\ns_add_u32 s65, s65, {TSB}")
        a("v_mov_b32 v1, 0")
        for k in range(n):
            a(f"v_mov_b32 v2, s{80+2*k}")
            a(f"buffer_store_dword v2, v1, {S(SW)}, s65 offen offset:{4*k}")
        a(f"v_mov_b32 v2, s{sCNT}\nbuffer_store_dword v2, v1, {S(SW)}, s65 offen offset:44")
        a("s_waitcnt vmcnt(0)")
    def pad(role):
        if not padto: return
        r, k = padstamp if padstamp is not None else ("S", 0)
        if r != role: return
        if padwg is not None: a(f"s_cmp_lg_u32 s2, {padwg}\ns_cbranch_scc1 L_end")
        a.label(f"L_pad{role}")
        a(f"s_sleep 1\ns_memrealtime s[98:99]\ns_waitcnt lgkmcnt(0)\ns_sub_u32 s98, s98, s{80+2*k}\ns_cmp_lt_u32 s98, {padto}\ns_cbranch_scc1 L_pad{role}")

    a("s_cmp_ge_u32 s2, 256\ns_cbranch_scc1 L_end")
    a("s_load_dwordx16 s[4:19], s[0:1], 0\ns_load_dwordx8 s[20:27], s[0:1], 64")
    stamp(0)
    a("v_lshrrev_b32 v1, 6, v0\nv_and_b32 v0, 63, v0\nv_readfirstlane_b32 s3, v1")
    if role == 1:
        a(f"s_and_b32 s65, s2, 7\ns_lshl_b32 s65, s65, 2\ns_bfe_u32 s{sKG}, s2, 0x20003\ns_or_b32 s{sKG}, s{sKG}, s65\ns_lshr_b32 s{sCG}, s2, 5")
    if role == 2:
        a(f"s_and_b32 s65, s2, 15\ns_lshl_b32 s65, s65, 1\ns_bfe_u32 s{sKG}, s2, 0x10004\ns_or_b32 s{sKG}, s{sKG}, s65\ns_lshr_b32 s{sCG}, s2, 5")
    if pat >= 3 and remap == 3:
        a("s_bfe_u32 s65, s2, 0x20003\ns_xor_b32 s2, s2, s65")
    if pat >= 3 and remap == 2:
        a("s_bfe_u32 s65, s2, 0x20003\ns_and_b32 s66, s2, 7\ns_lshl_b32 s66, s66, 2\ns_and_b32 s2, s2, 0xe0\ns_or_b32 s2, s2, s65\ns_or_b32 s2, s2, s66")
    a(f"s_lshr_b32 s{sB}, s2, 6\ns_lshr_b32 s{sBH}, s2, 2\ns_and_b32 s{sH}, s{sBH}, 15\ns_and_b32 s{sJ}, s2, 3\ns_and_b32 s{sIDX}, s2, 63")
    if role == 3:
        a(f"s_lshl_b32 s{sKG}, s{sH}, 1\ns_and_b32 s65, s{sJ}, 1\ns_or_b32 s{sKG}, s{sKG}, s65\ns_lshl_b32 s{sCG}, s{sB}, 1\ns_lshr_b32 s65, s{sJ}, 1\ns_or_b32 s{sCG}, s{sCG}, s65")
    if role == 0: a(f"s_lshr_b32 s{sKG}, s2, 3\ns_add_u32 s{sCG}, s2, s{sKG}\ns_and_b32 s{sCG}, s{sCG}, 7")
    a("v_and_b32 v4, 15, v0\nv_lshrrev_b32 v5, 4, v0")
    a("s_cmp_eq_u32 s3, 0\ns_cbranch_scc1 L_helper")

    vKO, vVO, vSC, vMAX, vL, vC, vMC, vS = 1, 2, 3, 6, 7, 28, 29, 30
    vJ, vG = 4, 5
    MASK, OACC, BB, QF, DA, TMP, R = 8, 12, 20, 32, 64, 84, 96
    def ring(tile, u): return R + 32 * tile + 4 * u
    a(f"s_sub_u32 s{sWv}, s3, 1")
    kb, wb = {0: ((9, 10), (11, 12)), 1: ((12, 13), (10, 11)), 2: ((12, 13), (14, 15)), 3: ((15, 13), (11, 14)), 4: ((15, 9), (11, 13)), 5: ((15, 13), (11, 14))}[pat]
    sM = 100
    a(f"v_and_b32 v{TMP+1}, 3, v{vJ}\nv_lshlrev_b32 v{TMP+1}, 4, v{TMP+1}")
    a(f"v_lshl_add_u32 v{TMP+1}, v{vG}, 6, v{TMP+1}")
    a(f"v_bfe_u32 v{TMP}, v0, 2, 1\nv_lshl_add_u32 v{vKO}, v{TMP}, {kb[0]}, v{TMP+1}\nv_bfe_u32 v{TMP}, v0, 3, 1\nv_lshl_add_u32 v{vKO}, v{TMP}, {kb[1]}, v{vKO}")
    if pat == 5:
        a(f"s_lshl_b32 s{sKO}, s{sBH}, 21\ns_and_b32 s65, s{sJ}, 1\ns_lshl_b32 s65, s65, 12\ns_add_u32 s{sKO}, s{sKO}, s65\ns_lshr_b32 s65, s{sJ}, 1\ns_lshl_b32 s65, s65, 16\ns_add_u32 s{sKO}, s{sKO}, s65")
    else: a(f"s_lshl_b32 s{sKO}, s2, 19")
    a(f"s_and_b32 s65, s{sWv}, 1\ns_lshl_b32 s65, s65, {wb[0]}\ns_add_u32 s{sKO}, s{sKO}, s65")
    a(f"s_lshr_b32 s65, s{sWv}, 1\ns_lshl_b32 s65, s65, {wb[1]}\ns_add_u32 s{sKO}, s{sKO}, s65")
    if pat in (3, 4):
        if scr:
            a(f"s_mul_i32 s65, s{sBH}, 0x9E3779B1\ns_and_b32 s{sM}, s65, 0x300000\ns_lshr_b32 s{sM}, s{sM}, 3\ns_or_b32 s{sM}, s{sM}, 0x10000")
            a(f"s_lshr_b32 s65, s65, 6\ns_and_b32 s65, s65, 0x70000\ns_or_b32 s{sKO}, s{sKO}, s65")
        else:
            a(f"s_mov_b32 s{sM}, 0x10000")
    a(f"s_mov_b32 s{sVO}, s{sKO}")
    a("s_waitcnt lgkmcnt(0)")
    if st0: stamp(5)
    srd(SK, 6, 1 << 27)
    vm = []
    def issue(kind, reg, u, tagid):
        sr, vo, so = (SK, vKO, sKO) if kind == "K" else (SV, vVO, sVO)
        o = {0: 256 * (u & 1), 1: 256 * (u & 3), 2: 256 * u, 3: 256 * u, 4: 256 * (u & 1) + 512 * (u & 2), 5: 256 * u}[pat]
        off = f" offset:{o}" if o else ""
        a(f"buffer_load_dwordx4 {V4(reg)}, v{vo}, {S(sr)}, s{so} offen{off} {nt}")
        if pat == 0 and u & 1: a(f"s_add_u32 s{so}, s{so}, 8192")
        if pat == 1 and (u & 3) == 3: a(f"s_add_u32 s{so}, s{so}, 16384")
        if pat == 4 and (u & 3) == 3: a(f"s_xor_b32 s{so}, s{so}, 0x4000")
        if pat == 5 and u == 7: a(f"s_add_u32 s{so}, s{so}, 0x20000")
        if pat in (3, 4) and u == 7:
            a(f"s_xor_b32 s{so}, s{so}, 0x1000\ns_bitcmp1_b32 s{so}, 12\ns_cselect_b32 s65, 0, s{sM}\ns_add_u32 s65, s65, s{so}\ns_and_b32 s65, s65, 0x70000\ns_andn2_b32 s{so}, s{so}, 0x70000\ns_or_b32 s{so}, s{so}, s65")
        if pat == 2 and u == 7:
            a(f"s_bitcmp1_b32 s{so}, 11\ns_cselect_b32 s65, {65536 - 4096}, 0\ns_add_u32 s{so}, s{so}, s65\ns_add_u32 s{so}, s{so}, 2048")
        vm.append(tagid)
    def wait_for(tagid):
        if tagid not in vm: return
        n = len(vm) - 1 - vm.index(tagid)
        assert n < 64
        a(f"s_waitcnt vmcnt({n})")
    nload = [0]
    curW = [W]
    adapt = [False]; nlab = [0]
    def throttle_issue(kind, reg, u):
        n = nload[0]
        if adapt[0]:
            nlab[0] += 1
            a(f"s_cbranch_scc1 L_w{nlab[0]}", drain=False)
            wait_for(("s", n - curW[0]))
            a.hist[-1].states = 0
            a.label(f"L_w{nlab[0]}", drain=False)
            wait_for(("s", n - Wup))
        else: wait_for(("s", n - curW[0]))
        issue(kind, reg, u, ("s", n)); nload[0] += 1
    W0 = W0 or W
    curW[0] = W0
    for n in range(W0):
        throttle_issue("K", ring(n // 8, n % 8), n % 8)
    curW[0] = W
    if warm2:
        a(f"s_and_b32 s65, s2, 0xe2\ns_lshl_b32 s65, s65, 2\ns_or_b32 s65, s65, s{sWv}\ns_cbranch_scc1 L_nowarm2", drain=False)
        a("s_getpc_b64 s[66:67]")
        a.label("L_pc", drain=False)
        a("v_lshlrev_b32 v2, 7, v0\nglobal_load_dword v31, v2, s[66:67]\nv_add_u32 v2, 0x2000, v2\nv_min_u32 v2, L_end-L_pc, v2")
        a("global_load_dword v31, v2, s[66:67]")
        a.label("L_nowarm2", drain=False)
    if warm and not warm2:
        a(f"s_cmp_lg_u32 s3, 1\ns_cbranch_scc1 L_nowarm")
        a(f"s_getpc_b64 s[66:67]\nv_lshlrev_b32 v{TMP+2}, 7, v0")
        a(f"global_load_dword v{TMP+3}, v{TMP+2}, s[66:67]")
        a.label("L_nowarm")
    def setup(a, srd):
        a(f"v_lshlrev_b32 v{vVO}, 4, v{vJ}\nv_bfe_u32 v{TMP}, v0, 4, 1\nv_lshl_add_u32 v{vVO}, v{TMP}, {kb[0]}, v{vVO}\nv_bfe_u32 v{TMP}, v0, 5, 1\nv_lshl_add_u32 v{vVO}, v{TMP}, {kb[1]}, v{vVO}")
        srd(SV, 8, 1 << 27); srd(SW, 26, WS_USED); srd(SC_, 22, 3584); srd(SD, 4, 3584)
        srd(SA, 12, 4096 * 896); srd(SB, 20, 1792 * 896)
        for k in range(32): a(f"v_mov_b32 v{QF+k}, 0")
        for k in range(8): a(f"v_mov_b32 v{OACC+k}, 0")
        a(f"v_mov_b32 v{vMAX}, 0xff800000\nv_mov_b32 v{vL}, 0\nv_mov_b32 v{vC}, {hex(f2u(math.log2(math.e) / 16))}")
        a(f"v_and_b32 v{TMP+4}, 1, v{vJ}\nv_lshlrev_b32 v{TMP+4}, 4, v{TMP+4}\nv_mov_b32 v{TMP+5}, 0xffff\nv_lshlrev_b32 v{TMP+4}, v{TMP+4}, v{TMP+5}")
        a(f"v_bfe_u32 v{TMP+5}, v{vJ}, 1, 2")
        for w in range(4):
            a(f"v_cmp_eq_u32 vcc, {w}, v{TMP+5}\nv_cndmask_b32 v{MASK+w}, 0, v{TMP+4}, vcc")
        a(f"s_lshl_b32 s65, s{sWv}, 12\ns_add_u32 s65, s65, {SC}\nv_lshl_add_u32 v{vSC}, v0, 2, s65")
    chunks = []
    def rec(t): chunks.append(t)
    def recsrd(r, ptr, size): rec(f"s_mov_b32 s{r}, s{ptr}\ns_mov_b32 s{r+1}, s{ptr+1}\ns_mov_b32 s{r+2}, {size}\ns_mov_b32 s{r+3}, 0x20000")
    setup(rec, recsrd)
    if not late:
        for t in chunks: a(t)
        chunks = []
    for n in range(W0, 8 * NP):
        if st0 and n == W0: stamp(3)
        throttle_issue("K", ring(n // 8, n % 8), n % 8)
        if st0 and n == W0: stamp(6)
        if st0 and n == W0 + 4: stamp(8)
        if st0 and n == W0 + 9: stamp(4)
        if n >= 16:
            cnt = 0
            while chunks and cnt < 6:
                t = chunks.pop(0); a(t); cnt += t.count("\n") + 1
    assert not chunks
    if st0:
        _st = stamp
        def stamp(k):
            if k in (1, 2, 7) or in_helper[0]: _st(k)
    stamp(1)
    a("s_barrier")
    stamp(2)
    for t in range(4):
        m = 0x000F000F << (4 * t)
        a(f"s_mov_b32 exec_lo, {hex(m)}\ns_mov_b32 exec_hi, {hex(m)}")
        for half in range(2):
            a(f"ds_read_b128 {V4(QF + 4 * (2 * t + half))}, v{TMP+1} offset:{QL + 256 * half}")
    a("s_mov_b64 exec, -1")
    a(f"v_mov_b32 v{TMP}, 0\nds_read_b64 {V2(TMP+2)}, v{TMP} offset:{TAGL}")
    a("s_waitcnt lgkmcnt(0)")
    a(f"v_readfirstlane_b32 s{sTAG}, v{TMP+2}\nv_readfirstlane_b32 s101, v{TMP+3}")

    def consK(reg, u, d):
        c = "0" if u == 0 else V4(d)
        a(f"v_mfma_f32_16x16x32_bf16 {V4(d)}, {V4(reg)}, {V4(QF + 4 * u)}, {c}")
    def extract(ds, off0):
        for k, d in enumerate(ds): a(f"v_mov_b32_dpp v{TMP+k}, v{d} quad_perm:[0,0,0,0] {FULL}")
        for c in range(1, 4):
            for k, d in enumerate(ds): a(f"v_add_f32_dpp v{TMP+k}, v{d+c}, v{TMP+k} quad_perm:[{c},{c},{c},{c}] {FULL}")
        for k, d in enumerate(ds): a(f"v_cvt_pk_bf16_f32 v{TMP+k}, v{TMP+k}, v{TMP+k}")
        for k, d in enumerate(ds): a(f"v_and_b32 v{TMP+k}, 0xffff0000, v{TMP+k}")
        for k, d in enumerate(ds):
            a(f"ds_write_b32 v{vSC}, v{TMP+k} offset:{off0 + 256 * k}")
            a(f"v_max_f32 v{vMAX}, v{vMAX}, v{TMP+k}")
        a(f"v_add_u32 v{vSC}, {256 * len(ds)}, v{vSC}")
    for u in range(8):
        consK(ring(0, u), u, DA)
        throttle_issue("K", ring(0, u), u)
        for T in range(1, NP): consK(ring(T, u), u, DA + 4 * T)
    extract([DA + 4 * T for T in range(NP)], 0)

    T0 = R + 32
    vX, vXO, vOPW, vMLW, vOPR, vZ, vL16, vST2, vTR, vTR2, vTRD, vTRD2, vHA, vAR, vAW, vWO, vWD = range(T0, T0 + 17)
    vML = T0 + 18
    G = T0 + 20
    GR = T0 + 36
    P1 = T0 + 40
    AH = T0 + 56
    AO = T0 + 64
    BW = T0 + 80
    BD = T0 + 96
    Y = T0 + 104
    E = T0 + 108
    def tail_addr():
        a(f"s_lshl_b32 s65, s{sWv}, 10\ns_add_u32 s65, s65, {OP}\nv_lshl_add_u32 v{vOPW}, v0, 4, s65")
        a(f"s_lshl_b32 s65, s{sWv}, 3\ns_add_u32 s65, s65, {ML}\nv_mov_b32 v{vMLW}, s65")
        a(f"s_lshl_b32 s65, s{sWv}, 8\ns_add_u32 s65, s65, {OP}\nv_lshl_add_u32 v{vOPR}, v0, 3, s65")
        a(f"v_mov_b32 v{vZ}, 0\nv_lshlrev_b32 v{vL16}, 4, v0\nv_mov_b32 v{GR+3}, s{sTAG}")
        a(f"s_lshl_b32 s70, s2, 11\ns_lshl_b32 s65, s{sWv}, 9\ns_add_u32 s70, s70, s65\ns_add_u32 s70, s70, {MB1}")
        a(f"s_lshl_b32 s71, s{sWv}, 17\ns_lshr_b32 s65, s{sKG}, 1\ns_lshl_b32 s65, s65, 13\ns_add_u32 s71, s71, s65")
        a(f"s_and_b32 s65, s{sKG}, 1\ns_lshl_b32 s65, s65, 10\ns_add_u32 s71, s71, s65\ns_add_u32 s71, s71, {MB1}\ns_add_u32 s74, s71, 4096")
        a(f"v_lshrrev_b32 v{E}, 3, v0\nv_and_b32 v{E+1}, 7, v0\nv_and_b32 v{E+2}, 2, v{E}\nv_xor_b32 v{E+1}, v{E+1}, v{E+2}\nv_lshlrev_b32 v{E+1}, 4, v{E+1}")
        a(f"v_and_b32 v{E+2}, 3, v{E}\nv_lshlrev_b32 v{E+2}, 3, v{E+2}\nv_lshrrev_b32 v{E+3}, 2, v{E}\nv_add_u32 v{E+2}, v{E+2}, v{E+3}")
        a(f"v_mul_u32_u24 v{vWO}, 896, v{E+2}\nv_mul_u32_u24 v{vWD}, 896, v{E}")
        a(f"s_and_b32 s65, s{sWv}, 1\ns_lshl_b32 s65, s65, 6\nv_xor_b32 v{E+1}, s65, v{E+1}")
        a(f"v_add_u32 v{vWO}, v{vWO}, v{E+1}\nv_add_u32 v{vWD}, v{vWD}, v{E+1}")
        a(f"s_lshr_b32 s66, s{sKG}, 1\ns_lshl_b32 s66, s66, 8\ns_and_b32 s65, s{sKG}, 1\ns_lshl_b32 s65, s65, 6\ns_add_u32 s66, s66, s65")
        a(f"s_lshl_b32 s65, s{sWv}, 1\ns_add_u32 s66, s66, s65\ns_mul_i32 s66, s66, 896\ns_lshl_b32 s65, s{sCG}, 7\ns_add_u32 s66, s66, s65")
        a(f"s_lshl_b32 s67, s{sKG}, 6\ns_lshl_b32 s68, s{sWv}, 3\ns_add_u32 s67, s67, s68\ns_mul_i32 s67, s67, 896\ns_add_u32 s67, s67, s65")
        a(f"s_lshl_b32 s75, s{sWv}, 10")
        a(f"v_lshrrev_b32 v{E}, 2, v{vJ}\nv_bfe_u32 v{E+1}, v{vJ}, 1, 1\ns_lshl_b32 s65, s{sWv}, 1\nv_add_u32 v{E+1}, s65, v{E+1}")
        a(f"v_and_b32 v{E+2}, 2, v{E}\nv_xor_b32 v{E+1}, v{E+1}, v{E+2}")
        a(f"v_and_b32 v{E+3}, 1, v{vJ}\nv_lshlrev_b32 v{E+3}, 3, v{E+3}\nv_lshl_add_u32 v{E+3}, v{E}, 7, v{E+3}")
        a(f"v_and_b32 v{E+2}, 1, v{vG}\nv_lshlrev_b32 v{E+2}, 2, v{E+2}\nv_xor_b32 v{E+4}, v{E+1}, v{E+2}")
        a(f"v_lshl_add_u32 v{vTR}, v{E+4}, 4, v{E+3}\nv_lshl_add_u32 v{vTR}, v{vG}, 10, v{vTR}")
        a(f"v_mul_u32_u24 v{vHA}, {HROW}, v{E}\nv_lshl_add_u32 v{vHA}, v{vG}, 4, v{vHA}")
        a(f"v_mul_u32_u24 v{vAR}, {AROW}, v{E}\nv_lshl_add_u32 v{vAR}, v{vG}, 4, v{vAR}")
        a(f"s_mul_i32 s65, s{sWv}, {AROW}\ns_add_u32 s65, s65, {AIMG}\nv_lshl_add_u32 v{vAW}, v0, 2, s65")
        a(f"v_lshlrev_b32 v{vST2}, 3, v{vJ}\nv_lshl_add_u32 v{vST2}, v{vG}, 12, v{vST2}")
        a(f"s_lshl_b32 s68, s{sCG}, 2\ns_add_u32 s68, s68, s{sWv}\ns_lshl_b32 s68, s68, 14\ns_lshl_b32 s65, s{sKG}, 7\ns_add_u32 s68, s68, s65\ns_add_u32 s68, s68, {MB2}")
        a(f"s_and_b32 s78, s{sKG}, 0xfc\ns_add_u32 s78, s78, s{sWv}\ns_lshl_b32 s69, s78, 4\ns_lshl_b32 s78, s78, 2\ns_and_b32 s65, s{sKG}, 3\ns_add_u32 s78, s78, s65")
        a(f"s_lshl_b32 s78, s78, 12\ns_add_u32 s78, s78, {MB2}\ns_mul_i32 s65, s65, 448\ns_add_u32 s69, s69, s65\ns_lshl_b32 s69, s69, 1")
        a(f"v_and_b32 v{E}, 7, v0\nv_and_b32 v{E+1}, 1, v{vG}\nv_lshlrev_b32 v{vXO}, 2, v{E}\nv_lshl_add_u32 v{vXO}, v{E+1}, 1, v{vXO}")
    tail_addr()
    if tlb:
        a("s_cmp_lg_u32 s3, 1\ns_cbranch_scc1 L_notlb")
        a("s_mov_b64 exec, 1")
        if tlb & 1: a(f"buffer_load_dword v{E+7}, v{vZ}, {S(SV)}, s{sVO} offen {nt}")
        if tlb & 2:
            a(f"buffer_load_dword v{E+7}, v{vZ}, {S(SA)}, s66 offen {nt}")
            a(f"buffer_load_dword v{E+7}, v{vZ}, {S(SB)}, s67 offen {nt}")
        a("s_mov_b64 exec, -1")
        a.label("L_notlb")

    vPG, vPR, vPA = E + 8, E + 9, E + 10
    sPS, sPL, sPT = 12, 13, 14
    if fb:
        a(f"s_add_u32 s65, s{sWv}, s{sJ}\ns_and_b32 s65, s65, 3\ns_lshl_b32 s{sPL}, s{sH}, 2\ns_add_u32 s{sPL}, s{sPL}, s65\ns_lshl_b32 s{sPL}, s{sPL}, 7\ns_add_u32 s{sPL}, s{sPL}, {PMB}")
        a(f"s_cmp_lg_u32 s101, 0\ns_cselect_b32 s{sPL}, 0x40000000, s{sPL}")
        a(f"s_lshl_b32 s65, s{sB}, 2\ns_add_u32 s65, s65, s{sJ}\ns_lshl_b32 s65, s65, 2\ns_add_u32 s{sPS}, s{sPL}, s65")
        a(f"s_lshl_b32 s65, s{sWv}, 2\ns_add_u32 s65, s65, {PGL}\nv_mov_b32 v{vPA+1}, s65")
        a(f"v_mov_b32 v{vPG}, 0\nv_mov_b32 v{vPR}, -1\nv_lshlrev_b32 v{vPA}, 2, v0\ns_mov_b32 s{sPT}, {thup}")
    def progress():
        if not fb: return
        if gfb: a(f"v_readlane_b32 s15, v{vPR}, 16")
        for sh in (8, 4, 2, 1): a(f"v_add_u32_dpp v{vPR}, v{vPR}, v{vPR} row_ror:{sh} {FULL}")
        a(f"v_add_u32 v{vPG}, 1, v{vPG}\nv_readfirstlane_b32 s65, v{vPR}")
        if gfb: a(f"s_add_u32 s65, s65, s15")
        a("s_mov_b64 exec, 1")
        a(f"buffer_store_dword v{vPG}, v{vZ}, {S(SW)}, s{sPS} offen"); vm.append(("ps", nload[0]))
        if gfb >= 2: a(f"ds_write_b32 v{vPA+1}, v{vPG}")
        a(f"s_mov_b64 exec, {'0x1ffff' if gfb else '0xffff'}")
        a(f"buffer_load_dword v{vPR}, v{vPA}, {S(SW)}, s{sPL} offen sc1"); vm.append(("pl", nload[0]))
        a("s_mov_b64 exec, -1")
        a(f"s_add_u32 s{sPT}, s{sPT}, 16\ns_add_u32 s65, s65, 16\ns_cmp_gt_i32 s65, s{sPT}")
        adapt[0] = True
    def iterK(nextkind):
        progress()
        for u in range(8):
            consK(ring(0, u), u, DA)
            throttle_issue(nextkind, ring(0, u), u)
        extract([DA], 0)
    a(f"s_mov_b32 s{sCNT}, {15 - NP}")
    a.label("L_kk")
    iterK("K")
    a(f"s_sub_u32 s{sCNT}, s{sCNT}, 1\ns_cmp_lg_u32 s{sCNT}, 0\ns_cbranch_scc1 L_kk")
    iterK("V")
    stamp(3)
    a(f"v_subrev_u32 v{vSC}, 4096, v{vSC}")
    a(f"ds_read_b32 v{vS}, v{vSC}")
    a(f"v_max_f32_dpp v{vMAX}, v{vMAX}, v{vMAX} row_ror:4 {FULL}")
    a(f"v_max_f32_dpp v{vMAX}, v{vMAX}, v{vMAX} row_ror:8 {FULL}")
    a(f"v_max_f32_dpp v{vMAX}, v{vMAX}, v{vMAX} row_bcast:15 row_mask:0xa bank_mask:0xf")
    a(f"v_max_f32_dpp v{vMAX}, v{vMAX}, v{vMAX} row_bcast:31 row_mask:0xc bank_mask:0xf")
    a(f"v_readlane_b32 s65, v{vMAX}, 63")
    a(f"v_mul_f32 v{vMC}, s65, v{vC}")
    vP = TMP
    def ld1(k): a(f"buffer_load_dwordx4 {V4(P1+4*k)}, v{vL16}, {S(SW)}, s{71 if k < 2 else 74} offen{' offset:2048' if k & 1 else ''} sc1")
    def wo_dma(step):
        if nowo: return
        for c in range(6):
            if wos[c] != step: continue
            if c >= 2:
                a(f"s_add_u32 s65, s66, {(128 * (c & 1) + 32 * ((c - 2) >> 1)) * 896}\ns_add_u32 m0, s75, {WL1 + 4096 * (c - 2)}")
                a(f"buffer_load_dwordx4 v{vWO}, {S(SA)}, s65 offen {wnt} lds"); vm.append(("wo", c))
            else:
                a(f"s_add_u32 s65, s67, {32 * 896 * c}\ns_add_u32 m0, s75, {WL2 + 4096 * c}")
                a(f"buffer_load_dwordx4 v{vWD}, {S(SB)}, s65 offen {wnt} lds"); vm.append(("wd", c))
    def last_extra():
        a(f"s_cmp_eq_u32 s{sCG}, 7\ns_cselect_b32 s66, 0x40000000, s66\ns_cselect_b32 s67, 0x40000000, s67")
        wo_dma(-1)
        a(f"buffer_load_ushort v{vX}, v{vXO}, {S(SD)}, s69 offen"); vm.append("x")
        if touch:
            a(f"buffer_load_ushort v{E+7}, v{vXO}, {S(SC_)}, s69 offen"); vm.append("o")
        a(f"v_add_f32_dpp v{vL}, v{vL}, v{vL} row_ror:4 {FULL}")
        a(f"v_add_f32_dpp v{vL}, v{vL}, v{vL} row_ror:8 {FULL}")
        a(f"v_add_f32_dpp v{vL}, v{vL}, v{vL} row_bcast:15 row_mask:0xa bank_mask:0xf")
        a(f"v_add_f32_dpp v{vL}, v{vL}, v{vL} row_bcast:31 row_mask:0xc bank_mask:0xf")
        a(f"v_mov_b32 v{vML}, v{vMC}\nv_mov_b32 v{vML+1}, v{vL}")
        a("s_mov_b32 exec_lo, 0\ns_mov_b32 exec_hi, 0x80000000")
        a(f"ds_write_b64 v{vMLW}, {V2(vML)}")
        a("s_mov_b64 exec, -1")
        if hoist:
            a("s_waitcnt lgkmcnt(0)\ns_barrier")
            if early1 == 2:
                for k in range(4): ld1(k); vm.append(("p1", k))
            a(f"ds_read_b128 {V4(G)}, v{vZ} offset:{ML}\nds_read_b128 {V4(G+4)}, v{vZ} offset:{ML+16}\ns_waitcnt lgkmcnt(0)")
            weights()
    def weights():
        ms, ls = [G, G+2, G+4, G+6], [G+1, G+3, G+5, G+7]
        a(f"v_max3_f32 v{E+4}, v{ms[0]}, v{ms[1]}, v{ms[2]}\nv_max_f32 v{E+4}, v{E+4}, v{ms[3]}")
        for k in range(4): a(f"v_sub_f32 v{ms[k]}, v{ms[k]}, v{E+4}")
        for k in range(4): a(f"v_exp_f32 v{ms[k]}, v{ms[k]}")
        a(f"v_mul_f32 v{E+5}, v{ms[0]}, v{ls[0]}")
        for k in range(1, 4): a(f"v_fmac_f32 v{E+5}, v{ms[k]}, v{ls[k]}")
        a(f"v_rcp_f32 v{E+6}, v{E+5}\nv_log_f32 v{E+5}, v{E+5}")
        for k in range(4): a(f"v_mul_f32 v{ms[k]}, v{ms[k]}, v{E+6}")
        a(f"v_add_f32 v{GR+2}, v{E+4}, v{E+5}")
    def iterV(last):
        a("s_waitcnt lgkmcnt(0)")
        a(f"v_fma_f32 v{vP}, v{vS}, v{vC}, -v{vMC}")
        a(f"v_exp_f32 v{vP}, v{vP}")
        if not last:
            a(f"v_add_u32 v{vSC}, 256, v{vSC}\nds_read_b32 v{vS}, v{vSC}")
        a(f"v_add_f32 v{vL}, v{vL}, v{vP}")
        a(f"v_cvt_pk_bf16_f32 v{vP}, v{vP}, v{vP}")
        if last: last_extra()
        else: progress()
        base = nload[0] - 8
        for u in range(8):
            t, half = u >> 1, u & 1
            b = BB + 4 * (t & 1)
            if half == 0:
                for w in range(4): a(f"v_and_b32_dpp v{b+w}, v{vP}, v{MASK+w} row_newbcast:{4*t} {FULL}")
            if last: wait_for(("s", base + u))
            a(f"v_mfma_f32_16x16x32_bf16 {V4(OACC + 4 * half)}, {V4(ring(0, u))}, {V4(b)}, {V4(OACC + 4 * half)}")
            if not last: throttle_issue("V", ring(0, u), u)
            elif u < 7: wo_dma(u)
    a(f"s_mov_b32 s{sCNT}, {15 - nend}")
    a.label("L_vv")
    iterV(False)
    a(f"s_sub_u32 s{sCNT}, s{sCNT}, 1\ns_cmp_lg_u32 s{sCNT}, 0\ns_cbranch_scc1 L_vv")
    if nend:
        curW[0] = Wend
        a(f"s_mov_b32 s{sCNT}, {nend}")
        a.label("L_vv2")
        iterV(False)
        a(f"s_sub_u32 s{sCNT}, s{sCNT}, 1\ns_cmp_lg_u32 s{sCNT}, 0\ns_cbranch_scc1 L_vv2")
    iterV(True)
    stamp(4)
    for r in range(4): a(f"v_mov_b32_dpp v{OACC+r}, v{OACC+4+r} {IDP} row_mask:0xf bank_mask:0xc")
    a(f"ds_write_b128 v{vOPW}, {V4(OACC)}")
    wo_dma(7)
    a("s_waitcnt lgkmcnt(0)")
    a("s_barrier")
    a("s_mov_b32 exec_hi, 0")
    if not hoist: a(f"ds_read_b128 {V4(G)}, v{vZ} offset:{ML}\nds_read_b128 {V4(G+4)}, v{vZ} offset:{ML+16}")
    for w in range(4): a(f"ds_read_b64 {V2(G+8+2*w)}, v{vOPR} offset:{1024*w}")
    if not hoist:
        a("s_waitcnt lgkmcnt(4)")
        weights()
    ms = [G, G+2, G+4, G+6]
    a("s_cmp_lg_u32 s101, 0")
    a("s_waitcnt lgkmcnt(3)")
    a(f"v_pk_mul_f32 {V2(GR)}, {V2(G+8)}, {V2(ms[0])} op_sel_hi:[1,0]")
    for k in range(1, 4):
        a(f"s_waitcnt lgkmcnt({3-k})")
        a(f"v_pk_fma_f32 {V2(GR)}, {V2(G+8+2*k)}, {V2(ms[k])}, {V2(GR)} op_sel_hi:[1,0,1]")
    if fast:
        a("s_cbranch_scc1 L_st1far", drain=False)
        a(f"buffer_store_dwordx4 {V4(GR)}, v{vL16}, {S(SW)}, s70 offen")
        a("s_branch L_st1done", drain=False)
        a.label("L_st1far", drain=False)
    a(f"buffer_store_dwordx4 {V4(GR)}, v{vL16}, {S(SW)}, s70 offen sc1")
    if fast: a.label("L_st1done", drain=False)
    def st1_global():
        a("s_mov_b32 exec_hi, 0")
        a(f"buffer_store_dwordx4 {V4(GR)}, v{vL16}, {S(SW)}, s70 offen sc1")
        a("s_mov_b32 exec_hi, -1")
    a("s_mov_b64 exec, -1")
    stamp(8)
    a(f"s_mov_b32 s{sCNT}, {spin}")
    a(f"s_cmp_eq_u32 s{sCG}, 7\ns_cbranch_scc1 L_reduce", drain=False)
    if not early1:
        for k in range(4): ld1(k)
    a(f"ds_read_b128 {V4(AH)}, v{vHA} offset:{HIMG}\nds_read_b128 {V4(AH+4)}, v{vHA} offset:{HIMG+64}")
    if early1: a("s_waitcnt vmcnt(1)\ns_branch L_p1c", drain=False)
    a.label("L_p1", drain=False)
    a("s_waitcnt vmcnt(0)")
    a.label("L_p1c", drain=False)
    MK = [4, 6, 8, 10]
    for k in range(4): a(f"v_cmp_ne_u32 s[{MK[k]}:{MK[k]+1}], s{sTAG}, v{P1+4*k+3}")
    a(f"s_or_b64 s[76:77], s[4:5], s[6:7]\ns_or_b64 vcc, s[8:9], s[10:11]\ns_or_b64 s[76:77], s[76:77], vcc")
    a("s_cbranch_scc0 L_p1ok", drain=False)
    if sleep1: a(f"s_sleep {sleep1}")
    for k in range(4):
        a(f"s_cmp_eq_u64 s[{MK[k]}:{MK[k]+1}], 0\ns_cbranch_scc1 L_p1s{k}", drain=False)
        ld1(k)
        a.label(f"L_p1s{k}", drain=False)
    a(f"s_sub_u32 s{sCNT}, s{sCNT}, 1\ns_cbranch_scc0 L_p1", drain=False)
    a.label("L_p1ok", drain=False)
    stamp(5)
    lam = [P1+2, P1+6, P1+10, P1+14]
    a(f"v_max3_f32 v{E+4}, v{lam[0]}, v{lam[1]}, v{lam[2]}\nv_max_f32 v{E+4}, v{E+4}, v{lam[3]}")
    for k in range(4): a(f"v_sub_f32 v{lam[k]}, v{lam[k]}, v{E+4}")
    for k in range(4): a(f"v_exp_f32 v{lam[k]}, v{lam[k]}")
    a(f"v_add_f32 v{E+5}, v{lam[0]}, v{lam[1]}\nv_pk_mul_f32 {V2(G)}, {V2(P1)}, {V2(lam[0])} op_sel_hi:[1,0]\nv_add_f32 v{E+6}, v{lam[2]}, v{lam[3]}")
    a(f"v_pk_fma_f32 {V2(G)}, {V2(P1+4)}, {V2(lam[1])}, {V2(G)} op_sel_hi:[1,0,1]\nv_add_f32 v{E+6}, v{E+5}, v{E+6}")
    a(f"v_pk_fma_f32 {V2(G)}, {V2(P1+8)}, {V2(lam[2])}, {V2(G)} op_sel_hi:[1,0,1]\nv_rcp_f32 v{E+6}, v{E+6}")
    a(f"v_pk_fma_f32 {V2(G)}, {V2(P1+12)}, {V2(lam[3])}, {V2(G)} op_sel_hi:[1,0,1]")
    a(f"v_pk_mul_f32 {V2(G)}, {V2(G)}, {V2(E+6)} op_sel_hi:[1,0]")
    a(f"v_cvt_pk_bf16_f32 v{G}, v{G}, v{G+1}")
    a(f"ds_write_b32 v{vAW}, v{G}")
    a("s_waitcnt lgkmcnt(0)")
    a("s_barrier")
    a(f"ds_read_b64_tr_b16 {V2(BD)}, v{vTR} offset:{WL2}\nds_read_b64_tr_b16 {V2(BD+2)}, v{vTR} offset:{WL2+512}")
    a(f"ds_read_b64_tr_b16 {V2(BD+4)}, v{vTR} offset:{WL2+4096}\nds_read_b64_tr_b16 {V2(BD+6)}, v{vTR} offset:{WL2+4096+512}")
    for k in range(4):
        a(f"ds_read_b128 {V4(AO+4*k)}, v{vAR} offset:{AIMG+64*k}")
        a(f"ds_read_b64_tr_b16 {V2(BW+4*k)}, v{vTR} offset:{WL1+4096*k}\nds_read_b64_tr_b16 {V2(BW+4*k+2)}, v{vTR} offset:{WL1+4096*k+512}")
    a("s_waitcnt lgkmcnt(12)")
    a(f"v_mfma_f32_16x16x32_bf16 {V4(Y)}, {V4(AH)}, {V4(BD)}, 0")
    a(f"v_mfma_f32_16x16x32_bf16 {V4(Y)}, {V4(AH+4)}, {V4(BD+4)}, {V4(Y)}")
    for k in range(4):
        a(f"s_waitcnt lgkmcnt({9-3*k})")
        a(f"v_mfma_f32_16x16x32_bf16 {V4(Y)}, {V4(AO+4*k)}, {V4(BW+4*k)}, {V4(Y)}")
    a(f"v_mov_b32 v{Y+1}, v{GR+3}")
    if not nost2: a(f"buffer_store_dwordx2 {V2(Y)}, v{vST2}, {S(SW)}, s68 offen sc1")
    if fast and clean: st1_global()
    a("s_branch L_sdone")
    a.label("L_reduce")
    if fast and clean:
        a("s_sleep 12")
        st1_global()
    a(f"s_cmp_ge_u32 s{sKG}, 28\ns_cbranch_scc1 L_sdone")
    if nored: a("s_branch L_sdone")
    SETS = [R + 16 * d for d in range(2)] + [QF, QF + 16]
    def ld2(d):
        for k in range(4): a(f"buffer_load_dwordx4 {V4(SETS[d]+4*k)}, v{vL16}, {S(SW)}, s78 offen offset:{1024*k} sc1")
    a(f"s_waitcnt vmcnt(0)\nv_lshlrev_b32 v{vX}, 16, v{vX}")
    for d in range(D2 - 1):
        ld2(d)
        if stag2: a(f"s_sleep {stag2}")
    a.label("L_p2")
    for d in range(D2):
        ld2((d + D2 - 1) % D2)
        a(f"s_waitcnt vmcnt({4 * (D2 - 1)})")
        q = SETS[d]
        a(f"v_xor_b32 v{E}, v{q+1}, v{GR+3}\nv_xor_b32 v{E+1}, v{q+3}, v{GR+3}")
        for k in range(1, 4): a(f"v_bitop3_b32 v{E}, v{q+4*k+1}, v{GR+3}, v{E} bitop3:0xbe\nv_bitop3_b32 v{E+1}, v{q+4*k+3}, v{GR+3}, v{E+1} bitop3:0xbe")
        a(f"v_or_b32 v{E}, v{E}, v{E+1}\nv_add_f32 v{P1}, v{q}, v{q+4}\nv_add_f32 v{P1+2}, v{q+2}, v{q+6}\nv_cmp_ne_u32 vcc, 0, v{E}")
        a(f"v_add_f32 v{P1+8}, v{q+8}, v{q+12}\nv_add_f32 v{P1+10}, v{q+10}, v{q+14}")
        a("s_cbranch_vccz L_p2ok", drain=False)
    a(f"s_sub_u32 s{sCNT}, s{sCNT}, 1\ns_cbranch_scc0 L_p2", drain=False)
    a.label("L_p2ok", drain=False)
    stamp(6)
    a(f"v_add_f32 v{P1}, v{P1}, v{P1+8}\nv_add_f32 v{P1+2}, v{P1+2}, v{P1+10}")
    a(f"v_permlane16_swap_b32 v{P1}, v{P1+2}")
    a(f"v_add_f32 v{P1}, v{P1}, v{P1+2}")
    a(f"v_add_f32_dpp v{P1}, v{P1}, v{P1} row_ror:8 {FULL}")
    a(f"v_mov_b32 v{P1+2}, v{P1}")
    a(f"v_permlane32_swap_b32 v{P1}, v{P1+2}")
    a(f"v_add_f32 v{P1}, v{P1}, v{P1+2}\nv_add_f32 v{P1}, v{P1}, v{vX}")
    a(f"v_cvt_pk_bf16_f32 v{P1}, v{P1}, v{P1}")
    a(f"s_mov_b32 exec_hi, 0\ns_mov_b32 exec_lo, 0x00ff00ff")
    a(f"buffer_store_short v{P1}, v{vXO}, {S(SC_)}, s69 offen {osc}")
    a(f"s_or_b32 s65, s{sKG}, s{sWv}\ns_cmp_lg_u32 s65, 0\ns_cbranch_scc1 L_sdone")
    a("s_mov_b64 exec, 1")
    a(f"buffer_store_dword v{GR+3}, v{vZ}, {S(SW)}, 0 offen {osc}")
    a.label("L_sdone")
    stamp(7)
    pad("S")
    dump_stamps(9)
    a("s_endpgm")

    a.label("L_helper")
    in_helper[0] = True
    X, F, AF, AF2, BF, D, TG = 32, 64, 96, 112, 128, 184, 200
    a("s_setprio 3")
    a(f"v_mul_u32_u24 v6, 896, v5\nv_lshl_add_u32 v6, v4, 6, v6\nv_mov_b32 v7, 0x40000000\nv_cmp_gt_u32 s[74:75], 14, v4")
    a(f"v_cndmask_b32 v7, v7, v6, s[74:75]")
    a(f"v_lshrrev_b32 v8, 3, v0\nv_and_b32 v9, 7, v0\nv_lshlrev_b32 v9, 4, v9\nv_lshl_add_u32 v10, v8, 13, v9")
    a(f"v_mul_u32_u24 v11, 3584, v8\nv_add_u32 v11, v11, v9")
    a(f"s_mul_i32 s65, s{sB}, {112 * 8192}\ns_lshl_b32 s66, s{sIDX}, 7\ns_add_u32 s65, s65, s66")
    a("s_waitcnt lgkmcnt(0)")
    a(f"s_load_dword s{sTAG}, s[26:27], 0")
    srd(SA, 4, 3584)
    for u in range(4): a(f"buffer_load_dwordx4 {V4(X+4*u)}, v7, {S(SA)}, 0 offen offset:{16*u}")
    srd(SB, 10, 448 * 8192)
    def dma(sr, voff, so, stride, lds0, win=None):
        for k in range(14):
            if win and k >= win: a(f"s_waitcnt vmcnt({win-1})")
            a(f"s_mov_b32 m0, {lds0 + 1024 * k}")
            a(f"buffer_load_dwordx4 v{voff}, {S(sr)}, s{so} offen {wnt} lds")
            if k < 13: a(f"s_add_u32 s{so}, s{so}, {8 * stride}")
    if not noq: dma(SB, 10, 65, 8192, WL0)
    srd(SW, 26, WS_USED)
    nini = 0
    if fb:
        a(f"s_lshl_b32 s34, s{sH}, 9\ns_add_u32 s34, s34, {PMB}\ns_lshl_b32 s35, s{sB}, 2\ns_add_u32 s35, s35, s{sJ}\ns_lshl_b32 s68, s35, 2\ns_add_u32 s68, s68, s34")
        a(f"v_lshlrev_b32 v2, 7, v0\nv_mov_b32 v3, 0\ns_mov_b64 exec, 15")
        a(f"buffer_store_dword v3, v2, {S(SW)}, s68 offen"); nini += 1
        if gfb:
            a(f"s_cmp_eq_u32 s35, 0\ns_cselect_b32 s68, s34, 0x40000000")
            a(f"buffer_store_dword v3, v2, {S(SW)}, s68 offen offset:64"); nini += 1
        a("s_mov_b64 exec, -1")
    a(f"v_and_b32 v14, 3, v4\nv_lshrrev_b32 v15, 2, v4\ns_mul_i32 s65, s{sB}, 224")
    a(f"v_mul_u32_u24 v12, 896, v15\nv_add_u32 v12, s65, v12\nv_lshl_add_u32 v28, v5, 3, v12\nv_lshl_add_u32 v12, v5, 4, v12")
    a(f"s_lshr_b32 s65, s{sCG}, 1\ns_mul_i32 s65, s65, 224")
    a(f"v_mul_u32_u24 v30, 896, v14\nv_add_u32 v30, s65, v30\nv_lshl_add_u32 v31, v5, 3, v30\nv_lshl_add_u32 v30, v5, 4, v30")
    a(f"v_lshl_add_u32 v8, v5, 2, v14\nv_lshlrev_b32 v8, 4, v8\nv_lshl_add_u32 v8, v15, 16, v8")
    a(f"v_lshlrev_b32 v9, 5, v14\nv_lshl_add_u32 v9, v15, 3, v9\nv_lshl_add_u32 v9, v5, 7, v9")
    for t in range(1, 4): a(f"v_cmp_eq_u32 s[{26+2*t}:{27+2*t}], {t}, v14")
    a(f"v_lshlrev_b32 v15, 7, v15\nv_lshl_add_u32 v15, v14, 3, v15")
    a(f"v_lshl_add_u32 v13, v5, 10, v15\nv_lshl_add_u32 v29, v5, 9, v15")
    a(f"s_waitcnt vmcnt(14)" if not noq else "s_waitcnt vmcnt(0)")
    stamp(1)
    for k in range(16): a(f"v_lshlrev_b32 v{F+2*k}, 16, v{X+k}\nv_and_b32 v{F+2*k+1}, 0xffff0000, v{X+k}")
    a(f"v_pk_add_f32 v[14:15], {V2(F)}, {V2(F+2)}\nv_pk_add_f32 v[16:17], {V2(F+4)}, {V2(F+6)}")
    for k in range(4, 16, 2):
        a(f"v_pk_add_f32 v[14:15], v[14:15], {V2(F+2*k)}\nv_pk_add_f32 v[16:17], v[16:17], {V2(F+2*k+2)}")
    a("v_pk_add_f32 v[14:15], v[14:15], v[16:17]\nv_add_f32 v14, v14, v15")
    def rowsum(r):
        for sh in (8, 4, 2, 1): a(f"v_add_f32_dpp v{r}, v{r}, v{r} row_ror:{sh} {FULL}")
    rowsum(14)
    a(f"v_mul_f32 v18, {hex(f2u(-1.0 / 448))}, v14\nv_mov_b32 v19, v18")
    a("v_mov_b32 v14, 0\nv_mov_b32 v15, 0\nv_mov_b32 v16, 0\nv_mov_b32 v17, 0")
    for k in range(0, 16, 2):
        a(f"v_pk_add_f32 v[20:21], {V2(F+2*k)}, v[18:19]\nv_pk_add_f32 v[22:23], {V2(F+2*k+2)}, v[18:19]")
        a(f"v_pk_fma_f32 v[14:15], v[20:21], v[20:21], v[14:15]\nv_pk_fma_f32 v[16:17], v[22:23], v[22:23], v[16:17]")
    a("v_pk_add_f32 v[14:15], v[14:15], v[16:17]\nv_add_f32 v14, v14, v15\nv_cndmask_b32 v14, 0, v14, s[74:75]")
    rowsum(14)
    def rbf(r): a(f"v_cvt_pk_bf16_f32 v{r}, v{r}, v{r}\nv_and_b32 v{r}, 0xffff0000, v{r}")
    a(f"v_mul_f32 v14, {hex(f2u(1.0 / 448))}, v14"); rbf(14)
    a(f"v_add_f32 v14, {hex(f2u(1e-5))}, v14"); rbf(14)
    a("v_sqrt_f32 v14, v14"); rbf(14)
    a("v_rcp_f32 v16, v14\nv_mov_b32 v15, v14"); rbf(18)
    a("v_mov_b32 v17, v16\nv_mov_b32 v19, v18")
    for k in range(16):
        a(f"v_pk_add_f32 {V2(F+2*k)}, {V2(F+2*k)}, v[18:19]")
    for k in range(16):
        a(f"v_cvt_pk_bf16_f32 v{X+k}, v{F+2*k}, v{F+2*k+1}")
    for k in range(16): a(f"v_lshlrev_b32 v{F+2*k}, 16, v{X+k}\nv_and_b32 v{F+2*k+1}, 0xffff0000, v{X+k}")
    for k in range(16):
        t = 20 + 2 * (k & 3)
        a(f"v_pk_mul_f32 {V2(t)}, {V2(F+2*k)}, v[16:17]")
        a(f"v_pk_fma_f32 {V2(F+2*k)}, {V2(t)}, v[14:15], {V2(F+2*k)} neg_lo:[1,0,0] neg_hi:[1,0,0]")
        a(f"v_pk_fma_f32 {V2(t)}, {V2(F+2*k)}, v[16:17], {V2(t)}")
        a(f"v_cvt_pk_bf16_f32 v{X+k}, v{t}, v{t+1}")
    a("s_mov_b64 exec, s[74:75]")
    for u in range(4): a(f"ds_write_b128 v6, {V4(X+4*u)} offset:{XN + 16*u}")
    a("s_mov_b64 exec, -1")
    a("s_waitcnt lgkmcnt(0)")
    a(f"s_mul_i32 s{sTAG}, s{sTAG}, 0x9E3779B1\ns_add_u32 s{sTAG}, s{sTAG}, 0x7F4A7C15")
    for k in range(3): a(f"ds_read_b128 {V4(AF+4*k)}, v12 offset:{XN + 64*k}")
    a(f"ds_read_b64 {V2(AF+12)}, v28 offset:{XN + 192}")
    a(f"v_mov_b32 v{TG}, s{sTAG}\nv_lshrrev_b32 v{TG+1}, 8, v{TG}\nv_lshrrev_b32 v{TG+2}, 16, v{TG}\nv_lshrrev_b32 v{TG+3}, 24, v{TG}\ns_movk_i32 s78, 0xff")
    a(f"v_lshlrev_b32 v10, 4, v0")
    a(f"s_lshl_b32 s66, s{sH}, 12\ns_lshl_b32 s67, s{sB}, 10\ns_add_u32 s66, s66, s67\ns_lshl_b32 s67, s{sJ}, 8\ns_add_u32 s66, s66, s67\ns_add_u32 s66, s66, {QMB}")
    a(f"s_lshl_b32 s67, s{sBH}, 12\ns_add_u32 s67, s67, {QMB}")
    a("s_waitcnt vmcnt(0)")
    stamp(2)
    a(f"s_getreg_b32 s69, hwreg(HW_REG_XCC_ID, 0, 4)\nv_xor_b32 v{TG+4}, s69, v{TG+3}")
    def piece(af, transposed):
        for t in range(4):
            for k in range(3):
                o = WL0 + 4096 * k + 32 * t
                a(f"ds_read_b64_tr_b16 {V2(BF+14*t+4*k)}, v13 offset:{o}\nds_read_b64_tr_b16 {V2(BF+14*t+4*k+2)}, v13 offset:{o + 512}")
            a(f"ds_read_b64_tr_b16 {V2(BF+14*t+12)}, v29 offset:{WL0 + 12288 + 32 * t}")
        a("s_waitcnt lgkmcnt(0)")
        for k in range(3):
            for t in range(4):
                x, w = V4(af+4*k), V4(BF+14*t+4*k)
                a(f"v_mfma_f32_16x16x32_bf16 {V4(D+4*t)}, {w if transposed else x}, {x if transposed else w}, {'0' if k == 0 else V4(D+4*t)}")
        for t in range(4):
            x, w = V2(af+12), V2(BF+14*t+12)
            a(f"v_mfma_f32_16x16x16_bf16 {V4(D+4*t)}, {w if transposed else x}, {x if transposed else w}, {V4(D+4*t)}")
        for t in range(1, 4):
            for r in range(4):
                if transposed: a(f"v_cndmask_b32 v{D+r}, v{D+r}, v{D+4*t+r}, s[{26+2*t}:{27+2*t}]")
                else: a(f"v_mov_b32_dpp v{D+r}, v{D+4*t+r} {IDP} row_mask:{hex(1 << t)} bank_mask:0xf")
        for r in range(4): a(f"v_add_u32 v{D+r}, 0x80, v{D+r}")
        for r in range(4): a(f"v_bfi_b32 v{20+r}, s78, v{TG + r + (1 if transposed and r == 3 else 0)}, v{D+r}")
    piece(AF, True)
    if noq or not qst: a("s_branch L_pqok")
    a(f"buffer_store_dwordx4 v[20:23], v8, {S(SW)}, s66 offen{'' if fastq else ' sc1'}")
    stamp(3)
    for k in range(3): a(f"ds_read_b128 {V4(AF2+4*k)}, v30 offset:{XN + 64*k}")
    a(f"ds_read_b64 {V2(AF2+12)}, v31 offset:{XN + 192}")
    a(f"v_mov_b32 v16, 0\nv_mov_b32 v17, 0\nv_mov_b32 v18, 0\nv_mov_b32 v19, 0")
    a(f"s_mov_b32 exec_hi, 0xff\nds_write_b128 v10, v[16:19] offset:{HIMG}\ns_mov_b64 exec, -1")
    a(f"ds_write_b128 v16, v[16:19] offset:{PGL}")
    PQ = F
    def qload(k): a(f"buffer_load_dwordx4 {V4(PQ+4*k)}, v10, {S(SW)}, s67 offen offset:{1024 * k} sc1")
    def chk4(dst, src):
        a(f"v_xor_b32 v{dst}, v{src}, v{TG}")
        for t in range(1, 4): a(f"v_bitop3_b32 v{dst}, v{src+t}, v{TG+t}, v{dst} bitop3:0xbe")
        a(f"v_and_b32 v{dst}, s78, v{dst}")
    if sleepq: a(f"s_sleep {sleepq}")
    for k in range(4): qload(k)
    a(f"s_mov_b32 s{sCNT}, {spin}")
    a.label("L_pq")
    a("s_waitcnt vmcnt(0)")
    for k in range(4):
        a(f"v_xor_b32 v{X+4+k}, v{PQ+4*k+3}, v{TG+4}\nv_and_b32 v{X+k}, 0xf0, v{X+4+k}")
        for t in range(3): a(f"v_bitop3_b32 v{X+k}, v{PQ+4*k+t}, v{TG+t}, v{X+k} bitop3:0xbe")
        a(f"v_and_b32 v{X+k}, s78, v{X+k}")
    a(f"v_or3_b32 v24, v{X}, v{X+1}, v{X+2}\nv_or_b32 v24, v24, v{X+3}")
    a("v_cmp_ne_u32 vcc, 0, v24\ns_cbranch_vccz L_pqok", drain=False)
    if fastq:
        a(f"s_cmp_lg_u32 s{sCNT}, {spin - nq}\ns_cbranch_scc1 L_pqg", drain=False)
        a(f"buffer_store_dwordx4 v[20:23], v8, {S(SW)}, s66 offen sc1")
        a.label("L_pqg", drain=False)
    a(f"s_sleep 2")
    for k in range(4):
        a(f"v_cmp_ne_u32 vcc, 0, v{X+k}\ns_cbranch_vccz L_pqs{k}", drain=False)
        qload(k)
        a.label(f"L_pqs{k}", drain=False)
    a(f"s_sub_u32 s{sCNT}, s{sCNT}, 1\ns_cmp_lg_u32 s{sCNT}, 0\ns_cbranch_scc1 L_pq", drain=False)
    a.label("L_pqok", drain=False)
    for k in range(16): a(f"v_and_b32 v{PQ+k}, 0xffffff00, v{PQ+k}")
    for e in (0, 2):
        a(f"v_pk_add_f32 {V2(PQ+e)}, {V2(PQ+e)}, {V2(PQ+4+e)}\nv_pk_add_f32 {V2(PQ+8+e)}, {V2(PQ+8+e)}, {V2(PQ+12+e)}")
    for e in (0, 2): a(f"v_pk_add_f32 {V2(PQ+e)}, {V2(PQ+e)}, {V2(PQ+8+e)}")
    a(f"v_cvt_pk_bf16_f32 v24, v{PQ}, v{PQ+1}\nv_cvt_pk_bf16_f32 v25, v{PQ+2}, v{PQ+3}\nv_mov_b32 v17, 0")
    a(f"v_or3_b32 v26, v{X+4}, v{X+5}, v{X+6}\nv_or_b32 v26, v26, v{X+7}\nv_and_b32 v26, 15, v26\nv_cmp_ne_u32 vcc, 0, v26")
    a(f"s_or_b32 s69, vcc_lo, vcc_hi\nv_mov_b32 v26, v{TG}\nv_mov_b32 v27, s69")
    a(f"ds_write_b64 v9, v[24:25] offset:{QL}\nds_write_b64 v17, v[26:27] offset:{TAGL}")
    if fastq:
        a("s_cmp_eq_u32 s69, 0\ns_cbranch_scc1 L_qnear")
        a(f"buffer_store_dwordx4 v[20:23], v8, {S(SW)}, s66 offen sc1")
        a.label("L_qnear")
    a("s_waitcnt lgkmcnt(0)")
    stamp(4)
    if stamps: a(f"s_mov_b32 s92, s{sCNT}")
    a("s_barrier")
    a("s_setprio 0")
    if noffn: a("s_branch L_hend")
    a(f"s_cmp_ge_u32 s{sKG}, 28\ns_cbranch_scc1 L_hend")
    a(f"s_bitcmp1_b32 s{sCG}, 0\ns_cselect_b32 s{SC_}, s18, s16\ns_cselect_b32 s{SC_+1}, s19, s17\ns_mov_b32 s{SC_+2}, {448 * 3584}\ns_mov_b32 s{SC_+3}, 0x20000")
    a(f"s_lshr_b32 s66, s{sCG}, 1\ns_mul_i32 s65, s66, {112 * 3584}\ns_lshl_b32 s67, s{sKG}, 7\ns_add_u32 s65, s65, s67")
    if fdma: dma(SC_, 11, 65, 3584, WL0, win=HW)
    a(f"s_lshl_b32 s67, s{sKG}, 13\ns_add_u32 s67, s67, {FMB}\ns_lshl_b32 s66, s{sCG}, 10\ns_add_u32 s66, s66, s67\ns_add_u32 s68, s67, 4096")
    a("s_waitcnt vmcnt(0)")
    piece(AF2, False)
    if fst and fastf:
        a("s_cmp_lg_u32 s69, 0\ns_cbranch_scc1 L_ffar")
        a(f"buffer_store_dwordx4 v[20:23], v10, {S(SW)}, s66 offen\ns_branch L_fdone")
        a.label("L_ffar")
    if fst: a(f"buffer_store_dwordx4 v[20:23], v10, {S(SW)}, s66 offen sc1")
    if fst and fastf: a.label("L_fdone")
    if not fpoll: a("s_branch L_hend")
    a(f"s_cmp_eq_u32 s{sCG}, 7\ns_cbranch_scc1 L_hend")
    def fload(k): a(f"buffer_load_dwordx4 {V4(F+4*k)}, v10, {S(SW)}, s{67 + (k >> 2)} offen offset:{1024 * (k & 3)} sc1")
    a(f"s_sleep {sleepf}")
    for k in range(8): fload(k)
    a(f"s_mov_b32 s{sCNT}, {spin}\nv_lshlrev_b32 v9, 1, v0")
    a.label("L_pf")
    a("s_waitcnt vmcnt(0)")
    for k in range(8): chk4(X + k, F + 4 * k)
    a(f"v_or3_b32 v24, v{X}, v{X+1}, v{X+2}\nv_or3_b32 v24, v24, v{X+3}, v{X+4}\nv_or3_b32 v24, v24, v{X+5}, v{X+6}\nv_or_b32 v24, v24, v{X+7}")
    a("v_cmp_ne_u32 vcc, 0, v24\ns_cbranch_vccz L_pfok", drain=False)
    a(f"s_sleep 16")
    for k in range(8):
        a(f"v_cmp_ne_u32 vcc, 0, v{X+k}\ns_cbranch_vccz L_pfs{k}", drain=False)
        fload(k)
        a.label(f"L_pfs{k}", drain=False)
    a(f"s_sub_u32 s{sCNT}, s{sCNT}, 1\ns_cbranch_scc0 L_pf", drain=False)
    a.label("L_pfok", drain=False)
    for k in range(32): a(f"v_and_b32 v{F+k}, 0xffffff00, v{F+k}")
    for e in range(0, 8, 2):
        a(f"v_pk_add_f32 {V2(F+e)}, {V2(F+e)}, {V2(F+8+e)}\nv_pk_add_f32 {V2(F+16+e)}, {V2(F+16+e)}, {V2(F+24+e)}")
    for e in range(0, 8, 2): a(f"v_pk_add_f32 {V2(F+e)}, {V2(F+e)}, {V2(F+16+e)}")
    for r in range(8): rbf(F + r)
    k1 = -2.0 * math.sqrt(2.0 / math.pi) * math.log2(math.e)
    for r in range(4):
        g, u, t = F + r, F + 4 + r, F + 8 + r
        a(f"v_mul_f32 v{t}, v{g}, v{g}\nv_mul_f32 v{t}, {hex(f2u(0.044715))}, v{t}\nv_fma_f32 v{t}, v{t}, v{g}, v{g}")
        a(f"v_mul_f32 v{t}, {hex(f2u(k1))}, v{t}\nv_exp_f32 v{t}, v{t}\nv_add_f32 v{t}, 1.0, v{t}\nv_rcp_f32 v{t}, v{t}\nv_mul_f32 v{g}, v{g}, v{t}")
        rbf(g)
        a(f"v_mul_f32 v{g}, v{g}, v{u}")
    a(f"v_cvt_pk_bf16_f32 v32, v{F}, v{F+1}\nv_cvt_pk_bf16_f32 v34, v{F+2}, v{F+3}")
    a(f"ds_write_b16 v9, v32 offset:{HIMG}\nds_write_b16_d16_hi v9, v32 offset:{HIMG + HROW}")
    a(f"ds_write_b16 v9, v34 offset:{HIMG + 2 * HROW}\nds_write_b16_d16_hi v9, v34 offset:{HIMG + 3 * HROW}")
    a("s_waitcnt lgkmcnt(0)")
    a.label("L_hend")
    a("s_mov_b64 exec, -1")
    if fb and gfb == 2:
        a(f"s_cmp_lg_u32 s69, 0\ns_cbranch_scc1 L_gend\ns_cmp_ge_u32 s35, {nR}\ns_cbranch_scc1 L_gend")
        a(f"v_lshlrev_b32 v6, 2, v4\nv_lshl_add_u32 v6, v5, 7, v6\nv_mov_b32 v41, v{TG}\nv_mov_b32 v7, 0")
        a(f"s_lshl_b32 s66, s{sH}, 7\ns_add_u32 s66, s66, {GMB}\ns_mov_b32 s67, {GMB}\ns_mov_b32 s{sCNT}, 4000\ns_mul_i32 s70, s35, {dL}\ns_add_u32 s70, s70, {L0}")
        a.label("L_gw")
        a(f"ds_read_b32 v40, v7 offset:{PGL}\ns_waitcnt lgkmcnt(0)\nv_readfirstlane_b32 s65, v40\ns_cmp_ge_u32 s65, s70\ns_cbranch_scc1 L_gr")
        a(f"s_sleep 4\ns_sub_u32 s{sCNT}, s{sCNT}, 1\ns_cbranch_scc0 L_gw")
        a.label("L_gr")
        a(f"buffer_load_dword v40, v6, {S(SW)}, s34 offen sc1")
        a("s_mov_b64 exec, 0xffff")
        a(f"buffer_load_dwordx2 v[42:43], v2, {S(SW)}, s67 offen sc1")
        a("s_mov_b64 exec, -1\ns_waitcnt vmcnt(1)")
        for sh in (8, 4, 2, 1): a(f"v_add_u32_dpp v40, v40, v40 row_ror:{sh} {FULL}")
        a("v_add_u32_dpp v40, v40, v40 row_bcast:15 row_mask:0xa bank_mask:0xf\nv_add_u32_dpp v40, v40, v40 row_bcast:31 row_mask:0xc bank_mask:0xf")
        a("v_readlane_b32 s71, v40, 63\nv_mov_b32 v40, s71")
        a("s_mov_b64 exec, 1")
        a(f"buffer_store_dwordx2 v[40:41], v7, {S(SW)}, s66 offen sc1")
        a("s_mov_b64 exec, -1\ns_waitcnt vmcnt(1)")
        a(f"v_subrev_u32 v44, {64 * dL}, v40\nv_cmp_eq_u32 vcc, v43, v41\nv_cndmask_b32 v42, v44, v42, vcc\nv_sub_u32 v42, v42, v40")
        for sh in (8, 4, 2, 1): a(f"v_add_u32_dpp v42, v42, v42 row_ror:{sh} {FULL}")
        a(f"v_ashrrev_i32 v42, {4 + gsh}, v42\nv_add_u32 v42, {goff}, v42")
        a("s_mov_b64 exec, 15")
        a(f"buffer_store_dword v42, v2, {S(SW)}, s34 offen offset:64")
        a("s_mov_b64 exec, -1")
        a.label("L_gend")
    if fb and gfb == 3:
        a(f"s_cmp_lg_u32 s69, 0\ns_cbranch_scc1 L_gend\ns_cmp_ge_u32 s35, {nR}\ns_cbranch_scc1 L_gend")
        a(f"v_lshlrev_b32 v6, 2, v4\nv_lshl_add_u32 v6, v5, 7, v6\nv_mov_b32 v7, 0")
        a(f"s_mov_b32 s{sCNT}, 4000\ns_mul_i32 s70, s35, {dL}\ns_add_u32 s70, s70, {L0}\ns_lshl_b32 s66, s35, 2")
        a.label("L_gw")
        a(f"ds_read_b32 v40, v7 offset:{PGL}\ns_waitcnt lgkmcnt(0)\nv_readfirstlane_b32 s65, v40\ns_cmp_ge_u32 s65, s70\ns_cbranch_scc1 L_gr")
        a(f"s_sleep 4\ns_sub_u32 s{sCNT}, s{sCNT}, 1\ns_cbranch_scc0 L_gw")
        a.label("L_gr")
        if gpoll:
            a(f"s_lshl_b32 s70, s70, 6\ns_add_u32 s70, s70, 16\ns_mov_b32 s{sCNT}, 3")
            a.label("L_gp")
            a(f"buffer_load_dword v40, v6, {S(SW)}, s34 offen sc1\ns_waitcnt vmcnt(0)")
            for sh in (8, 4, 2, 1): a(f"v_add_u32_dpp v40, v40, v40 row_ror:{sh} {FULL}")
            a("v_add_u32_dpp v40, v40, v40 row_bcast:15 row_mask:0xa bank_mask:0xf\nv_add_u32_dpp v40, v40, v40 row_bcast:31 row_mask:0xc bank_mask:0xf")
            a(f"v_readlane_b32 s71, v40, 63\ns_cmp_ge_u32 s71, s70\ns_cbranch_scc1 L_ga\ns_sub_u32 s{sCNT}, s{sCNT}, 1\ns_cbranch_scc0 L_gp")
            a.label("L_ga")
        a("s_mov_b32 s71, 1\ns_atomic_add s71, s[24:25], s66 glc\ns_waitcnt lgkmcnt(0)")
        a(f"s_sub_u32 s71, s71, {r0}\ns_mul_i32 s71, s71, {gain}\ns_ashr_i32 s71, s71, 2\nv_mov_b32 v42, s71")
        a("s_mov_b64 exec, 15")
        a(f"buffer_store_dword v42, v2, {S(SW)}, s34 offen offset:64")
        a("s_mov_b64 exec, -1")
        a.label("L_gend")
    if fb and gfb == 1:
        NIT = (15 - NP) + 1 + 15
        a("s_or_b32 s65, s35, s69\ns_cmp_lg_u32 s65, 0\ns_cbranch_scc1 L_gend")
        a(f"v_lshlrev_b32 v6, 2, v4\nv_lshl_add_u32 v6, v5, 7, v6\nv_mov_b32 v41, v{TG}\nv_mov_b32 v7, 0")
        a(f"s_lshl_b32 s66, s{sH}, {3 if gsc else 7}\ns_add_u32 s66, s66, {GMB}\ns_mov_b32 s67, {GMB}\ns_mov_b32 s{sCNT}, 200\ns_mov_b32 s70, -1")
        a.label("L_g")
        a(f"buffer_load_dword v40, v6, {S(SW)}, s34 offen sc1")
        if gsc:
            a(f"s_waitcnt lgkmcnt(0)\ns_load_dwordx16 s[4:19], s[26:27], {GMB} glc\ns_load_dwordx16 s[40:55], s[26:27], {GMB + 64} glc\ns_waitcnt vmcnt(0)")
        else:
            a("s_mov_b64 exec, 0xffff")
            a(f"buffer_load_dwordx2 v[42:43], v2, {S(SW)}, s67 offen sc1")
            a("s_mov_b64 exec, -1\ns_waitcnt vmcnt(1)")
        a(f"v_cmp_le_u32 vcc, {NIT - gexit}, v40\ns_or_b32 s65, vcc_lo, vcc_hi\ns_and_b32 s65, s65, 0x10001\ns_cbranch_scc1 L_gend")
        for sh in (8, 4, 2, 1): a(f"v_add_u32_dpp v40, v40, v40 row_ror:{sh} {FULL}")
        a("v_add_u32_dpp v40, v40, v40 row_bcast:15 row_mask:0xa bank_mask:0xf\nv_add_u32_dpp v40, v40, v40 row_bcast:31 row_mask:0xc bank_mask:0xf")
        a("v_readlane_b32 s71, v40, 63\nv_mov_b32 v40, s71")
        a("s_mov_b64 exec, 1")
        a(f"buffer_store_dwordx2 v[40:41], v7, {S(SW)}, s66 offen sc1")
        a("s_mov_b64 exec, -1\ns_waitcnt vmcnt(1)")
        a("s_cmp_eq_u32 s70, -1\ns_cbranch_scc1 L_gskip")
        if gavg: a("s_add_u32 s70, s70, s71\ns_lshr_b32 s70, s70, 1")
        if gsc:
            a("s_waitcnt lgkmcnt(0)\ns_mov_b32 s65, 0")
            for k in range(16):
                r = (4 + 2 * k) if k < 8 else (40 + 2 * (k - 8))
                a(f"s_cmp_eq_u32 s{r+1}, s{sTAG}\ns_cselect_b32 s{r}, s{r}, s70\ns_add_u32 s65, s65, s{r}")
            a(f"s_lshl_b32 s70, s70, 4\ns_sub_u32 s65, s65, s70\ns_ashr_i32 s65, s65, {4 + gsh}\ns_add_u32 s65, s65, {goff}\nv_mov_b32 v42, s65")
        else:
          a(f"v_mov_b32 v44, s70\nv_cmp_eq_u32 vcc, v43, v41\nv_cndmask_b32 v42, v44, v42, vcc\nv_sub_u32 v42, v42, v44")
          for sh in (8, 4, 2, 1): a(f"v_add_u32_dpp v42, v42, v42 row_ror:{sh} {FULL}")
          a(f"v_ashrrev_i32 v42, {4 + gsh}, v42")
          if goff: a(f"v_add_u32 v42, {goff}, v42")
        a("s_mov_b64 exec, 15")
        a(f"buffer_store_dword v42, v2, {S(SW)}, s34 offen offset:64")
        a("s_mov_b64 exec, -1")
        a.label("L_gskip")
        a("s_mov_b32 s70, s71")
        if gsleep: a(f"s_sleep {gsleep}")
        a(f"s_sub_u32 s{sCNT}, s{sCNT}, 1\ns_cbranch_scc0 L_g")
        a.label("L_gend")
        if gsc: a("s_waitcnt lgkmcnt(0)")
    stamp(5)
    pad("H")
    dump_stamps(7)
    a.label("L_end")
    a("s_endpgm")
    a.raw('.section .rodata,"a"'); a.raw(".p2align 6"); a.raw(f".amdhsa_kernel {NAME}")
    a.raw("  .amdhsa_next_free_vgpr 256"); a.raw("  .amdhsa_next_free_sgpr 102"); a.raw("  .amdhsa_accum_offset 256")
    a.raw("  .amdhsa_group_segment_fixed_size 0"); a.raw("  .amdhsa_kernarg_size 96"); a.raw("  .amdhsa_user_sgpr_count 2")
    a.raw("  .amdhsa_user_sgpr_kernarg_segment_ptr 1"); a.raw("  .amdhsa_system_sgpr_workgroup_id_x 1"); a.raw(".end_amdhsa_kernel")
    return a.text()

if __name__ == "__main__":
    out = sys.argv[1]
    kw = eval("dict(" + (sys.argv[2] if len(sys.argv) > 2 else "") + ")")
    open(out, "w").write(gen(**kw))
```

```python
import sys, struct, math
sys.path.insert(0, "gen")
from asmlib import Asm

NAME = "parallel_sum__mha_block_cached__geglu_ffn__decode_kernel"
HEADER = open("parallel_sum__mha_block_cached__geglu_ffn__decode.s.ref").read().split("; Override launch")[0]

def f2u(x): return struct.unpack("<I", struct.pack("<f", x))[0]

PMB = 0x8000
GMB = 0xC000
QMB = 0x10000
FMB = QMB + 64 * 4096
MB1 = 0xA0000
MB2 = 0x120000
TSB = 0x400000
WS_USED = TSB + 0x10000
assert FMB + 28 * 8192 <= MB1
PGL = 4112
XN, QL, TAGL, ML, HIMG, AIMG, OP, SC = 0, 3584, 4096, 4128, 4224, 4864, 6144, 10240
HROW, AROW = 144, 272
WL0 = SC + 16384
WL1 = WL0 + 14336
WL2 = WL1 + 16384
LDS_BYTES = WL2 + 8192

FULL = "row_mask:0xf bank_mask:0xf"
IDP = "quad_perm:[0,1,2,3]"

def gen(W=5, NP=5, nt="nt", wnt="nt", stamps=False, warm=True, sleep1=0, sleep2=0, sleepq=30, spin=1 << 16,
        padto=0, padwg=None, padstamp=None, HW=4, noffn=0, noq=0, nowo=0, touch=1, sleepf=60, fdma=1, fst=1, fpoll=1, qst=1, pat=5, Wend=None, nend=0, W0=None, osc='', scr=1, remap=2, D2=2, stag2=4, early1=0, role=3, fast=1, hoist=1, clean=0, fastq=1, fastf=1, nq=5, tlb=0, fb=1, Wup=6, thup=0, gfb=3, gsleep=8, goff=0, gsh=2, gavg=0, gsc=0, gexit=2, L0=6, dL=2, nR=9, nost2=0, nored=0, wos=(-1,-1,-1,-1,-1,-1), r0=8, gain=6, gpoll=1, st0=0, warm2=16, late=1, codekb=13, amp=0):
    assert not (fast or fastf) or role == 3
    assert early1 != 2 or hoist
    in_helper = [False]
    a = Asm()
    a.raw(HEADER.rstrip("\n"))
    a.raw(f"; @launch grid=(256,1,1) block=(320,1,1) lds={LDS_BYTES}")
    a.raw('.amdgcn_target "amdgcn-amd-amdhsa--gfx950"')
    a.raw(".text"); a.raw(f".globl {NAME}"); a.raw(".p2align 8"); a.raw(f".type {NAME},@function")
    a.raw(f"{NAME}:")
    SK, SV, SW, SA, SB, SC_, SD = 28, 32, 36, 40, 44, 48, 52
    sB, sH, sJ, sIDX, sBH, sTAG, sCNT, sKO, sVO, sWv, sKG, sCG = 56, 57, 58, 59, 60, 61, 62, 63, 64, 72, 73, 79
    def srd(r, ptr, size):
        a(f"s_mov_b32 s{r}, s{ptr}\ns_mov_b32 s{r+1}, s{ptr+1}\ns_mov_b32 s{r+2}, {size}\ns_mov_b32 s{r+3}, 0x20000")
    def S(r): return f"s[{r}:{r+3}]"
    def V4(r): return f"v[{r}:{r+3}]"
    def V2(r): return f"v[{r}:{r+1}]"
    def stamp(k):
        if stamps or padstamp is not None:
            a(f"s_memrealtime s[{80+2*k}:{81+2*k}]")
    def dump_stamps(n):
        if not stamps: return
        a("s_waitcnt lgkmcnt(0)")
        a("s_mov_b64 exec, 1")
        a(f"s_mul_i32 s65, s2, 5\ns_add_u32 s65, s65, s3\ns_mul_i32 s65, s65, 48\ns_add_u32 s65, s65, {TSB}")
        a("v_mov_b32 v1, 0")
        for k in range(n):
            a(f"v_mov_b32 v2, s{80+2*k}")
            a(f"buffer_store_dword v2, v1, {S(SW)}, s65 offen offset:{4*k}")
        a(f"v_mov_b32 v2, s{sCNT}\nbuffer_store_dword v2, v1, {S(SW)}, s65 offen offset:44")
        a("s_waitcnt vmcnt(0)")
    def pad(role):
        if not padto: return
        r, k = padstamp if padstamp is not None else ("S", 0)
        if r != role: return
        if padwg is not None: a(f"s_cmp_lg_u32 s2, {padwg}\ns_cbranch_scc1 L_end")
        if amp: a(f"s_waitcnt lgkmcnt(0)\ns_sub_u32 s65, s{80+2*k}, s80\ns_mul_i32 s65, s65, {amp - 1}\ns_add_u32 s{80+2*k}, s{80+2*k}, s65")
        a.label(f"L_pad{role}")
        a(f"s_sleep 1\ns_memrealtime s[98:99]\ns_waitcnt lgkmcnt(0)\ns_sub_u32 s98, s98, s{80+2*k}\ns_cmp_lt_i32 s98, {padto}\ns_cbranch_scc1 L_pad{role}")

    a("s_cmp_ge_u32 s2, 256\ns_cbranch_scc1 L_end")
    a("s_load_dwordx16 s[4:19], s[0:1], 0\ns_load_dwordx8 s[20:27], s[0:1], 64")
    stamp(0)
    a("v_lshrrev_b32 v1, 6, v0\nv_and_b32 v0, 63, v0\nv_readfirstlane_b32 s3, v1")
    if role == 1:
        a(f"s_and_b32 s65, s2, 7\ns_lshl_b32 s65, s65, 2\ns_bfe_u32 s{sKG}, s2, 0x20003\ns_or_b32 s{sKG}, s{sKG}, s65\ns_lshr_b32 s{sCG}, s2, 5")
    if role == 2:
        a(f"s_and_b32 s65, s2, 15\ns_lshl_b32 s65, s65, 1\ns_bfe_u32 s{sKG}, s2, 0x10004\ns_or_b32 s{sKG}, s{sKG}, s65\ns_lshr_b32 s{sCG}, s2, 5")
    if pat >= 3 and remap == 3:
        a("s_bfe_u32 s65, s2, 0x20003\ns_xor_b32 s2, s2, s65")
    if pat >= 3 and remap == 2:
        a("s_bfe_u32 s65, s2, 0x20003\ns_and_b32 s66, s2, 7\ns_lshl_b32 s66, s66, 2\ns_and_b32 s2, s2, 0xe0\ns_or_b32 s2, s2, s65\ns_or_b32 s2, s2, s66")
    a(f"s_lshr_b32 s{sB}, s2, 6\ns_lshr_b32 s{sBH}, s2, 2\ns_and_b32 s{sH}, s{sBH}, 15\ns_and_b32 s{sJ}, s2, 3\ns_and_b32 s{sIDX}, s2, 63")
    if role == 3:
        a(f"s_lshl_b32 s{sKG}, s{sH}, 1\ns_and_b32 s65, s{sJ}, 1\ns_or_b32 s{sKG}, s{sKG}, s65\ns_lshl_b32 s{sCG}, s{sB}, 1\ns_lshr_b32 s65, s{sJ}, 1\ns_or_b32 s{sCG}, s{sCG}, s65")
    if role == 0: a(f"s_lshr_b32 s{sKG}, s2, 3\ns_add_u32 s{sCG}, s2, s{sKG}\ns_and_b32 s{sCG}, s{sCG}, 7")
    a("v_and_b32 v4, 15, v0\nv_lshrrev_b32 v5, 4, v0")
    a("s_cmp_eq_u32 s3, 0\ns_cbranch_scc1 L_helper")

    vKO, vVO, vSC, vMAX, vL, vC, vMC, vS = 1, 2, 3, 6, 7, 28, 29, 30
    vJ, vG = 4, 5
    MASK, OACC, BB, QF, DA, TMP, R = 8, 12, 20, 32, 64, 84, 96
    def ring(tile, u): return R + 32 * tile + 4 * u
    a(f"s_sub_u32 s{sWv}, s3, 1")
    kb, wb = {0: ((9, 10), (11, 12)), 1: ((12, 13), (10, 11)), 2: ((12, 13), (14, 15)), 3: ((15, 13), (11, 14)), 4: ((15, 9), (11, 13)), 5: ((15, 13), (11, 14))}[pat]
    sM = 100
    a(f"v_and_b32 v{TMP+1}, 3, v{vJ}\nv_lshlrev_b32 v{TMP+1}, 4, v{TMP+1}")
    a(f"v_lshl_add_u32 v{TMP+1}, v{vG}, 6, v{TMP+1}")
    a(f"v_bfe_u32 v{TMP}, v0, 2, 1\nv_lshl_add_u32 v{vKO}, v{TMP}, {kb[0]}, v{TMP+1}\nv_bfe_u32 v{TMP}, v0, 3, 1\nv_lshl_add_u32 v{vKO}, v{TMP}, {kb[1]}, v{vKO}")
    if pat == 5:
        a(f"s_lshl_b32 s{sKO}, s{sBH}, 21\ns_and_b32 s65, s{sJ}, 1\ns_lshl_b32 s65, s65, 12\ns_add_u32 s{sKO}, s{sKO}, s65\ns_lshr_b32 s65, s{sJ}, 1\ns_lshl_b32 s65, s65, 16\ns_add_u32 s{sKO}, s{sKO}, s65")
    else: a(f"s_lshl_b32 s{sKO}, s2, 19")
    a(f"s_and_b32 s65, s{sWv}, 1\ns_lshl_b32 s65, s65, {wb[0]}\ns_add_u32 s{sKO}, s{sKO}, s65")
    a(f"s_lshr_b32 s65, s{sWv}, 1\ns_lshl_b32 s65, s65, {wb[1]}\ns_add_u32 s{sKO}, s{sKO}, s65")
    if pat in (3, 4):
        if scr:
            a(f"s_mul_i32 s65, s{sBH}, 0x9E3779B1\ns_and_b32 s{sM}, s65, 0x300000\ns_lshr_b32 s{sM}, s{sM}, 3\ns_or_b32 s{sM}, s{sM}, 0x10000")
            a(f"s_lshr_b32 s65, s65, 6\ns_and_b32 s65, s65, 0x70000\ns_or_b32 s{sKO}, s{sKO}, s65")
        else:
            a(f"s_mov_b32 s{sM}, 0x10000")
    a(f"s_mov_b32 s{sVO}, s{sKO}")
    a("s_waitcnt lgkmcnt(0)")
    if st0: stamp(5)
    srd(SK, 6, 1 << 27)
    vm = []
    def issue(kind, reg, u, tagid):
        sr, vo, so = (SK, vKO, sKO) if kind == "K" else (SV, vVO, sVO)
        o = {0: 256 * (u & 1), 1: 256 * (u & 3), 2: 256 * u, 3: 256 * u, 4: 256 * (u & 1) + 512 * (u & 2), 5: 256 * u}[pat]
        off = f" offset:{o}" if o else ""
        a(f"buffer_load_dwordx4 {V4(reg)}, v{vo}, {S(sr)}, s{so} offen{off} {nt}")
        if pat == 0 and u & 1: a(f"s_add_u32 s{so}, s{so}, 8192")
        if pat == 1 and (u & 3) == 3: a(f"s_add_u32 s{so}, s{so}, 16384")
        if pat == 4 and (u & 3) == 3: a(f"s_xor_b32 s{so}, s{so}, 0x4000")
        if pat == 5 and u == 7: a(f"s_add_u32 s{so}, s{so}, 0x20000")
        if pat in (3, 4) and u == 7:
            a(f"s_xor_b32 s{so}, s{so}, 0x1000\ns_bitcmp1_b32 s{so}, 12\ns_cselect_b32 s65, 0, s{sM}\ns_add_u32 s65, s65, s{so}\ns_and_b32 s65, s65, 0x70000\ns_andn2_b32 s{so}, s{so}, 0x70000\ns_or_b32 s{so}, s{so}, s65")
        if pat == 2 and u == 7:
            a(f"s_bitcmp1_b32 s{so}, 11\ns_cselect_b32 s65, {65536 - 4096}, 0\ns_add_u32 s{so}, s{so}, s65\ns_add_u32 s{so}, s{so}, 2048")
        vm.append(tagid)
    def wait_for(tagid):
        if tagid not in vm: return
        n = len(vm) - 1 - vm.index(tagid)
        assert n < 64
        a(f"s_waitcnt vmcnt({n})")
    nload = [0]
    curW = [W]
    adapt = [False]; nlab = [0]
    def throttle_issue(kind, reg, u):
        n = nload[0]
        if adapt[0]:
            nlab[0] += 1
            a(f"s_cbranch_scc1 L_w{nlab[0]}", drain=False)
            wait_for(("s", n - curW[0]))
            a.hist[-1].states = 0
            a.label(f"L_w{nlab[0]}", drain=False)
            wait_for(("s", n - Wup))
        else: wait_for(("s", n - curW[0]))
        issue(kind, reg, u, ("s", n)); nload[0] += 1
    W0 = W0 or W
    curW[0] = W0
    for n in range(W0):
        throttle_issue("K", ring(n // 8, n % 8), n % 8)
    curW[0] = W
    if warm2:
        a(f"s_and_b32 s65, s2, 0xe2\ns_lshl_b32 s65, s65, 2\ns_or_b32 s65, s65, s{sWv}\ns_cbranch_scc1 L_nowarm2", drain=False)
        a("s_getpc_b64 s[66:67]")
        a.label("L_pc", drain=False)
        a("v_lshlrev_b32 v2, 7, v0\nglobal_load_dword v31, v2, s[66:67]\nv_add_u32 v2, 0x2000, v2\nv_min_u32 v2, L_end-L_pc, v2")
        a("global_load_dword v31, v2, s[66:67]")
        a.label("L_nowarm2", drain=False)
    if warm and not warm2:
        a(f"s_cmp_lg_u32 s3, 1\ns_cbranch_scc1 L_nowarm")
        a(f"s_getpc_b64 s[66:67]\nv_lshlrev_b32 v{TMP+2}, 7, v0")
        a(f"global_load_dword v{TMP+3}, v{TMP+2}, s[66:67]")
        a.label("L_nowarm")
    def setup(a, srd):
        a(f"v_lshlrev_b32 v{vVO}, 4, v{vJ}\nv_bfe_u32 v{TMP}, v0, 4, 1\nv_lshl_add_u32 v{vVO}, v{TMP}, {kb[0]}, v{vVO}\nv_bfe_u32 v{TMP}, v0, 5, 1\nv_lshl_add_u32 v{vVO}, v{TMP}, {kb[1]}, v{vVO}")
        srd(SV, 8, 1 << 27); srd(SW, 26, WS_USED); srd(SC_, 22, 3584); srd(SD, 4, 3584)
        srd(SA, 12, 4096 * 896); srd(SB, 20, 1792 * 896)
        for k in range(32): a(f"v_mov_b32 v{QF+k}, 0")
        for k in range(8): a(f"v_mov_b32 v{OACC+k}, 0")
        a(f"v_mov_b32 v{vMAX}, 0xff800000\nv_mov_b32 v{vL}, 0\nv_mov_b32 v{vC}, {hex(f2u(math.log2(math.e) / 16))}")
        a(f"v_and_b32 v{TMP+4}, 1, v{vJ}\nv_lshlrev_b32 v{TMP+4}, 4, v{TMP+4}\nv_mov_b32 v{TMP+5}, 0xffff\nv_lshlrev_b32 v{TMP+4}, v{TMP+4}, v{TMP+5}")
        a(f"v_bfe_u32 v{TMP+5}, v{vJ}, 1, 2")
        for w in range(4):
            a(f"v_cmp_eq_u32 vcc, {w}, v{TMP+5}\nv_cndmask_b32 v{MASK+w}, 0, v{TMP+4}, vcc")
        a(f"s_lshl_b32 s65, s{sWv}, 12\ns_add_u32 s65, s65, {SC}\nv_lshl_add_u32 v{vSC}, v0, 2, s65")
    chunks = []
    def rec(t): chunks.append(t)
    def recsrd(r, ptr, size): rec(f"s_mov_b32 s{r}, s{ptr}\ns_mov_b32 s{r+1}, s{ptr+1}\ns_mov_b32 s{r+2}, {size}\ns_mov_b32 s{r+3}, 0x20000")
    setup(rec, recsrd)
    if not late:
        for t in chunks: a(t)
        chunks = []
    for n in range(W0, 8 * NP):
        if st0 and n == W0: stamp(3)
        throttle_issue("K", ring(n // 8, n % 8), n % 8)
        if st0 and n == W0: stamp(6)
        if st0 and n == W0 + 4: stamp(8)
        if st0 and n == W0 + 9: stamp(4)
        if n >= 16:
            cnt = 0
            while chunks and cnt < 6:
                t = chunks.pop(0); a(t); cnt += t.count("\n") + 1
    assert not chunks
    if st0:
        _st = stamp
        def stamp(k):
            if k in (1, 2, 7) or in_helper[0]: _st(k)
    stamp(1)
    a("s_barrier")
    stamp(2)
    for t in range(4):
        m = 0x000F000F << (4 * t)
        a(f"s_mov_b32 exec_lo, {hex(m)}\ns_mov_b32 exec_hi, {hex(m)}")
        for half in range(2):
            a(f"ds_read_b128 {V4(QF + 4 * (2 * t + half))}, v{TMP+1} offset:{QL + 256 * half}")
    a("s_mov_b64 exec, -1")
    a(f"v_mov_b32 v{TMP}, 0\nds_read_b64 {V2(TMP+2)}, v{TMP} offset:{TAGL}")
    a("s_waitcnt lgkmcnt(0)")
    a(f"v_readfirstlane_b32 s{sTAG}, v{TMP+2}\nv_readfirstlane_b32 s101, v{TMP+3}")

    def consK(reg, u, d):
        c = "0" if u == 0 else V4(d)
        a(f"v_mfma_f32_16x16x32_bf16 {V4(d)}, {V4(reg)}, {V4(QF + 4 * u)}, {c}")
    def extract(ds, off0):
        for k, d in enumerate(ds): a(f"v_mov_b32_dpp v{TMP+k}, v{d} quad_perm:[0,0,0,0] {FULL}")
        for c in range(1, 4):
            for k, d in enumerate(ds): a(f"v_add_f32_dpp v{TMP+k}, v{d+c}, v{TMP+k} quad_perm:[{c},{c},{c},{c}] {FULL}")
        for k, d in enumerate(ds): a(f"v_cvt_pk_bf16_f32 v{TMP+k}, v{TMP+k}, v{TMP+k}")
        for k, d in enumerate(ds): a(f"v_and_b32 v{TMP+k}, 0xffff0000, v{TMP+k}")
        for k, d in enumerate(ds):
            a(f"ds_write_b32 v{vSC}, v{TMP+k} offset:{off0 + 256 * k}")
            a(f"v_max_f32 v{vMAX}, v{vMAX}, v{TMP+k}")
        a(f"v_add_u32 v{vSC}, {256 * len(ds)}, v{vSC}")
    for u in range(8):
        consK(ring(0, u), u, DA)
        throttle_issue("K", ring(0, u), u)
        for T in range(1, NP): consK(ring(T, u), u, DA + 4 * T)
    extract([DA + 4 * T for T in range(NP)], 0)

    T0 = R + 32
    vX, vXO, vOPW, vMLW, vOPR, vZ, vL16, vST2, vTR, vTR2, vTRD, vTRD2, vHA, vAR, vAW, vWO, vWD = range(T0, T0 + 17)
    vML = T0 + 18
    G = T0 + 20
    GR = T0 + 36
    P1 = T0 + 40
    AH = T0 + 56
    AO = T0 + 64
    BW = T0 + 80
    BD = T0 + 96
    Y = T0 + 104
    E = T0 + 108
    def tail_addr():
        a(f"s_lshl_b32 s65, s{sWv}, 10\ns_add_u32 s65, s65, {OP}\nv_lshl_add_u32 v{vOPW}, v0, 4, s65")
        a(f"s_lshl_b32 s65, s{sWv}, 3\ns_add_u32 s65, s65, {ML}\nv_mov_b32 v{vMLW}, s65")
        a(f"s_lshl_b32 s65, s{sWv}, 8\ns_add_u32 s65, s65, {OP}\nv_lshl_add_u32 v{vOPR}, v0, 3, s65")
        a(f"v_mov_b32 v{vZ}, 0\nv_lshlrev_b32 v{vL16}, 4, v0\nv_mov_b32 v{GR+3}, s{sTAG}")
        a(f"s_lshl_b32 s70, s2, 11\ns_lshl_b32 s65, s{sWv}, 9\ns_add_u32 s70, s70, s65\ns_add_u32 s70, s70, {MB1}")
        a(f"s_lshl_b32 s71, s{sWv}, 17\ns_lshr_b32 s65, s{sKG}, 1\ns_lshl_b32 s65, s65, 13\ns_add_u32 s71, s71, s65")
        a(f"s_and_b32 s65, s{sKG}, 1\ns_lshl_b32 s65, s65, 10\ns_add_u32 s71, s71, s65\ns_add_u32 s71, s71, {MB1}\ns_add_u32 s74, s71, 4096")
        a(f"v_lshrrev_b32 v{E}, 3, v0\nv_and_b32 v{E+1}, 7, v0\nv_and_b32 v{E+2}, 2, v{E}\nv_xor_b32 v{E+1}, v{E+1}, v{E+2}\nv_lshlrev_b32 v{E+1}, 4, v{E+1}")
        a(f"v_and_b32 v{E+2}, 3, v{E}\nv_lshlrev_b32 v{E+2}, 3, v{E+2}\nv_lshrrev_b32 v{E+3}, 2, v{E}\nv_add_u32 v{E+2}, v{E+2}, v{E+3}")
        a(f"v_mul_u32_u24 v{vWO}, 896, v{E+2}\nv_mul_u32_u24 v{vWD}, 896, v{E}")
        a(f"s_and_b32 s65, s{sWv}, 1\ns_lshl_b32 s65, s65, 6\nv_xor_b32 v{E+1}, s65, v{E+1}")
        a(f"v_add_u32 v{vWO}, v{vWO}, v{E+1}\nv_add_u32 v{vWD}, v{vWD}, v{E+1}")
        a(f"s_lshr_b32 s66, s{sKG}, 1\ns_lshl_b32 s66, s66, 8\ns_and_b32 s65, s{sKG}, 1\ns_lshl_b32 s65, s65, 6\ns_add_u32 s66, s66, s65")
        a(f"s_lshl_b32 s65, s{sWv}, 1\ns_add_u32 s66, s66, s65\ns_mul_i32 s66, s66, 896\ns_lshl_b32 s65, s{sCG}, 7\ns_add_u32 s66, s66, s65")
        a(f"s_lshl_b32 s67, s{sKG}, 6\ns_lshl_b32 s68, s{sWv}, 3\ns_add_u32 s67, s67, s68\ns_mul_i32 s67, s67, 896\ns_add_u32 s67, s67, s65")
        a(f"s_lshl_b32 s75, s{sWv}, 10")
        a(f"v_lshrrev_b32 v{E}, 2, v{vJ}\nv_bfe_u32 v{E+1}, v{vJ}, 1, 1\ns_lshl_b32 s65, s{sWv}, 1\nv_add_u32 v{E+1}, s65, v{E+1}")
        a(f"v_and_b32 v{E+2}, 2, v{E}\nv_xor_b32 v{E+1}, v{E+1}, v{E+2}")
        a(f"v_and_b32 v{E+3}, 1, v{vJ}\nv_lshlrev_b32 v{E+3}, 3, v{E+3}\nv_lshl_add_u32 v{E+3}, v{E}, 7, v{E+3}")
        a(f"v_and_b32 v{E+2}, 1, v{vG}\nv_lshlrev_b32 v{E+2}, 2, v{E+2}\nv_xor_b32 v{E+4}, v{E+1}, v{E+2}")
        a(f"v_lshl_add_u32 v{vTR}, v{E+4}, 4, v{E+3}\nv_lshl_add_u32 v{vTR}, v{vG}, 10, v{vTR}")
        a(f"v_mul_u32_u24 v{vHA}, {HROW}, v{E}\nv_lshl_add_u32 v{vHA}, v{vG}, 4, v{vHA}")
        a(f"v_mul_u32_u24 v{vAR}, {AROW}, v{E}\nv_lshl_add_u32 v{vAR}, v{vG}, 4, v{vAR}")
        a(f"s_mul_i32 s65, s{sWv}, {AROW}\ns_add_u32 s65, s65, {AIMG}\nv_lshl_add_u32 v{vAW}, v0, 2, s65")
        a(f"v_lshlrev_b32 v{vST2}, 3, v{vJ}\nv_lshl_add_u32 v{vST2}, v{vG}, 12, v{vST2}")
        a(f"s_lshl_b32 s68, s{sCG}, 2\ns_add_u32 s68, s68, s{sWv}\ns_lshl_b32 s68, s68, 14\ns_lshl_b32 s65, s{sKG}, 7\ns_add_u32 s68, s68, s65\ns_add_u32 s68, s68, {MB2}")
        a(f"s_and_b32 s78, s{sKG}, 0xfc\ns_add_u32 s78, s78, s{sWv}\ns_lshl_b32 s69, s78, 4\ns_lshl_b32 s78, s78, 2\ns_and_b32 s65, s{sKG}, 3\ns_add_u32 s78, s78, s65")
        a(f"s_lshl_b32 s78, s78, 12\ns_add_u32 s78, s78, {MB2}\ns_mul_i32 s65, s65, 448\ns_add_u32 s69, s69, s65\ns_lshl_b32 s69, s69, 1")
        a(f"v_and_b32 v{E}, 7, v0\nv_and_b32 v{E+1}, 1, v{vG}\nv_lshlrev_b32 v{vXO}, 2, v{E}\nv_lshl_add_u32 v{vXO}, v{E+1}, 1, v{vXO}")
    tail_addr()
    if tlb:
        a("s_cmp_lg_u32 s3, 1\ns_cbranch_scc1 L_notlb")
        a("s_mov_b64 exec, 1")
        if tlb & 1: a(f"buffer_load_dword v{E+7}, v{vZ}, {S(SV)}, s{sVO} offen {nt}")
        if tlb & 2:
            a(f"buffer_load_dword v{E+7}, v{vZ}, {S(SA)}, s66 offen {nt}")
            a(f"buffer_load_dword v{E+7}, v{vZ}, {S(SB)}, s67 offen {nt}")
        a("s_mov_b64 exec, -1")
        a.label("L_notlb")

    vPG, vPR, vPA = E + 8, E + 9, E + 10
    sPS, sPL, sPT = 12, 13, 14
    if fb:
        a(f"s_add_u32 s65, s{sWv}, s{sJ}\ns_and_b32 s65, s65, 3\ns_lshl_b32 s{sPL}, s{sH}, 2\ns_add_u32 s{sPL}, s{sPL}, s65\ns_lshl_b32 s{sPL}, s{sPL}, 7\ns_add_u32 s{sPL}, s{sPL}, {PMB}")
        a(f"s_cmp_lg_u32 s101, 0\ns_cselect_b32 s{sPL}, 0x40000000, s{sPL}")
        a(f"s_lshl_b32 s65, s{sB}, 2\ns_add_u32 s65, s65, s{sJ}\ns_lshl_b32 s65, s65, 2\ns_add_u32 s{sPS}, s{sPL}, s65")
        a(f"s_lshl_b32 s65, s{sWv}, 2\ns_add_u32 s65, s65, {PGL}\nv_mov_b32 v{vPA+1}, s65")
        a(f"v_mov_b32 v{vPG}, 0\nv_mov_b32 v{vPR}, -1\nv_lshlrev_b32 v{vPA}, 2, v0\ns_mov_b32 s{sPT}, {thup}")
    def progress():
        if not fb: return
        if gfb: a(f"v_readlane_b32 s15, v{vPR}, 16")
        for sh in (8, 4, 2, 1): a(f"v_add_u32_dpp v{vPR}, v{vPR}, v{vPR} row_ror:{sh} {FULL}")
        a(f"v_add_u32 v{vPG}, 1, v{vPG}\nv_readfirstlane_b32 s65, v{vPR}")
        if gfb: a(f"s_add_u32 s65, s65, s15")
        a("s_mov_b64 exec, 1")
        a(f"buffer_store_dword v{vPG}, v{vZ}, {S(SW)}, s{sPS} offen"); vm.append(("ps", nload[0]))
        if gfb >= 2: a(f"ds_write_b32 v{vPA+1}, v{vPG}")
        a(f"s_mov_b64 exec, {'0x1ffff' if gfb else '0xffff'}")
        a(f"buffer_load_dword v{vPR}, v{vPA}, {S(SW)}, s{sPL} offen sc1"); vm.append(("pl", nload[0]))
        a("s_mov_b64 exec, -1")
        a(f"s_add_u32 s{sPT}, s{sPT}, 16\ns_add_u32 s65, s65, 16\ns_cmp_gt_i32 s65, s{sPT}")
        adapt[0] = True
    def iterK(nextkind):
        progress()
        for u in range(8):
            consK(ring(0, u), u, DA)
            throttle_issue(nextkind, ring(0, u), u)
        extract([DA], 0)
    a(f"s_mov_b32 s{sCNT}, {15 - NP}")
    a.label("L_kk")
    iterK("K")
    a(f"s_sub_u32 s{sCNT}, s{sCNT}, 1\ns_cmp_lg_u32 s{sCNT}, 0\ns_cbranch_scc1 L_kk")
    iterK("V")
    stamp(3)
    a(f"v_subrev_u32 v{vSC}, 4096, v{vSC}")
    a(f"ds_read_b32 v{vS}, v{vSC}")
    a(f"v_max_f32_dpp v{vMAX}, v{vMAX}, v{vMAX} row_ror:4 {FULL}")
    a(f"v_max_f32_dpp v{vMAX}, v{vMAX}, v{vMAX} row_ror:8 {FULL}")
    a(f"v_max_f32_dpp v{vMAX}, v{vMAX}, v{vMAX} row_bcast:15 row_mask:0xa bank_mask:0xf")
    a(f"v_max_f32_dpp v{vMAX}, v{vMAX}, v{vMAX} row_bcast:31 row_mask:0xc bank_mask:0xf")
    a(f"v_readlane_b32 s65, v{vMAX}, 63")
    a(f"v_mul_f32 v{vMC}, s65, v{vC}")
    vP = TMP
    def ld1(k): a(f"buffer_load_dwordx4 {V4(P1+4*k)}, v{vL16}, {S(SW)}, s{71 if k < 2 else 74} offen{' offset:2048' if k & 1 else ''} sc1")
    def wo_dma(step):
        if nowo: return
        for c in range(6):
            if wos[c] != step: continue
            if c >= 2:
                a(f"s_add_u32 s65, s66, {(128 * (c & 1) + 32 * ((c - 2) >> 1)) * 896}\ns_add_u32 m0, s75, {WL1 + 4096 * (c - 2)}")
                a(f"buffer_load_dwordx4 v{vWO}, {S(SA)}, s65 offen {wnt} lds"); vm.append(("wo", c))
            else:
                a(f"s_add_u32 s65, s67, {32 * 896 * c}\ns_add_u32 m0, s75, {WL2 + 4096 * c}")
                a(f"buffer_load_dwordx4 v{vWD}, {S(SB)}, s65 offen {wnt} lds"); vm.append(("wd", c))
    def last_extra():
        a(f"s_cmp_eq_u32 s{sCG}, 7\ns_cselect_b32 s66, 0x40000000, s66\ns_cselect_b32 s67, 0x40000000, s67")
        wo_dma(-1)
        a(f"buffer_load_ushort v{vX}, v{vXO}, {S(SD)}, s69 offen"); vm.append("x")
        if touch:
            a(f"buffer_load_ushort v{E+7}, v{vXO}, {S(SC_)}, s69 offen"); vm.append("o")
        a(f"v_add_f32_dpp v{vL}, v{vL}, v{vL} row_ror:4 {FULL}")
        a(f"v_add_f32_dpp v{vL}, v{vL}, v{vL} row_ror:8 {FULL}")
        a(f"v_add_f32_dpp v{vL}, v{vL}, v{vL} row_bcast:15 row_mask:0xa bank_mask:0xf")
        a(f"v_add_f32_dpp v{vL}, v{vL}, v{vL} row_bcast:31 row_mask:0xc bank_mask:0xf")
        a(f"v_mov_b32 v{vML}, v{vMC}\nv_mov_b32 v{vML+1}, v{vL}")
        a("s_mov_b32 exec_lo, 0\ns_mov_b32 exec_hi, 0x80000000")
        a(f"ds_write_b64 v{vMLW}, {V2(vML)}")
        a("s_mov_b64 exec, -1")
        if hoist:
            a("s_waitcnt lgkmcnt(0)\ns_barrier")
            if early1 == 2:
                for k in range(4): ld1(k); vm.append(("p1", k))
            a(f"ds_read_b128 {V4(G)}, v{vZ} offset:{ML}\nds_read_b128 {V4(G+4)}, v{vZ} offset:{ML+16}\ns_waitcnt lgkmcnt(0)")
            weights()
    def weights():
        ms, ls = [G, G+2, G+4, G+6], [G+1, G+3, G+5, G+7]
        a(f"v_max3_f32 v{E+4}, v{ms[0]}, v{ms[1]}, v{ms[2]}\nv_max_f32 v{E+4}, v{E+4}, v{ms[3]}")
        for k in range(4): a(f"v_sub_f32 v{ms[k]}, v{ms[k]}, v{E+4}")
        for k in range(4): a(f"v_exp_f32 v{ms[k]}, v{ms[k]}")
        a(f"v_mul_f32 v{E+5}, v{ms[0]}, v{ls[0]}")
        for k in range(1, 4): a(f"v_fmac_f32 v{E+5}, v{ms[k]}, v{ls[k]}")
        a(f"v_rcp_f32 v{E+6}, v{E+5}\nv_log_f32 v{E+5}, v{E+5}")
        for k in range(4): a(f"v_mul_f32 v{ms[k]}, v{ms[k]}, v{E+6}")
        a(f"v_add_f32 v{GR+2}, v{E+4}, v{E+5}")
    def iterV(last):
        a("s_waitcnt lgkmcnt(0)")
        a(f"v_fma_f32 v{vP}, v{vS}, v{vC}, -v{vMC}")
        a(f"v_exp_f32 v{vP}, v{vP}")
        if not last:
            a(f"v_add_u32 v{vSC}, 256, v{vSC}\nds_read_b32 v{vS}, v{vSC}")
        a(f"v_add_f32 v{vL}, v{vL}, v{vP}")
        a(f"v_cvt_pk_bf16_f32 v{vP}, v{vP}, v{vP}")
        if last: last_extra()
        else: progress()
        base = nload[0] - 8
        for u in range(8):
            t, half = u >> 1, u & 1
            b = BB + 4 * (t & 1)
            if half == 0:
                for w in range(4): a(f"v_and_b32_dpp v{b+w}, v{vP}, v{MASK+w} row_newbcast:{4*t} {FULL}")
            if last: wait_for(("s", base + u))
            a(f"v_mfma_f32_16x16x32_bf16 {V4(OACC + 4 * half)}, {V4(ring(0, u))}, {V4(b)}, {V4(OACC + 4 * half)}")
            if not last: throttle_issue("V", ring(0, u), u)
            elif u < 7: wo_dma(u)
    a(f"s_mov_b32 s{sCNT}, {15 - nend}")
    a.label("L_vv")
    iterV(False)
    a(f"s_sub_u32 s{sCNT}, s{sCNT}, 1\ns_cmp_lg_u32 s{sCNT}, 0\ns_cbranch_scc1 L_vv")
    if nend:
        curW[0] = Wend
        a(f"s_mov_b32 s{sCNT}, {nend}")
        a.label("L_vv2")
        iterV(False)
        a(f"s_sub_u32 s{sCNT}, s{sCNT}, 1\ns_cmp_lg_u32 s{sCNT}, 0\ns_cbranch_scc1 L_vv2")
    iterV(True)
    stamp(4)
    for r in range(4): a(f"v_mov_b32_dpp v{OACC+r}, v{OACC+4+r} {IDP} row_mask:0xf bank_mask:0xc")
    a(f"ds_write_b128 v{vOPW}, {V4(OACC)}")
    wo_dma(7)
    a("s_waitcnt lgkmcnt(0)")
    a("s_barrier")
    a("s_mov_b32 exec_hi, 0")
    if not hoist: a(f"ds_read_b128 {V4(G)}, v{vZ} offset:{ML}\nds_read_b128 {V4(G+4)}, v{vZ} offset:{ML+16}")
    for w in range(4): a(f"ds_read_b64 {V2(G+8+2*w)}, v{vOPR} offset:{1024*w}")
    if not hoist:
        a("s_waitcnt lgkmcnt(4)")
        weights()
    ms = [G, G+2, G+4, G+6]
    a("s_cmp_lg_u32 s101, 0")
    a("s_waitcnt lgkmcnt(3)")
    a(f"v_pk_mul_f32 {V2(GR)}, {V2(G+8)}, {V2(ms[0])} op_sel_hi:[1,0]")
    for k in range(1, 4):
        a(f"s_waitcnt lgkmcnt({3-k})")
        a(f"v_pk_fma_f32 {V2(GR)}, {V2(G+8+2*k)}, {V2(ms[k])}, {V2(GR)} op_sel_hi:[1,0,1]")
    if fast:
        a("s_cbranch_scc1 L_st1far", drain=False)
        a(f"buffer_store_dwordx4 {V4(GR)}, v{vL16}, {S(SW)}, s70 offen")
        a("s_branch L_st1done", drain=False)
        a.label("L_st1far", drain=False)
    a(f"buffer_store_dwordx4 {V4(GR)}, v{vL16}, {S(SW)}, s70 offen sc1")
    if fast: a.label("L_st1done", drain=False)
    def st1_global():
        a("s_mov_b32 exec_hi, 0")
        a(f"buffer_store_dwordx4 {V4(GR)}, v{vL16}, {S(SW)}, s70 offen sc1")
        a("s_mov_b32 exec_hi, -1")
    a("s_mov_b64 exec, -1")
    stamp(8)
    a(f"s_mov_b32 s{sCNT}, {spin}")
    a(f"s_cmp_eq_u32 s{sCG}, 7\ns_cbranch_scc1 L_reduce", drain=False)
    if not early1:
        for k in range(4): ld1(k)
    a(f"ds_read_b128 {V4(AH)}, v{vHA} offset:{HIMG}\nds_read_b128 {V4(AH+4)}, v{vHA} offset:{HIMG+64}")
    if early1: a("s_waitcnt vmcnt(1)\ns_branch L_p1c", drain=False)
    a.label("L_p1", drain=False)
    a("s_waitcnt vmcnt(0)")
    a.label("L_p1c", drain=False)
    MK = [4, 6, 8, 10]
    for k in range(4): a(f"v_cmp_ne_u32 s[{MK[k]}:{MK[k]+1}], s{sTAG}, v{P1+4*k+3}")
    a(f"s_or_b64 s[76:77], s[4:5], s[6:7]\ns_or_b64 vcc, s[8:9], s[10:11]\ns_or_b64 s[76:77], s[76:77], vcc")
    a("s_cbranch_scc0 L_p1ok", drain=False)
    if sleep1: a(f"s_sleep {sleep1}")
    for k in range(4):
        a(f"s_cmp_eq_u64 s[{MK[k]}:{MK[k]+1}], 0\ns_cbranch_scc1 L_p1s{k}", drain=False)
        ld1(k)
        a.label(f"L_p1s{k}", drain=False)
    a(f"s_sub_u32 s{sCNT}, s{sCNT}, 1\ns_cbranch_scc0 L_p1", drain=False)
    a.label("L_p1ok", drain=False)
    stamp(5)
    lam = [P1+2, P1+6, P1+10, P1+14]
    a(f"v_max3_f32 v{E+4}, v{lam[0]}, v{lam[1]}, v{lam[2]}\nv_max_f32 v{E+4}, v{E+4}, v{lam[3]}")
    for k in range(4): a(f"v_sub_f32 v{lam[k]}, v{lam[k]}, v{E+4}")
    for k in range(4): a(f"v_exp_f32 v{lam[k]}, v{lam[k]}")
    a(f"v_add_f32 v{E+5}, v{lam[0]}, v{lam[1]}\nv_pk_mul_f32 {V2(G)}, {V2(P1)}, {V2(lam[0])} op_sel_hi:[1,0]\nv_add_f32 v{E+6}, v{lam[2]}, v{lam[3]}")
    a(f"v_pk_fma_f32 {V2(G)}, {V2(P1+4)}, {V2(lam[1])}, {V2(G)} op_sel_hi:[1,0,1]\nv_add_f32 v{E+6}, v{E+5}, v{E+6}")
    a(f"v_pk_fma_f32 {V2(G)}, {V2(P1+8)}, {V2(lam[2])}, {V2(G)} op_sel_hi:[1,0,1]\nv_rcp_f32 v{E+6}, v{E+6}")
    a(f"v_pk_fma_f32 {V2(G)}, {V2(P1+12)}, {V2(lam[3])}, {V2(G)} op_sel_hi:[1,0,1]")
    a(f"v_pk_mul_f32 {V2(G)}, {V2(G)}, {V2(E+6)} op_sel_hi:[1,0]")
    a(f"v_cvt_pk_bf16_f32 v{G}, v{G}, v{G+1}")
    a(f"ds_write_b32 v{vAW}, v{G}")
    a("s_waitcnt lgkmcnt(0)")
    a("s_barrier")
    a(f"ds_read_b64_tr_b16 {V2(BD)}, v{vTR} offset:{WL2}\nds_read_b64_tr_b16 {V2(BD+2)}, v{vTR} offset:{WL2+512}")
    a(f"ds_read_b64_tr_b16 {V2(BD+4)}, v{vTR} offset:{WL2+4096}\nds_read_b64_tr_b16 {V2(BD+6)}, v{vTR} offset:{WL2+4096+512}")
    for k in range(4):
        a(f"ds_read_b128 {V4(AO+4*k)}, v{vAR} offset:{AIMG+64*k}")
        a(f"ds_read_b64_tr_b16 {V2(BW+4*k)}, v{vTR} offset:{WL1+4096*k}\nds_read_b64_tr_b16 {V2(BW+4*k+2)}, v{vTR} offset:{WL1+4096*k+512}")
    a("s_waitcnt lgkmcnt(12)")
    a(f"v_mfma_f32_16x16x32_bf16 {V4(Y)}, {V4(AH)}, {V4(BD)}, 0")
    a(f"v_mfma_f32_16x16x32_bf16 {V4(Y)}, {V4(AH+4)}, {V4(BD+4)}, {V4(Y)}")
    for k in range(4):
        a(f"s_waitcnt lgkmcnt({9-3*k})")
        a(f"v_mfma_f32_16x16x32_bf16 {V4(Y)}, {V4(AO+4*k)}, {V4(BW+4*k)}, {V4(Y)}")
    a(f"v_mov_b32 v{Y+1}, v{GR+3}")
    if not nost2: a(f"buffer_store_dwordx2 {V2(Y)}, v{vST2}, {S(SW)}, s68 offen sc1")
    if fast and clean: st1_global()
    a("s_branch L_sdone")
    a.label("L_reduce")
    if fast and clean:
        a("s_sleep 12")
        st1_global()
    a(f"s_cmp_ge_u32 s{sKG}, 28\ns_cbranch_scc1 L_sdone")
    if nored: a("s_branch L_sdone")
    SETS = [R + 16 * d for d in range(2)] + [QF, QF + 16]
    def ld2(d):
        for k in range(4): a(f"buffer_load_dwordx4 {V4(SETS[d]+4*k)}, v{vL16}, {S(SW)}, s78 offen offset:{1024*k} sc1")
    a(f"s_waitcnt vmcnt(0)\nv_lshlrev_b32 v{vX}, 16, v{vX}")
    for d in range(D2 - 1):
        ld2(d)
        if stag2: a(f"s_sleep {stag2}")
    a.label("L_p2")
    for d in range(D2):
        ld2((d + D2 - 1) % D2)
        a(f"s_waitcnt vmcnt({4 * (D2 - 1)})")
        q = SETS[d]
        a(f"v_xor_b32 v{E}, v{q+1}, v{GR+3}\nv_xor_b32 v{E+1}, v{q+3}, v{GR+3}")
        for k in range(1, 4): a(f"v_bitop3_b32 v{E}, v{q+4*k+1}, v{GR+3}, v{E} bitop3:0xbe\nv_bitop3_b32 v{E+1}, v{q+4*k+3}, v{GR+3}, v{E+1} bitop3:0xbe")
        a(f"v_or_b32 v{E}, v{E}, v{E+1}\nv_add_f32 v{P1}, v{q}, v{q+4}\nv_add_f32 v{P1+2}, v{q+2}, v{q+6}\nv_cmp_ne_u32 vcc, 0, v{E}")
        a(f"v_add_f32 v{P1+8}, v{q+8}, v{q+12}\nv_add_f32 v{P1+10}, v{q+10}, v{q+14}")
        a("s_cbranch_vccz L_p2ok", drain=False)
    a(f"s_sub_u32 s{sCNT}, s{sCNT}, 1\ns_cbranch_scc0 L_p2", drain=False)
    a.label("L_p2ok", drain=False)
    stamp(6)
    a(f"v_add_f32 v{P1}, v{P1}, v{P1+8}\nv_add_f32 v{P1+2}, v{P1+2}, v{P1+10}")
    a(f"v_permlane16_swap_b32 v{P1}, v{P1+2}")
    a(f"v_add_f32 v{P1}, v{P1}, v{P1+2}")
    a(f"v_add_f32_dpp v{P1}, v{P1}, v{P1} row_ror:8 {FULL}")
    a(f"v_mov_b32 v{P1+2}, v{P1}")
    a(f"v_permlane32_swap_b32 v{P1}, v{P1+2}")
    a(f"v_add_f32 v{P1}, v{P1}, v{P1+2}\nv_add_f32 v{P1}, v{P1}, v{vX}")
    a(f"v_cvt_pk_bf16_f32 v{P1}, v{P1}, v{P1}")
    a(f"s_mov_b32 exec_hi, 0\ns_mov_b32 exec_lo, 0x00ff00ff")
    a(f"buffer_store_short v{P1}, v{vXO}, {S(SC_)}, s69 offen {osc}")
    a(f"s_or_b32 s65, s{sKG}, s{sWv}\ns_cmp_lg_u32 s65, 0\ns_cbranch_scc1 L_sdone")
    a("s_mov_b64 exec, 1")
    a(f"buffer_store_dword v{GR+3}, v{vZ}, {S(SW)}, 0 offen {osc}")
    a.label("L_sdone")
    stamp(7)
    pad("S")
    dump_stamps(9)
    a("s_endpgm")

    a.label("L_helper")
    in_helper[0] = True
    X, F, AF, AF2, BF, D, TG = 32, 64, 96, 112, 128, 184, 200
    a("s_setprio 3")
    a(f"v_mul_u32_u24 v6, 896, v5\nv_lshl_add_u32 v6, v4, 6, v6\nv_mov_b32 v7, 0x40000000\nv_cmp_gt_u32 s[74:75], 14, v4")
    a(f"v_cndmask_b32 v7, v7, v6, s[74:75]")
    a(f"v_lshrrev_b32 v8, 3, v0\nv_and_b32 v9, 7, v0\nv_lshlrev_b32 v9, 4, v9\nv_lshl_add_u32 v10, v8, 13, v9")
    a(f"v_mul_u32_u24 v11, 3584, v8\nv_add_u32 v11, v11, v9")
    a(f"s_mul_i32 s65, s{sB}, {112 * 8192}\ns_lshl_b32 s66, s{sIDX}, 7\ns_add_u32 s65, s65, s66")
    a("s_waitcnt lgkmcnt(0)")
    a(f"s_load_dword s{sTAG}, s[26:27], 0")
    srd(SA, 4, 3584)
    for u in range(4): a(f"buffer_load_dwordx4 {V4(X+4*u)}, v7, {S(SA)}, 0 offen offset:{16*u}")
    srd(SB, 10, 448 * 8192)
    def dma(sr, voff, so, stride, lds0, win=None):
        for k in range(14):
            if win and k >= win: a(f"s_waitcnt vmcnt({win-1})")
            a(f"s_mov_b32 m0, {lds0 + 1024 * k}")
            a(f"buffer_load_dwordx4 v{voff}, {S(sr)}, s{so} offen {wnt} lds")
            if k < 13: a(f"s_add_u32 s{so}, s{so}, {8 * stride}")
    if not noq: dma(SB, 10, 65, 8192, WL0)
    srd(SW, 26, WS_USED)
    nini = 0
    if fb:
        a(f"s_lshl_b32 s34, s{sH}, 9\ns_add_u32 s34, s34, {PMB}\ns_lshl_b32 s35, s{sB}, 2\ns_add_u32 s35, s35, s{sJ}\ns_lshl_b32 s68, s35, 2\ns_add_u32 s68, s68, s34")
        a(f"v_lshlrev_b32 v2, 7, v0\nv_mov_b32 v3, 0\ns_mov_b64 exec, 15")
        a(f"buffer_store_dword v3, v2, {S(SW)}, s68 offen"); nini += 1
        if gfb:
            a(f"s_cmp_eq_u32 s35, 0\ns_cselect_b32 s68, s34, 0x40000000")
            a(f"buffer_store_dword v3, v2, {S(SW)}, s68 offen offset:64"); nini += 1
        a("s_mov_b64 exec, -1")
    a(f"v_and_b32 v14, 3, v4\nv_lshrrev_b32 v15, 2, v4\ns_mul_i32 s65, s{sB}, 224")
    a(f"v_mul_u32_u24 v12, 896, v15\nv_add_u32 v12, s65, v12\nv_lshl_add_u32 v28, v5, 3, v12\nv_lshl_add_u32 v12, v5, 4, v12")
    a(f"s_lshr_b32 s65, s{sCG}, 1\ns_mul_i32 s65, s65, 224")
    a(f"v_mul_u32_u24 v30, 896, v14\nv_add_u32 v30, s65, v30\nv_lshl_add_u32 v31, v5, 3, v30\nv_lshl_add_u32 v30, v5, 4, v30")
    a(f"v_lshl_add_u32 v8, v5, 2, v14\nv_lshlrev_b32 v8, 4, v8\nv_lshl_add_u32 v8, v15, 16, v8")
    a(f"v_lshlrev_b32 v9, 5, v14\nv_lshl_add_u32 v9, v15, 3, v9\nv_lshl_add_u32 v9, v5, 7, v9")
    for t in range(1, 4): a(f"v_cmp_eq_u32 s[{26+2*t}:{27+2*t}], {t}, v14")
    a(f"v_lshlrev_b32 v15, 7, v15\nv_lshl_add_u32 v15, v14, 3, v15")
    a(f"v_lshl_add_u32 v13, v5, 10, v15\nv_lshl_add_u32 v29, v5, 9, v15")
    a(f"s_waitcnt vmcnt(14)" if not noq else "s_waitcnt vmcnt(0)")
    stamp(1)
    for k in range(16): a(f"v_lshlrev_b32 v{F+2*k}, 16, v{X+k}\nv_and_b32 v{F+2*k+1}, 0xffff0000, v{X+k}")
    a(f"v_pk_add_f32 v[14:15], {V2(F)}, {V2(F+2)}\nv_pk_add_f32 v[16:17], {V2(F+4)}, {V2(F+6)}")
    for k in range(4, 16, 2):
        a(f"v_pk_add_f32 v[14:15], v[14:15], {V2(F+2*k)}\nv_pk_add_f32 v[16:17], v[16:17], {V2(F+2*k+2)}")
    a("v_pk_add_f32 v[14:15], v[14:15], v[16:17]\nv_add_f32 v14, v14, v15")
    def rowsum(r):
        for sh in (8, 4, 2, 1): a(f"v_add_f32_dpp v{r}, v{r}, v{r} row_ror:{sh} {FULL}")
    rowsum(14)
    a(f"v_mul_f32 v18, {hex(f2u(-1.0 / 448))}, v14\nv_mov_b32 v19, v18")
    a("v_mov_b32 v14, 0\nv_mov_b32 v15, 0\nv_mov_b32 v16, 0\nv_mov_b32 v17, 0")
    for k in range(0, 16, 2):
        a(f"v_pk_add_f32 v[20:21], {V2(F+2*k)}, v[18:19]\nv_pk_add_f32 v[22:23], {V2(F+2*k+2)}, v[18:19]")
        a(f"v_pk_fma_f32 v[14:15], v[20:21], v[20:21], v[14:15]\nv_pk_fma_f32 v[16:17], v[22:23], v[22:23], v[16:17]")
    a("v_pk_add_f32 v[14:15], v[14:15], v[16:17]\nv_add_f32 v14, v14, v15\nv_cndmask_b32 v14, 0, v14, s[74:75]")
    rowsum(14)
    def rbf(r): a(f"v_cvt_pk_bf16_f32 v{r}, v{r}, v{r}\nv_and_b32 v{r}, 0xffff0000, v{r}")
    a(f"v_mul_f32 v14, {hex(f2u(1.0 / 448))}, v14"); rbf(14)
    a(f"v_add_f32 v14, {hex(f2u(1e-5))}, v14"); rbf(14)
    a("v_sqrt_f32 v14, v14"); rbf(14)
    a("v_rcp_f32 v16, v14\nv_mov_b32 v15, v14"); rbf(18)
    a("v_mov_b32 v17, v16\nv_mov_b32 v19, v18")
    for k in range(16):
        a(f"v_pk_add_f32 {V2(F+2*k)}, {V2(F+2*k)}, v[18:19]")
    for k in range(16):
        a(f"v_cvt_pk_bf16_f32 v{X+k}, v{F+2*k}, v{F+2*k+1}")
    for k in range(16): a(f"v_lshlrev_b32 v{F+2*k}, 16, v{X+k}\nv_and_b32 v{F+2*k+1}, 0xffff0000, v{X+k}")
    for k in range(16):
        t = 20 + 2 * (k & 3)
        a(f"v_pk_mul_f32 {V2(t)}, {V2(F+2*k)}, v[16:17]")
        a(f"v_pk_fma_f32 {V2(F+2*k)}, {V2(t)}, v[14:15], {V2(F+2*k)} neg_lo:[1,0,0] neg_hi:[1,0,0]")
        a(f"v_pk_fma_f32 {V2(t)}, {V2(F+2*k)}, v[16:17], {V2(t)}")
        a(f"v_cvt_pk_bf16_f32 v{X+k}, v{t}, v{t+1}")
    a("s_mov_b64 exec, s[74:75]")
    for u in range(4): a(f"ds_write_b128 v6, {V4(X+4*u)} offset:{XN + 16*u}")
    a("s_mov_b64 exec, -1")
    a("s_waitcnt lgkmcnt(0)")
    a(f"s_mul_i32 s{sTAG}, s{sTAG}, 0x9E3779B1\ns_add_u32 s{sTAG}, s{sTAG}, 0x7F4A7C15")
    for k in range(3): a(f"ds_read_b128 {V4(AF+4*k)}, v12 offset:{XN + 64*k}")
    a(f"ds_read_b64 {V2(AF+12)}, v28 offset:{XN + 192}")
    a(f"v_mov_b32 v{TG}, s{sTAG}\nv_lshrrev_b32 v{TG+1}, 8, v{TG}\nv_lshrrev_b32 v{TG+2}, 16, v{TG}\nv_lshrrev_b32 v{TG+3}, 24, v{TG}\ns_movk_i32 s78, 0xff")
    a(f"v_lshlrev_b32 v10, 4, v0")
    a(f"s_lshl_b32 s66, s{sH}, 12\ns_lshl_b32 s67, s{sB}, 10\ns_add_u32 s66, s66, s67\ns_lshl_b32 s67, s{sJ}, 8\ns_add_u32 s66, s66, s67\ns_add_u32 s66, s66, {QMB}")
    a(f"s_lshl_b32 s67, s{sBH}, 12\ns_add_u32 s67, s67, {QMB}")
    a("s_waitcnt vmcnt(0)")
    stamp(2)
    a(f"s_getreg_b32 s69, hwreg(HW_REG_XCC_ID, 0, 4)\nv_xor_b32 v{TG+4}, s69, v{TG+3}")
    def piece(af, transposed):
        for t in range(4):
            for k in range(3):
                o = WL0 + 4096 * k + 32 * t
                a(f"ds_read_b64_tr_b16 {V2(BF+14*t+4*k)}, v13 offset:{o}\nds_read_b64_tr_b16 {V2(BF+14*t+4*k+2)}, v13 offset:{o + 512}")
            a(f"ds_read_b64_tr_b16 {V2(BF+14*t+12)}, v29 offset:{WL0 + 12288 + 32 * t}")
        a("s_waitcnt lgkmcnt(0)")
        for k in range(3):
            for t in range(4):
                x, w = V4(af+4*k), V4(BF+14*t+4*k)
                a(f"v_mfma_f32_16x16x32_bf16 {V4(D+4*t)}, {w if transposed else x}, {x if transposed else w}, {'0' if k == 0 else V4(D+4*t)}")
        for t in range(4):
            x, w = V2(af+12), V2(BF+14*t+12)
            a(f"v_mfma_f32_16x16x16_bf16 {V4(D+4*t)}, {w if transposed else x}, {x if transposed else w}, {V4(D+4*t)}")
        for t in range(1, 4):
            for r in range(4):
                if transposed: a(f"v_cndmask_b32 v{D+r}, v{D+r}, v{D+4*t+r}, s[{26+2*t}:{27+2*t}]")
                else: a(f"v_mov_b32_dpp v{D+r}, v{D+4*t+r} {IDP} row_mask:{hex(1 << t)} bank_mask:0xf")
        for r in range(4): a(f"v_add_u32 v{D+r}, 0x80, v{D+r}")
        for r in range(4): a(f"v_bfi_b32 v{20+r}, s78, v{TG + r + (1 if transposed and r == 3 else 0)}, v{D+r}")
    piece(AF, True)
    if noq or not qst: a("s_branch L_pqok")
    a(f"buffer_store_dwordx4 v[20:23], v8, {S(SW)}, s66 offen{'' if fastq else ' sc1'}")
    stamp(3)
    for k in range(3): a(f"ds_read_b128 {V4(AF2+4*k)}, v30 offset:{XN + 64*k}")
    a(f"ds_read_b64 {V2(AF2+12)}, v31 offset:{XN + 192}")
    a(f"v_mov_b32 v16, 0\nv_mov_b32 v17, 0\nv_mov_b32 v18, 0\nv_mov_b32 v19, 0")
    a(f"s_mov_b32 exec_hi, 0xff\nds_write_b128 v10, v[16:19] offset:{HIMG}\ns_mov_b64 exec, -1")
    a(f"ds_write_b128 v16, v[16:19] offset:{PGL}")
    PQ = F
    def qload(k): a(f"buffer_load_dwordx4 {V4(PQ+4*k)}, v10, {S(SW)}, s67 offen offset:{1024 * k} sc1")
    def chk4(dst, src):
        a(f"v_xor_b32 v{dst}, v{src}, v{TG}")
        for t in range(1, 4): a(f"v_bitop3_b32 v{dst}, v{src+t}, v{TG+t}, v{dst} bitop3:0xbe")
        a(f"v_and_b32 v{dst}, s78, v{dst}")
    if sleepq: a(f"s_sleep {sleepq}")
    for k in range(4): qload(k)
    a(f"s_mov_b32 s{sCNT}, {spin}")
    a.label("L_pq")
    a("s_waitcnt vmcnt(0)")
    for k in range(4):
        a(f"v_xor_b32 v{X+4+k}, v{PQ+4*k+3}, v{TG+4}\nv_and_b32 v{X+k}, 0xf0, v{X+4+k}")
        for t in range(3): a(f"v_bitop3_b32 v{X+k}, v{PQ+4*k+t}, v{TG+t}, v{X+k} bitop3:0xbe")
        a(f"v_and_b32 v{X+k}, s78, v{X+k}")
    a(f"v_or3_b32 v24, v{X}, v{X+1}, v{X+2}\nv_or_b32 v24, v24, v{X+3}")
    a("v_cmp_ne_u32 vcc, 0, v24\ns_cbranch_vccz L_pqok", drain=False)
    if fastq:
        a(f"s_cmp_lg_u32 s{sCNT}, {spin - nq}\ns_cbranch_scc1 L_pqg", drain=False)
        a(f"buffer_store_dwordx4 v[20:23], v8, {S(SW)}, s66 offen sc1")
        a.label("L_pqg", drain=False)
    a(f"s_sleep 2")
    for k in range(4):
        a(f"v_cmp_ne_u32 vcc, 0, v{X+k}\ns_cbranch_vccz L_pqs{k}", drain=False)
        qload(k)
        a.label(f"L_pqs{k}", drain=False)
    a(f"s_sub_u32 s{sCNT}, s{sCNT}, 1\ns_cmp_lg_u32 s{sCNT}, 0\ns_cbranch_scc1 L_pq", drain=False)
    a.label("L_pqok", drain=False)
    for k in range(16): a(f"v_and_b32 v{PQ+k}, 0xffffff00, v{PQ+k}")
    for e in (0, 2):
        a(f"v_pk_add_f32 {V2(PQ+e)}, {V2(PQ+e)}, {V2(PQ+4+e)}\nv_pk_add_f32 {V2(PQ+8+e)}, {V2(PQ+8+e)}, {V2(PQ+12+e)}")
    for e in (0, 2): a(f"v_pk_add_f32 {V2(PQ+e)}, {V2(PQ+e)}, {V2(PQ+8+e)}")
    a(f"v_cvt_pk_bf16_f32 v24, v{PQ}, v{PQ+1}\nv_cvt_pk_bf16_f32 v25, v{PQ+2}, v{PQ+3}\nv_mov_b32 v17, 0")
    a(f"v_or3_b32 v26, v{X+4}, v{X+5}, v{X+6}\nv_or_b32 v26, v26, v{X+7}\nv_and_b32 v26, 15, v26\nv_cmp_ne_u32 vcc, 0, v26")
    a(f"s_or_b32 s69, vcc_lo, vcc_hi\nv_mov_b32 v26, v{TG}\nv_mov_b32 v27, s69")
    a(f"ds_write_b64 v9, v[24:25] offset:{QL}\nds_write_b64 v17, v[26:27] offset:{TAGL}")
    if fastq:
        a("s_cmp_eq_u32 s69, 0\ns_cbranch_scc1 L_qnear")
        a(f"buffer_store_dwordx4 v[20:23], v8, {S(SW)}, s66 offen sc1")
        a.label("L_qnear")
    a("s_waitcnt lgkmcnt(0)")
    stamp(4)
    if stamps: a(f"s_mov_b32 s92, s{sCNT}")
    a("s_barrier")
    a("s_setprio 0")
    if noffn: a("s_branch L_hend")
    a(f"s_cmp_ge_u32 s{sKG}, 28\ns_cbranch_scc1 L_hend")
    a(f"s_bitcmp1_b32 s{sCG}, 0\ns_cselect_b32 s{SC_}, s18, s16\ns_cselect_b32 s{SC_+1}, s19, s17\ns_mov_b32 s{SC_+2}, {448 * 3584}\ns_mov_b32 s{SC_+3}, 0x20000")
    a(f"s_lshr_b32 s66, s{sCG}, 1\ns_mul_i32 s65, s66, {112 * 3584}\ns_lshl_b32 s67, s{sKG}, 7\ns_add_u32 s65, s65, s67")
    if fdma: dma(SC_, 11, 65, 3584, WL0, win=HW)
    a(f"s_lshl_b32 s67, s{sKG}, 13\ns_add_u32 s67, s67, {FMB}\ns_lshl_b32 s66, s{sCG}, 10\ns_add_u32 s66, s66, s67\ns_add_u32 s68, s67, 4096")
    a("s_waitcnt vmcnt(0)")
    piece(AF2, False)
    if fst and fastf:
        a("s_cmp_lg_u32 s69, 0\ns_cbranch_scc1 L_ffar")
        a(f"buffer_store_dwordx4 v[20:23], v10, {S(SW)}, s66 offen\ns_branch L_fdone")
        a.label("L_ffar")
    if fst: a(f"buffer_store_dwordx4 v[20:23], v10, {S(SW)}, s66 offen sc1")
    if fst and fastf: a.label("L_fdone")
    if not fpoll: a("s_branch L_hend")
    a(f"s_cmp_eq_u32 s{sCG}, 7\ns_cbranch_scc1 L_hend")
    def fload(k): a(f"buffer_load_dwordx4 {V4(F+4*k)}, v10, {S(SW)}, s{67 + (k >> 2)} offen offset:{1024 * (k & 3)} sc1")
    a(f"s_sleep {sleepf}")
    for k in range(8): fload(k)
    a(f"s_mov_b32 s{sCNT}, {spin}\nv_lshlrev_b32 v9, 1, v0")
    a.label("L_pf")
    a("s_waitcnt vmcnt(0)")
    for k in range(8): chk4(X + k, F + 4 * k)
    a(f"v_or3_b32 v24, v{X}, v{X+1}, v{X+2}\nv_or3_b32 v24, v24, v{X+3}, v{X+4}\nv_or3_b32 v24, v24, v{X+5}, v{X+6}\nv_or_b32 v24, v24, v{X+7}")
    a("v_cmp_ne_u32 vcc, 0, v24\ns_cbranch_vccz L_pfok", drain=False)
    a(f"s_sleep 16")
    for k in range(8):
        a(f"v_cmp_ne_u32 vcc, 0, v{X+k}\ns_cbranch_vccz L_pfs{k}", drain=False)
        fload(k)
        a.label(f"L_pfs{k}", drain=False)
    a(f"s_sub_u32 s{sCNT}, s{sCNT}, 1\ns_cbranch_scc0 L_pf", drain=False)
    a.label("L_pfok", drain=False)
    for k in range(32): a(f"v_and_b32 v{F+k}, 0xffffff00, v{F+k}")
    for e in range(0, 8, 2):
        a(f"v_pk_add_f32 {V2(F+e)}, {V2(F+e)}, {V2(F+8+e)}\nv_pk_add_f32 {V2(F+16+e)}, {V2(F+16+e)}, {V2(F+24+e)}")
    for e in range(0, 8, 2): a(f"v_pk_add_f32 {V2(F+e)}, {V2(F+e)}, {V2(F+16+e)}")
    for r in range(8): rbf(F + r)
    k1 = -2.0 * math.sqrt(2.0 / math.pi) * math.log2(math.e)
    for r in range(4):
        g, u, t = F + r, F + 4 + r, F + 8 + r
        a(f"v_mul_f32 v{t}, v{g}, v{g}\nv_mul_f32 v{t}, {hex(f2u(0.044715))}, v{t}\nv_fma_f32 v{t}, v{t}, v{g}, v{g}")
        a(f"v_mul_f32 v{t}, {hex(f2u(k1))}, v{t}\nv_exp_f32 v{t}, v{t}\nv_add_f32 v{t}, 1.0, v{t}\nv_rcp_f32 v{t}, v{t}\nv_mul_f32 v{g}, v{g}, v{t}")
        rbf(g)
        a(f"v_mul_f32 v{g}, v{g}, v{u}")
    a(f"v_cvt_pk_bf16_f32 v32, v{F}, v{F+1}\nv_cvt_pk_bf16_f32 v34, v{F+2}, v{F+3}")
    a(f"ds_write_b16 v9, v32 offset:{HIMG}\nds_write_b16_d16_hi v9, v32 offset:{HIMG + HROW}")
    a(f"ds_write_b16 v9, v34 offset:{HIMG + 2 * HROW}\nds_write_b16_d16_hi v9, v34 offset:{HIMG + 3 * HROW}")
    a("s_waitcnt lgkmcnt(0)")
    a.label("L_hend")
    a("s_mov_b64 exec, -1")
    if fb and gfb == 2:
        a(f"s_cmp_lg_u32 s69, 0\ns_cbranch_scc1 L_gend\ns_cmp_ge_u32 s35, {nR}\ns_cbranch_scc1 L_gend")
        a(f"v_lshlrev_b32 v6, 2, v4\nv_lshl_add_u32 v6, v5, 7, v6\nv_mov_b32 v41, v{TG}\nv_mov_b32 v7, 0")
        a(f"s_lshl_b32 s66, s{sH}, 7\ns_add_u32 s66, s66, {GMB}\ns_mov_b32 s67, {GMB}\ns_mov_b32 s{sCNT}, 4000\ns_mul_i32 s70, s35, {dL}\ns_add_u32 s70, s70, {L0}")
        a.label("L_gw")
        a(f"ds_read_b32 v40, v7 offset:{PGL}\ns_waitcnt lgkmcnt(0)\nv_readfirstlane_b32 s65, v40\ns_cmp_ge_u32 s65, s70\ns_cbranch_scc1 L_gr")
        a(f"s_sleep 4\ns_sub_u32 s{sCNT}, s{sCNT}, 1\ns_cbranch_scc0 L_gw")
        a.label("L_gr")
        a(f"buffer_load_dword v40, v6, {S(SW)}, s34 offen sc1")
        a("s_mov_b64 exec, 0xffff")
        a(f"buffer_load_dwordx2 v[42:43], v2, {S(SW)}, s67 offen sc1")
        a("s_mov_b64 exec, -1\ns_waitcnt vmcnt(1)")
        for sh in (8, 4, 2, 1): a(f"v_add_u32_dpp v40, v40, v40 row_ror:{sh} {FULL}")
        a("v_add_u32_dpp v40, v40, v40 row_bcast:15 row_mask:0xa bank_mask:0xf\nv_add_u32_dpp v40, v40, v40 row_bcast:31 row_mask:0xc bank_mask:0xf")
        a("v_readlane_b32 s71, v40, 63\nv_mov_b32 v40, s71")
        a("s_mov_b64 exec, 1")
        a(f"buffer_store_dwordx2 v[40:41], v7, {S(SW)}, s66 offen sc1")
        a("s_mov_b64 exec, -1\ns_waitcnt vmcnt(1)")
        a(f"v_subrev_u32 v44, {64 * dL}, v40\nv_cmp_eq_u32 vcc, v43, v41\nv_cndmask_b32 v42, v44, v42, vcc\nv_sub_u32 v42, v42, v40")
        for sh in (8, 4, 2, 1): a(f"v_add_u32_dpp v42, v42, v42 row_ror:{sh} {FULL}")
        a(f"v_ashrrev_i32 v42, {4 + gsh}, v42\nv_add_u32 v42, {goff}, v42")
        a("s_mov_b64 exec, 15")
        a(f"buffer_store_dword v42, v2, {S(SW)}, s34 offen offset:64")
        a("s_mov_b64 exec, -1")
        a.label("L_gend")
    if fb and gfb == 3:
        a(f"s_cmp_lg_u32 s69, 0\ns_cbranch_scc1 L_gend\ns_cmp_ge_u32 s35, {nR}\ns_cbranch_scc1 L_gend")
        a(f"v_lshlrev_b32 v6, 2, v4\nv_lshl_add_u32 v6, v5, 7, v6\nv_mov_b32 v7, 0")
        a(f"s_mov_b32 s{sCNT}, 4000\ns_mul_i32 s70, s35, {dL}\ns_add_u32 s70, s70, {L0}\ns_lshl_b32 s66, s35, 2")
        a.label("L_gw")
        a(f"ds_read_b32 v40, v7 offset:{PGL}\ns_waitcnt lgkmcnt(0)\nv_readfirstlane_b32 s65, v40\ns_cmp_ge_u32 s65, s70\ns_cbranch_scc1 L_gr")
        a(f"s_sleep 4\ns_sub_u32 s{sCNT}, s{sCNT}, 1\ns_cbranch_scc0 L_gw")
        a.label("L_gr")
        if gpoll:
            a(f"s_lshl_b32 s70, s70, 6\ns_add_u32 s70, s70, 16\ns_mov_b32 s{sCNT}, 3")
            a.label("L_gp")
            a(f"buffer_load_dword v40, v6, {S(SW)}, s34 offen sc1\ns_waitcnt vmcnt(0)")
            for sh in (8, 4, 2, 1): a(f"v_add_u32_dpp v40, v40, v40 row_ror:{sh} {FULL}")
            a("v_add_u32_dpp v40, v40, v40 row_bcast:15 row_mask:0xa bank_mask:0xf\nv_add_u32_dpp v40, v40, v40 row_bcast:31 row_mask:0xc bank_mask:0xf")
            a(f"v_readlane_b32 s71, v40, 63\ns_cmp_ge_u32 s71, s70\ns_cbranch_scc1 L_ga\ns_sub_u32 s{sCNT}, s{sCNT}, 1\ns_cbranch_scc0 L_gp")
            a.label("L_ga")
        a("s_mov_b32 s71, 1\ns_atomic_add s71, s[24:25], s66 glc\ns_waitcnt lgkmcnt(0)")
        a(f"s_sub_u32 s71, s71, {r0}\ns_mul_i32 s71, s71, {gain}\ns_ashr_i32 s71, s71, 2\nv_mov_b32 v42, s71")
        a("s_mov_b64 exec, 15")
        a(f"buffer_store_dword v42, v2, {S(SW)}, s34 offen offset:64")
        a("s_mov_b64 exec, -1")
        a.label("L_gend")
    if fb and gfb == 1:
        NIT = (15 - NP) + 1 + 15
        a("s_or_b32 s65, s35, s69\ns_cmp_lg_u32 s65, 0\ns_cbranch_scc1 L_gend")
        a(f"v_lshlrev_b32 v6, 2, v4\nv_lshl_add_u32 v6, v5, 7, v6\nv_mov_b32 v41, v{TG}\nv_mov_b32 v7, 0")
        a(f"s_lshl_b32 s66, s{sH}, {3 if gsc else 7}\ns_add_u32 s66, s66, {GMB}\ns_mov_b32 s67, {GMB}\ns_mov_b32 s{sCNT}, 200\ns_mov_b32 s70, -1")
        a.label("L_g")
        a(f"buffer_load_dword v40, v6, {S(SW)}, s34 offen sc1")
        if gsc:
            a(f"s_waitcnt lgkmcnt(0)\ns_load_dwordx16 s[4:19], s[26:27], {GMB} glc\ns_load_dwordx16 s[40:55], s[26:27], {GMB + 64} glc\ns_waitcnt vmcnt(0)")
        else:
            a("s_mov_b64 exec, 0xffff")
            a(f"buffer_load_dwordx2 v[42:43], v2, {S(SW)}, s67 offen sc1")
            a("s_mov_b64 exec, -1\ns_waitcnt vmcnt(1)")
        a(f"v_cmp_le_u32 vcc, {NIT - gexit}, v40\ns_or_b32 s65, vcc_lo, vcc_hi\ns_and_b32 s65, s65, 0x10001\ns_cbranch_scc1 L_gend")
        for sh in (8, 4, 2, 1): a(f"v_add_u32_dpp v40, v40, v40 row_ror:{sh} {FULL}")
        a("v_add_u32_dpp v40, v40, v40 row_bcast:15 row_mask:0xa bank_mask:0xf\nv_add_u32_dpp v40, v40, v40 row_bcast:31 row_mask:0xc bank_mask:0xf")
        a("v_readlane_b32 s71, v40, 63\nv_mov_b32 v40, s71")
        a("s_mov_b64 exec, 1")
        a(f"buffer_store_dwordx2 v[40:41], v7, {S(SW)}, s66 offen sc1")
        a("s_mov_b64 exec, -1\ns_waitcnt vmcnt(1)")
        a("s_cmp_eq_u32 s70, -1\ns_cbranch_scc1 L_gskip")
        if gavg: a("s_add_u32 s70, s70, s71\ns_lshr_b32 s70, s70, 1")
        if gsc:
            a("s_waitcnt lgkmcnt(0)\ns_mov_b32 s65, 0")
            for k in range(16):
                r = (4 + 2 * k) if k < 8 else (40 + 2 * (k - 8))
                a(f"s_cmp_eq_u32 s{r+1}, s{sTAG}\ns_cselect_b32 s{r}, s{r}, s70\ns_add_u32 s65, s65, s{r}")
            a(f"s_lshl_b32 s70, s70, 4\ns_sub_u32 s65, s65, s70\ns_ashr_i32 s65, s65, {4 + gsh}\ns_add_u32 s65, s65, {goff}\nv_mov_b32 v42, s65")
        else:
          a(f"v_mov_b32 v44, s70\nv_cmp_eq_u32 vcc, v43, v41\nv_cndmask_b32 v42, v44, v42, vcc\nv_sub_u32 v42, v42, v44")
          for sh in (8, 4, 2, 1): a(f"v_add_u32_dpp v42, v42, v42 row_ror:{sh} {FULL}")
          a(f"v_ashrrev_i32 v42, {4 + gsh}, v42")
          if goff: a(f"v_add_u32 v42, {goff}, v42")
        a("s_mov_b64 exec, 15")
        a(f"buffer_store_dword v42, v2, {S(SW)}, s34 offen offset:64")
        a("s_mov_b64 exec, -1")
        a.label("L_gskip")
        a("s_mov_b32 s70, s71")
        if gsleep: a(f"s_sleep {gsleep}")
        a(f"s_sub_u32 s{sCNT}, s{sCNT}, 1\ns_cbranch_scc0 L_g")
        a.label("L_gend")
        if gsc: a("s_waitcnt lgkmcnt(0)")
    stamp(5)
    pad("H")
    dump_stamps(7)
    a.label("L_end")
    a("s_endpgm")
    a.raw('.section .rodata,"a"'); a.raw(".p2align 6"); a.raw(f".amdhsa_kernel {NAME}")
    a.raw("  .amdhsa_next_free_vgpr 256"); a.raw("  .amdhsa_next_free_sgpr 102"); a.raw("  .amdhsa_accum_offset 256")
    a.raw("  .amdhsa_group_segment_fixed_size 0"); a.raw("  .amdhsa_kernarg_size 96"); a.raw("  .amdhsa_user_sgpr_count 2")
    a.raw("  .amdhsa_user_sgpr_kernarg_segment_ptr 1"); a.raw("  .amdhsa_system_sgpr_workgroup_id_x 1"); a.raw(".end_amdhsa_kernel")
    return a.text()

if __name__ == "__main__":
    out = sys.argv[1]
    kw = eval("dict(" + (sys.argv[2] if len(sys.argv) > 2 else "") + ")")
    open(out, "w").write(gen(**kw))
```

```python
import sys, struct, math
sys.path.insert(0, "gen")
from asmlib import Asm

NAME = "parallel_sum__mha_block_cached__geglu_ffn__decode_kernel"
HEADER = open("parallel_sum__mha_block_cached__geglu_ffn__decode.s.ref").read().split("; Override launch")[0]

def f2u(x): return struct.unpack("<I", struct.pack("<f", x))[0]

PMB = 0x8000
GMB = 0xC000
QMB = 0x10000
FMB = QMB + 64 * 4096
MB1 = 0xA0000
MB2 = 0x120000
TSB = 0x400000
WS_USED = TSB + 0x10000
assert FMB + 28 * 8192 <= MB1
PGL = 4112
XN, QL, TAGL, ML, HIMG, AIMG, OP, SC = 0, 3584, 4096, 4128, 4224, 4864, 6144, 10240
HROW, AROW = 144, 272
WL0 = SC + 16384
WL1 = WL0 + 14336
WL2 = WL1 + 16384
LDS_BYTES = WL2 + 8192

FULL = "row_mask:0xf bank_mask:0xf"
IDP = "quad_perm:[0,1,2,3]"

def gen(W=5, NP=5, nt="nt", wnt="nt", stamps=False, warm=True, sleep1=0, sleep2=0, sleepq=30, spin=1 << 16,
        padto=0, padwg=None, padstamp=None, HW=4, noffn=0, noq=0, nowo=0, touch=1, sleepf=60, fdma=1, fst=1, fpoll=1, qst=1, pat=5, Wend=None, nend=0, W0=None, osc='', scr=1, remap=2, D2=2, stag2=4, early1=0, role=3, fast=1, hoist=1, clean=0, fastq=1, fastf=1, nq=5, tlb=0, fb=1, Wup=6, thup=0, gfb=3, gsleep=8, goff=0, gsh=2, gavg=0, gsc=0, gexit=2, L0=6, dL=2, nR=9, nost2=0, nored=0, wos=(3,4,5,6,7,7), r0=8, gain=6, gpoll=1, st0=0, warm2=16, late=1, codekb=13, amp=0, lite=0, Wdn=4, thdn=-15, endp=None, pw=None, thw=None, hb=0, pre1=0, rew=0):
    assert not (fast or fastf) or role == 3
    assert early1 != 2 or hoist
    assert hb != 1 or set(wos) == {-2}
    assert hb != 2 or wos[:2] == (-2, -2)
    in_helper = [False]
    a = Asm()
    a.raw(HEADER.rstrip("\n"))
    a.raw(f"; @launch grid=(256,1,1) block=(320,1,1) lds={LDS_BYTES}")
    a.raw('.amdgcn_target "amdgcn-amd-amdhsa--gfx950"')
    a.raw(".text"); a.raw(f".globl {NAME}"); a.raw(".p2align 8"); a.raw(f".type {NAME},@function")
    a.raw(f"{NAME}:")
    SK, SV, SW, SA, SB, SC_, SD = 28, 32, 36, 40, 44, 48, 52
    sB, sH, sJ, sIDX, sBH, sTAG, sCNT, sKO, sVO, sWv, sKG, sCG = 56, 57, 58, 59, 60, 61, 62, 63, 64, 72, 73, 79
    def srd(r, ptr, size):
        a(f"s_mov_b32 s{r}, s{ptr}\ns_mov_b32 s{r+1}, s{ptr+1}\ns_mov_b32 s{r+2}, {size}\ns_mov_b32 s{r+3}, 0x20000")
    def S(r): return f"s[{r}:{r+3}]"
    def V4(r): return f"v[{r}:{r+3}]"
    def V2(r): return f"v[{r}:{r+1}]"
    def stamp(k):
        if stamps or padstamp is not None:
            a(f"s_memrealtime s[{80+2*k}:{81+2*k}]")
    def dump_stamps(n):
        if not stamps: return
        a("s_waitcnt lgkmcnt(0)")
        a("s_mov_b64 exec, 1")
        a(f"s_mul_i32 s65, s2, 5\ns_add_u32 s65, s65, s3\ns_mul_i32 s65, s65, 48\ns_add_u32 s65, s65, {TSB}")
        a("v_mov_b32 v1, 0")
        for k in range(n):
            a(f"v_mov_b32 v2, s{80+2*k}")
            if lite and k not in (0, 4, 7): continue
            a(f"buffer_store_dword v2, v1, {S(SW)}, s65 offen offset:{4*k}")
        if not lite:
            a(f"v_mov_b32 v2, s{sCNT}\nbuffer_store_dword v2, v1, {S(SW)}, s65 offen offset:44")
            a("s_waitcnt vmcnt(0)")
    def pad(role):
        if not padto: return
        r, k = padstamp if padstamp is not None else ("S", 0)
        if r != role: return
        if padwg is not None: a(f"s_cmp_lg_u32 s2, {padwg}\ns_cbranch_scc1 L_end")
        if amp: a(f"s_waitcnt lgkmcnt(0)\ns_sub_u32 s65, s{80+2*k}, s80\ns_mul_i32 s65, s65, {amp - 1}\ns_add_u32 s{80+2*k}, s{80+2*k}, s65")
        a.label(f"L_pad{role}")
        a(f"s_sleep 1\ns_memrealtime s[98:99]\ns_waitcnt lgkmcnt(0)\ns_sub_u32 s98, s98, s{80+2*k}\ns_cmp_lt_i32 s98, {padto}\ns_cbranch_scc1 L_pad{role}")

    a("s_cmp_ge_u32 s2, 256\ns_cbranch_scc1 L_end")
    a("s_load_dwordx16 s[4:19], s[0:1], 0\ns_load_dwordx8 s[20:27], s[0:1], 64")
    stamp(0)
    a("v_lshrrev_b32 v1, 6, v0\nv_and_b32 v0, 63, v0\nv_readfirstlane_b32 s3, v1")
    if role == 1:
        a(f"s_and_b32 s65, s2, 7\ns_lshl_b32 s65, s65, 2\ns_bfe_u32 s{sKG}, s2, 0x20003\ns_or_b32 s{sKG}, s{sKG}, s65\ns_lshr_b32 s{sCG}, s2, 5")
    if role == 2:
        a(f"s_and_b32 s65, s2, 15\ns_lshl_b32 s65, s65, 1\ns_bfe_u32 s{sKG}, s2, 0x10004\ns_or_b32 s{sKG}, s{sKG}, s65\ns_lshr_b32 s{sCG}, s2, 5")
    if pat >= 3 and remap == 3:
        a("s_bfe_u32 s65, s2, 0x20003\ns_xor_b32 s2, s2, s65")
    if pat >= 3 and remap == 2:
        a("s_bfe_u32 s65, s2, 0x20003\ns_and_b32 s66, s2, 7\ns_lshl_b32 s66, s66, 2\ns_and_b32 s2, s2, 0xe0\ns_or_b32 s2, s2, s65\ns_or_b32 s2, s2, s66")
    a(f"s_lshr_b32 s{sB}, s2, 6\ns_lshr_b32 s{sBH}, s2, 2\ns_and_b32 s{sH}, s{sBH}, 15\ns_and_b32 s{sJ}, s2, 3\ns_and_b32 s{sIDX}, s2, 63")
    if role == 3:
        a(f"s_lshl_b32 s{sKG}, s{sH}, 1\ns_and_b32 s65, s{sJ}, 1\ns_or_b32 s{sKG}, s{sKG}, s65\ns_lshl_b32 s{sCG}, s{sB}, 1\ns_lshr_b32 s65, s{sJ}, 1\ns_or_b32 s{sCG}, s{sCG}, s65")
    if role == 0: a(f"s_lshr_b32 s{sKG}, s2, 3\ns_add_u32 s{sCG}, s2, s{sKG}\ns_and_b32 s{sCG}, s{sCG}, 7")
    a("v_and_b32 v4, 15, v0\nv_lshrrev_b32 v5, 4, v0")
    a("s_cmp_eq_u32 s3, 0\ns_cbranch_scc1 L_helper")

    vKO, vVO, vSC, vMAX, vL, vC, vMC, vS = 1, 2, 3, 6, 7, 28, 29, 30
    vJ, vG = 4, 5
    MASK, OACC, BB, QF, DA, TMP, R = 8, 12, 20, 32, 64, 84, 96
    def ring(tile, u): return R + 32 * tile + 4 * u
    a(f"s_sub_u32 s{sWv}, s3, 1")
    kb, wb = {0: ((9, 10), (11, 12)), 1: ((12, 13), (10, 11)), 2: ((12, 13), (14, 15)), 3: ((15, 13), (11, 14)), 4: ((15, 9), (11, 13)), 5: ((15, 13), (11, 14))}[pat]
    sM = 100
    a(f"v_and_b32 v{TMP+1}, 3, v{vJ}\nv_lshlrev_b32 v{TMP+1}, 4, v{TMP+1}")
    a(f"v_lshl_add_u32 v{TMP+1}, v{vG}, 6, v{TMP+1}")
    a(f"v_bfe_u32 v{TMP}, v0, 2, 1\nv_lshl_add_u32 v{vKO}, v{TMP}, {kb[0]}, v{TMP+1}\nv_bfe_u32 v{TMP}, v0, 3, 1\nv_lshl_add_u32 v{vKO}, v{TMP}, {kb[1]}, v{vKO}")
    if pat == 5:
        a(f"s_lshl_b32 s{sKO}, s{sBH}, 21\ns_and_b32 s65, s{sJ}, 1\ns_lshl_b32 s65, s65, 12\ns_add_u32 s{sKO}, s{sKO}, s65\ns_lshr_b32 s65, s{sJ}, 1\ns_lshl_b32 s65, s65, 16\ns_add_u32 s{sKO}, s{sKO}, s65")
    else: a(f"s_lshl_b32 s{sKO}, s2, 19")
    a(f"s_and_b32 s65, s{sWv}, 1\ns_lshl_b32 s65, s65, {wb[0]}\ns_add_u32 s{sKO}, s{sKO}, s65")
    a(f"s_lshr_b32 s65, s{sWv}, 1\ns_lshl_b32 s65, s65, {wb[1]}\ns_add_u32 s{sKO}, s{sKO}, s65")
    if pat in (3, 4):
        if scr:
            a(f"s_mul_i32 s65, s{sBH}, 0x9E3779B1\ns_and_b32 s{sM}, s65, 0x300000\ns_lshr_b32 s{sM}, s{sM}, 3\ns_or_b32 s{sM}, s{sM}, 0x10000")
            a(f"s_lshr_b32 s65, s65, 6\ns_and_b32 s65, s65, 0x70000\ns_or_b32 s{sKO}, s{sKO}, s65")
        else:
            a(f"s_mov_b32 s{sM}, 0x10000")
    a(f"s_mov_b32 s{sVO}, s{sKO}")
    a("s_waitcnt lgkmcnt(0)")
    if st0: stamp(5)
    srd(SK, 6, 1 << 27)
    vm = []
    def issue(kind, reg, u, tagid):
        sr, vo, so = (SK, vKO, sKO) if kind == "K" else (SV, vVO, sVO)
        o = {0: 256 * (u & 1), 1: 256 * (u & 3), 2: 256 * u, 3: 256 * u, 4: 256 * (u & 1) + 512 * (u & 2), 5: 256 * u}[pat]
        off = f" offset:{o}" if o else ""
        a(f"buffer_load_dwordx4 {V4(reg)}, v{vo}, {S(sr)}, s{so} offen{off} {nt}")
        if pat == 0 and u & 1: a(f"s_add_u32 s{so}, s{so}, 8192")
        if pat == 1 and (u & 3) == 3: a(f"s_add_u32 s{so}, s{so}, 16384")
        if pat == 4 and (u & 3) == 3: a(f"s_xor_b32 s{so}, s{so}, 0x4000")
        if pat == 5 and u == 7: a(f"s_add_u32 s{so}, s{so}, 0x20000")
        if pat in (3, 4) and u == 7:
            a(f"s_xor_b32 s{so}, s{so}, 0x1000\ns_bitcmp1_b32 s{so}, 12\ns_cselect_b32 s65, 0, s{sM}\ns_add_u32 s65, s65, s{so}\ns_and_b32 s65, s65, 0x70000\ns_andn2_b32 s{so}, s{so}, 0x70000\ns_or_b32 s{so}, s{so}, s65")
        if pat == 2 and u == 7:
            a(f"s_bitcmp1_b32 s{so}, 11\ns_cselect_b32 s65, {65536 - 4096}, 0\ns_add_u32 s{so}, s{so}, s65\ns_add_u32 s{so}, s{so}, 2048")
        vm.append(tagid)
    def wait_for(tagid):
        if tagid not in vm: return
        n = len(vm) - 1 - vm.index(tagid)
        assert n < 64
        a(f"s_waitcnt vmcnt({n})")
    nload = [0]
    curW = [W]
    adapt = [False]; nlab = [0]
    ctl = dict(Wup=Wup, thup=thup, Wdn=Wdn, thdn=thdn)
    def throttle_issue(kind, reg, u):
        n = nload[0]
        if adapt[0]:
            nlab[0] += 1
            a(f"s_cbranch_scc1 L_w{nlab[0]}", drain=False)
            if ctl["Wdn"]:
                a(f"s_cbranch_vccz L_m{nlab[0]}", drain=False); a.hist[-1].states = 0
                wait_for(("s", n - ctl["Wdn"])); a.hist[-1].states = 0
                a.label(f"L_m{nlab[0]}", drain=False)
            wait_for(("s", n - curW[0]))
            a.hist[-1].states = 0
            a.label(f"L_w{nlab[0]}", drain=False)
            wait_for(("s", n - ctl["Wup"]))
        else: wait_for(("s", n - curW[0]))
        issue(kind, reg, u, ("s", n)); nload[0] += 1
    W0 = W0 or W
    curW[0] = W0
    for n in range(W0):
        throttle_issue("K", ring(n // 8, n % 8), n % 8)
    curW[0] = W
    if warm2:
        a(f"s_and_b32 s65, s2, 0xe2\ns_lshl_b32 s65, s65, 2\ns_or_b32 s65, s65, s{sWv}\ns_cbranch_scc1 L_nowarm2", drain=False)
        a("s_getpc_b64 s[66:67]")
        a.label("L_pc", drain=False)
        a("v_lshlrev_b32 v2, 7, v0\nglobal_load_dword v31, v2, s[66:67]\nv_add_u32 v2, 0x2000, v2\nv_min_u32 v2, L_end-L_pc, v2")
        a("global_load_dword v31, v2, s[66:67]")
        a.label("L_nowarm2", drain=False)
    if warm and not warm2:
        a(f"s_cmp_lg_u32 s3, 1\ns_cbranch_scc1 L_nowarm")
        a(f"s_getpc_b64 s[66:67]\nv_lshlrev_b32 v{TMP+2}, 7, v0")
        a(f"global_load_dword v{TMP+3}, v{TMP+2}, s[66:67]")
        a.label("L_nowarm")
    def setup(a, srd):
        a(f"v_lshlrev_b32 v{vVO}, 4, v{vJ}\nv_bfe_u32 v{TMP}, v0, 4, 1\nv_lshl_add_u32 v{vVO}, v{TMP}, {kb[0]}, v{vVO}\nv_bfe_u32 v{TMP}, v0, 5, 1\nv_lshl_add_u32 v{vVO}, v{TMP}, {kb[1]}, v{vVO}")
        srd(SV, 8, 1 << 27); srd(SW, 26, WS_USED); srd(SC_, 22, 3584); srd(SD, 4, 3584)
        srd(SA, 12, 4096 * 896); srd(SB, 20, 1792 * 896)
        for k in range(32): a(f"v_mov_b32 v{QF+k}, 0")
        for k in range(8): a(f"v_mov_b32 v{OACC+k}, 0")
        a(f"v_mov_b32 v{vMAX}, 0xff800000\nv_mov_b32 v{vL}, 0\nv_mov_b32 v{vC}, {hex(f2u(math.log2(math.e) / 16))}")
        a(f"v_and_b32 v{TMP+4}, 1, v{vJ}\nv_lshlrev_b32 v{TMP+4}, 4, v{TMP+4}\nv_mov_b32 v{TMP+5}, 0xffff\nv_lshlrev_b32 v{TMP+4}, v{TMP+4}, v{TMP+5}")
        a(f"v_bfe_u32 v{TMP+5}, v{vJ}, 1, 2")
        for w in range(4):
            a(f"v_cmp_eq_u32 vcc, {w}, v{TMP+5}\nv_cndmask_b32 v{MASK+w}, 0, v{TMP+4}, vcc")
        a(f"s_lshl_b32 s65, s{sWv}, 12\ns_add_u32 s65, s65, {SC}\nv_lshl_add_u32 v{vSC}, v0, 2, s65")
    chunks = []
    def rec(t): chunks.append(t)
    def recsrd(r, ptr, size): rec(f"s_mov_b32 s{r}, s{ptr}\ns_mov_b32 s{r+1}, s{ptr+1}\ns_mov_b32 s{r+2}, {size}\ns_mov_b32 s{r+3}, 0x20000")
    setup(rec, recsrd)
    if not late:
        for t in chunks: a(t)
        chunks = []
    for n in range(W0, 8 * NP):
        if st0 and n == W0: stamp(3)
        throttle_issue("K", ring(n // 8, n % 8), n % 8)
        if st0 and n == W0: stamp(6)
        if st0 and n == W0 + 4: stamp(8)
        if st0 and n == W0 + 9: stamp(4)
        if n >= 16:
            cnt = 0
            while chunks and cnt < 6:
                t = chunks.pop(0); a(t); cnt += t.count("\n") + 1
    assert not chunks
    if st0:
        _st = stamp
        def stamp(k):
            if k in (1, 2, 7) or in_helper[0]: _st(k)
    stamp(1)
    a("s_barrier")
    stamp(2)
    for t in range(4):
        m = 0x000F000F << (4 * t)
        a(f"s_mov_b32 exec_lo, {hex(m)}\ns_mov_b32 exec_hi, {hex(m)}")
        for half in range(2):
            a(f"ds_read_b128 {V4(QF + 4 * (2 * t + half))}, v{TMP+1} offset:{QL + 256 * half}")
    a("s_mov_b64 exec, -1")
    a(f"v_mov_b32 v{TMP}, 0\nds_read_b64 {V2(TMP+2)}, v{TMP} offset:{TAGL}")
    a("s_waitcnt lgkmcnt(0)")
    a(f"v_readfirstlane_b32 s{sTAG}, v{TMP+2}\nv_readfirstlane_b32 s101, v{TMP+3}")

    def consK(reg, u, d):
        c = "0" if u == 0 else V4(d)
        a(f"v_mfma_f32_16x16x32_bf16 {V4(d)}, {V4(reg)}, {V4(QF + 4 * u)}, {c}")
    def extract(ds, off0):
        for k, d in enumerate(ds): a(f"v_mov_b32_dpp v{TMP+k}, v{d} quad_perm:[0,0,0,0] {FULL}")
        for c in range(1, 4):
            for k, d in enumerate(ds): a(f"v_add_f32_dpp v{TMP+k}, v{d+c}, v{TMP+k} quad_perm:[{c},{c},{c},{c}] {FULL}")
        for k, d in enumerate(ds): a(f"v_cvt_pk_bf16_f32 v{TMP+k}, v{TMP+k}, v{TMP+k}")
        for k, d in enumerate(ds): a(f"v_and_b32 v{TMP+k}, 0xffff0000, v{TMP+k}")
        for k, d in enumerate(ds):
            a(f"ds_write_b32 v{vSC}, v{TMP+k} offset:{off0 + 256 * k}")
            a(f"v_max_f32 v{vMAX}, v{vMAX}, v{TMP+k}")
        a(f"v_add_u32 v{vSC}, {256 * len(ds)}, v{vSC}")
    for u in range(8):
        consK(ring(0, u), u, DA)
        throttle_issue("K", ring(0, u), u)
        for T in range(1, NP): consK(ring(T, u), u, DA + 4 * T)
    extract([DA + 4 * T for T in range(NP)], 0)

    T0 = R + 32
    vX, vXO, vOPW, vMLW, vOPR, vZ, vL16, vST2, vTR, vTR2, vTRD, vTRD2, vHA, vAR, vAW, vWO, vWD = range(T0, T0 + 17)
    vML = T0 + 18
    G = T0 + 20
    GR = T0 + 36
    P1 = T0 + 40
    AH = T0 + 56
    AO = T0 + 64
    BW = T0 + 80
    BD = T0 + 96
    Y = T0 + 104
    E = T0 + 108
    def tail_addr():
        a(f"s_lshl_b32 s65, s{sWv}, 10\ns_add_u32 s65, s65, {OP}\nv_lshl_add_u32 v{vOPW}, v0, 4, s65")
        a(f"s_lshl_b32 s65, s{sWv}, 3\ns_add_u32 s65, s65, {ML}\nv_mov_b32 v{vMLW}, s65")
        a(f"s_lshl_b32 s65, s{sWv}, 8\ns_add_u32 s65, s65, {OP}\nv_lshl_add_u32 v{vOPR}, v0, 3, s65")
        a(f"v_mov_b32 v{vZ}, 0\nv_lshlrev_b32 v{vL16}, 4, v0\nv_mov_b32 v{GR+3}, s{sTAG}")
        a(f"s_lshl_b32 s70, s2, 11\ns_lshl_b32 s65, s{sWv}, 9\ns_add_u32 s70, s70, s65\ns_add_u32 s70, s70, {MB1}")
        a(f"s_lshl_b32 s71, s{sWv}, 17\ns_lshr_b32 s65, s{sKG}, 1\ns_lshl_b32 s65, s65, 13\ns_add_u32 s71, s71, s65")
        a(f"s_and_b32 s65, s{sKG}, 1\ns_lshl_b32 s65, s65, 10\ns_add_u32 s71, s71, s65\ns_add_u32 s71, s71, {MB1}\ns_add_u32 s74, s71, 4096")
        a(f"v_lshrrev_b32 v{E}, 3, v0\nv_and_b32 v{E+1}, 7, v0\nv_and_b32 v{E+2}, 2, v{E}\nv_xor_b32 v{E+1}, v{E+1}, v{E+2}\nv_lshlrev_b32 v{E+1}, 4, v{E+1}")
        a(f"v_and_b32 v{E+2}, 3, v{E}\nv_lshlrev_b32 v{E+2}, 3, v{E+2}\nv_lshrrev_b32 v{E+3}, 2, v{E}\nv_add_u32 v{E+2}, v{E+2}, v{E+3}")
        a(f"v_mul_u32_u24 v{vWO}, 896, v{E+2}\nv_mul_u32_u24 v{vWD}, 896, v{E}")
        a(f"s_and_b32 s65, s{sWv}, 1\ns_lshl_b32 s65, s65, 6\nv_xor_b32 v{E+1}, s65, v{E+1}")
        a(f"v_add_u32 v{vWO}, v{vWO}, v{E+1}\nv_add_u32 v{vWD}, v{vWD}, v{E+1}")
        a(f"s_lshr_b32 s66, s{sKG}, 1\ns_lshl_b32 s66, s66, 8\ns_and_b32 s65, s{sKG}, 1\ns_lshl_b32 s65, s65, 6\ns_add_u32 s66, s66, s65")
        a(f"s_lshl_b32 s65, s{sWv}, 1\ns_add_u32 s66, s66, s65\ns_mul_i32 s66, s66, 896\ns_lshl_b32 s65, s{sCG}, 7\ns_add_u32 s66, s66, s65")
        a(f"s_lshl_b32 s67, s{sKG}, 6\ns_lshl_b32 s68, s{sWv}, 3\ns_add_u32 s67, s67, s68\ns_mul_i32 s67, s67, 896\ns_add_u32 s67, s67, s65")
        a(f"s_lshl_b32 s75, s{sWv}, 10")
        a(f"v_lshrrev_b32 v{E}, 2, v{vJ}\nv_bfe_u32 v{E+1}, v{vJ}, 1, 1\ns_lshl_b32 s65, s{sWv}, 1\nv_add_u32 v{E+1}, s65, v{E+1}")
        a(f"v_and_b32 v{E+2}, 2, v{E}\nv_xor_b32 v{E+1}, v{E+1}, v{E+2}")
        a(f"v_and_b32 v{E+3}, 1, v{vJ}\nv_lshlrev_b32 v{E+3}, 3, v{E+3}\nv_lshl_add_u32 v{E+3}, v{E}, 7, v{E+3}")
        a(f"v_and_b32 v{E+2}, 1, v{vG}\nv_lshlrev_b32 v{E+2}, 2, v{E+2}\nv_xor_b32 v{E+4}, v{E+1}, v{E+2}")
        a(f"v_lshl_add_u32 v{vTR}, v{E+4}, 4, v{E+3}\nv_lshl_add_u32 v{vTR}, v{vG}, 10, v{vTR}")
        a(f"v_mul_u32_u24 v{vHA}, {HROW}, v{E}\nv_lshl_add_u32 v{vHA}, v{vG}, 4, v{vHA}")
        a(f"v_mul_u32_u24 v{vAR}, {AROW}, v{E}\nv_lshl_add_u32 v{vAR}, v{vG}, 4, v{vAR}")
        a(f"s_mul_i32 s65, s{sWv}, {AROW}\ns_add_u32 s65, s65, {AIMG}\nv_lshl_add_u32 v{vAW}, v0, 2, s65")
        a(f"v_lshlrev_b32 v{vST2}, 3, v{vJ}\nv_lshl_add_u32 v{vST2}, v{vG}, 12, v{vST2}")
        a(f"s_lshl_b32 s68, s{sCG}, 2\ns_add_u32 s68, s68, s{sWv}\ns_lshl_b32 s68, s68, 14\ns_lshl_b32 s65, s{sKG}, 7\ns_add_u32 s68, s68, s65\ns_add_u32 s68, s68, {MB2}")
        a(f"s_and_b32 s78, s{sKG}, 0xfc\ns_add_u32 s78, s78, s{sWv}\ns_lshl_b32 s69, s78, 4\ns_lshl_b32 s78, s78, 2\ns_and_b32 s65, s{sKG}, 3\ns_add_u32 s78, s78, s65")
        a(f"s_lshl_b32 s78, s78, 12\ns_add_u32 s78, s78, {MB2}\ns_mul_i32 s65, s65, 448\ns_add_u32 s69, s69, s65\ns_lshl_b32 s69, s69, 1")
        a(f"v_and_b32 v{E}, 7, v0\nv_and_b32 v{E+1}, 1, v{vG}\nv_lshlrev_b32 v{vXO}, 2, v{E}\nv_lshl_add_u32 v{vXO}, v{E+1}, 1, v{vXO}")
    tail_addr()
    if tlb:
        a("s_cmp_lg_u32 s3, 1\ns_cbranch_scc1 L_notlb")
        a("s_mov_b64 exec, 1")
        if tlb & 1: a(f"buffer_load_dword v{E+7}, v{vZ}, {S(SV)}, s{sVO} offen {nt}")
        if tlb & 2:
            a(f"buffer_load_dword v{E+7}, v{vZ}, {S(SA)}, s66 offen {nt}")
            a(f"buffer_load_dword v{E+7}, v{vZ}, {S(SB)}, s67 offen {nt}")
        a("s_mov_b64 exec, -1")
        a.label("L_notlb")

    cw = [wos]
    def wo_dma(step):
        if nowo: return
        for c in range(6):
            if cw[0][c] != step: continue
            if c >= 2:
                a(f"s_add_u32 s65, s66, {(128 * (c & 1) + 32 * ((c - 2) >> 1)) * 896}\ns_add_u32 m0, s75, {WL1 + 4096 * (c - 2)}")
                a(f"buffer_load_dwordx4 v{vWO}, {S(SA)}, s65 offen {wnt} lds"); vm.append(("wo", c))
            else:
                a(f"s_add_u32 s65, s67, {32 * 896 * c}\ns_add_u32 m0, s75, {WL2 + 4096 * c}")
                a(f"buffer_load_dwordx4 v{vWD}, {S(SB)}, s65 offen {wnt} lds"); vm.append(("wd", c))
    vPG, vPR, vPA = E + 8, E + 9, E + 10
    sPS, sPL, sPT = 12, 13, 14
    if fb:
        a(f"s_add_u32 s65, s{sWv}, s{sJ}\ns_and_b32 s65, s65, 3\ns_lshl_b32 s{sPL}, s{sH}, 2\ns_add_u32 s{sPL}, s{sPL}, s65\ns_lshl_b32 s{sPL}, s{sPL}, 7\ns_add_u32 s{sPL}, s{sPL}, {PMB}")
        a(f"s_cmp_lg_u32 s101, 0\ns_cselect_b32 s{sPL}, 0x40000000, s{sPL}\ns_cselect_b32 s{sPT}, 8, 0\ns_cselect_b32 s16, 0, 16")
        a(f"s_lshl_b32 s65, s{sB}, 2\ns_add_u32 s65, s65, s{sJ}\ns_lshl_b32 s65, s65, 2\ns_add_u32 s{sPS}, s{sPL}, s65")
        a(f"s_lshl_b32 s65, s{sWv}, 2\ns_add_u32 s65, s65, {PGL}\nv_mov_b32 v{vPA+1}, s65")
        a(f"v_mov_b32 v{vPG}, 0\nv_bfe_i32 v{vPR}, v0, 0, 1\nv_lshlrev_b32 v{vPA}, 2, v0")
    def progress():
        if not fb: return
        if gfb: a(f"v_readlane_b32 s15, v{vPR}, 16")
        for sh in (8, 4, 2, 1): a(f"v_add_u32_dpp v{vPR}, v{vPR}, v{vPR} row_ror:{sh} {FULL}")
        a(f"v_add_u32 v{vPG}, 1, v{vPG}\nv_readfirstlane_b32 s65, v{vPR}")
        if gfb: a(f"s_add_u32 s65, s65, s15")
        a("s_mov_b64 exec, 1")
        a(f"buffer_store_dword v{vPG}, v{vZ}, {S(SW)}, s{sPS} offen"); vm.append(("ps", nload[0]))
        if gfb >= 2: a(f"ds_write_b32 v{vPA+1}, v{vPG}")
        a(f"s_mov_b64 exec, {'0x1ffff' if gfb else '0xffff'}")
        a(f"buffer_load_dword v{vPR}, v{vPA}, {S(SW)}, s{sPL} offen sc1"); vm.append(("pl", nload[0]))
        a("s_mov_b64 exec, -1")
        a(f"s_sub_u32 s17, s65, s{sPT}\ns_add_u32 s{sPT}, s{sPT}, s16")
        if ctl["Wdn"]: a(f"s_cmp_lt_i32 s17, {ctl['thdn']}\ns_cselect_b64 vcc, -1, 0")
        a(f"s_cmp_gt_i32 s17, {ctl['thup']}")
        adapt[0] = True
    def iterK(nextkind):
        progress()
        for u in range(8):
            consK(ring(0, u), u, DA)
            throttle_issue(nextkind, ring(0, u), u)
            if nextkind == "V" and u == 0 and -2 in wos:
                a("s_cselect_b32 s18, 1, 0")
                a(f"s_cmp_eq_u32 s{sCG}, 7\ns_cselect_b32 s66, 0x40000000, s66\ns_cselect_b32 s67, 0x40000000, s67")
                wo_dma(-2)
                a("s_cmp_lg_u32 s18, 0")
        extract([DA], 0)
    a(f"s_mov_b32 s{sCNT}, {15 - NP}")
    a.label("L_kk")
    iterK("K")
    a(f"s_sub_u32 s{sCNT}, s{sCNT}, 1\ns_cmp_lg_u32 s{sCNT}, 0\ns_cbranch_scc1 L_kk")
    iterK("V")
    compute_pre = lambda: (a(f"v_not_b32 v{P1+3}, v{GR+3}\nv_mov_b32 v{P1}, 0\nv_mov_b32 v{P1+1}, 0\nv_mov_b32 v{P1+2}, 0\ns_mov_b32 exec_hi, 0"),
                           a(f"buffer_store_dwordx4 {V4(P1)}, v{vL16}, {S(SW)}, s70 offen\ns_mov_b32 exec_hi, -1"))
    if pre1 == 1: compute_pre()
    stamp(3)
    a(f"v_subrev_u32 v{vSC}, 4096, v{vSC}")
    a(f"ds_read_b32 v{vS}, v{vSC}")
    a(f"v_max_f32_dpp v{vMAX}, v{vMAX}, v{vMAX} row_ror:4 {FULL}")
    a(f"v_max_f32_dpp v{vMAX}, v{vMAX}, v{vMAX} row_ror:8 {FULL}")
    a(f"v_max_f32_dpp v{vMAX}, v{vMAX}, v{vMAX} row_bcast:15 row_mask:0xa bank_mask:0xf")
    a(f"v_max_f32_dpp v{vMAX}, v{vMAX}, v{vMAX} row_bcast:31 row_mask:0xc bank_mask:0xf")
    a(f"v_readlane_b32 s65, v{vMAX}, 63")
    a(f"v_mul_f32 v{vMC}, s65, v{vC}")
    vP = TMP
    def ld1(k): a(f"buffer_load_dwordx4 {V4(P1+4*k)}, v{vL16}, {S(SW)}, s{71 if k < 2 else 74} offen{' offset:2048' if k & 1 else ''} sc1")
    def last_extra():
        a(f"s_cmp_eq_u32 s{sCG}, 7\ns_cselect_b32 s66, 0x40000000, s66\ns_cselect_b32 s67, 0x40000000, s67")
        wo_dma(-1)
        a(f"buffer_load_ushort v{vX}, v{vXO}, {S(SD)}, s69 offen"); vm.append("x")
        if touch:
            a(f"buffer_load_ushort v{E+7}, v{vXO}, {S(SC_)}, s69 offen"); vm.append("o")
        a(f"v_add_f32_dpp v{vL}, v{vL}, v{vL} row_ror:4 {FULL}")
        a(f"v_add_f32_dpp v{vL}, v{vL}, v{vL} row_ror:8 {FULL}")
        a(f"v_add_f32_dpp v{vL}, v{vL}, v{vL} row_bcast:15 row_mask:0xa bank_mask:0xf")
        a(f"v_add_f32_dpp v{vL}, v{vL}, v{vL} row_bcast:31 row_mask:0xc bank_mask:0xf")
        a(f"v_mov_b32 v{vML}, v{vMC}\nv_mov_b32 v{vML+1}, v{vL}")
        a("s_mov_b32 exec_lo, 0\ns_mov_b32 exec_hi, 0x80000000")
        a(f"ds_write_b64 v{vMLW}, {V2(vML)}")
        a("s_mov_b64 exec, -1")
        if hoist:
            a("s_waitcnt lgkmcnt(0)\ns_barrier")
            if early1 == 2:
                for k in range(4): ld1(k); vm.append(("p1", k))
            a(f"ds_read_b128 {V4(G)}, v{vZ} offset:{ML}\nds_read_b128 {V4(G+4)}, v{vZ} offset:{ML+16}\ns_waitcnt lgkmcnt(0)")
            if hb:
                a(f"ds_read_b128 {V4(AH)}, v{vHA} offset:{HIMG}\nds_read_b128 {V4(AH+4)}, v{vHA} offset:{HIMG+64}")
                a(f"ds_read_b64_tr_b16 {V2(BD)}, v{vTR} offset:{WL2}\nds_read_b64_tr_b16 {V2(BD+2)}, v{vTR} offset:{WL2+512}")
                a(f"ds_read_b64_tr_b16 {V2(BD+4)}, v{vTR} offset:{WL2+4096}\nds_read_b64_tr_b16 {V2(BD+6)}, v{vTR} offset:{WL2+4096+512}")
                if hb == 1:
                    for k in range(4): a(f"ds_read_b64_tr_b16 {V2(BW+4*k)}, v{vTR} offset:{WL1+4096*k}\nds_read_b64_tr_b16 {V2(BW+4*k+2)}, v{vTR} offset:{WL1+4096*k+512}")
            weights()
            if hb:
                a("s_waitcnt lgkmcnt(0)")
                a(f"v_mfma_f32_16x16x32_bf16 {V4(Y)}, {V4(AH)}, {V4(BD)}, 0")
                a(f"v_mfma_f32_16x16x32_bf16 {V4(Y)}, {V4(AH+4)}, {V4(BD+4)}, {V4(Y)}")
    def weights():
        ms, ls = [G, G+2, G+4, G+6], [G+1, G+3, G+5, G+7]
        a(f"v_max3_f32 v{E+4}, v{ms[0]}, v{ms[1]}, v{ms[2]}\nv_max_f32 v{E+4}, v{E+4}, v{ms[3]}")
        for k in range(4): a(f"v_sub_f32 v{ms[k]}, v{ms[k]}, v{E+4}")
        for k in range(4): a(f"v_exp_f32 v{ms[k]}, v{ms[k]}")
        a(f"v_mul_f32 v{E+5}, v{ms[0]}, v{ls[0]}")
        for k in range(1, 4): a(f"v_fmac_f32 v{E+5}, v{ms[k]}, v{ls[k]}")
        a(f"v_rcp_f32 v{E+6}, v{E+5}\nv_log_f32 v{E+5}, v{E+5}")
        for k in range(4): a(f"v_mul_f32 v{ms[k]}, v{ms[k]}, v{E+6}")
        a(f"v_add_f32 v{GR+2}, v{E+4}, v{E+5}")
    def iterV(last):
        a("s_waitcnt lgkmcnt(0)")
        a(f"v_fma_f32 v{vP}, v{vS}, v{vC}, -v{vMC}")
        a(f"v_exp_f32 v{vP}, v{vP}")
        if not last:
            a(f"v_add_u32 v{vSC}, 256, v{vSC}\nds_read_b32 v{vS}, v{vSC}")
        a(f"v_add_f32 v{vL}, v{vL}, v{vP}")
        a(f"v_cvt_pk_bf16_f32 v{vP}, v{vP}, v{vP}")
        if last: last_extra()
        else: progress()
        base = nload[0] - 8
        for u in range(8):
            t, half = u >> 1, u & 1
            b = BB + 4 * (t & 1)
            if half == 0:
                for w in range(4): a(f"v_and_b32_dpp v{b+w}, v{vP}, v{MASK+w} row_newbcast:{4*t} {FULL}")
            if last: wait_for(("s", base + u))
            a(f"v_mfma_f32_16x16x32_bf16 {V4(OACC + 4 * half)}, {V4(ring(0, u))}, {V4(b)}, {V4(OACC + 4 * half)}")
            if not last: throttle_issue("V", ring(0, u), u)
            elif u < 7: wo_dma(u)
    a(f"s_mov_b32 s{sCNT}, {15 - nend}")
    a.label("L_vv")
    iterV(False)
    a(f"s_sub_u32 s{sCNT}, s{sCNT}, 1\ns_cmp_lg_u32 s{sCNT}, 0\ns_cbranch_scc1 L_vv")
    if nend:
        if pre1 == 2: compute_pre()
        curW[0] = Wend or W
        ctl.update(endp or {})
        a(f"s_mov_b32 s{sCNT}, {nend}")
        a.label("L_vv2")
        iterV(False)
        a(f"s_sub_u32 s{sCNT}, s{sCNT}, 1\ns_cmp_lg_u32 s{sCNT}, 0\ns_cbranch_scc1 L_vv2")
    a.label("L_tail", drain=False)
    def final_iter():
        iterV(True)
        stamp(4)
        for r in range(4): a(f"v_mov_b32_dpp v{OACC+r}, v{OACC+4+r} {IDP} row_mask:0xf bank_mask:0xc")
        a(f"ds_write_b128 v{vOPW}, {V4(OACC)}")
        wo_dma(7)
    if thw is not None:
        a(f"v_readlane_b32 s15, v{vPR}, 16")
        for sh in (8, 4, 2, 1): a(f"v_add_u32_dpp v{vPR}, v{vPR}, v{vPR} row_ror:{sh} {FULL}")
        a(f"v_readfirstlane_b32 s65, v{vPR}\ns_add_u32 s65, s65, s15\ns_sub_u32 s17, s65, s{sPT}")
        a(f"s_cmp_gt_i32 s17, {thw}\ns_cbranch_scc1 L_lastE")
        sv = list(vm)
        final_iter()
        a("s_branch L_lastJ")
        a.label("L_lastE")
        vm[:] = sv; cw[0] = (-1,) * 6
        final_iter()
        a.label("L_lastJ")
    else: final_iter()
    a("s_waitcnt lgkmcnt(0)")
    a("s_barrier")
    a("s_mov_b32 exec_hi, 0")
    if not hoist: a(f"ds_read_b128 {V4(G)}, v{vZ} offset:{ML}\nds_read_b128 {V4(G+4)}, v{vZ} offset:{ML+16}")
    for w in range(4): a(f"ds_read_b64 {V2(G+8+2*w)}, v{vOPR} offset:{1024*w}")
    if not hoist:
        a("s_waitcnt lgkmcnt(4)")
        weights()
    ms = [G, G+2, G+4, G+6]
    a("s_cmp_lg_u32 s101, 0")
    a("s_waitcnt lgkmcnt(3)")
    a(f"v_pk_mul_f32 {V2(GR)}, {V2(G+8)}, {V2(ms[0])} op_sel_hi:[1,0]")
    for k in range(1, 4):
        a(f"s_waitcnt lgkmcnt({3-k})")
        a(f"v_pk_fma_f32 {V2(GR)}, {V2(G+8+2*k)}, {V2(ms[k])}, {V2(GR)} op_sel_hi:[1,0,1]")
    if fast:
        a("s_cbranch_scc1 L_st1far", drain=False)
        a(f"buffer_store_dwordx4 {V4(GR)}, v{vL16}, {S(SW)}, s70 offen")
        a("s_branch L_st1done", drain=False)
        a.label("L_st1far", drain=False)
    a(f"buffer_store_dwordx4 {V4(GR)}, v{vL16}, {S(SW)}, s70 offen sc1")
    if fast: a.label("L_st1done", drain=False)
    def st1_global():
        a("s_mov_b32 exec_hi, 0")
        a(f"buffer_store_dwordx4 {V4(GR)}, v{vL16}, {S(SW)}, s70 offen sc1")
        a("s_mov_b32 exec_hi, -1")
    a("s_mov_b64 exec, -1")
    stamp(8)
    a(f"s_mov_b32 s{sCNT}, {spin}")
    a(f"s_cmp_eq_u32 s{sCG}, 7\ns_cbranch_scc1 L_reduce", drain=False)
    if not early1:
        if pw is not None: a(f"s_waitcnt vmcnt({pw})")
        for k in range(4): ld1(k)
    if not hb: a(f"ds_read_b128 {V4(AH)}, v{vHA} offset:{HIMG}\nds_read_b128 {V4(AH+4)}, v{vHA} offset:{HIMG+64}")
    if early1: a("s_waitcnt vmcnt(1)\ns_branch L_p1c", drain=False)
    a.label("L_p1", drain=False)
    a("s_waitcnt vmcnt(0)")
    a.label("L_p1c", drain=False)
    MK = [4, 6, 8, 10]
    for k in range(4): a(f"v_cmp_ne_u32 s[{MK[k]}:{MK[k]+1}], s{sTAG}, v{P1+4*k+3}")
    a(f"s_or_b64 s[76:77], s[4:5], s[6:7]\ns_or_b64 vcc, s[8:9], s[10:11]\ns_or_b64 s[76:77], s[76:77], vcc")
    a("s_cbranch_scc0 L_p1ok", drain=False)
    if sleep1: a(f"s_sleep {sleep1}")
    for k in range(4):
        a(f"s_cmp_eq_u64 s[{MK[k]}:{MK[k]+1}], 0\ns_cbranch_scc1 L_p1s{k}", drain=False)
        ld1(k)
        a.label(f"L_p1s{k}", drain=False)
    a(f"s_sub_u32 s{sCNT}, s{sCNT}, 1\ns_cbranch_scc0 L_p1", drain=False)
    a.label("L_p1ok", drain=False)
    stamp(5)
    lam = [P1+2, P1+6, P1+10, P1+14]
    a(f"v_max3_f32 v{E+4}, v{lam[0]}, v{lam[1]}, v{lam[2]}\nv_max_f32 v{E+4}, v{E+4}, v{lam[3]}")
    for k in range(4): a(f"v_sub_f32 v{lam[k]}, v{lam[k]}, v{E+4}")
    for k in range(4): a(f"v_exp_f32 v{lam[k]}, v{lam[k]}")
    a(f"v_add_f32 v{E+5}, v{lam[0]}, v{lam[1]}\nv_pk_mul_f32 {V2(G)}, {V2(P1)}, {V2(lam[0])} op_sel_hi:[1,0]\nv_add_f32 v{E+6}, v{lam[2]}, v{lam[3]}")
    a(f"v_pk_fma_f32 {V2(G)}, {V2(P1+4)}, {V2(lam[1])}, {V2(G)} op_sel_hi:[1,0,1]\nv_add_f32 v{E+6}, v{E+5}, v{E+6}")
    a(f"v_pk_fma_f32 {V2(G)}, {V2(P1+8)}, {V2(lam[2])}, {V2(G)} op_sel_hi:[1,0,1]\nv_rcp_f32 v{E+6}, v{E+6}")
    a(f"v_pk_fma_f32 {V2(G)}, {V2(P1+12)}, {V2(lam[3])}, {V2(G)} op_sel_hi:[1,0,1]")
    a(f"v_pk_mul_f32 {V2(G)}, {V2(G)}, {V2(E+6)} op_sel_hi:[1,0]")
    a(f"v_cvt_pk_bf16_f32 v{G}, v{G}, v{G+1}")
    a(f"ds_write_b32 v{vAW}, v{G}")
    a("s_waitcnt lgkmcnt(0)")
    a("s_barrier")
    if not hb:
        a(f"ds_read_b64_tr_b16 {V2(BD)}, v{vTR} offset:{WL2}\nds_read_b64_tr_b16 {V2(BD+2)}, v{vTR} offset:{WL2+512}")
        a(f"ds_read_b64_tr_b16 {V2(BD+4)}, v{vTR} offset:{WL2+4096}\nds_read_b64_tr_b16 {V2(BD+6)}, v{vTR} offset:{WL2+4096+512}")
    for k in range(4):
        a(f"ds_read_b128 {V4(AO+4*k)}, v{vAR} offset:{AIMG+64*k}")
        if hb != 1: a(f"ds_read_b64_tr_b16 {V2(BW+4*k)}, v{vTR} offset:{WL1+4096*k}\nds_read_b64_tr_b16 {V2(BW+4*k+2)}, v{vTR} offset:{WL1+4096*k+512}")
    if not hb:
        a("s_waitcnt lgkmcnt(12)")
        a(f"v_mfma_f32_16x16x32_bf16 {V4(Y)}, {V4(AH)}, {V4(BD)}, 0")
        a(f"v_mfma_f32_16x16x32_bf16 {V4(Y)}, {V4(AH+4)}, {V4(BD+4)}, {V4(Y)}")
    for k in range(4):
        a(f"s_waitcnt lgkmcnt({(3 - k) * (1 if hb == 1 else 3)})")
        a(f"v_mfma_f32_16x16x32_bf16 {V4(Y)}, {V4(AO+4*k)}, {V4(BW+4*k)}, {V4(Y)}")
    a(f"v_mov_b32 v{Y+1}, v{GR+3}")
    if not nost2: a(f"buffer_store_dwordx2 {V2(Y)}, v{vST2}, {S(SW)}, s68 offen sc1")
    if fast and clean: st1_global()
    a("s_branch L_sdone")
    a.label("L_reduce")
    if fast and clean:
        a("s_sleep 12")
        st1_global()
    a(f"s_cmp_ge_u32 s{sKG}, 28\ns_cbranch_scc1 L_sdone")
    if nored: a("s_branch L_sdone")
    SETS = [R + 16 * d for d in range(2)] + [QF, QF + 16]
    def ld2(d):
        for k in range(4): a(f"buffer_load_dwordx4 {V4(SETS[d]+4*k)}, v{vL16}, {S(SW)}, s78 offen offset:{1024*k} sc1")
    a(f"s_waitcnt vmcnt(0)\nv_lshlrev_b32 v{vX}, 16, v{vX}")
    for d in range(D2 - 1):
        ld2(d)
        if stag2: a(f"s_sleep {stag2}")
    a.label("L_p2")
    for d in range(D2):
        ld2((d + D2 - 1) % D2)
        a(f"s_waitcnt vmcnt({4 * (D2 - 1)})")
        q = SETS[d]
        a(f"v_xor_b32 v{E}, v{q+1}, v{GR+3}\nv_xor_b32 v{E+1}, v{q+3}, v{GR+3}")
        for k in range(1, 4): a(f"v_bitop3_b32 v{E}, v{q+4*k+1}, v{GR+3}, v{E} bitop3:0xbe\nv_bitop3_b32 v{E+1}, v{q+4*k+3}, v{GR+3}, v{E+1} bitop3:0xbe")
        a(f"v_or_b32 v{E}, v{E}, v{E+1}\nv_add_f32 v{P1}, v{q}, v{q+4}\nv_add_f32 v{P1+2}, v{q+2}, v{q+6}\nv_cmp_ne_u32 vcc, 0, v{E}")
        a(f"v_add_f32 v{P1+8}, v{q+8}, v{q+12}\nv_add_f32 v{P1+10}, v{q+10}, v{q+14}")
        a("s_cbranch_vccz L_p2ok", drain=False)
    a(f"s_sub_u32 s{sCNT}, s{sCNT}, 1\ns_cbranch_scc0 L_p2", drain=False)
    a.label("L_p2ok", drain=False)
    stamp(6)
    a(f"v_add_f32 v{P1}, v{P1}, v{P1+8}\nv_add_f32 v{P1+2}, v{P1+2}, v{P1+10}")
    a(f"v_permlane16_swap_b32 v{P1}, v{P1+2}")
    a(f"v_add_f32 v{P1}, v{P1}, v{P1+2}")
    a(f"v_add_f32_dpp v{P1}, v{P1}, v{P1} row_ror:8 {FULL}")
    a(f"v_mov_b32 v{P1+2}, v{P1}")
    a(f"v_permlane32_swap_b32 v{P1}, v{P1+2}")
    a(f"v_add_f32 v{P1}, v{P1}, v{P1+2}\nv_add_f32 v{P1}, v{P1}, v{vX}")
    a(f"v_cvt_pk_bf16_f32 v{P1}, v{P1}, v{P1}")
    a(f"s_mov_b32 exec_hi, 0\ns_mov_b32 exec_lo, 0x00ff00ff")
    a(f"buffer_store_short v{P1}, v{vXO}, {S(SC_)}, s69 offen {osc}")
    a(f"s_or_b32 s65, s{sKG}, s{sWv}\ns_cmp_lg_u32 s65, 0\ns_cbranch_scc1 L_sdone")
    a("s_mov_b64 exec, 1")
    a(f"buffer_store_dword v{GR+3}, v{vZ}, {S(SW)}, 0 offen {osc}")
    a.label("L_sdone")
    stamp(7)
    pad("S")
    dump_stamps(9)
    a("s_endpgm")

    a.label("L_helper")
    in_helper[0] = True
    X, F, AF, AF2, BF, D, TG = 32, 64, 96, 112, 128, 184, 200
    a("s_setprio 3")
    a(f"v_mul_u32_u24 v6, 896, v5\nv_lshl_add_u32 v6, v4, 6, v6\nv_mov_b32 v7, 0x40000000\nv_cmp_gt_u32 s[74:75], 14, v4")
    a(f"v_cndmask_b32 v7, v7, v6, s[74:75]")
    a(f"v_lshrrev_b32 v8, 3, v0\nv_and_b32 v9, 7, v0\nv_lshlrev_b32 v9, 4, v9\nv_lshl_add_u32 v10, v8, 13, v9")
    a(f"v_mul_u32_u24 v11, 3584, v8\nv_add_u32 v11, v11, v9")
    a(f"s_mul_i32 s65, s{sB}, {112 * 8192}\ns_lshl_b32 s66, s{sIDX}, 7\ns_add_u32 s65, s65, s66")
    a("s_waitcnt lgkmcnt(0)")
    a(f"s_load_dword s{sTAG}, s[26:27], 0")
    srd(SA, 4, 3584)
    for u in range(4): a(f"buffer_load_dwordx4 {V4(X+4*u)}, v7, {S(SA)}, 0 offen offset:{16*u}")
    srd(SB, 10, 448 * 8192)
    def dma(sr, voff, so, stride, lds0, win=None):
        for k in range(14):
            if win and k >= win: a(f"s_waitcnt vmcnt({win-1})")
            a(f"s_mov_b32 m0, {lds0 + 1024 * k}")
            a(f"buffer_load_dwordx4 v{voff}, {S(sr)}, s{so} offen {wnt} lds")
            if k < 13: a(f"s_add_u32 s{so}, s{so}, {8 * stride}")
    if not noq: dma(SB, 10, 65, 8192, WL0)
    srd(SW, 26, WS_USED)
    nini = 0
    if fb:
        a(f"s_lshl_b32 s34, s{sH}, 9\ns_add_u32 s34, s34, {PMB}\ns_lshl_b32 s35, s{sB}, 2\ns_add_u32 s35, s35, s{sJ}\ns_lshl_b32 s68, s35, 2\ns_add_u32 s68, s68, s34")
        a(f"v_lshlrev_b32 v2, 7, v0\nv_mov_b32 v3, 0\ns_mov_b64 exec, 15")
        a(f"buffer_store_dword v3, v2, {S(SW)}, s68 offen"); nini += 1
        if gfb:
            a(f"s_cmp_eq_u32 s35, 0\ns_cselect_b32 s68, s34, 0x40000000")
            a(f"buffer_store_dword v3, v2, {S(SW)}, s68 offen offset:64"); nini += 1
        a("s_mov_b64 exec, -1")
    a(f"v_and_b32 v14, 3, v4\nv_lshrrev_b32 v15, 2, v4\ns_mul_i32 s65, s{sB}, 224")
    a(f"v_mul_u32_u24 v12, 896, v15\nv_add_u32 v12, s65, v12\nv_lshl_add_u32 v28, v5, 3, v12\nv_lshl_add_u32 v12, v5, 4, v12")
    a(f"s_lshr_b32 s65, s{sCG}, 1\ns_mul_i32 s65, s65, 224")
    a(f"v_mul_u32_u24 v30, 896, v14\nv_add_u32 v30, s65, v30\nv_lshl_add_u32 v31, v5, 3, v30\nv_lshl_add_u32 v30, v5, 4, v30")
    a(f"v_lshl_add_u32 v8, v5, 2, v14\nv_lshlrev_b32 v8, 4, v8\nv_lshl_add_u32 v8, v15, 16, v8")
    a(f"v_lshlrev_b32 v9, 5, v14\nv_lshl_add_u32 v9, v15, 3, v9\nv_lshl_add_u32 v9, v5, 7, v9")
    for t in range(1, 4): a(f"v_cmp_eq_u32 s[{26+2*t}:{27+2*t}], {t}, v14")
    a(f"v_lshlrev_b32 v15, 7, v15\nv_lshl_add_u32 v15, v14, 3, v15")
    a(f"v_lshl_add_u32 v13, v5, 10, v15\nv_lshl_add_u32 v29, v5, 9, v15")
    a(f"s_waitcnt vmcnt(14)" if not noq else "s_waitcnt vmcnt(0)")
    stamp(1)
    for k in range(16): a(f"v_lshlrev_b32 v{F+2*k}, 16, v{X+k}\nv_and_b32 v{F+2*k+1}, 0xffff0000, v{X+k}")
    a(f"v_pk_add_f32 v[14:15], {V2(F)}, {V2(F+2)}\nv_pk_add_f32 v[16:17], {V2(F+4)}, {V2(F+6)}")
    for k in range(4, 16, 2):
        a(f"v_pk_add_f32 v[14:15], v[14:15], {V2(F+2*k)}\nv_pk_add_f32 v[16:17], v[16:17], {V2(F+2*k+2)}")
    a("v_pk_add_f32 v[14:15], v[14:15], v[16:17]\nv_add_f32 v14, v14, v15")
    def rowsum(r):
        for sh in (8, 4, 2, 1): a(f"v_add_f32_dpp v{r}, v{r}, v{r} row_ror:{sh} {FULL}")
    rowsum(14)
    a(f"v_mul_f32 v18, {hex(f2u(-1.0 / 448))}, v14\nv_mov_b32 v19, v18")
    a("v_mov_b32 v14, 0\nv_mov_b32 v15, 0\nv_mov_b32 v16, 0\nv_mov_b32 v17, 0")
    for k in range(0, 16, 2):
        a(f"v_pk_add_f32 v[20:21], {V2(F+2*k)}, v[18:19]\nv_pk_add_f32 v[22:23], {V2(F+2*k+2)}, v[18:19]")
        a(f"v_pk_fma_f32 v[14:15], v[20:21], v[20:21], v[14:15]\nv_pk_fma_f32 v[16:17], v[22:23], v[22:23], v[16:17]")
    a("v_pk_add_f32 v[14:15], v[14:15], v[16:17]\nv_add_f32 v14, v14, v15\nv_cndmask_b32 v14, 0, v14, s[74:75]")
    rowsum(14)
    def rbf(r): a(f"v_cvt_pk_bf16_f32 v{r}, v{r}, v{r}\nv_and_b32 v{r}, 0xffff0000, v{r}")
    a(f"v_mul_f32 v14, {hex(f2u(1.0 / 448))}, v14"); rbf(14)
    a(f"v_add_f32 v14, {hex(f2u(1e-5))}, v14"); rbf(14)
    a("v_sqrt_f32 v14, v14"); rbf(14)
    a("v_rcp_f32 v16, v14\nv_mov_b32 v15, v14"); rbf(18)
    a("v_mov_b32 v17, v16\nv_mov_b32 v19, v18")
    for k in range(16):
        a(f"v_pk_add_f32 {V2(F+2*k)}, {V2(F+2*k)}, v[18:19]")
    for k in range(16):
        a(f"v_cvt_pk_bf16_f32 v{X+k}, v{F+2*k}, v{F+2*k+1}")
    for k in range(16): a(f"v_lshlrev_b32 v{F+2*k}, 16, v{X+k}\nv_and_b32 v{F+2*k+1}, 0xffff0000, v{X+k}")
    for k in range(16):
        t = 20 + 2 * (k & 3)
        a(f"v_pk_mul_f32 {V2(t)}, {V2(F+2*k)}, v[16:17]")
        a(f"v_pk_fma_f32 {V2(F+2*k)}, {V2(t)}, v[14:15], {V2(F+2*k)} neg_lo:[1,0,0] neg_hi:[1,0,0]")
        a(f"v_pk_fma_f32 {V2(t)}, {V2(F+2*k)}, v[16:17], {V2(t)}")
        a(f"v_cvt_pk_bf16_f32 v{X+k}, v{t}, v{t+1}")
    a("s_mov_b64 exec, s[74:75]")
    for u in range(4): a(f"ds_write_b128 v6, {V4(X+4*u)} offset:{XN + 16*u}")
    a("s_mov_b64 exec, -1")
    a("s_waitcnt lgkmcnt(0)")
    a(f"s_mul_i32 s{sTAG}, s{sTAG}, 0x9E3779B1\ns_add_u32 s{sTAG}, s{sTAG}, 0x7F4A7C15")
    for k in range(3): a(f"ds_read_b128 {V4(AF+4*k)}, v12 offset:{XN + 64*k}")
    a(f"ds_read_b64 {V2(AF+12)}, v28 offset:{XN + 192}")
    a(f"v_mov_b32 v{TG}, s{sTAG}\nv_lshrrev_b32 v{TG+1}, 8, v{TG}\nv_lshrrev_b32 v{TG+2}, 16, v{TG}\nv_lshrrev_b32 v{TG+3}, 24, v{TG}\ns_movk_i32 s78, 0xff")
    a(f"v_lshlrev_b32 v10, 4, v0")
    a(f"s_lshl_b32 s66, s{sH}, 12\ns_lshl_b32 s67, s{sB}, 10\ns_add_u32 s66, s66, s67\ns_lshl_b32 s67, s{sJ}, 8\ns_add_u32 s66, s66, s67\ns_add_u32 s66, s66, {QMB}")
    a(f"s_lshl_b32 s67, s{sBH}, 12\ns_add_u32 s67, s67, {QMB}")
    a("s_waitcnt vmcnt(0)")
    stamp(2)
    a(f"s_getreg_b32 s69, hwreg(HW_REG_XCC_ID, 0, 4)\nv_xor_b32 v{TG+4}, s69, v{TG+3}")
    def piece(af, transposed):
        for t in range(4):
            for k in range(3):
                o = WL0 + 4096 * k + 32 * t
                a(f"ds_read_b64_tr_b16 {V2(BF+14*t+4*k)}, v13 offset:{o}\nds_read_b64_tr_b16 {V2(BF+14*t+4*k+2)}, v13 offset:{o + 512}")
            a(f"ds_read_b64_tr_b16 {V2(BF+14*t+12)}, v29 offset:{WL0 + 12288 + 32 * t}")
        a("s_waitcnt lgkmcnt(0)")
        for k in range(3):
            for t in range(4):
                x, w = V4(af+4*k), V4(BF+14*t+4*k)
                a(f"v_mfma_f32_16x16x32_bf16 {V4(D+4*t)}, {w if transposed else x}, {x if transposed else w}, {'0' if k == 0 else V4(D+4*t)}")
        for t in range(4):
            x, w = V2(af+12), V2(BF+14*t+12)
            a(f"v_mfma_f32_16x16x16_bf16 {V4(D+4*t)}, {w if transposed else x}, {x if transposed else w}, {V4(D+4*t)}")
        for t in range(1, 4):
            for r in range(4):
                if transposed: a(f"v_cndmask_b32 v{D+r}, v{D+r}, v{D+4*t+r}, s[{26+2*t}:{27+2*t}]")
                else: a(f"v_mov_b32_dpp v{D+r}, v{D+4*t+r} {IDP} row_mask:{hex(1 << t)} bank_mask:0xf")
        for r in range(4): a(f"v_add_u32 v{D+r}, 0x80, v{D+r}")
        for r in range(4): a(f"v_bfi_b32 v{20+r}, s78, v{TG + r + (1 if transposed and r == 3 else 0)}, v{D+r}")
    piece(AF, True)
    if noq or not qst: a("s_branch L_pqok")
    a(f"buffer_store_dwordx4 v[20:23], v8, {S(SW)}, s66 offen{'' if fastq else ' sc1'}")
    stamp(3)
    for k in range(3): a(f"ds_read_b128 {V4(AF2+4*k)}, v30 offset:{XN + 64*k}")
    a(f"ds_read_b64 {V2(AF2+12)}, v31 offset:{XN + 192}")
    a(f"v_mov_b32 v16, 0\nv_mov_b32 v17, 0\nv_mov_b32 v18, 0\nv_mov_b32 v19, 0")
    a(f"s_mov_b32 exec_hi, 0xff\nds_write_b128 v10, v[16:19] offset:{HIMG}\ns_mov_b64 exec, -1")
    a(f"ds_write_b128 v16, v[16:19] offset:{PGL}")
    PQ = F
    def qload(k): a(f"buffer_load_dwordx4 {V4(PQ+4*k)}, v10, {S(SW)}, s67 offen offset:{1024 * k} sc1")
    def chk4(dst, src):
        a(f"v_xor_b32 v{dst}, v{src}, v{TG}")
        for t in range(1, 4): a(f"v_bitop3_b32 v{dst}, v{src+t}, v{TG+t}, v{dst} bitop3:0xbe")
        a(f"v_and_b32 v{dst}, s78, v{dst}")
    if sleepq: a(f"s_sleep {sleepq}")
    for k in range(4): qload(k)
    a(f"s_mov_b32 s{sCNT}, {spin}")
    a.label("L_pq")
    a("s_waitcnt vmcnt(0)")
    for k in range(4):
        a(f"v_xor_b32 v{X+4+k}, v{PQ+4*k+3}, v{TG+4}\nv_and_b32 v{X+k}, 0xf0, v{X+4+k}")
        for t in range(3): a(f"v_bitop3_b32 v{X+k}, v{PQ+4*k+t}, v{TG+t}, v{X+k} bitop3:0xbe")
        a(f"v_and_b32 v{X+k}, s78, v{X+k}")
    a(f"v_or3_b32 v24, v{X}, v{X+1}, v{X+2}\nv_or_b32 v24, v24, v{X+3}")
    a("v_cmp_ne_u32 vcc, 0, v24\ns_cbranch_vccz L_pqok", drain=False)
    if fastq:
        a(f"s_cmp_lg_u32 s{sCNT}, {spin - nq}\ns_cbranch_scc1 L_pqg", drain=False)
        a(f"buffer_store_dwordx4 v[20:23], v8, {S(SW)}, s66 offen sc1")
        a.label("L_pqg", drain=False)
    a(f"s_sleep 2")
    for k in range(4):
        a(f"v_cmp_ne_u32 vcc, 0, v{X+k}\ns_cbranch_vccz L_pqs{k}", drain=False)
        qload(k)
        a.label(f"L_pqs{k}", drain=False)
    a(f"s_sub_u32 s{sCNT}, s{sCNT}, 1\ns_cmp_lg_u32 s{sCNT}, 0\ns_cbranch_scc1 L_pq", drain=False)
    a.label("L_pqok", drain=False)
    for k in range(16): a(f"v_and_b32 v{PQ+k}, 0xffffff00, v{PQ+k}")
    for e in (0, 2):
        a(f"v_pk_add_f32 {V2(PQ+e)}, {V2(PQ+e)}, {V2(PQ+4+e)}\nv_pk_add_f32 {V2(PQ+8+e)}, {V2(PQ+8+e)}, {V2(PQ+12+e)}")
    for e in (0, 2): a(f"v_pk_add_f32 {V2(PQ+e)}, {V2(PQ+e)}, {V2(PQ+8+e)}")
    a(f"v_cvt_pk_bf16_f32 v24, v{PQ}, v{PQ+1}\nv_cvt_pk_bf16_f32 v25, v{PQ+2}, v{PQ+3}\nv_mov_b32 v17, 0")
    a(f"v_or3_b32 v26, v{X+4}, v{X+5}, v{X+6}\nv_or_b32 v26, v26, v{X+7}\nv_and_b32 v26, 15, v26\nv_cmp_ne_u32 vcc, 0, v26")
    a(f"s_or_b32 s69, vcc_lo, vcc_hi\nv_mov_b32 v26, v{TG}\nv_mov_b32 v27, s69")
    a(f"ds_write_b64 v9, v[24:25] offset:{QL}\nds_write_b64 v17, v[26:27] offset:{TAGL}")
    if fastq:
        a("s_cmp_eq_u32 s69, 0\ns_cbranch_scc1 L_qnear")
        a(f"buffer_store_dwordx4 v[20:23], v8, {S(SW)}, s66 offen sc1")
        a.label("L_qnear")
    a("s_waitcnt lgkmcnt(0)")
    stamp(4)
    if stamps: a(f"s_mov_b32 s92, s{sCNT}")
    a("s_barrier")
    a("s_setprio 0")
    if noffn: a("s_branch L_hend")
    a(f"s_cmp_ge_u32 s{sKG}, 28\ns_cbranch_scc1 L_hend")
    a(f"s_bitcmp1_b32 s{sCG}, 0\ns_cselect_b32 s{SC_}, s18, s16\ns_cselect_b32 s{SC_+1}, s19, s17\ns_mov_b32 s{SC_+2}, {448 * 3584}\ns_mov_b32 s{SC_+3}, 0x20000")
    a(f"s_lshr_b32 s66, s{sCG}, 1\ns_mul_i32 s65, s66, {112 * 3584}\ns_lshl_b32 s67, s{sKG}, 7\ns_add_u32 s65, s65, s67")
    if fdma: dma(SC_, 11, 65, 3584, WL0, win=HW)
    a(f"s_lshl_b32 s67, s{sKG}, 13\ns_add_u32 s67, s67, {FMB}\ns_lshl_b32 s66, s{sCG}, 10\ns_add_u32 s66, s66, s67\ns_add_u32 s68, s67, 4096")
    a("s_waitcnt vmcnt(0)")
    piece(AF2, False)
    if fst and fastf:
        a("s_cmp_lg_u32 s69, 0\ns_cbranch_scc1 L_ffar")
        a(f"buffer_store_dwordx4 v[20:23], v10, {S(SW)}, s66 offen\ns_branch L_fdone")
        a.label("L_ffar")
    if fst: a(f"buffer_store_dwordx4 v[20:23], v10, {S(SW)}, s66 offen sc1")
    if fst and fastf: a.label("L_fdone")
    if not fpoll: a("s_branch L_hend")
    a(f"s_cmp_eq_u32 s{sCG}, 7\ns_cbranch_scc1 L_hend")
    def fload(k): a(f"buffer_load_dwordx4 {V4(F+4*k)}, v10, {S(SW)}, s{67 + (k >> 2)} offen offset:{1024 * (k & 3)} sc1")
    a(f"s_sleep {sleepf}")
    for k in range(8): fload(k)
    a(f"s_mov_b32 s{sCNT}, {spin}\nv_lshlrev_b32 v9, 1, v0")
    a.label("L_pf")
    a("s_waitcnt vmcnt(0)")
    for k in range(8): chk4(X + k, F + 4 * k)
    a(f"v_or3_b32 v24, v{X}, v{X+1}, v{X+2}\nv_or3_b32 v24, v24, v{X+3}, v{X+4}\nv_or3_b32 v24, v24, v{X+5}, v{X+6}\nv_or_b32 v24, v24, v{X+7}")
    a("v_cmp_ne_u32 vcc, 0, v24\ns_cbranch_vccz L_pfok", drain=False)
    a(f"s_sleep 16")
    for k in range(8):
        a(f"v_cmp_ne_u32 vcc, 0, v{X+k}\ns_cbranch_vccz L_pfs{k}", drain=False)
        fload(k)
        a.label(f"L_pfs{k}", drain=False)
    a(f"s_sub_u32 s{sCNT}, s{sCNT}, 1\ns_cbranch_scc0 L_pf", drain=False)
    a.label("L_pfok", drain=False)
    for k in range(32): a(f"v_and_b32 v{F+k}, 0xffffff00, v{F+k}")
    for e in range(0, 8, 2):
        a(f"v_pk_add_f32 {V2(F+e)}, {V2(F+e)}, {V2(F+8+e)}\nv_pk_add_f32 {V2(F+16+e)}, {V2(F+16+e)}, {V2(F+24+e)}")
    for e in range(0, 8, 2): a(f"v_pk_add_f32 {V2(F+e)}, {V2(F+e)}, {V2(F+16+e)}")
    for r in range(8): rbf(F + r)
    k1 = -2.0 * math.sqrt(2.0 / math.pi) * math.log2(math.e)
    for r in range(4):
        g, u, t = F + r, F + 4 + r, F + 8 + r
        a(f"v_mul_f32 v{t}, v{g}, v{g}\nv_mul_f32 v{t}, {hex(f2u(0.044715))}, v{t}\nv_fma_f32 v{t}, v{t}, v{g}, v{g}")
        a(f"v_mul_f32 v{t}, {hex(f2u(k1))}, v{t}\nv_exp_f32 v{t}, v{t}\nv_add_f32 v{t}, 1.0, v{t}\nv_rcp_f32 v{t}, v{t}\nv_mul_f32 v{g}, v{g}, v{t}")
        rbf(g)
        a(f"v_mul_f32 v{g}, v{g}, v{u}")
    a(f"v_cvt_pk_bf16_f32 v32, v{F}, v{F+1}\nv_cvt_pk_bf16_f32 v34, v{F+2}, v{F+3}")
    a(f"ds_write_b16 v9, v32 offset:{HIMG}\nds_write_b16_d16_hi v9, v32 offset:{HIMG + HROW}")
    a(f"ds_write_b16 v9, v34 offset:{HIMG + 2 * HROW}\nds_write_b16_d16_hi v9, v34 offset:{HIMG + 3 * HROW}")
    a("s_waitcnt lgkmcnt(0)")
    a.label("L_hend")
    a("s_mov_b64 exec, -1")
    if fb and gfb == 2:
        a(f"s_cmp_lg_u32 s69, 0\ns_cbranch_scc1 L_gend\ns_cmp_ge_u32 s35, {nR}\ns_cbranch_scc1 L_gend")
        a(f"v_lshlrev_b32 v6, 2, v4\nv_lshl_add_u32 v6, v5, 7, v6\nv_mov_b32 v41, v{TG}\nv_mov_b32 v7, 0")
        a(f"s_lshl_b32 s66, s{sH}, 7\ns_add_u32 s66, s66, {GMB}\ns_mov_b32 s67, {GMB}\ns_mov_b32 s{sCNT}, 4000\ns_mul_i32 s70, s35, {dL}\ns_add_u32 s70, s70, {L0}")
        a.label("L_gw")
        a(f"ds_read_b32 v40, v7 offset:{PGL}\ns_waitcnt lgkmcnt(0)\nv_readfirstlane_b32 s65, v40\ns_cmp_ge_u32 s65, s70\ns_cbranch_scc1 L_gr")
        a(f"s_sleep 4\ns_sub_u32 s{sCNT}, s{sCNT}, 1\ns_cbranch_scc0 L_gw")
        a.label("L_gr")
        a(f"buffer_load_dword v40, v6, {S(SW)}, s34 offen sc1")
        a("s_mov_b64 exec, 0xffff")
        a(f"buffer_load_dwordx2 v[42:43], v2, {S(SW)}, s67 offen sc1")
        a("s_mov_b64 exec, -1\ns_waitcnt vmcnt(1)")
        for sh in (8, 4, 2, 1): a(f"v_add_u32_dpp v40, v40, v40 row_ror:{sh} {FULL}")
        a("v_add_u32_dpp v40, v40, v40 row_bcast:15 row_mask:0xa bank_mask:0xf\nv_add_u32_dpp v40, v40, v40 row_bcast:31 row_mask:0xc bank_mask:0xf")
        a("v_readlane_b32 s71, v40, 63\nv_mov_b32 v40, s71")
        a("s_mov_b64 exec, 1")
        a(f"buffer_store_dwordx2 v[40:41], v7, {S(SW)}, s66 offen sc1")
        a("s_mov_b64 exec, -1\ns_waitcnt vmcnt(1)")
        a(f"v_subrev_u32 v44, {64 * dL}, v40\nv_cmp_eq_u32 vcc, v43, v41\nv_cndmask_b32 v42, v44, v42, vcc\nv_sub_u32 v42, v42, v40")
        for sh in (8, 4, 2, 1): a(f"v_add_u32_dpp v42, v42, v42 row_ror:{sh} {FULL}")
        a(f"v_ashrrev_i32 v42, {4 + gsh}, v42\nv_add_u32 v42, {goff}, v42")
        a("s_mov_b64 exec, 15")
        a(f"buffer_store_dword v42, v2, {S(SW)}, s34 offen offset:64")
        a("s_mov_b64 exec, -1")
        a.label("L_gend")
    if fb and gfb == 3:
        a(f"s_cmp_lg_u32 s69, 0\ns_cbranch_scc1 L_gend\ns_cmp_ge_u32 s35, {nR}\ns_cbranch_scc1 L_gend")
        a(f"v_lshlrev_b32 v6, 2, v4\nv_lshl_add_u32 v6, v5, 7, v6\nv_mov_b32 v7, 0")
        a(f"s_mov_b32 s{sCNT}, 4000\ns_mul_i32 s70, s35, {dL}\ns_add_u32 s70, s70, {L0}\ns_lshl_b32 s66, s35, 2")
        a.label("L_gw")
        a(f"ds_read_b32 v40, v7 offset:{PGL}\ns_waitcnt lgkmcnt(0)\nv_readfirstlane_b32 s65, v40\ns_cmp_ge_u32 s65, s70\ns_cbranch_scc1 L_gr")
        a(f"s_sleep 4\ns_sub_u32 s{sCNT}, s{sCNT}, 1\ns_cbranch_scc0 L_gw")
        a.label("L_gr")
        if gpoll:
            a(f"s_lshl_b32 s70, s70, 6\ns_add_u32 s70, s70, 16\ns_mov_b32 s{sCNT}, 3")
            a.label("L_gp")
            a(f"buffer_load_dword v40, v6, {S(SW)}, s34 offen sc1\ns_waitcnt vmcnt(0)")
            for sh in (8, 4, 2, 1): a(f"v_add_u32_dpp v40, v40, v40 row_ror:{sh} {FULL}")
            a("v_add_u32_dpp v40, v40, v40 row_bcast:15 row_mask:0xa bank_mask:0xf\nv_add_u32_dpp v40, v40, v40 row_bcast:31 row_mask:0xc bank_mask:0xf")
            a(f"v_readlane_b32 s71, v40, 63\ns_cmp_ge_u32 s71, s70\ns_cbranch_scc1 L_ga\ns_sub_u32 s{sCNT}, s{sCNT}, 1\ns_cbranch_scc0 L_gp")
            a.label("L_ga")
        a("s_mov_b32 s71, 1\ns_atomic_add s71, s[24:25], s66 glc\ns_waitcnt lgkmcnt(0)")
        a(f"s_sub_u32 s71, s71, {r0}\ns_mul_i32 s71, s71, {gain}\ns_ashr_i32 s71, s71, 2\nv_mov_b32 v42, s71")
        a("s_mov_b64 exec, 15")
        a(f"buffer_store_dword v42, v2, {S(SW)}, s34 offen offset:64")
        a("s_mov_b64 exec, -1")
        if rew:
            a(f"s_cmp_lt_u32 s35, {nR - rew}\ns_cbranch_scc1 L_gend")
            a("s_getpc_b64 s[66:67]")
            a.label("L_pc2", drain=False)
            a("s_sub_u32 s66, s66, L_pc2-L_tail\ns_subb_u32 s67, s67, 0\nv_min_u32 v2, L_helper-L_tail, v2\nglobal_load_dword v31, v2, s[66:67]")
        a.label("L_gend")
    if fb and gfb == 1:
        NIT = (15 - NP) + 1 + 15
        a("s_or_b32 s65, s35, s69\ns_cmp_lg_u32 s65, 0\ns_cbranch_scc1 L_gend")
        a(f"v_lshlrev_b32 v6, 2, v4\nv_lshl_add_u32 v6, v5, 7, v6\nv_mov_b32 v41, v{TG}\nv_mov_b32 v7, 0")
        a(f"s_lshl_b32 s66, s{sH}, {3 if gsc else 7}\ns_add_u32 s66, s66, {GMB}\ns_mov_b32 s67, {GMB}\ns_mov_b32 s{sCNT}, 200\ns_mov_b32 s70, -1")
        a.label("L_g")
        a(f"buffer_load_dword v40, v6, {S(SW)}, s34 offen sc1")
        if gsc:
            a(f"s_waitcnt lgkmcnt(0)\ns_load_dwordx16 s[4:19], s[26:27], {GMB} glc\ns_load_dwordx16 s[40:55], s[26:27], {GMB + 64} glc\ns_waitcnt vmcnt(0)")
        else:
            a("s_mov_b64 exec, 0xffff")
            a(f"buffer_load_dwordx2 v[42:43], v2, {S(SW)}, s67 offen sc1")
            a("s_mov_b64 exec, -1\ns_waitcnt vmcnt(1)")
        a(f"v_cmp_le_u32 vcc, {NIT - gexit}, v40\ns_or_b32 s65, vcc_lo, vcc_hi\ns_and_b32 s65, s65, 0x10001\ns_cbranch_scc1 L_gend")
        for sh in (8, 4, 2, 1): a(f"v_add_u32_dpp v40, v40, v40 row_ror:{sh} {FULL}")
        a("v_add_u32_dpp v40, v40, v40 row_bcast:15 row_mask:0xa bank_mask:0xf\nv_add_u32_dpp v40, v40, v40 row_bcast:31 row_mask:0xc bank_mask:0xf")
        a("v_readlane_b32 s71, v40, 63\nv_mov_b32 v40, s71")
        a("s_mov_b64 exec, 1")
        a(f"buffer_store_dwordx2 v[40:41], v7, {S(SW)}, s66 offen sc1")
        a("s_mov_b64 exec, -1\ns_waitcnt vmcnt(1)")
        a("s_cmp_eq_u32 s70, -1\ns_cbranch_scc1 L_gskip")
        if gavg: a("s_add_u32 s70, s70, s71\ns_lshr_b32 s70, s70, 1")
        if gsc:
            a("s_waitcnt lgkmcnt(0)\ns_mov_b32 s65, 0")
            for k in range(16):
                r = (4 + 2 * k) if k < 8 else (40 + 2 * (k - 8))
                a(f"s_cmp_eq_u32 s{r+1}, s{sTAG}\ns_cselect_b32 s{r}, s{r}, s70\ns_add_u32 s65, s65, s{r}")
            a(f"s_lshl_b32 s70, s70, 4\ns_sub_u32 s65, s65, s70\ns_ashr_i32 s65, s65, {4 + gsh}\ns_add_u32 s65, s65, {goff}\nv_mov_b32 v42, s65")
        else:
          a(f"v_mov_b32 v44, s70\nv_cmp_eq_u32 vcc, v43, v41\nv_cndmask_b32 v42, v44, v42, vcc\nv_sub_u32 v42, v42, v44")
          for sh in (8, 4, 2, 1): a(f"v_add_u32_dpp v42, v42, v42 row_ror:{sh} {FULL}")
          a(f"v_ashrrev_i32 v42, {4 + gsh}, v42")
          if goff: a(f"v_add_u32 v42, {goff}, v42")
        a("s_mov_b64 exec, 15")
        a(f"buffer_store_dword v42, v2, {S(SW)}, s34 offen offset:64")
        a("s_mov_b64 exec, -1")
        a.label("L_gskip")
        a("s_mov_b32 s70, s71")
        if gsleep: a(f"s_sleep {gsleep}")
        a(f"s_sub_u32 s{sCNT}, s{sCNT}, 1\ns_cbranch_scc0 L_g")
        a.label("L_gend")
        if gsc: a("s_waitcnt lgkmcnt(0)")
    stamp(5)
    pad("H")
    dump_stamps(7)
    a.label("L_end")
    a("s_endpgm")
    a.raw('.section .rodata,"a"'); a.raw(".p2align 6"); a.raw(f".amdhsa_kernel {NAME}")
    a.raw("  .amdhsa_next_free_vgpr 256"); a.raw("  .amdhsa_next_free_sgpr 102"); a.raw("  .amdhsa_accum_offset 256")
    a.raw("  .amdhsa_group_segment_fixed_size 0"); a.raw("  .amdhsa_kernarg_size 96"); a.raw("  .amdhsa_user_sgpr_count 2")
    a.raw("  .amdhsa_user_sgpr_kernarg_segment_ptr 1"); a.raw("  .amdhsa_system_sgpr_workgroup_id_x 1"); a.raw(".end_amdhsa_kernel")
    return a.text()

if __name__ == "__main__":
    out = sys.argv[1]
    kw = eval("dict(" + (sys.argv[2] if len(sys.argv) > 2 else "") + ")")
    open(out, "w").write(gen(**kw))
```

```python
import sys, struct, math
sys.path.insert(0, "gen")
from asmlib import Asm

NAME = "parallel_sum__mha_block_cached__geglu_ffn__decode_kernel"
HEADER = open("parallel_sum__mha_block_cached__geglu_ffn__decode.s.ref").read().split("; Override launch")[0]

def f2u(x): return struct.unpack("<I", struct.pack("<f", x))[0]

PMB = 0x8000
GMB = 0xC000
QMB = 0x10000
FMB = QMB + 64 * 4096
MB1 = 0xA0000
MB2 = 0x120000
TSB = 0x400000
WS_USED = TSB + 0x10000
assert FMB + 28 * 8192 <= MB1
PGL = 4112
XN, QL, TAGL, ML, HIMG, AIMG, OP, SC = 0, 3584, 4096, 4128, 4224, 4864, 6144, 10240
HROW, AROW = 144, 272
WL0 = SC + 16384
WL1 = WL0 + 14336
WL2 = WL1 + 16384
LDS_BYTES = WL2 + 8192

DOC = '''; ---------------------------------------------------------------------------------------------
; ---------------------------------------------------------------------------------------------'''
FULL = "row_mask:0xf bank_mask:0xf"
IDP = "quad_perm:[0,1,2,3]"

def gen(W=5, NP=5, nt="nt", wnt="nt", stamps=False, warm=True, sleep1=0, sleep2=0, sleepq=30, spin=1 << 18,
        padto=0, padwg=None, padstamp=None, HW=4, noffn=0, noq=0, nowo=0, touch=1, sleepf=60, fdma=1, fst=1, fpoll=1, qst=1, pat=5, Wend=None, nend=0, W0=None, osc='', scr=1, remap=2, D2=2, stag2=4, early1=0, role=3, fast=1, hoist=1, clean=0, fastq=1, fastf=1, nq=5, tlb=0, fb=1, Wup=6, thup=0, gfb=3, gsleep=8, goff=0, gsh=2, gavg=0, gsc=0, gexit=2, L0=6, dL=2, nR=9, nost2=0, nored=0, wos=(3,4,5,6,7,7), r0=8, gain=6, gpoll=1, st0=0, warm2=16, late=1, codekb=13, amp=0, lite=0, Wdn=4, thdn=-15, endp=None, pw=None, thw=None, hb=0, pre1=0, rew=0, stL=0, k1st=0, th2=8, g0=4, pf=0, pfs=7, pfnt='', pfth=None):
    assert not (fast or fastf) or role == 3
    assert early1 != 2 or hoist
    assert hb != 1 or set(wos) == {-2}
    assert hb != 2 or wos[:2] == (-2, -2)
    in_helper = [False]
    a = Asm()
    a.raw(HEADER.rstrip("\n"))
    a.raw(f"; @launch grid=(256,1,1) block=(320,1,1) lds={LDS_BYTES}")
    a.raw(DOC)
    a.raw('.amdgcn_target "amdgcn-amd-amdhsa--gfx950"')
    a.raw(".text"); a.raw(f".globl {NAME}"); a.raw(".p2align 8"); a.raw(f".type {NAME},@function")
    a.raw(f"{NAME}:")
    SK, SV, SW, SA, SB, SC_, SD = 28, 32, 36, 40, 44, 48, 52
    sB, sH, sJ, sIDX, sBH, sTAG, sCNT, sKO, sVO, sWv, sKG, sCG = 56, 57, 58, 59, 60, 61, 62, 63, 64, 72, 73, 79
    def srd(r, ptr, size):
        a(f"s_mov_b32 s{r}, s{ptr}\ns_mov_b32 s{r+1}, s{ptr+1}\ns_mov_b32 s{r+2}, {size}\ns_mov_b32 s{r+3}, 0x20000")
    def S(r): return f"s[{r}:{r+3}]"
    def V4(r): return f"v[{r}:{r+3}]"
    def V2(r): return f"v[{r}:{r+1}]"
    def stamp(k):
        if stamps or padstamp is not None:
            a(f"s_memrealtime s[{80+2*k}:{81+2*k}]")
    def dump_stamps(n):
        if not stamps: return
        a("s_waitcnt lgkmcnt(0)")
        a("s_mov_b64 exec, 1")
        a(f"s_mul_i32 s65, s2, 5\ns_add_u32 s65, s65, s3\ns_mul_i32 s65, s65, 48\ns_add_u32 s65, s65, {TSB}")
        a("v_mov_b32 v1, 0")
        for k in range(n):
            a(f"v_mov_b32 v2, s{80+2*k}")
            if lite and k not in (0, 4, 7): continue
            a(f"buffer_store_dword v2, v1, {S(SW)}, s65 offen offset:{4*k}")
        if not lite:
            a(f"v_mov_b32 v2, s{sCNT}\nbuffer_store_dword v2, v1, {S(SW)}, s65 offen offset:44")
            a("s_waitcnt vmcnt(0)")
    def pad(role):
        if not padto: return
        r, k = padstamp if padstamp is not None else ("S", 0)
        if r != role: return
        if padwg is not None: a(f"s_cmp_lg_u32 s2, {padwg}\ns_cbranch_scc1 L_end")
        if amp: a(f"s_waitcnt lgkmcnt(0)\ns_sub_u32 s65, s{80+2*k}, s80\ns_mul_i32 s65, s65, {amp - 1}\ns_add_u32 s{80+2*k}, s{80+2*k}, s65")
        a.label(f"L_pad{role}")
        a(f"s_sleep 1\ns_memrealtime s[98:99]\ns_waitcnt lgkmcnt(0)\ns_sub_u32 s98, s98, s{80+2*k}\ns_cmp_lt_i32 s98, {padto}\ns_cbranch_scc1 L_pad{role}")

    a("s_cmp_ge_u32 s2, 256\ns_cbranch_scc1 L_end")
    if k1st: a("s_load_dwordx16 s[4:19], s[0:1], 0")
    else: a("s_load_dwordx16 s[4:19], s[0:1], 0\ns_load_dwordx8 s[20:27], s[0:1], 64")
    stamp(0)
    a("v_lshrrev_b32 v1, 6, v0\nv_and_b32 v0, 63, v0\nv_readfirstlane_b32 s3, v1")
    if role == 1:
        a(f"s_and_b32 s65, s2, 7\ns_lshl_b32 s65, s65, 2\ns_bfe_u32 s{sKG}, s2, 0x20003\ns_or_b32 s{sKG}, s{sKG}, s65\ns_lshr_b32 s{sCG}, s2, 5")
    if role == 2:
        a(f"s_and_b32 s65, s2, 15\ns_lshl_b32 s65, s65, 1\ns_bfe_u32 s{sKG}, s2, 0x10004\ns_or_b32 s{sKG}, s{sKG}, s65\ns_lshr_b32 s{sCG}, s2, 5")
    if pat >= 3 and remap == 3:
        a("s_bfe_u32 s65, s2, 0x20003\ns_xor_b32 s2, s2, s65")
    if pat >= 3 and remap == 2:
        a("s_bfe_u32 s65, s2, 0x20003\ns_and_b32 s66, s2, 7\ns_lshl_b32 s66, s66, 2\ns_and_b32 s2, s2, 0xe0\ns_or_b32 s2, s2, s65\ns_or_b32 s2, s2, s66")
    a(f"s_lshr_b32 s{sB}, s2, 6\ns_lshr_b32 s{sBH}, s2, 2\ns_and_b32 s{sH}, s{sBH}, 15\ns_and_b32 s{sJ}, s2, 3\ns_and_b32 s{sIDX}, s2, 63")
    if role == 3:
        a(f"s_lshl_b32 s{sKG}, s{sH}, 1\ns_and_b32 s65, s{sJ}, 1\ns_or_b32 s{sKG}, s{sKG}, s65\ns_lshl_b32 s{sCG}, s{sB}, 1\ns_lshr_b32 s65, s{sJ}, 1\ns_or_b32 s{sCG}, s{sCG}, s65")
    if role == 0: a(f"s_lshr_b32 s{sKG}, s2, 3\ns_add_u32 s{sCG}, s2, s{sKG}\ns_and_b32 s{sCG}, s{sCG}, 7")
    a("v_and_b32 v4, 15, v0\nv_lshrrev_b32 v5, 4, v0")
    a("s_cmp_eq_u32 s3, 0\ns_cbranch_scc1 L_helper")

    vKO, vVO, vSC, vMAX, vL, vC, vMC, vS = 1, 2, 3, 6, 7, 28, 29, 30
    vJ, vG = 4, 5
    MASK, OACC, BB, QF, DA, TMP, R = 8, 12, 20, 32, 64, 84, 96
    def ring(tile, u): return R + 32 * tile + 4 * u
    a(f"s_sub_u32 s{sWv}, s3, 1")
    kb, wb = {0: ((9, 10), (11, 12)), 1: ((12, 13), (10, 11)), 2: ((12, 13), (14, 15)), 3: ((15, 13), (11, 14)), 4: ((15, 9), (11, 13)), 5: ((15, 13), (11, 14))}[pat]
    sM = 100
    a(f"v_and_b32 v{TMP+1}, 3, v{vJ}\nv_lshlrev_b32 v{TMP+1}, 4, v{TMP+1}")
    a(f"v_lshl_add_u32 v{TMP+1}, v{vG}, 6, v{TMP+1}")
    a(f"v_bfe_u32 v{TMP}, v0, 2, 1\nv_lshl_add_u32 v{vKO}, v{TMP}, {kb[0]}, v{TMP+1}\nv_bfe_u32 v{TMP}, v0, 3, 1\nv_lshl_add_u32 v{vKO}, v{TMP}, {kb[1]}, v{vKO}")
    if pat == 5:
        a(f"s_lshl_b32 s{sKO}, s{sBH}, 21\ns_and_b32 s65, s{sJ}, 1\ns_lshl_b32 s65, s65, 12\ns_add_u32 s{sKO}, s{sKO}, s65\ns_lshr_b32 s65, s{sJ}, 1\ns_lshl_b32 s65, s65, 16\ns_add_u32 s{sKO}, s{sKO}, s65")
    else: a(f"s_lshl_b32 s{sKO}, s2, 19")
    a(f"s_and_b32 s65, s{sWv}, 1\ns_lshl_b32 s65, s65, {wb[0]}\ns_add_u32 s{sKO}, s{sKO}, s65")
    a(f"s_lshr_b32 s65, s{sWv}, 1\ns_lshl_b32 s65, s65, {wb[1]}\ns_add_u32 s{sKO}, s{sKO}, s65")
    if pat in (3, 4):
        if scr:
            a(f"s_mul_i32 s65, s{sBH}, 0x9E3779B1\ns_and_b32 s{sM}, s65, 0x300000\ns_lshr_b32 s{sM}, s{sM}, 3\ns_or_b32 s{sM}, s{sM}, 0x10000")
            a(f"s_lshr_b32 s65, s65, 6\ns_and_b32 s65, s65, 0x70000\ns_or_b32 s{sKO}, s{sKO}, s65")
        else:
            a(f"s_mov_b32 s{sM}, 0x10000")
    a(f"s_mov_b32 s{sVO}, s{sKO}")
    a("s_waitcnt lgkmcnt(0)")
    if st0: stamp(5)
    srd(SK, 6, 1 << 27)
    vm = []
    def issue(kind, reg, u, tagid):
        sr, vo, so = (SK, vKO, sKO) if kind == "K" else (SV, vVO, sVO)
        o = {0: 256 * (u & 1), 1: 256 * (u & 3), 2: 256 * u, 3: 256 * u, 4: 256 * (u & 1) + 512 * (u & 2), 5: 256 * u}[pat]
        off = f" offset:{o}" if o else ""
        a(f"buffer_load_dwordx4 {V4(reg)}, v{vo}, {S(sr)}, s{so} offen{off} {nt}")
        if pat == 0 and u & 1: a(f"s_add_u32 s{so}, s{so}, 8192")
        if pat == 1 and (u & 3) == 3: a(f"s_add_u32 s{so}, s{so}, 16384")
        if pat == 4 and (u & 3) == 3: a(f"s_xor_b32 s{so}, s{so}, 0x4000")
        if pat == 5 and u == 7: a(f"s_add_u32 s{so}, s{so}, 0x20000")
        if pat in (3, 4) and u == 7:
            a(f"s_xor_b32 s{so}, s{so}, 0x1000\ns_bitcmp1_b32 s{so}, 12\ns_cselect_b32 s65, 0, s{sM}\ns_add_u32 s65, s65, s{so}\ns_and_b32 s65, s65, 0x70000\ns_andn2_b32 s{so}, s{so}, 0x70000\ns_or_b32 s{so}, s{so}, s65")
        if pat == 2 and u == 7:
            a(f"s_bitcmp1_b32 s{so}, 11\ns_cselect_b32 s65, {65536 - 4096}, 0\ns_add_u32 s{so}, s{so}, s65\ns_add_u32 s{so}, s{so}, 2048")
        vm.append(tagid)
    def wait_for(tagid):
        if tagid not in vm: return
        n = len(vm) - 1 - vm.index(tagid)
        assert n < 64
        a(f"s_waitcnt vmcnt({n})")
    nload = [0]
    curW = [W]
    adapt = [False]; nlab = [0]
    ctl = dict(Wup=Wup, thup=thup, Wdn=Wdn, thdn=thdn)
    def throttle_issue(kind, reg, u):
        n = nload[0]
        if adapt[0]:
            nlab[0] += 1
            a(f"s_cbranch_scc1 L_w{nlab[0]}", drain=False)
            if ctl["Wdn"]:
                a(f"s_cbranch_vccz L_m{nlab[0]}", drain=False); a.hist[-1].states = 0
                wait_for(("s", n - ctl["Wdn"])); a.hist[-1].states = 0
                a.label(f"L_m{nlab[0]}", drain=False)
            wait_for(("s", n - curW[0]))
            a.hist[-1].states = 0
            a.label(f"L_w{nlab[0]}", drain=False)
            if th2 is not None:
                a(f"s_cbranch_vccnz L_x{nlab[0]}", drain=False)
                wait_for(("s", n - ctl["Wup"])); a.hist[-1].states = 0
                a.label(f"L_x{nlab[0]}", drain=False)
                wait_for(("s", n - ctl["Wup"] - 1))
            else: wait_for(("s", n - ctl["Wup"]))
        else: wait_for(("s", n - curW[0]))
        issue(kind, reg, u, ("s", n)); nload[0] += 1
    W0 = W0 or W
    curW[0] = W0
    for n in range(W0):
        throttle_issue("K", ring(n // 8, n % 8), n % 8)
    curW[0] = W
    if k1st: a("s_load_dwordx8 s[20:27], s[0:1], 64")
    if warm2:
        a(f"s_and_b32 s65, s2, 0xe2\ns_lshl_b32 s65, s65, 2\ns_or_b32 s65, s65, s{sWv}\ns_cbranch_scc1 L_nowarm2", drain=False)
        a("s_getpc_b64 s[66:67]")
        a.label("L_pc", drain=False)
        a("v_lshlrev_b32 v2, 7, v0\nglobal_load_dword v31, v2, s[66:67]\nv_add_u32 v2, 0x2000, v2\nv_min_u32 v2, L_end-L_pc, v2")
        a("global_load_dword v31, v2, s[66:67]")
        a.label("L_nowarm2", drain=False)
    if warm and not warm2:
        a(f"s_cmp_lg_u32 s3, 1\ns_cbranch_scc1 L_nowarm")
        a(f"s_getpc_b64 s[66:67]\nv_lshlrev_b32 v{TMP+2}, 7, v0")
        a(f"global_load_dword v{TMP+3}, v{TMP+2}, s[66:67]")
        a.label("L_nowarm")
    def setup(a, srd):
        a(f"v_lshlrev_b32 v{vVO}, 4, v{vJ}\nv_bfe_u32 v{TMP}, v0, 4, 1\nv_lshl_add_u32 v{vVO}, v{TMP}, {kb[0]}, v{vVO}\nv_bfe_u32 v{TMP}, v0, 5, 1\nv_lshl_add_u32 v{vVO}, v{TMP}, {kb[1]}, v{vVO}")
        srd(SV, 8, 1 << 27); srd(SW, 26, WS_USED); srd(SC_, 22, 3584); srd(SD, 4, 3584)
        srd(SA, 12, 4096 * 896); srd(SB, 20, 1792 * 896)
        for k in range(32): a(f"v_mov_b32 v{QF+k}, 0")
        for k in range(8): a(f"v_mov_b32 v{OACC+k}, 0")
        a(f"v_mov_b32 v{vMAX}, 0xff800000\nv_mov_b32 v{vL}, 0\nv_mov_b32 v{vC}, {hex(f2u(math.log2(math.e) / 16))}")
        a(f"v_and_b32 v{TMP+4}, 1, v{vJ}\nv_lshlrev_b32 v{TMP+4}, 4, v{TMP+4}\nv_mov_b32 v{TMP+5}, 0xffff\nv_lshlrev_b32 v{TMP+4}, v{TMP+4}, v{TMP+5}")
        a(f"v_bfe_u32 v{TMP+5}, v{vJ}, 1, 2")
        for w in range(4):
            a(f"v_cmp_eq_u32 vcc, {w}, v{TMP+5}\nv_cndmask_b32 v{MASK+w}, 0, v{TMP+4}, vcc")
        a(f"s_lshl_b32 s65, s{sWv}, 12\ns_add_u32 s65, s65, {SC}\nv_lshl_add_u32 v{vSC}, v0, 2, s65")
    chunks = []
    def rec(t): chunks.append(t)
    def recsrd(r, ptr, size): rec(f"s_mov_b32 s{r}, s{ptr}\ns_mov_b32 s{r+1}, s{ptr+1}\ns_mov_b32 s{r+2}, {size}\ns_mov_b32 s{r+3}, 0x20000")
    setup(rec, recsrd)
    if not late:
        for t in chunks: a(t)
        chunks = []
    for n in range(W0, 8 * NP):
        if st0 and n == W0: stamp(3)
        throttle_issue("K", ring(n // 8, n % 8), n % 8)
        if st0 and n == W0: stamp(6)
        if st0 and n == W0 + 4: stamp(8)
        if st0 and n == W0 + 9: stamp(4)
        if n == 16 and k1st: a("s_waitcnt lgkmcnt(0)")
        if n >= 16:
            cnt = 0
            while chunks and cnt < 6:
                t = chunks.pop(0); a(t); cnt += t.count("\n") + 1
    assert not chunks
    if st0:
        _st = stamp
        def stamp(k):
            if k in (1, 2, 7) or in_helper[0]: _st(k)
    stamp(1)
    a("s_barrier")
    stamp(2)
    for t in range(4):
        m = 0x000F000F << (4 * t)
        a(f"s_mov_b32 exec_lo, {hex(m)}\ns_mov_b32 exec_hi, {hex(m)}")
        for half in range(2):
            a(f"ds_read_b128 {V4(QF + 4 * (2 * t + half))}, v{TMP+1} offset:{QL + 256 * half}")
    a("s_mov_b64 exec, -1")
    a(f"v_mov_b32 v{TMP}, 0\nds_read_b64 {V2(TMP+2)}, v{TMP} offset:{TAGL}")
    a("s_waitcnt lgkmcnt(0)")
    a(f"v_readfirstlane_b32 s{sTAG}, v{TMP+2}\nv_readfirstlane_b32 s101, v{TMP+3}")

    def consK(reg, u, d):
        c = "0" if u == 0 else V4(d)
        a(f"v_mfma_f32_16x16x32_bf16 {V4(d)}, {V4(reg)}, {V4(QF + 4 * u)}, {c}")
    def extract(ds, off0):
        for k, d in enumerate(ds): a(f"v_mov_b32_dpp v{TMP+k}, v{d} quad_perm:[0,0,0,0] {FULL}")
        for c in range(1, 4):
            for k, d in enumerate(ds): a(f"v_add_f32_dpp v{TMP+k}, v{d+c}, v{TMP+k} quad_perm:[{c},{c},{c},{c}] {FULL}")
        for k, d in enumerate(ds): a(f"v_cvt_pk_bf16_f32 v{TMP+k}, v{TMP+k}, v{TMP+k}")
        for k, d in enumerate(ds): a(f"v_and_b32 v{TMP+k}, 0xffff0000, v{TMP+k}")
        for k, d in enumerate(ds):
            a(f"ds_write_b32 v{vSC}, v{TMP+k} offset:{off0 + 256 * k}")
            a(f"v_max_f32 v{vMAX}, v{vMAX}, v{TMP+k}")
        a(f"v_add_u32 v{vSC}, {256 * len(ds)}, v{vSC}")
    for u in range(8):
        consK(ring(0, u), u, DA)
        throttle_issue("K", ring(0, u), u)
        for T in range(1, NP): consK(ring(T, u), u, DA + 4 * T)
    extract([DA + 4 * T for T in range(NP)], 0)

    T0 = R + 32
    vX, vXO, vOPW, vMLW, vOPR, vZ, vL16, vST2, vTR, vTR2, vTRD, vTRD2, vHA, vAR, vAW, vWO, vWD = range(T0, T0 + 17)
    vML = T0 + 18
    G = T0 + 20
    GR = T0 + 36
    P1 = T0 + 40
    AH = T0 + 56
    AO = T0 + 64
    BW = T0 + 80
    BD = T0 + 96
    Y = T0 + 104
    E = T0 + 108
    def tail_addr():
        a(f"s_lshl_b32 s65, s{sWv}, 10\ns_add_u32 s65, s65, {OP}\nv_lshl_add_u32 v{vOPW}, v0, 4, s65")
        a(f"s_lshl_b32 s65, s{sWv}, 3\ns_add_u32 s65, s65, {ML}\nv_mov_b32 v{vMLW}, s65")
        a(f"s_lshl_b32 s65, s{sWv}, 8\ns_add_u32 s65, s65, {OP}\nv_lshl_add_u32 v{vOPR}, v0, 3, s65")
        a(f"v_mov_b32 v{vZ}, 0\nv_lshlrev_b32 v{vL16}, 4, v0\nv_mov_b32 v{GR+3}, s{sTAG}")
        a(f"s_lshl_b32 s70, s2, 11\ns_lshl_b32 s65, s{sWv}, 9\ns_add_u32 s70, s70, s65\ns_add_u32 s70, s70, {MB1}")
        a(f"s_lshl_b32 s71, s{sWv}, 17\ns_lshr_b32 s65, s{sKG}, 1\ns_lshl_b32 s65, s65, 13\ns_add_u32 s71, s71, s65")
        a(f"s_and_b32 s65, s{sKG}, 1\ns_lshl_b32 s65, s65, 10\ns_add_u32 s71, s71, s65\ns_add_u32 s71, s71, {MB1}\ns_add_u32 s74, s71, 4096")
        a(f"v_lshrrev_b32 v{E}, 3, v0\nv_and_b32 v{E+1}, 7, v0\nv_and_b32 v{E+2}, 2, v{E}\nv_xor_b32 v{E+1}, v{E+1}, v{E+2}\nv_lshlrev_b32 v{E+1}, 4, v{E+1}")
        a(f"v_and_b32 v{E+2}, 3, v{E}\nv_lshlrev_b32 v{E+2}, 3, v{E+2}\nv_lshrrev_b32 v{E+3}, 2, v{E}\nv_add_u32 v{E+2}, v{E+2}, v{E+3}")
        a(f"v_mul_u32_u24 v{vWO}, 896, v{E+2}\nv_mul_u32_u24 v{vWD}, 896, v{E}")
        a(f"s_and_b32 s65, s{sWv}, 1\ns_lshl_b32 s65, s65, 6\nv_xor_b32 v{E+1}, s65, v{E+1}")
        a(f"v_add_u32 v{vWO}, v{vWO}, v{E+1}\nv_add_u32 v{vWD}, v{vWD}, v{E+1}")
        a(f"s_lshr_b32 s66, s{sKG}, 1\ns_lshl_b32 s66, s66, 8\ns_and_b32 s65, s{sKG}, 1\ns_lshl_b32 s65, s65, 6\ns_add_u32 s66, s66, s65")
        a(f"s_lshl_b32 s65, s{sWv}, 1\ns_add_u32 s66, s66, s65\ns_mul_i32 s66, s66, 896\ns_lshl_b32 s65, s{sCG}, 7\ns_add_u32 s66, s66, s65")
        a(f"s_lshl_b32 s67, s{sKG}, 6\ns_lshl_b32 s68, s{sWv}, 3\ns_add_u32 s67, s67, s68\ns_mul_i32 s67, s67, 896\ns_add_u32 s67, s67, s65")
        a(f"s_lshl_b32 s75, s{sWv}, 10")
        if pf:
            a(f"s_sub_u32 s19, s66, s65")
            a(f"s_add_u32 s76, s{sCG}, 1\ns_cmp_ge_u32 s76, 7\ns_cselect_b32 s76, 0, s76\ns_add_u32 s77, s{sCG}, 6\ns_cmp_ge_u32 s77, 7\ns_cselect_b32 s65, 7, 0\ns_sub_u32 s77, s77, s65")
            a(f"v_bfe_u32 v{E}, v0, 3, 1\nv_lshlrev_b32 v{E}, 7, v{E}\nv_bfe_u32 v{E+1}, v0, 4, 1\nv_lshl_add_u32 v{E}, v{E+1}, 5, v{E}")
            a(f"v_and_b32 v{E+1}, 3, v0\nv_lshl_add_u32 v{E}, v{E+1}, 3, v{E}\nv_bfe_u32 v{E+1}, v0, 2, 1\nv_add_u32 v{E}, v{E}, v{E+1}\nv_mul_u32_u24 v{vTR2}, 896, v{E}")
            a(f"v_mov_b32 v{E}, s76\nv_mov_b32 v{E+1}, s77\nv_cmp_gt_u32 vcc, 32, v0\nv_cndmask_b32 v{E}, v{E+1}, v{E}, vcc\nv_lshl_add_u32 v{vTR2}, v{E}, 7, v{vTR2}")
        a(f"v_lshrrev_b32 v{E}, 2, v{vJ}\nv_bfe_u32 v{E+1}, v{vJ}, 1, 1\ns_lshl_b32 s65, s{sWv}, 1\nv_add_u32 v{E+1}, s65, v{E+1}")
        a(f"v_and_b32 v{E+2}, 2, v{E}\nv_xor_b32 v{E+1}, v{E+1}, v{E+2}")
        a(f"v_and_b32 v{E+3}, 1, v{vJ}\nv_lshlrev_b32 v{E+3}, 3, v{E+3}\nv_lshl_add_u32 v{E+3}, v{E}, 7, v{E+3}")
        a(f"v_and_b32 v{E+2}, 1, v{vG}\nv_lshlrev_b32 v{E+2}, 2, v{E+2}\nv_xor_b32 v{E+4}, v{E+1}, v{E+2}")
        a(f"v_lshl_add_u32 v{vTR}, v{E+4}, 4, v{E+3}\nv_lshl_add_u32 v{vTR}, v{vG}, 10, v{vTR}")
        a(f"v_mul_u32_u24 v{vHA}, {HROW}, v{E}\nv_lshl_add_u32 v{vHA}, v{vG}, 4, v{vHA}")
        a(f"v_mul_u32_u24 v{vAR}, {AROW}, v{E}\nv_lshl_add_u32 v{vAR}, v{vG}, 4, v{vAR}")
        a(f"s_mul_i32 s65, s{sWv}, {AROW}\ns_add_u32 s65, s65, {AIMG}\nv_lshl_add_u32 v{vAW}, v0, 2, s65")
        a(f"v_lshlrev_b32 v{vST2}, 3, v{vJ}\nv_lshl_add_u32 v{vST2}, v{vG}, 12, v{vST2}")
        a(f"s_lshl_b32 s68, s{sCG}, 2\ns_add_u32 s68, s68, s{sWv}\ns_lshl_b32 s68, s68, 14\ns_lshl_b32 s65, s{sKG}, 7\ns_add_u32 s68, s68, s65\ns_add_u32 s68, s68, {MB2}")
        a(f"s_and_b32 s78, s{sKG}, 0xfc\ns_add_u32 s78, s78, s{sWv}\ns_lshl_b32 s69, s78, 4\ns_lshl_b32 s78, s78, 2\ns_and_b32 s65, s{sKG}, 3\ns_add_u32 s78, s78, s65")
        a(f"s_lshl_b32 s78, s78, 12\ns_add_u32 s78, s78, {MB2}\ns_mul_i32 s65, s65, 448\ns_add_u32 s69, s69, s65\ns_lshl_b32 s69, s69, 1")
        a(f"v_and_b32 v{E}, 7, v0\nv_and_b32 v{E+1}, 1, v{vG}\nv_lshlrev_b32 v{vXO}, 2, v{E}\nv_lshl_add_u32 v{vXO}, v{E+1}, 1, v{vXO}")
    tail_addr()
    if tlb:
        a("s_cmp_lg_u32 s3, 1\ns_cbranch_scc1 L_notlb")
        a("s_mov_b64 exec, 1")
        if tlb & 1: a(f"buffer_load_dword v{E+7}, v{vZ}, {S(SV)}, s{sVO} offen {nt}")
        if tlb & 2:
            a(f"buffer_load_dword v{E+7}, v{vZ}, {S(SA)}, s66 offen {nt}")
            a(f"buffer_load_dword v{E+7}, v{vZ}, {S(SB)}, s67 offen {nt}")
        a("s_mov_b64 exec, -1")
        a.label("L_notlb")

    cw = [wos]
    def wo_dma(step):
        if nowo: return
        for c in range(6):
            if cw[0][c] != step: continue
            if c >= 2:
                a(f"s_add_u32 s65, s66, {(128 * (c & 1) + 32 * ((c - 2) >> 1)) * 896}\ns_add_u32 m0, s75, {WL1 + 4096 * (c - 2)}")
                a(f"buffer_load_dwordx4 v{vWO}, {S(SA)}, s65 offen {wnt} lds"); vm.append(("wo", c))
            else:
                a(f"s_add_u32 s65, s67, {32 * 896 * c}\ns_add_u32 m0, s75, {WL2 + 4096 * c}")
                a(f"buffer_load_dwordx4 v{vWD}, {S(SB)}, s65 offen {wnt} lds"); vm.append(("wd", c))
        if pf and step == pfs:
            if pfth is not None: a(f"s_cmp_gt_i32 s17, {pfth}\ns_cselect_b32 s19, 0x40000000, s19")
            if pf == 1: a("s_mov_b32 exec_hi, 0")
            a(f"buffer_load_dword v{vTRD}, v{vTR2}, {S(SA)}, s19 offen {pfnt}"); vm.append("pf")
            if pf == 1: a("s_mov_b32 exec_hi, -1")
    vPG, vPR, vPA = E + 8, E + 9, E + 10
    sPS, sPL, sPT = 12, 13, 14
    if fb:
        a(f"s_add_u32 s65, s{sWv}, s{sJ}\ns_and_b32 s65, s65, 3\ns_lshl_b32 s{sPL}, s{sH}, 2\ns_add_u32 s{sPL}, s{sPL}, s65\ns_lshl_b32 s{sPL}, s{sPL}, 7\ns_add_u32 s{sPL}, s{sPL}, {PMB}")
        a(f"s_cmp_lg_u32 s101, 0\ns_cselect_b32 s{sPL}, 0x40000000, s{sPL}\ns_cselect_b32 s{sPT}, 8, 0\ns_cselect_b32 s16, 0, 16")
        a(f"s_lshl_b32 s65, s{sB}, 2\ns_add_u32 s65, s65, s{sJ}\ns_lshl_b32 s65, s65, 2\ns_add_u32 s{sPS}, s{sPL}, s65")
        a(f"s_lshl_b32 s65, s{sWv}, 2\ns_add_u32 s65, s65, {PGL}\nv_mov_b32 v{vPA+1}, s65")
        a(f"v_mov_b32 v{vPG}, 0\nv_bfe_i32 v{vPR}, v0, 0, 1\nv_lshlrev_b32 v{vPA}, 2, v0")
    def progress():
        if not fb: return
        if gfb: a(f"v_readlane_b32 s15, v{vPR}, 16")
        for sh in (8, 4, 2, 1): a(f"v_add_u32_dpp v{vPR}, v{vPR}, v{vPR} row_ror:{sh} {FULL}")
        a(f"v_add_u32 v{vPG}, 1, v{vPG}\nv_readfirstlane_b32 s65, v{vPR}")
        if gfb: a(f"s_add_u32 s65, s65, s15")
        a("s_mov_b64 exec, 1")
        a(f"buffer_store_dword v{vPG}, v{vZ}, {S(SW)}, s{sPS} offen"); vm.append(("ps", nload[0]))
        if gfb >= 2: a(f"ds_write_b32 v{vPA+1}, v{vPG}")
        a(f"s_mov_b64 exec, {'0x1ffff' if gfb else '0xffff'}")
        a(f"buffer_load_dword v{vPR}, v{vPA}, {S(SW)}, s{sPL} offen sc1"); vm.append(("pl", nload[0]))
        a("s_mov_b64 exec, -1")
        a(f"s_sub_u32 s17, s65, s{sPT}\ns_add_u32 s{sPT}, s{sPT}, s16")
        if th2 is not None: a(f"s_sub_u32 s65, s17, {ctl['thdn']}\ns_cmp_gt_u32 s65, {th2 - ctl['thdn']}\ns_cselect_b64 vcc, -1, 0")
        elif ctl["Wdn"]: a(f"s_cmp_lt_i32 s17, {ctl['thdn']}\ns_cselect_b64 vcc, -1, 0")
        a(f"s_cmp_gt_i32 s17, {ctl['thup']}")
        adapt[0] = True
    def iterK(nextkind):
        progress()
        for u in range(8):
            consK(ring(0, u), u, DA)
            throttle_issue(nextkind, ring(0, u), u)
            if nextkind == "V" and u == 0 and -2 in wos:
                a("s_cselect_b32 s18, 1, 0")
                a(f"s_cmp_eq_u32 s{sCG}, 7\ns_cselect_b32 s66, 0x40000000, s66\ns_cselect_b32 s67, 0x40000000, s67")
                wo_dma(-2)
                a("s_cmp_lg_u32 s18, 0")
        extract([DA], 0)
    a("; K loop")
    a(f"s_mov_b32 s{sCNT}, {15 - NP}")
    a.label("L_kk")
    iterK("K")
    a(f"s_sub_u32 s{sCNT}, s{sCNT}, 1\ns_cmp_lg_u32 s{sCNT}, 0\ns_cbranch_scc1 L_kk")
    iterK("V")
    compute_pre = lambda: (a(f"v_not_b32 v{P1+3}, v{GR+3}\nv_mov_b32 v{P1}, 0\nv_mov_b32 v{P1+1}, 0\nv_mov_b32 v{P1+2}, 0\ns_mov_b32 exec_hi, 0"),
                           a(f"buffer_store_dwordx4 {V4(P1)}, v{vL16}, {S(SW)}, s70 offen\ns_mov_b32 exec_hi, -1"))
    if pre1 == 1: compute_pre()
    stamp(3)
    a(f"v_subrev_u32 v{vSC}, 4096, v{vSC}")
    a(f"ds_read_b32 v{vS}, v{vSC}")
    a(f"v_max_f32_dpp v{vMAX}, v{vMAX}, v{vMAX} row_ror:4 {FULL}")
    a(f"v_max_f32_dpp v{vMAX}, v{vMAX}, v{vMAX} row_ror:8 {FULL}")
    a(f"v_max_f32_dpp v{vMAX}, v{vMAX}, v{vMAX} row_bcast:15 row_mask:0xa bank_mask:0xf")
    a(f"v_max_f32_dpp v{vMAX}, v{vMAX}, v{vMAX} row_bcast:31 row_mask:0xc bank_mask:0xf")
    a(f"v_readlane_b32 s65, v{vMAX}, 63")
    a(f"v_mul_f32 v{vMC}, s65, v{vC}")
    vP = TMP
    def ld1(k): a(f"buffer_load_dwordx4 {V4(P1+4*k)}, v{vL16}, {S(SW)}, s{71 if k < 2 else 74} offen{' offset:2048' if k & 1 else ''} sc1")
    def last_extra():
        a(f"s_cmp_eq_u32 s{sCG}, 7\ns_cselect_b32 s66, 0x40000000, s66\ns_cselect_b32 s67, 0x40000000, s67\ns_cselect_b32 s69, s69, 0x40000000")
        wo_dma(-1)
        a(f"buffer_load_ushort v{vX}, v{vXO}, {S(SD)}, s69 offen"); vm.append("x")
        if touch:
            a(f"buffer_load_ushort v{E+7}, v{vXO}, {S(SC_)}, s69 offen"); vm.append("o")
        a(f"v_add_f32_dpp v{vL}, v{vL}, v{vL} row_ror:4 {FULL}")
        a(f"v_add_f32_dpp v{vL}, v{vL}, v{vL} row_ror:8 {FULL}")
        a(f"v_add_f32_dpp v{vL}, v{vL}, v{vL} row_bcast:15 row_mask:0xa bank_mask:0xf")
        a(f"v_add_f32_dpp v{vL}, v{vL}, v{vL} row_bcast:31 row_mask:0xc bank_mask:0xf")
        a(f"v_mov_b32 v{vML}, v{vMC}\nv_mov_b32 v{vML+1}, v{vL}")
        a("s_mov_b32 exec_lo, 0\ns_mov_b32 exec_hi, 0x80000000")
        a(f"ds_write_b64 v{vMLW}, {V2(vML)}")
        a("s_mov_b64 exec, -1")
        if hoist:
            a("s_waitcnt lgkmcnt(0)\ns_barrier")
            if early1 == 2:
                for k in range(4): ld1(k); vm.append(("p1", k))
            a(f"ds_read_b128 {V4(G)}, v{vZ} offset:{ML}\nds_read_b128 {V4(G+4)}, v{vZ} offset:{ML+16}\ns_waitcnt lgkmcnt(0)")
            if hb:
                a(f"ds_read_b128 {V4(AH)}, v{vHA} offset:{HIMG}\nds_read_b128 {V4(AH+4)}, v{vHA} offset:{HIMG+64}")
                a(f"ds_read_b64_tr_b16 {V2(BD)}, v{vTR} offset:{WL2}\nds_read_b64_tr_b16 {V2(BD+2)}, v{vTR} offset:{WL2+512}")
                a(f"ds_read_b64_tr_b16 {V2(BD+4)}, v{vTR} offset:{WL2+4096}\nds_read_b64_tr_b16 {V2(BD+6)}, v{vTR} offset:{WL2+4096+512}")
                if hb == 1:
                    for k in range(4): a(f"ds_read_b64_tr_b16 {V2(BW+4*k)}, v{vTR} offset:{WL1+4096*k}\nds_read_b64_tr_b16 {V2(BW+4*k+2)}, v{vTR} offset:{WL1+4096*k+512}")
            weights()
            if hb:
                a("s_waitcnt lgkmcnt(0)")
                a(f"v_mfma_f32_16x16x32_bf16 {V4(Y)}, {V4(AH)}, {V4(BD)}, 0")
                a(f"v_mfma_f32_16x16x32_bf16 {V4(Y)}, {V4(AH+4)}, {V4(BD+4)}, {V4(Y)}")
    def weights():
        ms, ls = [G, G+2, G+4, G+6], [G+1, G+3, G+5, G+7]
        a(f"v_max3_f32 v{E+4}, v{ms[0]}, v{ms[1]}, v{ms[2]}\nv_max_f32 v{E+4}, v{E+4}, v{ms[3]}")
        for k in range(4): a(f"v_sub_f32 v{ms[k]}, v{ms[k]}, v{E+4}")
        for k in range(4): a(f"v_exp_f32 v{ms[k]}, v{ms[k]}")
        a(f"v_mul_f32 v{E+5}, v{ms[0]}, v{ls[0]}")
        for k in range(1, 4): a(f"v_fmac_f32 v{E+5}, v{ms[k]}, v{ls[k]}")
        a(f"v_rcp_f32 v{E+6}, v{E+5}\nv_log_f32 v{E+5}, v{E+5}")
        for k in range(4): a(f"v_mul_f32 v{ms[k]}, v{ms[k]}, v{E+6}")
        a(f"v_add_f32 v{GR+2}, v{E+4}, v{E+5}")
    def iterV(last):
        a("s_waitcnt lgkmcnt(0)")
        a(f"v_fma_f32 v{vP}, v{vS}, v{vC}, -v{vMC}")
        a(f"v_exp_f32 v{vP}, v{vP}")
        if not last:
            a(f"v_add_u32 v{vSC}, 256, v{vSC}\nds_read_b32 v{vS}, v{vSC}")
        a(f"v_add_f32 v{vL}, v{vL}, v{vP}")
        a(f"v_cvt_pk_bf16_f32 v{vP}, v{vP}, v{vP}")
        if last: last_extra()
        else: progress()
        base = nload[0] - 8
        for u in range(8):
            t, half = u >> 1, u & 1
            b = BB + 4 * (t & 1)
            if half == 0:
                for w in range(4): a(f"v_and_b32_dpp v{b+w}, v{vP}, v{MASK+w} row_newbcast:{4*t} {FULL}")
            if last: wait_for(("s", base + u))
            a(f"v_mfma_f32_16x16x32_bf16 {V4(OACC + 4 * half)}, {V4(ring(0, u))}, {V4(b)}, {V4(OACC + 4 * half)}")
            if not last: throttle_issue("V", ring(0, u), u)
            elif u < 7: wo_dma(u)
    a("; V loop")
    a(f"s_mov_b32 s{sCNT}, {15 - nend}")
    a.label("L_vv")
    iterV(False)
    a(f"s_sub_u32 s{sCNT}, s{sCNT}, 1\ns_cmp_lg_u32 s{sCNT}, 0\ns_cbranch_scc1 L_vv")
    if nend:
        if pre1 == 2: compute_pre()
        curW[0] = Wend or W
        ctl.update(endp or {})
        a(f"s_mov_b32 s{sCNT}, {nend}")
        a.label("L_vv2")
        iterV(False)
        a(f"s_sub_u32 s{sCNT}, s{sCNT}, 1\ns_cmp_lg_u32 s{sCNT}, 0\ns_cbranch_scc1 L_vv2")
    a.label("L_tail", drain=False)
    if stL: stamp(3)
    def final_iter():
        iterV(True)
        stamp(4)
        for r in range(4): a(f"v_mov_b32_dpp v{OACC+r}, v{OACC+4+r} {IDP} row_mask:0xf bank_mask:0xc")
        a(f"ds_write_b128 v{vOPW}, {V4(OACC)}")
        wo_dma(7)
    if thw is not None:
        a(f"v_readlane_b32 s15, v{vPR}, 16")
        for sh in (8, 4, 2, 1): a(f"v_add_u32_dpp v{vPR}, v{vPR}, v{vPR} row_ror:{sh} {FULL}")
        a(f"v_readfirstlane_b32 s65, v{vPR}\ns_add_u32 s65, s65, s15\ns_sub_u32 s17, s65, s{sPT}")
        a(f"s_cmp_gt_i32 s17, {thw}\ns_cbranch_scc1 L_lastE")
        sv = list(vm)
        final_iter()
        a("s_branch L_lastJ")
        a.label("L_lastE")
        vm[:] = sv; cw[0] = (-1,) * 6
        final_iter()
        a.label("L_lastJ")
    else: final_iter()
    a("s_waitcnt lgkmcnt(0)")
    a("s_barrier")
    a("s_mov_b32 exec_hi, 0")
    if not hoist: a(f"ds_read_b128 {V4(G)}, v{vZ} offset:{ML}\nds_read_b128 {V4(G+4)}, v{vZ} offset:{ML+16}")
    for w in range(4): a(f"ds_read_b64 {V2(G+8+2*w)}, v{vOPR} offset:{1024*w}")
    if not hoist:
        a("s_waitcnt lgkmcnt(4)")
        weights()
    ms = [G, G+2, G+4, G+6]
    a("s_cmp_lg_u32 s101, 0")
    a("s_waitcnt lgkmcnt(3)")
    a(f"v_pk_mul_f32 {V2(GR)}, {V2(G+8)}, {V2(ms[0])} op_sel_hi:[1,0]")
    for k in range(1, 4):
        a(f"s_waitcnt lgkmcnt({3-k})")
        a(f"v_pk_fma_f32 {V2(GR)}, {V2(G+8+2*k)}, {V2(ms[k])}, {V2(GR)} op_sel_hi:[1,0,1]")
    if fast:
        a("s_cbranch_scc1 L_st1far", drain=False)
        a(f"buffer_store_dwordx4 {V4(GR)}, v{vL16}, {S(SW)}, s70 offen")
        a("s_branch L_st1done", drain=False)
        a.label("L_st1far", drain=False)
    a(f"buffer_store_dwordx4 {V4(GR)}, v{vL16}, {S(SW)}, s70 offen sc1")
    if fast: a.label("L_st1done", drain=False)
    def st1_global():
        a("s_mov_b32 exec_hi, 0")
        a(f"buffer_store_dwordx4 {V4(GR)}, v{vL16}, {S(SW)}, s70 offen sc1")
        a("s_mov_b32 exec_hi, -1")
    a("s_mov_b64 exec, -1")
    stamp(8)
    a(f"s_mov_b32 s{sCNT}, {spin}")
    a(f"s_cmp_eq_u32 s{sCG}, 7\ns_cbranch_scc1 L_reduce", drain=False)
    if not early1:
        if pw is not None: a(f"s_waitcnt vmcnt({pw})")
        for k in range(4): ld1(k)
    if not hb: a(f"ds_read_b128 {V4(AH)}, v{vHA} offset:{HIMG}\nds_read_b128 {V4(AH+4)}, v{vHA} offset:{HIMG+64}")
    if early1: a("s_waitcnt vmcnt(1)\ns_branch L_p1c", drain=False)
    a.label("L_p1", drain=False)
    a("s_waitcnt vmcnt(0)")
    a.label("L_p1c", drain=False)
    MK = [4, 6, 8, 10]
    for k in range(4): a(f"v_cmp_ne_u32 s[{MK[k]}:{MK[k]+1}], s{sTAG}, v{P1+4*k+3}")
    a(f"s_or_b64 s[76:77], s[4:5], s[6:7]\ns_or_b64 vcc, s[8:9], s[10:11]\ns_or_b64 s[76:77], s[76:77], vcc")
    a("s_cbranch_scc0 L_p1ok", drain=False)
    if sleep1: a(f"s_sleep {sleep1}")
    for k in range(4):
        a(f"s_cmp_eq_u64 s[{MK[k]}:{MK[k]+1}], 0\ns_cbranch_scc1 L_p1s{k}", drain=False)
        ld1(k)
        a.label(f"L_p1s{k}", drain=False)
    a(f"s_sub_u32 s{sCNT}, s{sCNT}, 1\ns_cbranch_scc0 L_p1", drain=False)
    a.label("L_p1ok", drain=False)
    stamp(5)
    lam = [P1+2, P1+6, P1+10, P1+14]
    a(f"v_max3_f32 v{E+4}, v{lam[0]}, v{lam[1]}, v{lam[2]}\nv_max_f32 v{E+4}, v{E+4}, v{lam[3]}")
    for k in range(4): a(f"v_sub_f32 v{lam[k]}, v{lam[k]}, v{E+4}")
    for k in range(4): a(f"v_exp_f32 v{lam[k]}, v{lam[k]}")
    a(f"v_add_f32 v{E+5}, v{lam[0]}, v{lam[1]}\nv_pk_mul_f32 {V2(G)}, {V2(P1)}, {V2(lam[0])} op_sel_hi:[1,0]\nv_add_f32 v{E+6}, v{lam[2]}, v{lam[3]}")
    a(f"v_pk_fma_f32 {V2(G)}, {V2(P1+4)}, {V2(lam[1])}, {V2(G)} op_sel_hi:[1,0,1]\nv_add_f32 v{E+6}, v{E+5}, v{E+6}")
    a(f"v_pk_fma_f32 {V2(G)}, {V2(P1+8)}, {V2(lam[2])}, {V2(G)} op_sel_hi:[1,0,1]\nv_rcp_f32 v{E+6}, v{E+6}")
    a(f"v_pk_fma_f32 {V2(G)}, {V2(P1+12)}, {V2(lam[3])}, {V2(G)} op_sel_hi:[1,0,1]")
    a(f"v_pk_mul_f32 {V2(G)}, {V2(G)}, {V2(E+6)} op_sel_hi:[1,0]")
    a(f"v_cvt_pk_bf16_f32 v{G}, v{G}, v{G+1}")
    a(f"ds_write_b32 v{vAW}, v{G}")
    a("s_waitcnt lgkmcnt(0)")
    a("s_barrier")
    if not hb:
        a(f"ds_read_b64_tr_b16 {V2(BD)}, v{vTR} offset:{WL2}\nds_read_b64_tr_b16 {V2(BD+2)}, v{vTR} offset:{WL2+512}")
        a(f"ds_read_b64_tr_b16 {V2(BD+4)}, v{vTR} offset:{WL2+4096}\nds_read_b64_tr_b16 {V2(BD+6)}, v{vTR} offset:{WL2+4096+512}")
    for k in range(4):
        a(f"ds_read_b128 {V4(AO+4*k)}, v{vAR} offset:{AIMG+64*k}")
        if hb != 1: a(f"ds_read_b64_tr_b16 {V2(BW+4*k)}, v{vTR} offset:{WL1+4096*k}\nds_read_b64_tr_b16 {V2(BW+4*k+2)}, v{vTR} offset:{WL1+4096*k+512}")
    if not hb:
        a("s_waitcnt lgkmcnt(12)")
        a(f"v_mfma_f32_16x16x32_bf16 {V4(Y)}, {V4(AH)}, {V4(BD)}, 0")
        a(f"v_mfma_f32_16x16x32_bf16 {V4(Y)}, {V4(AH+4)}, {V4(BD+4)}, {V4(Y)}")
    for k in range(4):
        a(f"s_waitcnt lgkmcnt({(3 - k) * (1 if hb == 1 else 3)})")
        a(f"v_mfma_f32_16x16x32_bf16 {V4(Y)}, {V4(AO+4*k)}, {V4(BW+4*k)}, {V4(Y)}")
    a(f"v_mov_b32 v{Y+1}, v{GR+3}")
    if not nost2: a(f"buffer_store_dwordx2 {V2(Y)}, v{vST2}, {S(SW)}, s68 offen sc1")
    if fast and clean: st1_global()
    a("s_branch L_sdone")
    a.label("L_reduce")
    if fast and clean:
        a("s_sleep 12")
        st1_global()
    a(f"s_cmp_ge_u32 s{sKG}, 28\ns_cbranch_scc1 L_sdone")
    if nored: a("s_branch L_sdone")
    SETS = [R + 16 * d for d in range(2)] + [QF, QF + 16]
    def ld2(d):
        for k in range(4): a(f"buffer_load_dwordx4 {V4(SETS[d]+4*k)}, v{vL16}, {S(SW)}, s78 offen offset:{1024*k} sc1")
    a(f"s_waitcnt vmcnt(0)\nv_lshlrev_b32 v{vX}, 16, v{vX}")
    for d in range(D2 - 1):
        ld2(d)
        if stag2: a(f"s_sleep {stag2}")
    a.label("L_p2")
    for d in range(D2):
        ld2((d + D2 - 1) % D2)
        a(f"s_waitcnt vmcnt({4 * (D2 - 1)})")
        q = SETS[d]
        a(f"v_xor_b32 v{E}, v{q+1}, v{GR+3}\nv_xor_b32 v{E+1}, v{q+3}, v{GR+3}")
        for k in range(1, 4): a(f"v_bitop3_b32 v{E}, v{q+4*k+1}, v{GR+3}, v{E} bitop3:0xbe\nv_bitop3_b32 v{E+1}, v{q+4*k+3}, v{GR+3}, v{E+1} bitop3:0xbe")
        a(f"v_or_b32 v{E}, v{E}, v{E+1}\nv_add_f32 v{P1}, v{q}, v{q+4}\nv_add_f32 v{P1+2}, v{q+2}, v{q+6}\nv_cmp_ne_u32 vcc, 0, v{E}")
        a(f"v_add_f32 v{P1+8}, v{q+8}, v{q+12}\nv_add_f32 v{P1+10}, v{q+10}, v{q+14}")
        a("s_cbranch_vccz L_p2ok", drain=False)
    a(f"s_sub_u32 s{sCNT}, s{sCNT}, 1\ns_cbranch_scc0 L_p2", drain=False)
    a.label("L_p2ok", drain=False)
    stamp(6)
    a(f"v_add_f32 v{P1}, v{P1}, v{P1+8}\nv_add_f32 v{P1+2}, v{P1+2}, v{P1+10}")
    a(f"v_permlane16_swap_b32 v{P1}, v{P1+2}")
    a(f"v_add_f32 v{P1}, v{P1}, v{P1+2}")
    a(f"v_add_f32_dpp v{P1}, v{P1}, v{P1} row_ror:8 {FULL}")
    a(f"v_mov_b32 v{P1+2}, v{P1}")
    a(f"v_permlane32_swap_b32 v{P1}, v{P1+2}")
    a(f"v_add_f32 v{P1}, v{P1}, v{P1+2}\nv_add_f32 v{P1}, v{P1}, v{vX}")
    a(f"v_cvt_pk_bf16_f32 v{P1}, v{P1}, v{P1}")
    a(f"s_mov_b32 exec_hi, 0\ns_mov_b32 exec_lo, 0x00ff00ff")
    a(f"buffer_store_short v{P1}, v{vXO}, {S(SC_)}, s69 offen {osc}")
    a(f"s_or_b32 s65, s{sKG}, s{sWv}\ns_cmp_lg_u32 s65, 0\ns_cbranch_scc1 L_sdone")
    a("s_mov_b64 exec, 1")
    a(f"buffer_store_dword v{GR+3}, v{vZ}, {S(SW)}, 0 offen {osc}")
    a.label("L_sdone")
    stamp(7)
    pad("S")
    dump_stamps(9)
    a("s_endpgm")

    a.label("L_helper")
    in_helper[0] = True
    if k1st: a("s_load_dwordx8 s[20:27], s[0:1], 64")
    X, F, AF, AF2, BF, D, TG = 32, 64, 96, 112, 128, 184, 200
    a("s_setprio 3")
    a(f"v_mul_u32_u24 v6, 896, v5\nv_lshl_add_u32 v6, v4, 6, v6\nv_mov_b32 v7, 0x40000000\nv_cmp_gt_u32 s[74:75], 14, v4")
    a(f"v_cndmask_b32 v7, v7, v6, s[74:75]")
    a(f"v_lshrrev_b32 v8, 3, v0\nv_and_b32 v9, 7, v0\nv_lshlrev_b32 v9, 4, v9\nv_lshl_add_u32 v10, v8, 13, v9")
    a(f"v_mul_u32_u24 v11, 3584, v8\nv_add_u32 v11, v11, v9")
    a(f"s_mul_i32 s65, s{sB}, {112 * 8192}\ns_lshl_b32 s66, s{sIDX}, 7\ns_add_u32 s65, s65, s66")
    a("s_waitcnt lgkmcnt(0)")
    a(f"s_load_dword s{sTAG}, s[26:27], 0")
    srd(SA, 4, 3584)
    for u in range(4): a(f"buffer_load_dwordx4 {V4(X+4*u)}, v7, {S(SA)}, 0 offen offset:{16*u}")
    srd(SB, 10, 448 * 8192)
    def dma(sr, voff, so, stride, lds0, win=None):
        for k in range(14):
            if win and k >= win: a(f"s_waitcnt vmcnt({win-1})")
            a(f"s_mov_b32 m0, {lds0 + 1024 * k}")
            a(f"buffer_load_dwordx4 v{voff}, {S(sr)}, s{so} offen {wnt} lds")
            if k < 13: a(f"s_add_u32 s{so}, s{so}, {8 * stride}")
    if not noq: dma(SB, 10, 65, 8192, WL0)
    srd(SW, 26, WS_USED)
    nini = 0
    if fb:
        a(f"s_lshl_b32 s34, s{sH}, 9\ns_add_u32 s34, s34, {PMB}\ns_lshl_b32 s35, s{sB}, 2\ns_add_u32 s35, s35, s{sJ}\ns_lshl_b32 s68, s35, 2\ns_add_u32 s68, s68, s34")
        a(f"v_lshlrev_b32 v2, 7, v0\nv_mov_b32 v3, 0\ns_mov_b64 exec, 15")
        a(f"buffer_store_dword v3, v2, {S(SW)}, s68 offen"); nini += 1
        if gfb:
            a(f"s_cmp_eq_u32 s35, 0\ns_cselect_b32 s68, s34, 0x40000000")
            a(f"buffer_store_dword v3, v2, {S(SW)}, s68 offen offset:64"); nini += 1
        a("s_mov_b64 exec, -1")
    a(f"v_and_b32 v14, 3, v4\nv_lshrrev_b32 v15, 2, v4\ns_mul_i32 s65, s{sB}, 224")
    a(f"v_mul_u32_u24 v12, 896, v15\nv_add_u32 v12, s65, v12\nv_lshl_add_u32 v28, v5, 3, v12\nv_lshl_add_u32 v12, v5, 4, v12")
    a(f"s_lshr_b32 s65, s{sCG}, 1\ns_mul_i32 s65, s65, 224")
    a(f"v_mul_u32_u24 v30, 896, v14\nv_add_u32 v30, s65, v30\nv_lshl_add_u32 v31, v5, 3, v30\nv_lshl_add_u32 v30, v5, 4, v30")
    a(f"v_lshl_add_u32 v8, v5, 2, v14\nv_lshlrev_b32 v8, 4, v8\nv_lshl_add_u32 v8, v15, 16, v8")
    a(f"v_lshlrev_b32 v9, 5, v14\nv_lshl_add_u32 v9, v15, 3, v9\nv_lshl_add_u32 v9, v5, 7, v9")
    for t in range(1, 4): a(f"v_cmp_eq_u32 s[{26+2*t}:{27+2*t}], {t}, v14")
    a(f"v_lshlrev_b32 v15, 7, v15\nv_lshl_add_u32 v15, v14, 3, v15")
    a(f"v_lshl_add_u32 v13, v5, 10, v15\nv_lshl_add_u32 v29, v5, 9, v15")
    a(f"s_waitcnt vmcnt(14)" if not noq else "s_waitcnt vmcnt(0)")
    stamp(1)
    for k in range(16): a(f"v_lshlrev_b32 v{F+2*k}, 16, v{X+k}\nv_and_b32 v{F+2*k+1}, 0xffff0000, v{X+k}")
    a(f"v_pk_add_f32 v[14:15], {V2(F)}, {V2(F+2)}\nv_pk_add_f32 v[16:17], {V2(F+4)}, {V2(F+6)}")
    for k in range(4, 16, 2):
        a(f"v_pk_add_f32 v[14:15], v[14:15], {V2(F+2*k)}\nv_pk_add_f32 v[16:17], v[16:17], {V2(F+2*k+2)}")
    a("v_pk_add_f32 v[14:15], v[14:15], v[16:17]\nv_add_f32 v14, v14, v15")
    def rowsum(r):
        for sh in (8, 4, 2, 1): a(f"v_add_f32_dpp v{r}, v{r}, v{r} row_ror:{sh} {FULL}")
    rowsum(14)
    a(f"v_mul_f32 v18, {hex(f2u(-1.0 / 448))}, v14\nv_mov_b32 v19, v18")
    a("v_mov_b32 v14, 0\nv_mov_b32 v15, 0\nv_mov_b32 v16, 0\nv_mov_b32 v17, 0")
    for k in range(0, 16, 2):
        a(f"v_pk_add_f32 v[20:21], {V2(F+2*k)}, v[18:19]\nv_pk_add_f32 v[22:23], {V2(F+2*k+2)}, v[18:19]")
        a(f"v_pk_fma_f32 v[14:15], v[20:21], v[20:21], v[14:15]\nv_pk_fma_f32 v[16:17], v[22:23], v[22:23], v[16:17]")
    a("v_pk_add_f32 v[14:15], v[14:15], v[16:17]\nv_add_f32 v14, v14, v15\nv_cndmask_b32 v14, 0, v14, s[74:75]")
    rowsum(14)
    def rbf(r): a(f"v_cvt_pk_bf16_f32 v{r}, v{r}, v{r}\nv_and_b32 v{r}, 0xffff0000, v{r}")
    a(f"v_mul_f32 v14, {hex(f2u(1.0 / 448))}, v14"); rbf(14)
    a(f"v_add_f32 v14, {hex(f2u(1e-5))}, v14"); rbf(14)
    a("v_sqrt_f32 v14, v14"); rbf(14)
    a("v_rcp_f32 v16, v14\nv_mov_b32 v15, v14"); rbf(18)
    a("v_mov_b32 v17, v16\nv_mov_b32 v19, v18")
    for k in range(16):
        a(f"v_pk_add_f32 {V2(F+2*k)}, {V2(F+2*k)}, v[18:19]")
    for k in range(16):
        a(f"v_cvt_pk_bf16_f32 v{X+k}, v{F+2*k}, v{F+2*k+1}")
    for k in range(16): a(f"v_lshlrev_b32 v{F+2*k}, 16, v{X+k}\nv_and_b32 v{F+2*k+1}, 0xffff0000, v{X+k}")
    for k in range(16):
        t = 20 + 2 * (k & 3)
        a(f"v_pk_mul_f32 {V2(t)}, {V2(F+2*k)}, v[16:17]")
        a(f"v_pk_fma_f32 {V2(F+2*k)}, {V2(t)}, v[14:15], {V2(F+2*k)} neg_lo:[1,0,0] neg_hi:[1,0,0]")
        a(f"v_pk_fma_f32 {V2(t)}, {V2(F+2*k)}, v[16:17], {V2(t)}")
        a(f"v_cvt_pk_bf16_f32 v{X+k}, v{t}, v{t+1}")
    a("s_mov_b64 exec, s[74:75]")
    for u in range(4): a(f"ds_write_b128 v6, {V4(X+4*u)} offset:{XN + 16*u}")
    a("s_mov_b64 exec, -1")
    a("s_waitcnt lgkmcnt(0)")
    a(f"s_mul_i32 s{sTAG}, s{sTAG}, 0x9E3779B1\ns_add_u32 s{sTAG}, s{sTAG}, 0x7F4A7C15")
    for k in range(3): a(f"ds_read_b128 {V4(AF+4*k)}, v12 offset:{XN + 64*k}")
    a(f"ds_read_b64 {V2(AF+12)}, v28 offset:{XN + 192}")
    a(f"v_mov_b32 v{TG}, s{sTAG}\nv_lshrrev_b32 v{TG+1}, 8, v{TG}\nv_lshrrev_b32 v{TG+2}, 16, v{TG}\nv_lshrrev_b32 v{TG+3}, 24, v{TG}\ns_movk_i32 s78, 0xff")
    a(f"v_lshlrev_b32 v10, 4, v0")
    a(f"s_lshl_b32 s66, s{sH}, 12\ns_lshl_b32 s67, s{sB}, 10\ns_add_u32 s66, s66, s67\ns_lshl_b32 s67, s{sJ}, 8\ns_add_u32 s66, s66, s67\ns_add_u32 s66, s66, {QMB}")
    a(f"s_lshl_b32 s67, s{sBH}, 12\ns_add_u32 s67, s67, {QMB}")
    a("s_waitcnt vmcnt(0)")
    stamp(2)
    a(f"s_getreg_b32 s69, hwreg(HW_REG_XCC_ID, 0, 4)\nv_xor_b32 v{TG+4}, s69, v{TG+3}")
    def piece(af, transposed):
        for t in range(4):
            for k in range(3):
                o = WL0 + 4096 * k + 32 * t
                a(f"ds_read_b64_tr_b16 {V2(BF+14*t+4*k)}, v13 offset:{o}\nds_read_b64_tr_b16 {V2(BF+14*t+4*k+2)}, v13 offset:{o + 512}")
            a(f"ds_read_b64_tr_b16 {V2(BF+14*t+12)}, v29 offset:{WL0 + 12288 + 32 * t}")
        a("s_waitcnt lgkmcnt(0)")
        for k in range(3):
            for t in range(4):
                x, w = V4(af+4*k), V4(BF+14*t+4*k)
                a(f"v_mfma_f32_16x16x32_bf16 {V4(D+4*t)}, {w if transposed else x}, {x if transposed else w}, {'0' if k == 0 else V4(D+4*t)}")
        for t in range(4):
            x, w = V2(af+12), V2(BF+14*t+12)
            a(f"v_mfma_f32_16x16x16_bf16 {V4(D+4*t)}, {w if transposed else x}, {x if transposed else w}, {V4(D+4*t)}")
        for t in range(1, 4):
            for r in range(4):
                if transposed: a(f"v_cndmask_b32 v{D+r}, v{D+r}, v{D+4*t+r}, s[{26+2*t}:{27+2*t}]")
                else: a(f"v_mov_b32_dpp v{D+r}, v{D+4*t+r} {IDP} row_mask:{hex(1 << t)} bank_mask:0xf")
        for r in range(4): a(f"v_add_u32 v{D+r}, 0x80, v{D+r}")
        for r in range(4): a(f"v_bfi_b32 v{20+r}, s78, v{TG + r + (1 if transposed and r == 3 else 0)}, v{D+r}")
    a("; q block")
    piece(AF, True)
    if noq or not qst: a("s_branch L_pqok")
    a(f"buffer_store_dwordx4 v[20:23], v8, {S(SW)}, s66 offen{'' if fastq else ' sc1'}")
    stamp(3)
    for k in range(3): a(f"ds_read_b128 {V4(AF2+4*k)}, v30 offset:{XN + 64*k}")
    a(f"ds_read_b64 {V2(AF2+12)}, v31 offset:{XN + 192}")
    a(f"v_mov_b32 v16, 0\nv_mov_b32 v17, 0\nv_mov_b32 v18, 0\nv_mov_b32 v19, 0")
    a(f"s_mov_b32 exec_hi, 0xff\nds_write_b128 v10, v[16:19] offset:{HIMG}\ns_mov_b64 exec, -1")
    a(f"ds_write_b128 v16, v[16:19] offset:{PGL}")
    PQ = F
    def qload(k): a(f"buffer_load_dwordx4 {V4(PQ+4*k)}, v10, {S(SW)}, s67 offen offset:{1024 * k} sc1")
    def chk4(dst, src):
        a(f"v_xor_b32 v{dst}, v{src}, v{TG}")
        for t in range(1, 4): a(f"v_bitop3_b32 v{dst}, v{src+t}, v{TG+t}, v{dst} bitop3:0xbe")
        a(f"v_and_b32 v{dst}, s78, v{dst}")
    if sleepq: a(f"s_sleep {sleepq}")
    for k in range(4): qload(k)
    a(f"s_mov_b32 s{sCNT}, {spin}")
    a.label("L_pq")
    a("s_waitcnt vmcnt(0)")
    for k in range(4):
        a(f"v_xor_b32 v{X+4+k}, v{PQ+4*k+3}, v{TG+4}\nv_and_b32 v{X+k}, 0xf0, v{X+4+k}")
        for t in range(3): a(f"v_bitop3_b32 v{X+k}, v{PQ+4*k+t}, v{TG+t}, v{X+k} bitop3:0xbe")
        a(f"v_and_b32 v{X+k}, s78, v{X+k}")
    a(f"v_or3_b32 v24, v{X}, v{X+1}, v{X+2}\nv_or_b32 v24, v24, v{X+3}")
    a("v_cmp_ne_u32 vcc, 0, v24\ns_cbranch_vccz L_pqok", drain=False)
    if fastq:
        a(f"s_cmp_lg_u32 s{sCNT}, {spin - nq}\ns_cbranch_scc1 L_pqg", drain=False)
        a(f"buffer_store_dwordx4 v[20:23], v8, {S(SW)}, s66 offen sc1")
        a.label("L_pqg", drain=False)
    a(f"s_sleep 2")
    for k in range(4):
        a(f"v_cmp_ne_u32 vcc, 0, v{X+k}\ns_cbranch_vccz L_pqs{k}", drain=False)
        qload(k)
        a.label(f"L_pqs{k}", drain=False)
    a(f"s_sub_u32 s{sCNT}, s{sCNT}, 1\ns_cmp_lg_u32 s{sCNT}, 0\ns_cbranch_scc1 L_pq", drain=False)
    a.label("L_pqok", drain=False)
    for k in range(16): a(f"v_and_b32 v{PQ+k}, 0xffffff00, v{PQ+k}")
    for e in (0, 2):
        a(f"v_pk_add_f32 {V2(PQ+e)}, {V2(PQ+e)}, {V2(PQ+4+e)}\nv_pk_add_f32 {V2(PQ+8+e)}, {V2(PQ+8+e)}, {V2(PQ+12+e)}")
    for e in (0, 2): a(f"v_pk_add_f32 {V2(PQ+e)}, {V2(PQ+e)}, {V2(PQ+8+e)}")
    a(f"v_cvt_pk_bf16_f32 v24, v{PQ}, v{PQ+1}\nv_cvt_pk_bf16_f32 v25, v{PQ+2}, v{PQ+3}\nv_mov_b32 v17, 0")
    a(f"v_or3_b32 v26, v{X+4}, v{X+5}, v{X+6}\nv_or_b32 v26, v26, v{X+7}\nv_and_b32 v26, 15, v26\nv_cmp_ne_u32 vcc, 0, v26")
    a(f"s_or_b32 s69, vcc_lo, vcc_hi\nv_mov_b32 v26, v{TG}\nv_mov_b32 v27, s69")
    a(f"ds_write_b64 v9, v[24:25] offset:{QL}\nds_write_b64 v17, v[26:27] offset:{TAGL}")
    if fastq:
        a("s_cmp_eq_u32 s69, 0\ns_cbranch_scc1 L_qnear")
        a(f"buffer_store_dwordx4 v[20:23], v8, {S(SW)}, s66 offen sc1")
        a.label("L_qnear")
    a("s_waitcnt lgkmcnt(0)")
    stamp(4)
    if stamps: a(f"s_mov_b32 s92, s{sCNT}")
    a("s_barrier")
    a("s_setprio 0")
    if g0:
        a(f"s_cmp_lg_u32 s35, 15\ns_cbranch_scc1 L_nog0\ns_cmp_lg_u32 s69, 0\ns_cbranch_scc1 L_nog0")
        a("s_mov_b32 s71, 1\ns_atomic_add s71, s[24:25], 60 glc\ns_waitcnt lgkmcnt(0)")
        a(f"s_sub_u32 s71, s71, {r0}\ns_mul_i32 s71, s71, {g0}\ns_ashr_i32 s71, s71, 2\nv_mov_b32 v42, s71")
        a(f"s_mov_b64 exec, 15\nbuffer_store_dword v42, v2, {S(SW)}, s34 offen offset:64\ns_mov_b64 exec, -1")
        a.label("L_nog0")
    if noffn: a("s_branch L_hend")
    a(f"s_cmp_ge_u32 s{sKG}, 28\ns_cbranch_scc1 L_hend")
    a(f"s_bitcmp1_b32 s{sCG}, 0\ns_cselect_b32 s{SC_}, s18, s16\ns_cselect_b32 s{SC_+1}, s19, s17\ns_mov_b32 s{SC_+2}, {448 * 3584}\ns_mov_b32 s{SC_+3}, 0x20000")
    a(f"s_lshr_b32 s66, s{sCG}, 1\ns_mul_i32 s65, s66, {112 * 3584}\ns_lshl_b32 s67, s{sKG}, 7\ns_add_u32 s65, s65, s67")
    if fdma: dma(SC_, 11, 65, 3584, WL0, win=HW)
    a(f"s_lshl_b32 s67, s{sKG}, 13\ns_add_u32 s67, s67, {FMB}\ns_lshl_b32 s66, s{sCG}, 10\ns_add_u32 s66, s66, s67\ns_add_u32 s68, s67, 4096")
    a("s_waitcnt vmcnt(0)")
    piece(AF2, False)
    if fst and fastf:
        a("s_cmp_lg_u32 s69, 0\ns_cbranch_scc1 L_ffar")
        a(f"buffer_store_dwordx4 v[20:23], v10, {S(SW)}, s66 offen\ns_branch L_fdone")
        a.label("L_ffar")
    if fst: a(f"buffer_store_dwordx4 v[20:23], v10, {S(SW)}, s66 offen sc1")
    if fst and fastf: a.label("L_fdone")
    if not fpoll: a("s_branch L_hend")
    a(f"s_cmp_eq_u32 s{sCG}, 7\ns_cbranch_scc1 L_hend")
    def fload(k): a(f"buffer_load_dwordx4 {V4(F+4*k)}, v10, {S(SW)}, s{67 + (k >> 2)} offen offset:{1024 * (k & 3)} sc1")
    a(f"s_sleep {sleepf}")
    for k in range(8): fload(k)
    a(f"s_mov_b32 s{sCNT}, {spin}\nv_lshlrev_b32 v9, 1, v0")
    a.label("L_pf")
    a("s_waitcnt vmcnt(0)")
    for k in range(8): chk4(X + k, F + 4 * k)
    a(f"v_or3_b32 v24, v{X}, v{X+1}, v{X+2}\nv_or3_b32 v24, v24, v{X+3}, v{X+4}\nv_or3_b32 v24, v24, v{X+5}, v{X+6}\nv_or_b32 v24, v24, v{X+7}")
    a("v_cmp_ne_u32 vcc, 0, v24\ns_cbranch_vccz L_pfok", drain=False)
    a(f"s_sleep 16")
    for k in range(8):
        a(f"v_cmp_ne_u32 vcc, 0, v{X+k}\ns_cbranch_vccz L_pfs{k}", drain=False)
        fload(k)
        a.label(f"L_pfs{k}", drain=False)
    a(f"s_sub_u32 s{sCNT}, s{sCNT}, 1\ns_cbranch_scc0 L_pf", drain=False)
    a.label("L_pfok", drain=False)
    for k in range(32): a(f"v_and_b32 v{F+k}, 0xffffff00, v{F+k}")
    for e in range(0, 8, 2):
        a(f"v_pk_add_f32 {V2(F+e)}, {V2(F+e)}, {V2(F+8+e)}\nv_pk_add_f32 {V2(F+16+e)}, {V2(F+16+e)}, {V2(F+24+e)}")
    for e in range(0, 8, 2): a(f"v_pk_add_f32 {V2(F+e)}, {V2(F+e)}, {V2(F+16+e)}")
    for r in range(8): rbf(F + r)
    k1 = -2.0 * math.sqrt(2.0 / math.pi) * math.log2(math.e)
    for r in range(4):
        g, u, t = F + r, F + 4 + r, F + 8 + r
        a(f"v_mul_f32 v{t}, v{g}, v{g}\nv_mul_f32 v{t}, {hex(f2u(0.044715))}, v{t}\nv_fma_f32 v{t}, v{t}, v{g}, v{g}")
        a(f"v_mul_f32 v{t}, {hex(f2u(k1))}, v{t}\nv_exp_f32 v{t}, v{t}\nv_add_f32 v{t}, 1.0, v{t}\nv_rcp_f32 v{t}, v{t}\nv_mul_f32 v{g}, v{g}, v{t}")
        rbf(g)
        a(f"v_mul_f32 v{g}, v{g}, v{u}")
    a(f"v_cvt_pk_bf16_f32 v32, v{F}, v{F+1}\nv_cvt_pk_bf16_f32 v34, v{F+2}, v{F+3}")
    a(f"ds_write_b16 v9, v32 offset:{HIMG}\nds_write_b16_d16_hi v9, v32 offset:{HIMG + HROW}")
    a(f"ds_write_b16 v9, v34 offset:{HIMG + 2 * HROW}\nds_write_b16_d16_hi v9, v34 offset:{HIMG + 3 * HROW}")
    a("s_waitcnt lgkmcnt(0)")
    a.label("L_hend")
    a("s_mov_b64 exec, -1")
    if fb and gfb == 2:
        a(f"s_cmp_lg_u32 s69, 0\ns_cbranch_scc1 L_gend\ns_cmp_ge_u32 s35, {nR}\ns_cbranch_scc1 L_gend")
        a(f"v_lshlrev_b32 v6, 2, v4\nv_lshl_add_u32 v6, v5, 7, v6\nv_mov_b32 v41, v{TG}\nv_mov_b32 v7, 0")
        a(f"s_lshl_b32 s66, s{sH}, 7\ns_add_u32 s66, s66, {GMB}\ns_mov_b32 s67, {GMB}\ns_mov_b32 s{sCNT}, 4000\ns_mul_i32 s70, s35, {dL}\ns_add_u32 s70, s70, {L0}")
        a.label("L_gw")
        a(f"ds_read_b32 v40, v7 offset:{PGL}\ns_waitcnt lgkmcnt(0)\nv_readfirstlane_b32 s65, v40\ns_cmp_ge_u32 s65, s70\ns_cbranch_scc1 L_gr")
        a(f"s_sleep 4\ns_sub_u32 s{sCNT}, s{sCNT}, 1\ns_cbranch_scc0 L_gw")
        a.label("L_gr")
        a(f"buffer_load_dword v40, v6, {S(SW)}, s34 offen sc1")
        a("s_mov_b64 exec, 0xffff")
        a(f"buffer_load_dwordx2 v[42:43], v2, {S(SW)}, s67 offen sc1")
        a("s_mov_b64 exec, -1\ns_waitcnt vmcnt(1)")
        for sh in (8, 4, 2, 1): a(f"v_add_u32_dpp v40, v40, v40 row_ror:{sh} {FULL}")
        a("v_add_u32_dpp v40, v40, v40 row_bcast:15 row_mask:0xa bank_mask:0xf\nv_add_u32_dpp v40, v40, v40 row_bcast:31 row_mask:0xc bank_mask:0xf")
        a("v_readlane_b32 s71, v40, 63\nv_mov_b32 v40, s71")
        a("s_mov_b64 exec, 1")
        a(f"buffer_store_dwordx2 v[40:41], v7, {S(SW)}, s66 offen sc1")
        a("s_mov_b64 exec, -1\ns_waitcnt vmcnt(1)")
        a(f"v_subrev_u32 v44, {64 * dL}, v40\nv_cmp_eq_u32 vcc, v43, v41\nv_cndmask_b32 v42, v44, v42, vcc\nv_sub_u32 v42, v42, v40")
        for sh in (8, 4, 2, 1): a(f"v_add_u32_dpp v42, v42, v42 row_ror:{sh} {FULL}")
        a(f"v_ashrrev_i32 v42, {4 + gsh}, v42\nv_add_u32 v42, {goff}, v42")
        a("s_mov_b64 exec, 15")
        a(f"buffer_store_dword v42, v2, {S(SW)}, s34 offen offset:64")
        a("s_mov_b64 exec, -1")
        a.label("L_gend")
    if fb and gfb == 3:
        a(f"s_cmp_lg_u32 s69, 0\ns_cbranch_scc1 L_gend\ns_cmp_ge_u32 s35, {nR}\ns_cbranch_scc1 L_gend")
        a(f"v_lshlrev_b32 v6, 2, v4\nv_lshl_add_u32 v6, v5, 7, v6\nv_mov_b32 v7, 0")
        a(f"s_mov_b32 s{sCNT}, 4000\ns_mul_i32 s70, s35, {dL}\ns_add_u32 s70, s70, {L0}\ns_lshl_b32 s66, s35, 2")
        a.label("L_gw")
        a(f"ds_read_b32 v40, v7 offset:{PGL}\ns_waitcnt lgkmcnt(0)\nv_readfirstlane_b32 s65, v40\ns_cmp_ge_u32 s65, s70\ns_cbranch_scc1 L_gr")
        a(f"s_sleep 4\ns_sub_u32 s{sCNT}, s{sCNT}, 1\ns_cbranch_scc0 L_gw")
        a.label("L_gr")
        if gpoll:
            a(f"s_lshl_b32 s70, s70, 6\ns_add_u32 s70, s70, 16\ns_mov_b32 s{sCNT}, 3")
            a.label("L_gp")
            a(f"buffer_load_dword v40, v6, {S(SW)}, s34 offen sc1\ns_waitcnt vmcnt(0)")
            for sh in (8, 4, 2, 1): a(f"v_add_u32_dpp v40, v40, v40 row_ror:{sh} {FULL}")
            a("v_add_u32_dpp v40, v40, v40 row_bcast:15 row_mask:0xa bank_mask:0xf\nv_add_u32_dpp v40, v40, v40 row_bcast:31 row_mask:0xc bank_mask:0xf")
            a(f"v_readlane_b32 s71, v40, 63\ns_cmp_ge_u32 s71, s70\ns_cbranch_scc1 L_ga\ns_sub_u32 s{sCNT}, s{sCNT}, 1\ns_cbranch_scc0 L_gp")
            a.label("L_ga")
        a("s_mov_b32 s71, 1\ns_atomic_add s71, s[24:25], s66 glc\ns_waitcnt lgkmcnt(0)")
        a(f"s_sub_u32 s71, s71, {r0}\ns_mul_i32 s71, s71, {gain}\ns_ashr_i32 s71, s71, 2\nv_mov_b32 v42, s71")
        a("s_mov_b64 exec, 15")
        a(f"buffer_store_dword v42, v2, {S(SW)}, s34 offen offset:64")
        a("s_mov_b64 exec, -1")
        if rew:
            a(f"s_cmp_lt_u32 s35, {nR - rew}\ns_cbranch_scc1 L_gend")
            a("s_getpc_b64 s[66:67]")
            a.label("L_pc2", drain=False)
            a("s_sub_u32 s66, s66, L_pc2-L_tail\ns_subb_u32 s67, s67, 0\nv_min_u32 v2, L_helper-L_tail, v2\nglobal_load_dword v31, v2, s[66:67]")
        a.label("L_gend")
    if fb and gfb == 1:
        NIT = (15 - NP) + 1 + 15
        a("s_or_b32 s65, s35, s69\ns_cmp_lg_u32 s65, 0\ns_cbranch_scc1 L_gend")
        a(f"v_lshlrev_b32 v6, 2, v4\nv_lshl_add_u32 v6, v5, 7, v6\nv_mov_b32 v41, v{TG}\nv_mov_b32 v7, 0")
        a(f"s_lshl_b32 s66, s{sH}, {3 if gsc else 7}\ns_add_u32 s66, s66, {GMB}\ns_mov_b32 s67, {GMB}\ns_mov_b32 s{sCNT}, 200\ns_mov_b32 s70, -1")
        a.label("L_g")
        a(f"buffer_load_dword v40, v6, {S(SW)}, s34 offen sc1")
        if gsc:
            a(f"s_waitcnt lgkmcnt(0)\ns_load_dwordx16 s[4:19], s[26:27], {GMB} glc\ns_load_dwordx16 s[40:55], s[26:27], {GMB + 64} glc\ns_waitcnt vmcnt(0)")
        else:
            a("s_mov_b64 exec, 0xffff")
            a(f"buffer_load_dwordx2 v[42:43], v2, {S(SW)}, s67 offen sc1")
            a("s_mov_b64 exec, -1\ns_waitcnt vmcnt(1)")
        a(f"v_cmp_le_u32 vcc, {NIT - gexit}, v40\ns_or_b32 s65, vcc_lo, vcc_hi\ns_and_b32 s65, s65, 0x10001\ns_cbranch_scc1 L_gend")
        for sh in (8, 4, 2, 1): a(f"v_add_u32_dpp v40, v40, v40 row_ror:{sh} {FULL}")
        a("v_add_u32_dpp v40, v40, v40 row_bcast:15 row_mask:0xa bank_mask:0xf\nv_add_u32_dpp v40, v40, v40 row_bcast:31 row_mask:0xc bank_mask:0xf")
        a("v_readlane_b32 s71, v40, 63\nv_mov_b32 v40, s71")
        a("s_mov_b64 exec, 1")
        a(f"buffer_store_dwordx2 v[40:41], v7, {S(SW)}, s66 offen sc1")
        a("s_mov_b64 exec, -1\ns_waitcnt vmcnt(1)")
        a("s_cmp_eq_u32 s70, -1\ns_cbranch_scc1 L_gskip")
        if gavg: a("s_add_u32 s70, s70, s71\ns_lshr_b32 s70, s70, 1")
        if gsc:
            a("s_waitcnt lgkmcnt(0)\ns_mov_b32 s65, 0")
            for k in range(16):
                r = (4 + 2 * k) if k < 8 else (40 + 2 * (k - 8))
                a(f"s_cmp_eq_u32 s{r+1}, s{sTAG}\ns_cselect_b32 s{r}, s{r}, s70\ns_add_u32 s65, s65, s{r}")
            a(f"s_lshl_b32 s70, s70, 4\ns_sub_u32 s65, s65, s70\ns_ashr_i32 s65, s65, {4 + gsh}\ns_add_u32 s65, s65, {goff}\nv_mov_b32 v42, s65")
        else:
          a(f"v_mov_b32 v44, s70\nv_cmp_eq_u32 vcc, v43, v41\nv_cndmask_b32 v42, v44, v42, vcc\nv_sub_u32 v42, v42, v44")
          for sh in (8, 4, 2, 1): a(f"v_add_u32_dpp v42, v42, v42 row_ror:{sh} {FULL}")
          a(f"v_ashrrev_i32 v42, {4 + gsh}, v42")
          if goff: a(f"v_add_u32 v42, {goff}, v42")
        a("s_mov_b64 exec, 15")
        a(f"buffer_store_dword v42, v2, {S(SW)}, s34 offen offset:64")
        a("s_mov_b64 exec, -1")
        a.label("L_gskip")
        a("s_mov_b32 s70, s71")
        if gsleep: a(f"s_sleep {gsleep}")
        a(f"s_sub_u32 s{sCNT}, s{sCNT}, 1\ns_cbranch_scc0 L_g")
        a.label("L_gend")
        if gsc: a("s_waitcnt lgkmcnt(0)")
    stamp(5)
    pad("H")
    dump_stamps(7)
    a.label("L_end")
    a("s_endpgm")
    a.raw('.section .rodata,"a"'); a.raw(".p2align 6"); a.raw(f".amdhsa_kernel {NAME}")
    a.raw("  .amdhsa_next_free_vgpr 256"); a.raw("  .amdhsa_next_free_sgpr 102"); a.raw("  .amdhsa_accum_offset 256")
    a.raw("  .amdhsa_group_segment_fixed_size 0"); a.raw("  .amdhsa_kernarg_size 96"); a.raw("  .amdhsa_user_sgpr_count 2")
    a.raw("  .amdhsa_user_sgpr_kernarg_segment_ptr 1"); a.raw("  .amdhsa_system_sgpr_workgroup_id_x 1"); a.raw(".end_amdhsa_kernel")
    return a.text()

if __name__ == "__main__":
    out = sys.argv[1]
    kw = eval("dict(" + (sys.argv[2] if len(sys.argv) > 2 else "") + ")")
    open(out, "w").write(gen(**kw))
```

```python
import sys, struct, math
sys.path.insert(0, "gen")
from asmlib import Asm

NAME = "parallel_sum__mha_block_cached__geglu_ffn__decode_kernel"
HEADER = open("parallel_sum__mha_block_cached__geglu_ffn__decode.s.ref").read().split("; Override launch")[0]

def f2u(x): return struct.unpack("<I", struct.pack("<f", x))[0]

PMB = 0x8000
GMB = 0xC000
QMB = 0x10000
FMB = QMB + 64 * 4096
MB1 = 0xA0000
MB2 = 0x120000
TSB = 0x400000
WS_USED = TSB + 0x10000
assert FMB + 28 * 8192 <= MB1
PGL = 4112
XN, QL, TAGL, ML, HIMG, AIMG, OP, SC = 0, 3584, 4096, 4128, 4224, 4864, 6144, 10240
HROW, AROW = 144, 272
WL0 = SC + 16384
WL1 = WL0 + 14336
WL2 = WL1 + 16384
LDS_BYTES = WL2 + 8192

DOC = '''; ---------------------------------------------------------------------------------------------
; ---------------------------------------------------------------------------------------------'''
FULL = "row_mask:0xf bank_mask:0xf"
IDP = "quad_perm:[0,1,2,3]"

def gen(W=5, NP=5, nt="nt", wnt="nt", stamps=False, warm=True, sleep1=0, sleep2=0, sleepq=30, spin=1 << 18,
        padto=0, padwg=None, padstamp=None, HW=4, noffn=0, noq=0, nowo=0, touch=1, sleepf=60, fdma=1, fst=1, fpoll=1, qst=1, pat=5, Wend=None, nend=0, W0=None, osc='', scr=1, remap=2, D2=2, stag2=4, early1=0, role=3, fast=1, hoist=1, clean=0, fastq=1, fastf=1, nq=5, tlb=0, fb=1, Wup=6, thup=0, gfb=3, gsleep=8, goff=0, gsh=2, gavg=0, gsc=0, gexit=2, L0=6, dL=2, nR=9, nost2=0, nored=0, wos=(3,4,5,6,7,7), r0=8, gain=6, gpoll=1, st0=0, warm2=16, late=1, codekb=13, amp=0, lite=0, Wdn=4, thdn=-15, endp=None, pw=None, thw=None, hb=0, pre1=0, rew=0, stL=0, k1st=0, th2=8, g0=4, pf=0, pfs=7, pfnt='', pfth=None, fakeg=0, kb5=(15,13), wb5=(11,14), jb5=(12,16)):
    assert not (fast or fastf) or role == 3
    assert early1 != 2 or hoist
    assert hb != 1 or set(wos) == {-2}
    assert hb != 2 or wos[:2] == (-2, -2)
    in_helper = [False]
    a = Asm()
    a.raw(HEADER.rstrip("\n"))
    a.raw(f"; @launch grid=(256,1,1) block=(320,1,1) lds={LDS_BYTES}")
    a.raw(DOC)
    a.raw('.amdgcn_target "amdgcn-amd-amdhsa--gfx950"')
    a.raw(".text"); a.raw(f".globl {NAME}"); a.raw(".p2align 8"); a.raw(f".type {NAME},@function")
    a.raw(f"{NAME}:")
    SK, SV, SW, SA, SB, SC_, SD = 28, 32, 36, 40, 44, 48, 52
    sB, sH, sJ, sIDX, sBH, sTAG, sCNT, sKO, sVO, sWv, sKG, sCG = 56, 57, 58, 59, 60, 61, 62, 63, 64, 72, 73, 79
    def srd(r, ptr, size):
        a(f"s_mov_b32 s{r}, s{ptr}\ns_mov_b32 s{r+1}, s{ptr+1}\ns_mov_b32 s{r+2}, {size}\ns_mov_b32 s{r+3}, 0x20000")
    def S(r): return f"s[{r}:{r+3}]"
    def V4(r): return f"v[{r}:{r+3}]"
    def V2(r): return f"v[{r}:{r+1}]"
    def stamp(k):
        if stamps or padstamp is not None:
            a(f"s_memrealtime s[{80+2*k}:{81+2*k}]")
    def dump_stamps(n):
        if not stamps: return
        a("s_waitcnt lgkmcnt(0)")
        a("s_mov_b64 exec, 1")
        a(f"s_mul_i32 s65, s2, 5\ns_add_u32 s65, s65, s3\ns_mul_i32 s65, s65, 48\ns_add_u32 s65, s65, {TSB}")
        a("v_mov_b32 v1, 0")
        for k in range(n):
            a(f"v_mov_b32 v2, s{80+2*k}")
            if lite and k not in (0, 4, 7): continue
            a(f"buffer_store_dword v2, v1, {S(SW)}, s65 offen offset:{4*k}")
        if not lite:
            a(f"v_mov_b32 v2, s{sCNT}\nbuffer_store_dword v2, v1, {S(SW)}, s65 offen offset:44")
            a("s_waitcnt vmcnt(0)")
    def pad(role):
        if not padto: return
        r, k = padstamp if padstamp is not None else ("S", 0)
        if r != role: return
        if padwg is not None: a(f"s_cmp_lg_u32 s2, {padwg}\ns_cbranch_scc1 L_end")
        if amp: a(f"s_waitcnt lgkmcnt(0)\ns_sub_u32 s65, s{80+2*k}, s80\ns_mul_i32 s65, s65, {amp - 1}\ns_add_u32 s{80+2*k}, s{80+2*k}, s65")
        a.label(f"L_pad{role}")
        a(f"s_sleep 1\ns_memrealtime s[98:99]\ns_waitcnt lgkmcnt(0)\ns_sub_u32 s98, s98, s{80+2*k}\ns_cmp_lt_i32 s98, {padto}\ns_cbranch_scc1 L_pad{role}")

    a("s_cmp_ge_u32 s2, 256\ns_cbranch_scc1 L_end")
    if k1st: a("s_load_dwordx16 s[4:19], s[0:1], 0")
    else: a("s_load_dwordx16 s[4:19], s[0:1], 0\ns_load_dwordx8 s[20:27], s[0:1], 64")
    stamp(0)
    a("v_lshrrev_b32 v1, 6, v0\nv_and_b32 v0, 63, v0\nv_readfirstlane_b32 s3, v1")
    if role == 1:
        a(f"s_and_b32 s65, s2, 7\ns_lshl_b32 s65, s65, 2\ns_bfe_u32 s{sKG}, s2, 0x20003\ns_or_b32 s{sKG}, s{sKG}, s65\ns_lshr_b32 s{sCG}, s2, 5")
    if role == 2:
        a(f"s_and_b32 s65, s2, 15\ns_lshl_b32 s65, s65, 1\ns_bfe_u32 s{sKG}, s2, 0x10004\ns_or_b32 s{sKG}, s{sKG}, s65\ns_lshr_b32 s{sCG}, s2, 5")
    if pat >= 3 and remap == 3:
        a("s_bfe_u32 s65, s2, 0x20003\ns_xor_b32 s2, s2, s65")
    if pat >= 3 and remap == 2:
        a("s_bfe_u32 s65, s2, 0x20003\ns_and_b32 s66, s2, 7\ns_lshl_b32 s66, s66, 2\ns_and_b32 s2, s2, 0xe0\ns_or_b32 s2, s2, s65\ns_or_b32 s2, s2, s66")
    a(f"s_lshr_b32 s{sB}, s2, 6\ns_lshr_b32 s{sBH}, s2, 2\ns_and_b32 s{sH}, s{sBH}, 15\ns_and_b32 s{sJ}, s2, 3\ns_and_b32 s{sIDX}, s2, 63")
    if role == 3:
        a(f"s_lshl_b32 s{sKG}, s{sH}, 1\ns_and_b32 s65, s{sJ}, 1\ns_or_b32 s{sKG}, s{sKG}, s65\ns_lshl_b32 s{sCG}, s{sB}, 1\ns_lshr_b32 s65, s{sJ}, 1\ns_or_b32 s{sCG}, s{sCG}, s65")
    if role == 0: a(f"s_lshr_b32 s{sKG}, s2, 3\ns_add_u32 s{sCG}, s2, s{sKG}\ns_and_b32 s{sCG}, s{sCG}, 7")
    a("v_and_b32 v4, 15, v0\nv_lshrrev_b32 v5, 4, v0")
    a("s_cmp_eq_u32 s3, 0\ns_cbranch_scc1 L_helper")

    vKO, vVO, vSC, vMAX, vL, vC, vMC, vS = 1, 2, 3, 6, 7, 28, 29, 30
    vJ, vG = 4, 5
    MASK, OACC, BB, QF, DA, TMP, R = 8, 12, 20, 32, 64, 84, 96
    def ring(tile, u): return R + 32 * tile + 4 * u
    a(f"s_sub_u32 s{sWv}, s3, 1")
    kb, wb = {0: ((9, 10), (11, 12)), 1: ((12, 13), (10, 11)), 2: ((12, 13), (14, 15)), 3: ((15, 13), (11, 14)), 4: ((15, 9), (11, 13)), 5: (kb5, wb5)}[pat]
    assert sorted(kb5 + wb5 + jb5) == [11, 12, 13, 14, 15, 16]
    sM = 100
    a(f"v_and_b32 v{TMP+1}, 3, v{vJ}\nv_lshlrev_b32 v{TMP+1}, 4, v{TMP+1}")
    a(f"v_lshl_add_u32 v{TMP+1}, v{vG}, 6, v{TMP+1}")
    a(f"v_bfe_u32 v{TMP}, v0, 2, 1\nv_lshl_add_u32 v{vKO}, v{TMP}, {kb[0]}, v{TMP+1}\nv_bfe_u32 v{TMP}, v0, 3, 1\nv_lshl_add_u32 v{vKO}, v{TMP}, {kb[1]}, v{vKO}")
    if pat == 5:
        a(f"s_lshl_b32 s{sKO}, s{sBH}, 21\ns_and_b32 s65, s{sJ}, 1\ns_lshl_b32 s65, s65, {jb5[0]}\ns_add_u32 s{sKO}, s{sKO}, s65\ns_lshr_b32 s65, s{sJ}, 1\ns_lshl_b32 s65, s65, {jb5[1]}\ns_add_u32 s{sKO}, s{sKO}, s65")
    else: a(f"s_lshl_b32 s{sKO}, s2, 19")
    a(f"s_and_b32 s65, s{sWv}, 1\ns_lshl_b32 s65, s65, {wb[0]}\ns_add_u32 s{sKO}, s{sKO}, s65")
    a(f"s_lshr_b32 s65, s{sWv}, 1\ns_lshl_b32 s65, s65, {wb[1]}\ns_add_u32 s{sKO}, s{sKO}, s65")
    if pat in (3, 4):
        if scr:
            a(f"s_mul_i32 s65, s{sBH}, 0x9E3779B1\ns_and_b32 s{sM}, s65, 0x300000\ns_lshr_b32 s{sM}, s{sM}, 3\ns_or_b32 s{sM}, s{sM}, 0x10000")
            a(f"s_lshr_b32 s65, s65, 6\ns_and_b32 s65, s65, 0x70000\ns_or_b32 s{sKO}, s{sKO}, s65")
        else:
            a(f"s_mov_b32 s{sM}, 0x10000")
    a(f"s_mov_b32 s{sVO}, s{sKO}")
    a("s_waitcnt lgkmcnt(0)")
    if st0: stamp(5)
    srd(SK, 6, 1 << 27)
    vm = []
    def issue(kind, reg, u, tagid):
        sr, vo, so = (SK, vKO, sKO) if kind == "K" else (SV, vVO, sVO)
        o = {0: 256 * (u & 1), 1: 256 * (u & 3), 2: 256 * u, 3: 256 * u, 4: 256 * (u & 1) + 512 * (u & 2), 5: 256 * u}[pat]
        off = f" offset:{o}" if o else ""
        a(f"buffer_load_dwordx4 {V4(reg)}, v{vo}, {S(sr)}, s{so} offen{off} {nt}")
        if pat == 0 and u & 1: a(f"s_add_u32 s{so}, s{so}, 8192")
        if pat == 1 and (u & 3) == 3: a(f"s_add_u32 s{so}, s{so}, 16384")
        if pat == 4 and (u & 3) == 3: a(f"s_xor_b32 s{so}, s{so}, 0x4000")
        if pat == 5 and u == 7: a(f"s_add_u32 s{so}, s{so}, 0x20000")
        if pat in (3, 4) and u == 7:
            a(f"s_xor_b32 s{so}, s{so}, 0x1000\ns_bitcmp1_b32 s{so}, 12\ns_cselect_b32 s65, 0, s{sM}\ns_add_u32 s65, s65, s{so}\ns_and_b32 s65, s65, 0x70000\ns_andn2_b32 s{so}, s{so}, 0x70000\ns_or_b32 s{so}, s{so}, s65")
        if pat == 2 and u == 7:
            a(f"s_bitcmp1_b32 s{so}, 11\ns_cselect_b32 s65, {65536 - 4096}, 0\ns_add_u32 s{so}, s{so}, s65\ns_add_u32 s{so}, s{so}, 2048")
        vm.append(tagid)
    def wait_for(tagid):
        if tagid not in vm: return
        n = len(vm) - 1 - vm.index(tagid)
        assert n < 64
        a(f"s_waitcnt vmcnt({n})")
    nload = [0]
    curW = [W]
    adapt = [False]; nlab = [0]
    ctl = dict(Wup=Wup, thup=thup, Wdn=Wdn, thdn=thdn)
    def throttle_issue(kind, reg, u):
        n = nload[0]
        if adapt[0]:
            nlab[0] += 1
            a(f"s_cbranch_scc1 L_w{nlab[0]}", drain=False)
            if ctl["Wdn"]:
                a(f"s_cbranch_vccz L_m{nlab[0]}", drain=False); a.hist[-1].states = 0
                wait_for(("s", n - ctl["Wdn"])); a.hist[-1].states = 0
                a.label(f"L_m{nlab[0]}", drain=False)
            wait_for(("s", n - curW[0]))
            a.hist[-1].states = 0
            a.label(f"L_w{nlab[0]}", drain=False)
            if th2 is not None:
                a(f"s_cbranch_vccnz L_x{nlab[0]}", drain=False)
                wait_for(("s", n - ctl["Wup"])); a.hist[-1].states = 0
                a.label(f"L_x{nlab[0]}", drain=False)
                wait_for(("s", n - ctl["Wup"] - 1))
            else: wait_for(("s", n - ctl["Wup"]))
        else: wait_for(("s", n - curW[0]))
        issue(kind, reg, u, ("s", n)); nload[0] += 1
    W0 = W0 or W
    curW[0] = W0
    for n in range(W0):
        throttle_issue("K", ring(n // 8, n % 8), n % 8)
    curW[0] = W
    if k1st: a("s_load_dwordx8 s[20:27], s[0:1], 64")
    if warm2:
        a(f"s_and_b32 s65, s2, 0xe2\ns_lshl_b32 s65, s65, 2\ns_or_b32 s65, s65, s{sWv}\ns_cbranch_scc1 L_nowarm2", drain=False)
        a("s_getpc_b64 s[66:67]")
        a.label("L_pc", drain=False)
        a("v_lshlrev_b32 v2, 7, v0\nglobal_load_dword v31, v2, s[66:67]\nv_add_u32 v2, 0x2000, v2\nv_min_u32 v2, L_end-L_pc, v2")
        a("global_load_dword v31, v2, s[66:67]")
        a.label("L_nowarm2", drain=False)
    if warm and not warm2:
        a(f"s_cmp_lg_u32 s3, 1\ns_cbranch_scc1 L_nowarm")
        a(f"s_getpc_b64 s[66:67]\nv_lshlrev_b32 v{TMP+2}, 7, v0")
        a(f"global_load_dword v{TMP+3}, v{TMP+2}, s[66:67]")
        a.label("L_nowarm")
    def setup(a, srd):
        a(f"v_lshlrev_b32 v{vVO}, 4, v{vJ}\nv_bfe_u32 v{TMP}, v0, 4, 1\nv_lshl_add_u32 v{vVO}, v{TMP}, {kb[0]}, v{vVO}\nv_bfe_u32 v{TMP}, v0, 5, 1\nv_lshl_add_u32 v{vVO}, v{TMP}, {kb[1]}, v{vVO}")
        srd(SV, 8, 1 << 27); srd(SW, 26, WS_USED); srd(SC_, 22, 3584); srd(SD, 4, 3584)
        srd(SA, 12, 4096 * 896); srd(SB, 20, 1792 * 896)
        for k in range(32): a(f"v_mov_b32 v{QF+k}, 0")
        for k in range(8): a(f"v_mov_b32 v{OACC+k}, 0")
        a(f"v_mov_b32 v{vMAX}, 0xff800000\nv_mov_b32 v{vL}, 0\nv_mov_b32 v{vC}, {hex(f2u(math.log2(math.e) / 16))}")
        a(f"v_and_b32 v{TMP+4}, 1, v{vJ}\nv_lshlrev_b32 v{TMP+4}, 4, v{TMP+4}\nv_mov_b32 v{TMP+5}, 0xffff\nv_lshlrev_b32 v{TMP+4}, v{TMP+4}, v{TMP+5}")
        a(f"v_bfe_u32 v{TMP+5}, v{vJ}, 1, 2")
        for w in range(4):
            a(f"v_cmp_eq_u32 vcc, {w}, v{TMP+5}\nv_cndmask_b32 v{MASK+w}, 0, v{TMP+4}, vcc")
        a(f"s_lshl_b32 s65, s{sWv}, 12\ns_add_u32 s65, s65, {SC}\nv_lshl_add_u32 v{vSC}, v0, 2, s65")
    chunks = []
    def rec(t): chunks.append(t)
    def recsrd(r, ptr, size): rec(f"s_mov_b32 s{r}, s{ptr}\ns_mov_b32 s{r+1}, s{ptr+1}\ns_mov_b32 s{r+2}, {size}\ns_mov_b32 s{r+3}, 0x20000")
    setup(rec, recsrd)
    if not late:
        for t in chunks: a(t)
        chunks = []
    for n in range(W0, 8 * NP):
        if st0 and n == W0: stamp(3)
        throttle_issue("K", ring(n // 8, n % 8), n % 8)
        if st0 and n == W0: stamp(6)
        if st0 and n == W0 + 4: stamp(8)
        if st0 and n == W0 + 9: stamp(4)
        if n == 16 and k1st: a("s_waitcnt lgkmcnt(0)")
        if n >= 16:
            cnt = 0
            while chunks and cnt < 6:
                t = chunks.pop(0); a(t); cnt += t.count("\n") + 1
    assert not chunks
    if st0:
        _st = stamp
        def stamp(k):
            if k in (1, 2, 7) or in_helper[0]: _st(k)
    stamp(1)
    a("s_barrier")
    stamp(2)
    for t in range(4):
        m = 0x000F000F << (4 * t)
        a(f"s_mov_b32 exec_lo, {hex(m)}\ns_mov_b32 exec_hi, {hex(m)}")
        for half in range(2):
            a(f"ds_read_b128 {V4(QF + 4 * (2 * t + half))}, v{TMP+1} offset:{QL + 256 * half}")
    a("s_mov_b64 exec, -1")
    a(f"v_mov_b32 v{TMP}, 0\nds_read_b64 {V2(TMP+2)}, v{TMP} offset:{TAGL}")
    a("s_waitcnt lgkmcnt(0)")
    a(f"v_readfirstlane_b32 s{sTAG}, v{TMP+2}\nv_readfirstlane_b32 s101, v{TMP+3}")

    def consK(reg, u, d):
        c = "0" if u == 0 else V4(d)
        a(f"v_mfma_f32_16x16x32_bf16 {V4(d)}, {V4(reg)}, {V4(QF + 4 * u)}, {c}")
    def extract(ds, off0):
        for k, d in enumerate(ds): a(f"v_mov_b32_dpp v{TMP+k}, v{d} quad_perm:[0,0,0,0] {FULL}")
        for c in range(1, 4):
            for k, d in enumerate(ds): a(f"v_add_f32_dpp v{TMP+k}, v{d+c}, v{TMP+k} quad_perm:[{c},{c},{c},{c}] {FULL}")
        for k, d in enumerate(ds): a(f"v_cvt_pk_bf16_f32 v{TMP+k}, v{TMP+k}, v{TMP+k}")
        for k, d in enumerate(ds): a(f"v_and_b32 v{TMP+k}, 0xffff0000, v{TMP+k}")
        for k, d in enumerate(ds):
            a(f"ds_write_b32 v{vSC}, v{TMP+k} offset:{off0 + 256 * k}")
            a(f"v_max_f32 v{vMAX}, v{vMAX}, v{TMP+k}")
        a(f"v_add_u32 v{vSC}, {256 * len(ds)}, v{vSC}")
    for u in range(8):
        consK(ring(0, u), u, DA)
        throttle_issue("K", ring(0, u), u)
        for T in range(1, NP): consK(ring(T, u), u, DA + 4 * T)
    extract([DA + 4 * T for T in range(NP)], 0)

    T0 = R + 32
    vX, vXO, vOPW, vMLW, vOPR, vZ, vL16, vST2, vTR, vTR2, vTRD, vTRD2, vHA, vAR, vAW, vWO, vWD = range(T0, T0 + 17)
    vML = T0 + 18
    G = T0 + 20
    GR = T0 + 36
    P1 = T0 + 40
    AH = T0 + 56
    AO = T0 + 64
    BW = T0 + 80
    BD = T0 + 96
    Y = T0 + 104
    E = T0 + 108
    def tail_addr():
        a(f"s_lshl_b32 s65, s{sWv}, 10\ns_add_u32 s65, s65, {OP}\nv_lshl_add_u32 v{vOPW}, v0, 4, s65")
        a(f"s_lshl_b32 s65, s{sWv}, 3\ns_add_u32 s65, s65, {ML}\nv_mov_b32 v{vMLW}, s65")
        a(f"s_lshl_b32 s65, s{sWv}, 8\ns_add_u32 s65, s65, {OP}\nv_lshl_add_u32 v{vOPR}, v0, 3, s65")
        a(f"v_mov_b32 v{vZ}, 0\nv_lshlrev_b32 v{vL16}, 4, v0\nv_mov_b32 v{GR+3}, s{sTAG}")
        a(f"s_lshl_b32 s70, s2, 11\ns_lshl_b32 s65, s{sWv}, 9\ns_add_u32 s70, s70, s65\ns_add_u32 s70, s70, {MB1}")
        a(f"s_lshl_b32 s71, s{sWv}, 17\ns_lshr_b32 s65, s{sKG}, 1\ns_lshl_b32 s65, s65, 13\ns_add_u32 s71, s71, s65")
        a(f"s_and_b32 s65, s{sKG}, 1\ns_lshl_b32 s65, s65, 10\ns_add_u32 s71, s71, s65\ns_add_u32 s71, s71, {MB1}\ns_add_u32 s74, s71, 4096")
        a(f"v_lshrrev_b32 v{E}, 3, v0\nv_and_b32 v{E+1}, 7, v0\nv_and_b32 v{E+2}, 2, v{E}\nv_xor_b32 v{E+1}, v{E+1}, v{E+2}\nv_lshlrev_b32 v{E+1}, 4, v{E+1}")
        a(f"v_and_b32 v{E+2}, 3, v{E}\nv_lshlrev_b32 v{E+2}, 3, v{E+2}\nv_lshrrev_b32 v{E+3}, 2, v{E}\nv_add_u32 v{E+2}, v{E+2}, v{E+3}")
        a(f"v_mul_u32_u24 v{vWO}, 896, v{E+2}\nv_mul_u32_u24 v{vWD}, 896, v{E}")
        a(f"s_and_b32 s65, s{sWv}, 1\ns_lshl_b32 s65, s65, 6\nv_xor_b32 v{E+1}, s65, v{E+1}")
        a(f"v_add_u32 v{vWO}, v{vWO}, v{E+1}\nv_add_u32 v{vWD}, v{vWD}, v{E+1}")
        a(f"s_lshr_b32 s66, s{sKG}, 1\ns_lshl_b32 s66, s66, 8\ns_and_b32 s65, s{sKG}, 1\ns_lshl_b32 s65, s65, 6\ns_add_u32 s66, s66, s65")
        a(f"s_lshl_b32 s65, s{sWv}, 1\ns_add_u32 s66, s66, s65\ns_mul_i32 s66, s66, 896\ns_lshl_b32 s65, s{sCG}, 7\ns_add_u32 s66, s66, s65")
        a(f"s_lshl_b32 s67, s{sKG}, 6\ns_lshl_b32 s68, s{sWv}, 3\ns_add_u32 s67, s67, s68\ns_mul_i32 s67, s67, 896\ns_add_u32 s67, s67, s65")
        a(f"s_lshl_b32 s75, s{sWv}, 10")
        if fakeg:
            a(f"v_mul_u32_u24 v{vWO}, 1792, v{vG}\nv_lshl_add_u32 v{vWO}, v{vJ}, 4, v{vWO}\nv_mov_b32 v{vWD}, v{vWO}")
            a(f"s_lshl_b32 s66, s{sKG}, 2\ns_add_u32 s66, s66, s{sWv}\ns_mul_i32 s67, s66, {8 * 1792}\ns_mul_i32 s66, s66, {16 * 1792}\ns_lshl_b32 s65, s{sCG}, 8\ns_add_u32 s66, s66, s65\ns_add_u32 s67, s67, s65")
        if pf:
            a(f"s_sub_u32 s19, s66, s65")
            a(f"s_add_u32 s76, s{sCG}, 1\ns_cmp_ge_u32 s76, 7\ns_cselect_b32 s76, 0, s76\ns_add_u32 s77, s{sCG}, 6\ns_cmp_ge_u32 s77, 7\ns_cselect_b32 s65, 7, 0\ns_sub_u32 s77, s77, s65")
            a(f"v_bfe_u32 v{E}, v0, 3, 1\nv_lshlrev_b32 v{E}, 7, v{E}\nv_bfe_u32 v{E+1}, v0, 4, 1\nv_lshl_add_u32 v{E}, v{E+1}, 5, v{E}")
            a(f"v_and_b32 v{E+1}, 3, v0\nv_lshl_add_u32 v{E}, v{E+1}, 3, v{E}\nv_bfe_u32 v{E+1}, v0, 2, 1\nv_add_u32 v{E}, v{E}, v{E+1}\nv_mul_u32_u24 v{vTR2}, 896, v{E}")
            a(f"v_mov_b32 v{E}, s76\nv_mov_b32 v{E+1}, s77\nv_cmp_gt_u32 vcc, 32, v0\nv_cndmask_b32 v{E}, v{E+1}, v{E}, vcc\nv_lshl_add_u32 v{vTR2}, v{E}, 7, v{vTR2}")
        a(f"v_lshrrev_b32 v{E}, 2, v{vJ}\nv_bfe_u32 v{E+1}, v{vJ}, 1, 1\ns_lshl_b32 s65, s{sWv}, 1\nv_add_u32 v{E+1}, s65, v{E+1}")
        a(f"v_and_b32 v{E+2}, 2, v{E}\nv_xor_b32 v{E+1}, v{E+1}, v{E+2}")
        a(f"v_and_b32 v{E+3}, 1, v{vJ}\nv_lshlrev_b32 v{E+3}, 3, v{E+3}\nv_lshl_add_u32 v{E+3}, v{E}, 7, v{E+3}")
        a(f"v_and_b32 v{E+2}, 1, v{vG}\nv_lshlrev_b32 v{E+2}, 2, v{E+2}\nv_xor_b32 v{E+4}, v{E+1}, v{E+2}")
        a(f"v_lshl_add_u32 v{vTR}, v{E+4}, 4, v{E+3}\nv_lshl_add_u32 v{vTR}, v{vG}, 10, v{vTR}")
        a(f"v_mul_u32_u24 v{vHA}, {HROW}, v{E}\nv_lshl_add_u32 v{vHA}, v{vG}, 4, v{vHA}")
        a(f"v_mul_u32_u24 v{vAR}, {AROW}, v{E}\nv_lshl_add_u32 v{vAR}, v{vG}, 4, v{vAR}")
        a(f"s_mul_i32 s65, s{sWv}, {AROW}\ns_add_u32 s65, s65, {AIMG}\nv_lshl_add_u32 v{vAW}, v0, 2, s65")
        a(f"v_lshlrev_b32 v{vST2}, 3, v{vJ}\nv_lshl_add_u32 v{vST2}, v{vG}, 12, v{vST2}")
        a(f"s_lshl_b32 s68, s{sCG}, 2\ns_add_u32 s68, s68, s{sWv}\ns_lshl_b32 s68, s68, 14\ns_lshl_b32 s65, s{sKG}, 7\ns_add_u32 s68, s68, s65\ns_add_u32 s68, s68, {MB2}")
        a(f"s_and_b32 s78, s{sKG}, 0xfc\ns_add_u32 s78, s78, s{sWv}\ns_lshl_b32 s69, s78, 4\ns_lshl_b32 s78, s78, 2\ns_and_b32 s65, s{sKG}, 3\ns_add_u32 s78, s78, s65")
        a(f"s_lshl_b32 s78, s78, 12\ns_add_u32 s78, s78, {MB2}\ns_mul_i32 s65, s65, 448\ns_add_u32 s69, s69, s65\ns_lshl_b32 s69, s69, 1")
        a(f"v_and_b32 v{E}, 7, v0\nv_and_b32 v{E+1}, 1, v{vG}\nv_lshlrev_b32 v{vXO}, 2, v{E}\nv_lshl_add_u32 v{vXO}, v{E+1}, 1, v{vXO}")
    tail_addr()
    if tlb:
        a("s_cmp_lg_u32 s3, 1\ns_cbranch_scc1 L_notlb")
        a("s_mov_b64 exec, 1")
        if tlb & 1: a(f"buffer_load_dword v{E+7}, v{vZ}, {S(SV)}, s{sVO} offen {nt}")
        if tlb & 2:
            a(f"buffer_load_dword v{E+7}, v{vZ}, {S(SA)}, s66 offen {nt}")
            a(f"buffer_load_dword v{E+7}, v{vZ}, {S(SB)}, s67 offen {nt}")
        a("s_mov_b64 exec, -1")
        a.label("L_notlb")

    cw = [wos]
    def wo_dma(step):
        if nowo: return
        for c in range(6):
            if cw[0][c] != step: continue
            if c >= 2:
                a(f"s_add_u32 s65, s66, {(128 * (c & 1) + 32 * ((c - 2) >> 1)) * 896 if not fakeg else (c - 2) * 4 * 1792}\ns_add_u32 m0, s75, {WL1 + 4096 * (c - 2)}")
                a(f"buffer_load_dwordx4 v{vWO}, {S(SA)}, s65 offen {wnt} lds"); vm.append(("wo", c))
            else:
                a(f"s_add_u32 s65, s67, {32 * 896 * c if not fakeg else 4 * 1792 * c}\ns_add_u32 m0, s75, {WL2 + 4096 * c}")
                a(f"buffer_load_dwordx4 v{vWD}, {S(SB)}, s65 offen {wnt} lds"); vm.append(("wd", c))
        if pf and step == pfs:
            if pfth is not None: a(f"s_cmp_gt_i32 s17, {pfth}\ns_cselect_b32 s19, 0x40000000, s19")
            if pf == 1: a("s_mov_b32 exec_hi, 0")
            a(f"buffer_load_dword v{vTRD}, v{vTR2}, {S(SA)}, s19 offen {pfnt}"); vm.append("pf")
            if pf == 1: a("s_mov_b32 exec_hi, -1")
    vPG, vPR, vPA = E + 8, E + 9, E + 10
    sPS, sPL, sPT = 12, 13, 14
    if fb:
        a(f"s_add_u32 s65, s{sWv}, s{sJ}\ns_and_b32 s65, s65, 3\ns_lshl_b32 s{sPL}, s{sH}, 2\ns_add_u32 s{sPL}, s{sPL}, s65\ns_lshl_b32 s{sPL}, s{sPL}, 7\ns_add_u32 s{sPL}, s{sPL}, {PMB}")
        a(f"s_cmp_lg_u32 s101, 0\ns_cselect_b32 s{sPL}, 0x40000000, s{sPL}\ns_cselect_b32 s{sPT}, 8, 0\ns_cselect_b32 s16, 0, 16")
        a(f"s_lshl_b32 s65, s{sB}, 2\ns_add_u32 s65, s65, s{sJ}\ns_lshl_b32 s65, s65, 2\ns_add_u32 s{sPS}, s{sPL}, s65")
        a(f"s_lshl_b32 s65, s{sWv}, 2\ns_add_u32 s65, s65, {PGL}\nv_mov_b32 v{vPA+1}, s65")
        a(f"v_mov_b32 v{vPG}, 0\nv_bfe_i32 v{vPR}, v0, 0, 1\nv_lshlrev_b32 v{vPA}, 2, v0")
    def progress():
        if not fb: return
        if gfb: a(f"v_readlane_b32 s15, v{vPR}, 16")
        for sh in (8, 4, 2, 1): a(f"v_add_u32_dpp v{vPR}, v{vPR}, v{vPR} row_ror:{sh} {FULL}")
        a(f"v_add_u32 v{vPG}, 1, v{vPG}\nv_readfirstlane_b32 s65, v{vPR}")
        if gfb: a(f"s_add_u32 s65, s65, s15")
        a("s_mov_b64 exec, 1")
        a(f"buffer_store_dword v{vPG}, v{vZ}, {S(SW)}, s{sPS} offen"); vm.append(("ps", nload[0]))
        if gfb >= 2: a(f"ds_write_b32 v{vPA+1}, v{vPG}")
        a(f"s_mov_b64 exec, {'0x1ffff' if gfb else '0xffff'}")
        a(f"buffer_load_dword v{vPR}, v{vPA}, {S(SW)}, s{sPL} offen sc1"); vm.append(("pl", nload[0]))
        a("s_mov_b64 exec, -1")
        a(f"s_sub_u32 s17, s65, s{sPT}\ns_add_u32 s{sPT}, s{sPT}, s16")
        if th2 is not None: a(f"s_sub_u32 s65, s17, {ctl['thdn']}\ns_cmp_gt_u32 s65, {th2 - ctl['thdn']}\ns_cselect_b64 vcc, -1, 0")
        elif ctl["Wdn"]: a(f"s_cmp_lt_i32 s17, {ctl['thdn']}\ns_cselect_b64 vcc, -1, 0")
        a(f"s_cmp_gt_i32 s17, {ctl['thup']}")
        adapt[0] = True
    def iterK(nextkind):
        progress()
        for u in range(8):
            consK(ring(0, u), u, DA)
            throttle_issue(nextkind, ring(0, u), u)
            if nextkind == "V" and u == 0 and -2 in wos:
                a("s_cselect_b32 s18, 1, 0")
                a(f"s_cmp_eq_u32 s{sCG}, 7\ns_cselect_b32 s66, 0x40000000, s66\ns_cselect_b32 s67, 0x40000000, s67")
                wo_dma(-2)
                a("s_cmp_lg_u32 s18, 0")
        extract([DA], 0)
    a("; K loop")
    a(f"s_mov_b32 s{sCNT}, {15 - NP}")
    a.label("L_kk")
    iterK("K")
    a(f"s_sub_u32 s{sCNT}, s{sCNT}, 1\ns_cmp_lg_u32 s{sCNT}, 0\ns_cbranch_scc1 L_kk")
    iterK("V")
    compute_pre = lambda: (a(f"v_not_b32 v{P1+3}, v{GR+3}\nv_mov_b32 v{P1}, 0\nv_mov_b32 v{P1+1}, 0\nv_mov_b32 v{P1+2}, 0\ns_mov_b32 exec_hi, 0"),
                           a(f"buffer_store_dwordx4 {V4(P1)}, v{vL16}, {S(SW)}, s70 offen\ns_mov_b32 exec_hi, -1"))
    if pre1 == 1: compute_pre()
    stamp(3)
    a(f"v_subrev_u32 v{vSC}, 4096, v{vSC}")
    a(f"ds_read_b32 v{vS}, v{vSC}")
    a(f"v_max_f32_dpp v{vMAX}, v{vMAX}, v{vMAX} row_ror:4 {FULL}")
    a(f"v_max_f32_dpp v{vMAX}, v{vMAX}, v{vMAX} row_ror:8 {FULL}")
    a(f"v_max_f32_dpp v{vMAX}, v{vMAX}, v{vMAX} row_bcast:15 row_mask:0xa bank_mask:0xf")
    a(f"v_max_f32_dpp v{vMAX}, v{vMAX}, v{vMAX} row_bcast:31 row_mask:0xc bank_mask:0xf")
    a(f"v_readlane_b32 s65, v{vMAX}, 63")
    a(f"v_mov_b32 v{vMC}, s65")
    vP = TMP
    def ld1(k): a(f"buffer_load_dwordx4 {V4(P1+4*k)}, v{vL16}, {S(SW)}, s{71 if k < 2 else 74} offen{' offset:2048' if k & 1 else ''} sc1")
    def last_extra():
        a(f"s_cmp_eq_u32 s{sCG}, 7\ns_cselect_b32 s66, 0x40000000, s66\ns_cselect_b32 s67, 0x40000000, s67\ns_cselect_b32 s69, s69, 0x40000000")
        wo_dma(-1)
        a(f"buffer_load_ushort v{vX}, v{vXO}, {S(SD)}, s69 offen"); vm.append("x")
        if touch:
            a(f"buffer_load_ushort v{E+7}, v{vXO}, {S(SC_)}, s69 offen"); vm.append("o")
        a(f"v_add_f32_dpp v{vL}, v{vL}, v{vL} row_ror:4 {FULL}")
        a(f"v_add_f32_dpp v{vL}, v{vL}, v{vL} row_ror:8 {FULL}")
        a(f"v_add_f32_dpp v{vL}, v{vL}, v{vL} row_bcast:15 row_mask:0xa bank_mask:0xf")
        a(f"v_add_f32_dpp v{vL}, v{vL}, v{vL} row_bcast:31 row_mask:0xc bank_mask:0xf")
        a(f"v_mov_b32 v{vML}, v{vMC}\nv_mov_b32 v{vML+1}, v{vL}")
        a("s_mov_b32 exec_lo, 0\ns_mov_b32 exec_hi, 0x80000000")
        a(f"ds_write_b64 v{vMLW}, {V2(vML)}")
        a("s_mov_b64 exec, -1")
        if hoist:
            a("s_waitcnt lgkmcnt(0)\ns_barrier")
            if early1 == 2:
                for k in range(4): ld1(k); vm.append(("p1", k))
            a(f"ds_read_b128 {V4(G)}, v{vZ} offset:{ML}\nds_read_b128 {V4(G+4)}, v{vZ} offset:{ML+16}\ns_waitcnt lgkmcnt(0)")
            if hb:
                a(f"ds_read_b128 {V4(AH)}, v{vHA} offset:{HIMG}\nds_read_b128 {V4(AH+4)}, v{vHA} offset:{HIMG+64}")
                a(f"ds_read_b64_tr_b16 {V2(BD)}, v{vTR} offset:{WL2}\nds_read_b64_tr_b16 {V2(BD+2)}, v{vTR} offset:{WL2+512}")
                a(f"ds_read_b64_tr_b16 {V2(BD+4)}, v{vTR} offset:{WL2+4096}\nds_read_b64_tr_b16 {V2(BD+6)}, v{vTR} offset:{WL2+4096+512}")
                if hb == 1:
                    for k in range(4): a(f"ds_read_b64_tr_b16 {V2(BW+4*k)}, v{vTR} offset:{WL1+4096*k}\nds_read_b64_tr_b16 {V2(BW+4*k+2)}, v{vTR} offset:{WL1+4096*k+512}")
            weights()
            if hb:
                a("s_waitcnt lgkmcnt(0)")
                a(f"v_mfma_f32_16x16x32_bf16 {V4(Y)}, {V4(AH)}, {V4(BD)}, 0")
                a(f"v_mfma_f32_16x16x32_bf16 {V4(Y)}, {V4(AH+4)}, {V4(BD+4)}, {V4(Y)}")
    def weights():
        ms, ls = [G, G+2, G+4, G+6], [G+1, G+3, G+5, G+7]
        a(f"v_max3_f32 v{E+4}, v{ms[0]}, v{ms[1]}, v{ms[2]}\nv_max_f32 v{E+4}, v{E+4}, v{ms[3]}")
        for k in range(4): a(f"v_sub_f32 v{ms[k]}, v{ms[k]}, v{E+4}")
        for k in range(4): a(f"v_mul_f32 v{ms[k]}, v{ms[k]}, v{vC}")
        for k in range(4): a(f"v_exp_f32 v{ms[k]}, v{ms[k]}")
        a(f"v_mul_f32 v{E+5}, v{ms[0]}, v{ls[0]}")
        for k in range(1, 4): a(f"v_fmac_f32 v{E+5}, v{ms[k]}, v{ls[k]}")
        a(f"v_rcp_f32 v{E+6}, v{E+5}\nv_log_f32 v{E+5}, v{E+5}")
        for k in range(4): a(f"v_mul_f32 v{ms[k]}, v{ms[k]}, v{E+6}")
        a(f"v_fma_f32 v{GR+2}, v{E+4}, v{vC}, v{E+5}")
    def iterV(last):
        a("s_waitcnt lgkmcnt(0)")
        a(f"v_sub_f32 v{vP}, v{vS}, v{vMC}\nv_mul_f32 v{vP}, v{vP}, v{vC}")
        a(f"v_exp_f32 v{vP}, v{vP}")
        if not last:
            a(f"v_add_u32 v{vSC}, 256, v{vSC}\nds_read_b32 v{vS}, v{vSC}")
        a(f"v_add_f32 v{vL}, v{vL}, v{vP}")
        a(f"v_cvt_pk_bf16_f32 v{vP}, v{vP}, v{vP}")
        if last: last_extra()
        else: progress()
        base = nload[0] - 8
        for u in range(8):
            t, half = u >> 1, u & 1
            b = BB + 4 * (t & 1)
            if half == 0:
                for w in range(4): a(f"v_and_b32_dpp v{b+w}, v{vP}, v{MASK+w} row_newbcast:{4*t} {FULL}")
            if last: wait_for(("s", base + u))
            a(f"v_mfma_f32_16x16x32_bf16 {V4(OACC + 4 * half)}, {V4(ring(0, u))}, {V4(b)}, {V4(OACC + 4 * half)}")
            if not last: throttle_issue("V", ring(0, u), u)
            elif u < 7: wo_dma(u)
    a("; V loop")
    a(f"s_mov_b32 s{sCNT}, {15 - nend}")
    a.label("L_vv")
    iterV(False)
    a(f"s_sub_u32 s{sCNT}, s{sCNT}, 1\ns_cmp_lg_u32 s{sCNT}, 0\ns_cbranch_scc1 L_vv")
    if nend:
        if pre1 == 2: compute_pre()
        curW[0] = Wend or W
        ctl.update(endp or {})
        a(f"s_mov_b32 s{sCNT}, {nend}")
        a.label("L_vv2")
        iterV(False)
        a(f"s_sub_u32 s{sCNT}, s{sCNT}, 1\ns_cmp_lg_u32 s{sCNT}, 0\ns_cbranch_scc1 L_vv2")
    a.label("L_tail", drain=False)
    if stL: stamp(3)
    def final_iter():
        iterV(True)
        stamp(4)
        for r in range(4): a(f"v_mov_b32_dpp v{OACC+r}, v{OACC+4+r} {IDP} row_mask:0xf bank_mask:0xc")
        a(f"ds_write_b128 v{vOPW}, {V4(OACC)}")
        wo_dma(7)
    if thw is not None:
        a(f"v_readlane_b32 s15, v{vPR}, 16")
        for sh in (8, 4, 2, 1): a(f"v_add_u32_dpp v{vPR}, v{vPR}, v{vPR} row_ror:{sh} {FULL}")
        a(f"v_readfirstlane_b32 s65, v{vPR}\ns_add_u32 s65, s65, s15\ns_sub_u32 s17, s65, s{sPT}")
        a(f"s_cmp_gt_i32 s17, {thw}\ns_cbranch_scc1 L_lastE")
        sv = list(vm)
        final_iter()
        a("s_branch L_lastJ")
        a.label("L_lastE")
        vm[:] = sv; cw[0] = (-1,) * 6
        final_iter()
        a.label("L_lastJ")
    else: final_iter()
    a("s_waitcnt lgkmcnt(0)")
    a("s_barrier")
    a("s_mov_b32 exec_hi, 0")
    if not hoist: a(f"ds_read_b128 {V4(G)}, v{vZ} offset:{ML}\nds_read_b128 {V4(G+4)}, v{vZ} offset:{ML+16}")
    for w in range(4): a(f"ds_read_b64 {V2(G+8+2*w)}, v{vOPR} offset:{1024*w}")
    if not hoist:
        a("s_waitcnt lgkmcnt(4)")
        weights()
    ms = [G, G+2, G+4, G+6]
    a("s_cmp_lg_u32 s101, 0")
    a("s_waitcnt lgkmcnt(3)")
    a(f"v_pk_mul_f32 {V2(GR)}, {V2(G+8)}, {V2(ms[0])} op_sel_hi:[1,0]")
    for k in range(1, 4):
        a(f"s_waitcnt lgkmcnt({3-k})")
        a(f"v_pk_fma_f32 {V2(GR)}, {V2(G+8+2*k)}, {V2(ms[k])}, {V2(GR)} op_sel_hi:[1,0,1]")
    if fast:
        a("s_cbranch_scc1 L_st1far", drain=False)
        a(f"buffer_store_dwordx4 {V4(GR)}, v{vL16}, {S(SW)}, s70 offen")
        a("s_branch L_st1done", drain=False)
        a.label("L_st1far", drain=False)
    a(f"buffer_store_dwordx4 {V4(GR)}, v{vL16}, {S(SW)}, s70 offen sc1")
    if fast: a.label("L_st1done", drain=False)
    def st1_global():
        a("s_mov_b32 exec_hi, 0")
        a(f"buffer_store_dwordx4 {V4(GR)}, v{vL16}, {S(SW)}, s70 offen sc1")
        a("s_mov_b32 exec_hi, -1")
    a("s_mov_b64 exec, -1")
    stamp(8)
    a(f"s_mov_b32 s{sCNT}, {spin}")
    a(f"s_cmp_eq_u32 s{sCG}, 7\ns_cbranch_scc1 L_reduce", drain=False)
    if not early1:
        if pw is not None: a(f"s_waitcnt vmcnt({pw})")
        for k in range(4): ld1(k)
    if not hb: a(f"ds_read_b128 {V4(AH)}, v{vHA} offset:{HIMG}\nds_read_b128 {V4(AH+4)}, v{vHA} offset:{HIMG+64}")
    if early1: a("s_waitcnt vmcnt(1)\ns_branch L_p1c", drain=False)
    a.label("L_p1", drain=False)
    a("s_waitcnt vmcnt(0)")
    a.label("L_p1c", drain=False)
    MK = [4, 6, 8, 10]
    for k in range(4): a(f"v_cmp_ne_u32 s[{MK[k]}:{MK[k]+1}], s{sTAG}, v{P1+4*k+3}")
    a(f"s_or_b64 s[76:77], s[4:5], s[6:7]\ns_or_b64 vcc, s[8:9], s[10:11]\ns_or_b64 s[76:77], s[76:77], vcc")
    a("s_cbranch_scc0 L_p1ok", drain=False)
    if sleep1: a(f"s_sleep {sleep1}")
    for k in range(4):
        a(f"s_cmp_eq_u64 s[{MK[k]}:{MK[k]+1}], 0\ns_cbranch_scc1 L_p1s{k}", drain=False)
        ld1(k)
        a.label(f"L_p1s{k}", drain=False)
    a(f"s_sub_u32 s{sCNT}, s{sCNT}, 1\ns_cbranch_scc0 L_p1", drain=False)
    a.label("L_p1ok", drain=False)
    stamp(5)
    lam = [P1+2, P1+6, P1+10, P1+14]
    a(f"v_max3_f32 v{E+4}, v{lam[0]}, v{lam[1]}, v{lam[2]}\nv_max_f32 v{E+4}, v{E+4}, v{lam[3]}")
    for k in range(4): a(f"v_sub_f32 v{lam[k]}, v{lam[k]}, v{E+4}")
    for k in range(4): a(f"v_exp_f32 v{lam[k]}, v{lam[k]}")
    a(f"v_add_f32 v{E+5}, v{lam[0]}, v{lam[1]}\nv_pk_mul_f32 {V2(G)}, {V2(P1)}, {V2(lam[0])} op_sel_hi:[1,0]\nv_add_f32 v{E+6}, v{lam[2]}, v{lam[3]}")
    a(f"v_pk_fma_f32 {V2(G)}, {V2(P1+4)}, {V2(lam[1])}, {V2(G)} op_sel_hi:[1,0,1]\nv_add_f32 v{E+6}, v{E+5}, v{E+6}")
    a(f"v_pk_fma_f32 {V2(G)}, {V2(P1+8)}, {V2(lam[2])}, {V2(G)} op_sel_hi:[1,0,1]\nv_rcp_f32 v{E+6}, v{E+6}")
    a(f"v_pk_fma_f32 {V2(G)}, {V2(P1+12)}, {V2(lam[3])}, {V2(G)} op_sel_hi:[1,0,1]")
    a(f"v_pk_mul_f32 {V2(G)}, {V2(G)}, {V2(E+6)} op_sel_hi:[1,0]")
    a(f"v_cvt_pk_bf16_f32 v{G}, v{G}, v{G+1}")
    a(f"ds_write_b32 v{vAW}, v{G}")
    a("s_waitcnt lgkmcnt(0)")
    a("s_barrier")
    if not hb:
        a(f"ds_read_b64_tr_b16 {V2(BD)}, v{vTR} offset:{WL2}\nds_read_b64_tr_b16 {V2(BD+2)}, v{vTR} offset:{WL2+512}")
        a(f"ds_read_b64_tr_b16 {V2(BD+4)}, v{vTR} offset:{WL2+4096}\nds_read_b64_tr_b16 {V2(BD+6)}, v{vTR} offset:{WL2+4096+512}")
    for k in range(4):
        a(f"ds_read_b128 {V4(AO+4*k)}, v{vAR} offset:{AIMG+64*k}")
        if hb != 1: a(f"ds_read_b64_tr_b16 {V2(BW+4*k)}, v{vTR} offset:{WL1+4096*k}\nds_read_b64_tr_b16 {V2(BW+4*k+2)}, v{vTR} offset:{WL1+4096*k+512}")
    if not hb:
        a("s_waitcnt lgkmcnt(12)")
        a(f"v_mfma_f32_16x16x32_bf16 {V4(Y)}, {V4(AH)}, {V4(BD)}, 0")
        a(f"v_mfma_f32_16x16x32_bf16 {V4(Y)}, {V4(AH+4)}, {V4(BD+4)}, {V4(Y)}")
    for k in range(4):
        a(f"s_waitcnt lgkmcnt({(3 - k) * (1 if hb == 1 else 3)})")
        a(f"v_mfma_f32_16x16x32_bf16 {V4(Y)}, {V4(AO+4*k)}, {V4(BW+4*k)}, {V4(Y)}")
    a(f"v_mov_b32 v{Y+1}, v{GR+3}")
    if not nost2: a(f"buffer_store_dwordx2 {V2(Y)}, v{vST2}, {S(SW)}, s68 offen sc1")
    if fast and clean: st1_global()
    a("s_branch L_sdone")
    a.label("L_reduce")
    if fast and clean:
        a("s_sleep 12")
        st1_global()
    a(f"s_cmp_ge_u32 s{sKG}, 28\ns_cbranch_scc1 L_sdone")
    if nored: a("s_branch L_sdone")
    SETS = [R + 16 * d for d in range(2)] + [QF, QF + 16]
    def ld2(d):
        for k in range(4): a(f"buffer_load_dwordx4 {V4(SETS[d]+4*k)}, v{vL16}, {S(SW)}, s78 offen offset:{1024*k} sc1")
    a(f"s_waitcnt vmcnt(0)\nv_lshlrev_b32 v{vX}, 16, v{vX}")
    for d in range(D2 - 1):
        ld2(d)
        if stag2: a(f"s_sleep {stag2}")
    a.label("L_p2")
    for d in range(D2):
        ld2((d + D2 - 1) % D2)
        a(f"s_waitcnt vmcnt({4 * (D2 - 1)})")
        q = SETS[d]
        a(f"v_xor_b32 v{E}, v{q+1}, v{GR+3}\nv_xor_b32 v{E+1}, v{q+3}, v{GR+3}")
        for k in range(1, 4): a(f"v_bitop3_b32 v{E}, v{q+4*k+1}, v{GR+3}, v{E} bitop3:0xbe\nv_bitop3_b32 v{E+1}, v{q+4*k+3}, v{GR+3}, v{E+1} bitop3:0xbe")
        a(f"v_or_b32 v{E}, v{E}, v{E+1}\nv_add_f32 v{P1}, v{q}, v{q+4}\nv_add_f32 v{P1+2}, v{q+2}, v{q+6}\nv_cmp_ne_u32 vcc, 0, v{E}")
        a(f"v_add_f32 v{P1+8}, v{q+8}, v{q+12}\nv_add_f32 v{P1+10}, v{q+10}, v{q+14}")
        a("s_cbranch_vccz L_p2ok", drain=False)
    a(f"s_sub_u32 s{sCNT}, s{sCNT}, 1\ns_cbranch_scc0 L_p2", drain=False)
    a.label("L_p2ok", drain=False)
    stamp(6)
    a(f"v_add_f32 v{P1}, v{P1}, v{P1+8}\nv_add_f32 v{P1+2}, v{P1+2}, v{P1+10}")
    a(f"v_permlane16_swap_b32 v{P1}, v{P1+2}")
    a(f"v_add_f32 v{P1}, v{P1}, v{P1+2}")
    a(f"v_add_f32_dpp v{P1}, v{P1}, v{P1} row_ror:8 {FULL}")
    a(f"v_mov_b32 v{P1+2}, v{P1}")
    a(f"v_permlane32_swap_b32 v{P1}, v{P1+2}")
    a(f"v_add_f32 v{P1}, v{P1}, v{P1+2}\nv_add_f32 v{P1}, v{P1}, v{vX}")
    a(f"v_cvt_pk_bf16_f32 v{P1}, v{P1}, v{P1}")
    a(f"s_mov_b32 exec_hi, 0\ns_mov_b32 exec_lo, 0x00ff00ff")
    a(f"buffer_store_short v{P1}, v{vXO}, {S(SC_)}, s69 offen {osc}")
    a(f"s_or_b32 s65, s{sKG}, s{sWv}\ns_cmp_lg_u32 s65, 0\ns_cbranch_scc1 L_sdone")
    a("s_mov_b64 exec, 1")
    a(f"buffer_store_dword v{GR+3}, v{vZ}, {S(SW)}, 0 offen {osc}")
    a.label("L_sdone")
    stamp(7)
    pad("S")
    dump_stamps(9)
    a("s_endpgm")

    a.label("L_helper")
    in_helper[0] = True
    if k1st: a("s_load_dwordx8 s[20:27], s[0:1], 64")
    X, F, AF, AF2, BF, D, TG = 32, 64, 96, 112, 128, 184, 200
    a("s_setprio 3")
    a(f"v_mul_u32_u24 v6, 896, v5\nv_lshl_add_u32 v6, v4, 6, v6\nv_mov_b32 v7, 0x40000000\nv_cmp_gt_u32 s[74:75], 14, v4")
    a(f"v_cndmask_b32 v7, v7, v6, s[74:75]")
    a(f"v_lshrrev_b32 v8, 3, v0\nv_and_b32 v9, 7, v0\nv_lshlrev_b32 v9, 4, v9\nv_lshl_add_u32 v10, v8, 13, v9")
    a(f"v_mul_u32_u24 v11, 3584, v8\nv_add_u32 v11, v11, v9")
    a(f"s_mul_i32 s65, s{sB}, {112 * 8192}\ns_lshl_b32 s66, s{sIDX}, 7\ns_add_u32 s65, s65, s66")
    a("s_waitcnt lgkmcnt(0)")
    a(f"s_load_dword s{sTAG}, s[26:27], 0")
    srd(SA, 4, 3584)
    for u in range(4): a(f"buffer_load_dwordx4 {V4(X+4*u)}, v7, {S(SA)}, 0 offen offset:{16*u}")
    srd(SB, 10, 448 * 8192)
    def dma(sr, voff, so, stride, lds0, win=None):
        for k in range(14):
            if win and k >= win: a(f"s_waitcnt vmcnt({win-1})")
            a(f"s_mov_b32 m0, {lds0 + 1024 * k}")
            a(f"buffer_load_dwordx4 v{voff}, {S(sr)}, s{so} offen {wnt} lds")
            if k < 13: a(f"s_add_u32 s{so}, s{so}, {8 * stride}")
    if not noq: dma(SB, 10, 65, 8192, WL0)
    srd(SW, 26, WS_USED)
    nini = 0
    if fb:
        a(f"s_lshl_b32 s34, s{sH}, 9\ns_add_u32 s34, s34, {PMB}\ns_lshl_b32 s35, s{sB}, 2\ns_add_u32 s35, s35, s{sJ}\ns_lshl_b32 s68, s35, 2\ns_add_u32 s68, s68, s34")
        a(f"v_lshlrev_b32 v2, 7, v0\nv_mov_b32 v3, 0\ns_mov_b64 exec, 15")
        a(f"buffer_store_dword v3, v2, {S(SW)}, s68 offen"); nini += 1
        if gfb:
            a(f"s_cmp_eq_u32 s35, 0\ns_cselect_b32 s68, s34, 0x40000000")
            a(f"buffer_store_dword v3, v2, {S(SW)}, s68 offen offset:64"); nini += 1
        a("s_mov_b64 exec, -1")
    a(f"v_and_b32 v14, 3, v4\nv_lshrrev_b32 v15, 2, v4\ns_mul_i32 s65, s{sB}, 224")
    a(f"v_mul_u32_u24 v12, 896, v15\nv_add_u32 v12, s65, v12\nv_lshl_add_u32 v28, v5, 3, v12\nv_lshl_add_u32 v12, v5, 4, v12")
    a(f"s_lshr_b32 s65, s{sCG}, 1\ns_mul_i32 s65, s65, 224")
    a(f"v_mul_u32_u24 v30, 896, v14\nv_add_u32 v30, s65, v30\nv_lshl_add_u32 v31, v5, 3, v30\nv_lshl_add_u32 v30, v5, 4, v30")
    a(f"v_lshl_add_u32 v8, v5, 2, v14\nv_lshlrev_b32 v8, 4, v8\nv_lshl_add_u32 v8, v15, 16, v8")
    a(f"v_lshlrev_b32 v9, 5, v14\nv_lshl_add_u32 v9, v15, 3, v9\nv_lshl_add_u32 v9, v5, 7, v9")
    for t in range(1, 4): a(f"v_cmp_eq_u32 s[{26+2*t}:{27+2*t}], {t}, v14")
    a(f"v_lshlrev_b32 v15, 7, v15\nv_lshl_add_u32 v15, v14, 3, v15")
    a(f"v_lshl_add_u32 v13, v5, 10, v15\nv_lshl_add_u32 v29, v5, 9, v15")
    a(f"s_waitcnt vmcnt(14)" if not noq else "s_waitcnt vmcnt(0)")
    stamp(1)
    for k in range(16): a(f"v_lshlrev_b32 v{F+2*k}, 16, v{X+k}\nv_and_b32 v{F+2*k+1}, 0xffff0000, v{X+k}")
    a(f"v_pk_add_f32 v[14:15], {V2(F)}, {V2(F+2)}\nv_pk_add_f32 v[16:17], {V2(F+4)}, {V2(F+6)}")
    for k in range(4, 16, 2):
        a(f"v_pk_add_f32 v[14:15], v[14:15], {V2(F+2*k)}\nv_pk_add_f32 v[16:17], v[16:17], {V2(F+2*k+2)}")
    a("v_pk_add_f32 v[14:15], v[14:15], v[16:17]\nv_add_f32 v14, v14, v15")
    def rowsum(r):
        for sh in (8, 4, 2, 1): a(f"v_add_f32_dpp v{r}, v{r}, v{r} row_ror:{sh} {FULL}")
    rowsum(14)
    a(f"v_mul_f32 v18, {hex(f2u(-1.0 / 448))}, v14\nv_mov_b32 v19, v18")
    a("v_mov_b32 v14, 0\nv_mov_b32 v15, 0\nv_mov_b32 v16, 0\nv_mov_b32 v17, 0")
    for k in range(0, 16, 2):
        a(f"v_pk_add_f32 v[20:21], {V2(F+2*k)}, v[18:19]\nv_pk_add_f32 v[22:23], {V2(F+2*k+2)}, v[18:19]")
        a(f"v_pk_fma_f32 v[14:15], v[20:21], v[20:21], v[14:15]\nv_pk_fma_f32 v[16:17], v[22:23], v[22:23], v[16:17]")
    a("v_pk_add_f32 v[14:15], v[14:15], v[16:17]\nv_add_f32 v14, v14, v15\nv_cndmask_b32 v14, 0, v14, s[74:75]")
    rowsum(14)
    def rbf(r): a(f"v_cvt_pk_bf16_f32 v{r}, v{r}, v{r}\nv_and_b32 v{r}, 0xffff0000, v{r}")
    a(f"v_mul_f32 v14, {hex(f2u(1.0 / 448))}, v14"); rbf(14)
    a(f"v_add_f32 v14, {hex(f2u(1e-5))}, v14"); rbf(14)
    a("v_sqrt_f32 v14, v14"); rbf(14)
    a("v_rcp_f32 v16, v14\nv_mov_b32 v15, v14"); rbf(18)
    a("v_mov_b32 v17, v16\nv_mov_b32 v19, v18")
    for k in range(16):
        a(f"v_pk_add_f32 {V2(F+2*k)}, {V2(F+2*k)}, v[18:19]")
    for k in range(16):
        a(f"v_cvt_pk_bf16_f32 v{X+k}, v{F+2*k}, v{F+2*k+1}")
    for k in range(16): a(f"v_lshlrev_b32 v{F+2*k}, 16, v{X+k}\nv_and_b32 v{F+2*k+1}, 0xffff0000, v{X+k}")
    for k in range(16):
        t = 20 + 2 * (k & 3)
        a(f"v_pk_mul_f32 {V2(t)}, {V2(F+2*k)}, v[16:17]")
        a(f"v_pk_fma_f32 {V2(F+2*k)}, {V2(t)}, v[14:15], {V2(F+2*k)} neg_lo:[1,0,0] neg_hi:[1,0,0]")
        a(f"v_pk_fma_f32 {V2(t)}, {V2(F+2*k)}, v[16:17], {V2(t)}")
        a(f"v_cvt_pk_bf16_f32 v{X+k}, v{t}, v{t+1}")
    a("s_mov_b64 exec, s[74:75]")
    for u in range(4): a(f"ds_write_b128 v6, {V4(X+4*u)} offset:{XN + 16*u}")
    a("s_mov_b64 exec, -1")
    a("s_waitcnt lgkmcnt(0)")
    a(f"s_mul_i32 s{sTAG}, s{sTAG}, 0x9E3779B1\ns_add_u32 s{sTAG}, s{sTAG}, 0x7F4A7C15")
    for k in range(3): a(f"ds_read_b128 {V4(AF+4*k)}, v12 offset:{XN + 64*k}")
    a(f"ds_read_b64 {V2(AF+12)}, v28 offset:{XN + 192}")
    a(f"v_mov_b32 v{TG}, s{sTAG}\nv_lshrrev_b32 v{TG+1}, 8, v{TG}\nv_lshrrev_b32 v{TG+2}, 16, v{TG}\nv_lshrrev_b32 v{TG+3}, 24, v{TG}\ns_movk_i32 s78, 0xff")
    a(f"v_lshlrev_b32 v10, 4, v0")
    a(f"s_lshl_b32 s66, s{sH}, 12\ns_lshl_b32 s67, s{sB}, 10\ns_add_u32 s66, s66, s67\ns_lshl_b32 s67, s{sJ}, 8\ns_add_u32 s66, s66, s67\ns_add_u32 s66, s66, {QMB}")
    a(f"s_lshl_b32 s67, s{sBH}, 12\ns_add_u32 s67, s67, {QMB}")
    a("s_waitcnt vmcnt(0)")
    stamp(2)
    a(f"s_getreg_b32 s69, hwreg(HW_REG_XCC_ID, 0, 4)\nv_xor_b32 v{TG+4}, s69, v{TG+3}")
    def piece(af, transposed):
        for t in range(4):
            for k in range(3):
                o = WL0 + 4096 * k + 32 * t
                a(f"ds_read_b64_tr_b16 {V2(BF+14*t+4*k)}, v13 offset:{o}\nds_read_b64_tr_b16 {V2(BF+14*t+4*k+2)}, v13 offset:{o + 512}")
            a(f"ds_read_b64_tr_b16 {V2(BF+14*t+12)}, v29 offset:{WL0 + 12288 + 32 * t}")
        a("s_waitcnt lgkmcnt(0)")
        for k in range(3):
            for t in range(4):
                x, w = V4(af+4*k), V4(BF+14*t+4*k)
                a(f"v_mfma_f32_16x16x32_bf16 {V4(D+4*t)}, {w if transposed else x}, {x if transposed else w}, {'0' if k == 0 else V4(D+4*t)}")
        for t in range(4):
            x, w = V2(af+12), V2(BF+14*t+12)
            a(f"v_mfma_f32_16x16x16_bf16 {V4(D+4*t)}, {w if transposed else x}, {x if transposed else w}, {V4(D+4*t)}")
        for t in range(1, 4):
            for r in range(4):
                if transposed: a(f"v_cndmask_b32 v{D+r}, v{D+r}, v{D+4*t+r}, s[{26+2*t}:{27+2*t}]")
                else: a(f"v_mov_b32_dpp v{D+r}, v{D+4*t+r} {IDP} row_mask:{hex(1 << t)} bank_mask:0xf")
        for r in range(4): a(f"v_add_u32 v{D+r}, 0x80, v{D+r}")
        for r in range(4): a(f"v_bfi_b32 v{20+r}, s78, v{TG + r + (1 if transposed and r == 3 else 0)}, v{D+r}")
    a("; q block")
    piece(AF, True)
    if noq or not qst: a("s_branch L_pqok")
    a(f"buffer_store_dwordx4 v[20:23], v8, {S(SW)}, s66 offen{'' if fastq else ' sc1'}")
    stamp(3)
    for k in range(3): a(f"ds_read_b128 {V4(AF2+4*k)}, v30 offset:{XN + 64*k}")
    a(f"ds_read_b64 {V2(AF2+12)}, v31 offset:{XN + 192}")
    a(f"v_mov_b32 v16, 0\nv_mov_b32 v17, 0\nv_mov_b32 v18, 0\nv_mov_b32 v19, 0")
    a(f"s_mov_b32 exec_hi, 0xff\nds_write_b128 v10, v[16:19] offset:{HIMG}\ns_mov_b64 exec, -1")
    a(f"ds_write_b128 v16, v[16:19] offset:{PGL}")
    PQ = F
    def qload(k): a(f"buffer_load_dwordx4 {V4(PQ+4*k)}, v10, {S(SW)}, s67 offen offset:{1024 * k} sc1")
    def chk4(dst, src):
        a(f"v_xor_b32 v{dst}, v{src}, v{TG}")
        for t in range(1, 4): a(f"v_bitop3_b32 v{dst}, v{src+t}, v{TG+t}, v{dst} bitop3:0xbe")
        a(f"v_and_b32 v{dst}, s78, v{dst}")
    if sleepq: a(f"s_sleep {sleepq}")
    for k in range(4): qload(k)
    a(f"s_mov_b32 s{sCNT}, {spin}")
    a.label("L_pq")
    a("s_waitcnt vmcnt(0)")
    for k in range(4):
        a(f"v_xor_b32 v{X+4+k}, v{PQ+4*k+3}, v{TG+4}\nv_and_b32 v{X+k}, 0xf0, v{X+4+k}")
        for t in range(3): a(f"v_bitop3_b32 v{X+k}, v{PQ+4*k+t}, v{TG+t}, v{X+k} bitop3:0xbe")
        a(f"v_and_b32 v{X+k}, s78, v{X+k}")
    a(f"v_or3_b32 v24, v{X}, v{X+1}, v{X+2}\nv_or_b32 v24, v24, v{X+3}")
    a("v_cmp_ne_u32 vcc, 0, v24\ns_cbranch_vccz L_pqok", drain=False)
    if fastq:
        a(f"s_cmp_lg_u32 s{sCNT}, {spin - nq}\ns_cbranch_scc1 L_pqg", drain=False)
        a(f"buffer_store_dwordx4 v[20:23], v8, {S(SW)}, s66 offen sc1")
        a.label("L_pqg", drain=False)
    a(f"s_sleep 2")
    for k in range(4):
        a(f"v_cmp_ne_u32 vcc, 0, v{X+k}\ns_cbranch_vccz L_pqs{k}", drain=False)
        qload(k)
        a.label(f"L_pqs{k}", drain=False)
    a(f"s_sub_u32 s{sCNT}, s{sCNT}, 1\ns_cmp_lg_u32 s{sCNT}, 0\ns_cbranch_scc1 L_pq", drain=False)
    a.label("L_pqok", drain=False)
    for k in range(16): a(f"v_and_b32 v{PQ+k}, 0xffffff00, v{PQ+k}")
    for e in (0, 2):
        a(f"v_pk_add_f32 {V2(PQ+e)}, {V2(PQ+e)}, {V2(PQ+4+e)}\nv_pk_add_f32 {V2(PQ+8+e)}, {V2(PQ+8+e)}, {V2(PQ+12+e)}")
    for e in (0, 2): a(f"v_pk_add_f32 {V2(PQ+e)}, {V2(PQ+e)}, {V2(PQ+8+e)}")
    a(f"v_cvt_pk_bf16_f32 v24, v{PQ}, v{PQ+1}\nv_cvt_pk_bf16_f32 v25, v{PQ+2}, v{PQ+3}\nv_mov_b32 v17, 0")
    a(f"v_or3_b32 v26, v{X+4}, v{X+5}, v{X+6}\nv_or_b32 v26, v26, v{X+7}\nv_and_b32 v26, 15, v26\nv_cmp_ne_u32 vcc, 0, v26")
    a(f"s_or_b32 s69, vcc_lo, vcc_hi\nv_mov_b32 v26, v{TG}\nv_mov_b32 v27, s69")
    a(f"ds_write_b64 v9, v[24:25] offset:{QL}\nds_write_b64 v17, v[26:27] offset:{TAGL}")
    if fastq:
        a("s_cmp_eq_u32 s69, 0\ns_cbranch_scc1 L_qnear")
        a(f"buffer_store_dwordx4 v[20:23], v8, {S(SW)}, s66 offen sc1")
        a.label("L_qnear")
    a("s_waitcnt lgkmcnt(0)")
    stamp(4)
    if stamps: a(f"s_mov_b32 s92, s{sCNT}")
    a("s_barrier")
    a("s_setprio 0")
    if g0:
        a(f"s_cmp_lg_u32 s35, 15\ns_cbranch_scc1 L_nog0\ns_cmp_lg_u32 s69, 0\ns_cbranch_scc1 L_nog0")
        a("s_mov_b32 s71, 1\ns_atomic_add s71, s[24:25], 60 glc\ns_waitcnt lgkmcnt(0)")
        a(f"s_sub_u32 s71, s71, {r0}\ns_mul_i32 s71, s71, {g0}\ns_ashr_i32 s71, s71, 2\nv_mov_b32 v42, s71")
        a(f"s_mov_b64 exec, 15\nbuffer_store_dword v42, v2, {S(SW)}, s34 offen offset:64\ns_mov_b64 exec, -1")
        a.label("L_nog0")
    if noffn: a("s_branch L_hend")
    a(f"s_cmp_ge_u32 s{sKG}, 28\ns_cbranch_scc1 L_hend")
    a(f"s_bitcmp1_b32 s{sCG}, 0\ns_cselect_b32 s{SC_}, s18, s16\ns_cselect_b32 s{SC_+1}, s19, s17\ns_mov_b32 s{SC_+2}, {448 * 3584}\ns_mov_b32 s{SC_+3}, 0x20000")
    a(f"s_lshr_b32 s66, s{sCG}, 1\ns_mul_i32 s65, s66, {112 * 3584}\ns_lshl_b32 s67, s{sKG}, 7\ns_add_u32 s65, s65, s67")
    if fdma: dma(SC_, 11, 65, 3584, WL0, win=HW)
    a(f"s_lshl_b32 s67, s{sKG}, 13\ns_add_u32 s67, s67, {FMB}\ns_lshl_b32 s66, s{sCG}, 10\ns_add_u32 s66, s66, s67\ns_add_u32 s68, s67, 4096")
    a("s_waitcnt vmcnt(0)")
    piece(AF2, False)
    if fst and fastf:
        a("s_cmp_lg_u32 s69, 0\ns_cbranch_scc1 L_ffar")
        a(f"buffer_store_dwordx4 v[20:23], v10, {S(SW)}, s66 offen\ns_branch L_fdone")
        a.label("L_ffar")
    if fst: a(f"buffer_store_dwordx4 v[20:23], v10, {S(SW)}, s66 offen sc1")
    if fst and fastf: a.label("L_fdone")
    if not fpoll: a("s_branch L_hend")
    a(f"s_cmp_eq_u32 s{sCG}, 7\ns_cbranch_scc1 L_hend")
    def fload(k): a(f"buffer_load_dwordx4 {V4(F+4*k)}, v10, {S(SW)}, s{67 + (k >> 2)} offen offset:{1024 * (k & 3)} sc1")
    a(f"s_sleep {sleepf}")
    for k in range(8): fload(k)
    a(f"s_mov_b32 s{sCNT}, {spin}\nv_lshlrev_b32 v9, 1, v0")
    a.label("L_pf")
    a("s_waitcnt vmcnt(0)")
    for k in range(8): chk4(X + k, F + 4 * k)
    a(f"v_or3_b32 v24, v{X}, v{X+1}, v{X+2}\nv_or3_b32 v24, v24, v{X+3}, v{X+4}\nv_or3_b32 v24, v24, v{X+5}, v{X+6}\nv_or_b32 v24, v24, v{X+7}")
    a("v_cmp_ne_u32 vcc, 0, v24\ns_cbranch_vccz L_pfok", drain=False)
    a(f"s_sleep 16")
    for k in range(8):
        a(f"v_cmp_ne_u32 vcc, 0, v{X+k}\ns_cbranch_vccz L_pfs{k}", drain=False)
        fload(k)
        a.label(f"L_pfs{k}", drain=False)
    a(f"s_sub_u32 s{sCNT}, s{sCNT}, 1\ns_cbranch_scc0 L_pf", drain=False)
    a.label("L_pfok", drain=False)
    for k in range(32): a(f"v_and_b32 v{F+k}, 0xffffff00, v{F+k}")
    for e in range(0, 8, 2):
        a(f"v_pk_add_f32 {V2(F+e)}, {V2(F+e)}, {V2(F+8+e)}\nv_pk_add_f32 {V2(F+16+e)}, {V2(F+16+e)}, {V2(F+24+e)}")
    for e in range(0, 8, 2): a(f"v_pk_add_f32 {V2(F+e)}, {V2(F+e)}, {V2(F+16+e)}")
    for r in range(8): rbf(F + r)
    k1 = -2.0 * math.sqrt(2.0 / math.pi) * math.log2(math.e)
    for r in range(4):
        g, u, t = F + r, F + 4 + r, F + 8 + r
        a(f"v_mul_f32 v{t}, v{g}, v{g}\nv_mul_f32 v{t}, {hex(f2u(0.044715))}, v{t}\nv_fma_f32 v{t}, v{t}, v{g}, v{g}")
        a(f"v_mul_f32 v{t}, {hex(f2u(k1))}, v{t}\nv_exp_f32 v{t}, v{t}\nv_add_f32 v{t}, 1.0, v{t}\nv_rcp_f32 v{t}, v{t}\nv_mul_f32 v{g}, v{g}, v{t}")
        rbf(g)
        a(f"v_mul_f32 v{g}, v{g}, v{u}")
    a(f"v_cvt_pk_bf16_f32 v32, v{F}, v{F+1}\nv_cvt_pk_bf16_f32 v34, v{F+2}, v{F+3}")
    a(f"ds_write_b16 v9, v32 offset:{HIMG}\nds_write_b16_d16_hi v9, v32 offset:{HIMG + HROW}")
    a(f"ds_write_b16 v9, v34 offset:{HIMG + 2 * HROW}\nds_write_b16_d16_hi v9, v34 offset:{HIMG + 3 * HROW}")
    a("s_waitcnt lgkmcnt(0)")
    a.label("L_hend")
    a("s_mov_b64 exec, -1")
    if fb and gfb == 2:
        a(f"s_cmp_lg_u32 s69, 0\ns_cbranch_scc1 L_gend\ns_cmp_ge_u32 s35, {nR}\ns_cbranch_scc1 L_gend")
        a(f"v_lshlrev_b32 v6, 2, v4\nv_lshl_add_u32 v6, v5, 7, v6\nv_mov_b32 v41, v{TG}\nv_mov_b32 v7, 0")
        a(f"s_lshl_b32 s66, s{sH}, 7\ns_add_u32 s66, s66, {GMB}\ns_mov_b32 s67, {GMB}\ns_mov_b32 s{sCNT}, 4000\ns_mul_i32 s70, s35, {dL}\ns_add_u32 s70, s70, {L0}")
        a.label("L_gw")
        a(f"ds_read_b32 v40, v7 offset:{PGL}\ns_waitcnt lgkmcnt(0)\nv_readfirstlane_b32 s65, v40\ns_cmp_ge_u32 s65, s70\ns_cbranch_scc1 L_gr")
        a(f"s_sleep 4\ns_sub_u32 s{sCNT}, s{sCNT}, 1\ns_cbranch_scc0 L_gw")
        a.label("L_gr")
        a(f"buffer_load_dword v40, v6, {S(SW)}, s34 offen sc1")
        a("s_mov_b64 exec, 0xffff")
        a(f"buffer_load_dwordx2 v[42:43], v2, {S(SW)}, s67 offen sc1")
        a("s_mov_b64 exec, -1\ns_waitcnt vmcnt(1)")
        for sh in (8, 4, 2, 1): a(f"v_add_u32_dpp v40, v40, v40 row_ror:{sh} {FULL}")
        a("v_add_u32_dpp v40, v40, v40 row_bcast:15 row_mask:0xa bank_mask:0xf\nv_add_u32_dpp v40, v40, v40 row_bcast:31 row_mask:0xc bank_mask:0xf")
        a("v_readlane_b32 s71, v40, 63\nv_mov_b32 v40, s71")
        a("s_mov_b64 exec, 1")
        a(f"buffer_store_dwordx2 v[40:41], v7, {S(SW)}, s66 offen sc1")
        a("s_mov_b64 exec, -1\ns_waitcnt vmcnt(1)")
        a(f"v_subrev_u32 v44, {64 * dL}, v40\nv_cmp_eq_u32 vcc, v43, v41\nv_cndmask_b32 v42, v44, v42, vcc\nv_sub_u32 v42, v42, v40")
        for sh in (8, 4, 2, 1): a(f"v_add_u32_dpp v42, v42, v42 row_ror:{sh} {FULL}")
        a(f"v_ashrrev_i32 v42, {4 + gsh}, v42\nv_add_u32 v42, {goff}, v42")
        a("s_mov_b64 exec, 15")
        a(f"buffer_store_dword v42, v2, {S(SW)}, s34 offen offset:64")
        a("s_mov_b64 exec, -1")
        a.label("L_gend")
    if fb and gfb == 3:
        a(f"s_cmp_lg_u32 s69, 0\ns_cbranch_scc1 L_gend\ns_cmp_ge_u32 s35, {nR}\ns_cbranch_scc1 L_gend")
        a(f"v_lshlrev_b32 v6, 2, v4\nv_lshl_add_u32 v6, v5, 7, v6\nv_mov_b32 v7, 0")
        a(f"s_mov_b32 s{sCNT}, 4000\ns_mul_i32 s70, s35, {dL}\ns_add_u32 s70, s70, {L0}\ns_lshl_b32 s66, s35, 2")
        a.label("L_gw")
        a(f"ds_read_b32 v40, v7 offset:{PGL}\ns_waitcnt lgkmcnt(0)\nv_readfirstlane_b32 s65, v40\ns_cmp_ge_u32 s65, s70\ns_cbranch_scc1 L_gr")
        a(f"s_sleep 4\ns_sub_u32 s{sCNT}, s{sCNT}, 1\ns_cbranch_scc0 L_gw")
        a.label("L_gr")
        if gpoll:
            a(f"s_lshl_b32 s70, s70, 6\ns_add_u32 s70, s70, 16\ns_mov_b32 s{sCNT}, 3")
            a.label("L_gp")
            a(f"buffer_load_dword v40, v6, {S(SW)}, s34 offen sc1\ns_waitcnt vmcnt(0)")
            for sh in (8, 4, 2, 1): a(f"v_add_u32_dpp v40, v40, v40 row_ror:{sh} {FULL}")
            a("v_add_u32_dpp v40, v40, v40 row_bcast:15 row_mask:0xa bank_mask:0xf\nv_add_u32_dpp v40, v40, v40 row_bcast:31 row_mask:0xc bank_mask:0xf")
            a(f"v_readlane_b32 s71, v40, 63\ns_cmp_ge_u32 s71, s70\ns_cbranch_scc1 L_ga\ns_sub_u32 s{sCNT}, s{sCNT}, 1\ns_cbranch_scc0 L_gp")
            a.label("L_ga")
        a("s_mov_b32 s71, 1\ns_atomic_add s71, s[24:25], s66 glc\ns_waitcnt lgkmcnt(0)")
        a(f"s_sub_u32 s71, s71, {r0}\ns_mul_i32 s71, s71, {gain}\ns_ashr_i32 s71, s71, 2\nv_mov_b32 v42, s71")
        a("s_mov_b64 exec, 15")
        a(f"buffer_store_dword v42, v2, {S(SW)}, s34 offen offset:64")
        a("s_mov_b64 exec, -1")
        if rew:
            a(f"s_cmp_lt_u32 s35, {nR - rew}\ns_cbranch_scc1 L_gend")
            a("s_getpc_b64 s[66:67]")
            a.label("L_pc2", drain=False)
            a("s_sub_u32 s66, s66, L_pc2-L_tail\ns_subb_u32 s67, s67, 0\nv_min_u32 v2, L_helper-L_tail, v2\nglobal_load_dword v31, v2, s[66:67]")
        a.label("L_gend")
    if fb and gfb == 1:
        NIT = (15 - NP) + 1 + 15
        a("s_or_b32 s65, s35, s69\ns_cmp_lg_u32 s65, 0\ns_cbranch_scc1 L_gend")
        a(f"v_lshlrev_b32 v6, 2, v4\nv_lshl_add_u32 v6, v5, 7, v6\nv_mov_b32 v41, v{TG}\nv_mov_b32 v7, 0")
        a(f"s_lshl_b32 s66, s{sH}, {3 if gsc else 7}\ns_add_u32 s66, s66, {GMB}\ns_mov_b32 s67, {GMB}\ns_mov_b32 s{sCNT}, 200\ns_mov_b32 s70, -1")
        a.label("L_g")
        a(f"buffer_load_dword v40, v6, {S(SW)}, s34 offen sc1")
        if gsc:
            a(f"s_waitcnt lgkmcnt(0)\ns_load_dwordx16 s[4:19], s[26:27], {GMB} glc\ns_load_dwordx16 s[40:55], s[26:27], {GMB + 64} glc\ns_waitcnt vmcnt(0)")
        else:
            a("s_mov_b64 exec, 0xffff")
            a(f"buffer_load_dwordx2 v[42:43], v2, {S(SW)}, s67 offen sc1")
            a("s_mov_b64 exec, -1\ns_waitcnt vmcnt(1)")
        a(f"v_cmp_le_u32 vcc, {NIT - gexit}, v40\ns_or_b32 s65, vcc_lo, vcc_hi\ns_and_b32 s65, s65, 0x10001\ns_cbranch_scc1 L_gend")
        for sh in (8, 4, 2, 1): a(f"v_add_u32_dpp v40, v40, v40 row_ror:{sh} {FULL}")
        a("v_add_u32_dpp v40, v40, v40 row_bcast:15 row_mask:0xa bank_mask:0xf\nv_add_u32_dpp v40, v40, v40 row_bcast:31 row_mask:0xc bank_mask:0xf")
        a("v_readlane_b32 s71, v40, 63\nv_mov_b32 v40, s71")
        a("s_mov_b64 exec, 1")
        a(f"buffer_store_dwordx2 v[40:41], v7, {S(SW)}, s66 offen sc1")
        a("s_mov_b64 exec, -1\ns_waitcnt vmcnt(1)")
        a("s_cmp_eq_u32 s70, -1\ns_cbranch_scc1 L_gskip")
        if gavg: a("s_add_u32 s70, s70, s71\ns_lshr_b32 s70, s70, 1")
        if gsc:
            a("s_waitcnt lgkmcnt(0)\ns_mov_b32 s65, 0")
            for k in range(16):
                r = (4 + 2 * k) if k < 8 else (40 + 2 * (k - 8))
                a(f"s_cmp_eq_u32 s{r+1}, s{sTAG}\ns_cselect_b32 s{r}, s{r}, s70\ns_add_u32 s65, s65, s{r}")
            a(f"s_lshl_b32 s70, s70, 4\ns_sub_u32 s65, s65, s70\ns_ashr_i32 s65, s65, {4 + gsh}\ns_add_u32 s65, s65, {goff}\nv_mov_b32 v42, s65")
        else:
          a(f"v_mov_b32 v44, s70\nv_cmp_eq_u32 vcc, v43, v41\nv_cndmask_b32 v42, v44, v42, vcc\nv_sub_u32 v42, v42, v44")
          for sh in (8, 4, 2, 1): a(f"v_add_u32_dpp v42, v42, v42 row_ror:{sh} {FULL}")
          a(f"v_ashrrev_i32 v42, {4 + gsh}, v42")
          if goff: a(f"v_add_u32 v42, {goff}, v42")
        a("s_mov_b64 exec, 15")
        a(f"buffer_store_dword v42, v2, {S(SW)}, s34 offen offset:64")
        a("s_mov_b64 exec, -1")
        a.label("L_gskip")
        a("s_mov_b32 s70, s71")
        if gsleep: a(f"s_sleep {gsleep}")
        a(f"s_sub_u32 s{sCNT}, s{sCNT}, 1\ns_cbranch_scc0 L_g")
        a.label("L_gend")
        if gsc: a("s_waitcnt lgkmcnt(0)")
    stamp(5)
    pad("H")
    dump_stamps(7)
    a.label("L_end")
    a("s_endpgm")
    a.raw('.section .rodata,"a"'); a.raw(".p2align 6"); a.raw(f".amdhsa_kernel {NAME}")
    a.raw("  .amdhsa_next_free_vgpr 256"); a.raw("  .amdhsa_next_free_sgpr 102"); a.raw("  .amdhsa_accum_offset 256")
    a.raw("  .amdhsa_group_segment_fixed_size 0"); a.raw("  .amdhsa_kernarg_size 96"); a.raw("  .amdhsa_user_sgpr_count 2")
    a.raw("  .amdhsa_user_sgpr_kernarg_segment_ptr 1"); a.raw("  .amdhsa_system_sgpr_workgroup_id_x 1"); a.raw(".end_amdhsa_kernel")
    return a.text()

if __name__ == "__main__":
    out = sys.argv[1]
    kw = eval("dict(" + (sys.argv[2] if len(sys.argv) > 2 else "") + ")")
    open(out, "w").write(gen(**kw))
```

```python
import sys, struct, math
sys.path.insert(0, "gen")
from asmlib import Asm

NAME = "parallel_sum__mha_block_cached__geglu_ffn__decode_kernel"
HEADER = open("parallel_sum__mha_block_cached__geglu_ffn__decode.s.ref").read().split("; Override launch")[0]

def f2u(x): return struct.unpack("<I", struct.pack("<f", x))[0]

PMB = 0x8000
GMB = 0xC000
QMB = 0x10000
FMB = QMB + 64 * 4096
MB1 = 0xA0000
MB2 = 0x120000
TSB = 0x400000
WS_USED = TSB + 0x10000
assert FMB + 28 * 8192 <= MB1
PGL = 4112
XN, QL, TAGL, ML, HIMG, AIMG, OP, SC = 0, 3584, 4096, 4128, 4224, 4864, 6144, 10240
HROW, AROW = 144, 272
WL0 = SC + 16384
WL1 = WL0 + 14336
WL2 = WL1 + 16384
LDS_BYTES = WL2 + 8192

DOC = '''; ---------------------------------------------------------------------------------------------
; ---------------------------------------------------------------------------------------------'''
FULL = "row_mask:0xf bank_mask:0xf"
IDP = "quad_perm:[0,1,2,3]"

def gen(W=5, NP=5, nt="nt", wnt="nt", stamps=False, warm=True, sleep1=0, sleep2=0, sleepq=30, spin=1 << 18,
        padto=0, padwg=None, padstamp=None, HW=4, noffn=0, noq=0, nowo=0, touch=1, sleepf=60, fdma=1, fst=1, fpoll=1, qst=1, pat=5, Wend=None, nend=0, W0=None, osc='', scr=1, remap=4, D2=2, stag2=4, early1=0, role=3, fast=1, hoist=1, clean=0, fastq=1, fastf=1, nq=5, tlb=0, fb=1, Wup=6, thup=0, gfb=3, gsleep=8, goff=0, gsh=2, gavg=0, gsc=0, gexit=2, L0=6, dL=2, nR=9, nost2=0, nored=0, wos=(3,4,5,6,7,7), r0=8, gain=6, gpoll=1, st0=0, warm2=16, late=1, codekb=13, amp=0, lite=0, Wdn=4, thdn=-15, endp=None, pw=None, thw=None, hb=0, pre1=0, rew=0, stL=0, k1st=0, th2=8, g0=4, pf=0, pfs=7, pfnt='', pfth=None, fakeg=0, kb5=(15,13), wb5=(11,14), jb5=(12,16), soft=None, softu=3, burst=0, b2b=0, stD=0, sl1=0):
    assert not (fast or fastf) or role == 3
    assert early1 != 2 or hoist
    assert hb != 1 or set(wos) == {-2}
    assert hb != 2 or wos[:2] == (-2, -2)
    assert not (b2b and (hb or early1 or clean))
    in_helper = [False]
    a = Asm()
    a.raw(HEADER.rstrip("\n"))
    a.raw(f"; @launch grid=(256,1,1) block=(320,1,1) lds={LDS_BYTES}")
    a.raw(DOC)
    a.raw('.amdgcn_target "amdgcn-amd-amdhsa--gfx950"')
    a.raw(".text"); a.raw(f".globl {NAME}"); a.raw(".p2align 8"); a.raw(f".type {NAME},@function")
    a.raw(f"{NAME}:")
    SK, SV, SW, SA, SB, SC_, SD = 28, 32, 36, 40, 44, 48, 52
    sB, sH, sJ, sIDX, sBH, sTAG, sCNT, sKO, sVO, sWv, sKG, sCG = 56, 57, 58, 59, 60, 61, 62, 63, 64, 72, 73, 79
    def srd(r, ptr, size):
        a(f"s_mov_b32 s{r}, s{ptr}\ns_mov_b32 s{r+1}, s{ptr+1}\ns_mov_b32 s{r+2}, {size}\ns_mov_b32 s{r+3}, 0x20000")
    def S(r): return f"s[{r}:{r+3}]"
    def V4(r): return f"v[{r}:{r+3}]"
    def V2(r): return f"v[{r}:{r+1}]"
    def stamp(k):
        if stamps or padstamp is not None:
            a(f"s_memrealtime s[{80+2*k}:{81+2*k}]")
    def dump_stamps(n):
        if not stamps: return
        a("s_waitcnt lgkmcnt(0)")
        a("s_mov_b64 exec, 1")
        a(f"s_mul_i32 s65, s2, 5\ns_add_u32 s65, s65, s3\ns_mul_i32 s65, s65, 48\ns_add_u32 s65, s65, {TSB}")
        a("v_mov_b32 v1, 0")
        for k in range(n):
            a(f"v_mov_b32 v2, s{80+2*k}")
            if lite and k not in (0, 4, 7): continue
            a(f"buffer_store_dword v2, v1, {S(SW)}, s65 offen offset:{4*k}")
        if not lite:
            a(f"v_mov_b32 v2, s{sCNT}\nbuffer_store_dword v2, v1, {S(SW)}, s65 offen offset:44")
            a("s_waitcnt vmcnt(0)")
    def pad(role):
        if not padto: return
        r, k = padstamp if padstamp is not None else ("S", 0)
        if r != role: return
        if padwg is not None: a(f"s_cmp_lg_u32 s2, {padwg}\ns_cbranch_scc1 L_end")
        if amp: a(f"s_waitcnt lgkmcnt(0)\ns_sub_u32 s65, s{80+2*k}, s80\ns_mul_i32 s65, s65, {amp - 1}\ns_add_u32 s{80+2*k}, s{80+2*k}, s65")
        a.label(f"L_pad{role}")
        a(f"s_sleep 1\ns_memrealtime s[98:99]\ns_waitcnt lgkmcnt(0)\ns_sub_u32 s98, s98, s{80+2*k}\ns_cmp_lt_i32 s98, {padto}\ns_cbranch_scc1 L_pad{role}")

    assert remap in (4, 5) and role == 3 and pat == 5 and (kb5, wb5, jb5) == ((15, 13), (11, 14), (12, 16))
    def decode(a):
        a(f"s_and_b32 s{sBH}, s2, 63\ns_lshr_b32 s{sJ}, s2, 6\ns_lshr_b32 s{sB}, s{sBH}, 4\ns_and_b32 s{sH}, s2, 15")
        a(f"s_lshl_b32 s2, s{sBH}, 2\ns_or_b32 s2, s2, s{sJ}\ns_and_b32 s{sIDX}, s2, 63")
        a(f"s_lshl_b32 s{sKG}, s{sH}, 1\ns_and_b32 s65, s{sJ}, 1\ns_or_b32 s{sKG}, s{sKG}, s65\ns_lshl_b32 s{sCG}, s{sB}, 1\ns_lshr_b32 s65, s{sJ}, 1\ns_or_b32 s{sCG}, s{sCG}, s65")
        a("v_and_b32 v0, 63, v0\nv_and_b32 v4, 15, v0\nv_lshrrev_b32 v5, 4, v0")
    a("s_load_dwordx2 s[28:29], s[0:1], 8")
    stamp(0)
    a("v_lshrrev_b32 v1, 6, v0\ns_cmpk_ge_u32 s2, 256\ns_cbranch_scc1 L_end", drain=False)
    if remap == 5: a("s_lshr_b32 s65, s2, 6\ns_xor_b32 s2, s2, s65")
    a("v_readfirstlane_b32 s3, v1\nv_and_b32 v85, 51, v0\nv_and_b32 v1, 12, v0")
    a("s_cmp_eq_u32 s3, 0\ns_cbranch_scc1 L_helper", drain=False)

    vKO, vVO, vSC, vMAX, vL, vC, vMC, vS = 1, 2, 3, 6, 7, 28, 29, 30
    vJ, vG = 4, 5
    MASK, OACC, BB, QF, DA, TMP, R = 8, 12, 20, 32, 64, 84, 96
    def ring(tile, u): return R + 32 * tile + 4 * u
    kb = kb5
    assert TMP + 1 == 85 and vKO == 1
    a(f"v_mul_u32_u24 v85, 20, v85\nv_mul_u32_u24 v1, 0x2400, v1\nv_and_b32 v85, 0xf0, v85\nv_and_b32 v1, 0xa000, v1\nv_or_b32 v1, v1, v85")
    a(f"s_lshr_b32 s65, s2, 6\ns_mulk_i32 s65, 9\ns_and_b32 s65, s65, 17\ns_lshl_b32 s65, s65, 12\ns_mul_i32 s66, s3, 5\ns_and_b32 s66, s66, 9\ns_lshl_b32 s66, s66, 11")
    a(f"s_and_b32 s{sKO}, s2, 63\ns_lshl_b32 s{sKO}, s{sKO}, 21\ns_or_b32 s65, s65, s66\ns_or_b32 s{sKO}, s{sKO}, s65")
    a(f"s_lshl_b32 s30, 1, 27\ns_mov_b32 s31, 0x20000")
    a("s_waitcnt lgkmcnt(0)")
    if st0: stamp(5)
    vm = []
    def issue(kind, reg, u, tagid):
        sr, vo, so = (SK, vKO, sKO) if kind == "K" else (SV, vVO, sVO)
        o = {0: 256 * (u & 1), 1: 256 * (u & 3), 2: 256 * u, 3: 256 * u, 4: 256 * (u & 1) + 512 * (u & 2), 5: 256 * u}[pat]
        off = f" offset:{o}" if o else ""
        a(f"buffer_load_dwordx4 {V4(reg)}, v{vo}, {S(sr)}, s{so} offen{off} {nt}")
        if pat == 0 and u & 1: a(f"s_add_u32 s{so}, s{so}, 8192")
        if pat == 1 and (u & 3) == 3: a(f"s_add_u32 s{so}, s{so}, 16384")
        if pat == 4 and (u & 3) == 3: a(f"s_xor_b32 s{so}, s{so}, 0x4000")
        if pat == 5 and u == 7: a(f"s_add_u32 s{so}, s{so}, 0x20000")
        if pat in (3, 4) and u == 7:
            a(f"s_xor_b32 s{so}, s{so}, 0x1000\ns_bitcmp1_b32 s{so}, 12\ns_cselect_b32 s65, 0, s{sM}\ns_add_u32 s65, s65, s{so}\ns_and_b32 s65, s65, 0x70000\ns_andn2_b32 s{so}, s{so}, 0x70000\ns_or_b32 s{so}, s{so}, s65")
        if pat == 2 and u == 7:
            a(f"s_bitcmp1_b32 s{so}, 11\ns_cselect_b32 s65, {65536 - 4096}, 0\ns_add_u32 s{so}, s{so}, s65\ns_add_u32 s{so}, s{so}, 2048")
        vm.append(tagid)
    def wait_for(tagid):
        if tagid not in vm: return
        n = len(vm) - 1 - vm.index(tagid)
        assert n < 64
        a(f"s_waitcnt vmcnt({n})")
    nload = [0]
    curW = [W]
    adapt = [False]; nlab = [0]
    ctl = dict(Wup=Wup, thup=thup, Wdn=Wdn, thdn=thdn)
    def throttle_issue(kind, reg, u):
        n = nload[0]
        if adapt[0]:
            nlab[0] += 1
            a(f"s_cbranch_scc1 L_w{nlab[0]}", drain=False)
            if ctl["Wdn"]:
                a(f"s_cbranch_vccz L_m{nlab[0]}", drain=False); a.hist[-1].states = 0
                wait_for(("s", n - ctl["Wdn"])); a.hist[-1].states = 0
                a.label(f"L_m{nlab[0]}", drain=False)
            wait_for(("s", n - curW[0]))
            a.hist[-1].states = 0
            a.label(f"L_w{nlab[0]}", drain=False)
            if th2 is not None:
                a(f"s_cbranch_vccnz L_x{nlab[0]}", drain=False)
                wait_for(("s", n - ctl["Wup"])); a.hist[-1].states = 0
                a.label(f"L_x{nlab[0]}", drain=False)
                wait_for(("s", n - ctl["Wup"] - 1))
            else: wait_for(("s", n - ctl["Wup"]))
        else: wait_for(("s", n - curW[0]))
        issue(kind, reg, u, ("s", n)); nload[0] += 1
    W0 = W0 or W
    curW[0] = W0
    for n in range(W0):
        throttle_issue("K", ring(n // 8, n % 8), n % 8)
    curW[0] = W
    a(f"s_load_dwordx16 s[4:19], s[0:1], 0\ns_load_dwordx8 s[20:27], s[0:1], 64\ns_mov_b32 s{sVO}, s{sKO}\ns_and_b32 s{sWv}, s3, 3")
    decode(a)
    if warm2:
        a("; a few waves read the code range so that later instruction fetches hit L2")
        a(f"s_and_b32 s65, s2, 0xe2\ns_lshl_b32 s65, s65, 2\ns_or_b32 s65, s65, s{sWv}\ns_cbranch_scc1 L_nowarm2", drain=False)
        a("s_getpc_b64 s[66:67]")
        a.label("L_pc", drain=False)
        a("v_lshlrev_b32 v2, 7, v0\nglobal_load_dword v31, v2, s[66:67]\nv_add_u32 v2, 0x2000, v2\nv_min_u32 v2, L_end-L_pc, v2")
        a("global_load_dword v31, v2, s[66:67]")
        a.label("L_nowarm2", drain=False)
    if warm and not warm2:
        a(f"s_cmp_lg_u32 s3, 1\ns_cbranch_scc1 L_nowarm")
        a(f"s_getpc_b64 s[66:67]\nv_lshlrev_b32 v{TMP+2}, 7, v0")
        a(f"global_load_dword v{TMP+3}, v{TMP+2}, s[66:67]")
        a.label("L_nowarm")
    def setup(a, srd):
        a(f"v_lshlrev_b32 v{vVO}, 4, v{vJ}\nv_bfe_u32 v{TMP}, v0, 4, 1\nv_lshl_add_u32 v{vVO}, v{TMP}, {kb[0]}, v{vVO}\nv_bfe_u32 v{TMP}, v0, 5, 1\nv_lshl_add_u32 v{vVO}, v{TMP}, {kb[1]}, v{vVO}")
        srd(SV, 8, 1 << 27); srd(SW, 26, WS_USED); srd(SC_, 22, 3584); srd(SD, 4, 3584)
        srd(SA, 12, 4096 * 896); srd(SB, 20, 1792 * 896)
        for k in range(32): a(f"v_mov_b32 v{QF+k}, 0")
        for k in range(8): a(f"v_mov_b32 v{OACC+k}, 0")
        a(f"v_mov_b32 v{vMAX}, 0xff800000\nv_mov_b32 v{vL}, 0\nv_mov_b32 v{vC}, {hex(f2u(math.log2(math.e) / 16))}")
        a(f"v_and_b32 v{TMP+4}, 1, v{vJ}\nv_lshlrev_b32 v{TMP+4}, 4, v{TMP+4}\nv_mov_b32 v{TMP+5}, 0xffff\nv_lshlrev_b32 v{TMP+4}, v{TMP+4}, v{TMP+5}")
        a(f"v_bfe_u32 v{TMP+5}, v{vJ}, 1, 2")
        for w in range(4):
            a(f"v_cmp_eq_u32 vcc, {w}, v{TMP+5}\nv_cndmask_b32 v{MASK+w}, 0, v{TMP+4}, vcc")
        a(f"s_lshl_b32 s65, s{sWv}, 12\ns_add_u32 s65, s65, {SC}\nv_lshl_add_u32 v{vSC}, v0, 2, s65")
    chunks = []
    def rec(t): chunks.append(t)
    def recsrd(r, ptr, size): rec(f"s_mov_b32 s{r}, s{ptr}\ns_mov_b32 s{r+1}, s{ptr+1}\ns_mov_b32 s{r+2}, {size}\ns_mov_b32 s{r+3}, 0x20000")
    setup(rec, recsrd)
    if not late:
        for t in chunks: a(t)
        chunks = []
    for n in range(W0, 8 * NP):
        if st0 and n == W0: stamp(3)
        throttle_issue("K", ring(n // 8, n % 8), n % 8)
        if st0 and n == W0: stamp(6)
        if st0 and n == W0 + 4: stamp(8)
        if st0 and n == W0 + 9: stamp(4)
        if n == 16: a("s_waitcnt lgkmcnt(0)")
        if n >= 16:
            cnt = 0
            while chunks and cnt < 6:
                t = chunks.pop(0); a(t); cnt += t.count("\n") + 1
    assert not chunks
    if st0:
        _st = stamp
        def stamp(k):
            if k in (1, 2, 7) or in_helper[0]: _st(k)
    stamp(1)
    a("s_barrier")
    stamp(2)
    for t in range(4):
        m = 0x000F000F << (4 * t)
        a(f"s_mov_b32 exec_lo, {hex(m)}\ns_mov_b32 exec_hi, {hex(m)}")
        for half in range(2):
            a(f"ds_read_b128 {V4(QF + 4 * (2 * t + half))}, v{TMP+1} offset:{QL + 256 * half}")
    a("s_mov_b64 exec, -1")
    a(f"v_mov_b32 v{TMP}, 0\nds_read_b64 {V2(TMP+2)}, v{TMP} offset:{TAGL}")
    a("s_waitcnt lgkmcnt(0)")
    a(f"v_readfirstlane_b32 s{sTAG}, v{TMP+2}\nv_readfirstlane_b32 s101, v{TMP+3}")

    def consK(reg, u, d):
        c = "0" if u == 0 else V4(d)
        a(f"v_mfma_f32_16x16x32_bf16 {V4(d)}, {V4(reg)}, {V4(QF + 4 * u)}, {c}")
    def extract(ds, off0):
        for k, d in enumerate(ds): a(f"v_mov_b32_dpp v{TMP+k}, v{d} quad_perm:[0,0,0,0] {FULL}")
        for c in range(1, 4):
            for k, d in enumerate(ds): a(f"v_add_f32_dpp v{TMP+k}, v{d+c}, v{TMP+k} quad_perm:[{c},{c},{c},{c}] {FULL}")
        for k, d in enumerate(ds): a(f"v_cvt_pk_bf16_f32 v{TMP+k}, v{TMP+k}, v{TMP+k}")
        for k, d in enumerate(ds): a(f"v_and_b32 v{TMP+k}, 0xffff0000, v{TMP+k}")
        for k, d in enumerate(ds):
            a(f"ds_write_b32 v{vSC}, v{TMP+k} offset:{off0 + 256 * k}")
            a(f"v_max_f32 v{vMAX}, v{vMAX}, v{TMP+k}")
        a(f"v_add_u32 v{vSC}, {256 * len(ds)}, v{vSC}")
    for u in range(8):
        consK(ring(0, u), u, DA)
        throttle_issue("K", ring(0, u), u)
        for T in range(1, NP): consK(ring(T, u), u, DA + 4 * T)
    extract([DA + 4 * T for T in range(NP)], 0)

    T0 = R + 32
    vX, vXO, vOPW, vMLW, vOPR, vZ, vL16, vST2, vTR, vTR2, vTRD, vTRD2, vHA, vAR, vAW, vWO, vWD = range(T0, T0 + 17)
    vML = T0 + 18
    G = T0 + 20
    GR = T0 + 36
    P1 = T0 + 40
    AH = T0 + 56
    AO = T0 + 64
    BW = T0 + 80
    BD = T0 + 96
    Y = T0 + 104
    E = T0 + 108
    def tail_addr():
        a(f"s_lshl_b32 s65, s{sWv}, 10\ns_add_u32 s65, s65, {OP}\nv_lshl_add_u32 v{vOPW}, v0, 4, s65")
        a(f"s_lshl_b32 s65, s{sWv}, 3\ns_add_u32 s65, s65, {ML}\nv_mov_b32 v{vMLW}, s65")
        a(f"s_lshl_b32 s65, s{sWv}, 8\ns_add_u32 s65, s65, {OP}\nv_lshl_add_u32 v{vOPR}, v0, 3, s65")
        a(f"v_mov_b32 v{vZ}, 0\nv_lshlrev_b32 v{vL16}, 4, v0\nv_mov_b32 v{GR+3}, s{sTAG}")
        a(f"s_lshl_b32 s70, s2, 11\ns_lshl_b32 s65, s{sWv}, 9\ns_add_u32 s70, s70, s65\ns_add_u32 s70, s70, {MB1}")
        a(f"s_lshl_b32 s71, s{sWv}, 17\ns_lshr_b32 s65, s{sKG}, 1\ns_lshl_b32 s65, s65, 13\ns_add_u32 s71, s71, s65")
        a(f"s_and_b32 s65, s{sKG}, 1\ns_lshl_b32 s65, s65, 10\ns_add_u32 s71, s71, s65\ns_add_u32 s71, s71, {MB1}\ns_add_u32 s74, s71, 4096")
        a(f"v_lshrrev_b32 v{E}, 3, v0\nv_and_b32 v{E+1}, 7, v0\nv_and_b32 v{E+2}, 2, v{E}\nv_xor_b32 v{E+1}, v{E+1}, v{E+2}\nv_lshlrev_b32 v{E+1}, 4, v{E+1}")
        a(f"v_and_b32 v{E+2}, 3, v{E}\nv_lshlrev_b32 v{E+2}, 3, v{E+2}\nv_lshrrev_b32 v{E+3}, 2, v{E}\nv_add_u32 v{E+2}, v{E+2}, v{E+3}")
        a(f"v_mul_u32_u24 v{vWO}, 896, v{E+2}\nv_mul_u32_u24 v{vWD}, 896, v{E}")
        a(f"s_and_b32 s65, s{sWv}, 1\ns_lshl_b32 s65, s65, 6\nv_xor_b32 v{E+1}, s65, v{E+1}")
        a(f"v_add_u32 v{vWO}, v{vWO}, v{E+1}\nv_add_u32 v{vWD}, v{vWD}, v{E+1}")
        a(f"s_lshr_b32 s66, s{sKG}, 1\ns_lshl_b32 s66, s66, 8\ns_and_b32 s65, s{sKG}, 1\ns_lshl_b32 s65, s65, 6\ns_add_u32 s66, s66, s65")
        a(f"s_lshl_b32 s65, s{sWv}, 1\ns_add_u32 s66, s66, s65\ns_mul_i32 s66, s66, 896\ns_lshl_b32 s65, s{sCG}, 7\ns_add_u32 s66, s66, s65")
        a(f"s_lshl_b32 s67, s{sKG}, 6\ns_lshl_b32 s68, s{sWv}, 3\ns_add_u32 s67, s67, s68\ns_mul_i32 s67, s67, 896\ns_add_u32 s67, s67, s65")
        a(f"s_lshl_b32 s75, s{sWv}, 10")
        if fakeg:
            a(f"v_mul_u32_u24 v{vWO}, 1792, v{vG}\nv_lshl_add_u32 v{vWO}, v{vJ}, 4, v{vWO}\nv_mov_b32 v{vWD}, v{vWO}")
            a(f"s_lshl_b32 s66, s{sKG}, 2\ns_add_u32 s66, s66, s{sWv}\ns_mul_i32 s67, s66, {8 * 1792}\ns_mul_i32 s66, s66, {16 * 1792}\ns_lshl_b32 s65, s{sCG}, 8\ns_add_u32 s66, s66, s65\ns_add_u32 s67, s67, s65")
        if pf:
            a(f"s_sub_u32 s19, s66, s65")
            a(f"s_add_u32 s76, s{sCG}, 1\ns_cmp_ge_u32 s76, 7\ns_cselect_b32 s76, 0, s76\ns_add_u32 s77, s{sCG}, 6\ns_cmp_ge_u32 s77, 7\ns_cselect_b32 s65, 7, 0\ns_sub_u32 s77, s77, s65")
            a(f"v_bfe_u32 v{E}, v0, 3, 1\nv_lshlrev_b32 v{E}, 7, v{E}\nv_bfe_u32 v{E+1}, v0, 4, 1\nv_lshl_add_u32 v{E}, v{E+1}, 5, v{E}")
            a(f"v_and_b32 v{E+1}, 3, v0\nv_lshl_add_u32 v{E}, v{E+1}, 3, v{E}\nv_bfe_u32 v{E+1}, v0, 2, 1\nv_add_u32 v{E}, v{E}, v{E+1}\nv_mul_u32_u24 v{vTR2}, 896, v{E}")
            a(f"v_mov_b32 v{E}, s76\nv_mov_b32 v{E+1}, s77\nv_cmp_gt_u32 vcc, 32, v0\nv_cndmask_b32 v{E}, v{E+1}, v{E}, vcc\nv_lshl_add_u32 v{vTR2}, v{E}, 7, v{vTR2}")
        a(f"v_lshrrev_b32 v{E}, 2, v{vJ}\nv_bfe_u32 v{E+1}, v{vJ}, 1, 1\ns_lshl_b32 s65, s{sWv}, 1\nv_add_u32 v{E+1}, s65, v{E+1}")
        a(f"v_and_b32 v{E+2}, 2, v{E}\nv_xor_b32 v{E+1}, v{E+1}, v{E+2}")
        a(f"v_and_b32 v{E+3}, 1, v{vJ}\nv_lshlrev_b32 v{E+3}, 3, v{E+3}\nv_lshl_add_u32 v{E+3}, v{E}, 7, v{E+3}")
        a(f"v_and_b32 v{E+2}, 1, v{vG}\nv_lshlrev_b32 v{E+2}, 2, v{E+2}\nv_xor_b32 v{E+4}, v{E+1}, v{E+2}")
        a(f"v_lshl_add_u32 v{vTR}, v{E+4}, 4, v{E+3}\nv_lshl_add_u32 v{vTR}, v{vG}, 10, v{vTR}")
        a(f"v_mul_u32_u24 v{vHA}, {HROW}, v{E}\nv_lshl_add_u32 v{vHA}, v{vG}, 4, v{vHA}")
        a(f"v_mul_u32_u24 v{vAR}, {AROW}, v{E}\nv_lshl_add_u32 v{vAR}, v{vG}, 4, v{vAR}")
        a(f"s_mul_i32 s65, s{sWv}, {AROW}\ns_add_u32 s65, s65, {AIMG}\nv_lshl_add_u32 v{vAW}, v0, 2, s65")
        a(f"v_lshlrev_b32 v{vST2}, 3, v{vJ}\nv_lshl_add_u32 v{vST2}, v{vG}, 12, v{vST2}")
        a(f"s_lshl_b32 s68, s{sCG}, 2\ns_add_u32 s68, s68, s{sWv}\ns_lshl_b32 s68, s68, 14\ns_lshl_b32 s65, s{sKG}, 7\ns_add_u32 s68, s68, s65\ns_add_u32 s68, s68, {MB2}")
        a(f"s_and_b32 s78, s{sKG}, 0xfc\ns_add_u32 s78, s78, s{sWv}\ns_lshl_b32 s69, s78, 4\ns_lshl_b32 s78, s78, 2\ns_and_b32 s65, s{sKG}, 3\ns_add_u32 s78, s78, s65")
        a(f"s_lshl_b32 s78, s78, 12\ns_add_u32 s78, s78, {MB2}\ns_mul_i32 s65, s65, 448\ns_add_u32 s69, s69, s65\ns_lshl_b32 s69, s69, 1")
        a(f"v_and_b32 v{E}, 7, v0\nv_and_b32 v{E+1}, 1, v{vG}\nv_lshlrev_b32 v{vXO}, 2, v{E}\nv_lshl_add_u32 v{vXO}, v{E+1}, 1, v{vXO}")
    tail_addr()
    if tlb:
        a("s_cmp_lg_u32 s3, 1\ns_cbranch_scc1 L_notlb")
        a("s_mov_b64 exec, 1")
        if tlb & 1: a(f"buffer_load_dword v{E+7}, v{vZ}, {S(SV)}, s{sVO} offen {nt}")
        if tlb & 2:
            a(f"buffer_load_dword v{E+7}, v{vZ}, {S(SA)}, s66 offen {nt}")
            a(f"buffer_load_dword v{E+7}, v{vZ}, {S(SB)}, s67 offen {nt}")
        a("s_mov_b64 exec, -1")
        a.label("L_notlb")

    cw = [wos]
    def wo_dma(step):
        if nowo: return
        for c in range(6):
            if cw[0][c] != step: continue
            if c >= 2:
                a(f"s_add_u32 s65, s66, {(128 * (c & 1) + 32 * ((c - 2) >> 1)) * 896 if not fakeg else (c - 2) * 4 * 1792}\ns_add_u32 m0, s75, {WL1 + 4096 * (c - 2)}")
                a(f"buffer_load_dwordx4 v{vWO}, {S(SA)}, s65 offen {wnt} lds"); vm.append(("wo", c))
            else:
                a(f"s_add_u32 s65, s67, {32 * 896 * c if not fakeg else 4 * 1792 * c}\ns_add_u32 m0, s75, {WL2 + 4096 * c}")
                a(f"buffer_load_dwordx4 v{vWD}, {S(SB)}, s65 offen {wnt} lds"); vm.append(("wd", c))
        if pf and step == pfs:
            if pfth is not None: a(f"s_cmp_gt_i32 s17, {pfth}\ns_cselect_b32 s19, 0x40000000, s19")
            if pf == 1: a("s_mov_b32 exec_hi, 0")
            a(f"buffer_load_dword v{vTRD}, v{vTR2}, {S(SA)}, s19 offen {pfnt}"); vm.append("pf")
            if pf == 1: a("s_mov_b32 exec_hi, -1")
    vPG, vPR, vPA = E + 8, E + 9, E + 10
    sPS, sPL, sPT = 12, 13, 14
    if fb:
        a(f"s_add_u32 s65, s{sWv}, s{sJ}\ns_and_b32 s65, s65, 3\ns_lshl_b32 s{sPL}, s{sH}, 2\ns_add_u32 s{sPL}, s{sPL}, s65\ns_lshl_b32 s{sPL}, s{sPL}, 7\ns_add_u32 s{sPL}, s{sPL}, {PMB}")
        a(f"s_cmp_lg_u32 s101, 0\ns_cselect_b32 s{sPL}, 0x40000000, s{sPL}\ns_cselect_b32 s{sPT}, 8, 0\ns_cselect_b32 s16, 0, 16")
        a(f"s_lshl_b32 s65, s{sB}, 2\ns_add_u32 s65, s65, s{sJ}\ns_lshl_b32 s65, s65, 2\ns_add_u32 s{sPS}, s{sPL}, s65")
        a(f"s_lshl_b32 s65, s{sWv}, 2\ns_add_u32 s65, s65, {PGL}\nv_mov_b32 v{vPA+1}, s65")
        a(f"v_mov_b32 v{vPG}, 0\nv_bfe_i32 v{vPR}, v0, 0, 1\nv_lshlrev_b32 v{vPA}, 2, v0")
    def flags(tu, td):
        if th2 is not None: a(f"s_sub_u32 s65, s17, {td}\ns_cmp_gt_u32 s65, {th2 - td}\ns_cselect_b64 vcc, -1, 0")
        elif ctl["Wdn"]: a(f"s_cmp_lt_i32 s17, {td}\ns_cselect_b64 vcc, -1, 0")
        a(f"s_cmp_gt_i32 s17, {tu}")
    def after(u):
        if fb and soft and u == softu: flags(ctl['thup'], ctl['thdn'])
    def progress():
        if not fb: return
        if gfb: a(f"v_readlane_b32 s15, v{vPR}, 16")
        for sh in (8, 4, 2, 1): a(f"v_add_u32_dpp v{vPR}, v{vPR}, v{vPR} row_ror:{sh} {FULL}")
        a(f"v_add_u32 v{vPG}, 1, v{vPG}\nv_readfirstlane_b32 s65, v{vPR}")
        if gfb: a(f"s_add_u32 s65, s65, s15")
        a("s_mov_b64 exec, 1")
        a(f"buffer_store_dword v{vPG}, v{vZ}, {S(SW)}, s{sPS} offen"); vm.append(("ps", nload[0]))
        if gfb >= 2: a(f"ds_write_b32 v{vPA+1}, v{vPG}")
        a(f"s_mov_b64 exec, {'0x1ffff' if gfb else '0xffff'}")
        a(f"buffer_load_dword v{vPR}, v{vPA}, {S(SW)}, s{sPL} offen sc1"); vm.append(("pl", nload[0]))
        a("s_mov_b64 exec, -1")
        a(f"s_sub_u32 s17, s65, s{sPT}\ns_add_u32 s{sPT}, s{sPT}, s16")
        flags(*(soft or (ctl['thup'], ctl['thdn'])))
        adapt[0] = True
    def iterK(nextkind):
        progress()
        for u in range(8):
            consK(ring(0, u), u, DA)
            throttle_issue(nextkind, ring(0, u), u)
            after(u)
            if nextkind == "V" and u == 0 and -2 in wos:
                a("s_cselect_b32 s18, 1, 0")
                a(f"s_cmp_eq_u32 s{sCG}, 7\ns_cselect_b32 s66, 0x40000000, s66\ns_cselect_b32 s67, 0x40000000, s67")
                wo_dma(-2)
                a("s_cmp_lg_u32 s18, 0")
        extract([DA], 0)
    a("; K loop")
    a(f"s_mov_b32 s{sCNT}, {15 - NP}")
    a.label("L_kk")
    iterK("K")
    a(f"s_sub_u32 s{sCNT}, s{sCNT}, 1\ns_cmp_lg_u32 s{sCNT}, 0\ns_cbranch_scc1 L_kk")
    iterK("V")
    compute_pre = lambda: (a(f"v_not_b32 v{P1+3}, v{GR+3}\nv_mov_b32 v{P1}, 0\nv_mov_b32 v{P1+1}, 0\nv_mov_b32 v{P1+2}, 0\ns_mov_b32 exec_hi, 0"),
                           a(f"buffer_store_dwordx4 {V4(P1)}, v{vL16}, {S(SW)}, s70 offen\ns_mov_b32 exec_hi, -1"))
    if pre1 == 1: compute_pre()
    stamp(3)
    a(f"v_subrev_u32 v{vSC}, 4096, v{vSC}")
    a(f"ds_read_b32 v{vS}, v{vSC}")
    a(f"v_max_f32_dpp v{vMAX}, v{vMAX}, v{vMAX} row_ror:4 {FULL}")
    a(f"v_max_f32_dpp v{vMAX}, v{vMAX}, v{vMAX} row_ror:8 {FULL}")
    a(f"v_max_f32_dpp v{vMAX}, v{vMAX}, v{vMAX} row_bcast:15 row_mask:0xa bank_mask:0xf")
    a(f"v_max_f32_dpp v{vMAX}, v{vMAX}, v{vMAX} row_bcast:31 row_mask:0xc bank_mask:0xf")
    a(f"v_readlane_b32 s65, v{vMAX}, 63")
    a(f"v_mov_b32 v{vMC}, s65")
    vP = TMP
    def ld1(k): a(f"buffer_load_dwordx4 {V4(P1+4*k)}, v{vL16}, {S(SW)}, s{71 if k < 2 else 74} offen{' offset:2048' if k & 1 else ''} sc1")
    def last_extra():
        a(f"s_cmp_eq_u32 s{sCG}, 7\ns_cselect_b32 s66, 0x40000000, s66\ns_cselect_b32 s67, 0x40000000, s67\ns_cselect_b32 s69, s69, 0x40000000")
        wo_dma(-1)
        a(f"buffer_load_ushort v{vX}, v{vXO}, {S(SD)}, s69 offen"); vm.append("x")
        if touch:
            a("; (value unused: address translation of d_out ahead of the final store)")
            a(f"buffer_load_ushort v{E+7}, v{vXO}, {S(SC_)}, s69 offen"); vm.append("o")
        a(f"v_add_f32_dpp v{vL}, v{vL}, v{vL} row_ror:4 {FULL}")
        a(f"v_add_f32_dpp v{vL}, v{vL}, v{vL} row_ror:8 {FULL}")
        a(f"v_add_f32_dpp v{vL}, v{vL}, v{vL} row_bcast:15 row_mask:0xa bank_mask:0xf")
        a(f"v_add_f32_dpp v{vL}, v{vL}, v{vL} row_bcast:31 row_mask:0xc bank_mask:0xf")
        a(f"v_mov_b32 v{vML}, v{vMC}\nv_mov_b32 v{vML+1}, v{vL}")
        a("s_mov_b32 exec_lo, 0\ns_mov_b32 exec_hi, 0x80000000")
        a(f"ds_write_b64 v{vMLW}, {V2(vML)}")
        a("s_mov_b64 exec, -1")
        if hoist:
            a("s_waitcnt lgkmcnt(0)\ns_barrier")
            if early1 == 2:
                for k in range(4): ld1(k); vm.append(("p1", k))
            a(f"ds_read_b128 {V4(G)}, v{vZ} offset:{ML}\nds_read_b128 {V4(G+4)}, v{vZ} offset:{ML+16}\ns_waitcnt lgkmcnt(0)")
            if hb:
                a(f"ds_read_b128 {V4(AH)}, v{vHA} offset:{HIMG}\nds_read_b128 {V4(AH+4)}, v{vHA} offset:{HIMG+64}")
                a(f"ds_read_b64_tr_b16 {V2(BD)}, v{vTR} offset:{WL2}\nds_read_b64_tr_b16 {V2(BD+2)}, v{vTR} offset:{WL2+512}")
                a(f"ds_read_b64_tr_b16 {V2(BD+4)}, v{vTR} offset:{WL2+4096}\nds_read_b64_tr_b16 {V2(BD+6)}, v{vTR} offset:{WL2+4096+512}")
                if hb == 1:
                    for k in range(4): a(f"ds_read_b64_tr_b16 {V2(BW+4*k)}, v{vTR} offset:{WL1+4096*k}\nds_read_b64_tr_b16 {V2(BW+4*k+2)}, v{vTR} offset:{WL1+4096*k+512}")
            weights()
            if hb:
                a("s_waitcnt lgkmcnt(0)")
                a(f"v_mfma_f32_16x16x32_bf16 {V4(Y)}, {V4(AH)}, {V4(BD)}, 0")
                a(f"v_mfma_f32_16x16x32_bf16 {V4(Y)}, {V4(AH+4)}, {V4(BD+4)}, {V4(Y)}")
    def weights():
        ms, ls = [G, G+2, G+4, G+6], [G+1, G+3, G+5, G+7]
        a(f"v_max3_f32 v{E+4}, v{ms[0]}, v{ms[1]}, v{ms[2]}\nv_max_f32 v{E+4}, v{E+4}, v{ms[3]}")
        for k in range(4): a(f"v_sub_f32 v{ms[k]}, v{ms[k]}, v{E+4}")
        for k in range(4): a(f"v_mul_f32 v{ms[k]}, v{ms[k]}, v{vC}")
        for k in range(4): a(f"v_exp_f32 v{ms[k]}, v{ms[k]}")
        a(f"v_mul_f32 v{E+5}, v{ms[0]}, v{ls[0]}")
        for k in range(1, 4): a(f"v_fmac_f32 v{E+5}, v{ms[k]}, v{ls[k]}")
        a(f"v_rcp_f32 v{E+6}, v{E+5}\nv_log_f32 v{E+5}, v{E+5}")
        for k in range(4): a(f"v_mul_f32 v{ms[k]}, v{ms[k]}, v{E+6}")
        a(f"v_fma_f32 v{GR+2}, v{E+4}, v{vC}, v{E+5}")
    srcV = [None]
    def iterV(last, bu=0):
        a("s_waitcnt lgkmcnt(0)")
        a(f"v_sub_f32 v{vP}, v{vS}, v{vMC}\nv_mul_f32 v{vP}, v{vP}, v{vC}")
        a(f"v_exp_f32 v{vP}, v{vP}")
        if not last:
            a(f"v_add_u32 v{vSC}, 256, v{vSC}\nds_read_b32 v{vS}, v{vSC}")
        a(f"v_add_f32 v{vL}, v{vL}, v{vP}")
        a(f"v_cvt_pk_bf16_f32 v{vP}, v{vP}, v{vP}")
        if last: last_extra()
        elif not bu: progress()
        base = nload[0] - 8
        if bu:
            adapt[0] = False; curW[0] = bu
            for u in range(8): throttle_issue("V", QF + 4 * u, u)
        for u in range(8):
            t, half = u >> 1, u & 1
            b = BB + 4 * (t & 1)
            if half == 0:
                for w in range(4): a(f"v_and_b32_dpp v{b+w}, v{vP}, v{MASK+w} row_newbcast:{4*t} {FULL}")
            if last or bu: wait_for(("s", base + u))
            a(f"v_mfma_f32_16x16x32_bf16 {V4(OACC + 4 * half)}, {V4(QF + 4 * u if (last and burst) else ring(0, u))}, {V4(b)}, {V4(OACC + 4 * half)}")
            if bu: pass
            elif not last: throttle_issue("V", ring(0, u), u); after(u)
            elif u < 7: wo_dma(u)
    a("; V loop")
    a(f"s_mov_b32 s{sCNT}, {15 - nend - (1 if burst else 0)}")
    a.label("L_vv")
    iterV(False)
    a(f"s_sub_u32 s{sCNT}, s{sCNT}, 1\ns_cmp_lg_u32 s{sCNT}, 0\ns_cbranch_scc1 L_vv")
    if nend:
        if pre1 == 2: compute_pre()
        curW[0] = Wend or W
        ctl.update(endp or {})
        a(f"s_mov_b32 s{sCNT}, {nend}")
        a.label("L_vv2")
        iterV(False)
        a(f"s_sub_u32 s{sCNT}, s{sCNT}, 1\ns_cmp_lg_u32 s{sCNT}, 0\ns_cbranch_scc1 L_vv2")
    if burst: iterV(False, burst)
    a.label("L_tail", drain=False)
    if stL: stamp(3)
    def final_iter():
        iterV(True)
        stamp(4)
        for r in range(4): a(f"v_mov_b32_dpp v{OACC+r}, v{OACC+4+r} {IDP} row_mask:0xf bank_mask:0xc")
        a(f"ds_write_b128 v{vOPW}, {V4(OACC)}")
        wo_dma(7)
    if thw is not None:
        a(f"v_readlane_b32 s15, v{vPR}, 16")
        for sh in (8, 4, 2, 1): a(f"v_add_u32_dpp v{vPR}, v{vPR}, v{vPR} row_ror:{sh} {FULL}")
        a(f"v_readfirstlane_b32 s65, v{vPR}\ns_add_u32 s65, s65, s15\ns_sub_u32 s17, s65, s{sPT}")
        a(f"s_cmp_gt_i32 s17, {thw}\ns_cbranch_scc1 L_lastE")
        sv = list(vm)
        final_iter()
        a("s_branch L_lastJ")
        a.label("L_lastE")
        vm[:] = sv; cw[0] = (-1,) * 6
        final_iter()
        a.label("L_lastJ")
    else: final_iter()
    a("s_waitcnt lgkmcnt(0)")
    a("s_barrier")
    a("s_mov_b32 exec_hi, 0")
    if not hoist: a(f"ds_read_b128 {V4(G)}, v{vZ} offset:{ML}\nds_read_b128 {V4(G+4)}, v{vZ} offset:{ML+16}")
    for w in range(4): a(f"ds_read_b64 {V2(G+8+2*w)}, v{vOPR} offset:{1024*w}")
    if not hoist:
        a("s_waitcnt lgkmcnt(4)")
        weights()
    ms = [G, G+2, G+4, G+6]
    a("s_cmp_lg_u32 s101, 0")
    a("s_waitcnt lgkmcnt(3)")
    a(f"v_pk_mul_f32 {V2(GR)}, {V2(G+8)}, {V2(ms[0])} op_sel_hi:[1,0]")
    for k in range(1, 4):
        a(f"s_waitcnt lgkmcnt({3-k})")
        a(f"v_pk_fma_f32 {V2(GR)}, {V2(G+8+2*k)}, {V2(ms[k])}, {V2(GR)} op_sel_hi:[1,0,1]")
    if fast:
        a("s_cbranch_scc1 L_st1far", drain=False)
        a(f"buffer_store_dwordx4 {V4(GR)}, v{vL16}, {S(SW)}, s70 offen")
        a("s_branch L_st1done", drain=False)
        a.label("L_st1far", drain=False)
    a(f"buffer_store_dwordx4 {V4(GR)}, v{vL16}, {S(SW)}, s70 offen sc1")
    if fast: a.label("L_st1done", drain=False)
    def st1_global():
        a("s_mov_b32 exec_hi, 0")
        a(f"buffer_store_dwordx4 {V4(GR)}, v{vL16}, {S(SW)}, s70 offen sc1")
        a("s_mov_b32 exec_hi, -1")
    a("s_mov_b64 exec, -1")
    stamp(8)
    a(f"s_mov_b32 s{sCNT}, {spin}")
    a(f"s_cmp_eq_u32 s{sCG}, 7\ns_cbranch_scc1 L_reduce", drain=False)
    if not early1:
        if pw is not None: a(f"s_waitcnt vmcnt({pw})")
        if stD: stamp(3)
        wo_dma(8)
        if sl1: a(f"s_sleep {sl1}")
        for k in range(4): ld1(k)
        wo_dma(9)
    if not hb: a(f"ds_read_b128 {V4(AH)}, v{vHA} offset:{HIMG}\nds_read_b128 {V4(AH+4)}, v{vHA} offset:{HIMG+64}")
    if early1: a("s_waitcnt vmcnt(1)\ns_branch L_p1c", drain=False)
    if 9 in wos: a(f"s_waitcnt vmcnt({list(wos).count(9)})\ns_branch L_p1c", drain=False)
    if b2b:
        a("s_waitcnt vmcnt(0)\ns_barrier")
        a(f"ds_read_b64_tr_b16 {V2(BD)}, v{vTR} offset:{WL2}\nds_read_b64_tr_b16 {V2(BD+2)}, v{vTR} offset:{WL2+512}")
        a(f"ds_read_b64_tr_b16 {V2(BD+4)}, v{vTR} offset:{WL2+4096}\nds_read_b64_tr_b16 {V2(BD+6)}, v{vTR} offset:{WL2+4096+512}")
        for k in range(4): a(f"ds_read_b64_tr_b16 {V2(BW+4*k)}, v{vTR} offset:{WL1+4096*k}\nds_read_b64_tr_b16 {V2(BW+4*k+2)}, v{vTR} offset:{WL1+4096*k+512}")
    a.label("L_p1", drain=False)
    a("s_waitcnt vmcnt(0)")
    a.label("L_p1c", drain=False)
    MK = [4, 6, 8, 10]
    for k in range(4): a(f"v_cmp_ne_u32 s[{MK[k]}:{MK[k]+1}], s{sTAG}, v{P1+4*k+3}")
    a(f"s_or_b64 s[76:77], s[4:5], s[6:7]\ns_or_b64 vcc, s[8:9], s[10:11]\ns_or_b64 s[76:77], s[76:77], vcc")
    a("s_cbranch_scc0 L_p1ok", drain=False)
    if sleep1: a(f"s_sleep {sleep1}")
    for k in range(4):
        a(f"s_cmp_eq_u64 s[{MK[k]}:{MK[k]+1}], 0\ns_cbranch_scc1 L_p1s{k}", drain=False)
        ld1(k)
        a.label(f"L_p1s{k}", drain=False)
    a(f"s_sub_u32 s{sCNT}, s{sCNT}, 1\ns_cbranch_scc0 L_p1", drain=False)
    a.label("L_p1ok", drain=False)
    stamp(5)
    lam = [P1+2, P1+6, P1+10, P1+14]
    a(f"v_max3_f32 v{E+4}, v{lam[0]}, v{lam[1]}, v{lam[2]}\nv_max_f32 v{E+4}, v{E+4}, v{lam[3]}")
    for k in range(4): a(f"v_sub_f32 v{lam[k]}, v{lam[k]}, v{E+4}")
    for k in range(4): a(f"v_exp_f32 v{lam[k]}, v{lam[k]}")
    a(f"v_add_f32 v{E+5}, v{lam[0]}, v{lam[1]}\nv_pk_mul_f32 {V2(G)}, {V2(P1)}, {V2(lam[0])} op_sel_hi:[1,0]\nv_add_f32 v{E+6}, v{lam[2]}, v{lam[3]}")
    a(f"v_pk_fma_f32 {V2(G)}, {V2(P1+4)}, {V2(lam[1])}, {V2(G)} op_sel_hi:[1,0,1]\nv_add_f32 v{E+6}, v{E+5}, v{E+6}")
    a(f"v_pk_fma_f32 {V2(G)}, {V2(P1+8)}, {V2(lam[2])}, {V2(G)} op_sel_hi:[1,0,1]\nv_rcp_f32 v{E+6}, v{E+6}")
    a(f"v_pk_fma_f32 {V2(G)}, {V2(P1+12)}, {V2(lam[3])}, {V2(G)} op_sel_hi:[1,0,1]")
    a(f"v_pk_mul_f32 {V2(G)}, {V2(G)}, {V2(E+6)} op_sel_hi:[1,0]")
    a(f"v_cvt_pk_bf16_f32 v{G}, v{G}, v{G+1}")
    if b2b:
        Y2 = G + 4
        a(f"ds_write_b32 v{vAW}, v{G}")
        a("s_waitcnt lgkmcnt(0)")
        a("s_barrier")
        for k in range(4): a(f"ds_read_b128 {V4(AO+4*k)}, v{vAR} offset:{AIMG+64*k}")
        a(f"v_mfma_f32_16x16x32_bf16 {V4(Y)}, {V4(AH)}, {V4(BD)}, 0")
        a(f"v_mfma_f32_16x16x32_bf16 {V4(Y2)}, {V4(AH+4)}, {V4(BD+4)}, 0")
        for k in range(4):
            a(f"s_waitcnt lgkmcnt({3 - k})")
            y = Y if k & 1 == 0 else Y2
            a(f"v_mfma_f32_16x16x32_bf16 {V4(y)}, {V4(AO+4*k)}, {V4(BW+4*k)}, {V4(y)}")
        a(f"v_add_f32 v{GR+2}, v{Y}, v{Y2}")
        Y = GR + 2
    else:
        a(f"ds_write_b32 v{vAW}, v{G}")
        a("s_waitcnt vmcnt(0) lgkmcnt(0)")
        a("s_barrier")
        if not hb:
            a(f"ds_read_b64_tr_b16 {V2(BD)}, v{vTR} offset:{WL2}\nds_read_b64_tr_b16 {V2(BD+2)}, v{vTR} offset:{WL2+512}")
            a(f"ds_read_b64_tr_b16 {V2(BD+4)}, v{vTR} offset:{WL2+4096}\nds_read_b64_tr_b16 {V2(BD+6)}, v{vTR} offset:{WL2+4096+512}")
        for k in range(4):
            a(f"ds_read_b128 {V4(AO+4*k)}, v{vAR} offset:{AIMG+64*k}")
            if hb != 1: a(f"ds_read_b64_tr_b16 {V2(BW+4*k)}, v{vTR} offset:{WL1+4096*k}\nds_read_b64_tr_b16 {V2(BW+4*k+2)}, v{vTR} offset:{WL1+4096*k+512}")
        if not hb:
            a("s_waitcnt lgkmcnt(12)")
            a(f"v_mfma_f32_16x16x32_bf16 {V4(Y)}, {V4(AH)}, {V4(BD)}, 0")
            a(f"v_mfma_f32_16x16x32_bf16 {V4(Y)}, {V4(AH+4)}, {V4(BD+4)}, {V4(Y)}")
        for k in range(4):
            a(f"s_waitcnt lgkmcnt({(3 - k) * (1 if hb == 1 else 3)})")
            a(f"v_mfma_f32_16x16x32_bf16 {V4(Y)}, {V4(AO+4*k)}, {V4(BW+4*k)}, {V4(Y)}")
        a(f"v_mov_b32 v{Y+1}, v{GR+3}")
    if not nost2: a(f"buffer_store_dwordx2 {V2(Y)}, v{vST2}, {S(SW)}, s68 offen sc1")
    if fast and clean: st1_global()
    a("s_branch L_sdone")
    a.label("L_reduce")
    if fast and clean:
        a("s_sleep 12")
        st1_global()
    a(f"s_cmp_ge_u32 s{sKG}, 28\ns_cbranch_scc1 L_sdone")
    if nored: a("s_branch L_sdone")
    SETS = [R + 16 * d for d in range(2)] + [QF, QF + 16]
    def ld2(d):
        for k in range(4): a(f"buffer_load_dwordx4 {V4(SETS[d]+4*k)}, v{vL16}, {S(SW)}, s78 offen offset:{1024*k} sc1")
    a(f"s_waitcnt vmcnt(0)\nv_lshlrev_b32 v{vX}, 16, v{vX}")
    for d in range(D2 - 1):
        ld2(d)
        if stag2: a(f"s_sleep {stag2}")
    a.label("L_p2")
    for d in range(D2):
        ld2((d + D2 - 1) % D2)
        a(f"s_waitcnt vmcnt({4 * (D2 - 1)})")
        q = SETS[d]
        a(f"v_xor_b32 v{E}, v{q+1}, v{GR+3}\nv_xor_b32 v{E+1}, v{q+3}, v{GR+3}")
        for k in range(1, 4): a(f"v_bitop3_b32 v{E}, v{q+4*k+1}, v{GR+3}, v{E} bitop3:0xbe\nv_bitop3_b32 v{E+1}, v{q+4*k+3}, v{GR+3}, v{E+1} bitop3:0xbe")
        a(f"v_or_b32 v{E}, v{E}, v{E+1}\nv_add_f32 v{P1}, v{q}, v{q+4}\nv_add_f32 v{P1+2}, v{q+2}, v{q+6}\nv_cmp_ne_u32 vcc, 0, v{E}")
        a(f"v_add_f32 v{P1+8}, v{q+8}, v{q+12}\nv_add_f32 v{P1+10}, v{q+10}, v{q+14}")
        a("s_cbranch_vccz L_p2ok", drain=False)
    a(f"s_sub_u32 s{sCNT}, s{sCNT}, 1\ns_cbranch_scc0 L_p2", drain=False)
    a.label("L_p2ok", drain=False)
    stamp(6)
    a(f"v_add_f32 v{P1}, v{P1}, v{P1+8}\nv_add_f32 v{P1+2}, v{P1+2}, v{P1+10}")
    a(f"v_permlane16_swap_b32 v{P1}, v{P1+2}")
    a(f"v_add_f32 v{P1}, v{P1}, v{P1+2}")
    a(f"v_add_f32_dpp v{P1}, v{P1}, v{P1} row_ror:8 {FULL}")
    a(f"v_mov_b32 v{P1+2}, v{P1}")
    a(f"v_permlane32_swap_b32 v{P1}, v{P1+2}")
    a(f"v_add_f32 v{P1}, v{P1}, v{P1+2}\nv_add_f32 v{P1}, v{P1}, v{vX}")
    a(f"v_cvt_pk_bf16_f32 v{P1}, v{P1}, v{P1}")
    a(f"s_mov_b32 exec_hi, 0\ns_mov_b32 exec_lo, 0x00ff00ff")
    a(f"buffer_store_short v{P1}, v{vXO}, {S(SC_)}, s69 offen {osc}")
    a(f"s_or_b32 s65, s{sKG}, s{sWv}\ns_cmp_lg_u32 s65, 0\ns_cbranch_scc1 L_sdone")
    a("s_mov_b64 exec, 1")
    a(f"buffer_store_dword v{GR+3}, v{vZ}, {S(SW)}, 0 offen {osc}")
    a.label("L_sdone")
    stamp(7)
    pad("S")
    dump_stamps(9)
    a("s_endpgm")

    a.label("L_helper")
    in_helper[0] = True
    a("s_load_dwordx16 s[4:19], s[0:1], 0\ns_load_dwordx8 s[20:27], s[0:1], 64")
    decode(a)
    X, F, AF, AF2, BF, D, TG = 32, 64, 96, 112, 128, 184, 200
    a("s_setprio 3")
    a(f"v_mul_u32_u24 v6, 896, v5\nv_lshl_add_u32 v6, v4, 6, v6\nv_mov_b32 v7, 0x40000000\nv_cmp_gt_u32 s[74:75], 14, v4")
    a(f"v_cndmask_b32 v7, v7, v6, s[74:75]")
    a(f"v_lshrrev_b32 v8, 3, v0\nv_and_b32 v9, 7, v0\nv_lshlrev_b32 v9, 4, v9\nv_lshl_add_u32 v10, v8, 13, v9")
    a(f"v_mul_u32_u24 v11, 3584, v8\nv_add_u32 v11, v11, v9")
    a(f"s_mul_i32 s65, s{sB}, {112 * 8192}\ns_lshl_b32 s66, s{sIDX}, 7\ns_add_u32 s65, s65, s66")
    a("s_waitcnt lgkmcnt(0)")
    a(f"s_load_dword s{sTAG}, s[26:27], 0")
    srd(SA, 4, 3584)
    for u in range(4): a(f"buffer_load_dwordx4 {V4(X+4*u)}, v7, {S(SA)}, 0 offen offset:{16*u}")
    srd(SB, 10, 448 * 8192)
    def dma(sr, voff, so, stride, lds0, win=None):
        for k in range(14):
            if win and k >= win: a(f"s_waitcnt vmcnt({win-1})")
            a(f"s_mov_b32 m0, {lds0 + 1024 * k}")
            a(f"buffer_load_dwordx4 v{voff}, {S(sr)}, s{so} offen {wnt} lds")
            if k < 13: a(f"s_add_u32 s{so}, s{so}, {8 * stride}")
    if not noq: dma(SB, 10, 65, 8192, WL0)
    srd(SW, 26, WS_USED)
    nini = 0
    if fb:
        a(f"s_lshl_b32 s34, s{sH}, 9\ns_add_u32 s34, s34, {PMB}\ns_lshl_b32 s35, s{sB}, 2\ns_add_u32 s35, s35, s{sJ}\ns_lshl_b32 s68, s35, 2\ns_add_u32 s68, s68, s34")
        a(f"v_lshlrev_b32 v2, 7, v0\nv_mov_b32 v3, 0\ns_mov_b64 exec, 15")
        a(f"buffer_store_dword v3, v2, {S(SW)}, s68 offen"); nini += 1
        if gfb:
            a(f"s_cmp_eq_u32 s35, 0\ns_cselect_b32 s68, s34, 0x40000000")
            a(f"buffer_store_dword v3, v2, {S(SW)}, s68 offen offset:64"); nini += 1
        a("s_mov_b64 exec, -1")
    a(f"v_and_b32 v14, 3, v4\nv_lshrrev_b32 v15, 2, v4\ns_mul_i32 s65, s{sB}, 224")
    a(f"v_mul_u32_u24 v12, 896, v15\nv_add_u32 v12, s65, v12\nv_lshl_add_u32 v28, v5, 3, v12\nv_lshl_add_u32 v12, v5, 4, v12")
    a(f"s_lshr_b32 s65, s{sCG}, 1\ns_mul_i32 s65, s65, 224")
    a(f"v_mul_u32_u24 v30, 896, v14\nv_add_u32 v30, s65, v30\nv_lshl_add_u32 v31, v5, 3, v30\nv_lshl_add_u32 v30, v5, 4, v30")
    a(f"v_lshl_add_u32 v8, v5, 2, v14\nv_lshlrev_b32 v8, 4, v8\nv_lshl_add_u32 v8, v15, 16, v8")
    a(f"v_lshlrev_b32 v9, 5, v14\nv_lshl_add_u32 v9, v15, 3, v9\nv_lshl_add_u32 v9, v5, 7, v9")
    for t in range(1, 4): a(f"v_cmp_eq_u32 s[{26+2*t}:{27+2*t}], {t}, v14")
    a(f"v_lshlrev_b32 v15, 7, v15\nv_lshl_add_u32 v15, v14, 3, v15")
    a(f"v_lshl_add_u32 v13, v5, 10, v15\nv_lshl_add_u32 v29, v5, 9, v15")
    a(f"s_waitcnt vmcnt(14)" if not noq else "s_waitcnt vmcnt(0)")
    stamp(1)
    for k in range(16): a(f"v_lshlrev_b32 v{F+2*k}, 16, v{X+k}\nv_and_b32 v{F+2*k+1}, 0xffff0000, v{X+k}")
    a(f"v_pk_add_f32 v[14:15], {V2(F)}, {V2(F+2)}\nv_pk_add_f32 v[16:17], {V2(F+4)}, {V2(F+6)}")
    for k in range(4, 16, 2):
        a(f"v_pk_add_f32 v[14:15], v[14:15], {V2(F+2*k)}\nv_pk_add_f32 v[16:17], v[16:17], {V2(F+2*k+2)}")
    a("v_pk_add_f32 v[14:15], v[14:15], v[16:17]\nv_add_f32 v14, v14, v15")
    def rowsum(r):
        for sh in (8, 4, 2, 1): a(f"v_add_f32_dpp v{r}, v{r}, v{r} row_ror:{sh} {FULL}")
    rowsum(14)
    a(f"v_mul_f32 v18, {hex(f2u(-1.0 / 448))}, v14\nv_mov_b32 v19, v18")
    a("v_mov_b32 v14, 0\nv_mov_b32 v15, 0\nv_mov_b32 v16, 0\nv_mov_b32 v17, 0")
    for k in range(0, 16, 2):
        a(f"v_pk_add_f32 v[20:21], {V2(F+2*k)}, v[18:19]\nv_pk_add_f32 v[22:23], {V2(F+2*k+2)}, v[18:19]")
        a(f"v_pk_fma_f32 v[14:15], v[20:21], v[20:21], v[14:15]\nv_pk_fma_f32 v[16:17], v[22:23], v[22:23], v[16:17]")
    a("v_pk_add_f32 v[14:15], v[14:15], v[16:17]\nv_add_f32 v14, v14, v15\nv_cndmask_b32 v14, 0, v14, s[74:75]")
    rowsum(14)
    def rbf(r): a(f"v_cvt_pk_bf16_f32 v{r}, v{r}, v{r}\nv_and_b32 v{r}, 0xffff0000, v{r}")
    a(f"v_mul_f32 v14, {hex(f2u(1.0 / 448))}, v14"); rbf(14)
    a(f"v_add_f32 v14, {hex(f2u(1e-5))}, v14"); rbf(14)
    a("v_sqrt_f32 v14, v14"); rbf(14)
    a("v_rcp_f32 v16, v14\nv_mov_b32 v15, v14"); rbf(18)
    a("v_mov_b32 v17, v16\nv_mov_b32 v19, v18")
    for k in range(16):
        a(f"v_pk_add_f32 {V2(F+2*k)}, {V2(F+2*k)}, v[18:19]")
    for k in range(16):
        a(f"v_cvt_pk_bf16_f32 v{X+k}, v{F+2*k}, v{F+2*k+1}")
    for k in range(16): a(f"v_lshlrev_b32 v{F+2*k}, 16, v{X+k}\nv_and_b32 v{F+2*k+1}, 0xffff0000, v{X+k}")
    for k in range(16):
        t = 20 + 2 * (k & 3)
        a(f"v_pk_mul_f32 {V2(t)}, {V2(F+2*k)}, v[16:17]")
        a(f"v_pk_fma_f32 {V2(F+2*k)}, {V2(t)}, v[14:15], {V2(F+2*k)} neg_lo:[1,0,0] neg_hi:[1,0,0]")
        a(f"v_pk_fma_f32 {V2(t)}, {V2(F+2*k)}, v[16:17], {V2(t)}")
        a(f"v_cvt_pk_bf16_f32 v{X+k}, v{t}, v{t+1}")
    a("s_mov_b64 exec, s[74:75]")
    for u in range(4): a(f"ds_write_b128 v6, {V4(X+4*u)} offset:{XN + 16*u}")
    a("s_mov_b64 exec, -1")
    a("s_waitcnt lgkmcnt(0)")
    a(f"s_mul_i32 s{sTAG}, s{sTAG}, 0x9E3779B1\ns_add_u32 s{sTAG}, s{sTAG}, 0x7F4A7C15")
    for k in range(3): a(f"ds_read_b128 {V4(AF+4*k)}, v12 offset:{XN + 64*k}")
    a(f"ds_read_b64 {V2(AF+12)}, v28 offset:{XN + 192}")
    a(f"v_mov_b32 v{TG}, s{sTAG}\nv_lshrrev_b32 v{TG+1}, 8, v{TG}\nv_lshrrev_b32 v{TG+2}, 16, v{TG}\nv_lshrrev_b32 v{TG+3}, 24, v{TG}\ns_movk_i32 s78, 0xff")
    a(f"v_lshlrev_b32 v10, 4, v0")
    a(f"s_lshl_b32 s66, s{sH}, 12\ns_lshl_b32 s67, s{sB}, 10\ns_add_u32 s66, s66, s67\ns_lshl_b32 s67, s{sJ}, 8\ns_add_u32 s66, s66, s67\ns_add_u32 s66, s66, {QMB}")
    a(f"s_lshl_b32 s67, s{sBH}, 12\ns_add_u32 s67, s67, {QMB}")
    a("s_waitcnt vmcnt(0)")
    stamp(2)
    a(f"s_getreg_b32 s69, hwreg(HW_REG_XCC_ID, 0, 4)\nv_xor_b32 v{TG+4}, s69, v{TG+3}")
    def piece(af, transposed):
        for t in range(4):
            for k in range(3):
                o = WL0 + 4096 * k + 32 * t
                a(f"ds_read_b64_tr_b16 {V2(BF+14*t+4*k)}, v13 offset:{o}\nds_read_b64_tr_b16 {V2(BF+14*t+4*k+2)}, v13 offset:{o + 512}")
            a(f"ds_read_b64_tr_b16 {V2(BF+14*t+12)}, v29 offset:{WL0 + 12288 + 32 * t}")
        a("s_waitcnt lgkmcnt(0)")
        for k in range(3):
            for t in range(4):
                x, w = V4(af+4*k), V4(BF+14*t+4*k)
                a(f"v_mfma_f32_16x16x32_bf16 {V4(D+4*t)}, {w if transposed else x}, {x if transposed else w}, {'0' if k == 0 else V4(D+4*t)}")
        for t in range(4):
            x, w = V2(af+12), V2(BF+14*t+12)
            a(f"v_mfma_f32_16x16x16_bf16 {V4(D+4*t)}, {w if transposed else x}, {x if transposed else w}, {V4(D+4*t)}")
        for t in range(1, 4):
            for r in range(4):
                if transposed: a(f"v_cndmask_b32 v{D+r}, v{D+r}, v{D+4*t+r}, s[{26+2*t}:{27+2*t}]")
                else: a(f"v_mov_b32_dpp v{D+r}, v{D+4*t+r} {IDP} row_mask:{hex(1 << t)} bank_mask:0xf")
        for r in range(4): a(f"v_add_u32 v{D+r}, 0x80, v{D+r}")
        for r in range(4): a(f"v_bfi_b32 v{20+r}, s78, v{TG + r + (1 if transposed and r == 3 else 0)}, v{D+r}")
    a("; q block")
    piece(AF, True)
    if noq or not qst: a("s_branch L_pqok")
    a(f"buffer_store_dwordx4 v[20:23], v8, {S(SW)}, s66 offen{'' if fastq else ' sc1'}")
    stamp(3)
    for k in range(3): a(f"ds_read_b128 {V4(AF2+4*k)}, v30 offset:{XN + 64*k}")
    a(f"ds_read_b64 {V2(AF2+12)}, v31 offset:{XN + 192}")
    a(f"v_mov_b32 v16, 0\nv_mov_b32 v17, 0\nv_mov_b32 v18, 0\nv_mov_b32 v19, 0")
    a(f"s_mov_b32 exec_hi, 0xff\nds_write_b128 v10, v[16:19] offset:{HIMG}\ns_mov_b64 exec, -1")
    a(f"ds_write_b128 v16, v[16:19] offset:{PGL}")
    PQ = F
    def qload(k): a(f"buffer_load_dwordx4 {V4(PQ+4*k)}, v10, {S(SW)}, s67 offen offset:{1024 * k} sc1")
    def chk4(dst, src):
        a(f"v_xor_b32 v{dst}, v{src}, v{TG}")
        for t in range(1, 4): a(f"v_bitop3_b32 v{dst}, v{src+t}, v{TG+t}, v{dst} bitop3:0xbe")
        a(f"v_and_b32 v{dst}, s78, v{dst}")
    if sleepq: a(f"s_sleep {sleepq}")
    for k in range(4): qload(k)
    a(f"s_mov_b32 s{sCNT}, {spin}")
    a.label("L_pq")
    a("s_waitcnt vmcnt(0)")
    for k in range(4):
        a(f"v_xor_b32 v{X+4+k}, v{PQ+4*k+3}, v{TG+4}\nv_and_b32 v{X+k}, 0xf0, v{X+4+k}")
        for t in range(3): a(f"v_bitop3_b32 v{X+k}, v{PQ+4*k+t}, v{TG+t}, v{X+k} bitop3:0xbe")
        a(f"v_and_b32 v{X+k}, s78, v{X+k}")
    a(f"v_or3_b32 v24, v{X}, v{X+1}, v{X+2}\nv_or_b32 v24, v24, v{X+3}")
    a("v_cmp_ne_u32 vcc, 0, v24\ns_cbranch_vccz L_pqok", drain=False)
    if fastq:
        a(f"s_cmp_lg_u32 s{sCNT}, {spin - nq}\ns_cbranch_scc1 L_pqg", drain=False)
        a(f"buffer_store_dwordx4 v[20:23], v8, {S(SW)}, s66 offen sc1")
        a.label("L_pqg", drain=False)
    a(f"s_sleep 2")
    for k in range(4):
        a(f"v_cmp_ne_u32 vcc, 0, v{X+k}\ns_cbranch_vccz L_pqs{k}", drain=False)
        qload(k)
        a.label(f"L_pqs{k}", drain=False)
    a(f"s_sub_u32 s{sCNT}, s{sCNT}, 1\ns_cmp_lg_u32 s{sCNT}, 0\ns_cbranch_scc1 L_pq", drain=False)
    a.label("L_pqok", drain=False)
    for k in range(16): a(f"v_and_b32 v{PQ+k}, 0xffffff00, v{PQ+k}")
    for e in (0, 2):
        a(f"v_pk_add_f32 {V2(PQ+e)}, {V2(PQ+e)}, {V2(PQ+4+e)}\nv_pk_add_f32 {V2(PQ+8+e)}, {V2(PQ+8+e)}, {V2(PQ+12+e)}")
    for e in (0, 2): a(f"v_pk_add_f32 {V2(PQ+e)}, {V2(PQ+e)}, {V2(PQ+8+e)}")
    a(f"v_cvt_pk_bf16_f32 v24, v{PQ}, v{PQ+1}\nv_cvt_pk_bf16_f32 v25, v{PQ+2}, v{PQ+3}\nv_mov_b32 v17, 0")
    a(f"v_or3_b32 v26, v{X+4}, v{X+5}, v{X+6}\nv_or_b32 v26, v26, v{X+7}\nv_and_b32 v26, 15, v26\nv_cmp_ne_u32 vcc, 0, v26")
    a(f"s_or_b32 s69, vcc_lo, vcc_hi\nv_mov_b32 v26, v{TG}\nv_mov_b32 v27, s69")
    a(f"ds_write_b64 v9, v[24:25] offset:{QL}\nds_write_b64 v17, v[26:27] offset:{TAGL}")
    if fastq:
        a("s_cmp_eq_u32 s69, 0\ns_cbranch_scc1 L_qnear")
        a(f"buffer_store_dwordx4 v[20:23], v8, {S(SW)}, s66 offen sc1")
        a.label("L_qnear")
    a("s_waitcnt lgkmcnt(0)")
    stamp(4)
    if stamps: a(f"s_mov_b32 s92, s{sCNT}")
    a("s_barrier")
    a("s_setprio 0")
    if g0:
        a(f"s_cmp_lg_u32 s35, 15\ns_cbranch_scc1 L_nog0\ns_cmp_lg_u32 s69, 0\ns_cbranch_scc1 L_nog0")
        a("s_mov_b32 s71, 1\ns_atomic_add s71, s[24:25], 60 glc\ns_waitcnt lgkmcnt(0)")
        a(f"s_sub_u32 s71, s71, {r0}\ns_mul_i32 s71, s71, {g0}\ns_ashr_i32 s71, s71, 2\nv_mov_b32 v42, s71")
        a(f"s_mov_b64 exec, 15\nbuffer_store_dword v42, v2, {S(SW)}, s34 offen offset:64\ns_mov_b64 exec, -1")
        a.label("L_nog0")
    if noffn: a("s_branch L_hend")
    a(f"s_cmp_ge_u32 s{sKG}, 28\ns_cbranch_scc1 L_hend")
    a(f"s_bitcmp1_b32 s{sCG}, 0\ns_cselect_b32 s{SC_}, s18, s16\ns_cselect_b32 s{SC_+1}, s19, s17\ns_mov_b32 s{SC_+2}, {448 * 3584}\ns_mov_b32 s{SC_+3}, 0x20000")
    a(f"s_lshr_b32 s66, s{sCG}, 1\ns_mul_i32 s65, s66, {112 * 3584}\ns_lshl_b32 s67, s{sKG}, 7\ns_add_u32 s65, s65, s67")
    if fdma: dma(SC_, 11, 65, 3584, WL0, win=HW)
    a(f"s_lshl_b32 s67, s{sKG}, 13\ns_add_u32 s67, s67, {FMB}\ns_lshl_b32 s66, s{sCG}, 10\ns_add_u32 s66, s66, s67\ns_add_u32 s68, s67, 4096")
    a("s_waitcnt vmcnt(0)")
    piece(AF2, False)
    if fst and fastf:
        a("s_cmp_lg_u32 s69, 0\ns_cbranch_scc1 L_ffar")
        a(f"buffer_store_dwordx4 v[20:23], v10, {S(SW)}, s66 offen\ns_branch L_fdone")
        a.label("L_ffar")
    if fst: a(f"buffer_store_dwordx4 v[20:23], v10, {S(SW)}, s66 offen sc1")
    if fst and fastf: a.label("L_fdone")
    if not fpoll: a("s_branch L_hend")
    a(f"s_cmp_eq_u32 s{sCG}, 7\ns_cbranch_scc1 L_hend")
    def fload(k): a(f"buffer_load_dwordx4 {V4(F+4*k)}, v10, {S(SW)}, s{67 + (k >> 2)} offen offset:{1024 * (k & 3)} sc1")
    a(f"s_sleep {sleepf}")
    for k in range(8): fload(k)
    a(f"s_mov_b32 s{sCNT}, {spin}\nv_lshlrev_b32 v9, 1, v0")
    a.label("L_pf")
    a("s_waitcnt vmcnt(0)")
    for k in range(8): chk4(X + k, F + 4 * k)
    a(f"v_or3_b32 v24, v{X}, v{X+1}, v{X+2}\nv_or3_b32 v24, v24, v{X+3}, v{X+4}\nv_or3_b32 v24, v24, v{X+5}, v{X+6}\nv_or_b32 v24, v24, v{X+7}")
    a("v_cmp_ne_u32 vcc, 0, v24\ns_cbranch_vccz L_pfok", drain=False)
    a(f"s_sleep 16")
    for k in range(8):
        a(f"v_cmp_ne_u32 vcc, 0, v{X+k}\ns_cbranch_vccz L_pfs{k}", drain=False)
        fload(k)
        a.label(f"L_pfs{k}", drain=False)
    a(f"s_sub_u32 s{sCNT}, s{sCNT}, 1\ns_cbranch_scc0 L_pf", drain=False)
    a.label("L_pfok", drain=False)
    for k in range(32): a(f"v_and_b32 v{F+k}, 0xffffff00, v{F+k}")
    for e in range(0, 8, 2):
        a(f"v_pk_add_f32 {V2(F+e)}, {V2(F+e)}, {V2(F+8+e)}\nv_pk_add_f32 {V2(F+16+e)}, {V2(F+16+e)}, {V2(F+24+e)}")
    for e in range(0, 8, 2): a(f"v_pk_add_f32 {V2(F+e)}, {V2(F+e)}, {V2(F+16+e)}")
    for r in range(8): rbf(F + r)
    k1 = -2.0 * math.sqrt(2.0 / math.pi) * math.log2(math.e)
    for r in range(4):
        g, u, t = F + r, F + 4 + r, F + 8 + r
        a(f"v_mul_f32 v{t}, v{g}, v{g}\nv_mul_f32 v{t}, {hex(f2u(0.044715))}, v{t}\nv_fma_f32 v{t}, v{t}, v{g}, v{g}")
        a(f"v_mul_f32 v{t}, {hex(f2u(k1))}, v{t}\nv_exp_f32 v{t}, v{t}\nv_add_f32 v{t}, 1.0, v{t}\nv_rcp_f32 v{t}, v{t}\nv_mul_f32 v{g}, v{g}, v{t}")
        rbf(g)
        a(f"v_mul_f32 v{g}, v{g}, v{u}")
    a(f"v_cvt_pk_bf16_f32 v32, v{F}, v{F+1}\nv_cvt_pk_bf16_f32 v34, v{F+2}, v{F+3}")
    a(f"ds_write_b16 v9, v32 offset:{HIMG}\nds_write_b16_d16_hi v9, v32 offset:{HIMG + HROW}")
    a(f"ds_write_b16 v9, v34 offset:{HIMG + 2 * HROW}\nds_write_b16_d16_hi v9, v34 offset:{HIMG + 3 * HROW}")
    a("s_waitcnt lgkmcnt(0)")
    a.label("L_hend")
    a("s_mov_b64 exec, -1")
    if fb and gfb == 2:
        a(f"s_cmp_lg_u32 s69, 0\ns_cbranch_scc1 L_gend\ns_cmp_ge_u32 s35, {nR}\ns_cbranch_scc1 L_gend")
        a(f"v_lshlrev_b32 v6, 2, v4\nv_lshl_add_u32 v6, v5, 7, v6\nv_mov_b32 v41, v{TG}\nv_mov_b32 v7, 0")
        a(f"s_lshl_b32 s66, s{sH}, 7\ns_add_u32 s66, s66, {GMB}\ns_mov_b32 s67, {GMB}\ns_mov_b32 s{sCNT}, 4000\ns_mul_i32 s70, s35, {dL}\ns_add_u32 s70, s70, {L0}")
        a.label("L_gw")
        a(f"ds_read_b32 v40, v7 offset:{PGL}\ns_waitcnt lgkmcnt(0)\nv_readfirstlane_b32 s65, v40\ns_cmp_ge_u32 s65, s70\ns_cbranch_scc1 L_gr")
        a(f"s_sleep 4\ns_sub_u32 s{sCNT}, s{sCNT}, 1\ns_cbranch_scc0 L_gw")
        a.label("L_gr")
        a(f"buffer_load_dword v40, v6, {S(SW)}, s34 offen sc1")
        a("s_mov_b64 exec, 0xffff")
        a(f"buffer_load_dwordx2 v[42:43], v2, {S(SW)}, s67 offen sc1")
        a("s_mov_b64 exec, -1\ns_waitcnt vmcnt(1)")
        for sh in (8, 4, 2, 1): a(f"v_add_u32_dpp v40, v40, v40 row_ror:{sh} {FULL}")
        a("v_add_u32_dpp v40, v40, v40 row_bcast:15 row_mask:0xa bank_mask:0xf\nv_add_u32_dpp v40, v40, v40 row_bcast:31 row_mask:0xc bank_mask:0xf")
        a("v_readlane_b32 s71, v40, 63\nv_mov_b32 v40, s71")
        a("s_mov_b64 exec, 1")
        a(f"buffer_store_dwordx2 v[40:41], v7, {S(SW)}, s66 offen sc1")
        a("s_mov_b64 exec, -1\ns_waitcnt vmcnt(1)")
        a(f"v_subrev_u32 v44, {64 * dL}, v40\nv_cmp_eq_u32 vcc, v43, v41\nv_cndmask_b32 v42, v44, v42, vcc\nv_sub_u32 v42, v42, v40")
        for sh in (8, 4, 2, 1): a(f"v_add_u32_dpp v42, v42, v42 row_ror:{sh} {FULL}")
        a(f"v_ashrrev_i32 v42, {4 + gsh}, v42\nv_add_u32 v42, {goff}, v42")
        a("s_mov_b64 exec, 15")
        a(f"buffer_store_dword v42, v2, {S(SW)}, s34 offen offset:64")
        a("s_mov_b64 exec, -1")
        a.label("L_gend")
    if fb and gfb == 3:
        a("; balancing round: when the head reaches this workgroup's level, its arrival rank (d_debug counter) sets the bias word")
        a(f"s_cmp_lg_u32 s69, 0\ns_cbranch_scc1 L_gend\ns_cmp_ge_u32 s35, {nR}\ns_cbranch_scc1 L_gend")
        a(f"v_lshlrev_b32 v6, 2, v4\nv_lshl_add_u32 v6, v5, 7, v6\nv_mov_b32 v7, 0")
        a(f"s_mov_b32 s{sCNT}, 4000\ns_mul_i32 s70, s35, {dL}\ns_add_u32 s70, s70, {L0}\ns_lshl_b32 s66, s35, 2")
        a.label("L_gw")
        a(f"ds_read_b32 v40, v7 offset:{PGL}\ns_waitcnt lgkmcnt(0)\nv_readfirstlane_b32 s65, v40\ns_cmp_ge_u32 s65, s70\ns_cbranch_scc1 L_gr")
        a(f"s_sleep 4\ns_sub_u32 s{sCNT}, s{sCNT}, 1\ns_cbranch_scc0 L_gw")
        a.label("L_gr")
        if gpoll:
            a(f"s_lshl_b32 s70, s70, 6\ns_add_u32 s70, s70, 16\ns_mov_b32 s{sCNT}, 3")
            a.label("L_gp")
            a(f"buffer_load_dword v40, v6, {S(SW)}, s34 offen sc1\ns_waitcnt vmcnt(0)")
            for sh in (8, 4, 2, 1): a(f"v_add_u32_dpp v40, v40, v40 row_ror:{sh} {FULL}")
            a("v_add_u32_dpp v40, v40, v40 row_bcast:15 row_mask:0xa bank_mask:0xf\nv_add_u32_dpp v40, v40, v40 row_bcast:31 row_mask:0xc bank_mask:0xf")
            a(f"v_readlane_b32 s71, v40, 63\ns_cmp_ge_u32 s71, s70\ns_cbranch_scc1 L_ga\ns_sub_u32 s{sCNT}, s{sCNT}, 1\ns_cbranch_scc0 L_gp")
            a.label("L_ga")
        a("s_mov_b32 s71, 1\ns_atomic_add s71, s[24:25], s66 glc\ns_waitcnt lgkmcnt(0)")
        a(f"s_sub_u32 s71, s71, {r0}\ns_mul_i32 s71, s71, {gain}\ns_ashr_i32 s71, s71, 2\nv_mov_b32 v42, s71")
        a("s_mov_b64 exec, 15")
        a(f"buffer_store_dword v42, v2, {S(SW)}, s34 offen offset:64")
        a("s_mov_b64 exec, -1")
        if rew:
            a(f"s_cmp_lt_u32 s35, {nR - rew}\ns_cbranch_scc1 L_gend")
            a("s_getpc_b64 s[66:67]")
            a.label("L_pc2", drain=False)
            a("s_sub_u32 s66, s66, L_pc2-L_tail\ns_subb_u32 s67, s67, 0\nv_min_u32 v2, L_helper-L_tail, v2\nglobal_load_dword v31, v2, s[66:67]")
        a.label("L_gend")
    if fb and gfb == 1:
        NIT = (15 - NP) + 1 + 15
        a("s_or_b32 s65, s35, s69\ns_cmp_lg_u32 s65, 0\ns_cbranch_scc1 L_gend")
        a(f"v_lshlrev_b32 v6, 2, v4\nv_lshl_add_u32 v6, v5, 7, v6\nv_mov_b32 v41, v{TG}\nv_mov_b32 v7, 0")
        a(f"s_lshl_b32 s66, s{sH}, {3 if gsc else 7}\ns_add_u32 s66, s66, {GMB}\ns_mov_b32 s67, {GMB}\ns_mov_b32 s{sCNT}, 200\ns_mov_b32 s70, -1")
        a.label("L_g")
        a(f"buffer_load_dword v40, v6, {S(SW)}, s34 offen sc1")
        if gsc:
            a(f"s_waitcnt lgkmcnt(0)\ns_load_dwordx16 s[4:19], s[26:27], {GMB} glc\ns_load_dwordx16 s[40:55], s[26:27], {GMB + 64} glc\ns_waitcnt vmcnt(0)")
        else:
            a("s_mov_b64 exec, 0xffff")
            a(f"buffer_load_dwordx2 v[42:43], v2, {S(SW)}, s67 offen sc1")
            a("s_mov_b64 exec, -1\ns_waitcnt vmcnt(1)")
        a(f"v_cmp_le_u32 vcc, {NIT - gexit}, v40\ns_or_b32 s65, vcc_lo, vcc_hi\ns_and_b32 s65, s65, 0x10001\ns_cbranch_scc1 L_gend")
        for sh in (8, 4, 2, 1): a(f"v_add_u32_dpp v40, v40, v40 row_ror:{sh} {FULL}")
        a("v_add_u32_dpp v40, v40, v40 row_bcast:15 row_mask:0xa bank_mask:0xf\nv_add_u32_dpp v40, v40, v40 row_bcast:31 row_mask:0xc bank_mask:0xf")
        a("v_readlane_b32 s71, v40, 63\nv_mov_b32 v40, s71")
        a("s_mov_b64 exec, 1")
        a(f"buffer_store_dwordx2 v[40:41], v7, {S(SW)}, s66 offen sc1")
        a("s_mov_b64 exec, -1\ns_waitcnt vmcnt(1)")
        a("s_cmp_eq_u32 s70, -1\ns_cbranch_scc1 L_gskip")
        if gavg: a("s_add_u32 s70, s70, s71\ns_lshr_b32 s70, s70, 1")
        if gsc:
            a("s_waitcnt lgkmcnt(0)\ns_mov_b32 s65, 0")
            for k in range(16):
                r = (4 + 2 * k) if k < 8 else (40 + 2 * (k - 8))
                a(f"s_cmp_eq_u32 s{r+1}, s{sTAG}\ns_cselect_b32 s{r}, s{r}, s70\ns_add_u32 s65, s65, s{r}")
            a(f"s_lshl_b32 s70, s70, 4\ns_sub_u32 s65, s65, s70\ns_ashr_i32 s65, s65, {4 + gsh}\ns_add_u32 s65, s65, {goff}\nv_mov_b32 v42, s65")
        else:
          a(f"v_mov_b32 v44, s70\nv_cmp_eq_u32 vcc, v43, v41\nv_cndmask_b32 v42, v44, v42, vcc\nv_sub_u32 v42, v42, v44")
          for sh in (8, 4, 2, 1): a(f"v_add_u32_dpp v42, v42, v42 row_ror:{sh} {FULL}")
          a(f"v_ashrrev_i32 v42, {4 + gsh}, v42")
          if goff: a(f"v_add_u32 v42, {goff}, v42")
        a("s_mov_b64 exec, 15")
        a(f"buffer_store_dword v42, v2, {S(SW)}, s34 offen offset:64")
        a("s_mov_b64 exec, -1")
        a.label("L_gskip")
        a("s_mov_b32 s70, s71")
        if gsleep: a(f"s_sleep {gsleep}")
        a(f"s_sub_u32 s{sCNT}, s{sCNT}, 1\ns_cbranch_scc0 L_g")
        a.label("L_gend")
        if gsc: a("s_waitcnt lgkmcnt(0)")
    stamp(5)
    pad("H")
    dump_stamps(7)
    a.label("L_end")
    a("s_endpgm")
    a.raw('.section .rodata,"a"'); a.raw(".p2align 6"); a.raw(f".amdhsa_kernel {NAME}")
    a.raw("  .amdhsa_next_free_vgpr 256"); a.raw("  .amdhsa_next_free_sgpr 102"); a.raw("  .amdhsa_accum_offset 256")
    a.raw("  .amdhsa_group_segment_fixed_size 0"); a.raw("  .amdhsa_kernarg_size 96"); a.raw("  .amdhsa_user_sgpr_count 2")
    a.raw("  .amdhsa_user_sgpr_kernarg_segment_ptr 1"); a.raw("  .amdhsa_system_sgpr_workgroup_id_x 1"); a.raw(".end_amdhsa_kernel")
    return a.text()

if __name__ == "__main__":
    out = sys.argv[1]
    kw = eval("dict(" + (sys.argv[2] if len(sys.argv) > 2 else "") + ")")
    open(out, "w").write(gen(**kw))
```

```python
import sys, struct, math
sys.path.insert(0, "gen")
from asmlib import Asm

NAME = "parallel_sum__mha_block_cached__geglu_ffn__decode_kernel"
HEADER = open("parallel_sum__mha_block_cached__geglu_ffn__decode.s.ref").read().split("; Override launch")[0]

def f2u(x): return struct.unpack("<I", struct.pack("<f", x))[0]

PMB = 0x8000
GMB = 0xC000
QMB = 0x10000
FMB = QMB + 64 * 4096
MB1 = 0xA0000
MB2 = 0x120000
TSB = 0x400000
WS_USED = TSB + 0x10000
assert FMB + 28 * 8192 <= MB1
PGL = 4112
XN, QL, TAGL, ML, HIMG, AIMG, OP, SC = 0, 3584, 4096, 4128, 4224, 4864, 6144, 10240
HROW, AROW = 144, 272
WL0 = SC + 16384
WL1 = WL0 + 14336
WL2 = WL1 + 16384
LDS_BYTES = WL2 + 8192

DOC = '''; ---------------------------------------------------------------------------------------------
; ---------------------------------------------------------------------------------------------'''
FULL = "row_mask:0xf bank_mask:0xf"
IDP = "quad_perm:[0,1,2,3]"

def gen(W=5, NP=5, nt="nt", wnt="nt", stamps=False, warm=True, sleep1=0, sleep2=0, sleepq=30, spin=1 << 18,
        padto=0, padwg=None, padstamp=None, HW=4, noffn=0, noq=0, nowo=0, touch=1, sleepf=60, fdma=1, fst=1, fpoll=1, qst=1, pat=5, Wend=None, nend=0, W0=None, osc='', scr=1, remap=4, D2=2, stag2=4, early1=0, role=3, fast=1, hoist=1, clean=0, fastq=1, fastf=1, nq=5, tlb=0, fb=1, Wup=6, thup=0, gfb=3, gsleep=8, goff=0, gsh=2, gavg=0, gsc=0, gexit=2, L0=6, dL=2, nR=9, nost2=0, nored=0, wos=(3,4,5,6,7,7), r0=8, gain=6, gpoll=1, st0=0, warm2=16, late=1, codekb=13, amp=0, lite=0, Wdn=4, thdn=-15, endp=None, pw=None, thw=None, hb=0, pre1=0, rew=0, stL=0, k1st=0, th2=8, g0=4, pf=0, pfs=7, pfnt='', pfth=None, fakeg=0, kb5=(15,13), wb5=(11,14), jb5=(12,16), soft=None, softu=3, burst=0, b2b=0, stD=0, sl1=0, hstep=-1, st4=0, pol=None):
    assert not (fast or fastf) or role == 3
    assert early1 != 2 or hoist
    assert hb != 1 or set(wos) == {-2}
    assert hb != 2 or wos[:2] == (-2, -2)
    assert not (b2b and (hb or early1 or clean))
    in_helper = [False]
    a = Asm()
    a.raw(HEADER.rstrip("\n"))
    a.raw(f"; @launch grid=(256,1,1) block=(320,1,1) lds={LDS_BYTES}")
    a.raw(DOC)
    a.raw('.amdgcn_target "amdgcn-amd-amdhsa--gfx950"')
    a.raw(".text"); a.raw(f".globl {NAME}"); a.raw(".p2align 8"); a.raw(f".type {NAME},@function")
    a.raw(f"{NAME}:")
    SK, SV, SW, SA, SB, SC_, SD = 28, 32, 36, 40, 44, 48, 52
    sB, sH, sJ, sIDX, sBH, sTAG, sCNT, sKO, sVO, sWv, sKG, sCG = 56, 57, 58, 59, 60, 61, 62, 63, 64, 72, 73, 79
    def srd(r, ptr, size):
        a(f"s_mov_b32 s{r}, s{ptr}\ns_mov_b32 s{r+1}, s{ptr+1}\ns_mov_b32 s{r+2}, {size}\ns_mov_b32 s{r+3}, 0x20000")
    def S(r): return f"s[{r}:{r+3}]"
    def V4(r): return f"v[{r}:{r+3}]"
    def V2(r): return f"v[{r}:{r+1}]"
    def stamp(k):
        if stamps or padstamp is not None:
            a(f"s_memrealtime s[{80+2*k}:{81+2*k}]")
    def dump_stamps(n):
        if not stamps: return
        a("s_waitcnt lgkmcnt(0)")
        a("s_mov_b64 exec, 1")
        a(f"s_mul_i32 s65, s2, 5\ns_add_u32 s65, s65, s3\ns_mul_i32 s65, s65, 48\ns_add_u32 s65, s65, {TSB}")
        a("v_mov_b32 v1, 0")
        for k in range(n):
            a(f"v_mov_b32 v2, s{80+2*k}")
            if lite and k not in (0, 4, 7): continue
            a(f"buffer_store_dword v2, v1, {S(SW)}, s65 offen offset:{4*k}")
        if not lite:
            a(f"v_mov_b32 v2, s{sCNT}\nbuffer_store_dword v2, v1, {S(SW)}, s65 offen offset:44")
            a("s_waitcnt vmcnt(0)")
    def pad(role):
        if not padto: return
        r, k = padstamp if padstamp is not None else ("S", 0)
        if r != role: return
        if padwg is not None: a(f"s_cmp_lg_u32 s2, {padwg}\ns_cbranch_scc1 L_end")
        if amp: a(f"s_waitcnt lgkmcnt(0)\ns_sub_u32 s65, s{80+2*k}, s80\ns_mul_i32 s65, s65, {amp - 1}\ns_add_u32 s{80+2*k}, s{80+2*k}, s65")
        a.label(f"L_pad{role}")
        a(f"s_sleep 1\ns_memrealtime s[98:99]\ns_waitcnt lgkmcnt(0)\ns_sub_u32 s98, s98, s{80+2*k}\ns_cmp_lt_i32 s98, {padto}\ns_cbranch_scc1 L_pad{role}")

    assert remap in (4, 5) and role == 3 and pat == 5 and (kb5, wb5, jb5) == ((15, 13), (11, 14), (12, 16))
    def decode(a):
        a(f"s_and_b32 s{sBH}, s2, 63\ns_lshr_b32 s{sJ}, s2, 6\ns_lshr_b32 s{sB}, s{sBH}, 4\ns_and_b32 s{sH}, s2, 15")
        a(f"s_lshl_b32 s2, s{sBH}, 2\ns_or_b32 s2, s2, s{sJ}\ns_and_b32 s{sIDX}, s2, 63")
        a(f"s_lshl_b32 s{sKG}, s{sH}, 1\ns_and_b32 s65, s{sJ}, 1\ns_or_b32 s{sKG}, s{sKG}, s65\ns_lshl_b32 s{sCG}, s{sB}, 1\ns_lshr_b32 s65, s{sJ}, 1\ns_or_b32 s{sCG}, s{sCG}, s65")
        a("v_and_b32 v0, 63, v0\nv_and_b32 v4, 15, v0\nv_lshrrev_b32 v5, 4, v0")
    a("s_load_dwordx2 s[28:29], s[0:1], 8")
    stamp(0)
    a("v_lshrrev_b32 v1, 6, v0\ns_cmpk_ge_u32 s2, 256\ns_cbranch_scc1 L_end", drain=False)
    if remap == 5: a("s_lshr_b32 s65, s2, 6\ns_xor_b32 s2, s2, s65")
    a("v_readfirstlane_b32 s3, v1\nv_and_b32 v85, 51, v0\nv_and_b32 v1, 12, v0")
    a("s_cmp_eq_u32 s3, 0\ns_cbranch_scc1 L_helper", drain=False)

    vKO, vVO, vSC, vMAX, vL, vC, vMC, vS = 1, 2, 3, 6, 7, 28, 29, 30
    vJ, vG = 4, 5
    MASK, OACC, BB, QF, DA, TMP, R = 8, 12, 20, 32, 64, 84, 96
    def ring(tile, u): return R + 32 * tile + 4 * u
    kb = kb5
    assert TMP + 1 == 85 and vKO == 1
    a(f"v_mul_u32_u24 v85, 20, v85\nv_mul_u32_u24 v1, 0x2400, v1\nv_and_b32 v85, 0xf0, v85\nv_and_b32 v1, 0xa000, v1\nv_or_b32 v1, v1, v85")
    a(f"s_lshr_b32 s65, s2, 6\ns_mulk_i32 s65, 9\ns_and_b32 s65, s65, 17\ns_lshl_b32 s65, s65, 12\ns_mul_i32 s66, s3, 5\ns_and_b32 s66, s66, 9\ns_lshl_b32 s66, s66, 11")
    a(f"s_and_b32 s{sKO}, s2, 63\ns_lshl_b32 s{sKO}, s{sKO}, 21\ns_or_b32 s65, s65, s66\ns_or_b32 s{sKO}, s{sKO}, s65")
    a(f"s_lshl_b32 s30, 1, 27\ns_mov_b32 s31, 0x20000")
    a("s_waitcnt lgkmcnt(0)")
    if st0: stamp(5)
    vm = []
    def issue(kind, reg, u, tagid):
        sr, vo, so = (SK, vKO, sKO) if kind == "K" else (SV, vVO, sVO)
        o = {0: 256 * (u & 1), 1: 256 * (u & 3), 2: 256 * u, 3: 256 * u, 4: 256 * (u & 1) + 512 * (u & 2), 5: 256 * u}[pat]
        off = f" offset:{o}" if o else ""
        a(f"buffer_load_dwordx4 {V4(reg)}, v{vo}, {S(sr)}, s{so} offen{off} {nt}")
        if pat == 0 and u & 1: a(f"s_add_u32 s{so}, s{so}, 8192")
        if pat == 1 and (u & 3) == 3: a(f"s_add_u32 s{so}, s{so}, 16384")
        if pat == 4 and (u & 3) == 3: a(f"s_xor_b32 s{so}, s{so}, 0x4000")
        if pat == 5 and u == 7: a(f"s_add_u32 s{so}, s{so}, 0x20000")
        if pat in (3, 4) and u == 7:
            a(f"s_xor_b32 s{so}, s{so}, 0x1000\ns_bitcmp1_b32 s{so}, 12\ns_cselect_b32 s65, 0, s{sM}\ns_add_u32 s65, s65, s{so}\ns_and_b32 s65, s65, 0x70000\ns_andn2_b32 s{so}, s{so}, 0x70000\ns_or_b32 s{so}, s{so}, s65")
        if pat == 2 and u == 7:
            a(f"s_bitcmp1_b32 s{so}, 11\ns_cselect_b32 s65, {65536 - 4096}, 0\ns_add_u32 s{so}, s{so}, s65\ns_add_u32 s{so}, s{so}, 2048")
        vm.append(tagid)
    def wait_for(tagid):
        if tagid not in vm: return
        n = len(vm) - 1 - vm.index(tagid)
        assert n < 64
        a(f"s_waitcnt vmcnt({n})")
    nload = [0]
    curW = [W]
    adapt = [False]; nlab = [0]
    ctl = dict(Wup=Wup, thup=thup, Wdn=Wdn, thdn=thdn)
    def throttle_issue(kind, reg, u):
        n = nload[0]
        if adapt[0]:
            nlab[0] += 1
            a(f"s_cbranch_scc1 L_w{nlab[0]}", drain=False)
            if ctl["Wdn"]:
                a(f"s_cbranch_vccz L_m{nlab[0]}", drain=False); a.hist[-1].states = 0
                wait_for(("s", n - ctl["Wdn"])); a.hist[-1].states = 0
                a.label(f"L_m{nlab[0]}", drain=False)
            wait_for(("s", n - curW[0]))
            a.hist[-1].states = 0
            a.label(f"L_w{nlab[0]}", drain=False)
            if th2 is not None:
                a(f"s_cbranch_vccnz L_x{nlab[0]}", drain=False)
                wait_for(("s", n - ctl["Wup"])); a.hist[-1].states = 0
                a.label(f"L_x{nlab[0]}", drain=False)
                wait_for(("s", n - ctl["Wup"] - 1))
            else: wait_for(("s", n - ctl["Wup"]))
        else: wait_for(("s", n - curW[0]))
        issue(kind, reg, u, ("s", n)); nload[0] += 1
    W0 = W0 or W
    curW[0] = W0
    for n in range(W0):
        throttle_issue("K", ring(n // 8, n % 8), n % 8)
    curW[0] = W
    a(f"s_load_dwordx16 s[4:19], s[0:1], 0\ns_load_dwordx8 s[20:27], s[0:1], 64\ns_mov_b32 s{sVO}, s{sKO}\ns_and_b32 s{sWv}, s3, 3")
    decode(a)
    if warm2:
        a("; a few waves read the code range so that later instruction fetches hit L2")
        a(f"s_and_b32 s65, s2, 0xe2\ns_lshl_b32 s65, s65, 2\ns_or_b32 s65, s65, s{sWv}\ns_cbranch_scc1 L_nowarm2", drain=False)
        a("s_getpc_b64 s[66:67]")
        a.label("L_pc", drain=False)
        a("v_lshlrev_b32 v2, 7, v0\nglobal_load_dword v31, v2, s[66:67]\nv_add_u32 v2, 0x2000, v2\nv_min_u32 v2, L_end-L_pc, v2")
        a("global_load_dword v31, v2, s[66:67]")
        a.label("L_nowarm2", drain=False)
    if warm and not warm2:
        a(f"s_cmp_lg_u32 s3, 1\ns_cbranch_scc1 L_nowarm")
        a(f"s_getpc_b64 s[66:67]\nv_lshlrev_b32 v{TMP+2}, 7, v0")
        a(f"global_load_dword v{TMP+3}, v{TMP+2}, s[66:67]")
        a.label("L_nowarm")
    def setup(a, srd):
        a(f"v_lshlrev_b32 v{vVO}, 4, v{vJ}\nv_bfe_u32 v{TMP}, v0, 4, 1\nv_lshl_add_u32 v{vVO}, v{TMP}, {kb[0]}, v{vVO}\nv_bfe_u32 v{TMP}, v0, 5, 1\nv_lshl_add_u32 v{vVO}, v{TMP}, {kb[1]}, v{vVO}")
        srd(SV, 8, 1 << 27); srd(SW, 26, WS_USED); srd(SC_, 22, 3584); srd(SD, 4, 3584)
        srd(SA, 12, 4096 * 896); srd(SB, 20, 1792 * 896)
        for k in range(32): a(f"v_mov_b32 v{QF+k}, 0")
        for k in range(8): a(f"v_mov_b32 v{OACC+k}, 0")
        a(f"v_mov_b32 v{vMAX}, 0xff800000\nv_mov_b32 v{vL}, 0\nv_mov_b32 v{vC}, {hex(f2u(math.log2(math.e) / 16))}")
        a(f"v_and_b32 v{TMP+4}, 1, v{vJ}\nv_lshlrev_b32 v{TMP+4}, 4, v{TMP+4}\nv_mov_b32 v{TMP+5}, 0xffff\nv_lshlrev_b32 v{TMP+4}, v{TMP+4}, v{TMP+5}")
        a(f"v_bfe_u32 v{TMP+5}, v{vJ}, 1, 2")
        for w in range(4):
            a(f"v_cmp_eq_u32 vcc, {w}, v{TMP+5}\nv_cndmask_b32 v{MASK+w}, 0, v{TMP+4}, vcc")
        a(f"s_lshl_b32 s65, s{sWv}, 12\ns_add_u32 s65, s65, {SC}\nv_lshl_add_u32 v{vSC}, v0, 2, s65")
    chunks = []
    def rec(t): chunks.append(t)
    def recsrd(r, ptr, size): rec(f"s_mov_b32 s{r}, s{ptr}\ns_mov_b32 s{r+1}, s{ptr+1}\ns_mov_b32 s{r+2}, {size}\ns_mov_b32 s{r+3}, 0x20000")
    setup(rec, recsrd)
    if not late:
        for t in chunks: a(t)
        chunks = []
    for n in range(W0, 8 * NP):
        if st0 and n == W0: stamp(3)
        throttle_issue("K", ring(n // 8, n % 8), n % 8)
        if st0 and n == W0: stamp(6)
        if st0 and n == W0 + 4: stamp(8)
        if st0 and n == W0 + 9: stamp(4)
        if n == 16: a("s_waitcnt lgkmcnt(0)")
        if n >= 16:
            cnt = 0
            while chunks and cnt < 6:
                t = chunks.pop(0); a(t); cnt += t.count("\n") + 1
    assert not chunks
    if st0:
        _st = stamp
        def stamp(k):
            if k in (1, 2, 7) or in_helper[0]: _st(k)
    stamp(1)
    a("s_barrier")
    stamp(2)
    for t in range(4):
        m = 0x000F000F << (4 * t)
        a(f"s_mov_b32 exec_lo, {hex(m)}\ns_mov_b32 exec_hi, {hex(m)}")
        for half in range(2):
            a(f"ds_read_b128 {V4(QF + 4 * (2 * t + half))}, v{TMP+1} offset:{QL + 256 * half}")
    a("s_mov_b64 exec, -1")
    a(f"v_mov_b32 v{TMP}, 0\nds_read_b64 {V2(TMP+2)}, v{TMP} offset:{TAGL}")
    a("s_waitcnt lgkmcnt(0)")
    a(f"v_readfirstlane_b32 s{sTAG}, v{TMP+2}\nv_readfirstlane_b32 s101, v{TMP+3}")

    def consK(reg, u, d):
        c = "0" if u == 0 else V4(d)
        a(f"v_mfma_f32_16x16x32_bf16 {V4(d)}, {V4(reg)}, {V4(QF + 4 * u)}, {c}")
    def extract(ds, off0):
        for k, d in enumerate(ds): a(f"v_mov_b32_dpp v{TMP+k}, v{d} quad_perm:[0,0,0,0] {FULL}")
        for c in range(1, 4):
            for k, d in enumerate(ds): a(f"v_add_f32_dpp v{TMP+k}, v{d+c}, v{TMP+k} quad_perm:[{c},{c},{c},{c}] {FULL}")
        for k, d in enumerate(ds): a(f"v_cvt_pk_bf16_f32 v{TMP+k}, v{TMP+k}, v{TMP+k}")
        for k, d in enumerate(ds): a(f"v_and_b32 v{TMP+k}, 0xffff0000, v{TMP+k}")
        for k, d in enumerate(ds):
            a(f"ds_write_b32 v{vSC}, v{TMP+k} offset:{off0 + 256 * k}")
            a(f"v_max_f32 v{vMAX}, v{vMAX}, v{TMP+k}")
        a(f"v_add_u32 v{vSC}, {256 * len(ds)}, v{vSC}")
    for u in range(8):
        consK(ring(0, u), u, DA)
        throttle_issue("K", ring(0, u), u)
        for T in range(1, NP): consK(ring(T, u), u, DA + 4 * T)
    extract([DA + 4 * T for T in range(NP)], 0)

    T0 = R + 32
    vX, vXO, vOPW, vMLW, vOPR, vZ, vL16, vST2, vTR, vTR2, vTRD, vTRD2, vHA, vAR, vAW, vWO, vWD = range(T0, T0 + 17)
    vML = T0 + 18
    G = T0 + 20
    GR = T0 + 36
    P1 = T0 + 40
    AH = T0 + 56
    AO = T0 + 64
    BW = T0 + 80
    BD = T0 + 96
    Y = T0 + 104
    E = T0 + 108
    def tail_addr():
        a(f"s_lshl_b32 s65, s{sWv}, 10\ns_add_u32 s65, s65, {OP}\nv_lshl_add_u32 v{vOPW}, v0, 4, s65")
        a(f"s_lshl_b32 s65, s{sWv}, 3\ns_add_u32 s65, s65, {ML}\nv_mov_b32 v{vMLW}, s65")
        a(f"s_lshl_b32 s65, s{sWv}, 8\ns_add_u32 s65, s65, {OP}\nv_lshl_add_u32 v{vOPR}, v0, 3, s65")
        a(f"v_mov_b32 v{vZ}, 0\nv_lshlrev_b32 v{vL16}, 4, v0\nv_mov_b32 v{GR+3}, s{sTAG}")
        a(f"s_lshl_b32 s70, s2, 11\ns_lshl_b32 s65, s{sWv}, 9\ns_add_u32 s70, s70, s65\ns_add_u32 s70, s70, {MB1}")
        a(f"s_lshl_b32 s71, s{sWv}, 17\ns_lshr_b32 s65, s{sKG}, 1\ns_lshl_b32 s65, s65, 13\ns_add_u32 s71, s71, s65")
        a(f"s_and_b32 s65, s{sKG}, 1\ns_lshl_b32 s65, s65, 10\ns_add_u32 s71, s71, s65\ns_add_u32 s71, s71, {MB1}\ns_add_u32 s74, s71, 4096")
        a(f"v_lshrrev_b32 v{E}, 3, v0\nv_and_b32 v{E+1}, 7, v0\nv_and_b32 v{E+2}, 2, v{E}\nv_xor_b32 v{E+1}, v{E+1}, v{E+2}\nv_lshlrev_b32 v{E+1}, 4, v{E+1}")
        a(f"v_and_b32 v{E+2}, 3, v{E}\nv_lshlrev_b32 v{E+2}, 3, v{E+2}\nv_lshrrev_b32 v{E+3}, 2, v{E}\nv_add_u32 v{E+2}, v{E+2}, v{E+3}")
        a(f"v_mul_u32_u24 v{vWO}, 896, v{E+2}\nv_mul_u32_u24 v{vWD}, 896, v{E}")
        a(f"s_and_b32 s65, s{sWv}, 1\ns_lshl_b32 s65, s65, 6\nv_xor_b32 v{E+1}, s65, v{E+1}")
        a(f"v_add_u32 v{vWO}, v{vWO}, v{E+1}\nv_add_u32 v{vWD}, v{vWD}, v{E+1}")
        a(f"s_lshr_b32 s66, s{sKG}, 1\ns_lshl_b32 s66, s66, 8\ns_and_b32 s65, s{sKG}, 1\ns_lshl_b32 s65, s65, 6\ns_add_u32 s66, s66, s65")
        a(f"s_lshl_b32 s65, s{sWv}, 1\ns_add_u32 s66, s66, s65\ns_mul_i32 s66, s66, 896\ns_lshl_b32 s65, s{sCG}, 7\ns_add_u32 s66, s66, s65")
        a(f"s_lshl_b32 s67, s{sKG}, 6\ns_lshl_b32 s68, s{sWv}, 3\ns_add_u32 s67, s67, s68\ns_mul_i32 s67, s67, 896\ns_add_u32 s67, s67, s65")
        a(f"s_lshl_b32 s75, s{sWv}, 10")
        if fakeg:
            a(f"v_mul_u32_u24 v{vWO}, 1792, v{vG}\nv_lshl_add_u32 v{vWO}, v{vJ}, 4, v{vWO}\nv_mov_b32 v{vWD}, v{vWO}")
            a(f"s_lshl_b32 s66, s{sKG}, 2\ns_add_u32 s66, s66, s{sWv}\ns_mul_i32 s67, s66, {8 * 1792}\ns_mul_i32 s66, s66, {16 * 1792}\ns_lshl_b32 s65, s{sCG}, 8\ns_add_u32 s66, s66, s65\ns_add_u32 s67, s67, s65")
        if pf:
            a(f"s_sub_u32 s19, s66, s65")
            a(f"s_add_u32 s76, s{sCG}, 1\ns_cmp_ge_u32 s76, 7\ns_cselect_b32 s76, 0, s76\ns_add_u32 s77, s{sCG}, 6\ns_cmp_ge_u32 s77, 7\ns_cselect_b32 s65, 7, 0\ns_sub_u32 s77, s77, s65")
            a(f"v_bfe_u32 v{E}, v0, 3, 1\nv_lshlrev_b32 v{E}, 7, v{E}\nv_bfe_u32 v{E+1}, v0, 4, 1\nv_lshl_add_u32 v{E}, v{E+1}, 5, v{E}")
            a(f"v_and_b32 v{E+1}, 3, v0\nv_lshl_add_u32 v{E}, v{E+1}, 3, v{E}\nv_bfe_u32 v{E+1}, v0, 2, 1\nv_add_u32 v{E}, v{E}, v{E+1}\nv_mul_u32_u24 v{vTR2}, 896, v{E}")
            a(f"v_mov_b32 v{E}, s76\nv_mov_b32 v{E+1}, s77\nv_cmp_gt_u32 vcc, 32, v0\nv_cndmask_b32 v{E}, v{E+1}, v{E}, vcc\nv_lshl_add_u32 v{vTR2}, v{E}, 7, v{vTR2}")
        a(f"v_lshrrev_b32 v{E}, 2, v{vJ}\nv_bfe_u32 v{E+1}, v{vJ}, 1, 1\ns_lshl_b32 s65, s{sWv}, 1\nv_add_u32 v{E+1}, s65, v{E+1}")
        a(f"v_and_b32 v{E+2}, 2, v{E}\nv_xor_b32 v{E+1}, v{E+1}, v{E+2}")
        a(f"v_and_b32 v{E+3}, 1, v{vJ}\nv_lshlrev_b32 v{E+3}, 3, v{E+3}\nv_lshl_add_u32 v{E+3}, v{E}, 7, v{E+3}")
        a(f"v_and_b32 v{E+2}, 1, v{vG}\nv_lshlrev_b32 v{E+2}, 2, v{E+2}\nv_xor_b32 v{E+4}, v{E+1}, v{E+2}")
        a(f"v_lshl_add_u32 v{vTR}, v{E+4}, 4, v{E+3}\nv_lshl_add_u32 v{vTR}, v{vG}, 10, v{vTR}")
        a(f"v_mul_u32_u24 v{vHA}, {HROW}, v{E}\nv_lshl_add_u32 v{vHA}, v{vG}, 4, v{vHA}")
        a(f"v_mul_u32_u24 v{vAR}, {AROW}, v{E}\nv_lshl_add_u32 v{vAR}, v{vG}, 4, v{vAR}")
        a(f"s_mul_i32 s65, s{sWv}, {AROW}\ns_add_u32 s65, s65, {AIMG}\nv_lshl_add_u32 v{vAW}, v0, 2, s65")
        a(f"v_lshlrev_b32 v{vST2}, 3, v{vJ}\nv_lshl_add_u32 v{vST2}, v{vG}, 12, v{vST2}")
        a(f"s_lshl_b32 s68, s{sCG}, 2\ns_add_u32 s68, s68, s{sWv}\ns_lshl_b32 s68, s68, 14\ns_lshl_b32 s65, s{sKG}, 7\ns_add_u32 s68, s68, s65\ns_add_u32 s68, s68, {MB2}")
        if pol is None: a(f"s_mov_b32 s100, s{sKG}")
        else:
            a(f"s_and_b32 s100, s{sKG}, 0x11\ns_and_b32 s65, s{sKG}, 6\ns_lshl_b32 s65, s65, 1\ns_or_b32 s100, s100, s65\ns_bfe_u32 s65, s{sKG}, 0x10003")
            if pol: a("s_xor_b32 s65, s65, 1")
            a("s_lshl_b32 s65, s65, 1\ns_or_b32 s100, s100, s65")
        a(f"s_and_b32 s78, s100, 0xfc\ns_add_u32 s78, s78, s{sWv}\ns_lshl_b32 s69, s78, 4\ns_lshl_b32 s78, s78, 2\ns_and_b32 s65, s100, 3\ns_add_u32 s78, s78, s65")
        a(f"s_lshl_b32 s78, s78, 12\ns_add_u32 s78, s78, {MB2}\ns_mul_i32 s65, s65, 448\ns_add_u32 s69, s69, s65\ns_lshl_b32 s69, s69, 1")
        a(f"v_and_b32 v{E}, 7, v0\nv_and_b32 v{E+1}, 1, v{vG}\nv_lshlrev_b32 v{vXO}, 2, v{E}\nv_lshl_add_u32 v{vXO}, v{E+1}, 1, v{vXO}")
    tail_addr()
    if tlb:
        a("s_cmp_lg_u32 s3, 1\ns_cbranch_scc1 L_notlb")
        a("s_mov_b64 exec, 1")
        if tlb & 1: a(f"buffer_load_dword v{E+7}, v{vZ}, {S(SV)}, s{sVO} offen {nt}")
        if tlb & 2:
            a(f"buffer_load_dword v{E+7}, v{vZ}, {S(SA)}, s66 offen {nt}")
            a(f"buffer_load_dword v{E+7}, v{vZ}, {S(SB)}, s67 offen {nt}")
        a("s_mov_b64 exec, -1")
        a.label("L_notlb")

    cw = [wos]
    def wo_dma(step):
        if nowo: return
        for c in range(6):
            if cw[0][c] != step: continue
            if c >= 2:
                a(f"s_add_u32 s65, s66, {(128 * (c & 1) + 32 * ((c - 2) >> 1)) * 896 if not fakeg else (c - 2) * 4 * 1792}\ns_add_u32 m0, s75, {WL1 + 4096 * (c - 2)}")
                a(f"buffer_load_dwordx4 v{vWO}, {S(SA)}, s65 offen {wnt} lds"); vm.append(("wo", c))
            else:
                a(f"s_add_u32 s65, s67, {32 * 896 * c if not fakeg else 4 * 1792 * c}\ns_add_u32 m0, s75, {WL2 + 4096 * c}")
                a(f"buffer_load_dwordx4 v{vWD}, {S(SB)}, s65 offen {wnt} lds"); vm.append(("wd", c))
        if pf and step == pfs:
            if pfth is not None: a(f"s_cmp_gt_i32 s17, {pfth}\ns_cselect_b32 s19, 0x40000000, s19")
            if pf == 1: a("s_mov_b32 exec_hi, 0")
            a(f"buffer_load_dword v{vTRD}, v{vTR2}, {S(SA)}, s19 offen {pfnt}"); vm.append("pf")
            if pf == 1: a("s_mov_b32 exec_hi, -1")
    vPG, vPR, vPA = E + 8, E + 9, E + 10
    sPS, sPL, sPT = 12, 13, 14
    if fb:
        a(f"s_add_u32 s65, s{sWv}, s{sJ}\ns_and_b32 s65, s65, 3\ns_lshl_b32 s{sPL}, s{sH}, 2\ns_add_u32 s{sPL}, s{sPL}, s65\ns_lshl_b32 s{sPL}, s{sPL}, 7\ns_add_u32 s{sPL}, s{sPL}, {PMB}")
        a(f"s_cmp_lg_u32 s101, 0\ns_cselect_b32 s{sPL}, 0x40000000, s{sPL}\ns_cselect_b32 s{sPT}, 8, 0\ns_cselect_b32 s16, 0, 16")
        a(f"s_lshl_b32 s65, s{sB}, 2\ns_add_u32 s65, s65, s{sJ}\ns_lshl_b32 s65, s65, 2\ns_add_u32 s{sPS}, s{sPL}, s65")
        a(f"s_lshl_b32 s65, s{sWv}, 2\ns_add_u32 s65, s65, {PGL}\nv_mov_b32 v{vPA+1}, s65")
        a(f"v_mov_b32 v{vPG}, 0\nv_bfe_i32 v{vPR}, v0, 0, 1\nv_lshlrev_b32 v{vPA}, 2, v0")
    def flags(tu, td):
        if th2 is not None: a(f"s_sub_u32 s65, s17, {td}\ns_cmp_gt_u32 s65, {th2 - td}\ns_cselect_b64 vcc, -1, 0")
        elif ctl["Wdn"]: a(f"s_cmp_lt_i32 s17, {td}\ns_cselect_b64 vcc, -1, 0")
        a(f"s_cmp_gt_i32 s17, {tu}")
    def after(u):
        if fb and soft and u == softu: flags(ctl['thup'], ctl['thdn'])
    def progress():
        if not fb: return
        if gfb: a(f"v_readlane_b32 s15, v{vPR}, 16")
        for sh in (8, 4, 2, 1): a(f"v_add_u32_dpp v{vPR}, v{vPR}, v{vPR} row_ror:{sh} {FULL}")
        a(f"v_add_u32 v{vPG}, 1, v{vPG}\nv_readfirstlane_b32 s65, v{vPR}")
        if gfb: a(f"s_add_u32 s65, s65, s15")
        a("s_mov_b64 exec, 1")
        a(f"buffer_store_dword v{vPG}, v{vZ}, {S(SW)}, s{sPS} offen"); vm.append(("ps", nload[0]))
        if gfb >= 2: a(f"ds_write_b32 v{vPA+1}, v{vPG}")
        a(f"s_mov_b64 exec, {'0x1ffff' if gfb else '0xffff'}")
        a(f"buffer_load_dword v{vPR}, v{vPA}, {S(SW)}, s{sPL} offen sc1"); vm.append(("pl", nload[0]))
        a("s_mov_b64 exec, -1")
        a(f"s_sub_u32 s17, s65, s{sPT}\ns_add_u32 s{sPT}, s{sPT}, s16")
        flags(*(soft or (ctl['thup'], ctl['thdn'])))
        adapt[0] = True
    def iterK(nextkind):
        progress()
        for u in range(8):
            consK(ring(0, u), u, DA)
            throttle_issue(nextkind, ring(0, u), u)
            after(u)
            if nextkind == "V" and u == 0 and -2 in wos:
                a("s_cselect_b32 s18, 1, 0")
                a(f"s_cmp_eq_u32 s{sCG}, 7\ns_cselect_b32 s66, 0x40000000, s66\ns_cselect_b32 s67, 0x40000000, s67")
                wo_dma(-2)
                a("s_cmp_lg_u32 s18, 0")
        extract([DA], 0)
    a("; K loop")
    a(f"s_mov_b32 s{sCNT}, {15 - NP}")
    a.label("L_kk")
    iterK("K")
    a(f"s_sub_u32 s{sCNT}, s{sCNT}, 1\ns_cmp_lg_u32 s{sCNT}, 0\ns_cbranch_scc1 L_kk")
    iterK("V")
    compute_pre = lambda: (a(f"v_not_b32 v{P1+3}, v{GR+3}\nv_mov_b32 v{P1}, 0\nv_mov_b32 v{P1+1}, 0\nv_mov_b32 v{P1+2}, 0\ns_mov_b32 exec_hi, 0"),
                           a(f"buffer_store_dwordx4 {V4(P1)}, v{vL16}, {S(SW)}, s70 offen\ns_mov_b32 exec_hi, -1"))
    if pre1 == 1: compute_pre()
    stamp(3)
    a(f"v_subrev_u32 v{vSC}, 4096, v{vSC}")
    a(f"ds_read_b32 v{vS}, v{vSC}")
    a(f"v_max_f32_dpp v{vMAX}, v{vMAX}, v{vMAX} row_ror:4 {FULL}")
    a(f"v_max_f32_dpp v{vMAX}, v{vMAX}, v{vMAX} row_ror:8 {FULL}")
    a(f"v_max_f32_dpp v{vMAX}, v{vMAX}, v{vMAX} row_bcast:15 row_mask:0xa bank_mask:0xf")
    a(f"v_max_f32_dpp v{vMAX}, v{vMAX}, v{vMAX} row_bcast:31 row_mask:0xc bank_mask:0xf")
    a(f"v_readlane_b32 s65, v{vMAX}, 63")
    a(f"v_mov_b32 v{vMC}, s65")
    vP = TMP
    def ld1(k): a(f"buffer_load_dwordx4 {V4(P1+4*k)}, v{vL16}, {S(SW)}, s{71 if k < 2 else 74} offen{' offset:2048' if k & 1 else ''} sc1")
    def last_extra():
        a(f"s_cmp_eq_u32 s{sCG}, 7\ns_cselect_b32 s66, 0x40000000, s66\ns_cselect_b32 s67, 0x40000000, s67\ns_cselect_b32 s69, s69, 0x40000000")
        wo_dma(-1)
        a(f"buffer_load_ushort v{vX}, v{vXO}, {S(SD)}, s69 offen"); vm.append("x")
        if touch:
            a("; (value unused: address translation of d_out ahead of the final store)")
            a(f"buffer_load_ushort v{E+7}, v{vXO}, {S(SC_)}, s69 offen"); vm.append("o")
        a(f"v_add_f32_dpp v{vL}, v{vL}, v{vL} row_ror:4 {FULL}")
        a(f"v_add_f32_dpp v{vL}, v{vL}, v{vL} row_ror:8 {FULL}")
        a(f"v_add_f32_dpp v{vL}, v{vL}, v{vL} row_bcast:15 row_mask:0xa bank_mask:0xf")
        a(f"v_add_f32_dpp v{vL}, v{vL}, v{vL} row_bcast:31 row_mask:0xc bank_mask:0xf")
        a(f"v_mov_b32 v{vML}, v{vMC}\nv_mov_b32 v{vML+1}, v{vL}")
        a("s_mov_b32 exec_lo, 0\ns_mov_b32 exec_hi, 0x80000000")
        a(f"ds_write_b64 v{vMLW}, {V2(vML)}")
        a("s_mov_b64 exec, -1")
        if hstep == -1: hoisted()
    def hoisted():
        if hoist:
            a("s_waitcnt lgkmcnt(0)\ns_barrier")
            if early1 == 2:
                for k in range(4): ld1(k); vm.append(("p1", k))
            a(f"ds_read_b128 {V4(G)}, v{vZ} offset:{ML}\nds_read_b128 {V4(G+4)}, v{vZ} offset:{ML+16}\ns_waitcnt lgkmcnt(0)")
            if hb:
                a(f"ds_read_b128 {V4(AH)}, v{vHA} offset:{HIMG}\nds_read_b128 {V4(AH+4)}, v{vHA} offset:{HIMG+64}")
                a(f"ds_read_b64_tr_b16 {V2(BD)}, v{vTR} offset:{WL2}\nds_read_b64_tr_b16 {V2(BD+2)}, v{vTR} offset:{WL2+512}")
                a(f"ds_read_b64_tr_b16 {V2(BD+4)}, v{vTR} offset:{WL2+4096}\nds_read_b64_tr_b16 {V2(BD+6)}, v{vTR} offset:{WL2+4096+512}")
                if hb == 1:
                    for k in range(4): a(f"ds_read_b64_tr_b16 {V2(BW+4*k)}, v{vTR} offset:{WL1+4096*k}\nds_read_b64_tr_b16 {V2(BW+4*k+2)}, v{vTR} offset:{WL1+4096*k+512}")
            weights()
            if hb:
                a("s_waitcnt lgkmcnt(0)")
                a(f"v_mfma_f32_16x16x32_bf16 {V4(Y)}, {V4(AH)}, {V4(BD)}, 0")
                a(f"v_mfma_f32_16x16x32_bf16 {V4(Y)}, {V4(AH+4)}, {V4(BD+4)}, {V4(Y)}")
    def weights():
        ms, ls = [G, G+2, G+4, G+6], [G+1, G+3, G+5, G+7]
        a(f"v_max3_f32 v{E+4}, v{ms[0]}, v{ms[1]}, v{ms[2]}\nv_max_f32 v{E+4}, v{E+4}, v{ms[3]}")
        for k in range(4): a(f"v_sub_f32 v{ms[k]}, v{ms[k]}, v{E+4}")
        for k in range(4): a(f"v_mul_f32 v{ms[k]}, v{ms[k]}, v{vC}")
        for k in range(4): a(f"v_exp_f32 v{ms[k]}, v{ms[k]}")
        a(f"v_mul_f32 v{E+5}, v{ms[0]}, v{ls[0]}")
        for k in range(1, 4): a(f"v_fmac_f32 v{E+5}, v{ms[k]}, v{ls[k]}")
        a(f"v_rcp_f32 v{E+6}, v{E+5}\nv_log_f32 v{E+5}, v{E+5}")
        for k in range(4): a(f"v_mul_f32 v{ms[k]}, v{ms[k]}, v{E+6}")
        a(f"v_fma_f32 v{GR+2}, v{E+4}, v{vC}, v{E+5}")
    srcV = [None]
    def iterV(last, bu=0):
        a("s_waitcnt lgkmcnt(0)")
        a(f"v_sub_f32 v{vP}, v{vS}, v{vMC}\nv_mul_f32 v{vP}, v{vP}, v{vC}")
        a(f"v_exp_f32 v{vP}, v{vP}")
        if not last:
            a(f"v_add_u32 v{vSC}, 256, v{vSC}\nds_read_b32 v{vS}, v{vSC}")
        a(f"v_add_f32 v{vL}, v{vL}, v{vP}")
        a(f"v_cvt_pk_bf16_f32 v{vP}, v{vP}, v{vP}")
        if last: last_extra()
        elif not bu: progress()
        base = nload[0] - 8
        if bu:
            adapt[0] = False; curW[0] = bu
            for u in range(8): throttle_issue("V", QF + 4 * u, u)
        for u in range(8):
            t, half = u >> 1, u & 1
            b = BB + 4 * (t & 1)
            if half == 0:
                for w in range(4): a(f"v_and_b32_dpp v{b+w}, v{vP}, v{MASK+w} row_newbcast:{4*t} {FULL}")
            if last or bu: wait_for(("s", base + u))
            a(f"v_mfma_f32_16x16x32_bf16 {V4(OACC + 4 * half)}, {V4(QF + 4 * u if (last and burst) else ring(0, u))}, {V4(b)}, {V4(OACC + 4 * half)}")
            if bu: pass
            elif not last: throttle_issue("V", ring(0, u), u); after(u)
            elif u < 7:
                wo_dma(u)
                if u == hstep: hoisted()
    a("; V loop")
    a(f"s_mov_b32 s{sCNT}, {15 - nend - (1 if burst else 0)}")
    a.label("L_vv")
    iterV(False)
    a(f"s_sub_u32 s{sCNT}, s{sCNT}, 1\ns_cmp_lg_u32 s{sCNT}, 0\ns_cbranch_scc1 L_vv")
    if nend:
        if pre1 == 2: compute_pre()
        curW[0] = Wend or W
        ctl.update(endp or {})
        a(f"s_mov_b32 s{sCNT}, {nend}")
        a.label("L_vv2")
        iterV(False)
        a(f"s_sub_u32 s{sCNT}, s{sCNT}, 1\ns_cmp_lg_u32 s{sCNT}, 0\ns_cbranch_scc1 L_vv2")
    if burst: iterV(False, burst)
    a.label("L_tail", drain=False)
    if stL: stamp(3)
    def final_iter():
        iterV(True)
        stamp(4)
        for r in range(4): a(f"v_mov_b32_dpp v{OACC+r}, v{OACC+4+r} {IDP} row_mask:0xf bank_mask:0xc")
        a(f"ds_write_b128 v{vOPW}, {V4(OACC)}")
        wo_dma(7)
    if thw is not None:
        a(f"v_readlane_b32 s15, v{vPR}, 16")
        for sh in (8, 4, 2, 1): a(f"v_add_u32_dpp v{vPR}, v{vPR}, v{vPR} row_ror:{sh} {FULL}")
        a(f"v_readfirstlane_b32 s65, v{vPR}\ns_add_u32 s65, s65, s15\ns_sub_u32 s17, s65, s{sPT}")
        a(f"s_cmp_gt_i32 s17, {thw}\ns_cbranch_scc1 L_lastE")
        sv = list(vm)
        final_iter()
        a("s_branch L_lastJ")
        a.label("L_lastE")
        vm[:] = sv; cw[0] = (-1,) * 6
        final_iter()
        a.label("L_lastJ")
    else: final_iter()
    a("s_waitcnt lgkmcnt(0)")
    a("s_barrier")
    a("s_mov_b32 exec_hi, 0")
    if not hoist: a(f"ds_read_b128 {V4(G)}, v{vZ} offset:{ML}\nds_read_b128 {V4(G+4)}, v{vZ} offset:{ML+16}")
    for w in range(4): a(f"ds_read_b64 {V2(G+8+2*w)}, v{vOPR} offset:{1024*w}")
    if not hoist:
        a("s_waitcnt lgkmcnt(4)")
        weights()
    ms = [G, G+2, G+4, G+6]
    a("s_cmp_lg_u32 s101, 0")
    a("s_waitcnt lgkmcnt(3)")
    a(f"v_pk_mul_f32 {V2(GR)}, {V2(G+8)}, {V2(ms[0])} op_sel_hi:[1,0]")
    for k in range(1, 4):
        a(f"s_waitcnt lgkmcnt({3-k})")
        a(f"v_pk_fma_f32 {V2(GR)}, {V2(G+8+2*k)}, {V2(ms[k])}, {V2(GR)} op_sel_hi:[1,0,1]")
    if fast:
        a("s_cbranch_scc1 L_st1far", drain=False)
        a(f"buffer_store_dwordx4 {V4(GR)}, v{vL16}, {S(SW)}, s70 offen")
        a("s_branch L_st1done", drain=False)
        a.label("L_st1far", drain=False)
    a(f"buffer_store_dwordx4 {V4(GR)}, v{vL16}, {S(SW)}, s70 offen sc1")
    if fast: a.label("L_st1done", drain=False)
    def st1_global():
        a("s_mov_b32 exec_hi, 0")
        a(f"buffer_store_dwordx4 {V4(GR)}, v{vL16}, {S(SW)}, s70 offen sc1")
        a("s_mov_b32 exec_hi, -1")
    a("s_mov_b64 exec, -1")
    stamp(8)
    a(f"s_mov_b32 s{sCNT}, {spin}")
    a(f"s_cmp_eq_u32 s{sCG}, 7\ns_cbranch_scc1 L_reduce", drain=False)
    if not early1:
        if pw is not None: a(f"s_waitcnt vmcnt({pw})")
        if stD: stamp(3)
        wo_dma(8)
        if sl1: a(f"s_sleep {sl1}")
        for k in range(4): ld1(k)
        wo_dma(9)
    if not hb: a(f"ds_read_b128 {V4(AH)}, v{vHA} offset:{HIMG}\nds_read_b128 {V4(AH+4)}, v{vHA} offset:{HIMG+64}")
    if early1: a("s_waitcnt vmcnt(1)\ns_branch L_p1c", drain=False)
    if 9 in wos: a(f"s_waitcnt vmcnt({list(wos).count(9)})\ns_branch L_p1c", drain=False)
    if b2b:
        a("s_waitcnt vmcnt(0)\ns_barrier")
        a(f"ds_read_b64_tr_b16 {V2(BD)}, v{vTR} offset:{WL2}\nds_read_b64_tr_b16 {V2(BD+2)}, v{vTR} offset:{WL2+512}")
        a(f"ds_read_b64_tr_b16 {V2(BD+4)}, v{vTR} offset:{WL2+4096}\nds_read_b64_tr_b16 {V2(BD+6)}, v{vTR} offset:{WL2+4096+512}")
        for k in range(4): a(f"ds_read_b64_tr_b16 {V2(BW+4*k)}, v{vTR} offset:{WL1+4096*k}\nds_read_b64_tr_b16 {V2(BW+4*k+2)}, v{vTR} offset:{WL1+4096*k+512}")
    a.label("L_p1", drain=False)
    a("s_waitcnt vmcnt(0)")
    a.label("L_p1c", drain=False)
    MK = [4, 6, 8, 10]
    for k in range(4): a(f"v_cmp_ne_u32 s[{MK[k]}:{MK[k]+1}], s{sTAG}, v{P1+4*k+3}")
    a(f"s_or_b64 s[76:77], s[4:5], s[6:7]\ns_or_b64 vcc, s[8:9], s[10:11]\ns_or_b64 s[76:77], s[76:77], vcc")
    a("s_cbranch_scc0 L_p1ok", drain=False)
    if sleep1: a(f"s_sleep {sleep1}")
    for k in range(4):
        a(f"s_cmp_eq_u64 s[{MK[k]}:{MK[k]+1}], 0\ns_cbranch_scc1 L_p1s{k}", drain=False)
        ld1(k)
        a.label(f"L_p1s{k}", drain=False)
    a(f"s_sub_u32 s{sCNT}, s{sCNT}, 1\ns_cbranch_scc0 L_p1", drain=False)
    a.label("L_p1ok", drain=False)
    stamp(5)
    lam = [P1+2, P1+6, P1+10, P1+14]
    a(f"v_max3_f32 v{E+4}, v{lam[0]}, v{lam[1]}, v{lam[2]}\nv_max_f32 v{E+4}, v{E+4}, v{lam[3]}")
    for k in range(4): a(f"v_sub_f32 v{lam[k]}, v{lam[k]}, v{E+4}")
    for k in range(4): a(f"v_exp_f32 v{lam[k]}, v{lam[k]}")
    a(f"v_add_f32 v{E+5}, v{lam[0]}, v{lam[1]}\nv_pk_mul_f32 {V2(G)}, {V2(P1)}, {V2(lam[0])} op_sel_hi:[1,0]\nv_add_f32 v{E+6}, v{lam[2]}, v{lam[3]}")
    a(f"v_pk_fma_f32 {V2(G)}, {V2(P1+4)}, {V2(lam[1])}, {V2(G)} op_sel_hi:[1,0,1]\nv_add_f32 v{E+6}, v{E+5}, v{E+6}")
    a(f"v_pk_fma_f32 {V2(G)}, {V2(P1+8)}, {V2(lam[2])}, {V2(G)} op_sel_hi:[1,0,1]\nv_rcp_f32 v{E+6}, v{E+6}")
    a(f"v_pk_fma_f32 {V2(G)}, {V2(P1+12)}, {V2(lam[3])}, {V2(G)} op_sel_hi:[1,0,1]")
    a(f"v_pk_mul_f32 {V2(G)}, {V2(G)}, {V2(E+6)} op_sel_hi:[1,0]")
    a(f"v_cvt_pk_bf16_f32 v{G}, v{G}, v{G+1}")
    if b2b:
        Y2 = G + 4
        a(f"ds_write_b32 v{vAW}, v{G}")
        a("s_waitcnt lgkmcnt(0)")
        a("s_barrier")
        for k in range(4): a(f"ds_read_b128 {V4(AO+4*k)}, v{vAR} offset:{AIMG+64*k}")
        a(f"v_mfma_f32_16x16x32_bf16 {V4(Y)}, {V4(AH)}, {V4(BD)}, 0")
        a(f"v_mfma_f32_16x16x32_bf16 {V4(Y2)}, {V4(AH+4)}, {V4(BD+4)}, 0")
        for k in range(4):
            a(f"s_waitcnt lgkmcnt({3 - k})")
            y = Y if k & 1 == 0 else Y2
            a(f"v_mfma_f32_16x16x32_bf16 {V4(y)}, {V4(AO+4*k)}, {V4(BW+4*k)}, {V4(y)}")
        a(f"v_add_f32 v{GR+2}, v{Y}, v{Y2}")
        Y = GR + 2
    else:
        a(f"ds_write_b32 v{vAW}, v{G}")
        a("s_waitcnt vmcnt(0) lgkmcnt(0)")
        a("s_barrier")
        if not hb:
            a(f"ds_read_b64_tr_b16 {V2(BD)}, v{vTR} offset:{WL2}\nds_read_b64_tr_b16 {V2(BD+2)}, v{vTR} offset:{WL2+512}")
            a(f"ds_read_b64_tr_b16 {V2(BD+4)}, v{vTR} offset:{WL2+4096}\nds_read_b64_tr_b16 {V2(BD+6)}, v{vTR} offset:{WL2+4096+512}")
        for k in range(4):
            a(f"ds_read_b128 {V4(AO+4*k)}, v{vAR} offset:{AIMG+64*k}")
            if hb != 1: a(f"ds_read_b64_tr_b16 {V2(BW+4*k)}, v{vTR} offset:{WL1+4096*k}\nds_read_b64_tr_b16 {V2(BW+4*k+2)}, v{vTR} offset:{WL1+4096*k+512}")
        if not hb:
            a("s_waitcnt lgkmcnt(12)")
            a(f"v_mfma_f32_16x16x32_bf16 {V4(Y)}, {V4(AH)}, {V4(BD)}, 0")
            a(f"v_mfma_f32_16x16x32_bf16 {V4(Y)}, {V4(AH+4)}, {V4(BD+4)}, {V4(Y)}")
        for k in range(4):
            a(f"s_waitcnt lgkmcnt({(3 - k) * (1 if hb == 1 else 3)})")
            a(f"v_mfma_f32_16x16x32_bf16 {V4(Y)}, {V4(AO+4*k)}, {V4(BW+4*k)}, {V4(Y)}")
        a(f"v_mov_b32 v{Y+1}, v{GR+3}")
    if st4:
        a(f"v_mov_b32_dpp v{Y+2}, v{Y} quad_perm:[1,1,3,3] {FULL}\nv_mov_b32 v{Y+3}, v{GR+3}")
        a("s_mov_b32 exec_lo, 0x55555555\ns_mov_b32 exec_hi, 0x55555555")
        a(f"buffer_store_dwordx4 {V4(Y)}, v{vST2}, {S(SW)}, s68 offen sc1")
        a("s_mov_b64 exec, -1")
    elif not nost2: a(f"buffer_store_dwordx2 {V2(Y)}, v{vST2}, {S(SW)}, s68 offen sc1")
    if fast and clean: st1_global()
    a("s_branch L_sdone")
    a.label("L_reduce")
    if fast and clean:
        a("s_sleep 12")
        st1_global()
    a(f"s_cmp_ge_u32 s100, 28\ns_cbranch_scc1 L_sdone")
    if nored: a("s_branch L_sdone")
    SETS = [R + 16 * d for d in range(2)] + [QF, QF + 16]
    def ld2(d):
        for k in range(4): a(f"buffer_load_dwordx4 {V4(SETS[d]+4*k)}, v{vL16}, {S(SW)}, s78 offen offset:{1024*k} sc1")
    a(f"s_waitcnt vmcnt(0)\nv_lshlrev_b32 v{vX}, 16, v{vX}")
    for d in range(D2 - 1):
        ld2(d)
        if stag2: a(f"s_sleep {stag2}")
    a.label("L_p2")
    for d in range(D2):
        ld2((d + D2 - 1) % D2)
        a(f"s_waitcnt vmcnt({4 * (D2 - 1)})")
        q = SETS[d]
        a(f"v_xor_b32 v{E}, v{q+1}, v{GR+3}\nv_xor_b32 v{E+1}, v{q+3}, v{GR+3}")
        for k in range(1, 4): a(f"v_bitop3_b32 v{E}, v{q+4*k+1}, v{GR+3}, v{E} bitop3:0xbe\nv_bitop3_b32 v{E+1}, v{q+4*k+3}, v{GR+3}, v{E+1} bitop3:0xbe")
        a(f"v_or_b32 v{E}, v{E}, v{E+1}\nv_add_f32 v{P1}, v{q}, v{q+4}\nv_add_f32 v{P1+2}, v{q+2}, v{q+6}\nv_cmp_ne_u32 vcc, 0, v{E}")
        a(f"v_add_f32 v{P1+8}, v{q+8}, v{q+12}\nv_add_f32 v{P1+10}, v{q+10}, v{q+14}")
        a("s_cbranch_vccz L_p2ok", drain=False)
    a(f"s_sub_u32 s{sCNT}, s{sCNT}, 1\ns_cbranch_scc0 L_p2", drain=False)
    a.label("L_p2ok", drain=False)
    stamp(6)
    a(f"v_add_f32 v{P1}, v{P1}, v{P1+8}\nv_add_f32 v{P1+2}, v{P1+2}, v{P1+10}")
    a(f"v_permlane16_swap_b32 v{P1}, v{P1+2}")
    a(f"v_add_f32 v{P1}, v{P1}, v{P1+2}")
    a(f"v_add_f32_dpp v{P1}, v{P1}, v{P1} row_ror:8 {FULL}")
    a(f"v_mov_b32 v{P1+2}, v{P1}")
    a(f"v_permlane32_swap_b32 v{P1}, v{P1+2}")
    a(f"v_add_f32 v{P1}, v{P1}, v{P1+2}\nv_add_f32 v{P1}, v{P1}, v{vX}")
    a(f"v_cvt_pk_bf16_f32 v{P1}, v{P1}, v{P1}")
    a(f"s_mov_b32 exec_hi, 0\ns_mov_b32 exec_lo, 0x00ff00ff")
    a(f"buffer_store_short v{P1}, v{vXO}, {S(SC_)}, s69 offen {osc}")
    a(f"s_or_b32 s65, s100, s{sWv}\ns_cmp_lg_u32 s65, 0\ns_cbranch_scc1 L_sdone")
    a("s_mov_b64 exec, 1")
    a(f"buffer_store_dword v{GR+3}, v{vZ}, {S(SW)}, 0 offen {osc}")
    a.label("L_sdone")
    stamp(7)
    pad("S")
    dump_stamps(9)
    a("s_endpgm")

    a.label("L_helper")
    in_helper[0] = True
    a("s_load_dwordx16 s[4:19], s[0:1], 0\ns_load_dwordx8 s[20:27], s[0:1], 64")
    decode(a)
    X, F, AF, AF2, BF, D, TG = 32, 64, 96, 112, 128, 184, 200
    a("s_setprio 3")
    a(f"v_mul_u32_u24 v6, 896, v5\nv_lshl_add_u32 v6, v4, 6, v6\nv_mov_b32 v7, 0x40000000\nv_cmp_gt_u32 s[74:75], 14, v4")
    a(f"v_cndmask_b32 v7, v7, v6, s[74:75]")
    a(f"v_lshrrev_b32 v8, 3, v0\nv_and_b32 v9, 7, v0\nv_lshlrev_b32 v9, 4, v9\nv_lshl_add_u32 v10, v8, 13, v9")
    a(f"v_mul_u32_u24 v11, 3584, v8\nv_add_u32 v11, v11, v9")
    a(f"s_mul_i32 s65, s{sB}, {112 * 8192}\ns_lshl_b32 s66, s{sIDX}, 7\ns_add_u32 s65, s65, s66")
    a("s_waitcnt lgkmcnt(0)")
    a(f"s_load_dword s{sTAG}, s[26:27], 0")
    srd(SA, 4, 3584)
    for u in range(4): a(f"buffer_load_dwordx4 {V4(X+4*u)}, v7, {S(SA)}, 0 offen offset:{16*u}")
    srd(SB, 10, 448 * 8192)
    def dma(sr, voff, so, stride, lds0, win=None):
        for k in range(14):
            if win and k >= win: a(f"s_waitcnt vmcnt({win-1})")
            a(f"s_mov_b32 m0, {lds0 + 1024 * k}")
            a(f"buffer_load_dwordx4 v{voff}, {S(sr)}, s{so} offen {wnt} lds")
            if k < 13: a(f"s_add_u32 s{so}, s{so}, {8 * stride}")
    if not noq: dma(SB, 10, 65, 8192, WL0)
    srd(SW, 26, WS_USED)
    nini = 0
    if fb:
        a(f"s_lshl_b32 s34, s{sH}, 9\ns_add_u32 s34, s34, {PMB}\ns_lshl_b32 s35, s{sB}, 2\ns_add_u32 s35, s35, s{sJ}\ns_lshl_b32 s68, s35, 2\ns_add_u32 s68, s68, s34")
        a(f"v_lshlrev_b32 v2, 7, v0\nv_mov_b32 v3, 0\ns_mov_b64 exec, 15")
        a(f"buffer_store_dword v3, v2, {S(SW)}, s68 offen"); nini += 1
        if gfb:
            a(f"s_cmp_eq_u32 s35, 0\ns_cselect_b32 s68, s34, 0x40000000")
            a(f"buffer_store_dword v3, v2, {S(SW)}, s68 offen offset:64"); nini += 1
        a("s_mov_b64 exec, -1")
    a(f"v_and_b32 v14, 3, v4\nv_lshrrev_b32 v15, 2, v4\ns_mul_i32 s65, s{sB}, 224")
    a(f"v_mul_u32_u24 v12, 896, v15\nv_add_u32 v12, s65, v12\nv_lshl_add_u32 v28, v5, 3, v12\nv_lshl_add_u32 v12, v5, 4, v12")
    a(f"s_lshr_b32 s65, s{sCG}, 1\ns_mul_i32 s65, s65, 224")
    a(f"v_mul_u32_u24 v30, 896, v14\nv_add_u32 v30, s65, v30\nv_lshl_add_u32 v31, v5, 3, v30\nv_lshl_add_u32 v30, v5, 4, v30")
    a(f"v_lshl_add_u32 v8, v5, 2, v14\nv_lshlrev_b32 v8, 4, v8\nv_lshl_add_u32 v8, v15, 16, v8")
    a(f"v_lshlrev_b32 v9, 5, v14\nv_lshl_add_u32 v9, v15, 3, v9\nv_lshl_add_u32 v9, v5, 7, v9")
    for t in range(1, 4): a(f"v_cmp_eq_u32 s[{26+2*t}:{27+2*t}], {t}, v14")
    a(f"v_lshlrev_b32 v15, 7, v15\nv_lshl_add_u32 v15, v14, 3, v15")
    a(f"v_lshl_add_u32 v13, v5, 10, v15\nv_lshl_add_u32 v29, v5, 9, v15")
    a(f"s_waitcnt vmcnt(14)" if not noq else "s_waitcnt vmcnt(0)")
    stamp(1)
    for k in range(16): a(f"v_lshlrev_b32 v{F+2*k}, 16, v{X+k}\nv_and_b32 v{F+2*k+1}, 0xffff0000, v{X+k}")
    a(f"v_pk_add_f32 v[14:15], {V2(F)}, {V2(F+2)}\nv_pk_add_f32 v[16:17], {V2(F+4)}, {V2(F+6)}")
    for k in range(4, 16, 2):
        a(f"v_pk_add_f32 v[14:15], v[14:15], {V2(F+2*k)}\nv_pk_add_f32 v[16:17], v[16:17], {V2(F+2*k+2)}")
    a("v_pk_add_f32 v[14:15], v[14:15], v[16:17]\nv_add_f32 v14, v14, v15")
    def rowsum(r):
        for sh in (8, 4, 2, 1): a(f"v_add_f32_dpp v{r}, v{r}, v{r} row_ror:{sh} {FULL}")
    rowsum(14)
    a(f"v_mul_f32 v18, {hex(f2u(-1.0 / 448))}, v14\nv_mov_b32 v19, v18")
    a("v_mov_b32 v14, 0\nv_mov_b32 v15, 0\nv_mov_b32 v16, 0\nv_mov_b32 v17, 0")
    for k in range(0, 16, 2):
        a(f"v_pk_add_f32 v[20:21], {V2(F+2*k)}, v[18:19]\nv_pk_add_f32 v[22:23], {V2(F+2*k+2)}, v[18:19]")
        a(f"v_pk_fma_f32 v[14:15], v[20:21], v[20:21], v[14:15]\nv_pk_fma_f32 v[16:17], v[22:23], v[22:23], v[16:17]")
    a("v_pk_add_f32 v[14:15], v[14:15], v[16:17]\nv_add_f32 v14, v14, v15\nv_cndmask_b32 v14, 0, v14, s[74:75]")
    rowsum(14)
    def rbf(r): a(f"v_cvt_pk_bf16_f32 v{r}, v{r}, v{r}\nv_and_b32 v{r}, 0xffff0000, v{r}")
    a(f"v_mul_f32 v14, {hex(f2u(1.0 / 448))}, v14"); rbf(14)
    a(f"v_add_f32 v14, {hex(f2u(1e-5))}, v14"); rbf(14)
    a("v_sqrt_f32 v14, v14"); rbf(14)
    a("v_rcp_f32 v16, v14\nv_mov_b32 v15, v14"); rbf(18)
    a("v_mov_b32 v17, v16\nv_mov_b32 v19, v18")
    for k in range(16):
        a(f"v_pk_add_f32 {V2(F+2*k)}, {V2(F+2*k)}, v[18:19]")
    for k in range(16):
        a(f"v_cvt_pk_bf16_f32 v{X+k}, v{F+2*k}, v{F+2*k+1}")
    for k in range(16): a(f"v_lshlrev_b32 v{F+2*k}, 16, v{X+k}\nv_and_b32 v{F+2*k+1}, 0xffff0000, v{X+k}")
    for k in range(16):
        t = 20 + 2 * (k & 3)
        a(f"v_pk_mul_f32 {V2(t)}, {V2(F+2*k)}, v[16:17]")
        a(f"v_pk_fma_f32 {V2(F+2*k)}, {V2(t)}, v[14:15], {V2(F+2*k)} neg_lo:[1,0,0] neg_hi:[1,0,0]")
        a(f"v_pk_fma_f32 {V2(t)}, {V2(F+2*k)}, v[16:17], {V2(t)}")
        a(f"v_cvt_pk_bf16_f32 v{X+k}, v{t}, v{t+1}")
    a("s_mov_b64 exec, s[74:75]")
    for u in range(4): a(f"ds_write_b128 v6, {V4(X+4*u)} offset:{XN + 16*u}")
    a("s_mov_b64 exec, -1")
    a("s_waitcnt lgkmcnt(0)")
    a(f"s_mul_i32 s{sTAG}, s{sTAG}, 0x9E3779B1\ns_add_u32 s{sTAG}, s{sTAG}, 0x7F4A7C15")
    for k in range(3): a(f"ds_read_b128 {V4(AF+4*k)}, v12 offset:{XN + 64*k}")
    a(f"ds_read_b64 {V2(AF+12)}, v28 offset:{XN + 192}")
    a(f"v_mov_b32 v{TG}, s{sTAG}\nv_lshrrev_b32 v{TG+1}, 8, v{TG}\nv_lshrrev_b32 v{TG+2}, 16, v{TG}\nv_lshrrev_b32 v{TG+3}, 24, v{TG}\ns_movk_i32 s78, 0xff")
    a(f"v_lshlrev_b32 v10, 4, v0")
    a(f"s_lshl_b32 s66, s{sH}, 12\ns_lshl_b32 s67, s{sB}, 10\ns_add_u32 s66, s66, s67\ns_lshl_b32 s67, s{sJ}, 8\ns_add_u32 s66, s66, s67\ns_add_u32 s66, s66, {QMB}")
    a(f"s_lshl_b32 s67, s{sBH}, 12\ns_add_u32 s67, s67, {QMB}")
    a("s_waitcnt vmcnt(0)")
    stamp(2)
    a(f"s_getreg_b32 s69, hwreg(HW_REG_XCC_ID, 0, 4)\nv_xor_b32 v{TG+4}, s69, v{TG+3}")
    def piece(af, transposed):
        for t in range(4):
            for k in range(3):
                o = WL0 + 4096 * k + 32 * t
                a(f"ds_read_b64_tr_b16 {V2(BF+14*t+4*k)}, v13 offset:{o}\nds_read_b64_tr_b16 {V2(BF+14*t+4*k+2)}, v13 offset:{o + 512}")
            a(f"ds_read_b64_tr_b16 {V2(BF+14*t+12)}, v29 offset:{WL0 + 12288 + 32 * t}")
        a("s_waitcnt lgkmcnt(0)")
        for k in range(3):
            for t in range(4):
                x, w = V4(af+4*k), V4(BF+14*t+4*k)
                a(f"v_mfma_f32_16x16x32_bf16 {V4(D+4*t)}, {w if transposed else x}, {x if transposed else w}, {'0' if k == 0 else V4(D+4*t)}")
        for t in range(4):
            x, w = V2(af+12), V2(BF+14*t+12)
            a(f"v_mfma_f32_16x16x16_bf16 {V4(D+4*t)}, {w if transposed else x}, {x if transposed else w}, {V4(D+4*t)}")
        for t in range(1, 4):
            for r in range(4):
                if transposed: a(f"v_cndmask_b32 v{D+r}, v{D+r}, v{D+4*t+r}, s[{26+2*t}:{27+2*t}]")
                else: a(f"v_mov_b32_dpp v{D+r}, v{D+4*t+r} {IDP} row_mask:{hex(1 << t)} bank_mask:0xf")
        for r in range(4): a(f"v_add_u32 v{D+r}, 0x80, v{D+r}")
        for r in range(4): a(f"v_bfi_b32 v{20+r}, s78, v{TG + r + (1 if transposed and r == 3 else 0)}, v{D+r}")
    a("; q block")
    piece(AF, True)
    if noq or not qst: a("s_branch L_pqok")
    a(f"buffer_store_dwordx4 v[20:23], v8, {S(SW)}, s66 offen{'' if fastq else ' sc1'}")
    stamp(3)
    for k in range(3): a(f"ds_read_b128 {V4(AF2+4*k)}, v30 offset:{XN + 64*k}")
    a(f"ds_read_b64 {V2(AF2+12)}, v31 offset:{XN + 192}")
    a(f"v_mov_b32 v16, 0\nv_mov_b32 v17, 0\nv_mov_b32 v18, 0\nv_mov_b32 v19, 0")
    a(f"s_mov_b32 exec_hi, 0xff\nds_write_b128 v10, v[16:19] offset:{HIMG}\ns_mov_b64 exec, -1")
    a(f"ds_write_b128 v16, v[16:19] offset:{PGL}")
    PQ = F
    def qload(k): a(f"buffer_load_dwordx4 {V4(PQ+4*k)}, v10, {S(SW)}, s67 offen offset:{1024 * k} sc1")
    def chk4(dst, src):
        a(f"v_xor_b32 v{dst}, v{src}, v{TG}")
        for t in range(1, 4): a(f"v_bitop3_b32 v{dst}, v{src+t}, v{TG+t}, v{dst} bitop3:0xbe")
        a(f"v_and_b32 v{dst}, s78, v{dst}")
    if sleepq: a(f"s_sleep {sleepq}")
    for k in range(4): qload(k)
    a(f"s_mov_b32 s{sCNT}, {spin}")
    a.label("L_pq")
    a("s_waitcnt vmcnt(0)")
    for k in range(4):
        a(f"v_xor_b32 v{X+4+k}, v{PQ+4*k+3}, v{TG+4}\nv_and_b32 v{X+k}, 0xf0, v{X+4+k}")
        for t in range(3): a(f"v_bitop3_b32 v{X+k}, v{PQ+4*k+t}, v{TG+t}, v{X+k} bitop3:0xbe")
        a(f"v_and_b32 v{X+k}, s78, v{X+k}")
    a(f"v_or3_b32 v24, v{X}, v{X+1}, v{X+2}\nv_or_b32 v24, v24, v{X+3}")
    a("v_cmp_ne_u32 vcc, 0, v24\ns_cbranch_vccz L_pqok", drain=False)
    if fastq:
        a(f"s_cmp_lg_u32 s{sCNT}, {spin - nq}\ns_cbranch_scc1 L_pqg", drain=False)
        a(f"buffer_store_dwordx4 v[20:23], v8, {S(SW)}, s66 offen sc1")
        a.label("L_pqg", drain=False)
    a(f"s_sleep 2")
    for k in range(4):
        a(f"v_cmp_ne_u32 vcc, 0, v{X+k}\ns_cbranch_vccz L_pqs{k}", drain=False)
        qload(k)
        a.label(f"L_pqs{k}", drain=False)
    a(f"s_sub_u32 s{sCNT}, s{sCNT}, 1\ns_cmp_lg_u32 s{sCNT}, 0\ns_cbranch_scc1 L_pq", drain=False)
    a.label("L_pqok", drain=False)
    for k in range(16): a(f"v_and_b32 v{PQ+k}, 0xffffff00, v{PQ+k}")
    for e in (0, 2):
        a(f"v_pk_add_f32 {V2(PQ+e)}, {V2(PQ+e)}, {V2(PQ+4+e)}\nv_pk_add_f32 {V2(PQ+8+e)}, {V2(PQ+8+e)}, {V2(PQ+12+e)}")
    for e in (0, 2): a(f"v_pk_add_f32 {V2(PQ+e)}, {V2(PQ+e)}, {V2(PQ+8+e)}")
    a(f"v_cvt_pk_bf16_f32 v24, v{PQ}, v{PQ+1}\nv_cvt_pk_bf16_f32 v25, v{PQ+2}, v{PQ+3}\nv_mov_b32 v17, 0")
    a(f"v_or3_b32 v26, v{X+4}, v{X+5}, v{X+6}\nv_or_b32 v26, v26, v{X+7}\nv_and_b32 v26, 15, v26\nv_cmp_ne_u32 vcc, 0, v26")
    a(f"s_or_b32 s69, vcc_lo, vcc_hi\nv_mov_b32 v26, v{TG}\nv_mov_b32 v27, s69")
    a(f"ds_write_b64 v9, v[24:25] offset:{QL}\nds_write_b64 v17, v[26:27] offset:{TAGL}")
    if fastq:
        a("s_cmp_eq_u32 s69, 0\ns_cbranch_scc1 L_qnear")
        a(f"buffer_store_dwordx4 v[20:23], v8, {S(SW)}, s66 offen sc1")
        a.label("L_qnear")
    a("s_waitcnt lgkmcnt(0)")
    stamp(4)
    if stamps: a(f"s_mov_b32 s92, s{sCNT}")
    a("s_barrier")
    a("s_setprio 0")
    if g0:
        a(f"s_cmp_lg_u32 s35, 15\ns_cbranch_scc1 L_nog0\ns_cmp_lg_u32 s69, 0\ns_cbranch_scc1 L_nog0")
        a("s_mov_b32 s71, 1\ns_atomic_add s71, s[24:25], 60 glc\ns_waitcnt lgkmcnt(0)")
        a(f"s_sub_u32 s71, s71, {r0}\ns_mul_i32 s71, s71, {g0}\ns_ashr_i32 s71, s71, 2\nv_mov_b32 v42, s71")
        a(f"s_mov_b64 exec, 15\nbuffer_store_dword v42, v2, {S(SW)}, s34 offen offset:64\ns_mov_b64 exec, -1")
        a.label("L_nog0")
    if noffn: a("s_branch L_hend")
    a(f"s_cmp_ge_u32 s{sKG}, 28\ns_cbranch_scc1 L_hend")
    a(f"s_bitcmp1_b32 s{sCG}, 0\ns_cselect_b32 s{SC_}, s18, s16\ns_cselect_b32 s{SC_+1}, s19, s17\ns_mov_b32 s{SC_+2}, {448 * 3584}\ns_mov_b32 s{SC_+3}, 0x20000")
    a(f"s_lshr_b32 s66, s{sCG}, 1\ns_mul_i32 s65, s66, {112 * 3584}\ns_lshl_b32 s67, s{sKG}, 7\ns_add_u32 s65, s65, s67")
    if fdma: dma(SC_, 11, 65, 3584, WL0, win=HW)
    a(f"s_lshl_b32 s67, s{sKG}, 13\ns_add_u32 s67, s67, {FMB}\ns_lshl_b32 s66, s{sCG}, 10\ns_add_u32 s66, s66, s67\ns_add_u32 s68, s67, 4096")
    a("s_waitcnt vmcnt(0)")
    piece(AF2, False)
    if fst and fastf:
        a("s_cmp_lg_u32 s69, 0\ns_cbranch_scc1 L_ffar")
        a(f"buffer_store_dwordx4 v[20:23], v10, {S(SW)}, s66 offen\ns_branch L_fdone")
        a.label("L_ffar")
    if fst: a(f"buffer_store_dwordx4 v[20:23], v10, {S(SW)}, s66 offen sc1")
    if fst and fastf: a.label("L_fdone")
    if not fpoll: a("s_branch L_hend")
    a(f"s_cmp_eq_u32 s{sCG}, 7\ns_cbranch_scc1 L_hend")
    def fload(k): a(f"buffer_load_dwordx4 {V4(F+4*k)}, v10, {S(SW)}, s{67 + (k >> 2)} offen offset:{1024 * (k & 3)} sc1")
    a(f"s_sleep {sleepf}")
    for k in range(8): fload(k)
    a(f"s_mov_b32 s{sCNT}, {spin}\nv_lshlrev_b32 v9, 1, v0")
    a.label("L_pf")
    a("s_waitcnt vmcnt(0)")
    for k in range(8): chk4(X + k, F + 4 * k)
    a(f"v_or3_b32 v24, v{X}, v{X+1}, v{X+2}\nv_or3_b32 v24, v24, v{X+3}, v{X+4}\nv_or3_b32 v24, v24, v{X+5}, v{X+6}\nv_or_b32 v24, v24, v{X+7}")
    a("v_cmp_ne_u32 vcc, 0, v24\ns_cbranch_vccz L_pfok", drain=False)
    a(f"s_sleep 16")
    for k in range(8):
        a(f"v_cmp_ne_u32 vcc, 0, v{X+k}\ns_cbranch_vccz L_pfs{k}", drain=False)
        fload(k)
        a.label(f"L_pfs{k}", drain=False)
    a(f"s_sub_u32 s{sCNT}, s{sCNT}, 1\ns_cbranch_scc0 L_pf", drain=False)
    a.label("L_pfok", drain=False)
    for k in range(32): a(f"v_and_b32 v{F+k}, 0xffffff00, v{F+k}")
    for e in range(0, 8, 2):
        a(f"v_pk_add_f32 {V2(F+e)}, {V2(F+e)}, {V2(F+8+e)}\nv_pk_add_f32 {V2(F+16+e)}, {V2(F+16+e)}, {V2(F+24+e)}")
    for e in range(0, 8, 2): a(f"v_pk_add_f32 {V2(F+e)}, {V2(F+e)}, {V2(F+16+e)}")
    for r in range(8): rbf(F + r)
    k1 = -2.0 * math.sqrt(2.0 / math.pi) * math.log2(math.e)
    for r in range(4):
        g, u, t = F + r, F + 4 + r, F + 8 + r
        a(f"v_mul_f32 v{t}, v{g}, v{g}\nv_mul_f32 v{t}, {hex(f2u(0.044715))}, v{t}\nv_fma_f32 v{t}, v{t}, v{g}, v{g}")
        a(f"v_mul_f32 v{t}, {hex(f2u(k1))}, v{t}\nv_exp_f32 v{t}, v{t}\nv_add_f32 v{t}, 1.0, v{t}\nv_rcp_f32 v{t}, v{t}\nv_mul_f32 v{g}, v{g}, v{t}")
        rbf(g)
        a(f"v_mul_f32 v{g}, v{g}, v{u}")
    a(f"v_cvt_pk_bf16_f32 v32, v{F}, v{F+1}\nv_cvt_pk_bf16_f32 v34, v{F+2}, v{F+3}")
    a(f"ds_write_b16 v9, v32 offset:{HIMG}\nds_write_b16_d16_hi v9, v32 offset:{HIMG + HROW}")
    a(f"ds_write_b16 v9, v34 offset:{HIMG + 2 * HROW}\nds_write_b16_d16_hi v9, v34 offset:{HIMG + 3 * HROW}")
    a("s_waitcnt lgkmcnt(0)")
    a.label("L_hend")
    a("s_mov_b64 exec, -1")
    if fb and gfb == 2:
        a(f"s_cmp_lg_u32 s69, 0\ns_cbranch_scc1 L_gend\ns_cmp_ge_u32 s35, {nR}\ns_cbranch_scc1 L_gend")
        a(f"v_lshlrev_b32 v6, 2, v4\nv_lshl_add_u32 v6, v5, 7, v6\nv_mov_b32 v41, v{TG}\nv_mov_b32 v7, 0")
        a(f"s_lshl_b32 s66, s{sH}, 7\ns_add_u32 s66, s66, {GMB}\ns_mov_b32 s67, {GMB}\ns_mov_b32 s{sCNT}, 4000\ns_mul_i32 s70, s35, {dL}\ns_add_u32 s70, s70, {L0}")
        a.label("L_gw")
        a(f"ds_read_b32 v40, v7 offset:{PGL}\ns_waitcnt lgkmcnt(0)\nv_readfirstlane_b32 s65, v40\ns_cmp_ge_u32 s65, s70\ns_cbranch_scc1 L_gr")
        a(f"s_sleep 4\ns_sub_u32 s{sCNT}, s{sCNT}, 1\ns_cbranch_scc0 L_gw")
        a.label("L_gr")
        a(f"buffer_load_dword v40, v6, {S(SW)}, s34 offen sc1")
        a("s_mov_b64 exec, 0xffff")
        a(f"buffer_load_dwordx2 v[42:43], v2, {S(SW)}, s67 offen sc1")
        a("s_mov_b64 exec, -1\ns_waitcnt vmcnt(1)")
        for sh in (8, 4, 2, 1): a(f"v_add_u32_dpp v40, v40, v40 row_ror:{sh} {FULL}")
        a("v_add_u32_dpp v40, v40, v40 row_bcast:15 row_mask:0xa bank_mask:0xf\nv_add_u32_dpp v40, v40, v40 row_bcast:31 row_mask:0xc bank_mask:0xf")
        a("v_readlane_b32 s71, v40, 63\nv_mov_b32 v40, s71")
        a("s_mov_b64 exec, 1")
        a(f"buffer_store_dwordx2 v[40:41], v7, {S(SW)}, s66 offen sc1")
        a("s_mov_b64 exec, -1\ns_waitcnt vmcnt(1)")
        a(f"v_subrev_u32 v44, {64 * dL}, v40\nv_cmp_eq_u32 vcc, v43, v41\nv_cndmask_b32 v42, v44, v42, vcc\nv_sub_u32 v42, v42, v40")
        for sh in (8, 4, 2, 1): a(f"v_add_u32_dpp v42, v42, v42 row_ror:{sh} {FULL}")
        a(f"v_ashrrev_i32 v42, {4 + gsh}, v42\nv_add_u32 v42, {goff}, v42")
        a("s_mov_b64 exec, 15")
        a(f"buffer_store_dword v42, v2, {S(SW)}, s34 offen offset:64")
        a("s_mov_b64 exec, -1")
        a.label("L_gend")
    if fb and gfb == 3:
        a("; balancing round: when the head reaches this workgroup's level, its arrival rank (d_debug counter) sets the bias word")
        a(f"s_cmp_lg_u32 s69, 0\ns_cbranch_scc1 L_gend\ns_cmp_ge_u32 s35, {nR}\ns_cbranch_scc1 L_gend")
        a(f"v_lshlrev_b32 v6, 2, v4\nv_lshl_add_u32 v6, v5, 7, v6\nv_mov_b32 v7, 0")
        a(f"s_mov_b32 s{sCNT}, 4000\ns_mul_i32 s70, s35, {dL}\ns_add_u32 s70, s70, {L0}\ns_lshl_b32 s66, s35, 2")
        a.label("L_gw")
        a(f"ds_read_b32 v40, v7 offset:{PGL}\ns_waitcnt lgkmcnt(0)\nv_readfirstlane_b32 s65, v40\ns_cmp_ge_u32 s65, s70\ns_cbranch_scc1 L_gr")
        a(f"s_sleep 4\ns_sub_u32 s{sCNT}, s{sCNT}, 1\ns_cbranch_scc0 L_gw")
        a.label("L_gr")
        if gpoll:
            a(f"s_lshl_b32 s70, s70, 6\ns_add_u32 s70, s70, 16\ns_mov_b32 s{sCNT}, 3")
            a.label("L_gp")
            a(f"buffer_load_dword v40, v6, {S(SW)}, s34 offen sc1\ns_waitcnt vmcnt(0)")
            for sh in (8, 4, 2, 1): a(f"v_add_u32_dpp v40, v40, v40 row_ror:{sh} {FULL}")
            a("v_add_u32_dpp v40, v40, v40 row_bcast:15 row_mask:0xa bank_mask:0xf\nv_add_u32_dpp v40, v40, v40 row_bcast:31 row_mask:0xc bank_mask:0xf")
            a(f"v_readlane_b32 s71, v40, 63\ns_cmp_ge_u32 s71, s70\ns_cbranch_scc1 L_ga\ns_sub_u32 s{sCNT}, s{sCNT}, 1\ns_cbranch_scc0 L_gp")
            a.label("L_ga")
        a("s_mov_b32 s71, 1\ns_atomic_add s71, s[24:25], s66 glc\ns_waitcnt lgkmcnt(0)")
        a(f"s_sub_u32 s71, s71, {r0}\ns_mul_i32 s71, s71, {gain}\ns_ashr_i32 s71, s71, 2\nv_mov_b32 v42, s71")
        a("s_mov_b64 exec, 15")
        a(f"buffer_store_dword v42, v2, {S(SW)}, s34 offen offset:64")
        a("s_mov_b64 exec, -1")
        if rew:
            a(f"s_cmp_lt_u32 s35, {nR - rew}\ns_cbranch_scc1 L_gend")
            a("s_getpc_b64 s[66:67]")
            a.label("L_pc2", drain=False)
            a("s_sub_u32 s66, s66, L_pc2-L_tail\ns_subb_u32 s67, s67, 0\nv_min_u32 v2, L_helper-L_tail, v2\nglobal_load_dword v31, v2, s[66:67]")
        a.label("L_gend")
    if fb and gfb == 1:
        NIT = (15 - NP) + 1 + 15
        a("s_or_b32 s65, s35, s69\ns_cmp_lg_u32 s65, 0\ns_cbranch_scc1 L_gend")
        a(f"v_lshlrev_b32 v6, 2, v4\nv_lshl_add_u32 v6, v5, 7, v6\nv_mov_b32 v41, v{TG}\nv_mov_b32 v7, 0")
        a(f"s_lshl_b32 s66, s{sH}, {3 if gsc else 7}\ns_add_u32 s66, s66, {GMB}\ns_mov_b32 s67, {GMB}\ns_mov_b32 s{sCNT}, 200\ns_mov_b32 s70, -1")
        a.label("L_g")
        a(f"buffer_load_dword v40, v6, {S(SW)}, s34 offen sc1")
        if gsc:
            a(f"s_waitcnt lgkmcnt(0)\ns_load_dwordx16 s[4:19], s[26:27], {GMB} glc\ns_load_dwordx16 s[40:55], s[26:27], {GMB + 64} glc\ns_waitcnt vmcnt(0)")
        else:
            a("s_mov_b64 exec, 0xffff")
            a(f"buffer_load_dwordx2 v[42:43], v2, {S(SW)}, s67 offen sc1")
            a("s_mov_b64 exec, -1\ns_waitcnt vmcnt(1)")
        a(f"v_cmp_le_u32 vcc, {NIT - gexit}, v40\ns_or_b32 s65, vcc_lo, vcc_hi\ns_and_b32 s65, s65, 0x10001\ns_cbranch_scc1 L_gend")
        for sh in (8, 4, 2, 1): a(f"v_add_u32_dpp v40, v40, v40 row_ror:{sh} {FULL}")
        a("v_add_u32_dpp v40, v40, v40 row_bcast:15 row_mask:0xa bank_mask:0xf\nv_add_u32_dpp v40, v40, v40 row_bcast:31 row_mask:0xc bank_mask:0xf")
        a("v_readlane_b32 s71, v40, 63\nv_mov_b32 v40, s71")
        a("s_mov_b64 exec, 1")
        a(f"buffer_store_dwordx2 v[40:41], v7, {S(SW)}, s66 offen sc1")
        a("s_mov_b64 exec, -1\ns_waitcnt vmcnt(1)")
        a("s_cmp_eq_u32 s70, -1\ns_cbranch_scc1 L_gskip")
        if gavg: a("s_add_u32 s70, s70, s71\ns_lshr_b32 s70, s70, 1")
        if gsc:
            a("s_waitcnt lgkmcnt(0)\ns_mov_b32 s65, 0")
            for k in range(16):
                r = (4 + 2 * k) if k < 8 else (40 + 2 * (k - 8))
                a(f"s_cmp_eq_u32 s{r+1}, s{sTAG}\ns_cselect_b32 s{r}, s{r}, s70\ns_add_u32 s65, s65, s{r}")
            a(f"s_lshl_b32 s70, s70, 4\ns_sub_u32 s65, s65, s70\ns_ashr_i32 s65, s65, {4 + gsh}\ns_add_u32 s65, s65, {goff}\nv_mov_b32 v42, s65")
        else:
          a(f"v_mov_b32 v44, s70\nv_cmp_eq_u32 vcc, v43, v41\nv_cndmask_b32 v42, v44, v42, vcc\nv_sub_u32 v42, v42, v44")
          for sh in (8, 4, 2, 1): a(f"v_add_u32_dpp v42, v42, v42 row_ror:{sh} {FULL}")
          a(f"v_ashrrev_i32 v42, {4 + gsh}, v42")
          if goff: a(f"v_add_u32 v42, {goff}, v42")
        a("s_mov_b64 exec, 15")
        a(f"buffer_store_dword v42, v2, {S(SW)}, s34 offen offset:64")
        a("s_mov_b64 exec, -1")
        a.label("L_gskip")
        a("s_mov_b32 s70, s71")
        if gsleep: a(f"s_sleep {gsleep}")
        a(f"s_sub_u32 s{sCNT}, s{sCNT}, 1\ns_cbranch_scc0 L_g")
        a.label("L_gend")
        if gsc: a("s_waitcnt lgkmcnt(0)")
    stamp(5)
    pad("H")
    dump_stamps(7)
    a.label("L_end")
    a("s_endpgm")
    a.raw('.section .rodata,"a"'); a.raw(".p2align 6"); a.raw(f".amdhsa_kernel {NAME}")
    a.raw("  .amdhsa_next_free_vgpr 256"); a.raw("  .amdhsa_next_free_sgpr 102"); a.raw("  .amdhsa_accum_offset 256")
    a.raw("  .amdhsa_group_segment_fixed_size 0"); a.raw("  .amdhsa_kernarg_size 96"); a.raw("  .amdhsa_user_sgpr_count 2")
    a.raw("  .amdhsa_user_sgpr_kernarg_segment_ptr 1"); a.raw("  .amdhsa_system_sgpr_workgroup_id_x 1"); a.raw(".end_amdhsa_kernel")
    return a.text()

if __name__ == "__main__":
    out = sys.argv[1]
    kw = eval("dict(" + (sys.argv[2] if len(sys.argv) > 2 else "") + ")")
    open(out, "w").write(gen(**kw))
```

```python
import sys, struct, math
sys.path.insert(0, "gen")
from asmlib import Asm

NAME = "parallel_sum__mha_block_cached__geglu_ffn__decode_kernel"
HEADER = open("parallel_sum__mha_block_cached__geglu_ffn__decode.s.ref").read().split("; Override launch")[0]

def f2u(x): return struct.unpack("<I", struct.pack("<f", x))[0]

PMB = 0x8000
GMB = 0xC000
QMB = 0x10000
FMB = QMB + 64 * 4096
MB1 = 0xA0000
MB2 = 0x120000
TSB = 0x400000
WS_USED = TSB + 0x10000
assert FMB + 28 * 8192 <= MB1
PGL = 4112
XN, QL, TAGL, ML, HIMG, AIMG, OP, SC = 0, 3584, 4096, 4128, 4224, 4864, 6144, 10240
HROW, AROW = 144, 272
WL0 = SC + 16384
WL1 = WL0 + 14336
WL2 = WL1 + 16384
LDS_BYTES = WL2 + 8192

DOC = '''; ---------------------------------------------------------------------------------------------
; ---------------------------------------------------------------------------------------------'''
FULL = "row_mask:0xf bank_mask:0xf"
IDP = "quad_perm:[0,1,2,3]"

def gen(W=5, NP=5, nt="nt", wnt="nt", stamps=False, warm=True, sleep1=0, sleep2=0, sleepq=30, spin=1 << 18,
        padto=0, padwg=None, padstamp=None, HW=4, noffn=0, noq=0, nowo=0, touch=1, sleepf=60, fdma=1, fst=1, fpoll=1, qst=1, pat=5, Wend=None, nend=0, W0=None, osc='', scr=1, remap=4, D2=2, stag2=4, early1=0, role=3, fast=1, hoist=1, clean=0, fastq=1, fastf=1, nq=5, tlb=0, fb=1, Wup=6, thup=0, gfb=3, gsleep=8, goff=0, gsh=2, gavg=0, gsc=0, gexit=2, L0=6, dL=2, nR=9, nost2=0, nored=0, wos=(3,4,5,6,7,7), r0=8, gain=6, gpoll=1, st0=0, warm2=16, late=1, codekb=13, amp=0, lite=0, Wdn=4, thdn=-15, endp=None, pw=None, thw=None, hb=0, pre1=0, rew=0, stL=0, k1st=0, th2=8, g0=4, pf=0, pfs=7, pfnt='', pfth=None, fakeg=0, kb5=(15,13), wb5=(11,14), jb5=(12,16), soft=None, softu=3, burst=0, b2b=0, stD=0, sl1=0, hstep=-1, st4=0, pol=None, dual=1, dpol=None, ntr=6, Lv=20, inv=0):
    assert not (fast or fastf) or role == 3
    assert early1 != 2 or hoist
    assert hb != 1 or set(wos) == {-2}
    assert hb != 2 or wos[:2] == (-2, -2)
    assert not (b2b and (hb or early1 or clean))
    assert pol is None and ntr <= 8 and not pf
    in_helper = [False]
    a = Asm()
    a.raw(HEADER.rstrip("\n"))
    a.raw(f"; @launch grid=(256,1,1) block=(320,1,1) lds={LDS_BYTES}")
    a.raw(DOC)
    a.raw('.amdgcn_target "amdgcn-amd-amdhsa--gfx950"')
    a.raw(".text"); a.raw(f".globl {NAME}"); a.raw(".p2align 8"); a.raw(f".type {NAME},@function")
    a.raw(f"{NAME}:")
    SK, SV, SW, SA, SB, SC_, SD = 28, 32, 36, 40, 44, 48, 52
    sB, sH, sJ, sIDX, sBH, sTAG, sCNT, sKO, sVO, sWv, sKG, sCG = 56, 57, 58, 59, 60, 61, 62, 63, 64, 72, 73, 79
    def srd(r, ptr, size):
        a(f"s_mov_b32 s{r}, s{ptr}\ns_mov_b32 s{r+1}, s{ptr+1}\ns_mov_b32 s{r+2}, {size}\ns_mov_b32 s{r+3}, 0x20000")
    def S(r): return f"s[{r}:{r+3}]"
    def V4(r): return f"v[{r}:{r+3}]"
    def V2(r): return f"v[{r}:{r+1}]"
    def stamp(k):
        if stamps or padstamp is not None:
            a(f"s_memrealtime s[{80+2*k}:{81+2*k}]")
    def dump_stamps(n):
        if not stamps: return
        a("s_waitcnt lgkmcnt(0)")
        a("s_mov_b64 exec, 1")
        a(f"s_mul_i32 s65, s2, 5\ns_add_u32 s65, s65, s3\ns_mul_i32 s65, s65, 48\ns_add_u32 s65, s65, {TSB}")
        a("v_mov_b32 v1, 0")
        for k in range(n):
            a(f"v_mov_b32 v2, s{80+2*k}")
            if lite and k not in (0, 4, 7): continue
            a(f"buffer_store_dword v2, v1, {S(SW)}, s65 offen offset:{4*k}")
        if not lite:
            a(f"v_mov_b32 v2, s{sCNT}\nbuffer_store_dword v2, v1, {S(SW)}, s65 offen offset:44")
            a("s_waitcnt vmcnt(0)")
    def pad(role):
        if not padto: return
        r, k = padstamp if padstamp is not None else ("S", 0)
        if r != role: return
        if padwg is not None: a(f"s_cmp_lg_u32 s2, {padwg}\ns_cbranch_scc1 L_end")
        if amp: a(f"s_waitcnt lgkmcnt(0)\ns_sub_u32 s65, s{80+2*k}, s80\ns_mul_i32 s65, s65, {amp - 1}\ns_add_u32 s{80+2*k}, s{80+2*k}, s65")
        a.label(f"L_pad{role}")
        a(f"s_sleep 1\ns_memrealtime s[98:99]\ns_waitcnt lgkmcnt(0)\ns_sub_u32 s98, s98, s{80+2*k}\ns_cmp_lt_i32 s98, {padto}\ns_cbranch_scc1 L_pad{role}")

    assert remap in (4, 5) and role == 3 and pat == 5 and (kb5, wb5, jb5) == ((15, 13), (11, 14), (12, 16))
    def decode(a):
        a(f"s_and_b32 s{sBH}, s2, 63\ns_lshr_b32 s{sJ}, s2, 6\ns_lshr_b32 s{sB}, s{sBH}, 4\ns_and_b32 s{sH}, s2, 15")
        a(f"s_lshl_b32 s2, s{sBH}, 2\ns_or_b32 s2, s2, s{sJ}\ns_and_b32 s{sIDX}, s2, 63")
        a(f"s_lshl_b32 s{sKG}, s{sH}, 1\ns_and_b32 s65, s{sJ}, 1\ns_or_b32 s{sKG}, s{sKG}, s65\ns_lshl_b32 s{sCG}, s{sB}, 1\ns_lshr_b32 s65, s{sJ}, 1\ns_or_b32 s{sCG}, s{sCG}, s65")
        a("v_and_b32 v0, 63, v0\nv_and_b32 v4, 15, v0\nv_lshrrev_b32 v5, 4, v0")
    a("s_load_dwordx2 s[28:29], s[0:1], 8")
    stamp(0)
    a("v_lshrrev_b32 v1, 6, v0\ns_cmpk_ge_u32 s2, 256\ns_cbranch_scc1 L_end", drain=False)
    if remap == 5: a("s_lshr_b32 s65, s2, 6\ns_xor_b32 s2, s2, s65")
    a("v_readfirstlane_b32 s3, v1\nv_and_b32 v85, 51, v0\nv_and_b32 v1, 12, v0")
    a("s_cmp_eq_u32 s3, 0\ns_cbranch_scc1 L_helper", drain=False)

    vKO, vVO, vSC, vMAX, vL, vC, vMC, vS = 1, 2, 3, 6, 7, 28, 29, 30
    vJ, vG = 4, 5
    MASK, OACC, BB, QF, DA, TMP, R = 8, 12, 20, 32, 64, 84, 96
    def ring(tile, u): return R + 32 * tile + 4 * u
    kb = kb5
    assert TMP + 1 == 85 and vKO == 1
    a(f"v_mul_u32_u24 v85, 20, v85\nv_mul_u32_u24 v1, 0x2400, v1\nv_and_b32 v85, 0xf0, v85\nv_and_b32 v1, 0xa000, v1\nv_or_b32 v1, v1, v85")
    a(f"s_lshr_b32 s65, s2, 6\ns_mulk_i32 s65, 9\ns_and_b32 s65, s65, 17\ns_lshl_b32 s65, s65, 12\ns_mul_i32 s66, s3, 5\ns_and_b32 s66, s66, 9\ns_lshl_b32 s66, s66, 11")
    a(f"s_and_b32 s{sKO}, s2, 63\ns_lshl_b32 s{sKO}, s{sKO}, 21\ns_or_b32 s65, s65, s66\ns_or_b32 s{sKO}, s{sKO}, s65")
    a(f"s_lshl_b32 s30, 1, 27\ns_mov_b32 s31, 0x20000")
    a("s_waitcnt lgkmcnt(0)")
    if st0: stamp(5)
    vm = []
    def issue(kind, reg, u, tagid):
        sr, vo, so = (SK, vKO, sKO) if kind == "K" else (SV, vVO, sVO)
        o = {0: 256 * (u & 1), 1: 256 * (u & 3), 2: 256 * u, 3: 256 * u, 4: 256 * (u & 1) + 512 * (u & 2), 5: 256 * u}[pat]
        off = f" offset:{o}" if o else ""
        a(f"buffer_load_dwordx4 {V4(reg)}, v{vo}, {S(sr)}, s{so} offen{off} {nt}")
        if pat == 0 and u & 1: a(f"s_add_u32 s{so}, s{so}, 8192")
        if pat == 1 and (u & 3) == 3: a(f"s_add_u32 s{so}, s{so}, 16384")
        if pat == 4 and (u & 3) == 3: a(f"s_xor_b32 s{so}, s{so}, 0x4000")
        if pat == 5 and u == 7: a(f"s_add_u32 s{so}, s{so}, 0x20000")
        if pat in (3, 4) and u == 7:
            a(f"s_xor_b32 s{so}, s{so}, 0x1000\ns_bitcmp1_b32 s{so}, 12\ns_cselect_b32 s65, 0, s{sM}\ns_add_u32 s65, s65, s{so}\ns_and_b32 s65, s65, 0x70000\ns_andn2_b32 s{so}, s{so}, 0x70000\ns_or_b32 s{so}, s{so}, s65")
        if pat == 2 and u == 7:
            a(f"s_bitcmp1_b32 s{so}, 11\ns_cselect_b32 s65, {65536 - 4096}, 0\ns_add_u32 s{so}, s{so}, s65\ns_add_u32 s{so}, s{so}, 2048")
        vm.append(tagid)
    def wait_for(tagid):
        if tagid not in vm: return
        n = len(vm) - 1 - vm.index(tagid)
        assert n < 64
        a(f"s_waitcnt vmcnt({n})")
    nload = [0]
    curW = [W]
    adapt = [False]; nlab = [0]
    ctl = dict(Wup=Wup, thup=thup, Wdn=Wdn, thdn=thdn)
    def throttle_issue(kind, reg, u):
        n = nload[0]
        if adapt[0]:
            nlab[0] += 1
            a(f"s_cbranch_scc1 L_w{nlab[0]}", drain=False)
            if ctl["Wdn"]:
                a(f"s_cbranch_vccz L_m{nlab[0]}", drain=False); a.hist[-1].states = 0
                wait_for(("s", n - ctl["Wdn"])); a.hist[-1].states = 0
                a.label(f"L_m{nlab[0]}", drain=False)
            wait_for(("s", n - curW[0]))
            a.hist[-1].states = 0
            a.label(f"L_w{nlab[0]}", drain=False)
            if th2 is not None:
                a(f"s_cbranch_vccnz L_x{nlab[0]}", drain=False)
                wait_for(("s", n - ctl["Wup"])); a.hist[-1].states = 0
                a.label(f"L_x{nlab[0]}", drain=False)
                wait_for(("s", n - ctl["Wup"] - 1))
            else: wait_for(("s", n - ctl["Wup"]))
        else: wait_for(("s", n - curW[0]))
        issue(kind, reg, u, ("s", n)); nload[0] += 1
    W0 = W0 or W
    curW[0] = W0
    for n in range(W0):
        throttle_issue("K", ring(n // 8, n % 8), n % 8)
    curW[0] = W
    a(f"s_load_dwordx16 s[4:19], s[0:1], 0\ns_load_dwordx8 s[20:27], s[0:1], 64\ns_mov_b32 s{sVO}, s{sKO}\ns_and_b32 s{sWv}, s3, 3")
    decode(a)
    if warm2:
        a("; a few waves read the code range so that later instruction fetches hit L2")
        a(f"s_and_b32 s65, s2, 0xe2\ns_lshl_b32 s65, s65, 2\ns_or_b32 s65, s65, s{sWv}\ns_cbranch_scc1 L_nowarm2", drain=False)
        a("s_getpc_b64 s[66:67]")
        a.label("L_pc", drain=False)
        a("v_lshlrev_b32 v2, 7, v0\nglobal_load_dword v31, v2, s[66:67]\nv_add_u32 v2, 0x2000, v2\nv_min_u32 v2, L_end-L_pc, v2")
        a("global_load_dword v31, v2, s[66:67]")
        a.label("L_nowarm2", drain=False)
    if warm and not warm2:
        a(f"s_cmp_lg_u32 s3, 1\ns_cbranch_scc1 L_nowarm")
        a(f"s_getpc_b64 s[66:67]\nv_lshlrev_b32 v{TMP+2}, 7, v0")
        a(f"global_load_dword v{TMP+3}, v{TMP+2}, s[66:67]")
        a.label("L_nowarm")
    def setup(a, srd):
        a(f"v_lshlrev_b32 v{vVO}, 4, v{vJ}\nv_bfe_u32 v{TMP}, v0, 4, 1\nv_lshl_add_u32 v{vVO}, v{TMP}, {kb[0]}, v{vVO}\nv_bfe_u32 v{TMP}, v0, 5, 1\nv_lshl_add_u32 v{vVO}, v{TMP}, {kb[1]}, v{vVO}")
        srd(SV, 8, 1 << 27); srd(SW, 26, WS_USED); srd(SC_, 22, 3584); srd(SD, 4, 3584)
        srd(SA, 12, 4096 * 896); srd(SB, 20, 1792 * 896)
        for k in range(32): a(f"v_mov_b32 v{QF+k}, 0")
        for k in range(8): a(f"v_mov_b32 v{OACC+k}, 0")
        a(f"v_mov_b32 v{vMAX}, 0xff800000\nv_mov_b32 v{vL}, 0\nv_mov_b32 v{vC}, {hex(f2u(math.log2(math.e) / 16))}")
        a(f"v_and_b32 v{TMP+4}, 1, v{vJ}\nv_lshlrev_b32 v{TMP+4}, 4, v{TMP+4}\nv_mov_b32 v{TMP+5}, 0xffff\nv_lshlrev_b32 v{TMP+4}, v{TMP+4}, v{TMP+5}")
        a(f"v_bfe_u32 v{TMP+5}, v{vJ}, 1, 2")
        for w in range(4):
            a(f"v_cmp_eq_u32 vcc, {w}, v{TMP+5}\nv_cndmask_b32 v{MASK+w}, 0, v{TMP+4}, vcc")
        a(f"s_lshl_b32 s65, s{sWv}, 12\ns_add_u32 s65, s65, {SC}\nv_lshl_add_u32 v{vSC}, v0, 2, s65")
    chunks = []
    def rec(t): chunks.append(t)
    def recsrd(r, ptr, size): rec(f"s_mov_b32 s{r}, s{ptr}\ns_mov_b32 s{r+1}, s{ptr+1}\ns_mov_b32 s{r+2}, {size}\ns_mov_b32 s{r+3}, 0x20000")
    setup(rec, recsrd)
    if not late:
        for t in chunks: a(t)
        chunks = []
    for n in range(W0, 8 * NP):
        if st0 and n == W0: stamp(3)
        throttle_issue("K", ring(n // 8, n % 8), n % 8)
        if st0 and n == W0: stamp(6)
        if st0 and n == W0 + 4: stamp(8)
        if st0 and n == W0 + 9: stamp(4)
        if n == 16: a("s_waitcnt lgkmcnt(0)")
        if n >= 16:
            cnt = 0
            while chunks and cnt < 6:
                t = chunks.pop(0); a(t); cnt += t.count("\n") + 1
    assert not chunks
    if st0:
        _st = stamp
        def stamp(k):
            if k in (1, 2, 7) or in_helper[0]: _st(k)
    stamp(1)
    a("s_barrier")
    stamp(2)
    for t in range(4):
        m = 0x000F000F << (4 * t)
        a(f"s_mov_b32 exec_lo, {hex(m)}\ns_mov_b32 exec_hi, {hex(m)}")
        for half in range(2):
            a(f"ds_read_b128 {V4(QF + 4 * (2 * t + half))}, v{TMP+1} offset:{QL + 256 * half}")
    a("s_mov_b64 exec, -1")
    a(f"v_mov_b32 v{TMP}, 0\nds_read_b64 {V2(TMP+2)}, v{TMP} offset:{TAGL}")
    a("s_waitcnt lgkmcnt(0)")
    a(f"v_readfirstlane_b32 s{sTAG}, v{TMP+2}\nv_readfirstlane_b32 s101, v{TMP+3}")

    def consK(reg, u, d):
        c = "0" if u == 0 else V4(d)
        a(f"v_mfma_f32_16x16x32_bf16 {V4(d)}, {V4(reg)}, {V4(QF + 4 * u)}, {c}")
    def extract(ds, off0):
        for k, d in enumerate(ds): a(f"v_mov_b32_dpp v{TMP+k}, v{d} quad_perm:[0,0,0,0] {FULL}")
        for c in range(1, 4):
            for k, d in enumerate(ds): a(f"v_add_f32_dpp v{TMP+k}, v{d+c}, v{TMP+k} quad_perm:[{c},{c},{c},{c}] {FULL}")
        for k, d in enumerate(ds): a(f"v_cvt_pk_bf16_f32 v{TMP+k}, v{TMP+k}, v{TMP+k}")
        for k, d in enumerate(ds): a(f"v_and_b32 v{TMP+k}, 0xffff0000, v{TMP+k}")
        for k, d in enumerate(ds):
            a(f"ds_write_b32 v{vSC}, v{TMP+k} offset:{off0 + 256 * k}")
            a(f"v_max_f32 v{vMAX}, v{vMAX}, v{TMP+k}")
        a(f"v_add_u32 v{vSC}, {256 * len(ds)}, v{vSC}")
    for u in range(8):
        consK(ring(0, u), u, DA)
        throttle_issue("K", ring(0, u), u)
        for T in range(1, NP): consK(ring(T, u), u, DA + 4 * T)
    extract([DA + 4 * T for T in range(NP)], 0)

    T0 = R + 32
    vX, vXO, vOPW, vMLW, vOPR, vZ, vL16, vST2, vTR, vTR2, vTRD, vTRD2, vHA, vAR, vAW, vWO, vWD = range(T0, T0 + 17)
    vML = T0 + 18
    G = T0 + 20
    GR = T0 + 36
    P1 = T0 + 40
    AH = T0 + 56
    AO = T0 + 64
    BW = T0 + 80
    BD = T0 + 96
    Y = T0 + 104
    E = T0 + 108
    def tail_addr():
        a(f"s_lshl_b32 s65, s{sWv}, 10\ns_add_u32 s65, s65, {OP}\nv_lshl_add_u32 v{vOPW}, v0, 4, s65")
        a(f"s_lshl_b32 s65, s{sWv}, 3\ns_add_u32 s65, s65, {ML}\nv_mov_b32 v{vMLW}, s65")
        a(f"s_lshl_b32 s65, s{sWv}, 8\ns_add_u32 s65, s65, {OP}\nv_lshl_add_u32 v{vOPR}, v0, 3, s65")
        a(f"v_mov_b32 v{vZ}, 0\nv_lshlrev_b32 v{vL16}, 4, v0\nv_mov_b32 v{GR+3}, s{sTAG}")
        a(f"s_lshl_b32 s70, s2, 11\ns_lshl_b32 s65, s{sWv}, 9\ns_add_u32 s70, s70, s65\ns_add_u32 s70, s70, {MB1}")
        a(f"s_lshl_b32 s71, s{sWv}, 17\ns_lshr_b32 s65, s{sKG}, 1\ns_lshl_b32 s65, s65, 13\ns_add_u32 s71, s71, s65")
        a(f"s_and_b32 s65, s{sKG}, 1\ns_lshl_b32 s65, s65, 10\ns_add_u32 s71, s71, s65\ns_add_u32 s71, s71, {MB1}\ns_add_u32 s74, s71, 4096")
        a(f"v_lshrrev_b32 v{E}, 3, v0\nv_and_b32 v{E+1}, 7, v0\nv_and_b32 v{E+2}, 2, v{E}\nv_xor_b32 v{E+1}, v{E+1}, v{E+2}\nv_lshlrev_b32 v{E+1}, 4, v{E+1}")
        a(f"v_and_b32 v{E+2}, 3, v{E}\nv_lshlrev_b32 v{E+2}, 3, v{E+2}\nv_lshrrev_b32 v{E+3}, 2, v{E}\nv_add_u32 v{E+2}, v{E+2}, v{E+3}")
        a(f"v_mul_u32_u24 v{vWO}, 896, v{E+2}\nv_mul_u32_u24 v{vWD}, 896, v{E}")
        a(f"s_and_b32 s65, s{sWv}, 1\ns_lshl_b32 s65, s65, 6\nv_xor_b32 v{E+1}, s65, v{E+1}")
        a(f"v_add_u32 v{vWO}, v{vWO}, v{E+1}\nv_add_u32 v{vWD}, v{vWD}, v{E+1}")
        a(f"s_lshr_b32 s66, s{sKG}, 1\ns_lshl_b32 s66, s66, 8\ns_and_b32 s65, s{sKG}, 1\ns_lshl_b32 s65, s65, 6\ns_add_u32 s66, s66, s65")
        a(f"s_lshl_b32 s65, s{sWv}, 1\ns_add_u32 s66, s66, s65\ns_mul_i32 s66, s66, 896\ns_lshl_b32 s65, s{sCG}, 7\ns_add_u32 s66, s66, s65")
        a(f"s_lshl_b32 s67, s{sKG}, 6\ns_lshl_b32 s68, s{sWv}, 3\ns_add_u32 s67, s67, s68\ns_mul_i32 s67, s67, 896\ns_add_u32 s67, s67, s65")
        a(f"s_lshl_b32 s75, s{sWv}, 10")
        if fakeg:
            a(f"v_mul_u32_u24 v{vWO}, 1792, v{vG}\nv_lshl_add_u32 v{vWO}, v{vJ}, 4, v{vWO}\nv_mov_b32 v{vWD}, v{vWO}")
            a(f"s_lshl_b32 s66, s{sKG}, 2\ns_add_u32 s66, s66, s{sWv}\ns_mul_i32 s67, s66, {8 * 1792}\ns_mul_i32 s66, s66, {16 * 1792}\ns_lshl_b32 s65, s{sCG}, 8\ns_add_u32 s66, s66, s65\ns_add_u32 s67, s67, s65")
        if pf:
            a(f"s_sub_u32 s19, s66, s65")
            a(f"s_add_u32 s76, s{sCG}, 1\ns_cmp_ge_u32 s76, 7\ns_cselect_b32 s76, 0, s76\ns_add_u32 s77, s{sCG}, 6\ns_cmp_ge_u32 s77, 7\ns_cselect_b32 s65, 7, 0\ns_sub_u32 s77, s77, s65")
            a(f"v_bfe_u32 v{E}, v0, 3, 1\nv_lshlrev_b32 v{E}, 7, v{E}\nv_bfe_u32 v{E+1}, v0, 4, 1\nv_lshl_add_u32 v{E}, v{E+1}, 5, v{E}")
            a(f"v_and_b32 v{E+1}, 3, v0\nv_lshl_add_u32 v{E}, v{E+1}, 3, v{E}\nv_bfe_u32 v{E+1}, v0, 2, 1\nv_add_u32 v{E}, v{E}, v{E+1}\nv_mul_u32_u24 v{vTR2}, 896, v{E}")
            a(f"v_mov_b32 v{E}, s76\nv_mov_b32 v{E+1}, s77\nv_cmp_gt_u32 vcc, 32, v0\nv_cndmask_b32 v{E}, v{E+1}, v{E}, vcc\nv_lshl_add_u32 v{vTR2}, v{E}, 7, v{vTR2}")
        a(f"v_lshrrev_b32 v{E}, 2, v{vJ}\nv_bfe_u32 v{E+1}, v{vJ}, 1, 1\ns_lshl_b32 s65, s{sWv}, 1\nv_add_u32 v{E+1}, s65, v{E+1}")
        a(f"v_and_b32 v{E+2}, 2, v{E}\nv_xor_b32 v{E+1}, v{E+1}, v{E+2}")
        a(f"v_and_b32 v{E+3}, 1, v{vJ}\nv_lshlrev_b32 v{E+3}, 3, v{E+3}\nv_lshl_add_u32 v{E+3}, v{E}, 7, v{E+3}")
        a(f"v_and_b32 v{E+2}, 1, v{vG}\nv_lshlrev_b32 v{E+2}, 2, v{E+2}\nv_xor_b32 v{E+4}, v{E+1}, v{E+2}")
        a(f"v_lshl_add_u32 v{vTR}, v{E+4}, 4, v{E+3}\nv_lshl_add_u32 v{vTR}, v{vG}, 10, v{vTR}")
        a(f"v_mul_u32_u24 v{vHA}, {HROW}, v{E}\nv_lshl_add_u32 v{vHA}, v{vG}, 4, v{vHA}")
        a(f"v_mul_u32_u24 v{vAR}, {AROW}, v{E}\nv_lshl_add_u32 v{vAR}, v{vG}, 4, v{vAR}")
        a(f"s_mul_i32 s65, s{sWv}, {AROW}\ns_add_u32 s65, s65, {AIMG}\nv_lshl_add_u32 v{vAW}, v0, 2, s65")
        a(f"v_lshlrev_b32 v{vST2}, 3, v{vJ}\nv_bfe_u32 v{E}, v0, 4, 1\nv_lshl_add_u32 v{vST2}, v{E}, 12, v{vST2}\nv_bfe_u32 v{E}, v0, 5, 1\nv_lshl_add_u32 v{vST2}, v{E}, 14, v{vST2}")
        a(f"s_lshl_b32 s68, s{sCG}, 2\ns_add_u32 s68, s68, s{sWv}\ns_lshl_b32 s68, s68, 15\ns_lshl_b32 s65, s{sKG}, 7\ns_add_u32 s68, s68, s65\ns_add_u32 s68, s68, {MB2}")
        if pol is None: a(f"s_mov_b32 s100, s{sKG}")
        else:
            a(f"s_and_b32 s100, s{sKG}, 0x11\ns_and_b32 s65, s{sKG}, 6\ns_lshl_b32 s65, s65, 1\ns_or_b32 s100, s100, s65\ns_bfe_u32 s65, s{sKG}, 0x10003")
            if pol: a("s_xor_b32 s65, s65, 1")
            a("s_lshl_b32 s65, s65, 1\ns_or_b32 s100, s100, s65")
        a(f"s_and_b32 s78, s100, 0xfc\ns_add_u32 s78, s78, s{sWv}\ns_lshl_b32 s69, s78, 4\ns_lshl_b32 s78, s78, 3\ns_and_b32 s65, s100, 2\ns_add_u32 s78, s78, s65\ns_and_b32 s65, s100, 3\ns_add_u32 s78, s78, s65")
        a(f"s_lshl_b32 s78, s78, 12\ns_add_u32 s78, s78, {MB2}\ns_add_u32 s19, s68, 8192\ns_mul_i32 s65, s65, 448\ns_add_u32 s69, s69, s65\ns_lshl_b32 s69, s69, 1")
        a(f"v_and_b32 v{E}, 7, v0\nv_and_b32 v{E+1}, 1, v{vG}\nv_lshlrev_b32 v{vXO}, 2, v{E}\nv_lshl_add_u32 v{vXO}, v{E+1}, 1, v{vXO}")
    tail_addr()
    if tlb:
        a("s_cmp_lg_u32 s3, 1\ns_cbranch_scc1 L_notlb")
        a("s_mov_b64 exec, 1")
        if tlb & 1: a(f"buffer_load_dword v{E+7}, v{vZ}, {S(SV)}, s{sVO} offen {nt}")
        if tlb & 2:
            a(f"buffer_load_dword v{E+7}, v{vZ}, {S(SA)}, s66 offen {nt}")
            a(f"buffer_load_dword v{E+7}, v{vZ}, {S(SB)}, s67 offen {nt}")
        a("s_mov_b64 exec, -1")
        a.label("L_notlb")

    cw = [wos]
    def wo_dma(step):
        if nowo: return
        for c in range(6):
            if cw[0][c] != step: continue
            if c >= 2:
                a(f"s_add_u32 s65, s66, {(128 * (c & 1) + 32 * ((c - 2) >> 1)) * 896 if not fakeg else (c - 2) * 4 * 1792}\ns_add_u32 m0, s75, {WL1 + 4096 * (c - 2)}")
                a(f"buffer_load_dwordx4 v{vWO}, {S(SA)}, s65 offen {wnt} lds"); vm.append(("wo", c))
            else:
                a(f"s_add_u32 s65, s67, {32 * 896 * c if not fakeg else 4 * 1792 * c}\ns_add_u32 m0, s75, {WL2 + 4096 * c}")
                a(f"buffer_load_dwordx4 v{vWD}, {S(SB)}, s65 offen {wnt} lds"); vm.append(("wd", c))
        if pf and step == pfs:
            if pfth is not None: a(f"s_cmp_gt_i32 s17, {pfth}\ns_cselect_b32 s19, 0x40000000, s19")
            if pf == 1: a("s_mov_b32 exec_hi, 0")
            a(f"buffer_load_dword v{vTRD}, v{vTR2}, {S(SA)}, s19 offen {pfnt}"); vm.append("pf")
            if pf == 1: a("s_mov_b32 exec_hi, -1")
    vPG, vPR, vPA = E + 8, E + 9, E + 10
    sPS, sPL, sPT = 12, 13, 14
    if fb:
        a(f"s_add_u32 s65, s{sWv}, s{sJ}\ns_and_b32 s65, s65, 3\ns_lshl_b32 s{sPL}, s{sH}, 2\ns_add_u32 s{sPL}, s{sPL}, s65\ns_lshl_b32 s{sPL}, s{sPL}, 7\ns_add_u32 s{sPL}, s{sPL}, {PMB}")
        a(f"s_cmp_lg_u32 s101, 0\ns_cselect_b32 s{sPL}, 0x40000000, s{sPL}\ns_cselect_b32 s{sPT}, 8, 0\ns_cselect_b32 s16, 0, 16")
        a(f"s_lshl_b32 s65, s{sB}, 2\ns_add_u32 s65, s65, s{sJ}\ns_lshl_b32 s65, s65, 2\ns_add_u32 s{sPS}, s{sPL}, s65")
        a(f"s_lshl_b32 s65, s{sWv}, 2\ns_add_u32 s65, s65, {PGL}\nv_mov_b32 v{vPA+1}, s65")
        a(f"v_mov_b32 v{vPG}, 0\nv_bfe_i32 v{vPR}, v0, 0, 1\nv_lshlrev_b32 v{vPA}, 2, v0")
    def flags(tu, td):
        if th2 is not None: a(f"s_sub_u32 s65, s17, {td}\ns_cmp_gt_u32 s65, {th2 - td}\ns_cselect_b64 vcc, -1, 0")
        elif ctl["Wdn"]: a(f"s_cmp_lt_i32 s17, {td}\ns_cselect_b64 vcc, -1, 0")
        a(f"s_cmp_gt_i32 s17, {tu}")
    def after(u):
        if fb and soft and u == softu: flags(ctl['thup'], ctl['thdn'])
    def progress():
        if not fb: return
        if gfb: a(f"v_readlane_b32 s15, v{vPR}, 16")
        for sh in (8, 4, 2, 1): a(f"v_add_u32_dpp v{vPR}, v{vPR}, v{vPR} row_ror:{sh} {FULL}")
        a(f"v_add_u32 v{vPG}, 1, v{vPG}\nv_readfirstlane_b32 s65, v{vPR}")
        if gfb: a(f"s_add_u32 s65, s65, s15")
        a("s_mov_b64 exec, 1")
        a(f"buffer_store_dword v{vPG}, v{vZ}, {S(SW)}, s{sPS} offen"); vm.append(("ps", nload[0]))
        if gfb >= 2: a(f"ds_write_b32 v{vPA+1}, v{vPG}")
        a(f"s_mov_b64 exec, {'0x1ffff' if gfb else '0xffff'}")
        a(f"buffer_load_dword v{vPR}, v{vPA}, {S(SW)}, s{sPL} offen sc1"); vm.append(("pl", nload[0]))
        a("s_mov_b64 exec, -1")
        a(f"s_sub_u32 s17, s65, s{sPT}\ns_add_u32 s{sPT}, s{sPT}, s16")
        flags(*(soft or (ctl['thup'], ctl['thdn'])))
        adapt[0] = True
    def iterK(nextkind):
        progress()
        for u in range(8):
            consK(ring(0, u), u, DA)
            throttle_issue(nextkind, ring(0, u), u)
            after(u)
            if nextkind == "V" and u == 0 and -2 in wos:
                a("s_cselect_b32 s18, 1, 0")
                a(f"s_cmp_eq_u32 s{sCG}, 7\ns_cselect_b32 s66, 0x40000000, s66\ns_cselect_b32 s67, 0x40000000, s67")
                wo_dma(-2)
                a("s_cmp_lg_u32 s18, 0")
        extract([DA], 0)
    a("; K loop")
    a(f"s_mov_b32 s{sCNT}, {15 - NP}")
    a.label("L_kk")
    iterK("K")
    a(f"s_sub_u32 s{sCNT}, s{sCNT}, 1\ns_cmp_lg_u32 s{sCNT}, 0\ns_cbranch_scc1 L_kk")
    iterK("V")
    compute_pre = lambda: (a(f"v_not_b32 v{P1+3}, v{GR+3}\nv_mov_b32 v{P1}, 0\nv_mov_b32 v{P1+1}, 0\nv_mov_b32 v{P1+2}, 0\ns_mov_b32 exec_hi, 0"),
                           a(f"buffer_store_dwordx4 {V4(P1)}, v{vL16}, {S(SW)}, s70 offen\ns_mov_b32 exec_hi, -1"))
    if pre1 == 1: compute_pre()
    stamp(3)
    a(f"v_subrev_u32 v{vSC}, 4096, v{vSC}")
    a(f"ds_read_b32 v{vS}, v{vSC}")
    a(f"v_max_f32_dpp v{vMAX}, v{vMAX}, v{vMAX} row_ror:4 {FULL}")
    a(f"v_max_f32_dpp v{vMAX}, v{vMAX}, v{vMAX} row_ror:8 {FULL}")
    a(f"v_max_f32_dpp v{vMAX}, v{vMAX}, v{vMAX} row_bcast:15 row_mask:0xa bank_mask:0xf")
    a(f"v_max_f32_dpp v{vMAX}, v{vMAX}, v{vMAX} row_bcast:31 row_mask:0xc bank_mask:0xf")
    a(f"v_readlane_b32 s65, v{vMAX}, 63")
    a(f"v_mov_b32 v{vMC}, s65")
    vP = TMP
    def ld1(k): a(f"buffer_load_dwordx4 {V4(P1+4*k)}, v{vL16}, {S(SW)}, s{71 if k < 2 else 74} offen{' offset:2048' if k & 1 else ''} sc1")
    def last_extra():
        a(f"s_cmp_eq_u32 s{sCG}, 7\ns_cselect_b32 s66, 0x40000000, s66\ns_cselect_b32 s67, 0x40000000, s67\ns_cselect_b32 s69, s69, 0x40000000")
        wo_dma(-1)
        a(f"buffer_load_ushort v{vX}, v{vXO}, {S(SD)}, s69 offen"); vm.append("x")
        if touch:
            a("; (value unused: address translation of d_out ahead of the final store)")
            a(f"buffer_load_ushort v{E+7}, v{vXO}, {S(SC_)}, s69 offen"); vm.append("o")
        a(f"v_add_f32_dpp v{vL}, v{vL}, v{vL} row_ror:4 {FULL}")
        a(f"v_add_f32_dpp v{vL}, v{vL}, v{vL} row_ror:8 {FULL}")
        a(f"v_add_f32_dpp v{vL}, v{vL}, v{vL} row_bcast:15 row_mask:0xa bank_mask:0xf")
        a(f"v_add_f32_dpp v{vL}, v{vL}, v{vL} row_bcast:31 row_mask:0xc bank_mask:0xf")
        a(f"v_mov_b32 v{vML}, v{vMC}\nv_mov_b32 v{vML+1}, v{vL}")
        a("s_mov_b32 exec_lo, 0\ns_mov_b32 exec_hi, 0x80000000")
        a(f"ds_write_b64 v{vMLW}, {V2(vML)}")
        a("s_mov_b64 exec, -1")
        if hstep == -1: hoisted()
    def hoisted():
        if hoist:
            a("s_waitcnt lgkmcnt(0)\ns_barrier")
            if early1 == 2:
                for k in range(4): ld1(k); vm.append(("p1", k))
            a(f"ds_read_b128 {V4(G)}, v{vZ} offset:{ML}\nds_read_b128 {V4(G+4)}, v{vZ} offset:{ML+16}\ns_waitcnt lgkmcnt(0)")
            if hb:
                a(f"ds_read_b128 {V4(AH)}, v{vHA} offset:{HIMG}\nds_read_b128 {V4(AH+4)}, v{vHA} offset:{HIMG+64}")
                a(f"ds_read_b64_tr_b16 {V2(BD)}, v{vTR} offset:{WL2}\nds_read_b64_tr_b16 {V2(BD+2)}, v{vTR} offset:{WL2+512}")
                a(f"ds_read_b64_tr_b16 {V2(BD+4)}, v{vTR} offset:{WL2+4096}\nds_read_b64_tr_b16 {V2(BD+6)}, v{vTR} offset:{WL2+4096+512}")
                if hb == 1:
                    for k in range(4): a(f"ds_read_b64_tr_b16 {V2(BW+4*k)}, v{vTR} offset:{WL1+4096*k}\nds_read_b64_tr_b16 {V2(BW+4*k+2)}, v{vTR} offset:{WL1+4096*k+512}")
            weights()
            if hb:
                a("s_waitcnt lgkmcnt(0)")
                a(f"v_mfma_f32_16x16x32_bf16 {V4(Y)}, {V4(AH)}, {V4(BD)}, 0")
                a(f"v_mfma_f32_16x16x32_bf16 {V4(Y)}, {V4(AH+4)}, {V4(BD+4)}, {V4(Y)}")
    def weights():
        ms, ls = [G, G+2, G+4, G+6], [G+1, G+3, G+5, G+7]
        a(f"v_max3_f32 v{E+4}, v{ms[0]}, v{ms[1]}, v{ms[2]}\nv_max_f32 v{E+4}, v{E+4}, v{ms[3]}")
        for k in range(4): a(f"v_sub_f32 v{ms[k]}, v{ms[k]}, v{E+4}")
        for k in range(4): a(f"v_mul_f32 v{ms[k]}, v{ms[k]}, v{vC}")
        for k in range(4): a(f"v_exp_f32 v{ms[k]}, v{ms[k]}")
        a(f"v_mul_f32 v{E+5}, v{ms[0]}, v{ls[0]}")
        for k in range(1, 4): a(f"v_fmac_f32 v{E+5}, v{ms[k]}, v{ls[k]}")
        a(f"v_rcp_f32 v{E+6}, v{E+5}\nv_log_f32 v{E+5}, v{E+5}")
        for k in range(4): a(f"v_mul_f32 v{ms[k]}, v{ms[k]}, v{E+6}")
        a(f"v_fma_f32 v{GR+2}, v{E+4}, v{vC}, v{E+5}")
    srcV = [None]
    def iterV(last, bu=0):
        a("s_waitcnt lgkmcnt(0)")
        a(f"v_sub_f32 v{vP}, v{vS}, v{vMC}\nv_mul_f32 v{vP}, v{vP}, v{vC}")
        a(f"v_exp_f32 v{vP}, v{vP}")
        if not last:
            a(f"v_add_u32 v{vSC}, 256, v{vSC}\nds_read_b32 v{vS}, v{vSC}")
        a(f"v_add_f32 v{vL}, v{vL}, v{vP}")
        a(f"v_cvt_pk_bf16_f32 v{vP}, v{vP}, v{vP}")
        if last: last_extra()
        elif not bu: progress()
        base = nload[0] - 8
        if bu:
            adapt[0] = False; curW[0] = bu
            for u in range(8): throttle_issue("V", QF + 4 * u, u)
        for u in range(8):
            t, half = u >> 1, u & 1
            b = BB + 4 * (t & 1)
            if half == 0:
                for w in range(4): a(f"v_and_b32_dpp v{b+w}, v{vP}, v{MASK+w} row_newbcast:{4*t} {FULL}")
            if last or bu: wait_for(("s", base + u))
            a(f"v_mfma_f32_16x16x32_bf16 {V4(OACC + 4 * half)}, {V4(QF + 4 * u if (last and burst) else ring(0, u))}, {V4(b)}, {V4(OACC + 4 * half)}")
            if bu: pass
            elif not last: throttle_issue("V", ring(0, u), u); after(u)
            elif u < 7:
                wo_dma(u)
                if u == hstep: hoisted()
    a("; V loop")
    a(f"s_mov_b32 s{sCNT}, {15 - nend - (1 if burst else 0)}")
    a.label("L_vv")
    iterV(False)
    a(f"s_sub_u32 s{sCNT}, s{sCNT}, 1\ns_cmp_lg_u32 s{sCNT}, 0\ns_cbranch_scc1 L_vv")
    if nend:
        if pre1 == 2: compute_pre()
        curW[0] = Wend or W
        ctl.update(endp or {})
        a(f"s_mov_b32 s{sCNT}, {nend}")
        a.label("L_vv2")
        iterV(False)
        a(f"s_sub_u32 s{sCNT}, s{sCNT}, 1\ns_cmp_lg_u32 s{sCNT}, 0\ns_cbranch_scc1 L_vv2")
    if burst: iterV(False, burst)
    a.label("L_tail", drain=False)
    if stL: stamp(3)
    def final_iter():
        iterV(True)
        stamp(4)
        for r in range(4): a(f"v_mov_b32_dpp v{OACC+r}, v{OACC+4+r} {IDP} row_mask:0xf bank_mask:0xc")
        a(f"ds_write_b128 v{vOPW}, {V4(OACC)}")
        wo_dma(7)
    if thw is not None:
        a(f"v_readlane_b32 s15, v{vPR}, 16")
        for sh in (8, 4, 2, 1): a(f"v_add_u32_dpp v{vPR}, v{vPR}, v{vPR} row_ror:{sh} {FULL}")
        a(f"v_readfirstlane_b32 s65, v{vPR}\ns_add_u32 s65, s65, s15\ns_sub_u32 s17, s65, s{sPT}")
        a(f"s_cmp_gt_i32 s17, {thw}\ns_cbranch_scc1 L_lastE")
        sv = list(vm)
        final_iter()
        a("s_branch L_lastJ")
        a.label("L_lastE")
        vm[:] = sv; cw[0] = (-1,) * 6
        final_iter()
        a.label("L_lastJ")
    else: final_iter()
    a("s_waitcnt lgkmcnt(0)")
    a("s_barrier")
    a("s_mov_b32 exec_hi, 0")
    if not hoist: a(f"ds_read_b128 {V4(G)}, v{vZ} offset:{ML}\nds_read_b128 {V4(G+4)}, v{vZ} offset:{ML+16}")
    for w in range(4): a(f"ds_read_b64 {V2(G+8+2*w)}, v{vOPR} offset:{1024*w}")
    if not hoist:
        a("s_waitcnt lgkmcnt(4)")
        weights()
    ms = [G, G+2, G+4, G+6]
    a("s_cmp_lg_u32 s101, 0")
    a("s_waitcnt lgkmcnt(3)")
    a(f"v_pk_mul_f32 {V2(GR)}, {V2(G+8)}, {V2(ms[0])} op_sel_hi:[1,0]")
    for k in range(1, 4):
        a(f"s_waitcnt lgkmcnt({3-k})")
        a(f"v_pk_fma_f32 {V2(GR)}, {V2(G+8+2*k)}, {V2(ms[k])}, {V2(GR)} op_sel_hi:[1,0,1]")
    if fast:
        a("s_cbranch_scc1 L_st1far", drain=False)
        a(f"buffer_store_dwordx4 {V4(GR)}, v{vL16}, {S(SW)}, s70 offen")
        a("s_branch L_st1done", drain=False)
        a.label("L_st1far", drain=False)
    a(f"buffer_store_dwordx4 {V4(GR)}, v{vL16}, {S(SW)}, s70 offen sc1")
    if fast: a.label("L_st1done", drain=False)
    def st1_global():
        a("s_mov_b32 exec_hi, 0")
        a(f"buffer_store_dwordx4 {V4(GR)}, v{vL16}, {S(SW)}, s70 offen sc1")
        a("s_mov_b32 exec_hi, -1")
    a("s_mov_b64 exec, -1")
    stamp(8)
    a(f"s_mov_b32 s{sCNT}, {spin}")
    a(f"s_cmp_eq_u32 s{sCG}, 7\ns_cbranch_scc1 L_reduce", drain=False)
    if not early1:
        if pw is not None: a(f"s_waitcnt vmcnt({pw})")
        if stD: stamp(3)
        wo_dma(8)
        if sl1: a(f"s_sleep {sl1}")
        for k in range(4): ld1(k)
        wo_dma(9)
    if not hb: a(f"ds_read_b128 {V4(AH)}, v{vHA} offset:{HIMG}\nds_read_b128 {V4(AH+4)}, v{vHA} offset:{HIMG+64}")
    if early1: a("s_waitcnt vmcnt(1)\ns_branch L_p1c", drain=False)
    if 9 in wos: a(f"s_waitcnt vmcnt({list(wos).count(9)})\ns_branch L_p1c", drain=False)
    if b2b:
        a("s_waitcnt vmcnt(0)\ns_barrier")
        a(f"ds_read_b64_tr_b16 {V2(BD)}, v{vTR} offset:{WL2}\nds_read_b64_tr_b16 {V2(BD+2)}, v{vTR} offset:{WL2+512}")
        a(f"ds_read_b64_tr_b16 {V2(BD+4)}, v{vTR} offset:{WL2+4096}\nds_read_b64_tr_b16 {V2(BD+6)}, v{vTR} offset:{WL2+4096+512}")
        for k in range(4): a(f"ds_read_b64_tr_b16 {V2(BW+4*k)}, v{vTR} offset:{WL1+4096*k}\nds_read_b64_tr_b16 {V2(BW+4*k+2)}, v{vTR} offset:{WL1+4096*k+512}")
    a.label("L_p1", drain=False)
    a("s_waitcnt vmcnt(0)")
    a.label("L_p1c", drain=False)
    MK = [4, 6, 8, 10]
    for k in range(4): a(f"v_cmp_ne_u32 s[{MK[k]}:{MK[k]+1}], s{sTAG}, v{P1+4*k+3}")
    a(f"s_or_b64 s[76:77], s[4:5], s[6:7]\ns_or_b64 vcc, s[8:9], s[10:11]\ns_or_b64 s[76:77], s[76:77], vcc")
    a("s_cbranch_scc0 L_p1ok", drain=False)
    if sleep1: a(f"s_sleep {sleep1}")
    for k in range(4):
        a(f"s_cmp_eq_u64 s[{MK[k]}:{MK[k]+1}], 0\ns_cbranch_scc1 L_p1s{k}", drain=False)
        ld1(k)
        a.label(f"L_p1s{k}", drain=False)
    a(f"s_sub_u32 s{sCNT}, s{sCNT}, 1\ns_cbranch_scc0 L_p1", drain=False)
    a.label("L_p1ok", drain=False)
    stamp(5)
    lam = [P1+2, P1+6, P1+10, P1+14]
    a(f"v_max3_f32 v{E+4}, v{lam[0]}, v{lam[1]}, v{lam[2]}\nv_max_f32 v{E+4}, v{E+4}, v{lam[3]}")
    for k in range(4): a(f"v_sub_f32 v{lam[k]}, v{lam[k]}, v{E+4}")
    for k in range(4): a(f"v_exp_f32 v{lam[k]}, v{lam[k]}")
    a(f"v_add_f32 v{E+5}, v{lam[0]}, v{lam[1]}\nv_pk_mul_f32 {V2(G)}, {V2(P1)}, {V2(lam[0])} op_sel_hi:[1,0]\nv_add_f32 v{E+6}, v{lam[2]}, v{lam[3]}")
    a(f"v_pk_fma_f32 {V2(G)}, {V2(P1+4)}, {V2(lam[1])}, {V2(G)} op_sel_hi:[1,0,1]\nv_add_f32 v{E+6}, v{E+5}, v{E+6}")
    a(f"v_pk_fma_f32 {V2(G)}, {V2(P1+8)}, {V2(lam[2])}, {V2(G)} op_sel_hi:[1,0,1]\nv_rcp_f32 v{E+6}, v{E+6}")
    a(f"v_pk_fma_f32 {V2(G)}, {V2(P1+12)}, {V2(lam[3])}, {V2(G)} op_sel_hi:[1,0,1]")
    a(f"v_pk_mul_f32 {V2(G)}, {V2(G)}, {V2(E+6)} op_sel_hi:[1,0]")
    a(f"v_cvt_pk_bf16_f32 v{G}, v{G}, v{G+1}")
    if b2b:
        Y2 = G + 4
        a(f"ds_write_b32 v{vAW}, v{G}")
        a("s_waitcnt lgkmcnt(0)")
        a("s_barrier")
        for k in range(4): a(f"ds_read_b128 {V4(AO+4*k)}, v{vAR} offset:{AIMG+64*k}")
        a(f"v_mfma_f32_16x16x32_bf16 {V4(Y)}, {V4(AH)}, {V4(BD)}, 0")
        a(f"v_mfma_f32_16x16x32_bf16 {V4(Y2)}, {V4(AH+4)}, {V4(BD+4)}, 0")
        for k in range(4):
            a(f"s_waitcnt lgkmcnt({3 - k})")
            y = Y if k & 1 == 0 else Y2
            a(f"v_mfma_f32_16x16x32_bf16 {V4(y)}, {V4(AO+4*k)}, {V4(BW+4*k)}, {V4(y)}")
        a(f"v_add_f32 v{GR+2}, v{Y}, v{Y2}")
        Y = GR + 2
    else:
        a(f"ds_write_b32 v{vAW}, v{G}")
        a("s_waitcnt vmcnt(0) lgkmcnt(0)")
        a("s_barrier")
        if not hb:
            a(f"ds_read_b64_tr_b16 {V2(BD)}, v{vTR} offset:{WL2}\nds_read_b64_tr_b16 {V2(BD+2)}, v{vTR} offset:{WL2+512}")
            a(f"ds_read_b64_tr_b16 {V2(BD+4)}, v{vTR} offset:{WL2+4096}\nds_read_b64_tr_b16 {V2(BD+6)}, v{vTR} offset:{WL2+4096+512}")
        for k in range(4):
            a(f"ds_read_b128 {V4(AO+4*k)}, v{vAR} offset:{AIMG+64*k}")
            if hb != 1: a(f"ds_read_b64_tr_b16 {V2(BW+4*k)}, v{vTR} offset:{WL1+4096*k}\nds_read_b64_tr_b16 {V2(BW+4*k+2)}, v{vTR} offset:{WL1+4096*k+512}")
        if not hb:
            a("s_waitcnt lgkmcnt(12)")
            a(f"v_mfma_f32_16x16x32_bf16 {V4(Y)}, {V4(AH)}, {V4(BD)}, 0")
            a(f"v_mfma_f32_16x16x32_bf16 {V4(Y)}, {V4(AH+4)}, {V4(BD+4)}, {V4(Y)}")
        for k in range(4):
            a(f"s_waitcnt lgkmcnt({(3 - k) * (1 if hb == 1 else 3)})")
            a(f"v_mfma_f32_16x16x32_bf16 {V4(Y)}, {V4(AO+4*k)}, {V4(BW+4*k)}, {V4(Y)}")
        a(f"v_mov_b32 v{Y+1}, v{GR+3}")
    if st4:
        a(f"v_mov_b32_dpp v{Y+2}, v{Y} quad_perm:[1,1,3,3] {FULL}\nv_mov_b32 v{Y+3}, v{GR+3}")
        a("s_mov_b32 exec_lo, 0x55555555\ns_mov_b32 exec_hi, 0x55555555")
        a(f"buffer_store_dwordx4 {V4(Y)}, v{vST2}, {S(SW)}, s68 offen sc1")
        a("s_mov_b64 exec, -1")
    elif not nost2:
        a(f"buffer_store_dwordx2 {V2(Y)}, v{vST2}, {S(SW)}, s68 offen sc1")
        a(f"buffer_store_dwordx2 {V2(Y)}, v{vST2}, {S(SW)}, s19 offen sc1")
    if fast and clean: st1_global()
    a("s_branch L_sdone")
    a.label("L_reduce")
    if fast and clean:
        a("s_sleep 12")
        st1_global()
    a(f"s_cmp_ge_u32 s100, 28\ns_cbranch_scc1 L_sdone")
    if nored: a("s_branch L_sdone")
    if dpol is not None:
        a(f"s_bfe_u32 s65, s{sH}, 0x10002\ns_xor_b32 s65, s65, {dpol}\ns_lshl_b32 s65, s65, 13\ns_add_u32 s78, s78, s65")
    else:
        a(f"ds_read_b32 v{E}, v{vZ} offset:{TAGL+8}\ns_waitcnt lgkmcnt(0)\nv_readfirstlane_b32 s65, v{E}\ns_and_b32 s65, s65, 0x2000\ns_add_u32 s78, s78, s65")
    SETS = [R + 16 * d for d in range(2)] + [QF, QF + 16]
    def ld2(d):
        for k in range(4): a(f"buffer_load_dwordx4 {V4(SETS[d]+4*k)}, v{vL16}, {S(SW)}, s78 offen offset:{1024*k} sc1")
    a(f"s_waitcnt vmcnt(0)\nv_lshlrev_b32 v{vX}, 16, v{vX}")
    for d in range(D2 - 1):
        ld2(d)
        if stag2: a(f"s_sleep {stag2}")
    a.label("L_p2")
    for d in range(D2):
        ld2((d + D2 - 1) % D2)
        a(f"s_waitcnt vmcnt({4 * (D2 - 1)})")
        q = SETS[d]
        a(f"v_xor_b32 v{E}, v{q+1}, v{GR+3}\nv_xor_b32 v{E+1}, v{q+3}, v{GR+3}")
        for k in range(1, 4): a(f"v_bitop3_b32 v{E}, v{q+4*k+1}, v{GR+3}, v{E} bitop3:0xbe\nv_bitop3_b32 v{E+1}, v{q+4*k+3}, v{GR+3}, v{E+1} bitop3:0xbe")
        a(f"v_or_b32 v{E}, v{E}, v{E+1}\nv_add_f32 v{P1}, v{q}, v{q+4}\nv_add_f32 v{P1+2}, v{q+2}, v{q+6}\nv_cmp_ne_u32 vcc, 0, v{E}")
        a(f"v_add_f32 v{P1+8}, v{q+8}, v{q+12}\nv_add_f32 v{P1+10}, v{q+10}, v{q+14}")
        a("s_cbranch_vccz L_p2ok", drain=False)
    a(f"s_sub_u32 s{sCNT}, s{sCNT}, 1\ns_cbranch_scc0 L_p2", drain=False)
    a.label("L_p2ok", drain=False)
    stamp(6)
    a(f"v_add_f32 v{P1}, v{P1}, v{P1+8}\nv_add_f32 v{P1+2}, v{P1+2}, v{P1+10}")
    a(f"v_permlane16_swap_b32 v{P1}, v{P1+2}")
    a(f"v_add_f32 v{P1}, v{P1}, v{P1+2}")
    a(f"v_add_f32_dpp v{P1}, v{P1}, v{P1} row_ror:8 {FULL}")
    a(f"v_mov_b32 v{P1+2}, v{P1}")
    a(f"v_permlane32_swap_b32 v{P1}, v{P1+2}")
    a(f"v_add_f32 v{P1}, v{P1}, v{P1+2}\nv_add_f32 v{P1}, v{P1}, v{vX}")
    a(f"v_cvt_pk_bf16_f32 v{P1}, v{P1}, v{P1}")
    a(f"s_mov_b32 exec_hi, 0\ns_mov_b32 exec_lo, 0x00ff00ff")
    a(f"buffer_store_short v{P1}, v{vXO}, {S(SC_)}, s69 offen {osc}")
    a(f"s_or_b32 s65, s100, s{sWv}\ns_cmp_lg_u32 s65, 0\ns_cbranch_scc1 L_sdone")
    a("s_mov_b64 exec, 1")
    a(f"buffer_store_dword v{GR+3}, v{vZ}, {S(SW)}, 0 offen {osc}")
    a.label("L_sdone")
    stamp(7)
    pad("S")
    dump_stamps(9)
    a("s_endpgm")

    a.label("L_helper")
    in_helper[0] = True
    a("s_load_dwordx16 s[4:19], s[0:1], 0\ns_load_dwordx8 s[20:27], s[0:1], 64")
    decode(a)
    X, F, AF, AF2, BF, D, TG = 32, 64, 96, 112, 128, 184, 200
    a("s_setprio 3")
    a(f"v_mul_u32_u24 v6, 896, v5\nv_lshl_add_u32 v6, v4, 6, v6\nv_mov_b32 v7, 0x40000000\nv_cmp_gt_u32 s[74:75], 14, v4")
    a(f"v_cndmask_b32 v7, v7, v6, s[74:75]")
    a(f"v_lshrrev_b32 v8, 3, v0\nv_and_b32 v9, 7, v0\nv_lshlrev_b32 v9, 4, v9\nv_lshl_add_u32 v10, v8, 13, v9")
    a(f"v_mul_u32_u24 v11, 3584, v8\nv_add_u32 v11, v11, v9")
    a(f"s_mul_i32 s65, s{sB}, {112 * 8192}\ns_lshl_b32 s66, s{sIDX}, 7\ns_add_u32 s65, s65, s66")
    a("s_waitcnt lgkmcnt(0)")
    a(f"s_load_dword s{sTAG}, s[26:27], 0")
    srd(SA, 4, 3584)
    for u in range(4): a(f"buffer_load_dwordx4 {V4(X+4*u)}, v7, {S(SA)}, 0 offen offset:{16*u}")
    srd(SB, 10, 448 * 8192)
    def dma(sr, voff, so, stride, lds0, win=None):
        for k in range(14):
            if win and k >= win: a(f"s_waitcnt vmcnt({win-1})")
            a(f"s_mov_b32 m0, {lds0 + 1024 * k}")
            a(f"buffer_load_dwordx4 v{voff}, {S(sr)}, s{so} offen {wnt} lds")
            if k < 13: a(f"s_add_u32 s{so}, s{so}, {8 * stride}")
    if not noq: dma(SB, 10, 65, 8192, WL0)
    srd(SW, 26, WS_USED)
    nini = 0
    if fb:
        a(f"s_lshl_b32 s34, s{sH}, 9\ns_add_u32 s34, s34, {PMB}\ns_lshl_b32 s35, s{sB}, 2\ns_add_u32 s35, s35, s{sJ}\ns_lshl_b32 s68, s35, 2\ns_add_u32 s68, s68, s34")
        a(f"v_lshlrev_b32 v2, 7, v0\nv_mov_b32 v3, 0\ns_mov_b64 exec, 15")
        a(f"buffer_store_dword v3, v2, {S(SW)}, s68 offen"); nini += 1
        if gfb:
            a(f"s_cmp_eq_u32 s35, 0\ns_cselect_b32 s68, s34, 0x40000000")
            a(f"buffer_store_dword v3, v2, {S(SW)}, s68 offen offset:64"); nini += 1
        a("s_mov_b64 exec, -1")
    a(f"v_and_b32 v14, 3, v4\nv_lshrrev_b32 v15, 2, v4\ns_mul_i32 s65, s{sB}, 224")
    a(f"v_mul_u32_u24 v12, 896, v15\nv_add_u32 v12, s65, v12\nv_lshl_add_u32 v28, v5, 3, v12\nv_lshl_add_u32 v12, v5, 4, v12")
    a(f"s_lshr_b32 s65, s{sCG}, 1\ns_mul_i32 s65, s65, 224")
    a(f"v_mul_u32_u24 v30, 896, v14\nv_add_u32 v30, s65, v30\nv_lshl_add_u32 v31, v5, 3, v30\nv_lshl_add_u32 v30, v5, 4, v30")
    a(f"v_lshl_add_u32 v8, v5, 2, v14\nv_lshlrev_b32 v8, 4, v8\nv_lshl_add_u32 v8, v15, 16, v8")
    a(f"v_lshlrev_b32 v9, 5, v14\nv_lshl_add_u32 v9, v15, 3, v9\nv_lshl_add_u32 v9, v5, 7, v9")
    for t in range(1, 4): a(f"v_cmp_eq_u32 s[{26+2*t}:{27+2*t}], {t}, v14")
    a(f"v_lshlrev_b32 v15, 7, v15\nv_lshl_add_u32 v15, v14, 3, v15")
    a(f"v_lshl_add_u32 v13, v5, 10, v15\nv_lshl_add_u32 v29, v5, 9, v15")
    a(f"s_waitcnt vmcnt(14)" if not noq else "s_waitcnt vmcnt(0)")
    stamp(1)
    for k in range(16): a(f"v_lshlrev_b32 v{F+2*k}, 16, v{X+k}\nv_and_b32 v{F+2*k+1}, 0xffff0000, v{X+k}")
    a(f"v_pk_add_f32 v[14:15], {V2(F)}, {V2(F+2)}\nv_pk_add_f32 v[16:17], {V2(F+4)}, {V2(F+6)}")
    for k in range(4, 16, 2):
        a(f"v_pk_add_f32 v[14:15], v[14:15], {V2(F+2*k)}\nv_pk_add_f32 v[16:17], v[16:17], {V2(F+2*k+2)}")
    a("v_pk_add_f32 v[14:15], v[14:15], v[16:17]\nv_add_f32 v14, v14, v15")
    def rowsum(r):
        for sh in (8, 4, 2, 1): a(f"v_add_f32_dpp v{r}, v{r}, v{r} row_ror:{sh} {FULL}")
    rowsum(14)
    a(f"v_mul_f32 v18, {hex(f2u(-1.0 / 448))}, v14\nv_mov_b32 v19, v18")
    a("v_mov_b32 v14, 0\nv_mov_b32 v15, 0\nv_mov_b32 v16, 0\nv_mov_b32 v17, 0")
    for k in range(0, 16, 2):
        a(f"v_pk_add_f32 v[20:21], {V2(F+2*k)}, v[18:19]\nv_pk_add_f32 v[22:23], {V2(F+2*k+2)}, v[18:19]")
        a(f"v_pk_fma_f32 v[14:15], v[20:21], v[20:21], v[14:15]\nv_pk_fma_f32 v[16:17], v[22:23], v[22:23], v[16:17]")
    a("v_pk_add_f32 v[14:15], v[14:15], v[16:17]\nv_add_f32 v14, v14, v15\nv_cndmask_b32 v14, 0, v14, s[74:75]")
    rowsum(14)
    def rbf(r): a(f"v_cvt_pk_bf16_f32 v{r}, v{r}, v{r}\nv_and_b32 v{r}, 0xffff0000, v{r}")
    a(f"v_mul_f32 v14, {hex(f2u(1.0 / 448))}, v14"); rbf(14)
    a(f"v_add_f32 v14, {hex(f2u(1e-5))}, v14"); rbf(14)
    a("v_sqrt_f32 v14, v14"); rbf(14)
    a("v_rcp_f32 v16, v14\nv_mov_b32 v15, v14"); rbf(18)
    a("v_mov_b32 v17, v16\nv_mov_b32 v19, v18")
    for k in range(16):
        a(f"v_pk_add_f32 {V2(F+2*k)}, {V2(F+2*k)}, v[18:19]")
    for k in range(16):
        a(f"v_cvt_pk_bf16_f32 v{X+k}, v{F+2*k}, v{F+2*k+1}")
    for k in range(16): a(f"v_lshlrev_b32 v{F+2*k}, 16, v{X+k}\nv_and_b32 v{F+2*k+1}, 0xffff0000, v{X+k}")
    for k in range(16):
        t = 20 + 2 * (k & 3)
        a(f"v_pk_mul_f32 {V2(t)}, {V2(F+2*k)}, v[16:17]")
        a(f"v_pk_fma_f32 {V2(F+2*k)}, {V2(t)}, v[14:15], {V2(F+2*k)} neg_lo:[1,0,0] neg_hi:[1,0,0]")
        a(f"v_pk_fma_f32 {V2(t)}, {V2(F+2*k)}, v[16:17], {V2(t)}")
        a(f"v_cvt_pk_bf16_f32 v{X+k}, v{t}, v{t+1}")
    a("s_mov_b64 exec, s[74:75]")
    for u in range(4): a(f"ds_write_b128 v6, {V4(X+4*u)} offset:{XN + 16*u}")
    a("s_mov_b64 exec, -1")
    a("s_waitcnt lgkmcnt(0)")
    a(f"s_mul_i32 s{sTAG}, s{sTAG}, 0x9E3779B1\ns_add_u32 s{sTAG}, s{sTAG}, 0x7F4A7C15")
    for k in range(3): a(f"ds_read_b128 {V4(AF+4*k)}, v12 offset:{XN + 64*k}")
    a(f"ds_read_b64 {V2(AF+12)}, v28 offset:{XN + 192}")
    a(f"v_mov_b32 v{TG}, s{sTAG}\nv_lshrrev_b32 v{TG+1}, 8, v{TG}\nv_lshrrev_b32 v{TG+2}, 16, v{TG}\nv_lshrrev_b32 v{TG+3}, 24, v{TG}\ns_movk_i32 s78, 0xff")
    a(f"v_lshlrev_b32 v10, 4, v0")
    a(f"s_lshl_b32 s66, s{sH}, 12\ns_lshl_b32 s67, s{sB}, 10\ns_add_u32 s66, s66, s67\ns_lshl_b32 s67, s{sJ}, 8\ns_add_u32 s66, s66, s67\ns_add_u32 s66, s66, {QMB}")
    a(f"s_lshl_b32 s67, s{sBH}, 12\ns_add_u32 s67, s67, {QMB}")
    a("s_waitcnt vmcnt(0)")
    stamp(2)
    a(f"s_getreg_b32 s69, hwreg(HW_REG_XCC_ID, 0, 4)\nv_xor_b32 v{TG+4}, s69, v{TG+3}")
    def piece(af, transposed):
        for t in range(4):
            for k in range(3):
                o = WL0 + 4096 * k + 32 * t
                a(f"ds_read_b64_tr_b16 {V2(BF+14*t+4*k)}, v13 offset:{o}\nds_read_b64_tr_b16 {V2(BF+14*t+4*k+2)}, v13 offset:{o + 512}")
            a(f"ds_read_b64_tr_b16 {V2(BF+14*t+12)}, v29 offset:{WL0 + 12288 + 32 * t}")
        a("s_waitcnt lgkmcnt(0)")
        for k in range(3):
            for t in range(4):
                x, w = V4(af+4*k), V4(BF+14*t+4*k)
                a(f"v_mfma_f32_16x16x32_bf16 {V4(D+4*t)}, {w if transposed else x}, {x if transposed else w}, {'0' if k == 0 else V4(D+4*t)}")
        for t in range(4):
            x, w = V2(af+12), V2(BF+14*t+12)
            a(f"v_mfma_f32_16x16x16_bf16 {V4(D+4*t)}, {w if transposed else x}, {x if transposed else w}, {V4(D+4*t)}")
        for t in range(1, 4):
            for r in range(4):
                if transposed: a(f"v_cndmask_b32 v{D+r}, v{D+r}, v{D+4*t+r}, s[{26+2*t}:{27+2*t}]")
                else: a(f"v_mov_b32_dpp v{D+r}, v{D+4*t+r} {IDP} row_mask:{hex(1 << t)} bank_mask:0xf")
        for r in range(4): a(f"v_add_u32 v{D+r}, 0x80, v{D+r}")
        for r in range(4): a(f"v_bfi_b32 v{20+r}, s78, v{TG + r + (1 if transposed and r == 3 else 0)}, v{D+r}")
    a("; q block")
    piece(AF, True)
    if noq or not qst: a("s_branch L_pqok")
    a(f"buffer_store_dwordx4 v[20:23], v8, {S(SW)}, s66 offen{'' if fastq else ' sc1'}")
    stamp(3)
    for k in range(3): a(f"ds_read_b128 {V4(AF2+4*k)}, v30 offset:{XN + 64*k}")
    a(f"ds_read_b64 {V2(AF2+12)}, v31 offset:{XN + 192}")
    a(f"v_mov_b32 v16, 0\nv_mov_b32 v17, 0\nv_mov_b32 v18, 0\nv_mov_b32 v19, 0")
    a(f"s_mov_b32 exec_hi, 0xff\nds_write_b128 v10, v[16:19] offset:{HIMG}\ns_mov_b64 exec, -1")
    a(f"ds_write_b128 v16, v[16:19] offset:{PGL}")
    PQ = F
    def qload(k): a(f"buffer_load_dwordx4 {V4(PQ+4*k)}, v10, {S(SW)}, s67 offen offset:{1024 * k} sc1")
    def chk4(dst, src):
        a(f"v_xor_b32 v{dst}, v{src}, v{TG}")
        for t in range(1, 4): a(f"v_bitop3_b32 v{dst}, v{src+t}, v{TG+t}, v{dst} bitop3:0xbe")
        a(f"v_and_b32 v{dst}, s78, v{dst}")
    if sleepq: a(f"s_sleep {sleepq}")
    for k in range(4): qload(k)
    a(f"s_mov_b32 s{sCNT}, {spin}")
    a.label("L_pq")
    a("s_waitcnt vmcnt(0)")
    for k in range(4):
        a(f"v_xor_b32 v{X+4+k}, v{PQ+4*k+3}, v{TG+4}\nv_and_b32 v{X+k}, 0xf0, v{X+4+k}")
        for t in range(3): a(f"v_bitop3_b32 v{X+k}, v{PQ+4*k+t}, v{TG+t}, v{X+k} bitop3:0xbe")
        a(f"v_and_b32 v{X+k}, s78, v{X+k}")
    a(f"v_or3_b32 v24, v{X}, v{X+1}, v{X+2}\nv_or_b32 v24, v24, v{X+3}")
    a("v_cmp_ne_u32 vcc, 0, v24\ns_cbranch_vccz L_pqok", drain=False)
    if fastq:
        a(f"s_cmp_lg_u32 s{sCNT}, {spin - nq}\ns_cbranch_scc1 L_pqg", drain=False)
        a(f"buffer_store_dwordx4 v[20:23], v8, {S(SW)}, s66 offen sc1")
        a.label("L_pqg", drain=False)
    a(f"s_sleep 2")
    for k in range(4):
        a(f"v_cmp_ne_u32 vcc, 0, v{X+k}\ns_cbranch_vccz L_pqs{k}", drain=False)
        qload(k)
        a.label(f"L_pqs{k}", drain=False)
    a(f"s_sub_u32 s{sCNT}, s{sCNT}, 1\ns_cmp_lg_u32 s{sCNT}, 0\ns_cbranch_scc1 L_pq", drain=False)
    a.label("L_pqok", drain=False)
    for k in range(16): a(f"v_and_b32 v{PQ+k}, 0xffffff00, v{PQ+k}")
    for e in (0, 2):
        a(f"v_pk_add_f32 {V2(PQ+e)}, {V2(PQ+e)}, {V2(PQ+4+e)}\nv_pk_add_f32 {V2(PQ+8+e)}, {V2(PQ+8+e)}, {V2(PQ+12+e)}")
    for e in (0, 2): a(f"v_pk_add_f32 {V2(PQ+e)}, {V2(PQ+e)}, {V2(PQ+8+e)}")
    a(f"v_cvt_pk_bf16_f32 v24, v{PQ}, v{PQ+1}\nv_cvt_pk_bf16_f32 v25, v{PQ+2}, v{PQ+3}\nv_mov_b32 v17, 0")
    a(f"v_or3_b32 v26, v{X+4}, v{X+5}, v{X+6}\nv_or_b32 v26, v26, v{X+7}\nv_and_b32 v26, 15, v26\nv_cmp_ne_u32 vcc, 0, v26")
    a(f"s_or_b32 s69, vcc_lo, vcc_hi\nv_mov_b32 v26, v{TG}\nv_mov_b32 v27, s69")
    a(f"ds_write_b64 v9, v[24:25] offset:{QL}\nds_write_b64 v17, v[26:27] offset:{TAGL}")
    if fastq:
        a("s_cmp_eq_u32 s69, 0\ns_cbranch_scc1 L_qnear")
        a(f"buffer_store_dwordx4 v[20:23], v8, {S(SW)}, s66 offen sc1")
        a.label("L_qnear")
    a("s_waitcnt lgkmcnt(0)")
    stamp(4)
    if stamps: a(f"s_mov_b32 s92, s{sCNT}")
    a("s_barrier")
    a("s_setprio 0")
    if g0:
        a(f"s_cmp_lg_u32 s35, 15\ns_cbranch_scc1 L_nog0\ns_cmp_lg_u32 s69, 0\ns_cbranch_scc1 L_nog0")
        a("s_mov_b32 s71, 1\ns_atomic_add s71, s[24:25], 60 glc\ns_waitcnt lgkmcnt(0)")
        a(f"s_sub_u32 s71, s71, {r0}\ns_mul_i32 s71, s71, {g0}\ns_ashr_i32 s71, s71, 2\nv_mov_b32 v42, s71")
        a(f"s_mov_b64 exec, 15\nbuffer_store_dword v42, v2, {S(SW)}, s34 offen offset:64\ns_mov_b64 exec, -1")
        a.label("L_nog0")
    if noffn: a("s_branch L_hend")
    a(f"s_cmp_ge_u32 s{sKG}, 28\ns_cbranch_scc1 L_hend")
    a(f"s_bitcmp1_b32 s{sCG}, 0\ns_cselect_b32 s{SC_}, s18, s16\ns_cselect_b32 s{SC_+1}, s19, s17\ns_mov_b32 s{SC_+2}, {448 * 3584}\ns_mov_b32 s{SC_+3}, 0x20000")
    a(f"s_lshr_b32 s66, s{sCG}, 1\ns_mul_i32 s65, s66, {112 * 3584}\ns_lshl_b32 s67, s{sKG}, 7\ns_add_u32 s65, s65, s67")
    if fdma: dma(SC_, 11, 65, 3584, WL0, win=HW)
    a(f"s_lshl_b32 s67, s{sKG}, 13\ns_add_u32 s67, s67, {FMB}\ns_lshl_b32 s66, s{sCG}, 10\ns_add_u32 s66, s66, s67\ns_add_u32 s68, s67, 4096")
    a("s_waitcnt vmcnt(0)")
    piece(AF2, False)
    if fst and fastf:
        a("s_cmp_lg_u32 s69, 0\ns_cbranch_scc1 L_ffar")
        a(f"buffer_store_dwordx4 v[20:23], v10, {S(SW)}, s66 offen\ns_branch L_fdone")
        a.label("L_ffar")
    if fst: a(f"buffer_store_dwordx4 v[20:23], v10, {S(SW)}, s66 offen sc1")
    if fst and fastf: a.label("L_fdone")
    if not fpoll: a("s_branch L_hend")
    a(f"s_cmp_eq_u32 s{sCG}, 7\ns_cbranch_scc1 L_hend")
    def fload(k): a(f"buffer_load_dwordx4 {V4(F+4*k)}, v10, {S(SW)}, s{67 + (k >> 2)} offen offset:{1024 * (k & 3)} sc1")
    a(f"s_sleep {sleepf}")
    for k in range(8): fload(k)
    a(f"s_mov_b32 s{sCNT}, {spin}\nv_lshlrev_b32 v9, 1, v0")
    a.label("L_pf")
    a("s_waitcnt vmcnt(0)")
    for k in range(8): chk4(X + k, F + 4 * k)
    a(f"v_or3_b32 v24, v{X}, v{X+1}, v{X+2}\nv_or3_b32 v24, v24, v{X+3}, v{X+4}\nv_or3_b32 v24, v24, v{X+5}, v{X+6}\nv_or_b32 v24, v24, v{X+7}")
    a("v_cmp_ne_u32 vcc, 0, v24\ns_cbranch_vccz L_pfok", drain=False)
    a(f"s_sleep 16")
    for k in range(8):
        a(f"v_cmp_ne_u32 vcc, 0, v{X+k}\ns_cbranch_vccz L_pfs{k}", drain=False)
        fload(k)
        a.label(f"L_pfs{k}", drain=False)
    a(f"s_sub_u32 s{sCNT}, s{sCNT}, 1\ns_cbranch_scc0 L_pf", drain=False)
    a.label("L_pfok", drain=False)
    for k in range(32): a(f"v_and_b32 v{F+k}, 0xffffff00, v{F+k}")
    for e in range(0, 8, 2):
        a(f"v_pk_add_f32 {V2(F+e)}, {V2(F+e)}, {V2(F+8+e)}\nv_pk_add_f32 {V2(F+16+e)}, {V2(F+16+e)}, {V2(F+24+e)}")
    for e in range(0, 8, 2): a(f"v_pk_add_f32 {V2(F+e)}, {V2(F+e)}, {V2(F+16+e)}")
    for r in range(8): rbf(F + r)
    k1 = -2.0 * math.sqrt(2.0 / math.pi) * math.log2(math.e)
    for r in range(4):
        g, u, t = F + r, F + 4 + r, F + 8 + r
        a(f"v_mul_f32 v{t}, v{g}, v{g}\nv_mul_f32 v{t}, {hex(f2u(0.044715))}, v{t}\nv_fma_f32 v{t}, v{t}, v{g}, v{g}")
        a(f"v_mul_f32 v{t}, {hex(f2u(k1))}, v{t}\nv_exp_f32 v{t}, v{t}\nv_add_f32 v{t}, 1.0, v{t}\nv_rcp_f32 v{t}, v{t}\nv_mul_f32 v{g}, v{g}, v{t}")
        rbf(g)
        a(f"v_mul_f32 v{g}, v{g}, v{u}")
    a(f"v_cvt_pk_bf16_f32 v32, v{F}, v{F+1}\nv_cvt_pk_bf16_f32 v34, v{F+2}, v{F+3}")
    a(f"ds_write_b16 v9, v32 offset:{HIMG}\nds_write_b16_d16_hi v9, v32 offset:{HIMG + HROW}")
    a(f"ds_write_b16 v9, v34 offset:{HIMG + 2 * HROW}\nds_write_b16_d16_hi v9, v34 offset:{HIMG + 3 * HROW}")
    a("s_waitcnt lgkmcnt(0)")
    a.label("L_hend")
    a("s_mov_b64 exec, -1")
    if dpol is None:
        a("; reducer workgroups: which copy of hand-off 2 is closer?  Scalar loads return out of order: race untouched lines of both halves")
        a(f"s_cmp_lg_u32 s{sCG}, 7\ns_cbranch_scc1 L_noprobe")
        a(f"s_cmp_ge_u32 s{sKG}, 28\ns_cbranch_scc1 L_noprobe")
        a(f"s_and_b32 s67, s{sKG}, 0xfc\ns_lshl_b32 s67, s67, 3\ns_and_b32 s65, s{sKG}, 2\ns_add_u32 s67, s67, s65\ns_and_b32 s65, s{sKG}, 3\ns_add_u32 s67, s67, s65\ns_lshl_b32 s67, s67, 12\ns_add_u32 s67, s67, {MB2}")
        a(f"s_mov_b32 s70, 0\ns_mov_b32 s{sCNT}, {ntr - 1}")
        a.label("L_pr")
        for k in range(8): a(f"s_mov_b32 s{40+k}, s{sTAG}")
        a("s_add_u32 s48, s26, s67\ns_addc_u32 s49, s27, 0")
        for k, (cls, ln) in enumerate([(0, 0), (1, 0), (1, 1), (0, 1), (1, 2), (0, 2), (0, 3), (1, 3)]):
            a(f"s_load_dword s{40 + 4 * cls + ln}, s[48:49], {8192 * cls + 128 * ln}")
        a("s_waitcnt lgkmcnt(4)")
        for k in (0, 4, 5, 1, 6, 2, 3, 7): a(f"s_cmp_lg_u32 s{40+k}, s{sTAG}\n{'s_addc_u32' if k < 4 else 's_subb_u32'} s70, s70, 0")
        a(f"s_waitcnt lgkmcnt(0)\ns_add_u32 s67, s67, 512\ns_sub_u32 s{sCNT}, s{sCNT}, 1\ns_cbranch_scc0 L_pr")
        if stamps: a("s_mov_b32 s92, s70")
        a("s_getreg_b32 s71, hwreg(HW_REG_XCC_ID, 2, 1)\ns_sub_u32 s65, 0, s70\ns_cmp_lg_u32 s71, 0\ns_cselect_b32 s70, s65, s70")
        a("s_atomic_add s70, s[24:25], 48 glc\ns_waitcnt lgkmcnt(0)")
        a(f"v_mov_b32 v7, 0\ns_mov_b32 s{sCNT}, 4000")
        a.label("L_pw")
        a(f"ds_read_b32 v40, v7 offset:{PGL}\ns_waitcnt lgkmcnt(0)\nv_readfirstlane_b32 s65, v40\ns_cmp_ge_u32 s65, {Lv}\ns_cbranch_scc1 L_pv")
        a(f"s_sleep 4\ns_sub_u32 s{sCNT}, s{sCNT}, 1\ns_cbranch_scc0 L_pw")
        a.label("L_pv")
        a("s_mov_b32 s70, 0\ns_atomic_add s70, s[24:25], 48 glc\ns_waitcnt lgkmcnt(0)")
        if inv: a("s_not_b32 s70, s70")
        a(f"s_lshr_b32 s70, s70, 31\ns_xor_b32 s70, s70, s71\ns_lshl_b32 s70, s70, 13\nv_mov_b32 v40, s70\nds_write_b32 v7, v40 offset:{TAGL+8}\ns_waitcnt lgkmcnt(0)")
        a.label("L_noprobe")
    if fb and gfb == 2:
        a(f"s_cmp_lg_u32 s69, 0\ns_cbranch_scc1 L_gend\ns_cmp_ge_u32 s35, {nR}\ns_cbranch_scc1 L_gend")
        a(f"v_lshlrev_b32 v6, 2, v4\nv_lshl_add_u32 v6, v5, 7, v6\nv_mov_b32 v41, v{TG}\nv_mov_b32 v7, 0")
        a(f"s_lshl_b32 s66, s{sH}, 7\ns_add_u32 s66, s66, {GMB}\ns_mov_b32 s67, {GMB}\ns_mov_b32 s{sCNT}, 4000\ns_mul_i32 s70, s35, {dL}\ns_add_u32 s70, s70, {L0}")
        a.label("L_gw")
        a(f"ds_read_b32 v40, v7 offset:{PGL}\ns_waitcnt lgkmcnt(0)\nv_readfirstlane_b32 s65, v40\ns_cmp_ge_u32 s65, s70\ns_cbranch_scc1 L_gr")
        a(f"s_sleep 4\ns_sub_u32 s{sCNT}, s{sCNT}, 1\ns_cbranch_scc0 L_gw")
        a.label("L_gr")
        a(f"buffer_load_dword v40, v6, {S(SW)}, s34 offen sc1")
        a("s_mov_b64 exec, 0xffff")
        a(f"buffer_load_dwordx2 v[42:43], v2, {S(SW)}, s67 offen sc1")
        a("s_mov_b64 exec, -1\ns_waitcnt vmcnt(1)")
        for sh in (8, 4, 2, 1): a(f"v_add_u32_dpp v40, v40, v40 row_ror:{sh} {FULL}")
        a("v_add_u32_dpp v40, v40, v40 row_bcast:15 row_mask:0xa bank_mask:0xf\nv_add_u32_dpp v40, v40, v40 row_bcast:31 row_mask:0xc bank_mask:0xf")
        a("v_readlane_b32 s71, v40, 63\nv_mov_b32 v40, s71")
        a("s_mov_b64 exec, 1")
        a(f"buffer_store_dwordx2 v[40:41], v7, {S(SW)}, s66 offen sc1")
        a("s_mov_b64 exec, -1\ns_waitcnt vmcnt(1)")
        a(f"v_subrev_u32 v44, {64 * dL}, v40\nv_cmp_eq_u32 vcc, v43, v41\nv_cndmask_b32 v42, v44, v42, vcc\nv_sub_u32 v42, v42, v40")
        for sh in (8, 4, 2, 1): a(f"v_add_u32_dpp v42, v42, v42 row_ror:{sh} {FULL}")
        a(f"v_ashrrev_i32 v42, {4 + gsh}, v42\nv_add_u32 v42, {goff}, v42")
        a("s_mov_b64 exec, 15")
        a(f"buffer_store_dword v42, v2, {S(SW)}, s34 offen offset:64")
        a("s_mov_b64 exec, -1")
        a.label("L_gend")
    if fb and gfb == 3:
        a("; balancing round: when the head reaches this workgroup's level, its arrival rank (d_debug counter) sets the bias word")
        a(f"s_cmp_lg_u32 s69, 0\ns_cbranch_scc1 L_gend\ns_cmp_ge_u32 s35, {nR}\ns_cbranch_scc1 L_gend")
        a(f"v_lshlrev_b32 v6, 2, v4\nv_lshl_add_u32 v6, v5, 7, v6\nv_mov_b32 v7, 0")
        a(f"s_mov_b32 s{sCNT}, 4000\ns_mul_i32 s70, s35, {dL}\ns_add_u32 s70, s70, {L0}\ns_lshl_b32 s66, s35, 2")
        a.label("L_gw")
        a(f"ds_read_b32 v40, v7 offset:{PGL}\ns_waitcnt lgkmcnt(0)\nv_readfirstlane_b32 s65, v40\ns_cmp_ge_u32 s65, s70\ns_cbranch_scc1 L_gr")
        a(f"s_sleep 4\ns_sub_u32 s{sCNT}, s{sCNT}, 1\ns_cbranch_scc0 L_gw")
        a.label("L_gr")
        if gpoll:
            a(f"s_lshl_b32 s70, s70, 6\ns_add_u32 s70, s70, 16\ns_mov_b32 s{sCNT}, 3")
            a.label("L_gp")
            a(f"buffer_load_dword v40, v6, {S(SW)}, s34 offen sc1\ns_waitcnt vmcnt(0)")
            for sh in (8, 4, 2, 1): a(f"v_add_u32_dpp v40, v40, v40 row_ror:{sh} {FULL}")
            a("v_add_u32_dpp v40, v40, v40 row_bcast:15 row_mask:0xa bank_mask:0xf\nv_add_u32_dpp v40, v40, v40 row_bcast:31 row_mask:0xc bank_mask:0xf")
            a(f"v_readlane_b32 s71, v40, 63\ns_cmp_ge_u32 s71, s70\ns_cbranch_scc1 L_ga\ns_sub_u32 s{sCNT}, s{sCNT}, 1\ns_cbranch_scc0 L_gp")
            a.label("L_ga")
        a("s_mov_b32 s71, 1\ns_atomic_add s71, s[24:25], s66 glc\ns_waitcnt lgkmcnt(0)")
        a(f"s_sub_u32 s71, s71, {r0}\ns_mul_i32 s71, s71, {gain}\ns_ashr_i32 s71, s71, 2\nv_mov_b32 v42, s71")
        a("s_mov_b64 exec, 15")
        a(f"buffer_store_dword v42, v2, {S(SW)}, s34 offen offset:64")
        a("s_mov_b64 exec, -1")
        if rew:
            a(f"s_cmp_lt_u32 s35, {nR - rew}\ns_cbranch_scc1 L_gend")
            a("s_getpc_b64 s[66:67]")
            a.label("L_pc2", drain=False)
            a("s_sub_u32 s66, s66, L_pc2-L_tail\ns_subb_u32 s67, s67, 0\nv_min_u32 v2, L_helper-L_tail, v2\nglobal_load_dword v31, v2, s[66:67]")
        a.label("L_gend")
    if fb and gfb == 1:
        NIT = (15 - NP) + 1 + 15
        a("s_or_b32 s65, s35, s69\ns_cmp_lg_u32 s65, 0\ns_cbranch_scc1 L_gend")
        a(f"v_lshlrev_b32 v6, 2, v4\nv_lshl_add_u32 v6, v5, 7, v6\nv_mov_b32 v41, v{TG}\nv_mov_b32 v7, 0")
        a(f"s_lshl_b32 s66, s{sH}, {3 if gsc else 7}\ns_add_u32 s66, s66, {GMB}\ns_mov_b32 s67, {GMB}\ns_mov_b32 s{sCNT}, 200\ns_mov_b32 s70, -1")
        a.label("L_g")
        a(f"buffer_load_dword v40, v6, {S(SW)}, s34 offen sc1")
        if gsc:
            a(f"s_waitcnt lgkmcnt(0)\ns_load_dwordx16 s[4:19], s[26:27], {GMB} glc\ns_load_dwordx16 s[40:55], s[26:27], {GMB + 64} glc\ns_waitcnt vmcnt(0)")
        else:
            a("s_mov_b64 exec, 0xffff")
            a(f"buffer_load_dwordx2 v[42:43], v2, {S(SW)}, s67 offen sc1")
            a("s_mov_b64 exec, -1\ns_waitcnt vmcnt(1)")
        a(f"v_cmp_le_u32 vcc, {NIT - gexit}, v40\ns_or_b32 s65, vcc_lo, vcc_hi\ns_and_b32 s65, s65, 0x10001\ns_cbranch_scc1 L_gend")
        for sh in (8, 4, 2, 1): a(f"v_add_u32_dpp v40, v40, v40 row_ror:{sh} {FULL}")
        a("v_add_u32_dpp v40, v40, v40 row_bcast:15 row_mask:0xa bank_mask:0xf\nv_add_u32_dpp v40, v40, v40 row_bcast:31 row_mask:0xc bank_mask:0xf")
        a("v_readlane_b32 s71, v40, 63\nv_mov_b32 v40, s71")
        a("s_mov_b64 exec, 1")
        a(f"buffer_store_dwordx2 v[40:41], v7, {S(SW)}, s66 offen sc1")
        a("s_mov_b64 exec, -1\ns_waitcnt vmcnt(1)")
        a("s_cmp_eq_u32 s70, -1\ns_cbranch_scc1 L_gskip")
        if gavg: a("s_add_u32 s70, s70, s71\ns_lshr_b32 s70, s70, 1")
        if gsc:
            a("s_waitcnt lgkmcnt(0)\ns_mov_b32 s65, 0")
            for k in range(16):
                r = (4 + 2 * k) if k < 8 else (40 + 2 * (k - 8))
                a(f"s_cmp_eq_u32 s{r+1}, s{sTAG}\ns_cselect_b32 s{r}, s{r}, s70\ns_add_u32 s65, s65, s{r}")
            a(f"s_lshl_b32 s70, s70, 4\ns_sub_u32 s65, s65, s70\ns_ashr_i32 s65, s65, {4 + gsh}\ns_add_u32 s65, s65, {goff}\nv_mov_b32 v42, s65")
        else:
          a(f"v_mov_b32 v44, s70\nv_cmp_eq_u32 vcc, v43, v41\nv_cndmask_b32 v42, v44, v42, vcc\nv_sub_u32 v42, v42, v44")
          for sh in (8, 4, 2, 1): a(f"v_add_u32_dpp v42, v42, v42 row_ror:{sh} {FULL}")
          a(f"v_ashrrev_i32 v42, {4 + gsh}, v42")
          if goff: a(f"v_add_u32 v42, {goff}, v42")
        a("s_mov_b64 exec, 15")
        a(f"buffer_store_dword v42, v2, {S(SW)}, s34 offen offset:64")
        a("s_mov_b64 exec, -1")
        a.label("L_gskip")
        a("s_mov_b32 s70, s71")
        if gsleep: a(f"s_sleep {gsleep}")
        a(f"s_sub_u32 s{sCNT}, s{sCNT}, 1\ns_cbranch_scc0 L_g")
        a.label("L_gend")
        if gsc: a("s_waitcnt lgkmcnt(0)")
    stamp(5)
    pad("H")
    dump_stamps(7)
    a.label("L_end")
    a("s_endpgm")
    a.raw('.section .rodata,"a"'); a.raw(".p2align 6"); a.raw(f".amdhsa_kernel {NAME}")
    a.raw("  .amdhsa_next_free_vgpr 256"); a.raw("  .amdhsa_next_free_sgpr 102"); a.raw("  .amdhsa_accum_offset 256")
    a.raw("  .amdhsa_group_segment_fixed_size 0"); a.raw("  .amdhsa_kernarg_size 96"); a.raw("  .amdhsa_user_sgpr_count 2")
    a.raw("  .amdhsa_user_sgpr_kernarg_segment_ptr 1"); a.raw("  .amdhsa_system_sgpr_workgroup_id_x 1"); a.raw(".end_amdhsa_kernel")
    return a.text()

if __name__ == "__main__":
    out = sys.argv[1]
    kw = eval("dict(" + (sys.argv[2] if len(sys.argv) > 2 else "") + ")")
    open(out, "w").write(gen(**kw))
```

```python
import sys, struct, math
sys.path.insert(0, "gen")
from asmlib import Asm

NAME = "parallel_sum__mha_block_cached__geglu_ffn__decode_kernel"
HEADER = open("parallel_sum__mha_block_cached__geglu_ffn__decode.s.ref").read().split("; Override launch")[0]

def f2u(x): return struct.unpack("<I", struct.pack("<f", x))[0]

PMB = 0x8000
GMB = 0xC000
QMB = 0x10000
FMB = QMB + 64 * 4096
MB1 = 0xA0000
MB2 = 0x120000
TSB = 0x400000
WS_USED = TSB + 0x10000
assert FMB + 28 * 8192 <= MB1
PGL = 4112
XN, QL, TAGL, ML, HIMG, AIMG, OP, SC = 0, 3584, 4096, 4128, 4224, 4864, 6144, 10240
HROW, AROW = 144, 272
WL0 = SC + 16384
WL1 = WL0 + 14336
WL2 = WL1 + 16384
LDS_BYTES = WL2 + 8192

DOC = '''; ---------------------------------------------------------------------------------------------
; ---------------------------------------------------------------------------------------------'''
FULL = "row_mask:0xf bank_mask:0xf"
IDP = "quad_perm:[0,1,2,3]"

def gen(W=5, NP=5, nt="nt", wnt="nt", stamps=False, warm=True, sleep1=0, sleep2=0, sleepq=30, spin=1 << 18,
        padto=0, padwg=None, padstamp=None, HW=4, noffn=0, noq=0, nowo=0, touch=1, sleepf=60, fdma=1, fst=1, fpoll=1, qst=1, pat=5, Wend=None, nend=0, W0=None, osc='', scr=1, remap=4, D2=2, stag2=4, early1=0, role=3, fast=1, hoist=1, clean=0, fastq=1, fastf=1, nq=5, tlb=0, fb=1, Wup=6, thup=0, gfb=3, gsleep=8, goff=0, gsh=2, gavg=0, gsc=0, gexit=2, L0=6, dL=2, nR=9, nost2=0, nored=0, wos=(3,4,5,6,7,7), r0=8, gain=6, gpoll=1, st0=0, warm2=16, late=1, codekb=13, amp=0, lite=0, Wdn=4, thdn=-15, endp=None, pw=None, thw=None, hb=0, pre1=0, rew=0, stL=0, k1st=0, th2=8, g0=4, pf=0, pfs=7, pfnt='', pfth=None, fakeg=0, kb5=(15,13), wb5=(11,14), jb5=(12,16), soft=None, softu=3, burst=0, b2b=0, stD=0, sl1=0, hstep=-1, st4=0, pol=None):
    assert not (fast or fastf) or role == 3
    assert early1 != 2 or hoist
    assert hb != 1 or set(wos) == {-2}
    assert hb != 2 or wos[:2] == (-2, -2)
    assert not (b2b and (hb or early1 or clean))
    in_helper = [False]
    a = Asm()
    a.raw(HEADER.rstrip("\n"))
    a.raw(f"; @launch grid=(256,1,1) block=(320,1,1) lds={LDS_BYTES}")
    a.raw(DOC)
    a.raw('.amdgcn_target "amdgcn-amd-amdhsa--gfx950"')
    a.raw(".text"); a.raw(f".globl {NAME}"); a.raw(".p2align 8"); a.raw(f".type {NAME},@function")
    a.raw(f"{NAME}:")
    SK, SV, SW, SA, SB, SC_, SD = 28, 32, 36, 40, 44, 48, 52
    sB, sH, sJ, sIDX, sBH, sTAG, sCNT, sKO, sVO, sWv, sKG, sCG = 56, 57, 58, 59, 60, 61, 62, 63, 64, 72, 73, 79
    def srd(r, ptr, size):
        a(f"s_mov_b32 s{r}, s{ptr}\ns_mov_b32 s{r+1}, s{ptr+1}\ns_mov_b32 s{r+2}, {size}\ns_mov_b32 s{r+3}, 0x20000")
    def S(r): return f"s[{r}:{r+3}]"
    def V4(r): return f"v[{r}:{r+3}]"
    def V2(r): return f"v[{r}:{r+1}]"
    def stamp(k):
        if stamps or padstamp is not None:
            a(f"s_memrealtime s[{80+2*k}:{81+2*k}]")
    def dump_stamps(n):
        if not stamps: return
        a("s_waitcnt lgkmcnt(0)")
        a("s_mov_b64 exec, 1")
        a(f"s_mul_i32 s65, s2, 5\ns_add_u32 s65, s65, s3\ns_mul_i32 s65, s65, 48\ns_add_u32 s65, s65, {TSB}")
        a("v_mov_b32 v1, 0")
        for k in range(n):
            a(f"v_mov_b32 v2, s{80+2*k}")
            if lite and k not in (0, 4, 7): continue
            a(f"buffer_store_dword v2, v1, {S(SW)}, s65 offen offset:{4*k}")
        if not lite:
            a(f"v_mov_b32 v2, s{sCNT}\nbuffer_store_dword v2, v1, {S(SW)}, s65 offen offset:44")
            a("s_waitcnt vmcnt(0)")
    def pad(role):
        if not padto: return
        r, k = padstamp if padstamp is not None else ("S", 0)
        if r != role: return
        if padwg is not None: a(f"s_cmp_lg_u32 s2, {padwg}\ns_cbranch_scc1 L_end")
        if amp: a("s_waitcnt lgkmcnt(0)\ns_load_dword s80, s[24:25], 200 glc\ns_waitcnt lgkmcnt(0)\ns_not_b32 s80, s80")
        if amp: a(f"s_waitcnt lgkmcnt(0)\ns_sub_u32 s65, s{80+2*k}, s80\ns_mul_i32 s65, s65, {amp - 1}\ns_add_u32 s{80+2*k}, s{80+2*k}, s65")
        a.label(f"L_pad{role}")
        a(f"s_sleep 1\ns_memrealtime s[98:99]\ns_waitcnt lgkmcnt(0)\ns_sub_u32 s98, s98, s{80+2*k}\ns_cmp_lt_i32 s98, {padto}\ns_cbranch_scc1 L_pad{role}")

    assert remap in (4, 5) and role == 3 and pat == 5 and (kb5, wb5, jb5) == ((15, 13), (11, 14), (12, 16))
    def decode(a):
        a(f"s_and_b32 s{sBH}, s2, 63\ns_lshr_b32 s{sJ}, s2, 6\ns_lshr_b32 s{sB}, s{sBH}, 4\ns_and_b32 s{sH}, s2, 15")
        a(f"s_lshl_b32 s2, s{sBH}, 2\ns_or_b32 s2, s2, s{sJ}\ns_and_b32 s{sIDX}, s2, 63")
        a(f"s_lshl_b32 s{sKG}, s{sH}, 1\ns_and_b32 s65, s{sJ}, 1\ns_or_b32 s{sKG}, s{sKG}, s65\ns_lshl_b32 s{sCG}, s{sB}, 1\ns_lshr_b32 s65, s{sJ}, 1\ns_or_b32 s{sCG}, s{sCG}, s65")
        a("v_and_b32 v0, 63, v0\nv_and_b32 v4, 15, v0\nv_lshrrev_b32 v5, 4, v0")
    a("s_load_dwordx2 s[28:29], s[0:1], 8")
    stamp(0)
    a("v_lshrrev_b32 v1, 6, v0\ns_cmpk_ge_u32 s2, 256\ns_cbranch_scc1 L_end", drain=False)
    if remap == 5: a("s_lshr_b32 s65, s2, 6\ns_xor_b32 s2, s2, s65")
    a("v_readfirstlane_b32 s3, v1\nv_and_b32 v85, 51, v0\nv_and_b32 v1, 12, v0")
    a("s_cmp_eq_u32 s3, 0\ns_cbranch_scc1 L_helper", drain=False)

    vKO, vVO, vSC, vMAX, vL, vC, vMC, vS = 1, 2, 3, 6, 7, 28, 29, 30
    vJ, vG = 4, 5
    MASK, OACC, BB, QF, DA, TMP, R = 8, 12, 20, 32, 64, 84, 96
    def ring(tile, u): return R + 32 * tile + 4 * u
    kb = kb5
    assert TMP + 1 == 85 and vKO == 1
    a(f"v_mul_u32_u24 v85, 20, v85\nv_mul_u32_u24 v1, 0x2400, v1\nv_and_b32 v85, 0xf0, v85\nv_and_b32 v1, 0xa000, v1\nv_or_b32 v1, v1, v85")
    a(f"s_lshr_b32 s65, s2, 6\ns_mulk_i32 s65, 9\ns_and_b32 s65, s65, 17\ns_lshl_b32 s65, s65, 12\ns_mul_i32 s66, s3, 5\ns_and_b32 s66, s66, 9\ns_lshl_b32 s66, s66, 11")
    a(f"s_and_b32 s{sKO}, s2, 63\ns_lshl_b32 s{sKO}, s{sKO}, 21\ns_or_b32 s65, s65, s66\ns_or_b32 s{sKO}, s{sKO}, s65")
    a(f"s_lshl_b32 s30, 1, 27\ns_mov_b32 s31, 0x20000")
    a("s_waitcnt lgkmcnt(0)")
    if st0: stamp(5)
    vm = []
    def issue(kind, reg, u, tagid):
        sr, vo, so = (SK, vKO, sKO) if kind == "K" else (SV, vVO, sVO)
        o = {0: 256 * (u & 1), 1: 256 * (u & 3), 2: 256 * u, 3: 256 * u, 4: 256 * (u & 1) + 512 * (u & 2), 5: 256 * u}[pat]
        off = f" offset:{o}" if o else ""
        a(f"buffer_load_dwordx4 {V4(reg)}, v{vo}, {S(sr)}, s{so} offen{off} {nt}")
        if pat == 0 and u & 1: a(f"s_add_u32 s{so}, s{so}, 8192")
        if pat == 1 and (u & 3) == 3: a(f"s_add_u32 s{so}, s{so}, 16384")
        if pat == 4 and (u & 3) == 3: a(f"s_xor_b32 s{so}, s{so}, 0x4000")
        if pat == 5 and u == 7: a(f"s_add_u32 s{so}, s{so}, 0x20000")
        if pat in (3, 4) and u == 7:
            a(f"s_xor_b32 s{so}, s{so}, 0x1000\ns_bitcmp1_b32 s{so}, 12\ns_cselect_b32 s65, 0, s{sM}\ns_add_u32 s65, s65, s{so}\ns_and_b32 s65, s65, 0x70000\ns_andn2_b32 s{so}, s{so}, 0x70000\ns_or_b32 s{so}, s{so}, s65")
        if pat == 2 and u == 7:
            a(f"s_bitcmp1_b32 s{so}, 11\ns_cselect_b32 s65, {65536 - 4096}, 0\ns_add_u32 s{so}, s{so}, s65\ns_add_u32 s{so}, s{so}, 2048")
        vm.append(tagid)
    def wait_for(tagid):
        if tagid not in vm: return
        n = len(vm) - 1 - vm.index(tagid)
        assert n < 64
        a(f"s_waitcnt vmcnt({n})")
    nload = [0]
    curW = [W]
    adapt = [False]; nlab = [0]
    ctl = dict(Wup=Wup, thup=thup, Wdn=Wdn, thdn=thdn)
    def throttle_issue(kind, reg, u):
        n = nload[0]
        if adapt[0]:
            nlab[0] += 1
            a(f"s_cbranch_scc1 L_w{nlab[0]}", drain=False)
            if ctl["Wdn"]:
                a(f"s_cbranch_vccz L_m{nlab[0]}", drain=False); a.hist[-1].states = 0
                wait_for(("s", n - ctl["Wdn"])); a.hist[-1].states = 0
                a.label(f"L_m{nlab[0]}", drain=False)
            wait_for(("s", n - curW[0]))
            a.hist[-1].states = 0
            a.label(f"L_w{nlab[0]}", drain=False)
            if th2 is not None:
                a(f"s_cbranch_vccnz L_x{nlab[0]}", drain=False)
                wait_for(("s", n - ctl["Wup"])); a.hist[-1].states = 0
                a.label(f"L_x{nlab[0]}", drain=False)
                wait_for(("s", n - ctl["Wup"] - 1))
            else: wait_for(("s", n - ctl["Wup"]))
        else: wait_for(("s", n - curW[0]))
        issue(kind, reg, u, ("s", n)); nload[0] += 1
    W0 = W0 or W
    curW[0] = W0
    for n in range(W0):
        throttle_issue("K", ring(n // 8, n % 8), n % 8)
    curW[0] = W
    a(f"s_load_dwordx16 s[4:19], s[0:1], 0\ns_load_dwordx8 s[20:27], s[0:1], 64\ns_mov_b32 s{sVO}, s{sKO}\ns_and_b32 s{sWv}, s3, 3")
    decode(a)
    if warm2:
        a("; a few waves read the code range so that later instruction fetches hit L2")
        a(f"s_and_b32 s65, s2, 0xe2\ns_lshl_b32 s65, s65, 2\ns_or_b32 s65, s65, s{sWv}\ns_cbranch_scc1 L_nowarm2", drain=False)
        a("s_getpc_b64 s[66:67]")
        a.label("L_pc", drain=False)
        a("v_lshlrev_b32 v2, 7, v0\nglobal_load_dword v31, v2, s[66:67]\nv_add_u32 v2, 0x2000, v2\nv_min_u32 v2, L_end-L_pc, v2")
        a("global_load_dword v31, v2, s[66:67]")
        a.label("L_nowarm2", drain=False)
    if warm and not warm2:
        a(f"s_cmp_lg_u32 s3, 1\ns_cbranch_scc1 L_nowarm")
        a(f"s_getpc_b64 s[66:67]\nv_lshlrev_b32 v{TMP+2}, 7, v0")
        a(f"global_load_dword v{TMP+3}, v{TMP+2}, s[66:67]")
        a.label("L_nowarm")
    def setup(a, srd):
        a(f"v_lshlrev_b32 v{vVO}, 4, v{vJ}\nv_bfe_u32 v{TMP}, v0, 4, 1\nv_lshl_add_u32 v{vVO}, v{TMP}, {kb[0]}, v{vVO}\nv_bfe_u32 v{TMP}, v0, 5, 1\nv_lshl_add_u32 v{vVO}, v{TMP}, {kb[1]}, v{vVO}")
        srd(SV, 8, 1 << 27); srd(SW, 26, WS_USED); srd(SC_, 22, 3584); srd(SD, 4, 3584)
        srd(SA, 12, 4096 * 896); srd(SB, 20, 1792 * 896)
        for k in range(32): a(f"v_mov_b32 v{QF+k}, 0")
        for k in range(8): a(f"v_mov_b32 v{OACC+k}, 0")
        a(f"v_mov_b32 v{vMAX}, 0xff800000\nv_mov_b32 v{vL}, 0\nv_mov_b32 v{vC}, {hex(f2u(math.log2(math.e) / 16))}")
        a(f"v_and_b32 v{TMP+4}, 1, v{vJ}\nv_lshlrev_b32 v{TMP+4}, 4, v{TMP+4}\nv_mov_b32 v{TMP+5}, 0xffff\nv_lshlrev_b32 v{TMP+4}, v{TMP+4}, v{TMP+5}")
        a(f"v_bfe_u32 v{TMP+5}, v{vJ}, 1, 2")
        for w in range(4):
            a(f"v_cmp_eq_u32 vcc, {w}, v{TMP+5}\nv_cndmask_b32 v{MASK+w}, 0, v{TMP+4}, vcc")
        a(f"s_lshl_b32 s65, s{sWv}, 12\ns_add_u32 s65, s65, {SC}\nv_lshl_add_u32 v{vSC}, v0, 2, s65")
    chunks = []
    def rec(t): chunks.append(t)
    def recsrd(r, ptr, size): rec(f"s_mov_b32 s{r}, s{ptr}\ns_mov_b32 s{r+1}, s{ptr+1}\ns_mov_b32 s{r+2}, {size}\ns_mov_b32 s{r+3}, 0x20000")
    setup(rec, recsrd)
    if not late:
        for t in chunks: a(t)
        chunks = []
    for n in range(W0, 8 * NP):
        if st0 and n == W0: stamp(3)
        throttle_issue("K", ring(n // 8, n % 8), n % 8)
        if st0 and n == W0: stamp(6)
        if st0 and n == W0 + 4: stamp(8)
        if st0 and n == W0 + 9: stamp(4)
        if n == 16: a("s_waitcnt lgkmcnt(0)")
        if n >= 16:
            cnt = 0
            while chunks and cnt < 6:
                t = chunks.pop(0); a(t); cnt += t.count("\n") + 1
    assert not chunks
    if st0:
        _st = stamp
        def stamp(k):
            if k in (1, 2, 7) or in_helper[0]: _st(k)
    stamp(1)
    a("s_barrier")
    stamp(2)
    for t in range(4):
        m = 0x000F000F << (4 * t)
        a(f"s_mov_b32 exec_lo, {hex(m)}\ns_mov_b32 exec_hi, {hex(m)}")
        for half in range(2):
            a(f"ds_read_b128 {V4(QF + 4 * (2 * t + half))}, v{TMP+1} offset:{QL + 256 * half}")
    a("s_mov_b64 exec, -1")
    a(f"v_mov_b32 v{TMP}, 0\nds_read_b64 {V2(TMP+2)}, v{TMP} offset:{TAGL}")
    a("s_waitcnt lgkmcnt(0)")
    a(f"v_readfirstlane_b32 s{sTAG}, v{TMP+2}\nv_readfirstlane_b32 s101, v{TMP+3}")

    def consK(reg, u, d):
        c = "0" if u == 0 else V4(d)
        a(f"v_mfma_f32_16x16x32_bf16 {V4(d)}, {V4(reg)}, {V4(QF + 4 * u)}, {c}")
    def extract(ds, off0):
        for k, d in enumerate(ds): a(f"v_mov_b32_dpp v{TMP+k}, v{d} quad_perm:[0,0,0,0] {FULL}")
        for c in range(1, 4):
            for k, d in enumerate(ds): a(f"v_add_f32_dpp v{TMP+k}, v{d+c}, v{TMP+k} quad_perm:[{c},{c},{c},{c}] {FULL}")
        for k, d in enumerate(ds): a(f"v_cvt_pk_bf16_f32 v{TMP+k}, v{TMP+k}, v{TMP+k}")
        for k, d in enumerate(ds): a(f"v_and_b32 v{TMP+k}, 0xffff0000, v{TMP+k}")
        for k, d in enumerate(ds):
            a(f"ds_write_b32 v{vSC}, v{TMP+k} offset:{off0 + 256 * k}")
            a(f"v_max_f32 v{vMAX}, v{vMAX}, v{TMP+k}")
        a(f"v_add_u32 v{vSC}, {256 * len(ds)}, v{vSC}")
    for u in range(8):
        consK(ring(0, u), u, DA)
        throttle_issue("K", ring(0, u), u)
        for T in range(1, NP): consK(ring(T, u), u, DA + 4 * T)
    extract([DA + 4 * T for T in range(NP)], 0)

    T0 = R + 32
    vX, vXO, vOPW, vMLW, vOPR, vZ, vL16, vST2, vTR, vTR2, vTRD, vTRD2, vHA, vAR, vAW, vWO, vWD = range(T0, T0 + 17)
    vML = T0 + 18
    G = T0 + 20
    GR = T0 + 36
    P1 = T0 + 40
    AH = T0 + 56
    AO = T0 + 64
    BW = T0 + 80
    BD = T0 + 96
    Y = T0 + 104
    E = T0 + 108
    def tail_addr():
        a(f"s_lshl_b32 s65, s{sWv}, 10\ns_add_u32 s65, s65, {OP}\nv_lshl_add_u32 v{vOPW}, v0, 4, s65")
        a(f"s_lshl_b32 s65, s{sWv}, 3\ns_add_u32 s65, s65, {ML}\nv_mov_b32 v{vMLW}, s65")
        a(f"s_lshl_b32 s65, s{sWv}, 8\ns_add_u32 s65, s65, {OP}\nv_lshl_add_u32 v{vOPR}, v0, 3, s65")
        a(f"v_mov_b32 v{vZ}, 0\nv_lshlrev_b32 v{vL16}, 4, v0\nv_mov_b32 v{GR+3}, s{sTAG}")
        a(f"s_lshl_b32 s70, s2, 11\ns_lshl_b32 s65, s{sWv}, 9\ns_add_u32 s70, s70, s65\ns_add_u32 s70, s70, {MB1}")
        a(f"s_lshl_b32 s71, s{sWv}, 17\ns_lshr_b32 s65, s{sKG}, 1\ns_lshl_b32 s65, s65, 13\ns_add_u32 s71, s71, s65")
        a(f"s_and_b32 s65, s{sKG}, 1\ns_lshl_b32 s65, s65, 10\ns_add_u32 s71, s71, s65\ns_add_u32 s71, s71, {MB1}\ns_add_u32 s74, s71, 4096")
        a(f"v_lshrrev_b32 v{E}, 3, v0\nv_and_b32 v{E+1}, 7, v0\nv_and_b32 v{E+2}, 2, v{E}\nv_xor_b32 v{E+1}, v{E+1}, v{E+2}\nv_lshlrev_b32 v{E+1}, 4, v{E+1}")
        a(f"v_and_b32 v{E+2}, 3, v{E}\nv_lshlrev_b32 v{E+2}, 3, v{E+2}\nv_lshrrev_b32 v{E+3}, 2, v{E}\nv_add_u32 v{E+2}, v{E+2}, v{E+3}")
        a(f"v_mul_u32_u24 v{vWO}, 896, v{E+2}\nv_mul_u32_u24 v{vWD}, 896, v{E}")
        a(f"s_and_b32 s65, s{sWv}, 1\ns_lshl_b32 s65, s65, 6\nv_xor_b32 v{E+1}, s65, v{E+1}")
        a(f"v_add_u32 v{vWO}, v{vWO}, v{E+1}\nv_add_u32 v{vWD}, v{vWD}, v{E+1}")
        a(f"s_lshr_b32 s66, s{sKG}, 1\ns_lshl_b32 s66, s66, 8\ns_and_b32 s65, s{sKG}, 1\ns_lshl_b32 s65, s65, 6\ns_add_u32 s66, s66, s65")
        a(f"s_lshl_b32 s65, s{sWv}, 1\ns_add_u32 s66, s66, s65\ns_mul_i32 s66, s66, 896\ns_lshl_b32 s65, s{sCG}, 7\ns_add_u32 s66, s66, s65")
        a(f"s_lshl_b32 s67, s{sKG}, 6\ns_lshl_b32 s68, s{sWv}, 3\ns_add_u32 s67, s67, s68\ns_mul_i32 s67, s67, 896\ns_add_u32 s67, s67, s65")
        a(f"s_lshl_b32 s75, s{sWv}, 10")
        if fakeg:
            a(f"v_mul_u32_u24 v{vWO}, 1792, v{vG}\nv_lshl_add_u32 v{vWO}, v{vJ}, 4, v{vWO}\nv_mov_b32 v{vWD}, v{vWO}")
            a(f"s_lshl_b32 s66, s{sKG}, 2\ns_add_u32 s66, s66, s{sWv}\ns_mul_i32 s67, s66, {8 * 1792}\ns_mul_i32 s66, s66, {16 * 1792}\ns_lshl_b32 s65, s{sCG}, 8\ns_add_u32 s66, s66, s65\ns_add_u32 s67, s67, s65")
        if pf:
            a(f"s_sub_u32 s19, s66, s65")
            a(f"s_add_u32 s76, s{sCG}, 1\ns_cmp_ge_u32 s76, 7\ns_cselect_b32 s76, 0, s76\ns_add_u32 s77, s{sCG}, 6\ns_cmp_ge_u32 s77, 7\ns_cselect_b32 s65, 7, 0\ns_sub_u32 s77, s77, s65")
            a(f"v_bfe_u32 v{E}, v0, 3, 1\nv_lshlrev_b32 v{E}, 7, v{E}\nv_bfe_u32 v{E+1}, v0, 4, 1\nv_lshl_add_u32 v{E}, v{E+1}, 5, v{E}")
            a(f"v_and_b32 v{E+1}, 3, v0\nv_lshl_add_u32 v{E}, v{E+1}, 3, v{E}\nv_bfe_u32 v{E+1}, v0, 2, 1\nv_add_u32 v{E}, v{E}, v{E+1}\nv_mul_u32_u24 v{vTR2}, 896, v{E}")
            a(f"v_mov_b32 v{E}, s76\nv_mov_b32 v{E+1}, s77\nv_cmp_gt_u32 vcc, 32, v0\nv_cndmask_b32 v{E}, v{E+1}, v{E}, vcc\nv_lshl_add_u32 v{vTR2}, v{E}, 7, v{vTR2}")
        a(f"v_lshrrev_b32 v{E}, 2, v{vJ}\nv_bfe_u32 v{E+1}, v{vJ}, 1, 1\ns_lshl_b32 s65, s{sWv}, 1\nv_add_u32 v{E+1}, s65, v{E+1}")
        a(f"v_and_b32 v{E+2}, 2, v{E}\nv_xor_b32 v{E+1}, v{E+1}, v{E+2}")
        a(f"v_and_b32 v{E+3}, 1, v{vJ}\nv_lshlrev_b32 v{E+3}, 3, v{E+3}\nv_lshl_add_u32 v{E+3}, v{E}, 7, v{E+3}")
        a(f"v_and_b32 v{E+2}, 1, v{vG}\nv_lshlrev_b32 v{E+2}, 2, v{E+2}\nv_xor_b32 v{E+4}, v{E+1}, v{E+2}")
        a(f"v_lshl_add_u32 v{vTR}, v{E+4}, 4, v{E+3}\nv_lshl_add_u32 v{vTR}, v{vG}, 10, v{vTR}")
        a(f"v_mul_u32_u24 v{vHA}, {HROW}, v{E}\nv_lshl_add_u32 v{vHA}, v{vG}, 4, v{vHA}")
        a(f"v_mul_u32_u24 v{vAR}, {AROW}, v{E}\nv_lshl_add_u32 v{vAR}, v{vG}, 4, v{vAR}")
        a(f"s_mul_i32 s65, s{sWv}, {AROW}\ns_add_u32 s65, s65, {AIMG}\nv_lshl_add_u32 v{vAW}, v0, 2, s65")
        a(f"v_lshlrev_b32 v{vST2}, 3, v{vJ}\nv_lshl_add_u32 v{vST2}, v{vG}, 12, v{vST2}")
        a(f"s_lshl_b32 s68, s{sCG}, 2\ns_add_u32 s68, s68, s{sWv}\ns_lshl_b32 s68, s68, 14\ns_lshl_b32 s65, s{sKG}, 7\ns_add_u32 s68, s68, s65\ns_add_u32 s68, s68, {MB2}")
        if pol is None: a(f"s_mov_b32 s100, s{sKG}")
        else:
            a(f"s_and_b32 s100, s{sKG}, 0x11\ns_and_b32 s65, s{sKG}, 6\ns_lshl_b32 s65, s65, 1\ns_or_b32 s100, s100, s65\ns_bfe_u32 s65, s{sKG}, 0x10003")
            if pol: a("s_xor_b32 s65, s65, 1")
            a("s_lshl_b32 s65, s65, 1\ns_or_b32 s100, s100, s65")
        a(f"s_and_b32 s78, s100, 0xfc\ns_add_u32 s78, s78, s{sWv}\ns_lshl_b32 s69, s78, 4\ns_lshl_b32 s78, s78, 2\ns_and_b32 s65, s100, 3\ns_add_u32 s78, s78, s65")
        a(f"s_lshl_b32 s78, s78, 12\ns_add_u32 s78, s78, {MB2}\ns_mul_i32 s65, s65, 448\ns_add_u32 s69, s69, s65\ns_lshl_b32 s69, s69, 1")
        a(f"v_and_b32 v{E}, 7, v0\nv_and_b32 v{E+1}, 1, v{vG}\nv_lshlrev_b32 v{vXO}, 2, v{E}\nv_lshl_add_u32 v{vXO}, v{E+1}, 1, v{vXO}")
    tail_addr()
    if tlb:
        a("s_cmp_lg_u32 s3, 1\ns_cbranch_scc1 L_notlb")
        a("s_mov_b64 exec, 1")
        if tlb & 1: a(f"buffer_load_dword v{E+7}, v{vZ}, {S(SV)}, s{sVO} offen {nt}")
        if tlb & 2:
            a(f"buffer_load_dword v{E+7}, v{vZ}, {S(SA)}, s66 offen {nt}")
            a(f"buffer_load_dword v{E+7}, v{vZ}, {S(SB)}, s67 offen {nt}")
        a("s_mov_b64 exec, -1")
        a.label("L_notlb")

    cw = [wos]
    def wo_dma(step):
        if nowo: return
        for c in range(6):
            if cw[0][c] != step: continue
            if c >= 2:
                a(f"s_add_u32 s65, s66, {(128 * (c & 1) + 32 * ((c - 2) >> 1)) * 896 if not fakeg else (c - 2) * 4 * 1792}\ns_add_u32 m0, s75, {WL1 + 4096 * (c - 2)}")
                a(f"buffer_load_dwordx4 v{vWO}, {S(SA)}, s65 offen {wnt} lds"); vm.append(("wo", c))
            else:
                a(f"s_add_u32 s65, s67, {32 * 896 * c if not fakeg else 4 * 1792 * c}\ns_add_u32 m0, s75, {WL2 + 4096 * c}")
                a(f"buffer_load_dwordx4 v{vWD}, {S(SB)}, s65 offen {wnt} lds"); vm.append(("wd", c))
        if pf and step == pfs:
            if pfth is not None: a(f"s_cmp_gt_i32 s17, {pfth}\ns_cselect_b32 s19, 0x40000000, s19")
            if pf == 1: a("s_mov_b32 exec_hi, 0")
            a(f"buffer_load_dword v{vTRD}, v{vTR2}, {S(SA)}, s19 offen {pfnt}"); vm.append("pf")
            if pf == 1: a("s_mov_b32 exec_hi, -1")
    vPG, vPR, vPA = E + 8, E + 9, E + 10
    sPS, sPL, sPT = 12, 13, 14
    if fb:
        a(f"s_add_u32 s65, s{sWv}, s{sJ}\ns_and_b32 s65, s65, 3\ns_lshl_b32 s{sPL}, s{sH}, 2\ns_add_u32 s{sPL}, s{sPL}, s65\ns_lshl_b32 s{sPL}, s{sPL}, 7\ns_add_u32 s{sPL}, s{sPL}, {PMB}")
        a(f"s_cmp_lg_u32 s101, 0\ns_cselect_b32 s{sPL}, 0x40000000, s{sPL}\ns_cselect_b32 s{sPT}, 8, 0\ns_cselect_b32 s16, 0, 16")
        a(f"s_lshl_b32 s65, s{sB}, 2\ns_add_u32 s65, s65, s{sJ}\ns_lshl_b32 s65, s65, 2\ns_add_u32 s{sPS}, s{sPL}, s65")
        a(f"s_lshl_b32 s65, s{sWv}, 2\ns_add_u32 s65, s65, {PGL}\nv_mov_b32 v{vPA+1}, s65")
        a(f"v_mov_b32 v{vPG}, 0\nv_bfe_i32 v{vPR}, v0, 0, 1\nv_lshlrev_b32 v{vPA}, 2, v0")
    def flags(tu, td):
        if th2 is not None: a(f"s_sub_u32 s65, s17, {td}\ns_cmp_gt_u32 s65, {th2 - td}\ns_cselect_b64 vcc, -1, 0")
        elif ctl["Wdn"]: a(f"s_cmp_lt_i32 s17, {td}\ns_cselect_b64 vcc, -1, 0")
        a(f"s_cmp_gt_i32 s17, {tu}")
    def after(u):
        if fb and soft and u == softu: flags(ctl['thup'], ctl['thdn'])
    def progress():
        if not fb: return
        if gfb: a(f"v_readlane_b32 s15, v{vPR}, 16")
        for sh in (8, 4, 2, 1): a(f"v_add_u32_dpp v{vPR}, v{vPR}, v{vPR} row_ror:{sh} {FULL}")
        a(f"v_add_u32 v{vPG}, 1, v{vPG}\nv_readfirstlane_b32 s65, v{vPR}")
        if gfb: a(f"s_add_u32 s65, s65, s15")
        a("s_mov_b64 exec, 1")
        a(f"buffer_store_dword v{vPG}, v{vZ}, {S(SW)}, s{sPS} offen"); vm.append(("ps", nload[0]))
        if gfb >= 2: a(f"ds_write_b32 v{vPA+1}, v{vPG}")
        a(f"s_mov_b64 exec, {'0x1ffff' if gfb else '0xffff'}")
        a(f"buffer_load_dword v{vPR}, v{vPA}, {S(SW)}, s{sPL} offen sc1"); vm.append(("pl", nload[0]))
        a("s_mov_b64 exec, -1")
        a(f"s_sub_u32 s17, s65, s{sPT}\ns_add_u32 s{sPT}, s{sPT}, s16")
        flags(*(soft or (ctl['thup'], ctl['thdn'])))
        adapt[0] = True
    def iterK(nextkind):
        progress()
        for u in range(8):
            consK(ring(0, u), u, DA)
            throttle_issue(nextkind, ring(0, u), u)
            after(u)
            if nextkind == "V" and u == 0 and -2 in wos:
                a("s_cselect_b32 s18, 1, 0")
                a(f"s_cmp_eq_u32 s{sCG}, 7\ns_cselect_b32 s66, 0x40000000, s66\ns_cselect_b32 s67, 0x40000000, s67")
                wo_dma(-2)
                a("s_cmp_lg_u32 s18, 0")
        extract([DA], 0)
    a("; K loop")
    a(f"s_mov_b32 s{sCNT}, {15 - NP}")
    a.label("L_kk")
    iterK("K")
    a(f"s_sub_u32 s{sCNT}, s{sCNT}, 1\ns_cmp_lg_u32 s{sCNT}, 0\ns_cbranch_scc1 L_kk")
    iterK("V")
    compute_pre = lambda: (a(f"v_not_b32 v{P1+3}, v{GR+3}\nv_mov_b32 v{P1}, 0\nv_mov_b32 v{P1+1}, 0\nv_mov_b32 v{P1+2}, 0\ns_mov_b32 exec_hi, 0"),
                           a(f"buffer_store_dwordx4 {V4(P1)}, v{vL16}, {S(SW)}, s70 offen\ns_mov_b32 exec_hi, -1"))
    if pre1 == 1: compute_pre()
    stamp(3)
    a(f"v_subrev_u32 v{vSC}, 4096, v{vSC}")
    a(f"ds_read_b32 v{vS}, v{vSC}")
    a(f"v_max_f32_dpp v{vMAX}, v{vMAX}, v{vMAX} row_ror:4 {FULL}")
    a(f"v_max_f32_dpp v{vMAX}, v{vMAX}, v{vMAX} row_ror:8 {FULL}")
    a(f"v_max_f32_dpp v{vMAX}, v{vMAX}, v{vMAX} row_bcast:15 row_mask:0xa bank_mask:0xf")
    a(f"v_max_f32_dpp v{vMAX}, v{vMAX}, v{vMAX} row_bcast:31 row_mask:0xc bank_mask:0xf")
    a(f"v_readlane_b32 s65, v{vMAX}, 63")
    a(f"v_mov_b32 v{vMC}, s65")
    vP = TMP
    def ld1(k): a(f"buffer_load_dwordx4 {V4(P1+4*k)}, v{vL16}, {S(SW)}, s{71 if k < 2 else 74} offen{' offset:2048' if k & 1 else ''} sc1")
    def last_extra():
        a(f"s_cmp_eq_u32 s{sCG}, 7\ns_cselect_b32 s66, 0x40000000, s66\ns_cselect_b32 s67, 0x40000000, s67\ns_cselect_b32 s69, s69, 0x40000000")
        wo_dma(-1)
        a(f"buffer_load_ushort v{vX}, v{vXO}, {S(SD)}, s69 offen"); vm.append("x")
        if touch:
            a("; (value unused: address translation of d_out ahead of the final store)")
            a(f"buffer_load_ushort v{E+7}, v{vXO}, {S(SC_)}, s69 offen"); vm.append("o")
        a(f"v_add_f32_dpp v{vL}, v{vL}, v{vL} row_ror:4 {FULL}")
        a(f"v_add_f32_dpp v{vL}, v{vL}, v{vL} row_ror:8 {FULL}")
        a(f"v_add_f32_dpp v{vL}, v{vL}, v{vL} row_bcast:15 row_mask:0xa bank_mask:0xf")
        a(f"v_add_f32_dpp v{vL}, v{vL}, v{vL} row_bcast:31 row_mask:0xc bank_mask:0xf")
        a(f"v_mov_b32 v{vML}, v{vMC}\nv_mov_b32 v{vML+1}, v{vL}")
        a("s_mov_b32 exec_lo, 0\ns_mov_b32 exec_hi, 0x80000000")
        a(f"ds_write_b64 v{vMLW}, {V2(vML)}")
        a("s_mov_b64 exec, -1")
        if hstep == -1: hoisted()
    def hoisted():
        if hoist:
            a("s_waitcnt lgkmcnt(0)\ns_barrier")
            if early1 == 2:
                for k in range(4): ld1(k); vm.append(("p1", k))
            a(f"ds_read_b128 {V4(G)}, v{vZ} offset:{ML}\nds_read_b128 {V4(G+4)}, v{vZ} offset:{ML+16}\ns_waitcnt lgkmcnt(0)")
            if hb:
                a(f"ds_read_b128 {V4(AH)}, v{vHA} offset:{HIMG}\nds_read_b128 {V4(AH+4)}, v{vHA} offset:{HIMG+64}")
                a(f"ds_read_b64_tr_b16 {V2(BD)}, v{vTR} offset:{WL2}\nds_read_b64_tr_b16 {V2(BD+2)}, v{vTR} offset:{WL2+512}")
                a(f"ds_read_b64_tr_b16 {V2(BD+4)}, v{vTR} offset:{WL2+4096}\nds_read_b64_tr_b16 {V2(BD+6)}, v{vTR} offset:{WL2+4096+512}")
                if hb == 1:
                    for k in range(4): a(f"ds_read_b64_tr_b16 {V2(BW+4*k)}, v{vTR} offset:{WL1+4096*k}\nds_read_b64_tr_b16 {V2(BW+4*k+2)}, v{vTR} offset:{WL1+4096*k+512}")
            weights()
            if hb:
                a("s_waitcnt lgkmcnt(0)")
                a(f"v_mfma_f32_16x16x32_bf16 {V4(Y)}, {V4(AH)}, {V4(BD)}, 0")
                a(f"v_mfma_f32_16x16x32_bf16 {V4(Y)}, {V4(AH+4)}, {V4(BD+4)}, {V4(Y)}")
    def weights():
        ms, ls = [G, G+2, G+4, G+6], [G+1, G+3, G+5, G+7]
        a(f"v_max3_f32 v{E+4}, v{ms[0]}, v{ms[1]}, v{ms[2]}\nv_max_f32 v{E+4}, v{E+4}, v{ms[3]}")
        for k in range(4): a(f"v_sub_f32 v{ms[k]}, v{ms[k]}, v{E+4}")
        for k in range(4): a(f"v_mul_f32 v{ms[k]}, v{ms[k]}, v{vC}")
        for k in range(4): a(f"v_exp_f32 v{ms[k]}, v{ms[k]}")
        a(f"v_mul_f32 v{E+5}, v{ms[0]}, v{ls[0]}")
        for k in range(1, 4): a(f"v_fmac_f32 v{E+5}, v{ms[k]}, v{ls[k]}")
        a(f"v_rcp_f32 v{E+6}, v{E+5}\nv_log_f32 v{E+5}, v{E+5}")
        for k in range(4): a(f"v_mul_f32 v{ms[k]}, v{ms[k]}, v{E+6}")
        a(f"v_fma_f32 v{GR+2}, v{E+4}, v{vC}, v{E+5}")
    srcV = [None]
    def iterV(last, bu=0):
        a("s_waitcnt lgkmcnt(0)")
        a(f"v_sub_f32 v{vP}, v{vS}, v{vMC}\nv_mul_f32 v{vP}, v{vP}, v{vC}")
        a(f"v_exp_f32 v{vP}, v{vP}")
        if not last:
            a(f"v_add_u32 v{vSC}, 256, v{vSC}\nds_read_b32 v{vS}, v{vSC}")
        a(f"v_add_f32 v{vL}, v{vL}, v{vP}")
        a(f"v_cvt_pk_bf16_f32 v{vP}, v{vP}, v{vP}")
        if last: last_extra()
        elif not bu: progress()
        base = nload[0] - 8
        if bu:
            adapt[0] = False; curW[0] = bu
            for u in range(8): throttle_issue("V", QF + 4 * u, u)
        for u in range(8):
            t, half = u >> 1, u & 1
            b = BB + 4 * (t & 1)
            if half == 0:
                for w in range(4): a(f"v_and_b32_dpp v{b+w}, v{vP}, v{MASK+w} row_newbcast:{4*t} {FULL}")
            if last or bu: wait_for(("s", base + u))
            a(f"v_mfma_f32_16x16x32_bf16 {V4(OACC + 4 * half)}, {V4(QF + 4 * u if (last and burst) else ring(0, u))}, {V4(b)}, {V4(OACC + 4 * half)}")
            if bu: pass
            elif not last: throttle_issue("V", ring(0, u), u); after(u)
            elif u < 7:
                wo_dma(u)
                if u == hstep: hoisted()
    a("; V loop")
    a(f"s_mov_b32 s{sCNT}, {15 - nend - (1 if burst else 0)}")
    a.label("L_vv")
    iterV(False)
    a(f"s_sub_u32 s{sCNT}, s{sCNT}, 1\ns_cmp_lg_u32 s{sCNT}, 0\ns_cbranch_scc1 L_vv")
    if nend:
        if pre1 == 2: compute_pre()
        curW[0] = Wend or W
        ctl.update(endp or {})
        a(f"s_mov_b32 s{sCNT}, {nend}")
        a.label("L_vv2")
        iterV(False)
        a(f"s_sub_u32 s{sCNT}, s{sCNT}, 1\ns_cmp_lg_u32 s{sCNT}, 0\ns_cbranch_scc1 L_vv2")
    if burst: iterV(False, burst)
    a.label("L_tail", drain=False)
    if stL: stamp(3)
    def final_iter():
        iterV(True)
        stamp(4)
        for r in range(4): a(f"v_mov_b32_dpp v{OACC+r}, v{OACC+4+r} {IDP} row_mask:0xf bank_mask:0xc")
        a(f"ds_write_b128 v{vOPW}, {V4(OACC)}")
        wo_dma(7)
    if thw is not None:
        a(f"v_readlane_b32 s15, v{vPR}, 16")
        for sh in (8, 4, 2, 1): a(f"v_add_u32_dpp v{vPR}, v{vPR}, v{vPR} row_ror:{sh} {FULL}")
        a(f"v_readfirstlane_b32 s65, v{vPR}\ns_add_u32 s65, s65, s15\ns_sub_u32 s17, s65, s{sPT}")
        a(f"s_cmp_gt_i32 s17, {thw}\ns_cbranch_scc1 L_lastE")
        sv = list(vm)
        final_iter()
        a("s_branch L_lastJ")
        a.label("L_lastE")
        vm[:] = sv; cw[0] = (-1,) * 6
        final_iter()
        a.label("L_lastJ")
    else: final_iter()
    a("s_waitcnt lgkmcnt(0)")
    a("s_barrier")
    a("s_mov_b32 exec_hi, 0")
    if not hoist: a(f"ds_read_b128 {V4(G)}, v{vZ} offset:{ML}\nds_read_b128 {V4(G+4)}, v{vZ} offset:{ML+16}")
    for w in range(4): a(f"ds_read_b64 {V2(G+8+2*w)}, v{vOPR} offset:{1024*w}")
    if not hoist:
        a("s_waitcnt lgkmcnt(4)")
        weights()
    ms = [G, G+2, G+4, G+6]
    a("s_cmp_lg_u32 s101, 0")
    a("s_waitcnt lgkmcnt(3)")
    a(f"v_pk_mul_f32 {V2(GR)}, {V2(G+8)}, {V2(ms[0])} op_sel_hi:[1,0]")
    for k in range(1, 4):
        a(f"s_waitcnt lgkmcnt({3-k})")
        a(f"v_pk_fma_f32 {V2(GR)}, {V2(G+8+2*k)}, {V2(ms[k])}, {V2(GR)} op_sel_hi:[1,0,1]")
    if fast:
        a("s_cbranch_scc1 L_st1far", drain=False)
        a(f"buffer_store_dwordx4 {V4(GR)}, v{vL16}, {S(SW)}, s70 offen")
        a("s_branch L_st1done", drain=False)
        a.label("L_st1far", drain=False)
    a(f"buffer_store_dwordx4 {V4(GR)}, v{vL16}, {S(SW)}, s70 offen sc1")
    if fast: a.label("L_st1done", drain=False)
    def st1_global():
        a("s_mov_b32 exec_hi, 0")
        a(f"buffer_store_dwordx4 {V4(GR)}, v{vL16}, {S(SW)}, s70 offen sc1")
        a("s_mov_b32 exec_hi, -1")
    a("s_mov_b64 exec, -1")
    stamp(8)
    a(f"s_mov_b32 s{sCNT}, {spin}")
    a(f"s_cmp_eq_u32 s{sCG}, 7\ns_cbranch_scc1 L_reduce", drain=False)
    if not early1:
        if pw is not None: a(f"s_waitcnt vmcnt({pw})")
        if stD: stamp(3)
        wo_dma(8)
        if sl1: a(f"s_sleep {sl1}")
        for k in range(4): ld1(k)
        wo_dma(9)
    if not hb: a(f"ds_read_b128 {V4(AH)}, v{vHA} offset:{HIMG}\nds_read_b128 {V4(AH+4)}, v{vHA} offset:{HIMG+64}")
    if early1: a("s_waitcnt vmcnt(1)\ns_branch L_p1c", drain=False)
    if 9 in wos: a(f"s_waitcnt vmcnt({list(wos).count(9)})\ns_branch L_p1c", drain=False)
    if b2b:
        a("s_waitcnt vmcnt(0)\ns_barrier")
        a(f"ds_read_b64_tr_b16 {V2(BD)}, v{vTR} offset:{WL2}\nds_read_b64_tr_b16 {V2(BD+2)}, v{vTR} offset:{WL2+512}")
        a(f"ds_read_b64_tr_b16 {V2(BD+4)}, v{vTR} offset:{WL2+4096}\nds_read_b64_tr_b16 {V2(BD+6)}, v{vTR} offset:{WL2+4096+512}")
        for k in range(4): a(f"ds_read_b64_tr_b16 {V2(BW+4*k)}, v{vTR} offset:{WL1+4096*k}\nds_read_b64_tr_b16 {V2(BW+4*k+2)}, v{vTR} offset:{WL1+4096*k+512}")
    a.label("L_p1", drain=False)
    a("s_waitcnt vmcnt(0)")
    a.label("L_p1c", drain=False)
    MK = [4, 6, 8, 10]
    for k in range(4): a(f"v_cmp_ne_u32 s[{MK[k]}:{MK[k]+1}], s{sTAG}, v{P1+4*k+3}")
    a(f"s_or_b64 s[76:77], s[4:5], s[6:7]\ns_or_b64 vcc, s[8:9], s[10:11]\ns_or_b64 s[76:77], s[76:77], vcc")
    a("s_cbranch_scc0 L_p1ok", drain=False)
    if sleep1: a(f"s_sleep {sleep1}")
    for k in range(4):
        a(f"s_cmp_eq_u64 s[{MK[k]}:{MK[k]+1}], 0\ns_cbranch_scc1 L_p1s{k}", drain=False)
        ld1(k)
        a.label(f"L_p1s{k}", drain=False)
    a(f"s_sub_u32 s{sCNT}, s{sCNT}, 1\ns_cbranch_scc0 L_p1", drain=False)
    a.label("L_p1ok", drain=False)
    stamp(5)
    lam = [P1+2, P1+6, P1+10, P1+14]
    a(f"v_max3_f32 v{E+4}, v{lam[0]}, v{lam[1]}, v{lam[2]}\nv_max_f32 v{E+4}, v{E+4}, v{lam[3]}")
    for k in range(4): a(f"v_sub_f32 v{lam[k]}, v{lam[k]}, v{E+4}")
    for k in range(4): a(f"v_exp_f32 v{lam[k]}, v{lam[k]}")
    a(f"v_add_f32 v{E+5}, v{lam[0]}, v{lam[1]}\nv_pk_mul_f32 {V2(G)}, {V2(P1)}, {V2(lam[0])} op_sel_hi:[1,0]\nv_add_f32 v{E+6}, v{lam[2]}, v{lam[3]}")
    a(f"v_pk_fma_f32 {V2(G)}, {V2(P1+4)}, {V2(lam[1])}, {V2(G)} op_sel_hi:[1,0,1]\nv_add_f32 v{E+6}, v{E+5}, v{E+6}")
    a(f"v_pk_fma_f32 {V2(G)}, {V2(P1+8)}, {V2(lam[2])}, {V2(G)} op_sel_hi:[1,0,1]\nv_rcp_f32 v{E+6}, v{E+6}")
    a(f"v_pk_fma_f32 {V2(G)}, {V2(P1+12)}, {V2(lam[3])}, {V2(G)} op_sel_hi:[1,0,1]")
    a(f"v_pk_mul_f32 {V2(G)}, {V2(G)}, {V2(E+6)} op_sel_hi:[1,0]")
    a(f"v_cvt_pk_bf16_f32 v{G}, v{G}, v{G+1}")
    if b2b:
        Y2 = G + 4
        a(f"ds_write_b32 v{vAW}, v{G}")
        a("s_waitcnt lgkmcnt(0)")
        a("s_barrier")
        for k in range(4): a(f"ds_read_b128 {V4(AO+4*k)}, v{vAR} offset:{AIMG+64*k}")
        a(f"v_mfma_f32_16x16x32_bf16 {V4(Y)}, {V4(AH)}, {V4(BD)}, 0")
        a(f"v_mfma_f32_16x16x32_bf16 {V4(Y2)}, {V4(AH+4)}, {V4(BD+4)}, 0")
        for k in range(4):
            a(f"s_waitcnt lgkmcnt({3 - k})")
            y = Y if k & 1 == 0 else Y2
            a(f"v_mfma_f32_16x16x32_bf16 {V4(y)}, {V4(AO+4*k)}, {V4(BW+4*k)}, {V4(y)}")
        a(f"v_add_f32 v{GR+2}, v{Y}, v{Y2}")
        Y = GR + 2
    else:
        a(f"ds_write_b32 v{vAW}, v{G}")
        a("s_waitcnt vmcnt(0) lgkmcnt(0)")
        a("s_barrier")
        if not hb:
            a(f"ds_read_b64_tr_b16 {V2(BD)}, v{vTR} offset:{WL2}\nds_read_b64_tr_b16 {V2(BD+2)}, v{vTR} offset:{WL2+512}")
            a(f"ds_read_b64_tr_b16 {V2(BD+4)}, v{vTR} offset:{WL2+4096}\nds_read_b64_tr_b16 {V2(BD+6)}, v{vTR} offset:{WL2+4096+512}")
        for k in range(4):
            a(f"ds_read_b128 {V4(AO+4*k)}, v{vAR} offset:{AIMG+64*k}")
            if hb != 1: a(f"ds_read_b64_tr_b16 {V2(BW+4*k)}, v{vTR} offset:{WL1+4096*k}\nds_read_b64_tr_b16 {V2(BW+4*k+2)}, v{vTR} offset:{WL1+4096*k+512}")
        if not hb:
            a("s_waitcnt lgkmcnt(12)")
            a(f"v_mfma_f32_16x16x32_bf16 {V4(Y)}, {V4(AH)}, {V4(BD)}, 0")
            a(f"v_mfma_f32_16x16x32_bf16 {V4(Y)}, {V4(AH+4)}, {V4(BD+4)}, {V4(Y)}")
        for k in range(4):
            a(f"s_waitcnt lgkmcnt({(3 - k) * (1 if hb == 1 else 3)})")
            a(f"v_mfma_f32_16x16x32_bf16 {V4(Y)}, {V4(AO+4*k)}, {V4(BW+4*k)}, {V4(Y)}")
        a(f"v_mov_b32 v{Y+1}, v{GR+3}")
    if st4:
        a(f"v_mov_b32_dpp v{Y+2}, v{Y} quad_perm:[1,1,3,3] {FULL}\nv_mov_b32 v{Y+3}, v{GR+3}")
        a("s_mov_b32 exec_lo, 0x55555555\ns_mov_b32 exec_hi, 0x55555555")
        a(f"buffer_store_dwordx4 {V4(Y)}, v{vST2}, {S(SW)}, s68 offen sc1")
        a("s_mov_b64 exec, -1")
    elif not nost2: a(f"buffer_store_dwordx2 {V2(Y)}, v{vST2}, {S(SW)}, s68 offen sc1")
    if fast and clean: st1_global()
    a("s_branch L_sdone")
    a.label("L_reduce")
    if fast and clean:
        a("s_sleep 12")
        st1_global()
    a(f"s_cmp_ge_u32 s100, 28\ns_cbranch_scc1 L_sdone")
    if nored: a("s_branch L_sdone")
    SETS = [R + 16 * d for d in range(2)] + [QF, QF + 16]
    def ld2(d):
        for k in range(4): a(f"buffer_load_dwordx4 {V4(SETS[d]+4*k)}, v{vL16}, {S(SW)}, s78 offen offset:{1024*k} sc1")
    a(f"s_waitcnt vmcnt(0)\nv_lshlrev_b32 v{vX}, 16, v{vX}")
    for d in range(D2 - 1):
        ld2(d)
        if stag2: a(f"s_sleep {stag2}")
    a.label("L_p2")
    for d in range(D2):
        ld2((d + D2 - 1) % D2)
        a(f"s_waitcnt vmcnt({4 * (D2 - 1)})")
        q = SETS[d]
        a(f"v_xor_b32 v{E}, v{q+1}, v{GR+3}\nv_xor_b32 v{E+1}, v{q+3}, v{GR+3}")
        for k in range(1, 4): a(f"v_bitop3_b32 v{E}, v{q+4*k+1}, v{GR+3}, v{E} bitop3:0xbe\nv_bitop3_b32 v{E+1}, v{q+4*k+3}, v{GR+3}, v{E+1} bitop3:0xbe")
        a(f"v_or_b32 v{E}, v{E}, v{E+1}\nv_add_f32 v{P1}, v{q}, v{q+4}\nv_add_f32 v{P1+2}, v{q+2}, v{q+6}\nv_cmp_ne_u32 vcc, 0, v{E}")
        a(f"v_add_f32 v{P1+8}, v{q+8}, v{q+12}\nv_add_f32 v{P1+10}, v{q+10}, v{q+14}")
        a("s_cbranch_vccz L_p2ok", drain=False)
    a(f"s_sub_u32 s{sCNT}, s{sCNT}, 1\ns_cbranch_scc0 L_p2", drain=False)
    a.label("L_p2ok", drain=False)
    stamp(6)
    a(f"v_add_f32 v{P1}, v{P1}, v{P1+8}\nv_add_f32 v{P1+2}, v{P1+2}, v{P1+10}")
    a(f"v_permlane16_swap_b32 v{P1}, v{P1+2}")
    a(f"v_add_f32 v{P1}, v{P1}, v{P1+2}")
    a(f"v_add_f32_dpp v{P1}, v{P1}, v{P1} row_ror:8 {FULL}")
    a(f"v_mov_b32 v{P1+2}, v{P1}")
    a(f"v_permlane32_swap_b32 v{P1}, v{P1+2}")
    a(f"v_add_f32 v{P1}, v{P1}, v{P1+2}\nv_add_f32 v{P1}, v{P1}, v{vX}")
    a(f"v_cvt_pk_bf16_f32 v{P1}, v{P1}, v{P1}")
    a(f"s_mov_b32 exec_hi, 0\ns_mov_b32 exec_lo, 0x00ff00ff")
    a(f"buffer_store_short v{P1}, v{vXO}, {S(SC_)}, s69 offen {osc}")
    a(f"s_or_b32 s65, s100, s{sWv}\ns_cmp_lg_u32 s65, 0\ns_cbranch_scc1 L_sdone")
    a("s_mov_b64 exec, 1")
    a(f"buffer_store_dword v{GR+3}, v{vZ}, {S(SW)}, 0 offen {osc}")
    a.label("L_sdone")
    stamp(7)
    pad("S")
    dump_stamps(9)
    a("s_endpgm")

    a.label("L_helper")
    in_helper[0] = True
    a("s_load_dwordx16 s[4:19], s[0:1], 0\ns_load_dwordx8 s[20:27], s[0:1], 64")
    decode(a)
    X, F, AF, AF2, BF, D, TG = 32, 64, 96, 112, 128, 184, 200
    a("s_setprio 3")
    a(f"v_mul_u32_u24 v6, 896, v5\nv_lshl_add_u32 v6, v4, 6, v6\nv_mov_b32 v7, 0x40000000\nv_cmp_gt_u32 s[74:75], 14, v4")
    a(f"v_cndmask_b32 v7, v7, v6, s[74:75]")
    a(f"v_lshrrev_b32 v8, 3, v0\nv_and_b32 v9, 7, v0\nv_lshlrev_b32 v9, 4, v9\nv_lshl_add_u32 v10, v8, 13, v9")
    a(f"v_mul_u32_u24 v11, 3584, v8\nv_add_u32 v11, v11, v9")
    a(f"s_mul_i32 s65, s{sB}, {112 * 8192}\ns_lshl_b32 s66, s{sIDX}, 7\ns_add_u32 s65, s65, s66")
    a("s_waitcnt lgkmcnt(0)")
    a(f"s_load_dword s{sTAG}, s[26:27], 0")
    srd(SA, 4, 3584)
    for u in range(4): a(f"buffer_load_dwordx4 {V4(X+4*u)}, v7, {S(SA)}, 0 offen offset:{16*u}")
    srd(SB, 10, 448 * 8192)
    def dma(sr, voff, so, stride, lds0, win=None):
        for k in range(14):
            if win and k >= win: a(f"s_waitcnt vmcnt({win-1})")
            a(f"s_mov_b32 m0, {lds0 + 1024 * k}")
            a(f"buffer_load_dwordx4 v{voff}, {S(sr)}, s{so} offen {wnt} lds")
            if k < 13: a(f"s_add_u32 s{so}, s{so}, {8 * stride}")
    if not noq: dma(SB, 10, 65, 8192, WL0)
    srd(SW, 26, WS_USED)
    nini = 0
    if fb:
        a(f"s_lshl_b32 s34, s{sH}, 9\ns_add_u32 s34, s34, {PMB}\ns_lshl_b32 s35, s{sB}, 2\ns_add_u32 s35, s35, s{sJ}\ns_lshl_b32 s68, s35, 2\ns_add_u32 s68, s68, s34")
        a(f"v_lshlrev_b32 v2, 7, v0\nv_mov_b32 v3, 0\ns_mov_b64 exec, 15")
        a(f"buffer_store_dword v3, v2, {S(SW)}, s68 offen"); nini += 1
        if gfb:
            a(f"s_cmp_eq_u32 s35, 0\ns_cselect_b32 s68, s34, 0x40000000")
            a(f"buffer_store_dword v3, v2, {S(SW)}, s68 offen offset:64"); nini += 1
        a("s_mov_b64 exec, -1")
    a(f"v_and_b32 v14, 3, v4\nv_lshrrev_b32 v15, 2, v4\ns_mul_i32 s65, s{sB}, 224")
    a(f"v_mul_u32_u24 v12, 896, v15\nv_add_u32 v12, s65, v12\nv_lshl_add_u32 v28, v5, 3, v12\nv_lshl_add_u32 v12, v5, 4, v12")
    a(f"s_lshr_b32 s65, s{sCG}, 1\ns_mul_i32 s65, s65, 224")
    a(f"v_mul_u32_u24 v30, 896, v14\nv_add_u32 v30, s65, v30\nv_lshl_add_u32 v31, v5, 3, v30\nv_lshl_add_u32 v30, v5, 4, v30")
    a(f"v_lshl_add_u32 v8, v5, 2, v14\nv_lshlrev_b32 v8, 4, v8\nv_lshl_add_u32 v8, v15, 16, v8")
    a(f"v_lshlrev_b32 v9, 5, v14\nv_lshl_add_u32 v9, v15, 3, v9\nv_lshl_add_u32 v9, v5, 7, v9")
    for t in range(1, 4): a(f"v_cmp_eq_u32 s[{26+2*t}:{27+2*t}], {t}, v14")
    a(f"v_lshlrev_b32 v15, 7, v15\nv_lshl_add_u32 v15, v14, 3, v15")
    a(f"v_lshl_add_u32 v13, v5, 10, v15\nv_lshl_add_u32 v29, v5, 9, v15")
    a(f"s_waitcnt vmcnt(14)" if not noq else "s_waitcnt vmcnt(0)")
    stamp(1)
    for k in range(16): a(f"v_lshlrev_b32 v{F+2*k}, 16, v{X+k}\nv_and_b32 v{F+2*k+1}, 0xffff0000, v{X+k}")
    a(f"v_pk_add_f32 v[14:15], {V2(F)}, {V2(F+2)}\nv_pk_add_f32 v[16:17], {V2(F+4)}, {V2(F+6)}")
    for k in range(4, 16, 2):
        a(f"v_pk_add_f32 v[14:15], v[14:15], {V2(F+2*k)}\nv_pk_add_f32 v[16:17], v[16:17], {V2(F+2*k+2)}")
    a("v_pk_add_f32 v[14:15], v[14:15], v[16:17]\nv_add_f32 v14, v14, v15")
    def rowsum(r):
        for sh in (8, 4, 2, 1): a(f"v_add_f32_dpp v{r}, v{r}, v{r} row_ror:{sh} {FULL}")
    rowsum(14)
    a(f"v_mul_f32 v18, {hex(f2u(-1.0 / 448))}, v14\nv_mov_b32 v19, v18")
    a("v_mov_b32 v14, 0\nv_mov_b32 v15, 0\nv_mov_b32 v16, 0\nv_mov_b32 v17, 0")
    for k in range(0, 16, 2):
        a(f"v_pk_add_f32 v[20:21], {V2(F+2*k)}, v[18:19]\nv_pk_add_f32 v[22:23], {V2(F+2*k+2)}, v[18:19]")
        a(f"v_pk_fma_f32 v[14:15], v[20:21], v[20:21], v[14:15]\nv_pk_fma_f32 v[16:17], v[22:23], v[22:23], v[16:17]")
    a("v_pk_add_f32 v[14:15], v[14:15], v[16:17]\nv_add_f32 v14, v14, v15\nv_cndmask_b32 v14, 0, v14, s[74:75]")
    rowsum(14)
    def rbf(r): a(f"v_cvt_pk_bf16_f32 v{r}, v{r}, v{r}\nv_and_b32 v{r}, 0xffff0000, v{r}")
    a(f"v_mul_f32 v14, {hex(f2u(1.0 / 448))}, v14"); rbf(14)
    a(f"v_add_f32 v14, {hex(f2u(1e-5))}, v14"); rbf(14)
    a("v_sqrt_f32 v14, v14"); rbf(14)
    a("v_rcp_f32 v16, v14\nv_mov_b32 v15, v14"); rbf(18)
    a("v_mov_b32 v17, v16\nv_mov_b32 v19, v18")
    for k in range(16):
        a(f"v_pk_add_f32 {V2(F+2*k)}, {V2(F+2*k)}, v[18:19]")
    for k in range(16):
        a(f"v_cvt_pk_bf16_f32 v{X+k}, v{F+2*k}, v{F+2*k+1}")
    for k in range(16): a(f"v_lshlrev_b32 v{F+2*k}, 16, v{X+k}\nv_and_b32 v{F+2*k+1}, 0xffff0000, v{X+k}")
    for k in range(16):
        t = 20 + 2 * (k & 3)
        a(f"v_pk_mul_f32 {V2(t)}, {V2(F+2*k)}, v[16:17]")
        a(f"v_pk_fma_f32 {V2(F+2*k)}, {V2(t)}, v[14:15], {V2(F+2*k)} neg_lo:[1,0,0] neg_hi:[1,0,0]")
        a(f"v_pk_fma_f32 {V2(t)}, {V2(F+2*k)}, v[16:17], {V2(t)}")
        a(f"v_cvt_pk_bf16_f32 v{X+k}, v{t}, v{t+1}")
    a("s_mov_b64 exec, s[74:75]")
    for u in range(4): a(f"ds_write_b128 v6, {V4(X+4*u)} offset:{XN + 16*u}")
    a("s_mov_b64 exec, -1")
    a("s_waitcnt lgkmcnt(0)")
    a(f"s_mul_i32 s{sTAG}, s{sTAG}, 0x9E3779B1\ns_add_u32 s{sTAG}, s{sTAG}, 0x7F4A7C15")
    for k in range(3): a(f"ds_read_b128 {V4(AF+4*k)}, v12 offset:{XN + 64*k}")
    a(f"ds_read_b64 {V2(AF+12)}, v28 offset:{XN + 192}")
    a(f"v_mov_b32 v{TG}, s{sTAG}\nv_lshrrev_b32 v{TG+1}, 8, v{TG}\nv_lshrrev_b32 v{TG+2}, 16, v{TG}\nv_lshrrev_b32 v{TG+3}, 24, v{TG}\ns_movk_i32 s78, 0xff")
    a(f"v_lshlrev_b32 v10, 4, v0")
    a(f"s_lshl_b32 s66, s{sH}, 12\ns_lshl_b32 s67, s{sB}, 10\ns_add_u32 s66, s66, s67\ns_lshl_b32 s67, s{sJ}, 8\ns_add_u32 s66, s66, s67\ns_add_u32 s66, s66, {QMB}")
    a(f"s_lshl_b32 s67, s{sBH}, 12\ns_add_u32 s67, s67, {QMB}")
    a("s_waitcnt vmcnt(0)")
    stamp(2)
    a(f"s_getreg_b32 s69, hwreg(HW_REG_XCC_ID, 0, 4)\nv_xor_b32 v{TG+4}, s69, v{TG+3}")
    def piece(af, transposed):
        for t in range(4):
            for k in range(3):
                o = WL0 + 4096 * k + 32 * t
                a(f"ds_read_b64_tr_b16 {V2(BF+14*t+4*k)}, v13 offset:{o}\nds_read_b64_tr_b16 {V2(BF+14*t+4*k+2)}, v13 offset:{o + 512}")
            a(f"ds_read_b64_tr_b16 {V2(BF+14*t+12)}, v29 offset:{WL0 + 12288 + 32 * t}")
        a("s_waitcnt lgkmcnt(0)")
        for k in range(3):
            for t in range(4):
                x, w = V4(af+4*k), V4(BF+14*t+4*k)
                a(f"v_mfma_f32_16x16x32_bf16 {V4(D+4*t)}, {w if transposed else x}, {x if transposed else w}, {'0' if k == 0 else V4(D+4*t)}")
        for t in range(4):
            x, w = V2(af+12), V2(BF+14*t+12)
            a(f"v_mfma_f32_16x16x16_bf16 {V4(D+4*t)}, {w if transposed else x}, {x if transposed else w}, {V4(D+4*t)}")
        for t in range(1, 4):
            for r in range(4):
                if transposed: a(f"v_cndmask_b32 v{D+r}, v{D+r}, v{D+4*t+r}, s[{26+2*t}:{27+2*t}]")
                else: a(f"v_mov_b32_dpp v{D+r}, v{D+4*t+r} {IDP} row_mask:{hex(1 << t)} bank_mask:0xf")
        for r in range(4): a(f"v_add_u32 v{D+r}, 0x80, v{D+r}")
        for r in range(4): a(f"v_bfi_b32 v{20+r}, s78, v{TG + r + (1 if transposed and r == 3 else 0)}, v{D+r}")
    a("; q block")
    piece(AF, True)
    if noq or not qst: a("s_branch L_pqok")
    a(f"buffer_store_dwordx4 v[20:23], v8, {S(SW)}, s66 offen{'' if fastq else ' sc1'}")
    stamp(3)
    for k in range(3): a(f"ds_read_b128 {V4(AF2+4*k)}, v30 offset:{XN + 64*k}")
    a(f"ds_read_b64 {V2(AF2+12)}, v31 offset:{XN + 192}")
    a(f"v_mov_b32 v16, 0\nv_mov_b32 v17, 0\nv_mov_b32 v18, 0\nv_mov_b32 v19, 0")
    a(f"s_mov_b32 exec_hi, 0xff\nds_write_b128 v10, v[16:19] offset:{HIMG}\ns_mov_b64 exec, -1")
    a(f"ds_write_b128 v16, v[16:19] offset:{PGL}")
    PQ = F
    def qload(k): a(f"buffer_load_dwordx4 {V4(PQ+4*k)}, v10, {S(SW)}, s67 offen offset:{1024 * k} sc1")
    def chk4(dst, src):
        a(f"v_xor_b32 v{dst}, v{src}, v{TG}")
        for t in range(1, 4): a(f"v_bitop3_b32 v{dst}, v{src+t}, v{TG+t}, v{dst} bitop3:0xbe")
        a(f"v_and_b32 v{dst}, s78, v{dst}")
    if sleepq: a(f"s_sleep {sleepq}")
    for k in range(4): qload(k)
    a(f"s_mov_b32 s{sCNT}, {spin}")
    a.label("L_pq")
    a("s_waitcnt vmcnt(0)")
    for k in range(4):
        a(f"v_xor_b32 v{X+4+k}, v{PQ+4*k+3}, v{TG+4}\nv_and_b32 v{X+k}, 0xf0, v{X+4+k}")
        for t in range(3): a(f"v_bitop3_b32 v{X+k}, v{PQ+4*k+t}, v{TG+t}, v{X+k} bitop3:0xbe")
        a(f"v_and_b32 v{X+k}, s78, v{X+k}")
    a(f"v_or3_b32 v24, v{X}, v{X+1}, v{X+2}\nv_or_b32 v24, v24, v{X+3}")
    a("v_cmp_ne_u32 vcc, 0, v24\ns_cbranch_vccz L_pqok", drain=False)
    if fastq:
        a(f"s_cmp_lg_u32 s{sCNT}, {spin - nq}\ns_cbranch_scc1 L_pqg", drain=False)
        a(f"buffer_store_dwordx4 v[20:23], v8, {S(SW)}, s66 offen sc1")
        a.label("L_pqg", drain=False)
    a(f"s_sleep 2")
    for k in range(4):
        a(f"v_cmp_ne_u32 vcc, 0, v{X+k}\ns_cbranch_vccz L_pqs{k}", drain=False)
        qload(k)
        a.label(f"L_pqs{k}", drain=False)
    a(f"s_sub_u32 s{sCNT}, s{sCNT}, 1\ns_cmp_lg_u32 s{sCNT}, 0\ns_cbranch_scc1 L_pq", drain=False)
    a.label("L_pqok", drain=False)
    for k in range(16): a(f"v_and_b32 v{PQ+k}, 0xffffff00, v{PQ+k}")
    for e in (0, 2):
        a(f"v_pk_add_f32 {V2(PQ+e)}, {V2(PQ+e)}, {V2(PQ+4+e)}\nv_pk_add_f32 {V2(PQ+8+e)}, {V2(PQ+8+e)}, {V2(PQ+12+e)}")
    for e in (0, 2): a(f"v_pk_add_f32 {V2(PQ+e)}, {V2(PQ+e)}, {V2(PQ+8+e)}")
    a(f"v_cvt_pk_bf16_f32 v24, v{PQ}, v{PQ+1}\nv_cvt_pk_bf16_f32 v25, v{PQ+2}, v{PQ+3}\nv_mov_b32 v17, 0")
    a(f"v_or3_b32 v26, v{X+4}, v{X+5}, v{X+6}\nv_or_b32 v26, v26, v{X+7}\nv_and_b32 v26, 15, v26\nv_cmp_ne_u32 vcc, 0, v26")
    a(f"s_or_b32 s69, vcc_lo, vcc_hi\nv_mov_b32 v26, v{TG}\nv_mov_b32 v27, s69")
    a(f"ds_write_b64 v9, v[24:25] offset:{QL}\nds_write_b64 v17, v[26:27] offset:{TAGL}")
    if fastq:
        a("s_cmp_eq_u32 s69, 0\ns_cbranch_scc1 L_qnear")
        a(f"buffer_store_dwordx4 v[20:23], v8, {S(SW)}, s66 offen sc1")
        a.label("L_qnear")
    a("s_waitcnt lgkmcnt(0)")
    stamp(4)
    if stamps: a(f"s_mov_b32 s92, s{sCNT}")
    a("s_barrier")
    a("s_setprio 0")
    if amp:
        a(f"s_cmp_lg_u32 s35, 0\ns_cbranch_scc1 L_noref\ns_not_b32 s71, s80\ns_atomic_umax s71, s[24:25], 200\ns_waitcnt lgkmcnt(0)")
        a.label("L_noref")
    if g0:
        a(f"s_cmp_lg_u32 s35, 15\ns_cbranch_scc1 L_nog0\ns_cmp_lg_u32 s69, 0\ns_cbranch_scc1 L_nog0")
        a("s_mov_b32 s71, 1\ns_atomic_add s71, s[24:25], 60 glc\ns_waitcnt lgkmcnt(0)")
        a(f"s_sub_u32 s71, s71, {r0}\ns_mul_i32 s71, s71, {g0}\ns_ashr_i32 s71, s71, 2\nv_mov_b32 v42, s71")
        a(f"s_mov_b64 exec, 15\nbuffer_store_dword v42, v2, {S(SW)}, s34 offen offset:64\ns_mov_b64 exec, -1")
        a.label("L_nog0")
    if noffn: a("s_branch L_hend")
    a(f"s_cmp_ge_u32 s{sKG}, 28\ns_cbranch_scc1 L_hend")
    a(f"s_bitcmp1_b32 s{sCG}, 0\ns_cselect_b32 s{SC_}, s18, s16\ns_cselect_b32 s{SC_+1}, s19, s17\ns_mov_b32 s{SC_+2}, {448 * 3584}\ns_mov_b32 s{SC_+3}, 0x20000")
    a(f"s_lshr_b32 s66, s{sCG}, 1\ns_mul_i32 s65, s66, {112 * 3584}\ns_lshl_b32 s67, s{sKG}, 7\ns_add_u32 s65, s65, s67")
    if fdma: dma(SC_, 11, 65, 3584, WL0, win=HW)
    a(f"s_lshl_b32 s67, s{sKG}, 13\ns_add_u32 s67, s67, {FMB}\ns_lshl_b32 s66, s{sCG}, 10\ns_add_u32 s66, s66, s67\ns_add_u32 s68, s67, 4096")
    a("s_waitcnt vmcnt(0)")
    piece(AF2, False)
    if fst and fastf:
        a("s_cmp_lg_u32 s69, 0\ns_cbranch_scc1 L_ffar")
        a(f"buffer_store_dwordx4 v[20:23], v10, {S(SW)}, s66 offen\ns_branch L_fdone")
        a.label("L_ffar")
    if fst: a(f"buffer_store_dwordx4 v[20:23], v10, {S(SW)}, s66 offen sc1")
    if fst and fastf: a.label("L_fdone")
    if not fpoll: a("s_branch L_hend")
    a(f"s_cmp_eq_u32 s{sCG}, 7\ns_cbranch_scc1 L_hend")
    def fload(k): a(f"buffer_load_dwordx4 {V4(F+4*k)}, v10, {S(SW)}, s{67 + (k >> 2)} offen offset:{1024 * (k & 3)} sc1")
    a(f"s_sleep {sleepf}")
    for k in range(8): fload(k)
    a(f"s_mov_b32 s{sCNT}, {spin}\nv_lshlrev_b32 v9, 1, v0")
    a.label("L_pf")
    a("s_waitcnt vmcnt(0)")
    for k in range(8): chk4(X + k, F + 4 * k)
    a(f"v_or3_b32 v24, v{X}, v{X+1}, v{X+2}\nv_or3_b32 v24, v24, v{X+3}, v{X+4}\nv_or3_b32 v24, v24, v{X+5}, v{X+6}\nv_or_b32 v24, v24, v{X+7}")
    a("v_cmp_ne_u32 vcc, 0, v24\ns_cbranch_vccz L_pfok", drain=False)
    a(f"s_sleep 16")
    for k in range(8):
        a(f"v_cmp_ne_u32 vcc, 0, v{X+k}\ns_cbranch_vccz L_pfs{k}", drain=False)
        fload(k)
        a.label(f"L_pfs{k}", drain=False)
    a(f"s_sub_u32 s{sCNT}, s{sCNT}, 1\ns_cbranch_scc0 L_pf", drain=False)
    a.label("L_pfok", drain=False)
    for k in range(32): a(f"v_and_b32 v{F+k}, 0xffffff00, v{F+k}")
    for e in range(0, 8, 2):
        a(f"v_pk_add_f32 {V2(F+e)}, {V2(F+e)}, {V2(F+8+e)}\nv_pk_add_f32 {V2(F+16+e)}, {V2(F+16+e)}, {V2(F+24+e)}")
    for e in range(0, 8, 2): a(f"v_pk_add_f32 {V2(F+e)}, {V2(F+e)}, {V2(F+16+e)}")
    for r in range(8): rbf(F + r)
    k1 = -2.0 * math.sqrt(2.0 / math.pi) * math.log2(math.e)
    for r in range(4):
        g, u, t = F + r, F + 4 + r, F + 8 + r
        a(f"v_mul_f32 v{t}, v{g}, v{g}\nv_mul_f32 v{t}, {hex(f2u(0.044715))}, v{t}\nv_fma_f32 v{t}, v{t}, v{g}, v{g}")
        a(f"v_mul_f32 v{t}, {hex(f2u(k1))}, v{t}\nv_exp_f32 v{t}, v{t}\nv_add_f32 v{t}, 1.0, v{t}\nv_rcp_f32 v{t}, v{t}\nv_mul_f32 v{g}, v{g}, v{t}")
        rbf(g)
        a(f"v_mul_f32 v{g}, v{g}, v{u}")
    a(f"v_cvt_pk_bf16_f32 v32, v{F}, v{F+1}\nv_cvt_pk_bf16_f32 v34, v{F+2}, v{F+3}")
    a(f"ds_write_b16 v9, v32 offset:{HIMG}\nds_write_b16_d16_hi v9, v32 offset:{HIMG + HROW}")
    a(f"ds_write_b16 v9, v34 offset:{HIMG + 2 * HROW}\nds_write_b16_d16_hi v9, v34 offset:{HIMG + 3 * HROW}")
    a("s_waitcnt lgkmcnt(0)")
    a.label("L_hend")
    a("s_mov_b64 exec, -1")
    if fb and gfb == 2:
        a(f"s_cmp_lg_u32 s69, 0\ns_cbranch_scc1 L_gend\ns_cmp_ge_u32 s35, {nR}\ns_cbranch_scc1 L_gend")
        a(f"v_lshlrev_b32 v6, 2, v4\nv_lshl_add_u32 v6, v5, 7, v6\nv_mov_b32 v41, v{TG}\nv_mov_b32 v7, 0")
        a(f"s_lshl_b32 s66, s{sH}, 7\ns_add_u32 s66, s66, {GMB}\ns_mov_b32 s67, {GMB}\ns_mov_b32 s{sCNT}, 4000\ns_mul_i32 s70, s35, {dL}\ns_add_u32 s70, s70, {L0}")
        a.label("L_gw")
        a(f"ds_read_b32 v40, v7 offset:{PGL}\ns_waitcnt lgkmcnt(0)\nv_readfirstlane_b32 s65, v40\ns_cmp_ge_u32 s65, s70\ns_cbranch_scc1 L_gr")
        a(f"s_sleep 4\ns_sub_u32 s{sCNT}, s{sCNT}, 1\ns_cbranch_scc0 L_gw")
        a.label("L_gr")
        a(f"buffer_load_dword v40, v6, {S(SW)}, s34 offen sc1")
        a("s_mov_b64 exec, 0xffff")
        a(f"buffer_load_dwordx2 v[42:43], v2, {S(SW)}, s67 offen sc1")
        a("s_mov_b64 exec, -1\ns_waitcnt vmcnt(1)")
        for sh in (8, 4, 2, 1): a(f"v_add_u32_dpp v40, v40, v40 row_ror:{sh} {FULL}")
        a("v_add_u32_dpp v40, v40, v40 row_bcast:15 row_mask:0xa bank_mask:0xf\nv_add_u32_dpp v40, v40, v40 row_bcast:31 row_mask:0xc bank_mask:0xf")
        a("v_readlane_b32 s71, v40, 63\nv_mov_b32 v40, s71")
        a("s_mov_b64 exec, 1")
        a(f"buffer_store_dwordx2 v[40:41], v7, {S(SW)}, s66 offen sc1")
        a("s_mov_b64 exec, -1\ns_waitcnt vmcnt(1)")
        a(f"v_subrev_u32 v44, {64 * dL}, v40\nv_cmp_eq_u32 vcc, v43, v41\nv_cndmask_b32 v42, v44, v42, vcc\nv_sub_u32 v42, v42, v40")
        for sh in (8, 4, 2, 1): a(f"v_add_u32_dpp v42, v42, v42 row_ror:{sh} {FULL}")
        a(f"v_ashrrev_i32 v42, {4 + gsh}, v42\nv_add_u32 v42, {goff}, v42")
        a("s_mov_b64 exec, 15")
        a(f"buffer_store_dword v42, v2, {S(SW)}, s34 offen offset:64")
        a("s_mov_b64 exec, -1")
        a.label("L_gend")
    if fb and gfb == 3:
        a("; balancing round: when the head reaches this workgroup's level, its arrival rank (d_debug counter) sets the bias word")
        a(f"s_cmp_lg_u32 s69, 0\ns_cbranch_scc1 L_gend\ns_cmp_ge_u32 s35, {nR}\ns_cbranch_scc1 L_gend")
        a(f"v_lshlrev_b32 v6, 2, v4\nv_lshl_add_u32 v6, v5, 7, v6\nv_mov_b32 v7, 0")
        a(f"s_mov_b32 s{sCNT}, 4000\ns_mul_i32 s70, s35, {dL}\ns_add_u32 s70, s70, {L0}\ns_lshl_b32 s66, s35, 2")
        a.label("L_gw")
        a(f"ds_read_b32 v40, v7 offset:{PGL}\ns_waitcnt lgkmcnt(0)\nv_readfirstlane_b32 s65, v40\ns_cmp_ge_u32 s65, s70\ns_cbranch_scc1 L_gr")
        a(f"s_sleep 4\ns_sub_u32 s{sCNT}, s{sCNT}, 1\ns_cbranch_scc0 L_gw")
        a.label("L_gr")
        if gpoll:
            a(f"s_lshl_b32 s70, s70, 6\ns_add_u32 s70, s70, 16\ns_mov_b32 s{sCNT}, 3")
            a.label("L_gp")
            a(f"buffer_load_dword v40, v6, {S(SW)}, s34 offen sc1\ns_waitcnt vmcnt(0)")
            for sh in (8, 4, 2, 1): a(f"v_add_u32_dpp v40, v40, v40 row_ror:{sh} {FULL}")
            a("v_add_u32_dpp v40, v40, v40 row_bcast:15 row_mask:0xa bank_mask:0xf\nv_add_u32_dpp v40, v40, v40 row_bcast:31 row_mask:0xc bank_mask:0xf")
            a(f"v_readlane_b32 s71, v40, 63\ns_cmp_ge_u32 s71, s70\ns_cbranch_scc1 L_ga\ns_sub_u32 s{sCNT}, s{sCNT}, 1\ns_cbranch_scc0 L_gp")
            a.label("L_ga")
        a("s_mov_b32 s71, 1\ns_atomic_add s71, s[24:25], s66 glc\ns_waitcnt lgkmcnt(0)")
        a(f"s_sub_u32 s71, s71, {r0}\ns_mul_i32 s71, s71, {gain}\ns_ashr_i32 s71, s71, 2\nv_mov_b32 v42, s71")
        a("s_mov_b64 exec, 15")
        a(f"buffer_store_dword v42, v2, {S(SW)}, s34 offen offset:64")
        a("s_mov_b64 exec, -1")
        if rew:
            a(f"s_cmp_lt_u32 s35, {nR - rew}\ns_cbranch_scc1 L_gend")
            a("s_getpc_b64 s[66:67]")
            a.label("L_pc2", drain=False)
            a("s_sub_u32 s66, s66, L_pc2-L_tail\ns_subb_u32 s67, s67, 0\nv_min_u32 v2, L_helper-L_tail, v2\nglobal_load_dword v31, v2, s[66:67]")
        a.label("L_gend")
    if fb and gfb == 1:
        NIT = (15 - NP) + 1 + 15
        a("s_or_b32 s65, s35, s69\ns_cmp_lg_u32 s65, 0\ns_cbranch_scc1 L_gend")
        a(f"v_lshlrev_b32 v6, 2, v4\nv_lshl_add_u32 v6, v5, 7, v6\nv_mov_b32 v41, v{TG}\nv_mov_b32 v7, 0")
        a(f"s_lshl_b32 s66, s{sH}, {3 if gsc else 7}\ns_add_u32 s66, s66, {GMB}\ns_mov_b32 s67, {GMB}\ns_mov_b32 s{sCNT}, 200\ns_mov_b32 s70, -1")
        a.label("L_g")
        a(f"buffer_load_dword v40, v6, {S(SW)}, s34 offen sc1")
        if gsc:
            a(f"s_waitcnt lgkmcnt(0)\ns_load_dwordx16 s[4:19], s[26:27], {GMB} glc\ns_load_dwordx16 s[40:55], s[26:27], {GMB + 64} glc\ns_waitcnt vmcnt(0)")
        else:
            a("s_mov_b64 exec, 0xffff")
            a(f"buffer_load_dwordx2 v[42:43], v2, {S(SW)}, s67 offen sc1")
            a("s_mov_b64 exec, -1\ns_waitcnt vmcnt(1)")
        a(f"v_cmp_le_u32 vcc, {NIT - gexit}, v40\ns_or_b32 s65, vcc_lo, vcc_hi\ns_and_b32 s65, s65, 0x10001\ns_cbranch_scc1 L_gend")
        for sh in (8, 4, 2, 1): a(f"v_add_u32_dpp v40, v40, v40 row_ror:{sh} {FULL}")
        a("v_add_u32_dpp v40, v40, v40 row_bcast:15 row_mask:0xa bank_mask:0xf\nv_add_u32_dpp v40, v40, v40 row_bcast:31 row_mask:0xc bank_mask:0xf")
        a("v_readlane_b32 s71, v40, 63\nv_mov_b32 v40, s71")
        a("s_mov_b64 exec, 1")
        a(f"buffer_store_dwordx2 v[40:41], v7, {S(SW)}, s66 offen sc1")
        a("s_mov_b64 exec, -1\ns_waitcnt vmcnt(1)")
        a("s_cmp_eq_u32 s70, -1\ns_cbranch_scc1 L_gskip")
        if gavg: a("s_add_u32 s70, s70, s71\ns_lshr_b32 s70, s70, 1")
        if gsc:
            a("s_waitcnt lgkmcnt(0)\ns_mov_b32 s65, 0")
            for k in range(16):
                r = (4 + 2 * k) if k < 8 else (40 + 2 * (k - 8))
                a(f"s_cmp_eq_u32 s{r+1}, s{sTAG}\ns_cselect_b32 s{r}, s{r}, s70\ns_add_u32 s65, s65, s{r}")
            a(f"s_lshl_b32 s70, s70, 4\ns_sub_u32 s65, s65, s70\ns_ashr_i32 s65, s65, {4 + gsh}\ns_add_u32 s65, s65, {goff}\nv_mov_b32 v42, s65")
        else:
          a(f"v_mov_b32 v44, s70\nv_cmp_eq_u32 vcc, v43, v41\nv_cndmask_b32 v42, v44, v42, vcc\nv_sub_u32 v42, v42, v44")
          for sh in (8, 4, 2, 1): a(f"v_add_u32_dpp v42, v42, v42 row_ror:{sh} {FULL}")
          a(f"v_ashrrev_i32 v42, {4 + gsh}, v42")
          if goff: a(f"v_add_u32 v42, {goff}, v42")
        a("s_mov_b64 exec, 15")
        a(f"buffer_store_dword v42, v2, {S(SW)}, s34 offen offset:64")
        a("s_mov_b64 exec, -1")
        a.label("L_gskip")
        a("s_mov_b32 s70, s71")
        if gsleep: a(f"s_sleep {gsleep}")
        a(f"s_sub_u32 s{sCNT}, s{sCNT}, 1\ns_cbranch_scc0 L_g")
        a.label("L_gend")
        if gsc: a("s_waitcnt lgkmcnt(0)")
    stamp(5)
    pad("H")
    dump_stamps(7)
    a.label("L_end")
    a("s_endpgm")
    a.raw('.section .rodata,"a"'); a.raw(".p2align 6"); a.raw(f".amdhsa_kernel {NAME}")
    a.raw("  .amdhsa_next_free_vgpr 256"); a.raw("  .amdhsa_next_free_sgpr 102"); a.raw("  .amdhsa_accum_offset 256")
    a.raw("  .amdhsa_group_segment_fixed_size 0"); a.raw("  .amdhsa_kernarg_size 96"); a.raw("  .amdhsa_user_sgpr_count 2")
    a.raw("  .amdhsa_user_sgpr_kernarg_segment_ptr 1"); a.raw("  .amdhsa_system_sgpr_workgroup_id_x 1"); a.raw(".end_amdhsa_kernel")
    return a.text()

if __name__ == "__main__":
    out = sys.argv[1]
    kw = eval("dict(" + (sys.argv[2] if len(sys.argv) > 2 else "") + ")")
    open(out, "w").write(gen(**kw))
```

```python
import sys, struct, math
sys.path.insert(0, "gen")
from asmlib import Asm

NAME = "parallel_sum__mha_block_cached__geglu_ffn__decode_kernel"
HEADER = open("parallel_sum__mha_block_cached__geglu_ffn__decode.s.ref").read().split("; Override launch")[0]

def f2u(x): return struct.unpack("<I", struct.pack("<f", x))[0]

PMB = 0x8000
GMB = 0xC000
QMB = 0x10000
FMB = QMB + 64 * 4096
MB1 = 0xA0000
MB2 = 0x120000
TSB = 0x400000
WS_USED = TSB + 0x10000
assert FMB + 28 * 8192 <= MB1
PGL = 4112
XN, QL, TAGL, ML, HIMG, AIMG, OP, SC = 0, 3584, 4096, 4128, 4224, 4864, 6144, 10240
HROW, AROW = 144, 272
WL0 = SC + 16384
WL1 = WL0 + 14336
WL2 = WL1 + 16384
LDS_BYTES = WL2 + 8192

DOC = '''; ---------------------------------------------------------------------------------------------
; ---------------------------------------------------------------------------------------------'''
FULL = "row_mask:0xf bank_mask:0xf"
IDP = "quad_perm:[0,1,2,3]"

def gen(W=5, NP=5, nt="nt", wnt="nt", stamps=False, warm=True, sleep1=0, sleep2=0, sleepq=30, spin=1 << 18,
        padto=0, padwg=None, padstamp=None, HW=4, noffn=0, noq=0, nowo=0, touch=1, sleepf=60, fdma=1, fst=1, fpoll=1, qst=1, pat=5, Wend=None, nend=0, W0=None, osc='', scr=1, remap=4, D2=2, stag2=4, early1=0, role=3, fast=1, hoist=1, clean=0, fastq=1, fastf=1, nq=5, tlb=0, fb=1, Wup=6, thup=0, gfb=3, gsleep=8, goff=0, gsh=2, gavg=0, gsc=0, gexit=2, L0=6, dL=2, nR=9, nost2=0, nored=0, wos=(3,4,5,6,7,7), r0=8, gain=6, gpoll=1, st0=0, warm2=16, late=1, codekb=13, amp=0, lite=0, Wdn=4, thdn=-15, endp=None, pw=None, thw=None, hb=0, pre1=0, rew=0, stL=0, k1st=0, th2=8, g0=4, pf=0, pfs=7, pfnt='', pfth=None, fakeg=0, kb5=(15,13), wb5=(11,14), jb5=(12,16), soft=None, softu=3, burst=0, b2b=0, stD=0, sl1=0, hstep=-1, st4=0, pol=None, dual=1, dpol=None, ntr=6, Lv=20, inv=0):
    assert not (fast or fastf) or role == 3
    assert early1 != 2 or hoist
    assert hb != 1 or set(wos) == {-2}
    assert hb != 2 or wos[:2] == (-2, -2)
    assert not (b2b and (hb or early1 or clean))
    assert pol is None and ntr <= 8 and not pf
    in_helper = [False]
    a = Asm()
    a.raw(HEADER.rstrip("\n"))
    a.raw(f"; @launch grid=(256,1,1) block=(320,1,1) lds={LDS_BYTES}")
    a.raw(DOC)
    a.raw('.amdgcn_target "amdgcn-amd-amdhsa--gfx950"')
    a.raw(".text"); a.raw(f".globl {NAME}"); a.raw(".p2align 8"); a.raw(f".type {NAME},@function")
    a.raw(f"{NAME}:")
    SK, SV, SW, SA, SB, SC_, SD = 28, 32, 36, 40, 44, 48, 52
    sB, sH, sJ, sIDX, sBH, sTAG, sCNT, sKO, sVO, sWv, sKG, sCG = 56, 57, 58, 59, 60, 61, 62, 63, 64, 72, 73, 79
    def srd(r, ptr, size):
        a(f"s_mov_b32 s{r}, s{ptr}\ns_mov_b32 s{r+1}, s{ptr+1}\ns_mov_b32 s{r+2}, {size}\ns_mov_b32 s{r+3}, 0x20000")
    def S(r): return f"s[{r}:{r+3}]"
    def V4(r): return f"v[{r}:{r+3}]"
    def V2(r): return f"v[{r}:{r+1}]"
    def stamp(k):
        if stamps or padstamp is not None:
            a(f"s_memrealtime s[{80+2*k}:{81+2*k}]")
    def dump_stamps(n):
        if not stamps: return
        a("s_waitcnt lgkmcnt(0)")
        a("s_mov_b64 exec, 1")
        a(f"s_mul_i32 s65, s2, 5\ns_add_u32 s65, s65, s3\ns_mul_i32 s65, s65, 48\ns_add_u32 s65, s65, {TSB}")
        a("v_mov_b32 v1, 0")
        for k in range(n):
            a(f"v_mov_b32 v2, s{80+2*k}")
            if lite and k not in (0, 4, 7): continue
            a(f"buffer_store_dword v2, v1, {S(SW)}, s65 offen offset:{4*k}")
        if not lite:
            a(f"v_mov_b32 v2, s{sCNT}\nbuffer_store_dword v2, v1, {S(SW)}, s65 offen offset:44")
            a("s_waitcnt vmcnt(0)")
    def pad(role):
        if not padto: return
        r, k = padstamp if padstamp is not None else ("S", 0)
        if r != role: return
        if padwg is not None: a(f"s_cmp_lg_u32 s2, {padwg}\ns_cbranch_scc1 L_end")
        if amp: a(f"s_cmp_lg_u32 s{sCG}, 7\ns_cbranch_scc1 L_end\ns_sleep 127\ns_sleep 127")
        if amp: a("s_waitcnt lgkmcnt(0)\ns_load_dword s80, s[24:25], 200\ns_waitcnt lgkmcnt(0)\ns_not_b32 s80, s80")
        if amp: a(f"s_waitcnt lgkmcnt(0)\ns_sub_u32 s65, s{80+2*k}, s80\ns_min_u32 s65, s65, 8000\ns_mul_i32 s65, s65, {amp - 1}\ns_add_u32 s{80+2*k}, s{80+2*k}, s65")
        a.label(f"L_pad{role}")
        a(f"s_sleep 1\ns_memrealtime s[98:99]\ns_waitcnt lgkmcnt(0)\ns_sub_u32 s98, s98, s{80+2*k}\ns_cmp_lt_i32 s98, {padto}\ns_cbranch_scc1 L_pad{role}")

    assert remap in (4, 5) and role == 3 and pat == 5 and (kb5, wb5, jb5) == ((15, 13), (11, 14), (12, 16))
    def decode(a):
        a(f"s_and_b32 s{sBH}, s2, 63\ns_lshr_b32 s{sJ}, s2, 6\ns_lshr_b32 s{sB}, s{sBH}, 4\ns_and_b32 s{sH}, s2, 15")
        a(f"s_lshl_b32 s2, s{sBH}, 2\ns_or_b32 s2, s2, s{sJ}\ns_and_b32 s{sIDX}, s2, 63")
        a(f"s_lshl_b32 s{sKG}, s{sH}, 1\ns_and_b32 s65, s{sJ}, 1\ns_or_b32 s{sKG}, s{sKG}, s65\ns_lshl_b32 s{sCG}, s{sB}, 1\ns_lshr_b32 s65, s{sJ}, 1\ns_or_b32 s{sCG}, s{sCG}, s65")
        a("v_and_b32 v0, 63, v0\nv_and_b32 v4, 15, v0\nv_lshrrev_b32 v5, 4, v0")
    a("s_load_dwordx2 s[28:29], s[0:1], 8")
    stamp(0)
    a("v_lshrrev_b32 v1, 6, v0\ns_cmpk_ge_u32 s2, 256\ns_cbranch_scc1 L_end", drain=False)
    if remap == 5: a("s_lshr_b32 s65, s2, 6\ns_xor_b32 s2, s2, s65")
    a("v_readfirstlane_b32 s3, v1\nv_and_b32 v85, 51, v0\nv_and_b32 v1, 12, v0")
    a("s_cmp_eq_u32 s3, 0\ns_cbranch_scc1 L_helper", drain=False)

    vKO, vVO, vSC, vMAX, vL, vC, vMC, vS = 1, 2, 3, 6, 7, 28, 29, 30
    vJ, vG = 4, 5
    MASK, OACC, BB, QF, DA, TMP, R = 8, 12, 20, 32, 64, 84, 96
    def ring(tile, u): return R + 32 * tile + 4 * u
    kb = kb5
    assert TMP + 1 == 85 and vKO == 1
    a(f"v_mul_u32_u24 v85, 20, v85\nv_mul_u32_u24 v1, 0x2400, v1\nv_and_b32 v85, 0xf0, v85\nv_and_b32 v1, 0xa000, v1\nv_or_b32 v1, v1, v85")
    a(f"s_lshr_b32 s65, s2, 6\ns_mulk_i32 s65, 9\ns_and_b32 s65, s65, 17\ns_lshl_b32 s65, s65, 12\ns_mul_i32 s66, s3, 5\ns_and_b32 s66, s66, 9\ns_lshl_b32 s66, s66, 11")
    a(f"s_and_b32 s{sKO}, s2, 63\ns_lshl_b32 s{sKO}, s{sKO}, 21\ns_or_b32 s65, s65, s66\ns_or_b32 s{sKO}, s{sKO}, s65")
    a(f"s_lshl_b32 s30, 1, 27\ns_mov_b32 s31, 0x20000")
    a("s_waitcnt lgkmcnt(0)")
    if st0: stamp(5)
    vm = []
    def issue(kind, reg, u, tagid):
        sr, vo, so = (SK, vKO, sKO) if kind == "K" else (SV, vVO, sVO)
        o = {0: 256 * (u & 1), 1: 256 * (u & 3), 2: 256 * u, 3: 256 * u, 4: 256 * (u & 1) + 512 * (u & 2), 5: 256 * u}[pat]
        off = f" offset:{o}" if o else ""
        a(f"buffer_load_dwordx4 {V4(reg)}, v{vo}, {S(sr)}, s{so} offen{off} {nt}")
        if pat == 0 and u & 1: a(f"s_add_u32 s{so}, s{so}, 8192")
        if pat == 1 and (u & 3) == 3: a(f"s_add_u32 s{so}, s{so}, 16384")
        if pat == 4 and (u & 3) == 3: a(f"s_xor_b32 s{so}, s{so}, 0x4000")
        if pat == 5 and u == 7: a(f"s_add_u32 s{so}, s{so}, 0x20000")
        if pat in (3, 4) and u == 7:
            a(f"s_xor_b32 s{so}, s{so}, 0x1000\ns_bitcmp1_b32 s{so}, 12\ns_cselect_b32 s65, 0, s{sM}\ns_add_u32 s65, s65, s{so}\ns_and_b32 s65, s65, 0x70000\ns_andn2_b32 s{so}, s{so}, 0x70000\ns_or_b32 s{so}, s{so}, s65")
        if pat == 2 and u == 7:
            a(f"s_bitcmp1_b32 s{so}, 11\ns_cselect_b32 s65, {65536 - 4096}, 0\ns_add_u32 s{so}, s{so}, s65\ns_add_u32 s{so}, s{so}, 2048")
        vm.append(tagid)
    def wait_for(tagid):
        if tagid not in vm: return
        n = len(vm) - 1 - vm.index(tagid)
        assert n < 64
        a(f"s_waitcnt vmcnt({n})")
    nload = [0]
    curW = [W]
    adapt = [False]; nlab = [0]
    ctl = dict(Wup=Wup, thup=thup, Wdn=Wdn, thdn=thdn)
    def throttle_issue(kind, reg, u):
        n = nload[0]
        if adapt[0]:
            nlab[0] += 1
            a(f"s_cbranch_scc1 L_w{nlab[0]}", drain=False)
            if ctl["Wdn"]:
                a(f"s_cbranch_vccz L_m{nlab[0]}", drain=False); a.hist[-1].states = 0
                wait_for(("s", n - ctl["Wdn"])); a.hist[-1].states = 0
                a.label(f"L_m{nlab[0]}", drain=False)
            wait_for(("s", n - curW[0]))
            a.hist[-1].states = 0
            a.label(f"L_w{nlab[0]}", drain=False)
            if th2 is not None:
                a(f"s_cbranch_vccnz L_x{nlab[0]}", drain=False)
                wait_for(("s", n - ctl["Wup"])); a.hist[-1].states = 0
                a.label(f"L_x{nlab[0]}", drain=False)
                wait_for(("s", n - ctl["Wup"] - 1))
            else: wait_for(("s", n - ctl["Wup"]))
        else: wait_for(("s", n - curW[0]))
        issue(kind, reg, u, ("s", n)); nload[0] += 1
    W0 = W0 or W
    curW[0] = W0
    for n in range(W0):
        throttle_issue("K", ring(n // 8, n % 8), n % 8)
    curW[0] = W
    a(f"s_load_dwordx16 s[4:19], s[0:1], 0\ns_load_dwordx8 s[20:27], s[0:1], 64\ns_mov_b32 s{sVO}, s{sKO}\ns_and_b32 s{sWv}, s3, 3")
    decode(a)
    if warm2:
        a("; a few waves read the code range so that later instruction fetches hit L2")
        a(f"s_and_b32 s65, s2, 0xe2\ns_lshl_b32 s65, s65, 2\ns_or_b32 s65, s65, s{sWv}\ns_cbranch_scc1 L_nowarm2", drain=False)
        a("s_getpc_b64 s[66:67]")
        a.label("L_pc", drain=False)
        a("v_lshlrev_b32 v2, 7, v0\nglobal_load_dword v31, v2, s[66:67]\nv_add_u32 v2, 0x2000, v2\nv_min_u32 v2, L_end-L_pc, v2")
        a("global_load_dword v31, v2, s[66:67]")
        a.label("L_nowarm2", drain=False)
    if warm and not warm2:
        a(f"s_cmp_lg_u32 s3, 1\ns_cbranch_scc1 L_nowarm")
        a(f"s_getpc_b64 s[66:67]\nv_lshlrev_b32 v{TMP+2}, 7, v0")
        a(f"global_load_dword v{TMP+3}, v{TMP+2}, s[66:67]")
        a.label("L_nowarm")
    def setup(a, srd):
        a(f"v_lshlrev_b32 v{vVO}, 4, v{vJ}\nv_bfe_u32 v{TMP}, v0, 4, 1\nv_lshl_add_u32 v{vVO}, v{TMP}, {kb[0]}, v{vVO}\nv_bfe_u32 v{TMP}, v0, 5, 1\nv_lshl_add_u32 v{vVO}, v{TMP}, {kb[1]}, v{vVO}")
        srd(SV, 8, 1 << 27); srd(SW, 26, WS_USED); srd(SC_, 22, 3584); srd(SD, 4, 3584)
        srd(SA, 12, 4096 * 896); srd(SB, 20, 1792 * 896)
        for k in range(32): a(f"v_mov_b32 v{QF+k}, 0")
        for k in range(8): a(f"v_mov_b32 v{OACC+k}, 0")
        a(f"v_mov_b32 v{vMAX}, 0xff800000\nv_mov_b32 v{vL}, 0\nv_mov_b32 v{vC}, {hex(f2u(math.log2(math.e) / 16))}")
        a(f"v_and_b32 v{TMP+4}, 1, v{vJ}\nv_lshlrev_b32 v{TMP+4}, 4, v{TMP+4}\nv_mov_b32 v{TMP+5}, 0xffff\nv_lshlrev_b32 v{TMP+4}, v{TMP+4}, v{TMP+5}")
        a(f"v_bfe_u32 v{TMP+5}, v{vJ}, 1, 2")
        for w in range(4):
            a(f"v_cmp_eq_u32 vcc, {w}, v{TMP+5}\nv_cndmask_b32 v{MASK+w}, 0, v{TMP+4}, vcc")
        a(f"s_lshl_b32 s65, s{sWv}, 12\ns_add_u32 s65, s65, {SC}\nv_lshl_add_u32 v{vSC}, v0, 2, s65")
    chunks = []
    def rec(t): chunks.append(t)
    def recsrd(r, ptr, size): rec(f"s_mov_b32 s{r}, s{ptr}\ns_mov_b32 s{r+1}, s{ptr+1}\ns_mov_b32 s{r+2}, {size}\ns_mov_b32 s{r+3}, 0x20000")
    setup(rec, recsrd)
    if not late:
        for t in chunks: a(t)
        chunks = []
    for n in range(W0, 8 * NP):
        if st0 and n == W0: stamp(3)
        throttle_issue("K", ring(n // 8, n % 8), n % 8)
        if st0 and n == W0: stamp(6)
        if st0 and n == W0 + 4: stamp(8)
        if st0 and n == W0 + 9: stamp(4)
        if n == 16: a("s_waitcnt lgkmcnt(0)")
        if n >= 16:
            cnt = 0
            while chunks and cnt < 6:
                t = chunks.pop(0); a(t); cnt += t.count("\n") + 1
    assert not chunks
    if st0:
        _st = stamp
        def stamp(k):
            if k in (1, 2, 7) or in_helper[0]: _st(k)
    stamp(1)
    a("s_barrier")
    stamp(2)
    for t in range(4):
        m = 0x000F000F << (4 * t)
        a(f"s_mov_b32 exec_lo, {hex(m)}\ns_mov_b32 exec_hi, {hex(m)}")
        for half in range(2):
            a(f"ds_read_b128 {V4(QF + 4 * (2 * t + half))}, v{TMP+1} offset:{QL + 256 * half}")
    a("s_mov_b64 exec, -1")
    a(f"v_mov_b32 v{TMP}, 0\nds_read_b64 {V2(TMP+2)}, v{TMP} offset:{TAGL}")
    a("s_waitcnt lgkmcnt(0)")
    a(f"v_readfirstlane_b32 s{sTAG}, v{TMP+2}\nv_readfirstlane_b32 s101, v{TMP+3}")

    def consK(reg, u, d):
        c = "0" if u == 0 else V4(d)
        a(f"v_mfma_f32_16x16x32_bf16 {V4(d)}, {V4(reg)}, {V4(QF + 4 * u)}, {c}")
    def extract(ds, off0):
        for k, d in enumerate(ds): a(f"v_mov_b32_dpp v{TMP+k}, v{d} quad_perm:[0,0,0,0] {FULL}")
        for c in range(1, 4):
            for k, d in enumerate(ds): a(f"v_add_f32_dpp v{TMP+k}, v{d+c}, v{TMP+k} quad_perm:[{c},{c},{c},{c}] {FULL}")
        for k, d in enumerate(ds): a(f"v_cvt_pk_bf16_f32 v{TMP+k}, v{TMP+k}, v{TMP+k}")
        for k, d in enumerate(ds): a(f"v_and_b32 v{TMP+k}, 0xffff0000, v{TMP+k}")
        for k, d in enumerate(ds):
            a(f"ds_write_b32 v{vSC}, v{TMP+k} offset:{off0 + 256 * k}")
            a(f"v_max_f32 v{vMAX}, v{vMAX}, v{TMP+k}")
        a(f"v_add_u32 v{vSC}, {256 * len(ds)}, v{vSC}")
    for u in range(8):
        consK(ring(0, u), u, DA)
        throttle_issue("K", ring(0, u), u)
        for T in range(1, NP): consK(ring(T, u), u, DA + 4 * T)
    extract([DA + 4 * T for T in range(NP)], 0)

    T0 = R + 32
    vX, vXO, vOPW, vMLW, vOPR, vZ, vL16, vST2, vTR, vTR2, vTRD, vTRD2, vHA, vAR, vAW, vWO, vWD = range(T0, T0 + 17)
    vML = T0 + 18
    G = T0 + 20
    GR = T0 + 36
    P1 = T0 + 40
    AH = T0 + 56
    AO = T0 + 64
    BW = T0 + 80
    BD = T0 + 96
    Y = T0 + 104
    E = T0 + 108
    def tail_addr():
        a(f"s_lshl_b32 s65, s{sWv}, 10\ns_add_u32 s65, s65, {OP}\nv_lshl_add_u32 v{vOPW}, v0, 4, s65")
        a(f"s_lshl_b32 s65, s{sWv}, 3\ns_add_u32 s65, s65, {ML}\nv_mov_b32 v{vMLW}, s65")
        a(f"s_lshl_b32 s65, s{sWv}, 8\ns_add_u32 s65, s65, {OP}\nv_lshl_add_u32 v{vOPR}, v0, 3, s65")
        a(f"v_mov_b32 v{vZ}, 0\nv_lshlrev_b32 v{vL16}, 4, v0\nv_mov_b32 v{GR+3}, s{sTAG}")
        a(f"s_lshl_b32 s70, s2, 11\ns_lshl_b32 s65, s{sWv}, 9\ns_add_u32 s70, s70, s65\ns_add_u32 s70, s70, {MB1}")
        a(f"s_lshl_b32 s71, s{sWv}, 17\ns_lshr_b32 s65, s{sKG}, 1\ns_lshl_b32 s65, s65, 13\ns_add_u32 s71, s71, s65")
        a(f"s_and_b32 s65, s{sKG}, 1\ns_lshl_b32 s65, s65, 10\ns_add_u32 s71, s71, s65\ns_add_u32 s71, s71, {MB1}\ns_add_u32 s74, s71, 4096")
        a(f"v_lshrrev_b32 v{E}, 3, v0\nv_and_b32 v{E+1}, 7, v0\nv_and_b32 v{E+2}, 2, v{E}\nv_xor_b32 v{E+1}, v{E+1}, v{E+2}\nv_lshlrev_b32 v{E+1}, 4, v{E+1}")
        a(f"v_and_b32 v{E+2}, 3, v{E}\nv_lshlrev_b32 v{E+2}, 3, v{E+2}\nv_lshrrev_b32 v{E+3}, 2, v{E}\nv_add_u32 v{E+2}, v{E+2}, v{E+3}")
        a(f"v_mul_u32_u24 v{vWO}, 896, v{E+2}\nv_mul_u32_u24 v{vWD}, 896, v{E}")
        a(f"s_and_b32 s65, s{sWv}, 1\ns_lshl_b32 s65, s65, 6\nv_xor_b32 v{E+1}, s65, v{E+1}")
        a(f"v_add_u32 v{vWO}, v{vWO}, v{E+1}\nv_add_u32 v{vWD}, v{vWD}, v{E+1}")
        a(f"s_lshr_b32 s66, s{sKG}, 1\ns_lshl_b32 s66, s66, 8\ns_and_b32 s65, s{sKG}, 1\ns_lshl_b32 s65, s65, 6\ns_add_u32 s66, s66, s65")
        a(f"s_lshl_b32 s65, s{sWv}, 1\ns_add_u32 s66, s66, s65\ns_mul_i32 s66, s66, 896\ns_lshl_b32 s65, s{sCG}, 7\ns_add_u32 s66, s66, s65")
        a(f"s_lshl_b32 s67, s{sKG}, 6\ns_lshl_b32 s68, s{sWv}, 3\ns_add_u32 s67, s67, s68\ns_mul_i32 s67, s67, 896\ns_add_u32 s67, s67, s65")
        a(f"s_lshl_b32 s75, s{sWv}, 10")
        if fakeg:
            a(f"v_mul_u32_u24 v{vWO}, 1792, v{vG}\nv_lshl_add_u32 v{vWO}, v{vJ}, 4, v{vWO}\nv_mov_b32 v{vWD}, v{vWO}")
            a(f"s_lshl_b32 s66, s{sKG}, 2\ns_add_u32 s66, s66, s{sWv}\ns_mul_i32 s67, s66, {8 * 1792}\ns_mul_i32 s66, s66, {16 * 1792}\ns_lshl_b32 s65, s{sCG}, 8\ns_add_u32 s66, s66, s65\ns_add_u32 s67, s67, s65")
        if pf:
            a(f"s_sub_u32 s19, s66, s65")
            a(f"s_add_u32 s76, s{sCG}, 1\ns_cmp_ge_u32 s76, 7\ns_cselect_b32 s76, 0, s76\ns_add_u32 s77, s{sCG}, 6\ns_cmp_ge_u32 s77, 7\ns_cselect_b32 s65, 7, 0\ns_sub_u32 s77, s77, s65")
            a(f"v_bfe_u32 v{E}, v0, 3, 1\nv_lshlrev_b32 v{E}, 7, v{E}\nv_bfe_u32 v{E+1}, v0, 4, 1\nv_lshl_add_u32 v{E}, v{E+1}, 5, v{E}")
            a(f"v_and_b32 v{E+1}, 3, v0\nv_lshl_add_u32 v{E}, v{E+1}, 3, v{E}\nv_bfe_u32 v{E+1}, v0, 2, 1\nv_add_u32 v{E}, v{E}, v{E+1}\nv_mul_u32_u24 v{vTR2}, 896, v{E}")
            a(f"v_mov_b32 v{E}, s76\nv_mov_b32 v{E+1}, s77\nv_cmp_gt_u32 vcc, 32, v0\nv_cndmask_b32 v{E}, v{E+1}, v{E}, vcc\nv_lshl_add_u32 v{vTR2}, v{E}, 7, v{vTR2}")
        a(f"v_lshrrev_b32 v{E}, 2, v{vJ}\nv_bfe_u32 v{E+1}, v{vJ}, 1, 1\ns_lshl_b32 s65, s{sWv}, 1\nv_add_u32 v{E+1}, s65, v{E+1}")
        a(f"v_and_b32 v{E+2}, 2, v{E}\nv_xor_b32 v{E+1}, v{E+1}, v{E+2}")
        a(f"v_and_b32 v{E+3}, 1, v{vJ}\nv_lshlrev_b32 v{E+3}, 3, v{E+3}\nv_lshl_add_u32 v{E+3}, v{E}, 7, v{E+3}")
        a(f"v_and_b32 v{E+2}, 1, v{vG}\nv_lshlrev_b32 v{E+2}, 2, v{E+2}\nv_xor_b32 v{E+4}, v{E+1}, v{E+2}")
        a(f"v_lshl_add_u32 v{vTR}, v{E+4}, 4, v{E+3}\nv_lshl_add_u32 v{vTR}, v{vG}, 10, v{vTR}")
        a(f"v_mul_u32_u24 v{vHA}, {HROW}, v{E}\nv_lshl_add_u32 v{vHA}, v{vG}, 4, v{vHA}")
        a(f"v_mul_u32_u24 v{vAR}, {AROW}, v{E}\nv_lshl_add_u32 v{vAR}, v{vG}, 4, v{vAR}")
        a(f"s_mul_i32 s65, s{sWv}, {AROW}\ns_add_u32 s65, s65, {AIMG}\nv_lshl_add_u32 v{vAW}, v0, 2, s65")
        a(f"v_lshlrev_b32 v{vST2}, 3, v{vJ}\nv_bfe_u32 v{E}, v0, 4, 1\nv_lshl_add_u32 v{vST2}, v{E}, 12, v{vST2}\nv_bfe_u32 v{E}, v0, 5, 1\nv_lshl_add_u32 v{vST2}, v{E}, 14, v{vST2}")
        a(f"s_lshl_b32 s68, s{sCG}, 2\ns_add_u32 s68, s68, s{sWv}\ns_lshl_b32 s68, s68, 15\ns_lshl_b32 s65, s{sKG}, 7\ns_add_u32 s68, s68, s65\ns_add_u32 s68, s68, {MB2}")
        if pol is None: a(f"s_mov_b32 s100, s{sKG}")
        else:
            a(f"s_and_b32 s100, s{sKG}, 0x11\ns_and_b32 s65, s{sKG}, 6\ns_lshl_b32 s65, s65, 1\ns_or_b32 s100, s100, s65\ns_bfe_u32 s65, s{sKG}, 0x10003")
            if pol: a("s_xor_b32 s65, s65, 1")
            a("s_lshl_b32 s65, s65, 1\ns_or_b32 s100, s100, s65")
        a(f"s_and_b32 s78, s100, 0xfc\ns_add_u32 s78, s78, s{sWv}\ns_lshl_b32 s69, s78, 4\ns_lshl_b32 s78, s78, 3\ns_and_b32 s65, s100, 2\ns_add_u32 s78, s78, s65\ns_and_b32 s65, s100, 3\ns_add_u32 s78, s78, s65")
        a(f"s_lshl_b32 s78, s78, 12\ns_add_u32 s78, s78, {MB2}\ns_add_u32 s19, s68, 8192\ns_mul_i32 s65, s65, 448\ns_add_u32 s69, s69, s65\ns_lshl_b32 s69, s69, 1")
        a(f"v_and_b32 v{E}, 7, v0\nv_and_b32 v{E+1}, 1, v{vG}\nv_lshlrev_b32 v{vXO}, 2, v{E}\nv_lshl_add_u32 v{vXO}, v{E+1}, 1, v{vXO}")
    tail_addr()
    if tlb:
        a("s_cmp_lg_u32 s3, 1\ns_cbranch_scc1 L_notlb")
        a("s_mov_b64 exec, 1")
        if tlb & 1: a(f"buffer_load_dword v{E+7}, v{vZ}, {S(SV)}, s{sVO} offen {nt}")
        if tlb & 2:
            a(f"buffer_load_dword v{E+7}, v{vZ}, {S(SA)}, s66 offen {nt}")
            a(f"buffer_load_dword v{E+7}, v{vZ}, {S(SB)}, s67 offen {nt}")
        a("s_mov_b64 exec, -1")
        a.label("L_notlb")

    cw = [wos]
    def wo_dma(step):
        if nowo: return
        for c in range(6):
            if cw[0][c] != step: continue
            if c >= 2:
                a(f"s_add_u32 s65, s66, {(128 * (c & 1) + 32 * ((c - 2) >> 1)) * 896 if not fakeg else (c - 2) * 4 * 1792}\ns_add_u32 m0, s75, {WL1 + 4096 * (c - 2)}")
                a(f"buffer_load_dwordx4 v{vWO}, {S(SA)}, s65 offen {wnt} lds"); vm.append(("wo", c))
            else:
                a(f"s_add_u32 s65, s67, {32 * 896 * c if not fakeg else 4 * 1792 * c}\ns_add_u32 m0, s75, {WL2 + 4096 * c}")
                a(f"buffer_load_dwordx4 v{vWD}, {S(SB)}, s65 offen {wnt} lds"); vm.append(("wd", c))
        if pf and step == pfs:
            if pfth is not None: a(f"s_cmp_gt_i32 s17, {pfth}\ns_cselect_b32 s19, 0x40000000, s19")
            if pf == 1: a("s_mov_b32 exec_hi, 0")
            a(f"buffer_load_dword v{vTRD}, v{vTR2}, {S(SA)}, s19 offen {pfnt}"); vm.append("pf")
            if pf == 1: a("s_mov_b32 exec_hi, -1")
    vPG, vPR, vPA = E + 8, E + 9, E + 10
    sPS, sPL, sPT = 12, 13, 14
    if fb:
        a(f"s_add_u32 s65, s{sWv}, s{sJ}\ns_and_b32 s65, s65, 3\ns_lshl_b32 s{sPL}, s{sH}, 2\ns_add_u32 s{sPL}, s{sPL}, s65\ns_lshl_b32 s{sPL}, s{sPL}, 7\ns_add_u32 s{sPL}, s{sPL}, {PMB}")
        a(f"s_cmp_lg_u32 s101, 0\ns_cselect_b32 s{sPL}, 0x40000000, s{sPL}\ns_cselect_b32 s{sPT}, 8, 0\ns_cselect_b32 s16, 0, 16")
        a(f"s_lshl_b32 s65, s{sB}, 2\ns_add_u32 s65, s65, s{sJ}\ns_lshl_b32 s65, s65, 2\ns_add_u32 s{sPS}, s{sPL}, s65")
        a(f"s_lshl_b32 s65, s{sWv}, 2\ns_add_u32 s65, s65, {PGL}\nv_mov_b32 v{vPA+1}, s65")
        a(f"v_mov_b32 v{vPG}, 0\nv_bfe_i32 v{vPR}, v0, 0, 1\nv_lshlrev_b32 v{vPA}, 2, v0")
    def flags(tu, td):
        if th2 is not None: a(f"s_sub_u32 s65, s17, {td}\ns_cmp_gt_u32 s65, {th2 - td}\ns_cselect_b64 vcc, -1, 0")
        elif ctl["Wdn"]: a(f"s_cmp_lt_i32 s17, {td}\ns_cselect_b64 vcc, -1, 0")
        a(f"s_cmp_gt_i32 s17, {tu}")
    def after(u):
        if fb and soft and u == softu: flags(ctl['thup'], ctl['thdn'])
    def progress():
        if not fb: return
        if gfb: a(f"v_readlane_b32 s15, v{vPR}, 16")
        for sh in (8, 4, 2, 1): a(f"v_add_u32_dpp v{vPR}, v{vPR}, v{vPR} row_ror:{sh} {FULL}")
        a(f"v_add_u32 v{vPG}, 1, v{vPG}\nv_readfirstlane_b32 s65, v{vPR}")
        if gfb: a(f"s_add_u32 s65, s65, s15")
        a("s_mov_b64 exec, 1")
        a(f"buffer_store_dword v{vPG}, v{vZ}, {S(SW)}, s{sPS} offen"); vm.append(("ps", nload[0]))
        if gfb >= 2: a(f"ds_write_b32 v{vPA+1}, v{vPG}")
        a(f"s_mov_b64 exec, {'0x1ffff' if gfb else '0xffff'}")
        a(f"buffer_load_dword v{vPR}, v{vPA}, {S(SW)}, s{sPL} offen sc1"); vm.append(("pl", nload[0]))
        a("s_mov_b64 exec, -1")
        a(f"s_sub_u32 s17, s65, s{sPT}\ns_add_u32 s{sPT}, s{sPT}, s16")
        flags(*(soft or (ctl['thup'], ctl['thdn'])))
        adapt[0] = True
    def iterK(nextkind):
        progress()
        for u in range(8):
            consK(ring(0, u), u, DA)
            throttle_issue(nextkind, ring(0, u), u)
            after(u)
            if nextkind == "V" and u == 0 and -2 in wos:
                a("s_cselect_b32 s18, 1, 0")
                a(f"s_cmp_eq_u32 s{sCG}, 7\ns_cselect_b32 s66, 0x40000000, s66\ns_cselect_b32 s67, 0x40000000, s67")
                wo_dma(-2)
                a("s_cmp_lg_u32 s18, 0")
        extract([DA], 0)
    a("; K loop")
    a(f"s_mov_b32 s{sCNT}, {15 - NP}")
    a.label("L_kk")
    iterK("K")
    a(f"s_sub_u32 s{sCNT}, s{sCNT}, 1\ns_cmp_lg_u32 s{sCNT}, 0\ns_cbranch_scc1 L_kk")
    iterK("V")
    compute_pre = lambda: (a(f"v_not_b32 v{P1+3}, v{GR+3}\nv_mov_b32 v{P1}, 0\nv_mov_b32 v{P1+1}, 0\nv_mov_b32 v{P1+2}, 0\ns_mov_b32 exec_hi, 0"),
                           a(f"buffer_store_dwordx4 {V4(P1)}, v{vL16}, {S(SW)}, s70 offen\ns_mov_b32 exec_hi, -1"))
    if pre1 == 1: compute_pre()
    stamp(3)
    a(f"v_subrev_u32 v{vSC}, 4096, v{vSC}")
    a(f"ds_read_b32 v{vS}, v{vSC}")
    a(f"v_max_f32_dpp v{vMAX}, v{vMAX}, v{vMAX} row_ror:4 {FULL}")
    a(f"v_max_f32_dpp v{vMAX}, v{vMAX}, v{vMAX} row_ror:8 {FULL}")
    a(f"v_max_f32_dpp v{vMAX}, v{vMAX}, v{vMAX} row_bcast:15 row_mask:0xa bank_mask:0xf")
    a(f"v_max_f32_dpp v{vMAX}, v{vMAX}, v{vMAX} row_bcast:31 row_mask:0xc bank_mask:0xf")
    a(f"v_readlane_b32 s65, v{vMAX}, 63")
    a(f"v_mov_b32 v{vMC}, s65")
    vP = TMP
    def ld1(k): a(f"buffer_load_dwordx4 {V4(P1+4*k)}, v{vL16}, {S(SW)}, s{71 if k < 2 else 74} offen{' offset:2048' if k & 1 else ''} sc1")
    def last_extra():
        a(f"s_cmp_eq_u32 s{sCG}, 7\ns_cselect_b32 s66, 0x40000000, s66\ns_cselect_b32 s67, 0x40000000, s67\ns_cselect_b32 s69, s69, 0x40000000")
        wo_dma(-1)
        a(f"buffer_load_ushort v{vX}, v{vXO}, {S(SD)}, s69 offen"); vm.append("x")
        if touch:
            a("; (value unused: address translation of d_out ahead of the final store)")
            a(f"buffer_load_ushort v{E+7}, v{vXO}, {S(SC_)}, s69 offen"); vm.append("o")
        a(f"v_add_f32_dpp v{vL}, v{vL}, v{vL} row_ror:4 {FULL}")
        a(f"v_add_f32_dpp v{vL}, v{vL}, v{vL} row_ror:8 {FULL}")
        a(f"v_add_f32_dpp v{vL}, v{vL}, v{vL} row_bcast:15 row_mask:0xa bank_mask:0xf")
        a(f"v_add_f32_dpp v{vL}, v{vL}, v{vL} row_bcast:31 row_mask:0xc bank_mask:0xf")
        a(f"v_mov_b32 v{vML}, v{vMC}\nv_mov_b32 v{vML+1}, v{vL}")
        a("s_mov_b32 exec_lo, 0\ns_mov_b32 exec_hi, 0x80000000")
        a(f"ds_write_b64 v{vMLW}, {V2(vML)}")
        a("s_mov_b64 exec, -1")
        if hstep == -1: hoisted()
    def hoisted():
        if hoist:
            a("s_waitcnt lgkmcnt(0)\ns_barrier")
            if early1 == 2:
                for k in range(4): ld1(k); vm.append(("p1", k))
            a(f"ds_read_b128 {V4(G)}, v{vZ} offset:{ML}\nds_read_b128 {V4(G+4)}, v{vZ} offset:{ML+16}\ns_waitcnt lgkmcnt(0)")
            if hb:
                a(f"ds_read_b128 {V4(AH)}, v{vHA} offset:{HIMG}\nds_read_b128 {V4(AH+4)}, v{vHA} offset:{HIMG+64}")
                a(f"ds_read_b64_tr_b16 {V2(BD)}, v{vTR} offset:{WL2}\nds_read_b64_tr_b16 {V2(BD+2)}, v{vTR} offset:{WL2+512}")
                a(f"ds_read_b64_tr_b16 {V2(BD+4)}, v{vTR} offset:{WL2+4096}\nds_read_b64_tr_b16 {V2(BD+6)}, v{vTR} offset:{WL2+4096+512}")
                if hb == 1:
                    for k in range(4): a(f"ds_read_b64_tr_b16 {V2(BW+4*k)}, v{vTR} offset:{WL1+4096*k}\nds_read_b64_tr_b16 {V2(BW+4*k+2)}, v{vTR} offset:{WL1+4096*k+512}")
            weights()
            if hb:
                a("s_waitcnt lgkmcnt(0)")
                a(f"v_mfma_f32_16x16x32_bf16 {V4(Y)}, {V4(AH)}, {V4(BD)}, 0")
                a(f"v_mfma_f32_16x16x32_bf16 {V4(Y)}, {V4(AH+4)}, {V4(BD+4)}, {V4(Y)}")
    def weights():
        ms, ls = [G, G+2, G+4, G+6], [G+1, G+3, G+5, G+7]
        a(f"v_max3_f32 v{E+4}, v{ms[0]}, v{ms[1]}, v{ms[2]}\nv_max_f32 v{E+4}, v{E+4}, v{ms[3]}")
        for k in range(4): a(f"v_sub_f32 v{ms[k]}, v{ms[k]}, v{E+4}")
        for k in range(4): a(f"v_mul_f32 v{ms[k]}, v{ms[k]}, v{vC}")
        for k in range(4): a(f"v_exp_f32 v{ms[k]}, v{ms[k]}")
        a(f"v_mul_f32 v{E+5}, v{ms[0]}, v{ls[0]}")
        for k in range(1, 4): a(f"v_fmac_f32 v{E+5}, v{ms[k]}, v{ls[k]}")
        a(f"v_rcp_f32 v{E+6}, v{E+5}\nv_log_f32 v{E+5}, v{E+5}")
        for k in range(4): a(f"v_mul_f32 v{ms[k]}, v{ms[k]}, v{E+6}")
        a(f"v_fma_f32 v{GR+2}, v{E+4}, v{vC}, v{E+5}")
    srcV = [None]
    def iterV(last, bu=0):
        a("s_waitcnt lgkmcnt(0)")
        a(f"v_sub_f32 v{vP}, v{vS}, v{vMC}\nv_mul_f32 v{vP}, v{vP}, v{vC}")
        a(f"v_exp_f32 v{vP}, v{vP}")
        if not last:
            a(f"v_add_u32 v{vSC}, 256, v{vSC}\nds_read_b32 v{vS}, v{vSC}")
        a(f"v_add_f32 v{vL}, v{vL}, v{vP}")
        a(f"v_cvt_pk_bf16_f32 v{vP}, v{vP}, v{vP}")
        if last: last_extra()
        elif not bu: progress()
        base = nload[0] - 8
        if bu:
            adapt[0] = False; curW[0] = bu
            for u in range(8): throttle_issue("V", QF + 4 * u, u)
        for u in range(8):
            t, half = u >> 1, u & 1
            b = BB + 4 * (t & 1)
            if half == 0:
                for w in range(4): a(f"v_and_b32_dpp v{b+w}, v{vP}, v{MASK+w} row_newbcast:{4*t} {FULL}")
            if last or bu: wait_for(("s", base + u))
            a(f"v_mfma_f32_16x16x32_bf16 {V4(OACC + 4 * half)}, {V4(QF + 4 * u if (last and burst) else ring(0, u))}, {V4(b)}, {V4(OACC + 4 * half)}")
            if bu: pass
            elif not last: throttle_issue("V", ring(0, u), u); after(u)
            elif u < 7:
                wo_dma(u)
                if u == hstep: hoisted()
    a("; V loop")
    a(f"s_mov_b32 s{sCNT}, {15 - nend - (1 if burst else 0)}")
    a.label("L_vv")
    iterV(False)
    a(f"s_sub_u32 s{sCNT}, s{sCNT}, 1\ns_cmp_lg_u32 s{sCNT}, 0\ns_cbranch_scc1 L_vv")
    if nend:
        if pre1 == 2: compute_pre()
        curW[0] = Wend or W
        ctl.update(endp or {})
        a(f"s_mov_b32 s{sCNT}, {nend}")
        a.label("L_vv2")
        iterV(False)
        a(f"s_sub_u32 s{sCNT}, s{sCNT}, 1\ns_cmp_lg_u32 s{sCNT}, 0\ns_cbranch_scc1 L_vv2")
    if burst: iterV(False, burst)
    a.label("L_tail", drain=False)
    if stL: stamp(3)
    def final_iter():
        iterV(True)
        stamp(4)
        for r in range(4): a(f"v_mov_b32_dpp v{OACC+r}, v{OACC+4+r} {IDP} row_mask:0xf bank_mask:0xc")
        a(f"ds_write_b128 v{vOPW}, {V4(OACC)}")
        wo_dma(7)
    if thw is not None:
        a(f"v_readlane_b32 s15, v{vPR}, 16")
        for sh in (8, 4, 2, 1): a(f"v_add_u32_dpp v{vPR}, v{vPR}, v{vPR} row_ror:{sh} {FULL}")
        a(f"v_readfirstlane_b32 s65, v{vPR}\ns_add_u32 s65, s65, s15\ns_sub_u32 s17, s65, s{sPT}")
        a(f"s_cmp_gt_i32 s17, {thw}\ns_cbranch_scc1 L_lastE")
        sv = list(vm)
        final_iter()
        a("s_branch L_lastJ")
        a.label("L_lastE")
        vm[:] = sv; cw[0] = (-1,) * 6
        final_iter()
        a.label("L_lastJ")
    else: final_iter()
    a("s_waitcnt lgkmcnt(0)")
    a("s_barrier")
    a("s_mov_b32 exec_hi, 0")
    if not hoist: a(f"ds_read_b128 {V4(G)}, v{vZ} offset:{ML}\nds_read_b128 {V4(G+4)}, v{vZ} offset:{ML+16}")
    for w in range(4): a(f"ds_read_b64 {V2(G+8+2*w)}, v{vOPR} offset:{1024*w}")
    if not hoist:
        a("s_waitcnt lgkmcnt(4)")
        weights()
    ms = [G, G+2, G+4, G+6]
    a("s_cmp_lg_u32 s101, 0")
    a("s_waitcnt lgkmcnt(3)")
    a(f"v_pk_mul_f32 {V2(GR)}, {V2(G+8)}, {V2(ms[0])} op_sel_hi:[1,0]")
    for k in range(1, 4):
        a(f"s_waitcnt lgkmcnt({3-k})")
        a(f"v_pk_fma_f32 {V2(GR)}, {V2(G+8+2*k)}, {V2(ms[k])}, {V2(GR)} op_sel_hi:[1,0,1]")
    if fast:
        a("s_cbranch_scc1 L_st1far", drain=False)
        a(f"buffer_store_dwordx4 {V4(GR)}, v{vL16}, {S(SW)}, s70 offen")
        a("s_branch L_st1done", drain=False)
        a.label("L_st1far", drain=False)
    a(f"buffer_store_dwordx4 {V4(GR)}, v{vL16}, {S(SW)}, s70 offen sc1")
    if fast: a.label("L_st1done", drain=False)
    def st1_global():
        a("s_mov_b32 exec_hi, 0")
        a(f"buffer_store_dwordx4 {V4(GR)}, v{vL16}, {S(SW)}, s70 offen sc1")
        a("s_mov_b32 exec_hi, -1")
    a("s_mov_b64 exec, -1")
    stamp(8)
    a(f"s_mov_b32 s{sCNT}, {spin}")
    a(f"s_cmp_eq_u32 s{sCG}, 7\ns_cbranch_scc1 L_reduce", drain=False)
    if not early1:
        if pw is not None: a(f"s_waitcnt vmcnt({pw})")
        if stD: stamp(3)
        wo_dma(8)
        if sl1: a(f"s_sleep {sl1}")
        for k in range(4): ld1(k)
        wo_dma(9)
    if not hb: a(f"ds_read_b128 {V4(AH)}, v{vHA} offset:{HIMG}\nds_read_b128 {V4(AH+4)}, v{vHA} offset:{HIMG+64}")
    if early1: a("s_waitcnt vmcnt(1)\ns_branch L_p1c", drain=False)
    if 9 in wos: a(f"s_waitcnt vmcnt({list(wos).count(9)})\ns_branch L_p1c", drain=False)
    if b2b:
        a("s_waitcnt vmcnt(0)\ns_barrier")
        a(f"ds_read_b64_tr_b16 {V2(BD)}, v{vTR} offset:{WL2}\nds_read_b64_tr_b16 {V2(BD+2)}, v{vTR} offset:{WL2+512}")
        a(f"ds_read_b64_tr_b16 {V2(BD+4)}, v{vTR} offset:{WL2+4096}\nds_read_b64_tr_b16 {V2(BD+6)}, v{vTR} offset:{WL2+4096+512}")
        for k in range(4): a(f"ds_read_b64_tr_b16 {V2(BW+4*k)}, v{vTR} offset:{WL1+4096*k}\nds_read_b64_tr_b16 {V2(BW+4*k+2)}, v{vTR} offset:{WL1+4096*k+512}")
    a.label("L_p1", drain=False)
    a("s_waitcnt vmcnt(0)")
    a.label("L_p1c", drain=False)
    MK = [4, 6, 8, 10]
    for k in range(4): a(f"v_cmp_ne_u32 s[{MK[k]}:{MK[k]+1}], s{sTAG}, v{P1+4*k+3}")
    a(f"s_or_b64 s[76:77], s[4:5], s[6:7]\ns_or_b64 vcc, s[8:9], s[10:11]\ns_or_b64 s[76:77], s[76:77], vcc")
    a("s_cbranch_scc0 L_p1ok", drain=False)
    if sleep1: a(f"s_sleep {sleep1}")
    for k in range(4):
        a(f"s_cmp_eq_u64 s[{MK[k]}:{MK[k]+1}], 0\ns_cbranch_scc1 L_p1s{k}", drain=False)
        ld1(k)
        a.label(f"L_p1s{k}", drain=False)
    a(f"s_sub_u32 s{sCNT}, s{sCNT}, 1\ns_cbranch_scc0 L_p1", drain=False)
    a.label("L_p1ok", drain=False)
    stamp(5)
    lam = [P1+2, P1+6, P1+10, P1+14]
    a(f"v_max3_f32 v{E+4}, v{lam[0]}, v{lam[1]}, v{lam[2]}\nv_max_f32 v{E+4}, v{E+4}, v{lam[3]}")
    for k in range(4): a(f"v_sub_f32 v{lam[k]}, v{lam[k]}, v{E+4}")
    for k in range(4): a(f"v_exp_f32 v{lam[k]}, v{lam[k]}")
    a(f"v_add_f32 v{E+5}, v{lam[0]}, v{lam[1]}\nv_pk_mul_f32 {V2(G)}, {V2(P1)}, {V2(lam[0])} op_sel_hi:[1,0]\nv_add_f32 v{E+6}, v{lam[2]}, v{lam[3]}")
    a(f"v_pk_fma_f32 {V2(G)}, {V2(P1+4)}, {V2(lam[1])}, {V2(G)} op_sel_hi:[1,0,1]\nv_add_f32 v{E+6}, v{E+5}, v{E+6}")
    a(f"v_pk_fma_f32 {V2(G)}, {V2(P1+8)}, {V2(lam[2])}, {V2(G)} op_sel_hi:[1,0,1]\nv_rcp_f32 v{E+6}, v{E+6}")
    a(f"v_pk_fma_f32 {V2(G)}, {V2(P1+12)}, {V2(lam[3])}, {V2(G)} op_sel_hi:[1,0,1]")
    a(f"v_pk_mul_f32 {V2(G)}, {V2(G)}, {V2(E+6)} op_sel_hi:[1,0]")
    a(f"v_cvt_pk_bf16_f32 v{G}, v{G}, v{G+1}")
    if b2b:
        Y2 = G + 4
        a(f"ds_write_b32 v{vAW}, v{G}")
        a("s_waitcnt lgkmcnt(0)")
        a("s_barrier")
        for k in range(4): a(f"ds_read_b128 {V4(AO+4*k)}, v{vAR} offset:{AIMG+64*k}")
        a(f"v_mfma_f32_16x16x32_bf16 {V4(Y)}, {V4(AH)}, {V4(BD)}, 0")
        a(f"v_mfma_f32_16x16x32_bf16 {V4(Y2)}, {V4(AH+4)}, {V4(BD+4)}, 0")
        for k in range(4):
            a(f"s_waitcnt lgkmcnt({3 - k})")
            y = Y if k & 1 == 0 else Y2
            a(f"v_mfma_f32_16x16x32_bf16 {V4(y)}, {V4(AO+4*k)}, {V4(BW+4*k)}, {V4(y)}")
        a(f"v_add_f32 v{GR+2}, v{Y}, v{Y2}")
        Y = GR + 2
    else:
        a(f"ds_write_b32 v{vAW}, v{G}")
        a("s_waitcnt vmcnt(0) lgkmcnt(0)")
        a("s_barrier")
        if not hb:
            a(f"ds_read_b64_tr_b16 {V2(BD)}, v{vTR} offset:{WL2}\nds_read_b64_tr_b16 {V2(BD+2)}, v{vTR} offset:{WL2+512}")
            a(f"ds_read_b64_tr_b16 {V2(BD+4)}, v{vTR} offset:{WL2+4096}\nds_read_b64_tr_b16 {V2(BD+6)}, v{vTR} offset:{WL2+4096+512}")
        for k in range(4):
            a(f"ds_read_b128 {V4(AO+4*k)}, v{vAR} offset:{AIMG+64*k}")
            if hb != 1: a(f"ds_read_b64_tr_b16 {V2(BW+4*k)}, v{vTR} offset:{WL1+4096*k}\nds_read_b64_tr_b16 {V2(BW+4*k+2)}, v{vTR} offset:{WL1+4096*k+512}")
        if not hb:
            a("s_waitcnt lgkmcnt(12)")
            a(f"v_mfma_f32_16x16x32_bf16 {V4(Y)}, {V4(AH)}, {V4(BD)}, 0")
            a(f"v_mfma_f32_16x16x32_bf16 {V4(Y)}, {V4(AH+4)}, {V4(BD+4)}, {V4(Y)}")
        for k in range(4):
            a(f"s_waitcnt lgkmcnt({(3 - k) * (1 if hb == 1 else 3)})")
            a(f"v_mfma_f32_16x16x32_bf16 {V4(Y)}, {V4(AO+4*k)}, {V4(BW+4*k)}, {V4(Y)}")
        a(f"v_mov_b32 v{Y+1}, v{GR+3}")
    if st4:
        a(f"v_mov_b32_dpp v{Y+2}, v{Y} quad_perm:[1,1,3,3] {FULL}\nv_mov_b32 v{Y+3}, v{GR+3}")
        a("s_mov_b32 exec_lo, 0x55555555\ns_mov_b32 exec_hi, 0x55555555")
        a(f"buffer_store_dwordx4 {V4(Y)}, v{vST2}, {S(SW)}, s68 offen sc1")
        a("s_mov_b64 exec, -1")
    elif not nost2:
        a(f"buffer_store_dwordx2 {V2(Y)}, v{vST2}, {S(SW)}, s68 offen sc1")
        a(f"buffer_store_dwordx2 {V2(Y)}, v{vST2}, {S(SW)}, s19 offen sc1")
    if fast and clean: st1_global()
    a("s_branch L_sdone")
    a.label("L_reduce")
    if fast and clean:
        a("s_sleep 12")
        st1_global()
    a(f"s_cmp_ge_u32 s100, 28\ns_cbranch_scc1 L_sdone")
    if nored: a("s_branch L_sdone")
    if dpol is not None:
        a(f"s_bfe_u32 s65, s{sH}, 0x10002\ns_xor_b32 s65, s65, {dpol}\ns_lshl_b32 s65, s65, 13\ns_add_u32 s78, s78, s65")
    else:
        a(f"ds_read_b32 v{E}, v{vZ} offset:{TAGL+8}\ns_waitcnt lgkmcnt(0)\nv_readfirstlane_b32 s65, v{E}\ns_and_b32 s65, s65, 0x2000\ns_add_u32 s78, s78, s65")
    SETS = [R + 16 * d for d in range(2)] + [QF, QF + 16]
    def ld2(d):
        for k in range(4): a(f"buffer_load_dwordx4 {V4(SETS[d]+4*k)}, v{vL16}, {S(SW)}, s78 offen offset:{1024*k} sc1")
    a(f"s_waitcnt vmcnt(0)\nv_lshlrev_b32 v{vX}, 16, v{vX}")
    for d in range(D2 - 1):
        ld2(d)
        if stag2: a(f"s_sleep {stag2}")
    a.label("L_p2")
    for d in range(D2):
        ld2((d + D2 - 1) % D2)
        a(f"s_waitcnt vmcnt({4 * (D2 - 1)})")
        q = SETS[d]
        a(f"v_xor_b32 v{E}, v{q+1}, v{GR+3}\nv_xor_b32 v{E+1}, v{q+3}, v{GR+3}")
        for k in range(1, 4): a(f"v_bitop3_b32 v{E}, v{q+4*k+1}, v{GR+3}, v{E} bitop3:0xbe\nv_bitop3_b32 v{E+1}, v{q+4*k+3}, v{GR+3}, v{E+1} bitop3:0xbe")
        a(f"v_or_b32 v{E}, v{E}, v{E+1}\nv_add_f32 v{P1}, v{q}, v{q+4}\nv_add_f32 v{P1+2}, v{q+2}, v{q+6}\nv_cmp_ne_u32 vcc, 0, v{E}")
        a(f"v_add_f32 v{P1+8}, v{q+8}, v{q+12}\nv_add_f32 v{P1+10}, v{q+10}, v{q+14}")
        a("s_cbranch_vccz L_p2ok", drain=False)
    a(f"s_sub_u32 s{sCNT}, s{sCNT}, 1\ns_cbranch_scc0 L_p2", drain=False)
    a.label("L_p2ok", drain=False)
    stamp(6)
    a(f"v_add_f32 v{P1}, v{P1}, v{P1+8}\nv_add_f32 v{P1+2}, v{P1+2}, v{P1+10}")
    a(f"v_permlane16_swap_b32 v{P1}, v{P1+2}")
    a(f"v_add_f32 v{P1}, v{P1}, v{P1+2}")
    a(f"v_add_f32_dpp v{P1}, v{P1}, v{P1} row_ror:8 {FULL}")
    a(f"v_mov_b32 v{P1+2}, v{P1}")
    a(f"v_permlane32_swap_b32 v{P1}, v{P1+2}")
    a(f"v_add_f32 v{P1}, v{P1}, v{P1+2}\nv_add_f32 v{P1}, v{P1}, v{vX}")
    a(f"v_cvt_pk_bf16_f32 v{P1}, v{P1}, v{P1}")
    a(f"s_mov_b32 exec_hi, 0\ns_mov_b32 exec_lo, 0x00ff00ff")
    a(f"buffer_store_short v{P1}, v{vXO}, {S(SC_)}, s69 offen {osc}")
    a(f"s_or_b32 s65, s100, s{sWv}\ns_cmp_lg_u32 s65, 0\ns_cbranch_scc1 L_sdone")
    a("s_mov_b64 exec, 1")
    a(f"buffer_store_dword v{GR+3}, v{vZ}, {S(SW)}, 0 offen {osc}")
    a.label("L_sdone")
    stamp(7)
    pad("S")
    dump_stamps(9)
    a("s_endpgm")

    a.label("L_helper")
    in_helper[0] = True
    a("s_load_dwordx16 s[4:19], s[0:1], 0\ns_load_dwordx8 s[20:27], s[0:1], 64")
    decode(a)
    X, F, AF, AF2, BF, D, TG = 32, 64, 96, 112, 128, 184, 200
    a("s_setprio 3")
    a(f"v_mul_u32_u24 v6, 896, v5\nv_lshl_add_u32 v6, v4, 6, v6\nv_mov_b32 v7, 0x40000000\nv_cmp_gt_u32 s[74:75], 14, v4")
    a(f"v_cndmask_b32 v7, v7, v6, s[74:75]")
    a(f"v_lshrrev_b32 v8, 3, v0\nv_and_b32 v9, 7, v0\nv_lshlrev_b32 v9, 4, v9\nv_lshl_add_u32 v10, v8, 13, v9")
    a(f"v_mul_u32_u24 v11, 3584, v8\nv_add_u32 v11, v11, v9")
    a(f"s_mul_i32 s65, s{sB}, {112 * 8192}\ns_lshl_b32 s66, s{sIDX}, 7\ns_add_u32 s65, s65, s66")
    a("s_waitcnt lgkmcnt(0)")
    a(f"s_load_dword s{sTAG}, s[26:27], 0")
    srd(SA, 4, 3584)
    for u in range(4): a(f"buffer_load_dwordx4 {V4(X+4*u)}, v7, {S(SA)}, 0 offen offset:{16*u}")
    srd(SB, 10, 448 * 8192)
    def dma(sr, voff, so, stride, lds0, win=None):
        for k in range(14):
            if win and k >= win: a(f"s_waitcnt vmcnt({win-1})")
            a(f"s_mov_b32 m0, {lds0 + 1024 * k}")
            a(f"buffer_load_dwordx4 v{voff}, {S(sr)}, s{so} offen {wnt} lds")
            if k < 13: a(f"s_add_u32 s{so}, s{so}, {8 * stride}")
    if not noq: dma(SB, 10, 65, 8192, WL0)
    srd(SW, 26, WS_USED)
    nini = 0
    if fb:
        a(f"s_lshl_b32 s34, s{sH}, 9\ns_add_u32 s34, s34, {PMB}\ns_lshl_b32 s35, s{sB}, 2\ns_add_u32 s35, s35, s{sJ}\ns_lshl_b32 s68, s35, 2\ns_add_u32 s68, s68, s34")
        a(f"v_lshlrev_b32 v2, 7, v0\nv_mov_b32 v3, 0\ns_mov_b64 exec, 15")
        a(f"buffer_store_dword v3, v2, {S(SW)}, s68 offen"); nini += 1
        if gfb:
            a(f"s_cmp_eq_u32 s35, 0\ns_cselect_b32 s68, s34, 0x40000000")
            a(f"buffer_store_dword v3, v2, {S(SW)}, s68 offen offset:64"); nini += 1
        a("s_mov_b64 exec, -1")
    a(f"v_and_b32 v14, 3, v4\nv_lshrrev_b32 v15, 2, v4\ns_mul_i32 s65, s{sB}, 224")
    a(f"v_mul_u32_u24 v12, 896, v15\nv_add_u32 v12, s65, v12\nv_lshl_add_u32 v28, v5, 3, v12\nv_lshl_add_u32 v12, v5, 4, v12")
    a(f"s_lshr_b32 s65, s{sCG}, 1\ns_mul_i32 s65, s65, 224")
    a(f"v_mul_u32_u24 v30, 896, v14\nv_add_u32 v30, s65, v30\nv_lshl_add_u32 v31, v5, 3, v30\nv_lshl_add_u32 v30, v5, 4, v30")
    a(f"v_lshl_add_u32 v8, v5, 2, v14\nv_lshlrev_b32 v8, 4, v8\nv_lshl_add_u32 v8, v15, 16, v8")
    a(f"v_lshlrev_b32 v9, 5, v14\nv_lshl_add_u32 v9, v15, 3, v9\nv_lshl_add_u32 v9, v5, 7, v9")
    for t in range(1, 4): a(f"v_cmp_eq_u32 s[{26+2*t}:{27+2*t}], {t}, v14")
    a(f"v_lshlrev_b32 v15, 7, v15\nv_lshl_add_u32 v15, v14, 3, v15")
    a(f"v_lshl_add_u32 v13, v5, 10, v15\nv_lshl_add_u32 v29, v5, 9, v15")
    a(f"s_waitcnt vmcnt(14)" if not noq else "s_waitcnt vmcnt(0)")
    stamp(1)
    for k in range(16): a(f"v_lshlrev_b32 v{F+2*k}, 16, v{X+k}\nv_and_b32 v{F+2*k+1}, 0xffff0000, v{X+k}")
    a(f"v_pk_add_f32 v[14:15], {V2(F)}, {V2(F+2)}\nv_pk_add_f32 v[16:17], {V2(F+4)}, {V2(F+6)}")
    for k in range(4, 16, 2):
        a(f"v_pk_add_f32 v[14:15], v[14:15], {V2(F+2*k)}\nv_pk_add_f32 v[16:17], v[16:17], {V2(F+2*k+2)}")
    a("v_pk_add_f32 v[14:15], v[14:15], v[16:17]\nv_add_f32 v14, v14, v15")
    def rowsum(r):
        for sh in (8, 4, 2, 1): a(f"v_add_f32_dpp v{r}, v{r}, v{r} row_ror:{sh} {FULL}")
    rowsum(14)
    a(f"v_mul_f32 v18, {hex(f2u(-1.0 / 448))}, v14\nv_mov_b32 v19, v18")
    a("v_mov_b32 v14, 0\nv_mov_b32 v15, 0\nv_mov_b32 v16, 0\nv_mov_b32 v17, 0")
    for k in range(0, 16, 2):
        a(f"v_pk_add_f32 v[20:21], {V2(F+2*k)}, v[18:19]\nv_pk_add_f32 v[22:23], {V2(F+2*k+2)}, v[18:19]")
        a(f"v_pk_fma_f32 v[14:15], v[20:21], v[20:21], v[14:15]\nv_pk_fma_f32 v[16:17], v[22:23], v[22:23], v[16:17]")
    a("v_pk_add_f32 v[14:15], v[14:15], v[16:17]\nv_add_f32 v14, v14, v15\nv_cndmask_b32 v14, 0, v14, s[74:75]")
    rowsum(14)
    def rbf(r): a(f"v_cvt_pk_bf16_f32 v{r}, v{r}, v{r}\nv_and_b32 v{r}, 0xffff0000, v{r}")
    a(f"v_mul_f32 v14, {hex(f2u(1.0 / 448))}, v14"); rbf(14)
    a(f"v_add_f32 v14, {hex(f2u(1e-5))}, v14"); rbf(14)
    a("v_sqrt_f32 v14, v14"); rbf(14)
    a("v_rcp_f32 v16, v14\nv_mov_b32 v15, v14"); rbf(18)
    a("v_mov_b32 v17, v16\nv_mov_b32 v19, v18")
    for k in range(16):
        a(f"v_pk_add_f32 {V2(F+2*k)}, {V2(F+2*k)}, v[18:19]")
    for k in range(16):
        a(f"v_cvt_pk_bf16_f32 v{X+k}, v{F+2*k}, v{F+2*k+1}")
    for k in range(16): a(f"v_lshlrev_b32 v{F+2*k}, 16, v{X+k}\nv_and_b32 v{F+2*k+1}, 0xffff0000, v{X+k}")
    for k in range(16):
        t = 20 + 2 * (k & 3)
        a(f"v_pk_mul_f32 {V2(t)}, {V2(F+2*k)}, v[16:17]")
        a(f"v_pk_fma_f32 {V2(F+2*k)}, {V2(t)}, v[14:15], {V2(F+2*k)} neg_lo:[1,0,0] neg_hi:[1,0,0]")
        a(f"v_pk_fma_f32 {V2(t)}, {V2(F+2*k)}, v[16:17], {V2(t)}")
        a(f"v_cvt_pk_bf16_f32 v{X+k}, v{t}, v{t+1}")
    a("s_mov_b64 exec, s[74:75]")
    for u in range(4): a(f"ds_write_b128 v6, {V4(X+4*u)} offset:{XN + 16*u}")
    a("s_mov_b64 exec, -1")
    a("s_waitcnt lgkmcnt(0)")
    a(f"s_mul_i32 s{sTAG}, s{sTAG}, 0x9E3779B1\ns_add_u32 s{sTAG}, s{sTAG}, 0x7F4A7C15")
    for k in range(3): a(f"ds_read_b128 {V4(AF+4*k)}, v12 offset:{XN + 64*k}")
    a(f"ds_read_b64 {V2(AF+12)}, v28 offset:{XN + 192}")
    a(f"v_mov_b32 v{TG}, s{sTAG}\nv_lshrrev_b32 v{TG+1}, 8, v{TG}\nv_lshrrev_b32 v{TG+2}, 16, v{TG}\nv_lshrrev_b32 v{TG+3}, 24, v{TG}\ns_movk_i32 s78, 0xff")
    a(f"v_lshlrev_b32 v10, 4, v0")
    a(f"s_lshl_b32 s66, s{sH}, 12\ns_lshl_b32 s67, s{sB}, 10\ns_add_u32 s66, s66, s67\ns_lshl_b32 s67, s{sJ}, 8\ns_add_u32 s66, s66, s67\ns_add_u32 s66, s66, {QMB}")
    a(f"s_lshl_b32 s67, s{sBH}, 12\ns_add_u32 s67, s67, {QMB}")
    a("s_waitcnt vmcnt(0)")
    stamp(2)
    a(f"s_getreg_b32 s69, hwreg(HW_REG_XCC_ID, 0, 4)\nv_xor_b32 v{TG+4}, s69, v{TG+3}")
    def piece(af, transposed):
        for t in range(4):
            for k in range(3):
                o = WL0 + 4096 * k + 32 * t
                a(f"ds_read_b64_tr_b16 {V2(BF+14*t+4*k)}, v13 offset:{o}\nds_read_b64_tr_b16 {V2(BF+14*t+4*k+2)}, v13 offset:{o + 512}")
            a(f"ds_read_b64_tr_b16 {V2(BF+14*t+12)}, v29 offset:{WL0 + 12288 + 32 * t}")
        a("s_waitcnt lgkmcnt(0)")
        for k in range(3):
            for t in range(4):
                x, w = V4(af+4*k), V4(BF+14*t+4*k)
                a(f"v_mfma_f32_16x16x32_bf16 {V4(D+4*t)}, {w if transposed else x}, {x if transposed else w}, {'0' if k == 0 else V4(D+4*t)}")
        for t in range(4):
            x, w = V2(af+12), V2(BF+14*t+12)
            a(f"v_mfma_f32_16x16x16_bf16 {V4(D+4*t)}, {w if transposed else x}, {x if transposed else w}, {V4(D+4*t)}")
        for t in range(1, 4):
            for r in range(4):
                if transposed: a(f"v_cndmask_b32 v{D+r}, v{D+r}, v{D+4*t+r}, s[{26+2*t}:{27+2*t}]")
                else: a(f"v_mov_b32_dpp v{D+r}, v{D+4*t+r} {IDP} row_mask:{hex(1 << t)} bank_mask:0xf")
        for r in range(4): a(f"v_add_u32 v{D+r}, 0x80, v{D+r}")
        for r in range(4): a(f"v_bfi_b32 v{20+r}, s78, v{TG + r + (1 if transposed and r == 3 else 0)}, v{D+r}")
    a("; q block")
    piece(AF, True)
    if noq or not qst: a("s_branch L_pqok")
    a(f"buffer_store_dwordx4 v[20:23], v8, {S(SW)}, s66 offen{'' if fastq else ' sc1'}")
    stamp(3)
    for k in range(3): a(f"ds_read_b128 {V4(AF2+4*k)}, v30 offset:{XN + 64*k}")
    a(f"ds_read_b64 {V2(AF2+12)}, v31 offset:{XN + 192}")
    a(f"v_mov_b32 v16, 0\nv_mov_b32 v17, 0\nv_mov_b32 v18, 0\nv_mov_b32 v19, 0")
    a(f"s_mov_b32 exec_hi, 0xff\nds_write_b128 v10, v[16:19] offset:{HIMG}\ns_mov_b64 exec, -1")
    a(f"ds_write_b128 v16, v[16:19] offset:{PGL}")
    PQ = F
    def qload(k): a(f"buffer_load_dwordx4 {V4(PQ+4*k)}, v10, {S(SW)}, s67 offen offset:{1024 * k} sc1")
    def chk4(dst, src):
        a(f"v_xor_b32 v{dst}, v{src}, v{TG}")
        for t in range(1, 4): a(f"v_bitop3_b32 v{dst}, v{src+t}, v{TG+t}, v{dst} bitop3:0xbe")
        a(f"v_and_b32 v{dst}, s78, v{dst}")
    if sleepq: a(f"s_sleep {sleepq}")
    for k in range(4): qload(k)
    a(f"s_mov_b32 s{sCNT}, {spin}")
    a.label("L_pq")
    a("s_waitcnt vmcnt(0)")
    for k in range(4):
        a(f"v_xor_b32 v{X+4+k}, v{PQ+4*k+3}, v{TG+4}\nv_and_b32 v{X+k}, 0xf0, v{X+4+k}")
        for t in range(3): a(f"v_bitop3_b32 v{X+k}, v{PQ+4*k+t}, v{TG+t}, v{X+k} bitop3:0xbe")
        a(f"v_and_b32 v{X+k}, s78, v{X+k}")
    a(f"v_or3_b32 v24, v{X}, v{X+1}, v{X+2}\nv_or_b32 v24, v24, v{X+3}")
    a("v_cmp_ne_u32 vcc, 0, v24\ns_cbranch_vccz L_pqok", drain=False)
    if fastq:
        a(f"s_cmp_lg_u32 s{sCNT}, {spin - nq}\ns_cbranch_scc1 L_pqg", drain=False)
        a(f"buffer_store_dwordx4 v[20:23], v8, {S(SW)}, s66 offen sc1")
        a.label("L_pqg", drain=False)
    a(f"s_sleep 2")
    for k in range(4):
        a(f"v_cmp_ne_u32 vcc, 0, v{X+k}\ns_cbranch_vccz L_pqs{k}", drain=False)
        qload(k)
        a.label(f"L_pqs{k}", drain=False)
    a(f"s_sub_u32 s{sCNT}, s{sCNT}, 1\ns_cmp_lg_u32 s{sCNT}, 0\ns_cbranch_scc1 L_pq", drain=False)
    a.label("L_pqok", drain=False)
    for k in range(16): a(f"v_and_b32 v{PQ+k}, 0xffffff00, v{PQ+k}")
    for e in (0, 2):
        a(f"v_pk_add_f32 {V2(PQ+e)}, {V2(PQ+e)}, {V2(PQ+4+e)}\nv_pk_add_f32 {V2(PQ+8+e)}, {V2(PQ+8+e)}, {V2(PQ+12+e)}")
    for e in (0, 2): a(f"v_pk_add_f32 {V2(PQ+e)}, {V2(PQ+e)}, {V2(PQ+8+e)}")
    a(f"v_cvt_pk_bf16_f32 v24, v{PQ}, v{PQ+1}\nv_cvt_pk_bf16_f32 v25, v{PQ+2}, v{PQ+3}\nv_mov_b32 v17, 0")
    a(f"v_or3_b32 v26, v{X+4}, v{X+5}, v{X+6}\nv_or_b32 v26, v26, v{X+7}\nv_and_b32 v26, 15, v26\nv_cmp_ne_u32 vcc, 0, v26")
    a(f"s_or_b32 s69, vcc_lo, vcc_hi\nv_mov_b32 v26, v{TG}\nv_mov_b32 v27, s69")
    a(f"ds_write_b64 v9, v[24:25] offset:{QL}\nds_write_b64 v17, v[26:27] offset:{TAGL}")
    if fastq:
        a("s_cmp_eq_u32 s69, 0\ns_cbranch_scc1 L_qnear")
        a(f"buffer_store_dwordx4 v[20:23], v8, {S(SW)}, s66 offen sc1")
        a.label("L_qnear")
    a("s_waitcnt lgkmcnt(0)")
    stamp(4)
    if stamps: a(f"s_mov_b32 s92, s{sCNT}")
    a("s_barrier")
    a("s_setprio 0")
    if amp:
        a(f"s_cmp_lg_u32 s35, 0\ns_cbranch_scc1 L_noref\ns_not_b32 s71, s80\ns_atomic_umax s71, s[24:25], 200\ns_waitcnt lgkmcnt(0)")
        a.label("L_noref")
    if g0:
        a(f"s_cmp_lg_u32 s35, 15\ns_cbranch_scc1 L_nog0\ns_cmp_lg_u32 s69, 0\ns_cbranch_scc1 L_nog0")
        a("s_mov_b32 s71, 1\ns_atomic_add s71, s[24:25], 60 glc\ns_waitcnt lgkmcnt(0)")
        a(f"s_sub_u32 s71, s71, {r0}\ns_mul_i32 s71, s71, {g0}\ns_ashr_i32 s71, s71, 2\nv_mov_b32 v42, s71")
        a(f"s_mov_b64 exec, 15\nbuffer_store_dword v42, v2, {S(SW)}, s34 offen offset:64\ns_mov_b64 exec, -1")
        a.label("L_nog0")
    if noffn: a("s_branch L_hend")
    a(f"s_cmp_ge_u32 s{sKG}, 28\ns_cbranch_scc1 L_hend")
    a(f"s_bitcmp1_b32 s{sCG}, 0\ns_cselect_b32 s{SC_}, s18, s16\ns_cselect_b32 s{SC_+1}, s19, s17\ns_mov_b32 s{SC_+2}, {448 * 3584}\ns_mov_b32 s{SC_+3}, 0x20000")
    a(f"s_lshr_b32 s66, s{sCG}, 1\ns_mul_i32 s65, s66, {112 * 3584}\ns_lshl_b32 s67, s{sKG}, 7\ns_add_u32 s65, s65, s67")
    if fdma: dma(SC_, 11, 65, 3584, WL0, win=HW)
    a(f"s_lshl_b32 s67, s{sKG}, 13\ns_add_u32 s67, s67, {FMB}\ns_lshl_b32 s66, s{sCG}, 10\ns_add_u32 s66, s66, s67\ns_add_u32 s68, s67, 4096")
    a("s_waitcnt vmcnt(0)")
    piece(AF2, False)
    if fst and fastf:
        a("s_cmp_lg_u32 s69, 0\ns_cbranch_scc1 L_ffar")
        a(f"buffer_store_dwordx4 v[20:23], v10, {S(SW)}, s66 offen\ns_branch L_fdone")
        a.label("L_ffar")
    if fst: a(f"buffer_store_dwordx4 v[20:23], v10, {S(SW)}, s66 offen sc1")
    if fst and fastf: a.label("L_fdone")
    if not fpoll: a("s_branch L_hend")
    a(f"s_cmp_eq_u32 s{sCG}, 7\ns_cbranch_scc1 L_hend")
    def fload(k): a(f"buffer_load_dwordx4 {V4(F+4*k)}, v10, {S(SW)}, s{67 + (k >> 2)} offen offset:{1024 * (k & 3)} sc1")
    a(f"s_sleep {sleepf}")
    for k in range(8): fload(k)
    a(f"s_mov_b32 s{sCNT}, {spin}\nv_lshlrev_b32 v9, 1, v0")
    a.label("L_pf")
    a("s_waitcnt vmcnt(0)")
    for k in range(8): chk4(X + k, F + 4 * k)
    a(f"v_or3_b32 v24, v{X}, v{X+1}, v{X+2}\nv_or3_b32 v24, v24, v{X+3}, v{X+4}\nv_or3_b32 v24, v24, v{X+5}, v{X+6}\nv_or_b32 v24, v24, v{X+7}")
    a("v_cmp_ne_u32 vcc, 0, v24\ns_cbranch_vccz L_pfok", drain=False)
    a(f"s_sleep 16")
    for k in range(8):
        a(f"v_cmp_ne_u32 vcc, 0, v{X+k}\ns_cbranch_vccz L_pfs{k}", drain=False)
        fload(k)
        a.label(f"L_pfs{k}", drain=False)
    a(f"s_sub_u32 s{sCNT}, s{sCNT}, 1\ns_cbranch_scc0 L_pf", drain=False)
    a.label("L_pfok", drain=False)
    for k in range(32): a(f"v_and_b32 v{F+k}, 0xffffff00, v{F+k}")
    for e in range(0, 8, 2):
        a(f"v_pk_add_f32 {V2(F+e)}, {V2(F+e)}, {V2(F+8+e)}\nv_pk_add_f32 {V2(F+16+e)}, {V2(F+16+e)}, {V2(F+24+e)}")
    for e in range(0, 8, 2): a(f"v_pk_add_f32 {V2(F+e)}, {V2(F+e)}, {V2(F+16+e)}")
    for r in range(8): rbf(F + r)
    k1 = -2.0 * math.sqrt(2.0 / math.pi) * math.log2(math.e)
    for r in range(4):
        g, u, t = F + r, F + 4 + r, F + 8 + r
        a(f"v_mul_f32 v{t}, v{g}, v{g}\nv_mul_f32 v{t}, {hex(f2u(0.044715))}, v{t}\nv_fma_f32 v{t}, v{t}, v{g}, v{g}")
        a(f"v_mul_f32 v{t}, {hex(f2u(k1))}, v{t}\nv_exp_f32 v{t}, v{t}\nv_add_f32 v{t}, 1.0, v{t}\nv_rcp_f32 v{t}, v{t}\nv_mul_f32 v{g}, v{g}, v{t}")
        rbf(g)
        a(f"v_mul_f32 v{g}, v{g}, v{u}")
    a(f"v_cvt_pk_bf16_f32 v32, v{F}, v{F+1}\nv_cvt_pk_bf16_f32 v34, v{F+2}, v{F+3}")
    a(f"ds_write_b16 v9, v32 offset:{HIMG}\nds_write_b16_d16_hi v9, v32 offset:{HIMG + HROW}")
    a(f"ds_write_b16 v9, v34 offset:{HIMG + 2 * HROW}\nds_write_b16_d16_hi v9, v34 offset:{HIMG + 3 * HROW}")
    a("s_waitcnt lgkmcnt(0)")
    a.label("L_hend")
    a("s_mov_b64 exec, -1")
    if dpol is None:
        a("; reducer workgroups: which copy of hand-off 2 is closer?  Scalar loads return out of order: race untouched lines of both halves")
        a(f"s_cmp_lg_u32 s{sCG}, 7\ns_cbranch_scc1 L_noprobe")
        a(f"s_cmp_ge_u32 s{sKG}, 28\ns_cbranch_scc1 L_noprobe")
        a(f"s_and_b32 s67, s{sKG}, 0xfc\ns_lshl_b32 s67, s67, 3\ns_and_b32 s65, s{sKG}, 2\ns_add_u32 s67, s67, s65\ns_and_b32 s65, s{sKG}, 3\ns_add_u32 s67, s67, s65\ns_lshl_b32 s67, s67, 12\ns_add_u32 s67, s67, {MB2}")
        a(f"s_mov_b32 s70, 0\ns_mov_b32 s{sCNT}, {ntr - 1}")
        a.label("L_pr")
        for k in range(8): a(f"s_mov_b32 s{40+k}, s{sTAG}")
        a("s_add_u32 s48, s26, s67\ns_addc_u32 s49, s27, 0")
        for k, (cls, ln) in enumerate([(0, 0), (1, 0), (1, 1), (0, 1), (1, 2), (0, 2), (0, 3), (1, 3)]):
            a(f"s_load_dword s{40 + 4 * cls + ln}, s[48:49], {8192 * cls + 128 * ln}")
        a("s_waitcnt lgkmcnt(4)")
        for k in (0, 4, 5, 1, 6, 2, 3, 7): a(f"s_cmp_lg_u32 s{40+k}, s{sTAG}\n{'s_addc_u32' if k < 4 else 's_subb_u32'} s70, s70, 0")
        a(f"s_waitcnt lgkmcnt(0)\ns_add_u32 s67, s67, 512\ns_sub_u32 s{sCNT}, s{sCNT}, 1\ns_cbranch_scc0 L_pr")
        if stamps: a("s_mov_b32 s92, s70")
        a("s_getreg_b32 s71, hwreg(HW_REG_XCC_ID, 2, 1)\ns_sub_u32 s65, 0, s70\ns_cmp_lg_u32 s71, 0\ns_cselect_b32 s70, s65, s70")
        a("s_atomic_add s70, s[24:25], 48 glc\ns_waitcnt lgkmcnt(0)")
        a(f"v_mov_b32 v7, 0\ns_mov_b32 s{sCNT}, 4000")
        a.label("L_pw")
        a(f"ds_read_b32 v40, v7 offset:{PGL}\ns_waitcnt lgkmcnt(0)\nv_readfirstlane_b32 s65, v40\ns_cmp_ge_u32 s65, {Lv}\ns_cbranch_scc1 L_pv")
        a(f"s_sleep 4\ns_sub_u32 s{sCNT}, s{sCNT}, 1\ns_cbranch_scc0 L_pw")
        a.label("L_pv")
        a("s_mov_b32 s70, 0\ns_atomic_add s70, s[24:25], 48 glc\ns_waitcnt lgkmcnt(0)")
        if inv: a("s_not_b32 s70, s70")
        a(f"s_lshr_b32 s70, s70, 31\ns_xor_b32 s70, s70, s71\ns_lshl_b32 s70, s70, 13\nv_mov_b32 v40, s70\nds_write_b32 v7, v40 offset:{TAGL+8}\ns_waitcnt lgkmcnt(0)")
        a.label("L_noprobe")
    if fb and gfb == 2:
        a(f"s_cmp_lg_u32 s69, 0\ns_cbranch_scc1 L_gend\ns_cmp_ge_u32 s35, {nR}\ns_cbranch_scc1 L_gend")
        a(f"v_lshlrev_b32 v6, 2, v4\nv_lshl_add_u32 v6, v5, 7, v6\nv_mov_b32 v41, v{TG}\nv_mov_b32 v7, 0")
        a(f"s_lshl_b32 s66, s{sH}, 7\ns_add_u32 s66, s66, {GMB}\ns_mov_b32 s67, {GMB}\ns_mov_b32 s{sCNT}, 4000\ns_mul_i32 s70, s35, {dL}\ns_add_u32 s70, s70, {L0}")
        a.label("L_gw")
        a(f"ds_read_b32 v40, v7 offset:{PGL}\ns_waitcnt lgkmcnt(0)\nv_readfirstlane_b32 s65, v40\ns_cmp_ge_u32 s65, s70\ns_cbranch_scc1 L_gr")
        a(f"s_sleep 4\ns_sub_u32 s{sCNT}, s{sCNT}, 1\ns_cbranch_scc0 L_gw")
        a.label("L_gr")
        a(f"buffer_load_dword v40, v6, {S(SW)}, s34 offen sc1")
        a("s_mov_b64 exec, 0xffff")
        a(f"buffer_load_dwordx2 v[42:43], v2, {S(SW)}, s67 offen sc1")
        a("s_mov_b64 exec, -1\ns_waitcnt vmcnt(1)")
        for sh in (8, 4, 2, 1): a(f"v_add_u32_dpp v40, v40, v40 row_ror:{sh} {FULL}")
        a("v_add_u32_dpp v40, v40, v40 row_bcast:15 row_mask:0xa bank_mask:0xf\nv_add_u32_dpp v40, v40, v40 row_bcast:31 row_mask:0xc bank_mask:0xf")
        a("v_readlane_b32 s71, v40, 63\nv_mov_b32 v40, s71")
        a("s_mov_b64 exec, 1")
        a(f"buffer_store_dwordx2 v[40:41], v7, {S(SW)}, s66 offen sc1")
        a("s_mov_b64 exec, -1\ns_waitcnt vmcnt(1)")
        a(f"v_subrev_u32 v44, {64 * dL}, v40\nv_cmp_eq_u32 vcc, v43, v41\nv_cndmask_b32 v42, v44, v42, vcc\nv_sub_u32 v42, v42, v40")
        for sh in (8, 4, 2, 1): a(f"v_add_u32_dpp v42, v42, v42 row_ror:{sh} {FULL}")
        a(f"v_ashrrev_i32 v42, {4 + gsh}, v42\nv_add_u32 v42, {goff}, v42")
        a("s_mov_b64 exec, 15")
        a(f"buffer_store_dword v42, v2, {S(SW)}, s34 offen offset:64")
        a("s_mov_b64 exec, -1")
        a.label("L_gend")
    if fb and gfb == 3:
        a("; balancing round: when the head reaches this workgroup's level, its arrival rank (d_debug counter) sets the bias word")
        a(f"s_cmp_lg_u32 s69, 0\ns_cbranch_scc1 L_gend\ns_cmp_ge_u32 s35, {nR}\ns_cbranch_scc1 L_gend")
        a(f"v_lshlrev_b32 v6, 2, v4\nv_lshl_add_u32 v6, v5, 7, v6\nv_mov_b32 v7, 0")
        a(f"s_mov_b32 s{sCNT}, 4000\ns_mul_i32 s70, s35, {dL}\ns_add_u32 s70, s70, {L0}\ns_lshl_b32 s66, s35, 2")
        a.label("L_gw")
        a(f"ds_read_b32 v40, v7 offset:{PGL}\ns_waitcnt lgkmcnt(0)\nv_readfirstlane_b32 s65, v40\ns_cmp_ge_u32 s65, s70\ns_cbranch_scc1 L_gr")
        a(f"s_sleep 4\ns_sub_u32 s{sCNT}, s{sCNT}, 1\ns_cbranch_scc0 L_gw")
        a.label("L_gr")
        if gpoll:
            a(f"s_lshl_b32 s70, s70, 6\ns_add_u32 s70, s70, 16\ns_mov_b32 s{sCNT}, 3")
            a.label("L_gp")
            a(f"buffer_load_dword v40, v6, {S(SW)}, s34 offen sc1\ns_waitcnt vmcnt(0)")
            for sh in (8, 4, 2, 1): a(f"v_add_u32_dpp v40, v40, v40 row_ror:{sh} {FULL}")
            a("v_add_u32_dpp v40, v40, v40 row_bcast:15 row_mask:0xa bank_mask:0xf\nv_add_u32_dpp v40, v40, v40 row_bcast:31 row_mask:0xc bank_mask:0xf")
            a(f"v_readlane_b32 s71, v40, 63\ns_cmp_ge_u32 s71, s70\ns_cbranch_scc1 L_ga\ns_sub_u32 s{sCNT}, s{sCNT}, 1\ns_cbranch_scc0 L_gp")
            a.label("L_ga")
        a("s_mov_b32 s71, 1\ns_atomic_add s71, s[24:25], s66 glc\ns_waitcnt lgkmcnt(0)")
        a(f"s_sub_u32 s71, s71, {r0}\ns_mul_i32 s71, s71, {gain}\ns_ashr_i32 s71, s71, 2\nv_mov_b32 v42, s71")
        a("s_mov_b64 exec, 15")
        a(f"buffer_store_dword v42, v2, {S(SW)}, s34 offen offset:64")
        a("s_mov_b64 exec, -1")
        if rew:
            a(f"s_cmp_lt_u32 s35, {nR - rew}\ns_cbranch_scc1 L_gend")
            a("s_getpc_b64 s[66:67]")
            a.label("L_pc2", drain=False)
            a("s_sub_u32 s66, s66, L_pc2-L_tail\ns_subb_u32 s67, s67, 0\nv_min_u32 v2, L_helper-L_tail, v2\nglobal_load_dword v31, v2, s[66:67]")
        a.label("L_gend")
    if fb and gfb == 1:
        NIT = (15 - NP) + 1 + 15
        a("s_or_b32 s65, s35, s69\ns_cmp_lg_u32 s65, 0\ns_cbranch_scc1 L_gend")
        a(f"v_lshlrev_b32 v6, 2, v4\nv_lshl_add_u32 v6, v5, 7, v6\nv_mov_b32 v41, v{TG}\nv_mov_b32 v7, 0")
        a(f"s_lshl_b32 s66, s{sH}, {3 if gsc else 7}\ns_add_u32 s66, s66, {GMB}\ns_mov_b32 s67, {GMB}\ns_mov_b32 s{sCNT}, 200\ns_mov_b32 s70, -1")
        a.label("L_g")
        a(f"buffer_load_dword v40, v6, {S(SW)}, s34 offen sc1")
        if gsc:
            a(f"s_waitcnt lgkmcnt(0)\ns_load_dwordx16 s[4:19], s[26:27], {GMB} glc\ns_load_dwordx16 s[40:55], s[26:27], {GMB + 64} glc\ns_waitcnt vmcnt(0)")
        else:
            a("s_mov_b64 exec, 0xffff")
            a(f"buffer_load_dwordx2 v[42:43], v2, {S(SW)}, s67 offen sc1")
            a("s_mov_b64 exec, -1\ns_waitcnt vmcnt(1)")
        a(f"v_cmp_le_u32 vcc, {NIT - gexit}, v40\ns_or_b32 s65, vcc_lo, vcc_hi\ns_and_b32 s65, s65, 0x10001\ns_cbranch_scc1 L_gend")
        for sh in (8, 4, 2, 1): a(f"v_add_u32_dpp v40, v40, v40 row_ror:{sh} {FULL}")
        a("v_add_u32_dpp v40, v40, v40 row_bcast:15 row_mask:0xa bank_mask:0xf\nv_add_u32_dpp v40, v40, v40 row_bcast:31 row_mask:0xc bank_mask:0xf")
        a("v_readlane_b32 s71, v40, 63\nv_mov_b32 v40, s71")
        a("s_mov_b64 exec, 1")
        a(f"buffer_store_dwordx2 v[40:41], v7, {S(SW)}, s66 offen sc1")
        a("s_mov_b64 exec, -1\ns_waitcnt vmcnt(1)")
        a("s_cmp_eq_u32 s70, -1\ns_cbranch_scc1 L_gskip")
        if gavg: a("s_add_u32 s70, s70, s71\ns_lshr_b32 s70, s70, 1")
        if gsc:
            a("s_waitcnt lgkmcnt(0)\ns_mov_b32 s65, 0")
            for k in range(16):
                r = (4 + 2 * k) if k < 8 else (40 + 2 * (k - 8))
                a(f"s_cmp_eq_u32 s{r+1}, s{sTAG}\ns_cselect_b32 s{r}, s{r}, s70\ns_add_u32 s65, s65, s{r}")
            a(f"s_lshl_b32 s70, s70, 4\ns_sub_u32 s65, s65, s70\ns_ashr_i32 s65, s65, {4 + gsh}\ns_add_u32 s65, s65, {goff}\nv_mov_b32 v42, s65")
        else:
          a(f"v_mov_b32 v44, s70\nv_cmp_eq_u32 vcc, v43, v41\nv_cndmask_b32 v42, v44, v42, vcc\nv_sub_u32 v42, v42, v44")
          for sh in (8, 4, 2, 1): a(f"v_add_u32_dpp v42, v42, v42 row_ror:{sh} {FULL}")
          a(f"v_ashrrev_i32 v42, {4 + gsh}, v42")
          if goff: a(f"v_add_u32 v42, {goff}, v42")
        a("s_mov_b64 exec, 15")
        a(f"buffer_store_dword v42, v2, {S(SW)}, s34 offen offset:64")
        a("s_mov_b64 exec, -1")
        a.label("L_gskip")
        a("s_mov_b32 s70, s71")
        if gsleep: a(f"s_sleep {gsleep}")
        a(f"s_sub_u32 s{sCNT}, s{sCNT}, 1\ns_cbranch_scc0 L_g")
        a.label("L_gend")
        if gsc: a("s_waitcnt lgkmcnt(0)")
    stamp(5)
    pad("H")
    dump_stamps(7)
    a.label("L_end")
    a("s_endpgm")
    a.raw('.section .rodata,"a"'); a.raw(".p2align 6"); a.raw(f".amdhsa_kernel {NAME}")
    a.raw("  .amdhsa_next_free_vgpr 256"); a.raw("  .amdhsa_next_free_sgpr 102"); a.raw("  .amdhsa_accum_offset 256")
    a.raw("  .amdhsa_group_segment_fixed_size 0"); a.raw("  .amdhsa_kernarg_size 96"); a.raw("  .amdhsa_user_sgpr_count 2")
    a.raw("  .amdhsa_user_sgpr_kernarg_segment_ptr 1"); a.raw("  .amdhsa_system_sgpr_workgroup_id_x 1"); a.raw(".end_amdhsa_kernel")
    return a.text()

if __name__ == "__main__":
    out = sys.argv[1]
    kw = eval("dict(" + (sys.argv[2] if len(sys.argv) > 2 else "") + ")")
    open(out, "w").write(gen(**kw))
```
